```python
import torch

def _softmax(x, axis=-1):
    return torch.softmax(x, dim=axis)
def _gelu(x):
    return torch.nn.functional.gelu(x, approximate="tanh")
def _silu(x):
    return torch.nn.functional.silu(x)
def _sigmoid(x):
    return torch.sigmoid(x)
def _layernorm(x, axis=-1, eps=1e-5):
    m = x.mean(dim=axis, keepdim=True)
    v = x.var(dim=axis, keepdim=True, unbiased=False)
    return (x - m) / torch.sqrt(v + eps)
def _scatter_add(tgt, idx, src, axis=0):
    return tgt.clone().index_add_(axis, idx, src)
def _segment_sum(src, seg, n):
    out = torch.zeros((n,) + src.shape[1:], dtype=src.dtype)
    return out.index_add_(0, seg, src)
def _pad(x, pw):
    flat = tuple(v for pair in reversed(pw) for v in pair)
    return torch.nn.functional.pad(x, flat)

kernel_name = 'recurrent_scan__ssm_conv_s4__dense_activation_mish__prompt'

def setup_inputs():

    _w = (lambda a: (lambda t: t.to(torch.bfloat16) if t.is_floating_point() else t)(torch.as_tensor(a)))
    def _A_setup():
        B, L, D, N = 1, 2048, 640, 192
        A_re = -(lambda _x: torch.exp(torch.as_tensor(_x)))((lambda *s: torch.randn(*s, dtype=torch.bfloat16) * 3.2)(D, N))
        A_im = torch.pi * (lambda *s: torch.randn(*s, dtype=torch.bfloat16) * 0.2)(D, N)
        B_re = (lambda *s: torch.randn(*s, dtype=torch.bfloat16) * 0.2)(D, N)
        B_im = (lambda *s: torch.randn(*s, dtype=torch.bfloat16) * 0.2)(D, N)
        C_re = (lambda *s: torch.randn(*s, dtype=torch.bfloat16) * 0.2)(D, N)
        C_im = (lambda *s: torch.randn(*s, dtype=torch.bfloat16) * 0.2)(D, N)
        log_dt = (lambda *s: torch.randn(*s, dtype=torch.bfloat16) * 0.2)(D) * 0.5 - 4.0
        Dskip = (lambda *s: torch.randn(*s, dtype=torch.bfloat16) * 0.2)(D)
        return {
            "u": _w((lambda *s: torch.randn(*s, dtype=torch.bfloat16) * 0.05)(B, L, D)),
            "A_re": _w(A_re),
            "A_im": _w(A_im),
            "B_re": _w(B_re),
            "B_im": _w(B_im),
            "C_re": _w(C_re),
            "C_im": _w(C_im),
            "log_dt": _w(log_dt),
            "Dskip": _w(Dskip),
        }
    _A_in = _A_setup()

    def _B_setup():
        B, S, D, F = 1, 2048, 640, 1536
        return {
            "x": _w((lambda *s: torch.randn(*s, dtype=torch.bfloat16) * 0.05)(B, S, D)),
            "w1": _w((lambda *s: torch.randn(*s, dtype=torch.bfloat16) * 0.8)(D, F) * (D ** -0.5)),
            "b1": _w((lambda *s: torch.randn(*s, dtype=torch.bfloat16) * 0.1)(F)),
            "w2": _w((lambda *s: torch.randn(*s, dtype=torch.bfloat16) * 0.1)(F, D) * (F ** -0.5)),
        }
    _B_in = _B_setup()

    return {
        "A_u": _A_in["u"],
        "A_A_re": _A_in["A_re"],
        "A_A_im": _A_in["A_im"],
        "A_B_re": _A_in["B_re"],
        "A_B_im": _A_in["B_im"],
        "A_C_re": _A_in["C_re"],
        "A_C_im": _A_in["C_im"],
        "A_log_dt": _A_in["log_dt"],
        "A_Dskip": _A_in["Dskip"],
        "B_x": _B_in["x"],
        "B_w1": _B_in["w1"],
        "B_b1": _B_in["b1"],
        "B_w2": _B_in["w2"],
    }

def reference(A_u, A_A_re, A_A_im, A_B_re, A_B_im, A_C_re, A_C_im, A_log_dt, A_Dskip, B_x, B_w1, B_b1, B_w2):
    def _A_ref(u, A_re, A_im, B_re, B_im, C_re, C_im, log_dt, Dskip):
        Bsz, L, D = u.shape
        dt = torch.exp(log_dt)[:, None]
        A = A_re + 1j * A_im
        Bc = B_re + 1j * B_im
        Cc = C_re + 1j * C_im
        logdA = dt * A
        dB = dt * Bc
        l = (lambda x, dt: x.to(dt))(torch.arange(L), A_re.dtype)
        P = torch.exp(logdA[:, :, None] * l[None, None, :])
        K = torch.einsum("dn,dnl,dn->dl", Cc, P, dB).real
        L2 = 2 * L
        Kp = _pad(K, ((0, 0), (0, L)))
        up = (lambda x, *d: x.permute(*d))(u, 0, 2, 1)
        up = _pad(up, ((0, 0), (0, 0), (0, L)))
        Kf = (lambda x, axes=(-2,-1): torch.fft.rfft2(x.float(), dim=axes))(Kp[:, None, :], axes=(-2, -1))
        Uf = (lambda x, axes=(-2,-1): torch.fft.rfft2(x.float(), dim=axes))(up[:, :, None, :], axes=(-2, -1))
        Yf = Uf * Kf[None, :, :, :]
        y = (lambda x, s, axes=(-2,-1): torch.fft.irfft2(x, s=s, dim=axes).to(torch.bfloat16))(Yf, (1, L2), axes=(-2, -1))[:, :, 0, :L]
        y = (lambda x, *d: x.permute(*d))(y, 0, 2, 1) + u * Dskip[None, None, :]
        return y

    def _B_ref(x, w1, b1, w2):
        h = torch.einsum("bsd,df->bsf", x, w1) + b1
        sp = torch.log1p(torch.exp(-torch.abs(h))) + torch.where(h > 0, h, torch.zeros_like(h))
        act = h * torch.tanh(sp)
        return torch.einsum("bsf,fd->bsd", act, w2)

    x = A_u
    xn = _layernorm(x, axis=-1)
    s = _A_ref(xn, A_A_re, A_A_im, A_B_re, A_B_im, A_C_re, A_C_im, A_log_dt, A_Dskip)
    g = _silu(_B_ref(xn, B_w1, B_b1, B_w2))
    return x + s * g
```

```python
import re

TRANS = ("v_exp_f32", "v_log_f32", "v_rcp_f32", "v_rsq_f32", "v_sqrt_f32", "v_sin_f32", "v_cos_f32", "v_rcp_iflag_f32")

def _regs(tok):
    tok = tok.strip()
    tok = re.sub(r"^-", "", tok)
    m = re.match(r"^abs\((.*)\)$", tok)
    if m: tok = m.group(1)
    tok = tok.strip("|")
    m = re.match(r"^([vsa])(\d+)$", tok)
    if m: return {(m.group(1), int(m.group(2)))}
    m = re.match(r"^([vsa])\[(\d+):(\d+)\]$", tok)
    if m: return {(m.group(1), i) for i in range(int(m.group(2)), int(m.group(3)) + 1)}
    if tok in ("vcc", "vcc_lo", "vcc_hi"): return {("vcc", 0)}
    if tok in ("exec", "exec_lo", "exec_hi"): return {("exec", 0)}
    if tok == "m0": return {("m0", 0)}
    return set()

class Ins:
    __slots__ = ("text", "op", "ops", "mods", "cls", "w", "r", "passes", "srcc", "srcab", "ws", "dpp", "stdata")
    def __init__(self, text):
        self.text = text
        t = text.split(";")[0].strip()
        parts = t.split(None, 1)
        self.op = parts[0]
        rest = parts[1] if len(parts) > 1 else ""
        ops = []; cur = ""; depth = 0
        for ch in rest:
            if ch in "[(": depth += 1
            if ch in "])": depth -= 1
            if ch == "," and depth == 0:
                ops.append(cur.strip()); cur = ""
            else: cur += ch
        if cur.strip(): ops.append(cur.strip())
        self.mods = ""
        if ops:
            sp = ops[-1].split(None, 1)
            if len(sp) > 1:
                ops[-1] = sp[0]; self.mods = sp[1]
        self.ops = ops
        self.w = set(); self.r = set(); self.passes = 0; self.srcc = set(); self.srcab = set(); self.ws = 1
        self.dpp = False; self.stdata = set()
        op = self.op
        R = [_regs(o) for o in ops]
        U = lambda xs: set().union(*xs) if xs else set()
        if op.startswith("v_mfma"):
            self.cls = "mfma"
            self.passes = 8 if "32x32" in op else 4
            self.w = R[0]; self.srcab = R[1] | R[2]; self.srcc = R[3]; self.r = self.srcab | self.srcc
        elif op.startswith("v_cmp"):
            self.cls = "valu"; self.w = set(R[0]); self.r = U(R[1:])
            if op.startswith("v_cmpx"): self.w |= {("exec", 0)}
        elif (op.startswith("v_permlane") and "swap" in op) or op.startswith("v_swap"):
            self.cls = "valu"; self.w = R[0] | R[1]; self.r = R[0] | R[1]
        elif op.startswith("v_"):
            self.cls = "valu"
            self.w = set(R[0]); self.r = U(R[1:])
            if re.match(r"v_(add|sub|subrev|addc|subb|subbrev)_co_", op) or op.startswith("v_mad_u64") or op.startswith("v_div_scale"):
                self.w |= R[1]; self.r = U(R[2:])
            if op.startswith("v_fmac") or op.startswith("v_pk_fmac") or op.startswith("v_dot2c") or op.startswith("v_writelane"):
                self.r |= R[0]
            if op.startswith("v_cndmask") and len(ops) == 3: self.r |= {("vcc", 0)}
            if any(k in self.mods for k in ("quad_perm", "row_", "wave_", "bank_mask")) or op.endswith("_dpp"):
                self.dpp = True; self.r |= R[0]
        elif op.startswith("ds_"):
            self.cls = "ds"
            if op.startswith("ds_read") or op.startswith("ds_bpermute") or op.startswith("ds_permute") or op.startswith("ds_swizzle") or "_rtn" in op:
                self.w = R[0]; self.r = U(R[1:])
                if "d16" in op: self.r |= R[0]
            else:
                self.r = U(R)
        elif op.startswith("buffer_"):
            self.cls = "vmem"
            if op in ("buffer_wbl2", "buffer_inv"):
                pass
            elif op.startswith("buffer_load"):
                if re.search(r"\blds\b", self.mods):
                    self.r = U(R) | {("m0", 0)}
                else:
                    self.w = R[0]; self.r = U(R[1:])
                    if "d16" in op: self.r |= R[0]
            else:
                self.r = U(R)
                if op.endswith("x3") or op.endswith("x4"): self.stdata = R[0]
                if "atomic" in op and "sc0" in self.mods: self.w = R[0]
        elif op.startswith("global_"):
            self.cls = "vmem"
            if op.startswith("global_load_lds"):
                self.r = U(R) | {("m0", 0)}
            elif op.startswith("global_load"):
                self.w = R[0]; self.r = U(R[1:])
            elif op.startswith("global_atomic") and "sc0" in self.mods:
                self.w = R[0]; self.r = U(R[1:])
            else:
                self.r = U(R)
                if op.endswith("x3") or op.endswith("x4"): self.stdata = R[1]
        elif op == "s_nop":
            self.cls = "nop"; self.ws = int(ops[0], 0) + 1
        elif op.startswith("s_"):
            self.cls = "salu"
            if op.startswith("s_cmp") or op.startswith("s_cbranch") or op in ("s_branch", "s_waitcnt", "s_barrier", "s_endpgm", "s_sleep", "s_setprio", "s_bitcmp0_b32", "s_bitcmp1_b32"):
                self.r = U(R)
            else:
                self.w = set(R[0]) if R else set(); self.r = U(R[1:])
                if "saveexec" in op: self.w |= {("exec", 0)}
        else:
            raise ValueError("unknown instruction " + text)

def need(p, c):
    n = 0
    vw = {x for x in p.w if x[0] in "va" and x[0] != "vcc"}
    vw = {x for x in p.w if x[0] in ("v", "a")}
    sw = {x for x in p.w if x[0] in ("s", "vcc")}
    if p.cls == "valu":
        if c.cls == "mfma" and vw & c.r: n = max(n, 2)
        if c.cls == "valu":
            if p.op.replace("_e32", "").replace("_e64", "") in TRANS and vw & c.r: n = max(n, 1)
            if c.dpp and vw & c.r: n = max(n, 2)
            if c.op.startswith("v_permlane") and vw & c.r: n = max(n, 2)
            if (c.op.startswith("v_readlane") or c.op.startswith("v_readfirstlane")) and vw & c.r: n = max(n, 1)
            if sw & c.r:
                n = max(n, 4 if (c.op.startswith("v_readlane") or c.op.startswith("v_writelane")) else 2)
            if p.op.startswith("v_dot") and (vw & (c.r | c.w)):
                same = p.op == c.op and len(c.ops) == 4 and _regs(c.ops[3]) == vw and not (vw & (_regs(c.ops[1]) | _regs(c.ops[2])))
                if not same: n = max(n, 3)
            if ("op_sel" in p.mods and not p.op.startswith("v_pk_")) or "sdwa" in p.op or "dst_sel" in p.mods:
                if vw & (c.r | c.w): n = max(n, 1)
            if ("exec", 0) in p.w:
                if c.dpp: n = max(n, 5)
                if c.op.startswith("v_read") or c.op.startswith("v_writelane") or c.op.startswith("v_permlane"): n = max(n, 4)
        if p.op.startswith("v_dot") and c.cls in ("vmem", "ds", "mfma") and vw & c.r: n = max(n, 3)
        if c.cls == "mfma" and ("exec", 0) in p.w: n = max(n, 4)
        if c.cls == "vmem" and sw & c.r: n = max(n, 5)
        if c.cls == "salu" and sw & c.r: n = max(n, 1)
    if p.cls == "mfma":
        big = {4: 8, 8: 12}[p.passes]
        if c.cls == "mfma":
            if p.w & c.srcab: n = max(n, big)
            if p.w & c.srcc:
                if not (p.w == c.srcc and p.passes == c.passes): n = max(n, {4: 6, 8: 10}[p.passes])
            elif p.w & c.w: n = max(n, big)
        elif c.cls in ("valu", "vmem", "ds"):
            if p.w & (c.r | c.w): n = max(n, big)
        if c.cls == "valu" and p.srcc & c.w: n = max(n, {4: 3, 8: 7}[p.passes])
    if p.cls == "salu" and ("m0", 0) in p.w and ("m0", 0) in c.r and c.cls in ("vmem", "ds"): n = max(n, 1)
    if p.cls == "vmem" and p.stdata and (p.stdata & c.w):
        n = max(n, 2 if c.cls in ("valu", "mfma") else 1)
    return n

class Asm:
    def __init__(self):
        self.items = []
        self.hist = []
        self.vm = 0; self.lg = 0
        self.nnop = 0
    def raw(self, text):
        self.items.append(text)
    def label(self, name):
        self.items.append(name + ":")
    def flush_hist(self):
        self.hist = []
    def __call__(self, text):
        for line in text.split("\n"):
            line = line.strip()
            if not line or line.startswith(";"): continue
            self._emit(line)
    def _emit(self, text):
        ins = Ins(text)
        dist = 0; pad = 0
        for p in reversed(self.hist):
            n = need(p, ins)
            if n > dist: pad = max(pad, n - dist)
            dist += p.ws
            if dist >= 24: break
        while pad > 0:
            k = min(pad, 16)
            nop = Ins(f"s_nop {k-1}")
            self.hist.append(nop); self.items.append("    " + nop.text); self.nnop += 1
            pad -= k
        self.hist.append(ins)
        if len(self.hist) > 64: self.hist = self.hist[-40:]
        self.items.append("    " + text)
        if ins.cls == "vmem" and ins.op not in ("buffer_inv",): self.vm += 1
        if ins.cls == "ds": self.lg += 1
    def vtok(self): return self.vm
    def ltok(self): return self.lg
    def wait(self, vm=None, lg=None):
        parts = []
        if vm is not None:
            n = self.vm - vm
            assert 0 <= n
            parts.append(f"vmcnt({min(n,63)})")
        if lg is not None:
            n = self.lg - lg
            assert 0 <= n
            if n <= 15: parts.append(f"lgkmcnt({n})")
            else: parts.append("lgkmcnt(15)")
        if parts: self("s_waitcnt " + " ".join(parts))
    def text(self):
        return "\n".join(self.items) + "\n"

def v(a, n=1):
    return f"v{a}" if n == 1 else f"v[{a}:{a+n-1}]"
def s(a, n=1):
    return f"s{a}" if n == 1 else f"s[{a}:{a+n-1}]"

class Alloc:
    def __init__(self, start=0, limit=256):
        self.n = start; self.limit = limit; self.hi = start
    def __call__(self, cnt=1, align=1):
        if cnt >= 2: align = max(align, 2)
        self.n = (self.n + align - 1) // align * align
        r = self.n; self.n += cnt
        assert self.n <= self.limit, f"register overflow {self.n}"
        self.hi = max(self.hi, self.n)
        return r
    def mark(self): return self.n
    def reset(self, m): self.n = m
```

```python
import sys, os, struct, math
sys.path.insert(0, os.path.dirname(os.path.abspath(__file__)))
from asmlib import *

NAME = "recurrent_scan__ssm_conv_s4__dense_activation_mish__prompt"
L, D, N, F = 2048, 640, 192, 1536

WS_XT  = 0x0000000
WS_KR  = 0x0400000
WS_ST  = 0x0800000
WS_W2A = 0x0C00000
WS_ACT = 0x1000000
SZ_T = D * L * 2
SZ_W2A = F * D * 2
SZ_ACT = L * F * 2

def f32(x): return "0x%08x" % struct.unpack("<I", struct.pack("<f", x))[0]
LOG2E = 1.4426950408889634
LN2 = 0.6931471805599453

def srd(a, sreg, karg_off=None, size=None):
    a(f"s_mov_b32 s{sreg+2}, {size}")
    a(f"s_mov_b32 s{sreg+3}, 0x20000")

def srd_from(a, sreg, base, off, size):
    a(f"s_add_u32 s{sreg}, s{base}, {off}")
    a(f"s_addc_u32 s{sreg+1}, s{base+1}, 0")
    a(f"s_mov_b32 s{sreg+2}, {size}")
    a(f"s_mov_b32 s{sreg+3}, 0x20000")

def bf16r(a, dst, src):
    a(f"v_cvt_pk_bf16_f32 v{dst}, v{src}, v{src}")
    a(f"v_and_b32 v{dst}, 0xffff0000, v{dst}")

G1_SLOT = 24576
def gemm1(a):
    R = Alloc(1)
    acc = [[R(4, 4) for ct in range(2)] for rt in range(6)]
    sx = [R(4, 4) for _ in range(2)]
    sxx = [R(4, 4) for _ in range(2)]
    cs = [R(4, 4) for _ in range(2)]
    NXS = 12
    X = [[R(4, 4) for ct in range(2)] for _ in range(NXS)]
    A = [[R(4, 4) for rt in range(6)] for _ in range(2)]
    ones = R(4, 4)
    vE = [R() for _ in range(3)]; vO = [R() for _ in range(3)]
    vW = [R() for _ in range(3)]
    vX = [R() for _ in range(2)]
    lane = R(); t0 = R(); t1 = R(); t2 = R(); t3 = R()
    b1r = [R(2, 2) for _ in range(2)]
    sX, sW1, sB1, sACT = 8, 12, 16, 20
    sWave, sRB, sCB, sT, sT2, sWoff, sM0 = 24, 25, 26, 27, 28, 29, 30
    sP = [32, 33, 34]
    a("s_load_dwordx2 s[8:9], s[0:1], 0")
    a("s_load_dwordx2 s[12:13], s[0:1], 80")
    a("s_load_dwordx2 s[16:17], s[0:1], 88")
    a("s_load_dwordx2 s[4:5], s[0:1], 120")
    a(f"v_lshrrev_b32 v{t0}, 6, v0")
    a(f"v_and_b32 v{lane}, 63, v0")
    a(f"v_readfirstlane_b32 s{sWave}, v{t0}")
    a(f"s_and_b32 s{sT}, s2, 7")
    a(f"s_lshr_b32 s{sT2}, s2, 3")
    a(f"s_lshr_b32 s{sRB}, s{sT}, 1")
    a(f"s_lshl_b32 s{sRB}, s{sRB}, 2")
    a(f"s_and_b32 s{sCB}, s{sT2}, 3")
    a(f"s_add_u32 s{sRB}, s{sRB}, s{sCB}")
    a(f"s_and_b32 s{sCB}, s{sT}, 1")
    a(f"s_lshl_b32 s{sCB}, s{sCB}, 3")
    a(f"s_lshr_b32 s{sT2}, s{sT2}, 2")
    a(f"s_add_u32 s{sCB}, s{sCB}, s{sT2}")
    srd(a, sX, size=L * D * 2); srd(a, sW1, size=D * F * 2); srd(a, sB1, size=F * 2)
    for i in range(3):
        a(f"v_add_u32 v{t0}, {64*i}, v{lane}")
        a(f"v_mul_u32_u24 v{t1}, 0xaaab, v{t0}")
        a(f"v_lshrrev_b32 v{t1}, 19, v{t1}")
        a(f"v_mul_u32_u24 v{t2}, 12, v{t1}")
        a(f"v_sub_u32 v{t2}, v{t0}, v{t2}")
        a(f"v_lshrrev_b32 v{t3}, 2, v{t1}")
        a(f"v_and_b32 v{t3}, 2, v{t3}")
        a(f"v_xor_b32 v{t2}, v{t2}, v{t3}")
        a(f"v_lshlrev_b32 v{t2}, 4, v{t2}")
        a(f"v_mul_u32_u24 v{t1}, 3072, v{t1}")
        a(f"v_add_u32 v{vW[i]}, v{t1}, v{t2}")
    a(f"s_mul_i32 s{sWoff}, s{sWave}, {32*3072}")
    a(f"s_mul_i32 s{sT}, s{sCB}, 192")
    a(f"s_add_u32 s{sWoff}, s{sWoff}, s{sT}")
    a(f"s_mul_i32 s{sM0}, s{sWave}, 6144")
    a(f"s_lshl_b32 s{sT}, s{sRB}, 7")
    a(f"s_lshl_b32 s{sT2}, s{sWave}, 5")
    a(f"s_add_u32 s{sT}, s{sT}, s{sT2}")
    a(f"v_and_b32 v{t0}, 15, v{lane}")
    a(f"v_add_u32 v{t0}, s{sT}, v{t0}")
    a(f"v_mul_u32_u24 v{t0}, 1280, v{t0}")
    a(f"v_lshrrev_b32 v{t1}, 4, v{lane}")
    a(f"v_lshl_add_u32 v{vX[0]}, v{t1}, 4, v{t0}")
    a(f"v_add_u32 v{vX[1]}, {16*1280}, v{vX[0]}")
    a("s_waitcnt lgkmcnt(0)")
    srd_from(a, sACT, 4, WS_ACT, SZ_ACT)

    tokW = {}; tokX = {}
    def issue_w(c):
        for i in range(6):
            a(f"s_add_u32 m0, s{sM0}, {(c % 3) * G1_SLOT + i * 1024}")
            if i % 3 == 0:
                a(f"s_add_u32 s{sT}, s{sWoff}, {(128 * c + 16 * (i // 3)) * 3072}")
            a(f"buffer_load_dwordx4 v{vW[i % 3]}, s[{sW1}:{sW1+3}], s{sT} offen lds")
        tokW[c] = a.vtok()
    def issue_x(ks):
        for ct in range(2):
            a(f"buffer_load_dwordx4 {v(X[ks % NXS][ct], 4)}, v{vX[ct]}, s[{sX}:{sX+3}], 0 offen offset:{ks*64}")
        tokX[ks] = a.vtok()
    for c in range(3):
        issue_w(c)
        for ks in range(4 * c, 4 * c + 4): issue_x(ks)

    a(f"v_lshrrev_b32 v{t0}, 4, v{lane}")
    a(f"v_bfe_u32 v{t1}, v{lane}, 2, 2")
    a(f"v_lshl_add_u32 v{t1}, v{t0}, 3, v{t1}")
    a(f"v_mul_u32_u24 v{t1}, 192, v{t1}")
    a(f"v_and_b32 v{t2}, 3, v{lane}")
    a(f"v_lshl_add_u32 v{t1}, v{t2}, 3, v{t1}")
    a(f"v_and_b32 v{t0}, 1, v{t0}")
    a(f"v_lshlrev_b32 v{t0}, 5, v{t0}")
    a(f"v_add_u32 v{t2}, v{t1}, v{t0}")
    a(f"v_sub_u32 v{t3}, v{t1}, v{t0}")
    a(f"v_add_u32 v{t3}, 32, v{t3}")
    for P in range(3):
        a(f"s_add_u32 s{sP[P]}, s{sWave}, {P}")
        a(f"s_cmp_ge_u32 s{sP[P]}, 3")
        a(f"s_cselect_b32 s{sT}, 3, 0")
        a(f"s_sub_u32 s{sP[P]}, s{sP[P]}, s{sT}")
        a(f"s_lshl_b32 s{sT}, s{sP[P]}, 6")
        a(f"v_add_u32 v{vE[P]}, s{sT}, v{t2}")
        a(f"v_add_u32 v{vO[P]}, s{sT}, v{t3}")
    for i in range(4): a(f"v_mov_b32 v{ones+i}, 0x3f803f80")

    tokA = {}
    def read_a(ks):
        off = (ks % 4) * 6144
        for rt in range(6):
            ad = (vE if rt % 2 == 0 else vO)[rt // 2]
            for e in range(2):
                a(f"ds_read_b64_tr_b16 {v(A[ks % 2][rt] + 2*e, 2)}, v{ad} offset:{off + 768*e}")
            tokA[(ks, rt)] = a.ltok()
    def bump(c):
        d = ((c % 3) - ((c - 1) % 3)) * G1_SLOT
        for r_ in vE + vO:
            if d > 0: a(f"v_add_u32 v{r_}, {d}, v{r_}")
            else: a(f"v_subrev_u32 v{r_}, {-d}, v{r_}")
    def mf(d, A_, B_, first):
        c = "0" if first else v(d, 4)
        a(f"v_mfma_f32_16x16x32_bf16 {v(d,4)}, {v(A_,4)}, {v(B_,4)}, {c}")

    a.wait(vm=tokW[0])
    a("s_barrier")
    read_a(0)
    for ks in range(20):
        c = ks // 4
        first = ks == 0
        last_in_chunk = ks % 4 == 3
        if last_in_chunk and ks < 19:
            a.wait(vm=max(tokW[c + 1], tokX[ks]), lg=a.ltok())
            a("s_barrier")
            bump(c + 1)
            read_a(ks + 1)
            if c + 3 < 5: issue_w(c + 3)
        else:
            if ks < 19: read_a(ks + 1)
            a.wait(vm=tokX[ks])
        Xs = X[ks % NXS]; As = A[ks % 2]
        for ct in range(2):
            mf(sx[ct], ones, Xs[ct], first)
            mf(sxx[ct], Xs[ct], Xs[ct], first)
        for rt in range(6):
            a.wait(lg=tokA[(ks, rt)])
            for ct in range(2): mf(acc[rt][ct], As[rt], Xs[ct], first)
            if rt < 2: mf(cs[rt], As[rt], ones, first)
        if ks + NXS < 20: issue_x(ks + NXS)

    E = Alloc(X[0][0], limit=A[1][5] + 4)
    csv = [E(4, 4) for _ in range(6)]
    b1v = [E(4, 4) for _ in range(6)]
    b1p = [E(2, 2) for _ in range(6)]
    rr = [E(2, 2) for _ in range(2)]
    tmp = [E(2, 2) for _ in range(12)]
    outp = [E(4, 4) for _ in range(2)]
    vq = E(); vcs = E(); vst = E(); vbp = E()
    a(f"v_lshrrev_b32 v{vq}, 4, v{lane}")
    a(f"v_lshlrev_b32 v{t0}, 3, v{vq}")
    a(f"s_mul_i32 s{sT2}, s{sCB}, 192")
    for P in range(3):
        a(f"s_lshl_b32 s{sT}, s{sP[P]}, 6")
        a(f"s_add_u32 s{sT}, s{sT}, s{sT2}")
        for o in range(2):
            a(f"buffer_load_dwordx2 {v(b1p[2*P+o],2)}, v{t0}, s[{sB1}:{sB1+3}], s{sT} offen offset:{32*o}")
    tokb = a.vtok()
    CSOFF = 2 * G1_SLOT
    a(f"v_lshlrev_b32 v{vcs}, 4, v{vq}")
    a(f"s_lshl_b32 s{sT}, s{sP[0]}, 7")
    a(f"v_add_u32 v{t1}, s{sT}, v{vcs}")
    for o in range(2):
        a(f"ds_write_b128 v{t1}, {v(cs[o],4)} offset:{CSOFF + 64*o}")
    a(f"s_mov_b32 s36, 0x22222222"); a(f"s_mov_b32 s37, 0x22222222")
    a(f"s_mov_b32 s38, 0x44444444"); a(f"s_mov_b32 s39, 0x44444444")
    a(f"s_mov_b32 s40, 0x88888888"); a(f"s_mov_b32 s41, 0x88888888")
    a(f"v_and_b32 v{t2}, 15, v{lane}")
    a(f"v_lshrrev_b32 v{t3}, 2, v{t2}")
    a(f"v_lshl_add_u32 v{vbp}, v{t3}, 4, v{t2}")
    a(f"v_lshlrev_b32 v{vbp}, 2, v{vbp}")
    for ct in range(2):
        d = tmp[ct]
        a(f"v_cndmask_b32 v{d}, v{sxx[ct]}, v{sxx[ct]+1}, s[36:37]")
        a(f"v_cndmask_b32 v{d}, v{d}, v{sxx[ct]+2}, s[38:39]")
        a(f"v_cndmask_b32 v{d}, v{d}, v{sxx[ct]+3}, s[40:41]")
        a(f"ds_bpermute_b32 v{d+1}, v{vbp}, v{d}")
    a("s_waitcnt lgkmcnt(0)")
    a("s_barrier")
    for P in range(3):
        a(f"s_lshl_b32 s{sT}, s{sP[P]}, 7")
        a(f"v_add_u32 v{t1}, s{sT}, v{vcs}")
        for o in range(2):
            a(f"ds_read_b128 {v(csv[2*P+o],4)}, v{t1} offset:{CSOFF + 64*o}")
    for ct in range(2):
        d = tmp[ct]; m = tmp[2 + ct]
        a(f"v_mul_f32 v{m}, {f32(1.0/D)}, v{sx[ct]}")
        a(f"v_mul_f32 v{d}, v{m}, v{m}")
        a(f"v_mul_f32 v{d+1}, {f32(1.0/D)}, v{d+1}")
        a(f"v_sub_f32 v{d}, v{d+1}, v{d}")
        a(f"v_max_f32 v{d}, 0, v{d}")
        bf16r(a, d, d)
        a(f"v_add_f32 v{d}, {f32(1e-5)}, v{d}")
        bf16r(a, d, d)
        a(f"v_sqrt_f32 v{d}, v{d}")
        bf16r(a, d, d)
        a(f"v_rcp_f32 v{rr[ct]}, v{d}")
        bf16r(a, m, m)
        a(f"v_mul_f32 v{rr[ct]+1}, v{m}, v{rr[ct]}")
        a(f"v_sub_f32 v{rr[ct]+1}, 0, v{rr[ct]+1}")
    a.wait(vm=tokb)
    for rt in range(6):
        a(f"v_lshlrev_b32 v{b1v[rt]}, 16, v{b1p[rt]}")
        a(f"v_and_b32 v{b1v[rt]+1}, 0xffff0000, v{b1p[rt]}")
        a(f"v_lshlrev_b32 v{b1v[rt]+2}, 16, v{b1p[rt]+1}")
        a(f"v_and_b32 v{b1v[rt]+3}, 0xffff0000, v{b1p[rt]+1}")
    a(f"v_lshlrev_b32 v{vst}, 4, v{lane}")
    a(f"s_lshl_b32 s{sT}, s{sRB}, 3")
    a(f"s_lshl_b32 s{sT2}, s{sWave}, 1")
    a(f"s_add_u32 s{sT}, s{sT}, s{sT2}")
    a(f"s_mul_i32 s{sT}, s{sT}, 48")
    a(f"s_mul_i32 s{sT2}, s{sCB}, 3")
    a(f"s_add_u32 s{sT}, s{sT}, s{sT2}")
    for P in range(3):
        a(f"s_add_u32 s{sP[P]}, s{sP[P]}, s{sT}")
        a(f"s_lshl_b32 s{sP[P]}, s{sP[P]}, 10")
    a(f"s_mov_b32 s42, {f32(LOG2E)}"); a(f"s_mov_b32 s43, {f32(LOG2E)}")
    a("s_waitcnt lgkmcnt(0)")
    k = 0
    for P in range(3):
        for ct in range(2):
            op = outp[k % 2]; k += 1
            hs = []
            for o in range(2):
                rt = 2 * P + o
                for hf in range(2):
                    h = acc[rt][ct] + 2 * hf
                    tt = tmp[len(hs)]
                    a(f"v_pk_fma_f32 {v(tt,2)}, {v(csv[rt]+2*hf,2)}, {v(rr[ct],2)}, {v(b1v[rt]+2*hf,2)} op_sel:[0,1,0] op_sel_hi:[1,1,1]")
                    a(f"v_pk_fma_f32 {v(h,2)}, {v(h,2)}, {v(rr[ct],2)}, {v(tt,2)} op_sel:[0,0,0] op_sel_hi:[1,0,1]")
                    hs.append(h)
            for i, h in enumerate(hs):
                a(f"v_pk_mul_f32 {v(tmp[i],2)}, {v(h,2)}, s[42:43]")
            for i, h in enumerate(hs):
                a(f"v_min_f32 v{tmp[i]}, {f32(30.0)}, v{tmp[i]}")
                a(f"v_min_f32 v{tmp[i]+1}, {f32(30.0)}, v{tmp[i]+1}")
            for i, h in enumerate(hs):
                a(f"v_exp_f32 v{tmp[i]}, v{tmp[i]}")
                a(f"v_exp_f32 v{tmp[i]+1}, v{tmp[i]+1}")
            for i, h in enumerate(hs):
                a(f"v_pk_add_f32 {v(tmp[4+i],2)}, {v(tmp[i],2)}, 2.0 op_sel_hi:[1,0]")
            for i, h in enumerate(hs):
                a(f"v_pk_mul_f32 {v(tmp[i],2)}, {v(tmp[i],2)}, {v(tmp[4+i],2)}")
            for i, h in enumerate(hs):
                a(f"v_pk_add_f32 {v(tmp[4+i],2)}, {v(tmp[i],2)}, 2.0 op_sel_hi:[1,0]")
            for i, h in enumerate(hs):
                a(f"v_rcp_f32 v{tmp[4+i]}, v{tmp[4+i]}")
                a(f"v_rcp_f32 v{tmp[4+i]+1}, v{tmp[4+i]+1}")
            for i, h in enumerate(hs):
                a(f"v_pk_mul_f32 {v(h,2)}, {v(h,2)}, {v(tmp[i],2)}")
            for i, h in enumerate(hs):
                a(f"v_pk_mul_f32 {v(h,2)}, {v(h,2)}, {v(tmp[4+i],2)}")
            for i, h in enumerate(hs):
                a(f"v_cvt_pk_bf16_f32 v{op+i}, v{h}, v{h+1}")
            if ct == 0:
                a(f"buffer_store_dwordx4 {v(op,4)}, v{vst}, s[{sACT}:{sACT+3}], s{sP[P]} offen")
            else:
                a(f"s_add_u32 s{sT}, s{sP[P]}, {48*1024}")
                a(f"buffer_store_dwordx4 {v(op,4)}, v{vst}, s[{sACT}:{sACT+3}], s{sT} offen")
    a("s_endpgm")
    return R.hi

KG_S = 272
KG_WAVE = 64 * KG_S
COARSE = list(range(8)) + [256, 258, 260, 262, 512, 516, 768, 772, 1024, 1280, 1536, 1792, 2048]
def kgen(a, wg0):
    R = Alloc(1)
    lane = R(); t0 = R(); t1 = R(); t2 = R(); t3 = R()
    P = [[R() for _ in range(6)] for _ in range(3)]
    vdt = R(); vwr = R(); vrdA = R(); voff = R()
    accK = R(16, 4)
    FA = [R(4, 4) for _ in range(8)]; FB = [R(4, 4) for _ in range(8)]
    pr = lambda: R(2, 2)
    l1, l8, l256, W, Fc, Fn, G, Gn, T, T2, G2, G4, G6, V, a2b = [pr() for _ in range(15)]
    pk = [R() for _ in range(4)]
    sWave, sD, sT, sCnt = 24, 25, 26, 27
    SP = [8, 12, 16, 20, 28, 32]
    sLD, sKR = 36, 40
    for i, sr in enumerate(SP):
        a(f"s_load_dwordx2 s[{sr}:{sr+1}], s[0:1], {8 + 8*i}")
    a(f"s_load_dwordx2 s[{sLD}:{sLD+1}], s[0:1], 56")
    a("s_load_dwordx2 s[4:5], s[0:1], 120")
    a(f"v_lshrrev_b32 v{t0}, 6, v0")
    a(f"v_and_b32 v{lane}, 63, v0")
    a(f"v_readfirstlane_b32 s{sWave}, v{t0}")
    a(f"s_sub_u32 s{sD}, s2, {wg0}")
    a(f"s_lshl_b32 s{sD}, s{sD}, 2")
    a(f"s_add_u32 s{sD}, s{sD}, s{sWave}")
    for sr in SP: srd(a, sr, size=D * N * 2)
    srd(a, sLD, size=D * 2)
    a(f"s_mul_i32 s{sT}, s{sD}, {N*2}")
    a(f"v_lshlrev_b32 v{voff}, 1, v{lane}")
    a(f"s_lshl_b32 s{sCnt}, s{sD}, 1")
    a(f"v_mov_b32 v{t1}, s{sCnt}")
    a("s_waitcnt lgkmcnt(0)")
    a(f"buffer_load_ushort v{vdt}, v{t1}, s[{sLD}:{sLD+3}], 0 offen")
    for p in range(3):
        for i, sr in enumerate(SP):
            a(f"buffer_load_ushort v{P[p][i]}, v{voff}, s[{sr}:{sr+3}], s{sT} offen offset:{128*p}")
    a(f"s_lshl_b32 s{sT}, s{sD}, 12")
    a(f"s_add_u32 s{sT}, s{sT}, {WS_KR}")
    srd_from(a, sKR, 4, f"s{sT}", 4096)
    a(f"s_mul_i32 s{sT}, s{sWave}, {KG_WAVE}")
    a(f"v_lshlrev_b32 v{vwr}, 2, v{lane}")
    a(f"v_add_u32 v{vwr}, s{sT}, v{vwr}")
    a(f"v_and_b32 v{t0}, 31, v{lane}")
    a(f"v_mul_u32_u24 v{t0}, {KG_S}, v{t0}")
    a(f"v_lshrrev_b32 v{t1}, 5, v{lane}")
    a(f"v_lshl_add_u32 v{t0}, v{t1}, 4, v{t0}")
    a(f"v_add_u32 v{vrdA}, s{sT}, v{t0}")
    for i in range(16): a(f"v_mov_b32 v{accK+i}, 0")
    a("s_waitcnt vmcnt(0)")
    a(f"v_lshlrev_b32 v{vdt}, 16, v{vdt}")
    a(f"v_mul_f32 v{t0}, {f32(LOG2E)}, v{vdt}")
    a(f"s_mov_b32 s{sT}, {f32(LOG2E)}")
    a(f"v_fma_f32 v{t1}, v{vdt}, s{sT}, -v{t0}")
    lo = LOG2E - struct.unpack("<f", struct.pack("<f", LOG2E))[0]
    a(f"v_fmac_f32 v{t1}, {f32(lo)}, v{vdt}")
    a(f"v_exp_f32 v{t0}, v{t0}")
    a(f"v_mul_f32 v{t1}, {f32(LN2)}, v{t1}")
    a(f"v_fma_f32 v{t0}, v{t0}, v{t1}, v{t0}")
    bf16r(a, vdt, t0)
    a(f"s_mov_b32 s{sCnt}, 0")

    def cmul(dst, e, m):
        a(f"v_pk_mul_f32 {v(T,2)}, {v(e,2)}, {v(m,2)} op_sel:[0,0] op_sel_hi:[0,1]")
        a(f"v_pk_fma_f32 {v(dst,2)}, {v(e,2)}, {v(m,2)}, {v(T,2)} op_sel:[1,1,0] op_sel_hi:[1,0,1] neg_lo:[0,1,0]")
    npk = [0]
    def put(src, row, conj):
        r_ = pk[npk[0] % 4]; npk[0] += 1
        a(f"v_cvt_pk_bf16_f32 v{r_}, v{src}, {'-' if conj else ''}v{src+1}")
        a(f"ds_write_b32 v{vwr}, v{r_} offset:{row*KG_S}")
    def cexp(dst, scale):
        if scale == 1:
            a(f"v_exp_f32 v{t0}, v{a2b}")
            a(f"v_fract_f32 v{t1}, v{a2b+1}")
        else:
            a(f"v_mul_f32 v{t0}, {f32(float(scale))}, v{a2b}")
            a(f"v_mul_f32 v{t1}, {f32(float(scale))}, v{a2b+1}")
            a(f"v_exp_f32 v{t0}, v{t0}")
            a(f"v_fract_f32 v{t1}, v{t1}")
        a(f"v_cos_f32 v{dst}, v{t1}")
        a(f"v_sin_f32 v{dst+1}, v{t1}")
        a(f"v_mul_f32 v{dst}, v{dst}, v{t0}")
        a(f"v_mul_f32 v{dst+1}, v{dst+1}, v{t0}")
    def mfmas():
        for ks in range(8):
            a(f"v_mfma_f32_32x32x16_bf16 {v(accK,16)}, {v(FA[ks],4)}, {v(FB[ks],4)}, {v(accK,16)}")

    a.label("KG_loop")
    a.flush_hist()
    p0 = P[0]
    for i in range(6): a(f"v_lshlrev_b32 v{p0[i]}, 16, v{p0[i]}")
    a(f"v_mul_f32 v{p0[0]}, v{vdt}, v{p0[0]}")
    a(f"v_mul_f32 v{p0[1]}, v{vdt}, v{p0[1]}")
    a(f"v_mul_f32 v{T2}, v{vdt}, v{p0[2]}")
    a(f"v_mul_f32 v{T2+1}, v{vdt}, v{p0[3]}")
    a(f"v_mul_f32 v{a2b}, {f32(LOG2E)}, v{p0[0]}")
    a(f"v_mul_f32 v{a2b+1}, {f32(1.0/(2*math.pi))}, v{p0[1]}")
    a(f"v_mov_b32 v{V}, v{p0[4]}")
    a(f"v_mov_b32 v{V+1}, v{p0[5]}")
    cmul(W, V, T2)
    cexp(l8, 8); cexp(l1, 1); cexp(l256, 256)
    a(f"s_cmp_eq_u32 s{sCnt}, 0")
    a("s_cbranch_scc1 KG_skip")
    a("s_waitcnt lgkmcnt(0)")
    mfmas()
    a.label("KG_skip")
    a(f"v_mov_b32 v{pk[3]}, 0x3f80")
    a(f"ds_write_b32 v{vwr}, v{pk[3]}")
    put(l8, 1, False)
    cur = l8; bufs = [Fc, Fn]
    for f in range(2, 32):
        nx = bufs[f % 2]
        cmul(nx, cur, l8); put(nx, f, False); cur = nx
    put(W, 32, True)
    cur = W
    dst_of = {1: G, 2: G2, 3: G, 4: G4, 5: G, 6: G6, 7: G}
    for c in range(1, 8):
        nx = dst_of[c]
        cmul(nx, cur, l1); put(nx, 32 + c, True); cur = nx
    row = {val: 32 + i for i, val in enumerate(COARSE)}
    cur = W
    for j in range(1, 9):
        nx = bufs[j % 2]
        cmul(nx, cur, l256); put(nx, row[256 * j], True); cur = nx
    cmul(G, G2, l256); put(G, row[258], True)
    cmul(G, G6, l256); put(G, row[262], True)
    cmul(G, G4, l256); put(G, row[260], True)
    cmul(Gn, G, l256); put(Gn, row[516], True)
    cmul(G, Gn, l256); put(G, row[772], True)
    for ks in range(8):
        a(f"ds_read_b128 {v(FA[ks],4)}, v{vrdA} offset:{32*ks}")
        a(f"ds_read_b128 {v(FB[ks],4)}, v{vrdA} offset:{32*KG_S + 32*ks}")
    for i in range(6):
        a(f"v_mov_b32 v{P[0][i]}, v{P[1][i]}")
        a(f"v_mov_b32 v{P[1][i]}, v{P[2][i]}")
    a(f"s_add_u32 s{sCnt}, s{sCnt}, 1")
    a(f"s_cmp_lt_u32 s{sCnt}, 3")
    a("s_cbranch_scc1 KG_loop")
    vB = P[0][0]; vS = P[0][1]; c_ = P[0][2]; u0 = P[0][3]; u1 = P[0][4]; vJ = P[0][5]
    a(f"v_and_b32 v{c_}, 31, v{lane}")
    a(f"v_lshlrev_b32 v{vB}, 5, v{c_}")
    a(f"v_mov_b32 v{vS}, 1")
    a(f"v_subrev_u32 v{u0}, 12, v{c_}")
    a(f"v_and_b32 v{u1}, 1, v{u0}")
    a(f"v_lshrrev_b32 v{u0}, 1, v{u0}")
    a(f"v_lshl_add_u32 v{u0}, v{u0}, 6, v{u1}")
    a(f"v_add_u32 v{u0}, 384, v{u0}")
    a(f"v_cmp_gt_u32 vcc, 16, v{c_}")
    a(f"v_cndmask_b32 v{vB}, v{vB}, v{u0}, vcc")
    a(f"v_cndmask_b32 v{vS}, v{vS}, 2, vcc")
    a(f"v_add_u32 v{u0}, 248, v{c_}")
    a(f"v_cmp_gt_u32 vcc, 12, v{c_}")
    a(f"v_cndmask_b32 v{vB}, v{vB}, v{u0}, vcc")
    a(f"v_cndmask_b32 v{vS}, v{vS}, 4, vcc")
    a(f"v_cmp_gt_u32 vcc, 8, v{c_}")
    a(f"v_cndmask_b32 v{vB}, v{vB}, v{c_}, vcc")
    a(f"v_cndmask_b32 v{vS}, v{vS}, 8, vcc")
    a(f"v_lshlrev_b32 v{vS}, 2, v{vS}")
    a(f"v_lshrrev_b32 v{u0}, 5, v{lane}")
    a(f"v_lshlrev_b32 v{u0}, 2, v{u0}")
    a(f"v_mul_u32_u24 v{u0}, v{u0}, v{vS}")
    a(f"v_lshl_add_u32 v{vB}, v{vB}, 2, v{u0}")
    a(f"s_mul_i32 s{sT}, s{sWave}, {KG_WAVE}")
    a(f"v_add_u32 v{vB}, s{sT}, v{vB}")
    a("s_waitcnt lgkmcnt(0)")
    mfmas()
    for g in range(4):
        for i in range(4):
            r_ = pk[i]
            a(f"v_mad_u32_u24 v{t0+ (i%2)}, v{vS}, {8*g+i}, v{vB}")
            a(f"v_cvt_pk_bf16_f32 v{r_}, v{accK+4*g+i}, v{accK+4*g+i}")
            a(f"ds_write_b32 v{t0+(i%2)}, v{r_}")
    O = [FA[i] for i in range(4)]
    Tm = FB[0]
    a(f"v_lshlrev_b32 v{u0}, 2, v{lane}")
    a(f"v_add_u32 v{u0}, s{sT}, v{u0}")
    a(f"v_lshl_add_u32 v{u1}, v{lane}, 2, v{u0}")
    for p in (2, 3):
        e0 = 384 + 64 * p
        a(f"ds_read_b32 v{O[p]}, v{u0} offset:{4*(e0+1)}")
        a(f"ds_read_b32 v{O[p]+2}, v{u0} offset:{4*e0}")
        a(f"ds_read_b32 v{O[p]+3}, v{u0} offset:{4*e0}")
    a(f"ds_read_b32 v{O[1]}, v{u1} offset:{4*(384+2)}")
    a(f"ds_read_b32 v{O[1]+1}, v{u1} offset:{4*(384+1)}")
    a(f"ds_read_b32 v{O[1]+3}, v{u1} offset:{4*384}")
    a(f"v_lshlrev_b32 v{t0}, 5, v{lane}")
    a(f"v_add_u32 v{t0}, s{sT}, v{t0}")
    a(f"v_lshlrev_b32 v{t1}, 4, v{lane}")
    a(f"v_add_u32 v{t1}, s{sT}, v{t1}")
    a("s_mov_b32 exec_hi, 0")
    a(f"ds_read_b128 {v(Tm,4)}, v{t0}")
    a(f"ds_read_b128 {v(Tm+4,4)}, v{t0} offset:16")
    a("s_mov_b32 exec_hi, -1")
    a("s_mov_b32 exec_lo, 0")
    for k_, (o0, o1) in enumerate([(0, 0), (1, 2), (2, 2), (3, 4)]):
        a(f"ds_read2_b32 {v(Tm+2*k_,2)}, v{t1} offset0:{128+o0} offset1:{128+o1}")
    a("s_mov_b32 exec_lo, -1")
    a(f"v_and_b32 v{t2}, 1, v{lane}")
    a(f"v_subrev_u32 v{t2}, 1, v{t2}")
    a(f"v_and_b32 v{t2}, 0xffff0000, v{t2}")
    a(f"v_mov_b32 v{t3}, 0xffff0000")
    a(f"v_sub_u32 v{vJ}, 63, v{lane}")
    a(f"v_lshlrev_b32 v{vJ}, 4, v{vJ}")
    a("s_waitcnt lgkmcnt(0)")
    for p in (2, 3):
        a(f"v_bfi_b32 v{O[p]+1}, v{t2}, v{O[p]+2}, v{O[p]}")
    a(f"v_bfi_b32 v{O[1]+2}, v{t3}, v{O[1]+3}, v{O[1]+1}")
    for m in range(4):
        a(f"v_bfi_b32 v{O[0]+m}, v{t3}, v{Tm+6-2*m}, v{Tm+7-2*m}")
    for p in range(4):
        a(f"buffer_store_dwordx4 {v(O[p],4)}, v{vJ}, s[{sKR}:{sKR+3}], 0 offen offset:{1024*(3-p)}")
    a("s_endpgm")
    return R.hi

LN_S = 1312
def lnrole(a, wg0):
    R = Alloc(1)
    lane = R(); t0 = R(); t1 = R(); t2 = R(); voff = R(); vlw = R(); vtr = R(); vst = R()
    Xr = [R(4, 4) for _ in range(10)]
    Wr = [R(4, 4) for _ in range(10)]
    U = [R(2, 2) for _ in range(40)]
    sm = R(2, 2); mb = R(2, 2); rs = R(2, 2); T = [R(2, 2) for _ in range(4)]
    ones = R()
    O = [R(4, 4) for _ in range(4)]
    sX, sW2, sXT, sWA = 8, 12, 16, 20
    sWave, sJ, sT, sT2 = 24, 25, 26, 27
    a("s_load_dwordx2 s[8:9], s[0:1], 0")
    a("s_load_dwordx2 s[12:13], s[0:1], 96")
    a("s_load_dwordx2 s[4:5], s[0:1], 120")
    a(f"v_lshrrev_b32 v{t0}, 6, v0")
    a(f"v_and_b32 v{lane}, 63, v0")
    a(f"v_readfirstlane_b32 s{sWave}, v{t0}")
    a(f"s_sub_u32 s{sJ}, s2, {wg0}")
    srd(a, sX, size=L * D * 2); srd(a, sW2, size=F * D * 2)
    a(f"v_lshrrev_b32 v{t0}, 3, v0")
    a(f"v_and_b32 v{t1}, 7, v0")
    a(f"v_lshlrev_b32 v{t1}, 4, v{t1}")
    a(f"v_mul_u32_u24 v{voff}, 1280, v{t0}")
    a(f"v_add_u32 v{voff}, v{voff}, v{t1}")
    a(f"v_mul_u32_u24 v{vlw}, {LN_S}, v{t0}")
    a(f"v_add_u32 v{vlw}, v{vlw}, v{t1}")
    a(f"s_mul_i32 s{sT}, s{sJ}, {32*1280}")
    a("s_waitcnt lgkmcnt(0)")
    for i in range(10):
        a(f"buffer_load_dwordx4 {v(Xr[i],4)}, v{voff}, s[{sX}:{sX+3}], s{sT} offen offset:{128*i}")
    tokx = a.vtok()
    for i in range(10):
        a(f"buffer_load_dwordx4 {v(Wr[i],4)}, v{voff}, s[{sW2}:{sW2+3}], s{sT} offen offset:{128*i}")
    tokw = a.vtok()
    srd_from(a, sXT, 4, WS_XT, SZ_T)
    srd_from(a, sWA, 4, WS_W2A, SZ_W2A)
    a(f"v_mov_b32 v{ones}, 0x3f803f80")
    a(f"v_mov_b32 v{sm}, 0")
    a.wait(vm=tokx)
    for i in range(40):
        a(f"v_dot2_f32_bf16 v{sm}, v{Xr[i//4] + i%4}, v{ones}, v{sm}")
    def red8(r_):
        a(f"v_add_f32_dpp v{r_}, v{r_}, v{r_} quad_perm:[1,0,3,2] row_mask:0xf bank_mask:0xf")
        a(f"v_add_f32_dpp v{r_}, v{r_}, v{r_} quad_perm:[2,3,0,1] row_mask:0xf bank_mask:0xf")
        a(f"v_add_f32_dpp v{r_}, v{r_}, v{r_} row_half_mirror row_mask:0xf bank_mask:0xf")
    for i in range(40):
        x = Xr[i//4] + i % 4
        a(f"v_lshlrev_b32 v{U[i]}, 16, v{x}")
        a(f"v_and_b32 v{U[i]+1}, 0xffff0000, v{x}")
    red8(sm)
    a(f"v_mul_f32 v{sm}, {f32(1.0/D)}, v{sm}")
    a(f"v_mov_b32 v{rs}, 0"); a(f"v_mov_b32 v{rs+1}, 0")
    for i in range(40):
        t = T[i % 4]
        a(f"v_pk_add_f32 {v(t,2)}, {v(U[i],2)}, {v(sm,2)} op_sel_hi:[1,0] neg_lo:[0,1] neg_hi:[0,1]")
        a(f"v_pk_fma_f32 {v(rs,2)}, {v(t,2)}, {v(t,2)}, {v(rs,2)}")
    a(f"v_add_f32 v{rs}, v{rs}, v{rs+1}")
    red8(rs)
    a(f"v_mul_f32 v{rs}, {f32(1.0/D)}, v{rs}")
    bf16r(a, rs, rs)
    a(f"v_add_f32 v{rs}, {f32(1e-5)}, v{rs}")
    bf16r(a, rs, rs)
    a(f"v_sqrt_f32 v{rs}, v{rs}")
    bf16r(a, rs, rs)
    a(f"v_rcp_f32 v{rs}, v{rs}")
    bf16r(a, mb, sm)
    for i in range(40):
        x = Xr[i//4] + i % 4; t = T[i % 4]
        a(f"v_pk_add_f32 {v(U[i],2)}, {v(U[i],2)}, {v(mb,2)} op_sel_hi:[1,0] neg_lo:[0,1] neg_hi:[0,1]")
        a(f"v_cvt_pk_bf16_f32 v{x}, v{U[i]}, v{U[i]+1}")
        a(f"v_lshlrev_b32 v{t}, 16, v{x}")
        a(f"v_and_b32 v{t+1}, 0xffff0000, v{x}")
        a(f"v_pk_mul_f32 {v(t,2)}, {v(t,2)}, {v(rs,2)} op_sel_hi:[1,0]")
        a(f"v_cvt_pk_bf16_f32 v{x}, v{t}, v{t+1}")
        if i % 4 == 3:
            a(f"ds_write_b128 v{vlw}, {v(Xr[i//4],4)} offset:{128*(i//4)}")
    a(f"v_lshrrev_b32 v{t0}, 4, v{lane}")
    a(f"v_bfe_u32 v{t1}, v{lane}, 2, 2")
    a(f"v_lshl_add_u32 v{t1}, v{t0}, 3, v{t1}")
    a(f"v_mul_u32_u24 v{t1}, {LN_S}, v{t1}")
    a(f"v_and_b32 v{t2}, 3, v{lane}")
    a(f"v_lshl_add_u32 v{t1}, v{t2}, 3, v{t1}")
    a(f"s_mul_i32 s{sT}, s{sWave}, 320")
    a(f"v_add_u32 v{vtr}, s{sT}, v{t1}")
    a(f"v_and_b32 v{t1}, 15, v{lane}")
    a(f"v_lshlrev_b32 v{t1}, 12, v{t1}")
    a(f"v_lshl_add_u32 v{vst}, v{t0}, 4, v{t1}")
    a(f"s_mul_i32 s{sT}, s{sWave}, {160*4096}")
    a(f"s_lshl_b32 s{sT2}, s{sJ}, 6")
    a(f"s_add_u32 s{sT}, s{sT}, s{sT2}")
    a("s_waitcnt lgkmcnt(0)")
    a("s_barrier")
    toks = {}
    def rd(i):
        o = O[i % 4]
        for e in range(2):
            a(f"ds_read_b64_tr_b16 {v(o+2*e,2)}, v{vtr} offset:{32*i + 4*e*LN_S}")
        toks[i] = a.ltok()
    for i in range(3): rd(i)
    for i in range(10):
        if i + 3 < 10: rd(i + 3)
        a.wait(lg=toks[i])
        a(f"buffer_store_dwordx4 {v(O[i%4],4)}, v{vst}, s[{sXT}:{sXT+3}], s{sT} offen")
        a(f"s_add_u32 s{sT}, s{sT}, {16*4096}")
    a(f"s_cmp_ge_u32 s{sJ}, 48")
    a("s_cbranch_scc1 LN_end")
    a("s_barrier")
    a.wait(vm=tokw)
    for i in range(10):
        a(f"ds_write_b128 v{vlw}, {v(Wr[i],4)} offset:{128*i}")
    vt8 = U[0]; vt4 = U[0] + 1
    a(f"v_lshrrev_b32 v{t1}, 2, v{lane}")
    a(f"v_mul_u32_u24 v{t1}, {LN_S}, v{t1}")
    a(f"s_mul_i32 s{sT}, s{sWave}, 320")
    a(f"v_add_u32 v{t1}, s{sT}, v{t1}")
    a(f"v_lshl_add_u32 v{vt8}, v{t2}, 4, v{t1}")
    a(f"v_lshl_add_u32 v{vt4}, v{t2}, 3, v{t1}")
    a(f"v_lshlrev_b32 v{vst}, 4, v{lane}")
    a(f"s_mul_i32 s{sT}, s{sWave}, {2*48*5*1024}")
    a(f"s_mul_i32 s{sT2}, s{sJ}, {5*1024}")
    a(f"s_add_u32 s{sT}, s{sT}, s{sT2}")
    a("s_waitcnt lgkmcnt(0)")
    a("s_barrier")
    def rd2(i):
        o = O[i % 4]; jd = i // 5; rt = i % 5
        for e in range(2):
            if rt < 4: a(f"ds_read_b64_tr_b16 {v(o+2*e,2)}, v{vt8} offset:{160*jd + 64*(rt>>1) + 8*(rt&1) + 16*e*LN_S}")
            else: a(f"ds_read_b64_tr_b16 {v(o+2*e,2)}, v{vt4} offset:{160*jd + 128 + 16*e*LN_S}")
        toks[i] = a.ltok()
    for i in range(3): rd2(i)
    for i in range(10):
        if i + 3 < 10: rd2(i + 3)
        a.wait(lg=toks[i])
        a(f"buffer_store_dwordx4 {v(O[i%4],4)}, v{vst}, s[{sWA}:{sWA+3}], s{sT} offen")
        a(f"s_add_u32 s{sT}, s{sT}, {1024 if i != 4 else 48*5*1024 - 4*1024}")
    a.label("LN_end")
    a("s_endpgm")
    return R.hi

CV_S = 4160
CV_K = [0, 4 * CV_S]
CV_U = [8 * CV_S + 512, 8 * CV_S + 512 + 4608, 8 * CV_S + 512 + 2 * 4608]
CV_RED = 8 * CV_S + 3 * 4608
CV_LDS = CV_RED + 32768
def conv(a):
    R = Alloc(1)
    lane = R(); t0 = R(); t1 = R(); t2 = R(); t3 = R()
    acc = [R(4, 4) for _ in range(8)]
    FA = [[R(4, 4) for _ in range(8)] for _ in range(2)]
    FB = [[R(4, 4) for _ in range(8)] for _ in range(2)]
    Kin = [R(8, 4) for _ in range(3)]
    Kt = [R(4, 4) for _ in range(3)]
    vA = R(); vBq = R(); vA0 = R(); vB0 = R(); vkw = R(); vrw = R(); vrr = R(); vur = R(); vso = R(); vz = R(4, 4)
    vdk = [R(), R()]
    sKR, sXT, sST, sDS, sKR2, sDBG = 8, 12, 16, 20, 28, 32
    sWave, sT, sT2, sCh, sPar, sCnt, sD2, sRound = 24, 25, 26, 27, 36, 37, 38, 39
    a("s_load_dwordx2 s[4:5], s[0:1], 120")
    a(f"s_load_dwordx2 s[{sDS}:{sDS+1}], s[0:1], 64")
    a(f"s_load_dwordx2 s[{sDBG}:{sDBG+1}], s[0:1], 112")
    a(f"v_lshrrev_b32 v{t0}, 6, v0")
    a(f"v_and_b32 v{lane}, 63, v0")
    a(f"v_readfirstlane_b32 s{sWave}, v{t0}")
    srd(a, sDS, size=D * 2); srd(a, sDBG, size=256)
    a(f"s_lshr_b32 s{sT}, s{sWave}, 1")
    a(f"s_and_b32 s{sPar}, s{sWave}, 1")
    a(f"s_lshl_b32 s{sCh}, s2, 1")
    a(f"s_add_u32 s{sCh}, s{sCh}, s{sT}")
    a(f"s_add_u32 s{sD2}, s2, 512")
    a("s_waitcnt lgkmcnt(0)")
    a(f"s_lshl_b32 s{sT2}, s{sCh}, 12")
    a(f"s_add_u32 s{sT2}, s{sT2}, {WS_KR}")
    srd_from(a, sKR, 4, f"s{sT2}", 4096)
    a(f"s_lshl_b32 s{sT2}, s{sD2}, 12")
    a(f"s_add_u32 s{sT2}, s{sT2}, {WS_KR}")
    srd_from(a, sKR2, 4, f"s{sT2}", 4096)
    a(f"s_cmp_lt_u32 s2, 128")
    a(f"s_cselect_b32 s{sKR2+2}, 4096, 0")
    srd_from(a, sXT, 4, WS_XT, SZ_T)
    srd_from(a, sST, 4, WS_ST, SZ_T)
    a(f"v_lshlrev_b32 v{t1}, 4, v{lane}")
    a(f"s_lshl_b32 s{sT2}, s{sPar}, 11")
    for i in range(2):
        a(f"buffer_load_dwordx4 {v(Kin[i],4)}, v{t1}, s[{sKR}:{sKR+3}], s{sT2} offen offset:{1024*i}")
        a(f"buffer_load_dwordx2 {v(Kin[i]+4,2)}, v{t1}, s[{sKR}:{sKR+3}], s{sT2} offen offset:{1024*i+16}")
    tokK1 = a.vtok()
    a(f"s_mul_i32 s{sCnt}, s{sT}, 4608")
    a(f"s_add_u32 s{sCnt}, s{sCnt}, s{sT2}")
    a(f"s_add_u32 m0, s{sCnt}, {CV_U[0]}")
    a(f"s_lshl_b32 s{sCnt}, s{sCh}, 12")
    a(f"s_add_u32 s{sCnt}, s{sCnt}, s{sT2}")
    for i in range(2):
        a(f"buffer_load_dwordx4 v{t1}, s[{sXT}:{sXT+3}], s{sCnt} offen offset:{1024*i} lds")
    tokU1 = a.vtok()
    a(f"s_lshl_b32 s{sCnt}, s{sCh}, 1")
    a(f"v_mov_b32 v{t2}, s{sCnt}")
    a(f"buffer_load_ushort v{vdk[0]}, v{t2}, s[{sDS}:{sDS+3}], 0 offen")
    a(f"s_lshl_b32 s{sCnt}, s{sD2}, 1")
    a(f"v_mov_b32 v{t3}, s{sCnt}")
    a(f"buffer_load_ushort v{vdk[1]}, v{t3}, s[{sDS}:{sDS+3}], 0 offen")
    a(f"s_lshl_b32 s{sT2}, s{sWave}, 10")
    a(f"buffer_load_dwordx4 {v(Kin[2],4)}, v{t1}, s[{sKR2}:{sKR2+3}], s{sT2} offen")
    a(f"buffer_load_dwordx2 {v(Kin[2]+4,2)}, v{t1}, s[{sKR2}:{sKR2+3}], s{sT2} offen offset:16")
    a(f"s_add_u32 m0, s{sT2}, {CV_U[2]}")
    a(f"s_lshl_b32 s{sCnt}, s{sD2}, 12")
    a(f"s_add_u32 s{sCnt}, s{sCnt}, s{sT2}")
    a(f"buffer_load_dwordx4 v{t1}, s[{sXT}:{sXT+3}], s{sCnt} offen lds")
    tokR2 = a.vtok()
    for i in range(4): a(f"v_mov_b32 v{vz+i}, 0")
    a(f"s_mul_i32 s{sCnt}, s{sWave}, 4608")
    a(f"s_add_u32 s{sCnt}, s{sCnt}, {CV_U[0] - 512}")
    a(f"v_add_u32 v{t2}, s{sCnt}, v{t1}")
    a(f"v_lshrrev_b32 v{t3}, 2, v{lane}")
    a(f"v_mul_u32_u24 v{t3}, {CV_S}, v{t3}")
    a(f"v_and_b32 v{t0}, 3, v{lane}")
    a(f"v_lshl_add_u32 v{t3}, v{t0}, 4, v{t3}")
    a(f"v_add_u32 v{t3}, 4096, v{t3}")
    a(f"s_cmp_eq_u32 s{sWave}, 3")
    a(f"s_cselect_b64 vcc, -1, 0")
    a(f"v_cndmask_b32 v{t2}, v{t2}, v{t3}, vcc")
    a("s_mov_b32 exec_hi, 0")
    a(f"ds_write_b128 v{t2}, {v(vz,4)}")
    a("s_mov_b32 exec_hi, -1")
    a(f"v_and_b32 v{t0}, 15, v{lane}")
    a(f"v_sub_u32 v{t2}, 15, v{t0}")
    a(f"v_and_b32 v{t3}, 3, v{t2}")
    a(f"v_sub_u32 v{t2}, v{t2}, v{t3}")
    a(f"v_mul_u32_u24 v{t3}, {CV_S}, v{t3}")
    a(f"v_lshl_add_u32 v{t3}, v{t2}, 1, v{t3}")
    a(f"v_lshrrev_b32 v{t2}, 4, v{lane}")
    a(f"v_lshl_add_u32 v{vA0}, v{t2}, 4, v{t3}")
    a(f"v_lshlrev_b32 v{t3}, 4, v{t2}")
    a(f"v_lshl_add_u32 v{vB0}, v{t0}, 5, v{t3}")
    a(f"v_lshrrev_b32 v{t3}, 1, v{t2}")
    a(f"v_lshlrev_b32 v{t3}, 3, v{t3}")
    a(f"v_xor_b32 v{t3}, v{t3}, v{t0}")
    a(f"v_lshlrev_b32 v{t3}, 4, v{t3}")
    a(f"v_lshl_add_u32 v{t3}, v{t2}, 8, v{t3}")
    a(f"s_lshl_b32 s{sCnt}, s{sWave}, 13")
    a(f"s_add_u32 s{sCnt}, s{sCnt}, {CV_RED}")
    a(f"v_add_u32 v{vrw}, s{sCnt}, v{t3}")
    a(f"v_bfe_u32 v{t0}, v{lane}, 1, 4")
    a(f"v_and_b32 v{t2}, 1, v{lane}")
    a(f"v_lshlrev_b32 v{t3}, 3, v{t2}")
    a(f"v_xor_b32 v{t0}, v{t0}, v{t3}")
    a(f"v_lshlrev_b32 v{t0}, 4, v{t0}")
    a(f"v_lshl_add_u32 v{t0}, v{t2}, 9, v{t0}")
    a(f"v_lshrrev_b32 v{t2}, 5, v{lane}")
    a(f"v_lshl_add_u32 v{vrr}, v{t2}, 10, v{t0}")
    def build_copies(kin, vaddr, off):
        for k in range(4): a(f"v_alignbyte_b32 v{Kt[0]+k}, v{kin+k+1}, v{kin+k}, 2")
        for k in range(4): a(f"v_mov_b32 v{Kt[1]+k}, v{kin+k+1}")
        for k in range(4): a(f"v_alignbyte_b32 v{Kt[2]+k}, v{kin+k+2}, v{kin+k+1}, 2")
        a(f"ds_write_b128 v{vaddr}, {v(kin,4)} offset:{off}")
        for c in range(3): a(f"ds_write_b128 v{vaddr}, {v(Kt[c],4)} offset:{off + (c+1)*CV_S}")
    a(f"s_mul_i32 s{sCnt}, s{sT}, {4*CV_S}")
    a(f"s_lshl_b32 s{sT2}, s{sPar}, 11")
    a(f"s_add_u32 s{sCnt}, s{sCnt}, s{sT2}")
    a(f"v_add_u32 v{vkw}, s{sCnt}, v{t1}")
    a.wait(vm=tokK1)
    build_copies(Kin[0], vkw, 0)
    a("s_nop 1")
    build_copies(Kin[1], vkw, 1024)
    a(f"s_mul_i32 s{sCnt}, s{sT}, {4*CV_S}")
    a(f"s_lshl_b32 s{sT2}, s{sPar}, 8")
    a(f"s_sub_u32 s{sCnt}, s{sCnt}, s{sT2}")
    a(f"s_add_u32 s{sCnt}, s{sCnt}, {32*14}")
    a(f"v_add_u32 v{vA}, s{sCnt}, v{vA0}")
    a(f"s_mul_i32 s{sCnt}, s{sT}, 4608")
    a(f"s_sub_u32 s{sCnt}, s{sCnt}, s{sT2}")
    a(f"s_add_u32 s{sCnt}, s{sCnt}, {CV_U[0] - 512 + 32*15}")
    a(f"v_add_u32 v{vBq}, s{sCnt}, v{vB0}")
    a(f"s_mov_b32 s{sCnt}, 2")
    a(f"s_mov_b32 s{sRound}, 0")
    a.wait(vm=tokU1, lg=a.ltok())
    a("s_barrier")

    def reads(st):
        toks = []
        for j in range(8):
            a(f"ds_read_b128 {v(FB[st][j],4)}, v{vBq} offset:{512*j}")
            a(f"ds_read_b64 {v(FA[st][j],2)}, v{vA} offset:{512*(7-j)}")
            a(f"ds_read_b64 {v(FA[st][j]+2,2)}, v{vA} offset:{512*(7-j)+8}")
        a(f"v_subrev_u32 v{vA}, 64, v{vA}")
        a(f"v_subrev_u32 v{vBq}, 64, v{vBq}")
    def group(st, nxt):
        pairs = [(c, j) for c in range(8) for j in range(c + 1)]
        rd = []
        for j in range(8):
            rd.append(f"ds_read_b128 {v(FB[nxt][j],4)}, v{vBq} offset:{512*j}")
            rd.append(f"ds_read_b64 {v(FA[nxt][j],2)}, v{vA} offset:{512*(7-j)}")
            rd.append(f"ds_read_b64 {v(FA[nxt][j]+2,2)}, v{vA} offset:{512*(7-j)+8}")
        rd.append(f"v_subrev_u32 v{vA}, 64, v{vA}")
        rd.append(f"v_subrev_u32 v{vBq}, 64, v{vBq}")
        pairs.sort(key=lambda cj: (cj[1], cj[0]))
        for i, (c, j) in enumerate(pairs):
            a(f"v_mfma_f32_16x16x32_bf16 {v(acc[c],4)}, {v(FA[st][j],4)}, {v(FB[st][c-j],4)}, {v(acc[c],4)}")
            if i < len(rd): a(rd[i])

    a.label("CV_round")
    a.flush_hist()
    reads(0)
    for c in range(8):
        for i in range(4): a(f"v_mov_b32 v{acc[c]+i}, 0")
    a.label("CV_loop")
    a("s_waitcnt lgkmcnt(0)")
    group(0, 1)
    a("s_waitcnt lgkmcnt(0)")
    group(1, 0)
    a(f"s_sub_u32 s{sCnt}, s{sCnt}, 1")
    a(f"s_cmp_lg_u32 s{sCnt}, 0")
    a("s_cbranch_scc1 CV_loop")
    for c in range(8):
        a(f"ds_write_b128 v{vrw}, {v(acc[c],4)} offset:{1024*c}")
    a("s_waitcnt lgkmcnt(0)")
    a("s_barrier")
    Rd = FA[1]
    Uq = FB[1]
    def finish(npart, nblk, vdsk):
        for b in range(nblk):
            base = b * npart * 2
            for p in range(1, npart):
                for e in range(2):
                    for hf in range(2):
                        a(f"v_pk_add_f32 {v(Rd[base+e]+2*hf,2)}, {v(Rd[base+e]+2*hf,2)}, {v(Rd[base+2*p+e]+2*hf,2)}")
            o = FB[0][b]; T = FB[0][4]; T2 = FB[0][5]
            for m in range(4):
                y = Rd[base + m // 2] + 2 * (m % 2)
                u = Uq[b] + m
                a(f"v_cvt_pk_bf16_f32 v{o+m}, v{y}, v{y+1}")
                a(f"v_lshlrev_b32 v{T}, 16, v{u}")
                a(f"v_and_b32 v{T+1}, 0xffff0000, v{u}")
                a(f"v_pk_mul_f32 {v(T,2)}, {v(T,2)}, {v(vdsk,2)} op_sel_hi:[1,0]")
                a(f"v_cvt_pk_bf16_f32 v{T+2}, v{T}, v{T+1}")
                a(f"v_lshlrev_b32 v{T}, 16, v{T+2}")
                a(f"v_and_b32 v{T+1}, 0xffff0000, v{T+2}")
                a(f"v_lshlrev_b32 v{T2}, 16, v{o+m}")
                a(f"v_and_b32 v{T2+1}, 0xffff0000, v{o+m}")
                a(f"v_pk_add_f32 {v(T,2)}, {v(T,2)}, {v(T2,2)}")
                a(f"v_cvt_pk_bf16_f32 v{o+m}, v{T}, v{T+1}")
            a(f"buffer_store_dwordx4 {v(o,4)}, v{vso}, s[{sST}:{sST+3}], s{sT2} offen offset:{1024*b} sc1")
    dsk = FB[0][6]
    a(f"s_cmp_lg_u32 s{sRound}, 0")
    a("s_cbranch_scc1 CV_fin2")
    a(f"s_lshl_b32 s{sCnt}, s{sT}, 14")
    a(f"s_lshl_b32 s{sT2}, s{sPar}, 12")
    a(f"s_add_u32 s{sCnt}, s{sCnt}, s{sT2}")
    a(f"s_add_u32 s{sCnt}, s{sCnt}, {CV_RED}")
    a(f"v_add_u32 v{t0}, s{sCnt}, v{vrr}")
    for b in range(2):
        for p in range(2):
            for e in range(2):
                a(f"ds_read_b128 {v(Rd[(b*2+p)*2+e],4)}, v{t0} offset:{8192*p + 2048*b + 256*e}")
    a(f"s_mul_i32 s{sCnt}, s{sT}, 4608")
    a(f"s_lshl_b32 s{sT2}, s{sPar}, 11")
    a(f"s_add_u32 s{sCnt}, s{sCnt}, s{sT2}")
    a(f"v_add_u32 v{t2}, s{sCnt}, v{t1}")
    for b in range(2):
        a(f"ds_read_b128 {v(Uq[b],4)}, v{t2} offset:{CV_U[0] + 1024*b}")
    a(f"s_lshl_b32 s{sCnt}, s{sWave}, 10")
    a(f"v_add_u32 v{vkw}, s{sCnt}, v{t1}")
    a("s_waitcnt vmcnt(0)")
    build_copies(Kin[2], vkw, 0)
    a(f"v_lshlrev_b32 v{dsk}, 16, v{vdk[0]}")
    a(f"v_mov_b32 v{vso}, v{t1}")
    a(f"s_lshl_b32 s{sCnt}, s{sCh}, 12")
    a(f"s_add_u32 s{sT2}, s{sT2}, s{sCnt}")
    a("s_waitcnt lgkmcnt(0)")
    finish(2, 2, dsk)
    a(f"s_lshl_b32 s{sT2}, s{sWave}, 7")
    a(f"s_sub_u32 s{sCnt}, {32*14}, s{sT2}")
    a(f"v_add_u32 v{vA}, s{sCnt}, v{vA0}")
    a(f"s_sub_u32 s{sCnt}, {CV_U[2] - 512 + 32*15}, s{sT2}")
    a(f"v_add_u32 v{vBq}, s{sCnt}, v{vB0}")
    a("s_waitcnt vmcnt(0)")
    a("s_barrier")
    a(f"s_cmp_lg_u32 s{sWave}, 0")
    a("s_cbranch_scc1 CV_nosig1")
    a(f"s_mul_i32 s{sCnt}, s2, 1639")
    a(f"s_lshr_b32 s{sCnt}, s{sCnt}, 16")
    a(f"s_lshl_b32 s{sCnt}, s{sCnt}, 2")
    a(f"v_mov_b32 v{t0}, s{sCnt}")
    a(f"v_mov_b32 v{t2}, 2")
    a("s_mov_b64 exec, 1")
    a(f"buffer_atomic_add v{t2}, v{t0}, s[{sDBG}:{sDBG+3}], 0 offen")
    a("s_mov_b64 exec, -1")
    a.label("CV_nosig1")
    a(f"s_cmp_ge_u32 s2, 128")
    a("s_cbranch_scc1 CV_end")
    a(f"s_mov_b32 s{sCnt}, 1")
    a(f"s_mov_b32 s{sRound}, 1")
    a("s_branch CV_round")
    a.label("CV_fin2")
    a.flush_hist()
    a(f"s_lshl_b32 s{sCnt}, s{sWave}, 11")
    a(f"s_add_u32 s{sCnt}, s{sCnt}, {CV_RED}")
    a(f"v_add_u32 v{t0}, s{sCnt}, v{vrr}")
    for p in range(4):
        for e in range(2):
            a(f"ds_read_b128 {v(Rd[p*2+e],4)}, v{t0} offset:{8192*p + 256*e}")
    a(f"ds_read_b128 {v(Uq[0],4)}, v{vkw} offset:{CV_U[2]}")
    a(f"v_lshlrev_b32 v{dsk}, 16, v{vdk[1]}")
    a(f"s_lshl_b32 s{sT2}, s{sWave}, 10")
    a(f"s_lshl_b32 s{sCnt}, s{sD2}, 12")
    a(f"s_add_u32 s{sT2}, s{sT2}, s{sCnt}")
    a("s_waitcnt lgkmcnt(0)")
    finish(4, 1, dsk)
    a("s_waitcnt vmcnt(0)")
    a("s_barrier")
    a(f"s_cmp_lg_u32 s{sWave}, 0")
    a("s_cbranch_scc1 CV_end")
    a(f"s_cmp_ge_u32 s{sD2}, 560")
    a(f"s_cselect_b32 s{sCnt}, 28, 24")
    a(f"v_mov_b32 v{t0}, s{sCnt}")
    a(f"v_mov_b32 v{t2}, 1")
    a("s_mov_b64 exec, 1")
    a(f"buffer_atomic_add v{t2}, v{t0}, s[{sDBG}:{sDBG+3}], 0 offen")
    a.label("CV_end")
    a("s_endpgm")
    return R.hi

def gemm2(a, wg0):
    R = Alloc(1)
    lane = R(); t0 = R(); t1 = R(); t2 = R(); t3 = R()
    acc = [[R(4, 4) for ct in range(4)] for rt in range(5)]
    NST = 4
    FA = [[R(4, 4) for _ in range(5)] for _ in range(NST)]
    FB = [[R(4, 4) for _ in range(4)] for _ in range(NST)]
    vA = R(); vA2 = R(); vB = [R() for _ in range(4)]
    xr = R(10, 4); vxo = R(); vxo2 = R()
    sWA, sACT, sX, sOUT, sST, sDBG = 8, 12, 16, 20, 28, 32
    sWave, sT, sT2, sTB, sJD, sOA, sOB = 24, 25, 26, 27, 36, 37, 38
    a("s_load_dwordx2 s[4:5], s[0:1], 120")
    a(f"s_load_dwordx2 s[{sX}:{sX+1}], s[0:1], 0")
    a(f"s_load_dwordx2 s[{sOUT}:{sOUT+1}], s[0:1], 104")
    a(f"s_load_dwordx2 s[{sDBG}:{sDBG+1}], s[0:1], 112")
    a(f"v_lshrrev_b32 v{t0}, 6, v0")
    a(f"v_and_b32 v{lane}, 63, v0")
    a(f"v_readfirstlane_b32 s{sWave}, v{t0}")
    a(f"s_sub_u32 s{sT}, s2, {wg0}")
    a(f"s_lshr_b32 s{sT2}, s{sT}, 3")
    a(f"s_and_b32 s{sT}, s{sT}, 7")
    a(f"s_lshr_b32 s{sTB}, s{sT}, 1")
    a(f"s_lshl_b32 s{sTB}, s{sTB}, 3")
    a(f"s_and_b32 s{sJD}, s{sT2}, 7")
    a(f"s_add_u32 s{sTB}, s{sTB}, s{sJD}")
    a(f"s_and_b32 s{sJD}, s{sT}, 1")
    a(f"s_lshl_b32 s{sJD}, s{sJD}, 2")
    a(f"s_lshr_b32 s{sT2}, s{sT2}, 3")
    a(f"s_add_u32 s{sJD}, s{sJD}, s{sT2}")
    srd(a, sX, size=L * D * 2); srd(a, sOUT, size=L * D * 2); srd(a, sDBG, size=256)
    a(f"v_lshlrev_b32 v{vA}, 4, v{lane}")
    a(f"v_add_u32 v{vA2}, 4096, v{vA}")
    for ct in range(4):
        a(f"s_add_u32 s{sT}, s{sWave}, {ct}")
        a(f"s_and_b32 s{sT}, s{sT}, 3")
        a(f"s_mul_i32 s{sT}, s{sT}, {48*1024}")
        a(f"v_add_u32 v{vB[ct]}, s{sT}, v{vA}")
    a(f"s_mul_i32 s{sT}, s{sWave}, 12")
    a(f"s_mul_i32 s{sOA}, s{sJD}, 48")
    a(f"s_add_u32 s{sOA}, s{sOA}, s{sT}")
    a(f"s_mul_i32 s{sOA}, s{sOA}, 5120")
    a(f"s_mul_i32 s{sOB}, s{sTB}, 192")
    a(f"s_add_u32 s{sOB}, s{sOB}, s{sT}")
    a(f"s_lshl_b32 s{sOB}, s{sOB}, 10")
    a("s_waitcnt lgkmcnt(0)")
    srd_from(a, sWA, 4, WS_W2A, SZ_W2A)
    srd_from(a, sACT, 4, WS_ACT, SZ_ACT)
    tok = {}
    def issue(k):
        st = k % NST
        for ct in range(4):
            a(f"buffer_load_dwordx4 {v(FB[st][ct],4)}, v{vB[ct]}, s[{sACT}:{sACT+3}], s{sOB} offen")
        for rt in range(5):
            if rt < 4: a(f"buffer_load_dwordx4 {v(FA[st][rt],4)}, v{vA}, s[{sWA}:{sWA+3}], s{sOA} offen offset:{1024*rt}")
            else: a(f"buffer_load_dwordx4 {v(FA[st][rt],4)}, v{vA2}, s[{sWA}:{sWA+3}], s{sOA} offen")
            tok[(k, rt)] = a.vtok()
        if k < 11:
            a(f"s_add_u32 s{sOA}, s{sOA}, 5120")
            a(f"s_add_u32 s{sOB}, s{sOB}, 1024")
    for k in range(NST): issue(k)
    srd_from(a, sST, 4, WS_ST, SZ_T)
    a(f"s_lshl_b32 s{sT}, s{sTB}, 6")
    a(f"s_lshl_b32 s{sT2}, s{sWave}, 4")
    a(f"s_add_u32 s{sT}, s{sT}, s{sT2}")
    a(f"v_and_b32 v{t0}, 15, v{lane}")
    a(f"v_add_u32 v{t0}, s{sT}, v{t0}")
    a(f"v_mul_u32_u24 v{t1}, 1280, v{t0}")
    a(f"s_mul_i32 s{sT2}, s{sJD}, 160")
    a(f"v_add_u32 v{t1}, s{sT2}, v{t1}")
    a(f"v_lshrrev_b32 v{t2}, 4, v{lane}")
    a(f"v_lshl_add_u32 v{vxo}, v{t2}, 4, v{t1}")
    a(f"v_lshl_add_u32 v{vxo2}, v{t2}, 3, v{t1}")
    for k in range(12):
        st = k % NST
        for rt in range(5):
            a.wait(vm=tok[(k, rt)])
            for ct in range(4):
                c = "0" if k == 0 else v(acc[rt][ct], 4)
                a(f"v_mfma_f32_16x16x32_bf16 {v(acc[rt][ct],4)}, {v(FA[st][rt],4)}, {v(FB[st][ct],4)}, {c}")
        if k + NST < 12: issue(k + NST)
        if k == 7:
            a(f"buffer_load_dwordx4 {v(xr,4)}, v{vxo}, s[{sX}:{sX+3}], 0 offen")
            a(f"buffer_load_dwordx4 {v(xr+4,4)}, v{vxo}, s[{sX}:{sX+3}], 0 offen offset:64")
            a(f"buffer_load_dwordx2 {v(xr+8,2)}, v{vxo2}, s[{sX}:{sX+3}], 0 offen offset:128")
    E = Alloc(FA[0][0], limit=FB[NST-1][3] + 4)
    Pr = [[E(4, 4) for rt in range(5)] for p in range(3)]
    sv = E(20, 4); T = [E(2, 2) for _ in range(10)]; op = E(10, 4); vso = E(); vso2 = E(); vpl = E(); vfl = E()
    for ct in range(1, 4):
        a(f"s_add_u32 s{sT2}, s{sWave}, {ct}")
        a(f"s_and_b32 s{sT2}, s{sT2}, 3")
        a(f"s_mul_i32 s{sT2}, s{sT2}, 15360")
        a(f"v_add_u32 v{t3}, s{sT2}, v{vA}")
        for rt in range(5):
            a(f"ds_write_b128 v{t3}, {v(acc[rt][ct],4)} offset:{(ct-1)*5120 + rt*1024}")
    a(f"s_lshl_b32 s{sT2}, s{sJD}, 2")
    a(f"v_mov_b32 v{vpl}, s{sT2}")
    a(f"s_mul_i32 s{sT2}, s{sJD}, {80*4096}")
    a(f"v_lshlrev_b32 v{t0}, 1, v{t0}")
    a(f"v_add_u32 v{t0}, s{sT2}, v{t0}")
    a(f"v_lshl_add_u32 v{vso}, v{t2}, 15, v{t0}")
    a(f"v_lshl_add_u32 v{vso2}, v{t2}, 14, v{t0}")
    a(f"s_mov_b32 s{sT}, 0")
    a.label("G2_poll")
    a.flush_hist()
    a(f"buffer_load_dword v{vfl}, v{vpl}, s[{sDBG}:{sDBG+3}], 0 offen sc1")
    a("s_waitcnt vmcnt(0)")
    a(f"v_readfirstlane_b32 s{sT2}, v{vfl}")
    a(f"s_cmp_ge_u32 s{sT2}, 80")
    a("s_cbranch_scc1 G2_ready")
    a("s_sleep 4")
    a(f"s_add_u32 s{sT}, s{sT}, 1")
    a(f"s_cmp_lt_u32 s{sT}, 0x8000")
    a("s_cbranch_scc1 G2_poll")
    a.label("G2_ready")
    a.flush_hist()
    for j in range(20):
        if j < 16:
            d = 32 * (j // 8) + j % 8
            a(f"s_mov_b32 s{sT2}, {d*4096}")
            a(f"buffer_load_ushort v{sv+j}, v{vso}, s[{sST}:{sST+3}], s{sT2} offen sc1")
        else:
            a(f"s_mov_b32 s{sT2}, {(64 + j - 16)*4096}")
            a(f"buffer_load_ushort v{sv+j}, v{vso2}, s[{sST}:{sST+3}], s{sT2} offen sc1")
    a(f"s_mul_i32 s{sT2}, s{sWave}, 15360")
    a(f"v_add_u32 v{t3}, s{sT2}, v{vA}")
    a("s_waitcnt lgkmcnt(0)")
    a("s_barrier")
    for p in range(3):
        for rt in range(5):
            a(f"ds_read_b128 {v(Pr[p][rt],4)}, v{t3} offset:{p*5120 + rt*1024}")
    a(f"s_mov_b32 s42, {f32(-LOG2E)}"); a(f"s_mov_b32 s43, {f32(-LOG2E)}")
    a("s_waitcnt lgkmcnt(0)")
    o2 = []
    for rt in range(5):
        for hf in range(2):
            d = acc[rt][0] + 2 * hf
            for p in range(3):
                a(f"v_pk_add_f32 {v(d,2)}, {v(d,2)}, {v(Pr[p][rt]+2*hf,2)}")
            o2.append(d)
    for i, d in enumerate(o2):
        a(f"v_cvt_pk_bf16_f32 v{T[i]}, v{d}, v{d+1}")
        a(f"v_lshlrev_b32 v{d}, 16, v{T[i]}")
        a(f"v_and_b32 v{d+1}, 0xffff0000, v{T[i]}")
        a(f"v_pk_mul_f32 {v(T[i],2)}, {v(d,2)}, s[42:43]")
    for i, d in enumerate(o2):
        a(f"v_exp_f32 v{T[i]}, v{T[i]}")
        a(f"v_exp_f32 v{T[i]+1}, v{T[i]+1}")
    for i, d in enumerate(o2):
        a(f"v_pk_add_f32 {v(T[i],2)}, {v(T[i],2)}, 1.0 op_sel_hi:[1,0]")
    for i, d in enumerate(o2):
        a(f"v_rcp_f32 v{T[i]}, v{T[i]}")
        a(f"v_rcp_f32 v{T[i]+1}, v{T[i]+1}")
    for i, d in enumerate(o2):
        a(f"v_pk_mul_f32 {v(d,2)}, {v(d,2)}, {v(T[i],2)}")
        a(f"v_cvt_pk_bf16_f32 v{T[i]}, v{d}, v{d+1}")
        a(f"v_lshlrev_b32 v{d}, 16, v{T[i]}")
        a(f"v_and_b32 v{d+1}, 0xffff0000, v{T[i]}")
    a("s_waitcnt vmcnt(0)")
    for i, d in enumerate(o2):
        sj = sv + 2 * i
        a(f"v_lshlrev_b32 v{sj}, 16, v{sj}")
        a(f"v_lshlrev_b32 v{sj+1}, 16, v{sj+1}")
        a(f"v_pk_mul_f32 {v(d,2)}, {v(d,2)}, {v(sj,2)}")
        a(f"v_cvt_pk_bf16_f32 v{T[i]}, v{d}, v{d+1}")
        a(f"v_lshlrev_b32 v{d}, 16, v{T[i]}")
        a(f"v_and_b32 v{d+1}, 0xffff0000, v{T[i]}")
        a(f"v_lshlrev_b32 v{T[i]}, 16, v{xr+i}")
        a(f"v_and_b32 v{T[i]+1}, 0xffff0000, v{xr+i}")
        a(f"v_pk_add_f32 {v(d,2)}, {v(d,2)}, {v(T[i],2)}")
        a(f"v_cvt_pk_bf16_f32 v{op+i}, v{d}, v{d+1}")
    a(f"buffer_store_dwordx4 {v(op,4)}, v{vxo}, s[{sOUT}:{sOUT+3}], 0 offen")
    a(f"buffer_store_dwordx4 {v(op+4,4)}, v{vxo}, s[{sOUT}:{sOUT+3}], 0 offen offset:64")
    a(f"buffer_store_dwordx2 {v(op+8,2)}, v{vxo2}, s[{sOUT}:{sOUT+3}], 0 offen offset:128")
    a("s_endpgm")
    return R.hi

def kd(name, vgpr, sgpr=48):
    vg = (vgpr + 7) // 8 * 8
    return f""".p2align 6
.amdhsa_kernel {name}
  .amdhsa_next_free_vgpr {vg}
  .amdhsa_next_free_sgpr {sgpr}
  .amdhsa_accum_offset {vg}
  .amdhsa_group_segment_fixed_size 0
  .amdhsa_kernarg_size 128
  .amdhsa_user_sgpr_count 2
  .amdhsa_user_sgpr_kernarg_segment_ptr 1
  .amdhsa_system_sgpr_workgroup_id_x 1
  .amdhsa_float_denorm_mode_32 3
  .amdhsa_float_denorm_mode_16_64 3
.end_amdhsa_kernel
"""

def main(out):
    ref = open(f"cdna_kernels/{NAME}.s.ref").read().split("\n")
    hdr = [l for l in ref if l.startswith(";") and "@launch" not in l and "Override launch" not in l and "grid=ceil" not in l]
    L1_LDS = 3 * G1_SLOT
    L2_LDS = max(CV_LDS, 61440)
    assert L2_LDS <= 81920 and L1_LDS <= 81920 and 4 * KG_WAVE <= L1_LDS and 32 * LN_S <= L1_LDS
    hdr.append(f"; @launch kernel=s4a_kernel grid=(480,1,1) block=(256,1,1) lds={L1_LDS}")
    hdr.append(f"; @launch kernel=s4b_kernel grid=(512,1,1) block=(256,1,1) lds={L2_LDS}")
    a = Asm()
    a.raw('.amdgcn_target "amdgcn-amd-amdhsa--gfx950"\n.text')
    a.raw(".globl s4a_kernel\n.p2align 8\n.type s4a_kernel,@function")
    a.label("s4a_kernel")
    a("s_cmp_ge_u32 s2, 256")
    a("s_cbranch_scc1 K1_aux")
    h1 = gemm1(a)
    a.label("K1_aux"); a.flush_hist()
    a("s_cmp_ge_u32 s2, 416")
    a("s_cbranch_scc1 K1_ln")
    h2 = kgen(a, 256)
    a.label("K1_ln"); a.flush_hist()
    a("s_cmp_ge_u32 s2, 480")
    a("s_cbranch_scc1 LN_end")
    h3 = lnrole(a, 416)
    a.raw(".globl s4b_kernel\n.p2align 8\n.type s4b_kernel,@function")
    a.label("s4b_kernel"); a.flush_hist()
    a("s_cmp_ge_u32 s2, 256")
    a("s_cbranch_scc1 K2_g2")
    h4 = conv(a)
    a.label("K2_g2"); a.flush_hist()
    a("s_cmp_ge_u32 s2, 512")
    a("s_cbranch_scc1 CV_end")
    h5 = gemm2(a, 256)
    print("vgprs", h1, h2, h3, h4, h5, "nops", a.nnop, "lds", L1_LDS, L2_LDS, file=sys.stderr)
    txt = "\n".join(hdr) + "\n" + a.text() + '.section .rodata,"a"\n' + kd("s4a_kernel", max(h1, h2, h3)) + kd("s4b_kernel", max(h4, h5))
    open(out, "w").write(txt)

if __name__ == "__main__":
    main(sys.argv[1] if len(sys.argv) > 1 else f"cdna_kernels/{NAME}.s")
```

```python
import sys, os, struct, math
sys.path.insert(0, os.path.dirname(os.path.abspath(__file__)))
from asmlib import *

NAME = "recurrent_scan__ssm_conv_s4__dense_activation_mish__prompt"
L, D, N, F = 2048, 640, 192, 1536

WS_XT  = 0x0000000
WS_KR  = 0x0400000
WS_ST  = 0x0800000
WS_W2A = 0x0C00000
WS_ACT = 0x1000000
SZ_T = D * L * 2
SZ_W2A = F * D * 2
SZ_ACT = L * F * 2

def f32(x): return "0x%08x" % struct.unpack("<I", struct.pack("<f", x))[0]
LOG2E = 1.4426950408889634
LN2 = 0.6931471805599453

def srd(a, sreg, karg_off=None, size=None):
    a(f"s_mov_b32 s{sreg+2}, {size}")
    a(f"s_mov_b32 s{sreg+3}, 0x20000")

def srd_from(a, sreg, base, off, size):
    a(f"s_add_u32 s{sreg}, s{base}, {off}")
    a(f"s_addc_u32 s{sreg+1}, s{base+1}, 0")
    a(f"s_mov_b32 s{sreg+2}, {size}")
    a(f"s_mov_b32 s{sreg+3}, 0x20000")

def bf16r(a, dst, src):
    a(f"v_cvt_pk_bf16_f32 v{dst}, v{src}, v{src}")
    a(f"v_and_b32 v{dst}, 0xffff0000, v{dst}")

STAMPS = bool(int(os.environ.get("STAMPS", "0")))
WS_STAMP = 0x4000000
_stamp_n = [0]
def stamp_begin(a):
    _stamp_n[0] = 0
    if STAMPS:
        a("s_memrealtime s[60:61]")
        a("s_memtime s[64:65]")
        a("v_mov_b32 v255, v0")
        _stamp_n[0] = 1
def stamp(a):
    if STAMPS:
        n = _stamp_n[0]; assert n < 14
        a(f"s_memtime s[{64+2*n}:{65+2*n}]")
        _stamp_n[0] += 1
def stamp_end(a, kern):
    if STAMPS:
        stamp(a)
        a("s_memrealtime s[62:63]")
        a("s_load_dwordx2 s[96:97], s[0:1], 120")
        a("s_waitcnt lgkmcnt(0)")
        a("s_mov_b64 exec, -1")
        a(f"s_add_u32 s96, s96, {WS_STAMP + kern * 0x100000}")
        a("s_addc_u32 s97, s97, 0")
        a("s_mov_b32 s98, 0x100000")
        a("s_mov_b32 s99, 0x20000")
        a("v_lshrrev_b32 v255, 6, v255")
        a("v_lshlrev_b32 v255, 8, v255")
        a("s_lshl_b32 s59, s2, 10")
        a("v_add_u32 v255, s59, v255")
        a("v_mov_b32 v253, s60"); a("v_mov_b32 v254, s62")
        a("s_mov_b64 exec, 1")
        a("buffer_store_dword v253, v255, s[96:99], 0 offen")
        a("buffer_store_dword v254, v255, s[96:99], 0 offen offset:4")
        a(f"v_mov_b32 v253, {_stamp_n[0]}")
        a("buffer_store_dword v253, v255, s[96:99], 0 offen offset:8")
        for n in range(_stamp_n[0]):
            a(f"s_sub_u32 s59, s{64+2*n}, s64")
            a(f"v_mov_b32 v{253 + n % 2}, s59")
            a(f"buffer_store_dword v{253 + n % 2}, v255, s[96:99], 0 offen offset:{16+4*n}")
    a("s_endpgm")

G1_SLOT = 24576
def gemm1(a):
    R = Alloc(1)
    acc = [[R(4, 4) for ct in range(2)] for rt in range(6)]
    sx = [R(4, 4) for _ in range(2)]
    sxx = [R(4, 4) for _ in range(2)]
    cs = [R(4, 4) for _ in range(2)]
    NXS = 12
    X = [[R(4, 4) for ct in range(2)] for _ in range(NXS)]
    A = [[R(4, 4) for rt in range(6)] for _ in range(2)]
    ones = R(4, 4)
    vE = [R() for _ in range(3)]; vO = [R() for _ in range(3)]
    vW = [R() for _ in range(3)]
    vX = [R() for _ in range(2)]
    lane = R(); t0 = R(); t1 = R(); t2 = R(); t3 = R()
    b1r = [R(2, 2) for _ in range(2)]
    sX, sW1, sB1, sACT = 8, 12, 16, 20
    sWave, sRB, sCB, sT, sT2, sWoff, sM0 = 24, 25, 26, 27, 28, 29, 30
    sP = [32, 33, 34]
    sRot, sXk, sCB192 = 44, 45, 46
    stamp_begin(a)
    a("s_load_dwordx2 s[8:9], s[0:1], 0")
    a("s_load_dwordx2 s[12:13], s[0:1], 80")
    a("s_load_dwordx2 s[16:17], s[0:1], 88")
    a("s_load_dwordx2 s[4:5], s[0:1], 120")
    a(f"v_lshrrev_b32 v{t0}, 6, v0")
    a(f"v_and_b32 v{lane}, 63, v0")
    a(f"v_readfirstlane_b32 s{sWave}, v{t0}")
    a(f"s_and_b32 s{sT}, s2, 7")
    a(f"s_lshr_b32 s{sT2}, s2, 3")
    a(f"s_lshr_b32 s{sRB}, s{sT}, 1")
    a(f"s_lshl_b32 s{sRB}, s{sRB}, 2")
    a(f"s_and_b32 s{sCB}, s{sT2}, 3")
    a(f"s_add_u32 s{sRB}, s{sRB}, s{sCB}")
    a(f"s_and_b32 s{sCB}, s{sT}, 1")
    a(f"s_lshl_b32 s{sCB}, s{sCB}, 3")
    a(f"s_lshr_b32 s{sT2}, s{sT2}, 2")
    a(f"s_add_u32 s{sCB}, s{sCB}, s{sT2}")
    srd(a, sX, size=L * D * 2); srd(a, sW1, size=D * F * 2); srd(a, sB1, size=F * 2)
    for i in range(3):
        a(f"v_add_u32 v{t0}, {64*i}, v{lane}")
        a(f"v_mul_u32_u24 v{t1}, 0xaaab, v{t0}")
        a(f"v_lshrrev_b32 v{t1}, 19, v{t1}")
        a(f"v_mul_u32_u24 v{t2}, 12, v{t1}")
        a(f"v_sub_u32 v{t2}, v{t0}, v{t2}")
        a(f"v_lshrrev_b32 v{t3}, 2, v{t1}")
        a(f"v_and_b32 v{t3}, 2, v{t3}")
        a(f"v_xor_b32 v{t2}, v{t2}, v{t3}")
        a(f"v_lshlrev_b32 v{t2}, 4, v{t2}")
        a(f"v_mul_u32_u24 v{t1}, 3072, v{t1}")
        a(f"v_add_u32 v{vW[i]}, v{t1}, v{t2}")
    a(f"s_and_b32 s{sRot}, s{sRB}, 3")
    a(f"s_mul_i32 s{sRot}, s{sRot}, 5")
    a(f"s_and_b32 s{sT}, s{sCB}, 7")
    a(f"s_mul_i32 s{sT}, s{sT}, 5")
    a(f"s_lshr_b32 s{sT}, s{sT}, 1")
    a(f"s_add_u32 s{sRot}, s{sRot}, s{sT}")
    a(f"s_lshr_b32 s{sT}, s{sRB}, 2")
    a(f"s_add_u32 s{sRot}, s{sRot}, s{sT}")
    a(f"s_cmp_ge_u32 s{sRot}, 20")
    a(f"s_cselect_b32 s{sT}, 20, 0")
    a(f"s_sub_u32 s{sRot}, s{sRot}, s{sT}")
    a(f"s_lshl_b32 s{sXk}, s{sRot}, 6")
    a(f"s_add_u32 s{sWoff}, s{sWave}, s{sRot}")
    a(f"s_cmp_ge_u32 s{sWoff}, 20")
    a(f"s_cselect_b32 s{sT}, 20, 0")
    a(f"s_sub_u32 s{sWoff}, s{sWoff}, s{sT}")
    a(f"s_mul_i32 s{sWoff}, s{sWoff}, {32*3072}")
    a(f"s_mul_i32 s{sCB192}, s{sCB}, 192")
    for i in range(3): a(f"v_add_u32 v{vW[i]}, s{sCB192}, v{vW[i]}")
    a(f"s_mul_i32 s{sM0}, s{sWave}, 6144")
    a(f"s_lshl_b32 s{sT}, s{sRB}, 7")
    a(f"s_lshl_b32 s{sT2}, s{sWave}, 5")
    a(f"s_add_u32 s{sT}, s{sT}, s{sT2}")
    a(f"v_and_b32 v{t0}, 15, v{lane}")
    a(f"v_add_u32 v{t0}, s{sT}, v{t0}")
    a(f"v_mul_u32_u24 v{t0}, 1280, v{t0}")
    a(f"v_lshrrev_b32 v{t1}, 4, v{lane}")
    a(f"v_lshl_add_u32 v{vX[0]}, v{t1}, 4, v{t0}")
    a(f"v_add_u32 v{vX[1]}, {16*1280}, v{vX[0]}")
    a("s_waitcnt lgkmcnt(0)")
    srd_from(a, sACT, 4, WS_ACT, SZ_ACT)

    tokW = {}; tokX = {}
    def issue_w(c):
        for i in range(6):
            a(f"s_add_u32 m0, s{sM0}, {(c % 3) * G1_SLOT + i * 1024}")
            if i == 3:
                a(f"s_add_u32 s{sT}, s{sWoff}, {16 * 3072}")
            a(f"buffer_load_dwordx4 v{vW[i % 3]}, s[{sW1}:{sW1+3}], s{sWoff if i < 3 else sT} offen lds")
        tokW[c] = a.vtok()
        if c < 4:
            a(f"s_add_u32 s{sWoff}, s{sWoff}, {128 * 3072}")
            a(f"s_cmp_ge_u32 s{sWoff}, {640 * 3072}")
            a(f"s_cselect_b32 s{sT}, {640 * 3072}, 0")
            a(f"s_sub_u32 s{sWoff}, s{sWoff}, s{sT}")
    def issue_x(ks):
        for ct in range(2):
            a(f"buffer_load_dwordx4 {v(X[ks % NXS][ct], 4)}, v{vX[ct]}, s[{sX}:{sX+3}], s{sXk} offen")
        tokX[ks] = a.vtok()
        if ks < 19:
            a(f"s_add_u32 s{sXk}, s{sXk}, 64")
            a(f"s_cmp_ge_u32 s{sXk}, 1280")
            a(f"s_cselect_b32 s{sXk}, 0, s{sXk}")
    for c in range(3):
        issue_w(c)
        for ks in range(4 * c, 4 * c + 4): issue_x(ks)

    a(f"v_lshrrev_b32 v{t0}, 4, v{lane}")
    a(f"v_bfe_u32 v{t1}, v{lane}, 2, 2")
    a(f"v_lshl_add_u32 v{t1}, v{t0}, 3, v{t1}")
    a(f"v_mul_u32_u24 v{t1}, 192, v{t1}")
    a(f"v_and_b32 v{t2}, 3, v{lane}")
    a(f"v_lshl_add_u32 v{t1}, v{t2}, 3, v{t1}")
    a(f"v_and_b32 v{t0}, 1, v{t0}")
    a(f"v_lshlrev_b32 v{t0}, 5, v{t0}")
    a(f"v_add_u32 v{t2}, v{t1}, v{t0}")
    a(f"v_sub_u32 v{t3}, v{t1}, v{t0}")
    a(f"v_add_u32 v{t3}, 32, v{t3}")
    for P in range(3):
        a(f"s_add_u32 s{sP[P]}, s{sWave}, {P}")
        a(f"s_cmp_ge_u32 s{sP[P]}, 3")
        a(f"s_cselect_b32 s{sT}, 3, 0")
        a(f"s_sub_u32 s{sP[P]}, s{sP[P]}, s{sT}")
        a(f"s_lshl_b32 s{sT}, s{sP[P]}, 6")
        a(f"v_add_u32 v{vE[P]}, s{sT}, v{t2}")
        a(f"v_add_u32 v{vO[P]}, s{sT}, v{t3}")
    for i in range(4): a(f"v_mov_b32 v{ones+i}, 0x3f803f80")

    tokA = {}
    def read_a(ks):
        off = (ks % 4) * 6144
        for rt in range(6):
            ad = (vE if rt % 2 == 0 else vO)[rt // 2]
            for e in range(2):
                a(f"ds_read_b64_tr_b16 {v(A[ks % 2][rt] + 2*e, 2)}, v{ad} offset:{off + 768*e}")
            tokA[(ks, rt)] = a.ltok()
    def bump(c):
        d = ((c % 3) - ((c - 1) % 3)) * G1_SLOT
        for r_ in vE + vO:
            if d > 0: a(f"v_add_u32 v{r_}, {d}, v{r_}")
            else: a(f"v_subrev_u32 v{r_}, {-d}, v{r_}")
    def mf(d, A_, B_, first):
        c = "0" if first else v(d, 4)
        a(f"v_mfma_f32_16x16x32_bf16 {v(d,4)}, {v(A_,4)}, {v(B_,4)}, {c}")

    stamp(a)
    a.wait(vm=tokW[0])
    a("s_barrier")
    stamp(a)
    read_a(0)
    for ks in range(20):
        c = ks // 4
        first = ks == 0
        last_in_chunk = ks % 4 == 3
        if last_in_chunk and ks < 19:
            a.wait(vm=max(tokW[c + 1], tokX[ks]), lg=a.ltok())
            a("s_barrier")
            stamp(a)
            bump(c + 1)
            read_a(ks + 1)
            if c + 3 < 5: issue_w(c + 3)
        else:
            if ks < 19: read_a(ks + 1)
            a.wait(vm=tokX[ks])
        Xs = X[ks % NXS]; As = A[ks % 2]
        for ct in range(2):
            mf(sx[ct], ones, Xs[ct], first)
            mf(sxx[ct], Xs[ct], Xs[ct], first)
        for rt in range(6):
            a.wait(lg=tokA[(ks, rt)])
            for ct in range(2): mf(acc[rt][ct], As[rt], Xs[ct], first)
            if rt < 2: mf(cs[rt], As[rt], ones, first)
        if ks + NXS < 20: issue_x(ks + NXS)

    stamp(a)
    E = Alloc(X[0][0], limit=A[1][5] + 4)
    csv = [E(4, 4) for _ in range(6)]
    b1v = [E(4, 4) for _ in range(6)]
    b1p = [E(2, 2) for _ in range(6)]
    rr = [E(2, 2) for _ in range(2)]
    tmp = [E(2, 2) for _ in range(12)]
    outp = [E(4, 4) for _ in range(2)]
    vq = E(); vcs = E(); vst = E(); vbp = E()
    a(f"v_lshrrev_b32 v{vq}, 4, v{lane}")
    a(f"v_lshlrev_b32 v{t0}, 3, v{vq}")
    a(f"s_mul_i32 s{sT2}, s{sCB}, 192")
    for P in range(3):
        a(f"s_lshl_b32 s{sT}, s{sP[P]}, 6")
        a(f"s_add_u32 s{sT}, s{sT}, s{sT2}")
        for o in range(2):
            a(f"buffer_load_dwordx2 {v(b1p[2*P+o],2)}, v{t0}, s[{sB1}:{sB1+3}], s{sT} offen offset:{32*o}")
    tokb = a.vtok()
    CSOFF = 2 * G1_SLOT
    a(f"v_lshlrev_b32 v{vcs}, 4, v{vq}")
    a(f"s_lshl_b32 s{sT}, s{sP[0]}, 7")
    a(f"v_add_u32 v{t1}, s{sT}, v{vcs}")
    for o in range(2):
        a(f"ds_write_b128 v{t1}, {v(cs[o],4)} offset:{CSOFF + 64*o}")
    a(f"s_mov_b32 s36, 0x22222222"); a(f"s_mov_b32 s37, 0x22222222")
    a(f"s_mov_b32 s38, 0x44444444"); a(f"s_mov_b32 s39, 0x44444444")
    a(f"s_mov_b32 s40, 0x88888888"); a(f"s_mov_b32 s41, 0x88888888")
    a(f"v_and_b32 v{t2}, 15, v{lane}")
    a(f"v_lshrrev_b32 v{t3}, 2, v{t2}")
    a(f"v_lshl_add_u32 v{vbp}, v{t3}, 4, v{t2}")
    a(f"v_lshlrev_b32 v{vbp}, 2, v{vbp}")
    for ct in range(2):
        d = tmp[ct]
        a(f"v_cndmask_b32 v{d}, v{sxx[ct]}, v{sxx[ct]+1}, s[36:37]")
        a(f"v_cndmask_b32 v{d}, v{d}, v{sxx[ct]+2}, s[38:39]")
        a(f"v_cndmask_b32 v{d}, v{d}, v{sxx[ct]+3}, s[40:41]")
        a(f"ds_bpermute_b32 v{d+1}, v{vbp}, v{d}")
    a("s_waitcnt lgkmcnt(0)")
    a("s_barrier")
    for P in range(3):
        a(f"s_lshl_b32 s{sT}, s{sP[P]}, 7")
        a(f"v_add_u32 v{t1}, s{sT}, v{vcs}")
        for o in range(2):
            a(f"ds_read_b128 {v(csv[2*P+o],4)}, v{t1} offset:{CSOFF + 64*o}")
    for ct in range(2):
        d = tmp[ct]; m = tmp[2 + ct]
        a(f"v_mul_f32 v{m}, {f32(1.0/D)}, v{sx[ct]}")
        a(f"v_mul_f32 v{d}, v{m}, v{m}")
        a(f"v_mul_f32 v{d+1}, {f32(1.0/D)}, v{d+1}")
        a(f"v_sub_f32 v{d}, v{d+1}, v{d}")
        a(f"v_max_f32 v{d}, 0, v{d}")
        bf16r(a, d, d)
        a(f"v_add_f32 v{d}, {f32(1e-5)}, v{d}")
        bf16r(a, d, d)
        a(f"v_sqrt_f32 v{d}, v{d}")
        bf16r(a, d, d)
        a(f"v_rcp_f32 v{rr[ct]}, v{d}")
        bf16r(a, m, m)
        a(f"v_mul_f32 v{rr[ct]+1}, v{m}, v{rr[ct]}")
        a(f"v_sub_f32 v{rr[ct]+1}, 0, v{rr[ct]+1}")
    a.wait(vm=tokb)
    for rt in range(6):
        a(f"v_lshlrev_b32 v{b1v[rt]}, 16, v{b1p[rt]}")
        a(f"v_and_b32 v{b1v[rt]+1}, 0xffff0000, v{b1p[rt]}")
        a(f"v_lshlrev_b32 v{b1v[rt]+2}, 16, v{b1p[rt]+1}")
        a(f"v_and_b32 v{b1v[rt]+3}, 0xffff0000, v{b1p[rt]+1}")
    a(f"v_lshlrev_b32 v{vst}, 4, v{lane}")
    a(f"s_lshl_b32 s{sT}, s{sRB}, 3")
    a(f"s_lshl_b32 s{sT2}, s{sWave}, 1")
    a(f"s_add_u32 s{sT}, s{sT}, s{sT2}")
    a(f"s_mul_i32 s{sT}, s{sT}, 48")
    a(f"s_mul_i32 s{sT2}, s{sCB}, 3")
    a(f"s_add_u32 s{sT}, s{sT}, s{sT2}")
    for P in range(3):
        a(f"s_add_u32 s{sP[P]}, s{sP[P]}, s{sT}")
        a(f"s_lshl_b32 s{sP[P]}, s{sP[P]}, 10")
    a(f"s_mov_b32 s42, {f32(LOG2E)}"); a(f"s_mov_b32 s43, {f32(LOG2E)}")
    a("s_waitcnt lgkmcnt(0)")
    stamp(a)
    k = 0
    for P in range(3):
        for ct in range(2):
            op = outp[k % 2]; k += 1
            hs = []
            for o in range(2):
                rt = 2 * P + o
                for hf in range(2):
                    h = acc[rt][ct] + 2 * hf
                    tt = tmp[len(hs)]
                    a(f"v_pk_fma_f32 {v(tt,2)}, {v(csv[rt]+2*hf,2)}, {v(rr[ct],2)}, {v(b1v[rt]+2*hf,2)} op_sel:[0,1,0] op_sel_hi:[1,1,1]")
                    a(f"v_pk_fma_f32 {v(h,2)}, {v(h,2)}, {v(rr[ct],2)}, {v(tt,2)} op_sel:[0,0,0] op_sel_hi:[1,0,1]")
                    hs.append(h)
            for i, h in enumerate(hs):
                a(f"v_pk_mul_f32 {v(tmp[i],2)}, {v(h,2)}, s[42:43]")
            for i, h in enumerate(hs):
                a(f"v_min_f32 v{tmp[i]}, {f32(30.0)}, v{tmp[i]}")
                a(f"v_min_f32 v{tmp[i]+1}, {f32(30.0)}, v{tmp[i]+1}")
            for i, h in enumerate(hs):
                a(f"v_exp_f32 v{tmp[i]}, v{tmp[i]}")
                a(f"v_exp_f32 v{tmp[i]+1}, v{tmp[i]+1}")
            for i, h in enumerate(hs):
                a(f"v_pk_add_f32 {v(tmp[4+i],2)}, {v(tmp[i],2)}, 2.0 op_sel_hi:[1,0]")
            for i, h in enumerate(hs):
                a(f"v_pk_mul_f32 {v(tmp[i],2)}, {v(tmp[i],2)}, {v(tmp[4+i],2)}")
            for i, h in enumerate(hs):
                a(f"v_pk_add_f32 {v(tmp[4+i],2)}, {v(tmp[i],2)}, 2.0 op_sel_hi:[1,0]")
            for i, h in enumerate(hs):
                a(f"v_rcp_f32 v{tmp[4+i]}, v{tmp[4+i]}")
                a(f"v_rcp_f32 v{tmp[4+i]+1}, v{tmp[4+i]+1}")
            for i, h in enumerate(hs):
                a(f"v_pk_mul_f32 {v(h,2)}, {v(h,2)}, {v(tmp[i],2)}")
            for i, h in enumerate(hs):
                a(f"v_pk_mul_f32 {v(h,2)}, {v(h,2)}, {v(tmp[4+i],2)}")
            for i, h in enumerate(hs):
                a(f"v_cvt_pk_bf16_f32 v{op+i}, v{h}, v{h+1}")
            if ct == 0:
                a(f"buffer_store_dwordx4 {v(op,4)}, v{vst}, s[{sACT}:{sACT+3}], s{sP[P]} offen")
            else:
                a(f"s_add_u32 s{sT}, s{sP[P]}, {48*1024}")
                a(f"buffer_store_dwordx4 {v(op,4)}, v{vst}, s[{sACT}:{sACT+3}], s{sT} offen")
    stamp_end(a, 0)
    return R.hi

KG_S = 272
KG_WAVE = 64 * KG_S
COARSE = list(range(8)) + [256, 258, 260, 262, 512, 516, 768, 772, 1024, 1280, 1536, 1792, 2048]
def kgen(a, wg0):
    R = Alloc(1)
    lane = R(); t0 = R(); t1 = R(); t2 = R(); t3 = R()
    P = [[R() for _ in range(6)] for _ in range(3)]
    vdt = R(); vwr = R(); vrdA = R(); voff = R()
    accK = R(16, 4)
    FA = [R(4, 4) for _ in range(8)]; FB = [R(4, 4) for _ in range(8)]
    pr = lambda: R(2, 2)
    l1, l8, l256, W, Fc, Fn, G, Gn, T, T2, G2, G4, G6, V, a2b = [pr() for _ in range(15)]
    pk = [R() for _ in range(4)]
    sWave, sD, sT, sCnt = 24, 25, 26, 27
    SP = [8, 12, 16, 20, 28, 32]
    sLD, sKR = 36, 40
    stamp_begin(a)
    for i, sr in enumerate(SP):
        a(f"s_load_dwordx2 s[{sr}:{sr+1}], s[0:1], {8 + 8*i}")
    a(f"s_load_dwordx2 s[{sLD}:{sLD+1}], s[0:1], 56")
    a("s_load_dwordx2 s[4:5], s[0:1], 120")
    a(f"v_lshrrev_b32 v{t0}, 6, v0")
    a(f"v_and_b32 v{lane}, 63, v0")
    a(f"v_readfirstlane_b32 s{sWave}, v{t0}")
    a(f"s_sub_u32 s{sD}, s2, {wg0}")
    a(f"s_lshl_b32 s{sD}, s{sD}, 2")
    a(f"s_add_u32 s{sD}, s{sD}, s{sWave}")
    for sr in SP: srd(a, sr, size=D * N * 2)
    srd(a, sLD, size=D * 2)
    a(f"s_mul_i32 s{sT}, s{sD}, {N*2}")
    a(f"v_lshlrev_b32 v{voff}, 1, v{lane}")
    a(f"s_lshl_b32 s{sCnt}, s{sD}, 1")
    a(f"v_mov_b32 v{t1}, s{sCnt}")
    a("s_waitcnt lgkmcnt(0)")
    a(f"buffer_load_ushort v{vdt}, v{t1}, s[{sLD}:{sLD+3}], 0 offen")
    for p in range(3):
        for i, sr in enumerate(SP):
            a(f"buffer_load_ushort v{P[p][i]}, v{voff}, s[{sr}:{sr+3}], s{sT} offen offset:{128*p}")
    a(f"s_lshl_b32 s{sT}, s{sD}, 12")
    a(f"s_add_u32 s{sT}, s{sT}, {WS_KR}")
    srd_from(a, sKR, 4, f"s{sT}", 4096)
    a(f"s_mul_i32 s{sT}, s{sWave}, {KG_WAVE}")
    a(f"v_lshlrev_b32 v{vwr}, 2, v{lane}")
    a(f"v_add_u32 v{vwr}, s{sT}, v{vwr}")
    a(f"v_and_b32 v{t0}, 31, v{lane}")
    a(f"v_mul_u32_u24 v{t0}, {KG_S}, v{t0}")
    a(f"v_lshrrev_b32 v{t1}, 5, v{lane}")
    a(f"v_lshl_add_u32 v{t0}, v{t1}, 4, v{t0}")
    a(f"v_add_u32 v{vrdA}, s{sT}, v{t0}")
    for i in range(16): a(f"v_mov_b32 v{accK+i}, 0")
    a("s_waitcnt vmcnt(0)")
    stamp(a)
    a(f"v_lshlrev_b32 v{vdt}, 16, v{vdt}")
    a(f"v_mul_f32 v{t0}, {f32(LOG2E)}, v{vdt}")
    a(f"s_mov_b32 s{sT}, {f32(LOG2E)}")
    a(f"v_fma_f32 v{t1}, v{vdt}, s{sT}, -v{t0}")
    lo = LOG2E - struct.unpack("<f", struct.pack("<f", LOG2E))[0]
    a(f"v_fmac_f32 v{t1}, {f32(lo)}, v{vdt}")
    a(f"v_exp_f32 v{t0}, v{t0}")
    a(f"v_mul_f32 v{t1}, {f32(LN2)}, v{t1}")
    a(f"v_fma_f32 v{t0}, v{t0}, v{t1}, v{t0}")
    bf16r(a, vdt, t0)
    a(f"s_mov_b32 s{sCnt}, 0")

    def cmul(dst, e, m):
        a(f"v_pk_mul_f32 {v(T,2)}, {v(e,2)}, {v(m,2)} op_sel:[0,0] op_sel_hi:[0,1]")
        a(f"v_pk_fma_f32 {v(dst,2)}, {v(e,2)}, {v(m,2)}, {v(T,2)} op_sel:[1,1,0] op_sel_hi:[1,0,1] neg_lo:[0,1,0]")
    npk = [0]
    def put(src, row, conj):
        r_ = pk[npk[0] % 4]; npk[0] += 1
        a(f"v_cvt_pk_bf16_f32 v{r_}, v{src}, {'-' if conj else ''}v{src+1}")
        a(f"ds_write_b32 v{vwr}, v{r_} offset:{row*KG_S}")
    def cexp(dst, scale):
        if scale == 1:
            a(f"v_exp_f32 v{t0}, v{a2b}")
            a(f"v_fract_f32 v{t1}, v{a2b+1}")
        else:
            a(f"v_mul_f32 v{t0}, {f32(float(scale))}, v{a2b}")
            a(f"v_mul_f32 v{t1}, {f32(float(scale))}, v{a2b+1}")
            a(f"v_exp_f32 v{t0}, v{t0}")
            a(f"v_fract_f32 v{t1}, v{t1}")
        a(f"v_cos_f32 v{dst}, v{t1}")
        a(f"v_sin_f32 v{dst+1}, v{t1}")
        a(f"v_mul_f32 v{dst}, v{dst}, v{t0}")
        a(f"v_mul_f32 v{dst+1}, v{dst+1}, v{t0}")
    def mfmas():
        for ks in range(8):
            a(f"v_mfma_f32_32x32x16_bf16 {v(accK,16)}, {v(FA[ks],4)}, {v(FB[ks],4)}, {v(accK,16)}")

    a.label("KG_loop")
    a.flush_hist()
    p0 = P[0]
    for i in range(6): a(f"v_lshlrev_b32 v{p0[i]}, 16, v{p0[i]}")
    a(f"v_mul_f32 v{p0[0]}, v{vdt}, v{p0[0]}")
    a(f"v_mul_f32 v{p0[1]}, v{vdt}, v{p0[1]}")
    a(f"v_mul_f32 v{T2}, v{vdt}, v{p0[2]}")
    a(f"v_mul_f32 v{T2+1}, v{vdt}, v{p0[3]}")
    a(f"v_mul_f32 v{a2b}, {f32(LOG2E)}, v{p0[0]}")
    a(f"v_mul_f32 v{a2b+1}, {f32(1.0/(2*math.pi))}, v{p0[1]}")
    a(f"v_mov_b32 v{V}, v{p0[4]}")
    a(f"v_mov_b32 v{V+1}, v{p0[5]}")
    cmul(W, V, T2)
    cexp(l8, 8); cexp(l1, 1); cexp(l256, 256)
    a(f"s_cmp_eq_u32 s{sCnt}, 0")
    a("s_cbranch_scc1 KG_skip")
    a("s_waitcnt lgkmcnt(0)")
    mfmas()
    a.label("KG_skip")
    a(f"v_mov_b32 v{pk[3]}, 0x3f80")
    a(f"ds_write_b32 v{vwr}, v{pk[3]}")
    put(l8, 1, False)
    cur = l8; bufs = [Fc, Fn]
    for f in range(2, 32):
        nx = bufs[f % 2]
        cmul(nx, cur, l8); put(nx, f, False); cur = nx
    put(W, 32, True)
    cur = W
    dst_of = {1: G, 2: G2, 3: G, 4: G4, 5: G, 6: G6, 7: G}
    for c in range(1, 8):
        nx = dst_of[c]
        cmul(nx, cur, l1); put(nx, 32 + c, True); cur = nx
    row = {val: 32 + i for i, val in enumerate(COARSE)}
    cur = W
    for j in range(1, 9):
        nx = bufs[j % 2]
        cmul(nx, cur, l256); put(nx, row[256 * j], True); cur = nx
    cmul(G, G2, l256); put(G, row[258], True)
    cmul(G, G6, l256); put(G, row[262], True)
    cmul(G, G4, l256); put(G, row[260], True)
    cmul(Gn, G, l256); put(Gn, row[516], True)
    cmul(G, Gn, l256); put(G, row[772], True)
    for ks in range(8):
        a(f"ds_read_b128 {v(FA[ks],4)}, v{vrdA} offset:{32*ks}")
        a(f"ds_read_b128 {v(FB[ks],4)}, v{vrdA} offset:{32*KG_S + 32*ks}")
    for i in range(6):
        a(f"v_mov_b32 v{P[0][i]}, v{P[1][i]}")
        a(f"v_mov_b32 v{P[1][i]}, v{P[2][i]}")
    a(f"s_add_u32 s{sCnt}, s{sCnt}, 1")
    a(f"s_cmp_lt_u32 s{sCnt}, 3")
    a("s_cbranch_scc1 KG_loop")
    stamp(a)
    vB = P[0][0]; vS = P[0][1]; c_ = P[0][2]; u0 = P[0][3]; u1 = P[0][4]; vJ = P[0][5]
    a(f"v_and_b32 v{c_}, 31, v{lane}")
    a(f"v_lshlrev_b32 v{vB}, 5, v{c_}")
    a(f"v_mov_b32 v{vS}, 1")
    a(f"v_subrev_u32 v{u0}, 12, v{c_}")
    a(f"v_and_b32 v{u1}, 1, v{u0}")
    a(f"v_lshrrev_b32 v{u0}, 1, v{u0}")
    a(f"v_lshl_add_u32 v{u0}, v{u0}, 6, v{u1}")
    a(f"v_add_u32 v{u0}, 384, v{u0}")
    a(f"v_cmp_gt_u32 vcc, 16, v{c_}")
    a(f"v_cndmask_b32 v{vB}, v{vB}, v{u0}, vcc")
    a(f"v_cndmask_b32 v{vS}, v{vS}, 2, vcc")
    a(f"v_add_u32 v{u0}, 248, v{c_}")
    a(f"v_cmp_gt_u32 vcc, 12, v{c_}")
    a(f"v_cndmask_b32 v{vB}, v{vB}, v{u0}, vcc")
    a(f"v_cndmask_b32 v{vS}, v{vS}, 4, vcc")
    a(f"v_cmp_gt_u32 vcc, 8, v{c_}")
    a(f"v_cndmask_b32 v{vB}, v{vB}, v{c_}, vcc")
    a(f"v_cndmask_b32 v{vS}, v{vS}, 8, vcc")
    a(f"v_lshlrev_b32 v{vS}, 2, v{vS}")
    a(f"v_lshrrev_b32 v{u0}, 5, v{lane}")
    a(f"v_lshlrev_b32 v{u0}, 2, v{u0}")
    a(f"v_mul_u32_u24 v{u0}, v{u0}, v{vS}")
    a(f"v_lshl_add_u32 v{vB}, v{vB}, 2, v{u0}")
    a(f"s_mul_i32 s{sT}, s{sWave}, {KG_WAVE}")
    a(f"v_add_u32 v{vB}, s{sT}, v{vB}")
    a("s_waitcnt lgkmcnt(0)")
    mfmas()
    for g in range(4):
        for i in range(4):
            r_ = pk[i]
            a(f"v_mad_u32_u24 v{t0+ (i%2)}, v{vS}, {8*g+i}, v{vB}")
            a(f"v_cvt_pk_bf16_f32 v{r_}, v{accK+4*g+i}, v{accK+4*g+i}")
            a(f"ds_write_b32 v{t0+(i%2)}, v{r_}")
    O = [FA[i] for i in range(4)]
    Tm = FB[0]
    a(f"v_lshlrev_b32 v{u0}, 2, v{lane}")
    a(f"v_add_u32 v{u0}, s{sT}, v{u0}")
    a(f"v_lshl_add_u32 v{u1}, v{lane}, 2, v{u0}")
    for p in (2, 3):
        e0 = 384 + 64 * p
        a(f"ds_read_b32 v{O[p]}, v{u0} offset:{4*(e0+1)}")
        a(f"ds_read_b32 v{O[p]+2}, v{u0} offset:{4*e0}")
        a(f"ds_read_b32 v{O[p]+3}, v{u0} offset:{4*e0}")
    a(f"ds_read_b32 v{O[1]}, v{u1} offset:{4*(384+2)}")
    a(f"ds_read_b32 v{O[1]+1}, v{u1} offset:{4*(384+1)}")
    a(f"ds_read_b32 v{O[1]+3}, v{u1} offset:{4*384}")
    a(f"v_lshlrev_b32 v{t0}, 5, v{lane}")
    a(f"v_add_u32 v{t0}, s{sT}, v{t0}")
    a(f"v_lshlrev_b32 v{t1}, 4, v{lane}")
    a(f"v_add_u32 v{t1}, s{sT}, v{t1}")
    a("s_mov_b32 exec_hi, 0")
    a(f"ds_read_b128 {v(Tm,4)}, v{t0}")
    a(f"ds_read_b128 {v(Tm+4,4)}, v{t0} offset:16")
    a("s_mov_b32 exec_hi, -1")
    a("s_mov_b32 exec_lo, 0")
    for k_, (o0, o1) in enumerate([(0, 0), (1, 2), (2, 2), (3, 4)]):
        a(f"ds_read2_b32 {v(Tm+2*k_,2)}, v{t1} offset0:{128+o0} offset1:{128+o1}")
    a("s_mov_b32 exec_lo, -1")
    a(f"v_and_b32 v{t2}, 1, v{lane}")
    a(f"v_subrev_u32 v{t2}, 1, v{t2}")
    a(f"v_and_b32 v{t2}, 0xffff0000, v{t2}")
    a(f"v_mov_b32 v{t3}, 0xffff0000")
    a(f"v_sub_u32 v{vJ}, 63, v{lane}")
    a(f"v_lshlrev_b32 v{vJ}, 4, v{vJ}")
    a("s_waitcnt lgkmcnt(0)")
    for p in (2, 3):
        a(f"v_bfi_b32 v{O[p]+1}, v{t2}, v{O[p]+2}, v{O[p]}")
    a(f"v_bfi_b32 v{O[1]+2}, v{t3}, v{O[1]+3}, v{O[1]+1}")
    for m in range(4):
        a(f"v_bfi_b32 v{O[0]+m}, v{t3}, v{Tm+6-2*m}, v{Tm+7-2*m}")
    for p in range(4):
        a(f"buffer_store_dwordx4 {v(O[p],4)}, v{vJ}, s[{sKR}:{sKR+3}], 0 offen offset:{1024*(3-p)}")
    stamp_end(a, 0)
    return R.hi

LN_S = 1312
def lnrole(a, wg0):
    R = Alloc(1)
    lane = R(); t0 = R(); t1 = R(); t2 = R(); voff = R(); vlw = R(); vtr = R(); vst = R()
    Xr = [R(4, 4) for _ in range(10)]
    Wr = [R(4, 4) for _ in range(10)]
    U = [R(2, 2) for _ in range(40)]
    sm = R(2, 2); mb = R(2, 2); rs = R(2, 2); T = [R(2, 2) for _ in range(4)]
    ones = R()
    O = [R(4, 4) for _ in range(4)]
    sX, sW2, sXT, sWA = 8, 12, 16, 20
    sWave, sJ, sT, sT2 = 24, 25, 26, 27
    stamp_begin(a)
    a("s_load_dwordx2 s[8:9], s[0:1], 0")
    a("s_load_dwordx2 s[12:13], s[0:1], 96")
    a("s_load_dwordx2 s[4:5], s[0:1], 120")
    a(f"v_lshrrev_b32 v{t0}, 6, v0")
    a(f"v_and_b32 v{lane}, 63, v0")
    a(f"v_readfirstlane_b32 s{sWave}, v{t0}")
    a(f"s_sub_u32 s{sJ}, s2, {wg0}")
    srd(a, sX, size=L * D * 2); srd(a, sW2, size=F * D * 2)
    a(f"v_lshrrev_b32 v{t0}, 3, v0")
    a(f"v_and_b32 v{t1}, 7, v0")
    a(f"v_lshlrev_b32 v{t1}, 4, v{t1}")
    a(f"v_mul_u32_u24 v{voff}, 1280, v{t0}")
    a(f"v_add_u32 v{voff}, v{voff}, v{t1}")
    a(f"v_mul_u32_u24 v{vlw}, {LN_S}, v{t0}")
    a(f"v_add_u32 v{vlw}, v{vlw}, v{t1}")
    a(f"s_mul_i32 s{sT}, s{sJ}, {32*1280}")
    a("s_waitcnt lgkmcnt(0)")
    for i in range(10):
        a(f"buffer_load_dwordx4 {v(Xr[i],4)}, v{voff}, s[{sX}:{sX+3}], s{sT} offen offset:{128*i}")
    tokx = a.vtok()
    for i in range(10):
        a(f"buffer_load_dwordx4 {v(Wr[i],4)}, v{voff}, s[{sW2}:{sW2+3}], s{sT} offen offset:{128*i}")
    tokw = a.vtok()
    srd_from(a, sXT, 4, WS_XT, SZ_T)
    srd_from(a, sWA, 4, WS_W2A, SZ_W2A)
    a(f"v_mov_b32 v{ones}, 0x3f803f80")
    a(f"v_mov_b32 v{sm}, 0")
    a.wait(vm=tokx)
    stamp(a)
    for i in range(40):
        a(f"v_dot2_f32_bf16 v{sm}, v{Xr[i//4] + i%4}, v{ones}, v{sm}")
    def red8(r_):
        a(f"v_add_f32_dpp v{r_}, v{r_}, v{r_} quad_perm:[1,0,3,2] row_mask:0xf bank_mask:0xf")
        a(f"v_add_f32_dpp v{r_}, v{r_}, v{r_} quad_perm:[2,3,0,1] row_mask:0xf bank_mask:0xf")
        a(f"v_add_f32_dpp v{r_}, v{r_}, v{r_} row_half_mirror row_mask:0xf bank_mask:0xf")
    for i in range(40):
        x = Xr[i//4] + i % 4
        a(f"v_lshlrev_b32 v{U[i]}, 16, v{x}")
        a(f"v_and_b32 v{U[i]+1}, 0xffff0000, v{x}")
    red8(sm)
    a(f"v_mul_f32 v{sm}, {f32(1.0/D)}, v{sm}")
    a(f"v_mov_b32 v{rs}, 0"); a(f"v_mov_b32 v{rs+1}, 0")
    for i in range(40):
        t = T[i % 4]
        a(f"v_pk_add_f32 {v(t,2)}, {v(U[i],2)}, {v(sm,2)} op_sel_hi:[1,0] neg_lo:[0,1] neg_hi:[0,1]")
        a(f"v_pk_fma_f32 {v(rs,2)}, {v(t,2)}, {v(t,2)}, {v(rs,2)}")
    a(f"v_add_f32 v{rs}, v{rs}, v{rs+1}")
    red8(rs)
    a(f"v_mul_f32 v{rs}, {f32(1.0/D)}, v{rs}")
    bf16r(a, rs, rs)
    a(f"v_add_f32 v{rs}, {f32(1e-5)}, v{rs}")
    bf16r(a, rs, rs)
    a(f"v_sqrt_f32 v{rs}, v{rs}")
    bf16r(a, rs, rs)
    a(f"v_rcp_f32 v{rs}, v{rs}")
    bf16r(a, mb, sm)
    for i in range(40):
        x = Xr[i//4] + i % 4; t = T[i % 4]
        a(f"v_pk_add_f32 {v(U[i],2)}, {v(U[i],2)}, {v(mb,2)} op_sel_hi:[1,0] neg_lo:[0,1] neg_hi:[0,1]")
        a(f"v_cvt_pk_bf16_f32 v{x}, v{U[i]}, v{U[i]+1}")
        a(f"v_lshlrev_b32 v{t}, 16, v{x}")
        a(f"v_and_b32 v{t+1}, 0xffff0000, v{x}")
        a(f"v_pk_mul_f32 {v(t,2)}, {v(t,2)}, {v(rs,2)} op_sel_hi:[1,0]")
        a(f"v_cvt_pk_bf16_f32 v{x}, v{t}, v{t+1}")
        if i % 4 == 3:
            a(f"ds_write_b128 v{vlw}, {v(Xr[i//4],4)} offset:{128*(i//4)}")
    a(f"v_lshrrev_b32 v{t0}, 4, v{lane}")
    a(f"v_bfe_u32 v{t1}, v{lane}, 2, 2")
    a(f"v_lshl_add_u32 v{t1}, v{t0}, 3, v{t1}")
    a(f"v_mul_u32_u24 v{t1}, {LN_S}, v{t1}")
    a(f"v_and_b32 v{t2}, 3, v{lane}")
    a(f"v_lshl_add_u32 v{t1}, v{t2}, 3, v{t1}")
    a(f"s_mul_i32 s{sT}, s{sWave}, 320")
    a(f"v_add_u32 v{vtr}, s{sT}, v{t1}")
    a(f"v_and_b32 v{t1}, 15, v{lane}")
    a(f"v_lshlrev_b32 v{t1}, 12, v{t1}")
    a(f"v_lshl_add_u32 v{vst}, v{t0}, 4, v{t1}")
    a(f"s_mul_i32 s{sT}, s{sWave}, {160*4096}")
    a(f"s_lshl_b32 s{sT2}, s{sJ}, 6")
    a(f"s_add_u32 s{sT}, s{sT}, s{sT2}")
    a("s_waitcnt lgkmcnt(0)")
    a("s_barrier")
    stamp(a)
    toks = {}
    def rd(i):
        o = O[i % 4]
        for e in range(2):
            a(f"ds_read_b64_tr_b16 {v(o+2*e,2)}, v{vtr} offset:{32*i + 4*e*LN_S}")
        toks[i] = a.ltok()
    for i in range(3): rd(i)
    for i in range(10):
        if i + 3 < 10: rd(i + 3)
        a.wait(lg=toks[i])
        a(f"buffer_store_dwordx4 {v(O[i%4],4)}, v{vst}, s[{sXT}:{sXT+3}], s{sT} offen")
        a(f"s_add_u32 s{sT}, s{sT}, {16*4096}")
    stamp(a)
    a(f"s_cmp_ge_u32 s{sJ}, 48")
    a("s_cbranch_scc1 LN_end")
    a("s_barrier")
    a.wait(vm=tokw)
    for i in range(10):
        a(f"ds_write_b128 v{vlw}, {v(Wr[i],4)} offset:{128*i}")
    vt8 = U[0]; vt4 = U[0] + 1
    a(f"v_lshrrev_b32 v{t1}, 2, v{lane}")
    a(f"v_mul_u32_u24 v{t1}, {LN_S}, v{t1}")
    a(f"s_mul_i32 s{sT}, s{sWave}, 320")
    a(f"v_add_u32 v{t1}, s{sT}, v{t1}")
    a(f"v_lshl_add_u32 v{vt8}, v{t2}, 4, v{t1}")
    a(f"v_lshl_add_u32 v{vt4}, v{t2}, 3, v{t1}")
    a(f"v_lshlrev_b32 v{vst}, 4, v{lane}")
    a(f"s_mul_i32 s{sT}, s{sWave}, {2*48*5*1024}")
    a(f"s_mul_i32 s{sT2}, s{sJ}, {5*1024}")
    a(f"s_add_u32 s{sT}, s{sT}, s{sT2}")
    a("s_waitcnt lgkmcnt(0)")
    a("s_barrier")
    def rd2(i):
        o = O[i % 4]; jd = i // 5; rt = i % 5
        for e in range(2):
            if rt < 4: a(f"ds_read_b64_tr_b16 {v(o+2*e,2)}, v{vt8} offset:{160*jd + 64*(rt>>1) + 8*(rt&1) + 16*e*LN_S}")
            else: a(f"ds_read_b64_tr_b16 {v(o+2*e,2)}, v{vt4} offset:{160*jd + 128 + 16*e*LN_S}")
        toks[i] = a.ltok()
    for i in range(3): rd2(i)
    for i in range(10):
        if i + 3 < 10: rd2(i + 3)
        a.wait(lg=toks[i])
        a(f"buffer_store_dwordx4 {v(O[i%4],4)}, v{vst}, s[{sWA}:{sWA+3}], s{sT} offen")
        a(f"s_add_u32 s{sT}, s{sT}, {1024 if i != 4 else 48*5*1024 - 4*1024}")
    a.label("LN_end")
    stamp_end(a, 0)
    return R.hi

CV_S = 4160
CV_K = [0, 4 * CV_S]
CV_U = [8 * CV_S + 512, 8 * CV_S + 512 + 4608, 8 * CV_S + 512 + 2 * 4608]
CV_RED = 8 * CV_S + 3 * 4608
CV_LDS = CV_RED + 32768
def conv(a):
    R = Alloc(1)
    lane = R(); t0 = R(); t1 = R(); t2 = R(); t3 = R()
    acc = [R(4, 4) for _ in range(8)]
    FA = [[R(4, 4) for _ in range(8)] for _ in range(2)]
    FB = [[R(4, 4) for _ in range(8)] for _ in range(2)]
    Kin = [R(8, 4) for _ in range(3)]
    Kt = [R(4, 4) for _ in range(3)]
    vA = R(); vBq = R(); vA0 = R(); vB0 = R(); vkw = R(); vrw = R(); vrr = R(); vur = R(); vso = R(); vz = R(4, 4)
    vdk = [R(), R()]
    sKR, sXT, sST, sDS, sKR2, sDBG = 8, 12, 16, 20, 28, 32
    sWave, sT, sT2, sCh, sPar, sCnt, sD2, sRound = 24, 25, 26, 27, 36, 37, 38, 39
    stamp_begin(a)
    a("s_load_dwordx2 s[4:5], s[0:1], 120")
    a(f"s_load_dwordx2 s[{sDS}:{sDS+1}], s[0:1], 64")
    a(f"s_load_dwordx2 s[{sDBG}:{sDBG+1}], s[0:1], 112")
    a(f"v_lshrrev_b32 v{t0}, 6, v0")
    a(f"v_and_b32 v{lane}, 63, v0")
    a(f"v_readfirstlane_b32 s{sWave}, v{t0}")
    srd(a, sDS, size=D * 2); srd(a, sDBG, size=256)
    a(f"s_lshr_b32 s{sT}, s{sWave}, 1")
    a(f"s_and_b32 s{sPar}, s{sWave}, 1")
    a(f"s_lshl_b32 s{sCh}, s2, 1")
    a(f"s_add_u32 s{sCh}, s{sCh}, s{sT}")
    a(f"s_add_u32 s{sD2}, s2, 512")
    a("s_waitcnt lgkmcnt(0)")
    a(f"s_lshl_b32 s{sT2}, s{sCh}, 12")
    a(f"s_add_u32 s{sT2}, s{sT2}, {WS_KR}")
    srd_from(a, sKR, 4, f"s{sT2}", 4096)
    a(f"s_lshl_b32 s{sT2}, s{sD2}, 12")
    a(f"s_add_u32 s{sT2}, s{sT2}, {WS_KR}")
    srd_from(a, sKR2, 4, f"s{sT2}", 4096)
    a(f"s_cmp_lt_u32 s2, 128")
    a(f"s_cselect_b32 s{sKR2+2}, 4096, 0")
    srd_from(a, sXT, 4, WS_XT, SZ_T)
    srd_from(a, sST, 4, WS_ST, SZ_T)
    a(f"v_lshlrev_b32 v{t1}, 4, v{lane}")
    a(f"s_lshl_b32 s{sT2}, s{sPar}, 11")
    for i in range(2):
        a(f"buffer_load_dwordx4 {v(Kin[i],4)}, v{t1}, s[{sKR}:{sKR+3}], s{sT2} offen offset:{1024*i}")
        a(f"buffer_load_dwordx2 {v(Kin[i]+4,2)}, v{t1}, s[{sKR}:{sKR+3}], s{sT2} offen offset:{1024*i+16}")
    tokK1 = a.vtok()
    a(f"s_mul_i32 s{sCnt}, s{sT}, 4608")
    a(f"s_add_u32 s{sCnt}, s{sCnt}, s{sT2}")
    a(f"s_add_u32 m0, s{sCnt}, {CV_U[0]}")
    a(f"s_lshl_b32 s{sCnt}, s{sCh}, 12")
    a(f"s_add_u32 s{sCnt}, s{sCnt}, s{sT2}")
    for i in range(2):
        a(f"buffer_load_dwordx4 v{t1}, s[{sXT}:{sXT+3}], s{sCnt} offen offset:{1024*i} lds")
    tokU1 = a.vtok()
    a(f"s_lshl_b32 s{sCnt}, s{sCh}, 1")
    a(f"v_mov_b32 v{t2}, s{sCnt}")
    a(f"buffer_load_ushort v{vdk[0]}, v{t2}, s[{sDS}:{sDS+3}], 0 offen")
    a(f"s_lshl_b32 s{sCnt}, s{sD2}, 1")
    a(f"v_mov_b32 v{t3}, s{sCnt}")
    a(f"buffer_load_ushort v{vdk[1]}, v{t3}, s[{sDS}:{sDS+3}], 0 offen")
    a(f"s_lshl_b32 s{sT2}, s{sWave}, 10")
    a(f"buffer_load_dwordx4 {v(Kin[2],4)}, v{t1}, s[{sKR2}:{sKR2+3}], s{sT2} offen")
    a(f"buffer_load_dwordx2 {v(Kin[2]+4,2)}, v{t1}, s[{sKR2}:{sKR2+3}], s{sT2} offen offset:16")
    a(f"s_add_u32 m0, s{sT2}, {CV_U[2]}")
    a(f"s_lshl_b32 s{sCnt}, s{sD2}, 12")
    a(f"s_add_u32 s{sCnt}, s{sCnt}, s{sT2}")
    a(f"buffer_load_dwordx4 v{t1}, s[{sXT}:{sXT+3}], s{sCnt} offen lds")
    tokR2 = a.vtok()
    for i in range(4): a(f"v_mov_b32 v{vz+i}, 0")
    a(f"s_mul_i32 s{sCnt}, s{sWave}, 4608")
    a(f"s_add_u32 s{sCnt}, s{sCnt}, {CV_U[0] - 512}")
    a(f"v_add_u32 v{t2}, s{sCnt}, v{t1}")
    a(f"v_lshrrev_b32 v{t3}, 2, v{lane}")
    a(f"v_mul_u32_u24 v{t3}, {CV_S}, v{t3}")
    a(f"v_and_b32 v{t0}, 3, v{lane}")
    a(f"v_lshl_add_u32 v{t3}, v{t0}, 4, v{t3}")
    a(f"v_add_u32 v{t3}, 4096, v{t3}")
    a(f"s_cmp_eq_u32 s{sWave}, 3")
    a(f"s_cselect_b64 vcc, -1, 0")
    a(f"v_cndmask_b32 v{t2}, v{t2}, v{t3}, vcc")
    a("s_mov_b32 exec_hi, 0")
    a(f"ds_write_b128 v{t2}, {v(vz,4)}")
    a("s_mov_b32 exec_hi, -1")
    a(f"v_and_b32 v{t0}, 15, v{lane}")
    a(f"v_sub_u32 v{t2}, 15, v{t0}")
    a(f"v_and_b32 v{t3}, 3, v{t2}")
    a(f"v_sub_u32 v{t2}, v{t2}, v{t3}")
    a(f"v_mul_u32_u24 v{t3}, {CV_S}, v{t3}")
    a(f"v_lshl_add_u32 v{t3}, v{t2}, 1, v{t3}")
    a(f"v_lshrrev_b32 v{t2}, 4, v{lane}")
    a(f"v_lshl_add_u32 v{vA0}, v{t2}, 4, v{t3}")
    a(f"v_lshlrev_b32 v{t3}, 4, v{t2}")
    a(f"v_lshl_add_u32 v{vB0}, v{t0}, 5, v{t3}")
    a(f"v_lshrrev_b32 v{t3}, 1, v{t2}")
    a(f"v_lshlrev_b32 v{t3}, 3, v{t3}")
    a(f"v_xor_b32 v{t3}, v{t3}, v{t0}")
    a(f"v_lshlrev_b32 v{t3}, 4, v{t3}")
    a(f"v_lshl_add_u32 v{t3}, v{t2}, 8, v{t3}")
    a(f"s_lshl_b32 s{sCnt}, s{sWave}, 13")
    a(f"s_add_u32 s{sCnt}, s{sCnt}, {CV_RED}")
    a(f"v_add_u32 v{vrw}, s{sCnt}, v{t3}")
    a(f"v_bfe_u32 v{t0}, v{lane}, 1, 4")
    a(f"v_and_b32 v{t2}, 1, v{lane}")
    a(f"v_lshlrev_b32 v{t3}, 3, v{t2}")
    a(f"v_xor_b32 v{t0}, v{t0}, v{t3}")
    a(f"v_lshlrev_b32 v{t0}, 4, v{t0}")
    a(f"v_lshl_add_u32 v{t0}, v{t2}, 9, v{t0}")
    a(f"v_lshrrev_b32 v{t2}, 5, v{lane}")
    a(f"v_lshl_add_u32 v{vrr}, v{t2}, 10, v{t0}")
    def build_copies(kin, vaddr, off):
        for k in range(4): a(f"v_alignbyte_b32 v{Kt[0]+k}, v{kin+k+1}, v{kin+k}, 2")
        for k in range(4): a(f"v_mov_b32 v{Kt[1]+k}, v{kin+k+1}")
        for k in range(4): a(f"v_alignbyte_b32 v{Kt[2]+k}, v{kin+k+2}, v{kin+k+1}, 2")
        a(f"ds_write_b128 v{vaddr}, {v(kin,4)} offset:{off}")
        for c in range(3): a(f"ds_write_b128 v{vaddr}, {v(Kt[c],4)} offset:{off + (c+1)*CV_S}")
    a(f"s_mul_i32 s{sCnt}, s{sT}, {4*CV_S}")
    a(f"s_lshl_b32 s{sT2}, s{sPar}, 11")
    a(f"s_add_u32 s{sCnt}, s{sCnt}, s{sT2}")
    a(f"v_add_u32 v{vkw}, s{sCnt}, v{t1}")
    a.wait(vm=tokK1)
    stamp(a)
    build_copies(Kin[0], vkw, 0)
    a("s_nop 1")
    build_copies(Kin[1], vkw, 1024)
    a(f"s_mul_i32 s{sCnt}, s{sT}, {4*CV_S}")
    a(f"s_lshl_b32 s{sT2}, s{sPar}, 8")
    a(f"s_sub_u32 s{sCnt}, s{sCnt}, s{sT2}")
    a(f"s_add_u32 s{sCnt}, s{sCnt}, {32*14}")
    a(f"v_add_u32 v{vA}, s{sCnt}, v{vA0}")
    a(f"s_mul_i32 s{sCnt}, s{sT}, 4608")
    a(f"s_sub_u32 s{sCnt}, s{sCnt}, s{sT2}")
    a(f"s_add_u32 s{sCnt}, s{sCnt}, {CV_U[0] - 512 + 32*15}")
    a(f"v_add_u32 v{vBq}, s{sCnt}, v{vB0}")
    a(f"s_mov_b32 s{sCnt}, 2")
    a(f"s_mov_b32 s{sRound}, 0")
    a.wait(vm=tokU1, lg=a.ltok())
    a("s_barrier")
    stamp(a)

    def reads(st):
        toks = []
        for j in range(8):
            a(f"ds_read_b128 {v(FB[st][j],4)}, v{vBq} offset:{512*j}")
            a(f"ds_read_b64 {v(FA[st][j],2)}, v{vA} offset:{512*(7-j)}")
            a(f"ds_read_b64 {v(FA[st][j]+2,2)}, v{vA} offset:{512*(7-j)+8}")
        a(f"v_subrev_u32 v{vA}, 64, v{vA}")
        a(f"v_subrev_u32 v{vBq}, 64, v{vBq}")
    def group(st, nxt):
        pairs = [(c, j) for c in range(8) for j in range(c + 1)]
        rd = []
        for j in range(8):
            rd.append(f"ds_read_b128 {v(FB[nxt][j],4)}, v{vBq} offset:{512*j}")
            rd.append(f"ds_read_b64 {v(FA[nxt][j],2)}, v{vA} offset:{512*(7-j)}")
            rd.append(f"ds_read_b64 {v(FA[nxt][j]+2,2)}, v{vA} offset:{512*(7-j)+8}")
        rd.append(f"v_subrev_u32 v{vA}, 64, v{vA}")
        rd.append(f"v_subrev_u32 v{vBq}, 64, v{vBq}")
        pairs.sort(key=lambda cj: (cj[1], cj[0]))
        for i, (c, j) in enumerate(pairs):
            a(f"v_mfma_f32_16x16x32_bf16 {v(acc[c],4)}, {v(FA[st][j],4)}, {v(FB[st][c-j],4)}, {v(acc[c],4)}")
            if i < len(rd): a(rd[i])

    a.label("CV_round")
    a.flush_hist()
    reads(0)
    for c in range(8):
        for i in range(4): a(f"v_mov_b32 v{acc[c]+i}, 0")
    a.label("CV_loop")
    a("s_waitcnt lgkmcnt(0)")
    group(0, 1)
    a("s_waitcnt lgkmcnt(0)")
    group(1, 0)
    a(f"s_sub_u32 s{sCnt}, s{sCnt}, 1")
    a(f"s_cmp_lg_u32 s{sCnt}, 0")
    a("s_cbranch_scc1 CV_loop")
    for c in range(8):
        a(f"ds_write_b128 v{vrw}, {v(acc[c],4)} offset:{1024*c}")
    a("s_waitcnt lgkmcnt(0)")
    a("s_barrier")
    Rd = FA[1]
    Uq = FB[1]
    def finish(npart, nblk, vdsk):
        for b in range(nblk):
            base = b * npart * 2
            for p in range(1, npart):
                for e in range(2):
                    for hf in range(2):
                        a(f"v_pk_add_f32 {v(Rd[base+e]+2*hf,2)}, {v(Rd[base+e]+2*hf,2)}, {v(Rd[base+2*p+e]+2*hf,2)}")
            o = FB[0][b]; T = FB[0][4]; T2 = FB[0][5]
            for m in range(4):
                y = Rd[base + m // 2] + 2 * (m % 2)
                u = Uq[b] + m
                a(f"v_cvt_pk_bf16_f32 v{o+m}, v{y}, v{y+1}")
                a(f"v_lshlrev_b32 v{T}, 16, v{u}")
                a(f"v_and_b32 v{T+1}, 0xffff0000, v{u}")
                a(f"v_pk_mul_f32 {v(T,2)}, {v(T,2)}, {v(vdsk,2)} op_sel_hi:[1,0]")
                a(f"v_cvt_pk_bf16_f32 v{T+2}, v{T}, v{T+1}")
                a(f"v_lshlrev_b32 v{T}, 16, v{T+2}")
                a(f"v_and_b32 v{T+1}, 0xffff0000, v{T+2}")
                a(f"v_lshlrev_b32 v{T2}, 16, v{o+m}")
                a(f"v_and_b32 v{T2+1}, 0xffff0000, v{o+m}")
                a(f"v_pk_add_f32 {v(T,2)}, {v(T,2)}, {v(T2,2)}")
                a(f"v_cvt_pk_bf16_f32 v{o+m}, v{T}, v{T+1}")
            a(f"buffer_store_dwordx4 {v(o,4)}, v{vso}, s[{sST}:{sST+3}], s{sT2} offen offset:{1024*b} sc1")
    dsk = FB[0][6]
    a(f"s_cmp_lg_u32 s{sRound}, 0")
    a("s_cbranch_scc1 CV_fin2")
    stamp(a)
    a(f"s_lshl_b32 s{sCnt}, s{sT}, 14")
    a(f"s_lshl_b32 s{sT2}, s{sPar}, 12")
    a(f"s_add_u32 s{sCnt}, s{sCnt}, s{sT2}")
    a(f"s_add_u32 s{sCnt}, s{sCnt}, {CV_RED}")
    a(f"v_add_u32 v{t0}, s{sCnt}, v{vrr}")
    for b in range(2):
        for p in range(2):
            for e in range(2):
                a(f"ds_read_b128 {v(Rd[(b*2+p)*2+e],4)}, v{t0} offset:{8192*p + 2048*b + 256*e}")
    a(f"s_mul_i32 s{sCnt}, s{sT}, 4608")
    a(f"s_lshl_b32 s{sT2}, s{sPar}, 11")
    a(f"s_add_u32 s{sCnt}, s{sCnt}, s{sT2}")
    a(f"v_add_u32 v{t2}, s{sCnt}, v{t1}")
    for b in range(2):
        a(f"ds_read_b128 {v(Uq[b],4)}, v{t2} offset:{CV_U[0] + 1024*b}")
    a(f"s_lshl_b32 s{sCnt}, s{sWave}, 10")
    a(f"v_add_u32 v{vkw}, s{sCnt}, v{t1}")
    a("s_waitcnt vmcnt(0)")
    build_copies(Kin[2], vkw, 0)
    a(f"v_lshlrev_b32 v{dsk}, 16, v{vdk[0]}")
    a(f"v_mov_b32 v{vso}, v{t1}")
    a(f"s_lshl_b32 s{sCnt}, s{sCh}, 12")
    a(f"s_add_u32 s{sT2}, s{sT2}, s{sCnt}")
    a("s_waitcnt lgkmcnt(0)")
    finish(2, 2, dsk)
    stamp(a)
    a(f"s_lshl_b32 s{sT2}, s{sWave}, 7")
    a(f"s_sub_u32 s{sCnt}, {32*14}, s{sT2}")
    a(f"v_add_u32 v{vA}, s{sCnt}, v{vA0}")
    a(f"s_sub_u32 s{sCnt}, {CV_U[2] - 512 + 32*15}, s{sT2}")
    a(f"v_add_u32 v{vBq}, s{sCnt}, v{vB0}")
    a("s_waitcnt vmcnt(0)")
    a("s_barrier")
    stamp(a)
    a(f"s_cmp_lg_u32 s{sWave}, 0")
    a("s_cbranch_scc1 CV_nosig1")
    a(f"s_mul_i32 s{sCnt}, s2, 1639")
    a(f"s_lshr_b32 s{sCnt}, s{sCnt}, 16")
    a(f"s_lshl_b32 s{sCnt}, s{sCnt}, 2")
    a(f"v_mov_b32 v{t0}, s{sCnt}")
    a(f"v_mov_b32 v{t2}, 2")
    a("s_mov_b64 exec, 1")
    a(f"buffer_atomic_add v{t2}, v{t0}, s[{sDBG}:{sDBG+3}], 0 offen")
    a("s_mov_b64 exec, -1")
    a.label("CV_nosig1")
    a(f"s_cmp_ge_u32 s2, 128")
    a("s_cbranch_scc1 CV_end")
    a(f"s_mov_b32 s{sCnt}, 1")
    a(f"s_mov_b32 s{sRound}, 1")
    a("s_branch CV_round")
    a.label("CV_fin2")
    a.flush_hist()
    stamp(a)
    a(f"s_lshl_b32 s{sCnt}, s{sWave}, 11")
    a(f"s_add_u32 s{sCnt}, s{sCnt}, {CV_RED}")
    a(f"v_add_u32 v{t0}, s{sCnt}, v{vrr}")
    for p in range(4):
        for e in range(2):
            a(f"ds_read_b128 {v(Rd[p*2+e],4)}, v{t0} offset:{8192*p + 256*e}")
    a(f"ds_read_b128 {v(Uq[0],4)}, v{vkw} offset:{CV_U[2]}")
    a(f"v_lshlrev_b32 v{dsk}, 16, v{vdk[1]}")
    a(f"s_lshl_b32 s{sT2}, s{sWave}, 10")
    a(f"s_lshl_b32 s{sCnt}, s{sD2}, 12")
    a(f"s_add_u32 s{sT2}, s{sT2}, s{sCnt}")
    a("s_waitcnt lgkmcnt(0)")
    finish(4, 1, dsk)
    a("s_waitcnt vmcnt(0)")
    a("s_barrier")
    a(f"s_cmp_lg_u32 s{sWave}, 0")
    a("s_cbranch_scc1 CV_end")
    a(f"s_cmp_ge_u32 s{sD2}, 560")
    a(f"s_cselect_b32 s{sCnt}, 28, 24")
    a(f"v_mov_b32 v{t0}, s{sCnt}")
    a(f"v_mov_b32 v{t2}, 1")
    a("s_mov_b64 exec, 1")
    a(f"buffer_atomic_add v{t2}, v{t0}, s[{sDBG}:{sDBG+3}], 0 offen")
    a.label("CV_end")
    stamp_end(a, 1)
    return R.hi

def gemm2(a, wg0):
    R = Alloc(1)
    lane = R(); t0 = R(); t1 = R(); t2 = R(); t3 = R()
    acc = [[R(4, 4) for ct in range(4)] for rt in range(5)]
    NST = 4
    FA = [[R(4, 4) for _ in range(5)] for _ in range(NST)]
    FB = [[R(4, 4) for _ in range(4)] for _ in range(NST)]
    vA = R(); vA2 = R(); vB = [R() for _ in range(4)]
    xr = R(10, 4); vxo = R(); vxo2 = R()
    sWA, sACT, sX, sOUT, sST, sDBG = 8, 12, 16, 20, 28, 32
    sWave, sT, sT2, sTB, sJD, sOA, sOB = 24, 25, 26, 27, 36, 37, 38
    sK, sOA0, sOB0 = 39, 40, 41
    stamp_begin(a)
    a("s_load_dwordx2 s[4:5], s[0:1], 120")
    a(f"s_load_dwordx2 s[{sX}:{sX+1}], s[0:1], 0")
    a(f"s_load_dwordx2 s[{sOUT}:{sOUT+1}], s[0:1], 104")
    a(f"s_load_dwordx2 s[{sDBG}:{sDBG+1}], s[0:1], 112")
    a(f"v_lshrrev_b32 v{t0}, 6, v0")
    a(f"v_and_b32 v{lane}, 63, v0")
    a(f"v_readfirstlane_b32 s{sWave}, v{t0}")
    a(f"s_sub_u32 s{sT}, s2, {wg0}")
    a(f"s_lshr_b32 s{sT2}, s{sT}, 3")
    a(f"s_and_b32 s{sT}, s{sT}, 7")
    a(f"s_lshr_b32 s{sTB}, s{sT}, 1")
    a(f"s_lshl_b32 s{sTB}, s{sTB}, 3")
    a(f"s_and_b32 s{sJD}, s{sT2}, 7")
    a(f"s_add_u32 s{sTB}, s{sTB}, s{sJD}")
    a(f"s_and_b32 s{sJD}, s{sT}, 1")
    a(f"s_lshl_b32 s{sJD}, s{sJD}, 2")
    a(f"s_lshr_b32 s{sT2}, s{sT2}, 3")
    a(f"s_add_u32 s{sJD}, s{sJD}, s{sT2}")
    srd(a, sX, size=L * D * 2); srd(a, sOUT, size=L * D * 2); srd(a, sDBG, size=256)
    a(f"v_lshlrev_b32 v{vA}, 4, v{lane}")
    a(f"v_add_u32 v{vA2}, 4096, v{vA}")
    for ct in range(4):
        a(f"s_add_u32 s{sT}, s{sWave}, {ct}")
        a(f"s_and_b32 s{sT}, s{sT}, 3")
        a(f"s_mul_i32 s{sT}, s{sT}, {48*1024}")
        a(f"v_add_u32 v{vB[ct]}, s{sT}, v{vA}")
    a(f"s_mul_i32 s{sT}, s{sWave}, 12")
    a(f"s_mul_i32 s{sOA}, s{sJD}, 48")
    a(f"s_add_u32 s{sOA}, s{sOA}, s{sT}")
    a(f"s_mul_i32 s{sOA}, s{sOA}, 5120")
    a(f"s_mul_i32 s{sOB}, s{sTB}, 192")
    a(f"s_add_u32 s{sOB}, s{sOB}, s{sT}")
    a(f"s_lshl_b32 s{sOB}, s{sOB}, 10")
    a(f"s_mov_b32 s{sOA0}, s{sOA}")
    a(f"s_mov_b32 s{sOB0}, s{sOB}")
    a(f"s_and_b32 s{sK}, s{sJD}, 3")
    a(f"s_mul_i32 s{sK}, s{sK}, 3")
    a(f"s_and_b32 s{sT}, s{sTB}, 7")
    a(f"s_mul_i32 s{sT}, s{sT}, 3")
    a(f"s_lshr_b32 s{sT}, s{sT}, 1")
    a(f"s_add_u32 s{sK}, s{sK}, s{sT}")
    a(f"s_lshr_b32 s{sT}, s{sTB}, 3")
    a(f"s_add_u32 s{sK}, s{sK}, s{sT}")
    a(f"s_cmp_ge_u32 s{sK}, 12")
    a(f"s_cselect_b32 s{sT}, 12, 0")
    a(f"s_sub_u32 s{sK}, s{sK}, s{sT}")
    a(f"s_mul_i32 s{sT}, s{sK}, 5120")
    a(f"s_add_u32 s{sOA}, s{sOA}, s{sT}")
    a(f"s_lshl_b32 s{sT}, s{sK}, 10")
    a(f"s_add_u32 s{sOB}, s{sOB}, s{sT}")
    a("s_waitcnt lgkmcnt(0)")
    srd_from(a, sWA, 4, WS_W2A, SZ_W2A)
    srd_from(a, sACT, 4, WS_ACT, SZ_ACT)
    tok = {}
    def issue(k):
        st = k % NST
        for ct in range(4):
            a(f"buffer_load_dwordx4 {v(FB[st][ct],4)}, v{vB[ct]}, s[{sACT}:{sACT+3}], s{sOB} offen")
        for rt in range(5):
            if rt < 4: a(f"buffer_load_dwordx4 {v(FA[st][rt],4)}, v{vA}, s[{sWA}:{sWA+3}], s{sOA} offen offset:{1024*rt}")
            else: a(f"buffer_load_dwordx4 {v(FA[st][rt],4)}, v{vA2}, s[{sWA}:{sWA+3}], s{sOA} offen")
            tok[(k, rt)] = a.vtok()
        if k < 11:
            a(f"s_add_u32 s{sOA}, s{sOA}, 5120")
            a(f"s_add_u32 s{sOB}, s{sOB}, 1024")
            a(f"s_add_u32 s{sK}, s{sK}, 1")
            a(f"s_cmp_eq_u32 s{sK}, 12")
            a(f"s_cselect_b32 s{sOA}, s{sOA0}, s{sOA}")
            a(f"s_cselect_b32 s{sOB}, s{sOB0}, s{sOB}")
    for k in range(NST): issue(k)
    srd_from(a, sST, 4, WS_ST, SZ_T)
    a(f"s_lshl_b32 s{sT}, s{sTB}, 6")
    a(f"s_lshl_b32 s{sT2}, s{sWave}, 4")
    a(f"s_add_u32 s{sT}, s{sT}, s{sT2}")
    a(f"v_and_b32 v{t0}, 15, v{lane}")
    a(f"v_add_u32 v{t0}, s{sT}, v{t0}")
    a(f"v_mul_u32_u24 v{t1}, 1280, v{t0}")
    a(f"s_mul_i32 s{sT2}, s{sJD}, 160")
    a(f"v_add_u32 v{t1}, s{sT2}, v{t1}")
    a(f"v_lshrrev_b32 v{t2}, 4, v{lane}")
    a(f"v_lshl_add_u32 v{vxo}, v{t2}, 4, v{t1}")
    a(f"v_lshl_add_u32 v{vxo2}, v{t2}, 3, v{t1}")
    for k in range(12):
        st = k % NST
        for rt in range(5):
            a.wait(vm=tok[(k, rt)])
            for ct in range(4):
                c = "0" if k == 0 else v(acc[rt][ct], 4)
                a(f"v_mfma_f32_16x16x32_bf16 {v(acc[rt][ct],4)}, {v(FA[st][rt],4)}, {v(FB[st][ct],4)}, {c}")
        if k in (0, 3, 7): stamp(a)
        if k + NST < 12: issue(k + NST)
        if k == 7:
            a(f"buffer_load_dwordx4 {v(xr,4)}, v{vxo}, s[{sX}:{sX+3}], 0 offen")
            a(f"buffer_load_dwordx4 {v(xr+4,4)}, v{vxo}, s[{sX}:{sX+3}], 0 offen offset:64")
            a(f"buffer_load_dwordx2 {v(xr+8,2)}, v{vxo2}, s[{sX}:{sX+3}], 0 offen offset:128")
    stamp(a)
    E = Alloc(FA[0][0], limit=FB[NST-1][3] + 4)
    Pr = [[E(4, 4) for rt in range(5)] for p in range(3)]
    sv = E(20, 4); T = [E(2, 2) for _ in range(10)]; op = E(10, 4); vso = E(); vso2 = E(); vpl = E(); vfl = E()
    for ct in range(1, 4):
        a(f"s_add_u32 s{sT2}, s{sWave}, {ct}")
        a(f"s_and_b32 s{sT2}, s{sT2}, 3")
        a(f"s_mul_i32 s{sT2}, s{sT2}, 15360")
        a(f"v_add_u32 v{t3}, s{sT2}, v{vA}")
        for rt in range(5):
            a(f"ds_write_b128 v{t3}, {v(acc[rt][ct],4)} offset:{(ct-1)*5120 + rt*1024}")
    a(f"s_lshl_b32 s{sT2}, s{sJD}, 2")
    a(f"v_mov_b32 v{vpl}, s{sT2}")
    a(f"s_mul_i32 s{sT2}, s{sJD}, {80*4096}")
    a(f"v_lshlrev_b32 v{t0}, 1, v{t0}")
    a(f"v_add_u32 v{t0}, s{sT2}, v{t0}")
    a(f"v_lshl_add_u32 v{vso}, v{t2}, 15, v{t0}")
    a(f"v_lshl_add_u32 v{vso2}, v{t2}, 14, v{t0}")
    a(f"s_mov_b32 s{sT}, 0")
    a(f"s_cmp_lg_u32 s{sWave}, 0")
    a("s_cbranch_scc1 G2_ready")
    a.label("G2_poll")
    a.flush_hist()
    a(f"buffer_load_dword v{vfl}, v{vpl}, s[{sDBG}:{sDBG+3}], 0 offen sc1")
    a("s_waitcnt vmcnt(0)")
    a(f"v_readfirstlane_b32 s{sT2}, v{vfl}")
    a(f"s_cmp_ge_u32 s{sT2}, 80")
    a("s_cbranch_scc1 G2_ready")
    a("s_sleep 8")
    a(f"s_add_u32 s{sT}, s{sT}, 1")
    a(f"s_cmp_lt_u32 s{sT}, 0x8000")
    a("s_cbranch_scc1 G2_poll")
    a.label("G2_ready")
    a.flush_hist()
    a("s_waitcnt lgkmcnt(0)")
    a("s_barrier")
    stamp(a)
    for j in range(20):
        if j < 16:
            d = 32 * (j // 8) + j % 8
            a(f"s_mov_b32 s{sT2}, {d*4096}")
            a(f"buffer_load_ushort v{sv+j}, v{vso}, s[{sST}:{sST+3}], s{sT2} offen sc1")
        else:
            a(f"s_mov_b32 s{sT2}, {(64 + j - 16)*4096}")
            a(f"buffer_load_ushort v{sv+j}, v{vso2}, s[{sST}:{sST+3}], s{sT2} offen sc1")
    a(f"s_mul_i32 s{sT2}, s{sWave}, 15360")
    a(f"v_add_u32 v{t3}, s{sT2}, v{vA}")
    for p in range(3):
        for rt in range(5):
            a(f"ds_read_b128 {v(Pr[p][rt],4)}, v{t3} offset:{p*5120 + rt*1024}")
    a(f"s_mov_b32 s42, {f32(-LOG2E)}"); a(f"s_mov_b32 s43, {f32(-LOG2E)}")
    a("s_waitcnt lgkmcnt(0)")
    o2 = []
    for rt in range(5):
        for hf in range(2):
            d = acc[rt][0] + 2 * hf
            for p in range(3):
                a(f"v_pk_add_f32 {v(d,2)}, {v(d,2)}, {v(Pr[p][rt]+2*hf,2)}")
            o2.append(d)
    for i, d in enumerate(o2):
        a(f"v_cvt_pk_bf16_f32 v{T[i]}, v{d}, v{d+1}")
        a(f"v_lshlrev_b32 v{d}, 16, v{T[i]}")
        a(f"v_and_b32 v{d+1}, 0xffff0000, v{T[i]}")
        a(f"v_pk_mul_f32 {v(T[i],2)}, {v(d,2)}, s[42:43]")
    for i, d in enumerate(o2):
        a(f"v_exp_f32 v{T[i]}, v{T[i]}")
        a(f"v_exp_f32 v{T[i]+1}, v{T[i]+1}")
    for i, d in enumerate(o2):
        a(f"v_pk_add_f32 {v(T[i],2)}, {v(T[i],2)}, 1.0 op_sel_hi:[1,0]")
    for i, d in enumerate(o2):
        a(f"v_rcp_f32 v{T[i]}, v{T[i]}")
        a(f"v_rcp_f32 v{T[i]+1}, v{T[i]+1}")
    for i, d in enumerate(o2):
        a(f"v_pk_mul_f32 {v(d,2)}, {v(d,2)}, {v(T[i],2)}")
        a(f"v_cvt_pk_bf16_f32 v{T[i]}, v{d}, v{d+1}")
        a(f"v_lshlrev_b32 v{d}, 16, v{T[i]}")
        a(f"v_and_b32 v{d+1}, 0xffff0000, v{T[i]}")
    stamp(a)
    a("s_waitcnt vmcnt(0)")
    stamp(a)
    for i, d in enumerate(o2):
        sj = sv + 2 * i
        a(f"v_lshlrev_b32 v{sj}, 16, v{sj}")
        a(f"v_lshlrev_b32 v{sj+1}, 16, v{sj+1}")
        a(f"v_pk_mul_f32 {v(d,2)}, {v(d,2)}, {v(sj,2)}")
        a(f"v_cvt_pk_bf16_f32 v{T[i]}, v{d}, v{d+1}")
        a(f"v_lshlrev_b32 v{d}, 16, v{T[i]}")
        a(f"v_and_b32 v{d+1}, 0xffff0000, v{T[i]}")
        a(f"v_lshlrev_b32 v{T[i]}, 16, v{xr+i}")
        a(f"v_and_b32 v{T[i]+1}, 0xffff0000, v{xr+i}")
        a(f"v_pk_add_f32 {v(d,2)}, {v(d,2)}, {v(T[i],2)}")
        a(f"v_cvt_pk_bf16_f32 v{op+i}, v{d}, v{d+1}")
    a(f"buffer_store_dwordx4 {v(op,4)}, v{vxo}, s[{sOUT}:{sOUT+3}], 0 offen")
    a(f"buffer_store_dwordx4 {v(op+4,4)}, v{vxo}, s[{sOUT}:{sOUT+3}], 0 offen offset:64")
    a(f"buffer_store_dwordx2 {v(op+8,2)}, v{vxo2}, s[{sOUT}:{sOUT+3}], 0 offen offset:128")
    stamp_end(a, 1)
    return R.hi

def kd(name, vgpr, sgpr=48):
    if STAMPS: vgpr, sgpr = 256, 102
    vg = (vgpr + 7) // 8 * 8
    return f""".p2align 6
.amdhsa_kernel {name}
  .amdhsa_next_free_vgpr {vg}
  .amdhsa_next_free_sgpr {sgpr}
  .amdhsa_accum_offset {vg}
  .amdhsa_group_segment_fixed_size 0
  .amdhsa_kernarg_size 128
  .amdhsa_user_sgpr_count 2
  .amdhsa_user_sgpr_kernarg_segment_ptr 1
  .amdhsa_system_sgpr_workgroup_id_x 1
  .amdhsa_float_denorm_mode_32 3
  .amdhsa_float_denorm_mode_16_64 3
.end_amdhsa_kernel
"""

def main(out):
    ref = open(f"cdna_kernels/{NAME}.s.ref").read().split("\n")
    hdr = [l for l in ref if l.startswith(";") and "@launch" not in l and "Override launch" not in l and "grid=ceil" not in l]
    L1_LDS = 3 * G1_SLOT
    L2_LDS = max(CV_LDS, 61440)
    assert L2_LDS <= 81920 and L1_LDS <= 81920 and 4 * KG_WAVE <= L1_LDS and 32 * LN_S <= L1_LDS
    hdr.append(f"; @launch kernel=s4a_kernel grid=(480,1,1) block=(256,1,1) lds={L1_LDS}")
    hdr.append(f"; @launch kernel=s4b_kernel grid=(512,1,1) block=(256,1,1) lds={L2_LDS}")
    a = Asm()
    a.raw('.amdgcn_target "amdgcn-amd-amdhsa--gfx950"\n.text')
    a.raw(".globl s4a_kernel\n.p2align 8\n.type s4a_kernel,@function")
    a.label("s4a_kernel")
    a("s_cmp_ge_u32 s2, 256")
    a("s_cbranch_scc1 K1_aux")
    h1 = gemm1(a)
    a.label("K1_aux"); a.flush_hist()
    a("s_cmp_ge_u32 s2, 416")
    a("s_cbranch_scc1 K1_ln")
    h2 = kgen(a, 256)
    a.label("K1_ln"); a.flush_hist()
    a("s_cmp_ge_u32 s2, 480")
    a("s_cbranch_scc1 K1_exit")
    h3 = lnrole(a, 416)
    a.label("K1_exit")
    a("s_endpgm")
    a.raw(".globl s4b_kernel\n.p2align 8\n.type s4b_kernel,@function")
    a.label("s4b_kernel"); a.flush_hist()
    a("s_cmp_ge_u32 s2, 256")
    a("s_cbranch_scc1 K2_g2")
    h4 = conv(a)
    a.label("K2_g2"); a.flush_hist()
    a("s_cmp_ge_u32 s2, 512")
    a("s_cbranch_scc1 K2_exit")
    h5 = gemm2(a, 256)
    a.label("K2_exit")
    a("s_endpgm")
    print("vgprs", h1, h2, h3, h4, h5, "nops", a.nnop, "lds", L1_LDS, L2_LDS, file=sys.stderr)
    txt = "\n".join(hdr) + "\n" + a.text() + '.section .rodata,"a"\n' + kd("s4a_kernel", max(h1, h2, h3)) + kd("s4b_kernel", max(h4, h5))
    open(out, "w").write(txt)

if __name__ == "__main__":
    main(sys.argv[1] if len(sys.argv) > 1 else f"cdna_kernels/{NAME}.s")
```

```python
import sys, os, struct, math
sys.path.insert(0, os.path.dirname(os.path.abspath(__file__)))
from asmlib import *

NAME = "recurrent_scan__ssm_conv_s4__dense_activation_mish__prompt"
L, D, N, F = 2048, 640, 192, 1536

WS_XT  = 0x0000000
WS_KR  = 0x0400000
WS_ST  = 0x0800000
WS_W2A = 0x0C00000
WS_ACT = 0x1000000
SZ_T = D * L * 2
SZ_W2A = F * D * 2
SZ_ACT = L * F * 2

def f32(x): return "0x%08x" % struct.unpack("<I", struct.pack("<f", x))[0]
LOG2E = 1.4426950408889634
LN2 = 0.6931471805599453

def srd(a, sreg, karg_off=None, size=None):
    a(f"s_mov_b32 s{sreg+2}, {size}")
    a(f"s_mov_b32 s{sreg+3}, 0x20000")

def srd_from(a, sreg, base, off, size):
    a(f"s_add_u32 s{sreg}, s{base}, {off}")
    a(f"s_addc_u32 s{sreg+1}, s{base+1}, 0")
    a(f"s_mov_b32 s{sreg+2}, {size}")
    a(f"s_mov_b32 s{sreg+3}, 0x20000")

def bf16r(a, dst, src):
    a(f"v_cvt_pk_bf16_f32 v{dst}, v{src}, v{src}")
    a(f"v_and_b32 v{dst}, 0xffff0000, v{dst}")

STAMPS = bool(int(os.environ.get("STAMPS", "0")))
ROT1 = int(os.environ.get("ROT1", "0")); ROT2 = int(os.environ.get("ROT2", "0"))
PF1 = int(os.environ.get("PF1", "1")); PF2 = int(os.environ.get("PF2", "1"))
PFMOD = os.environ.get("PFMOD", "")
WS_FLAG = 0x3000000
WS_STAMP = 0x4000000
_stamp_n = [0]
def stamp_begin(a):
    _stamp_n[0] = 0
    if STAMPS:
        a("s_memrealtime s[60:61]")
        a("s_memtime s[64:65]")
        a("v_mov_b32 v255, v0")
        _stamp_n[0] = 1
def stamp(a):
    if STAMPS:
        n = _stamp_n[0]; assert n < 14
        a(f"s_memtime s[{64+2*n}:{65+2*n}]")
        _stamp_n[0] += 1
def stamp_end(a, kern):
    if STAMPS:
        stamp(a)
        a("s_memrealtime s[62:63]")
        a("s_load_dwordx2 s[96:97], s[0:1], 120")
        a("s_waitcnt lgkmcnt(0)")
        a("s_mov_b64 exec, -1")
        a(f"s_add_u32 s96, s96, {WS_STAMP + kern * 0x100000}")
        a("s_addc_u32 s97, s97, 0")
        a("s_mov_b32 s98, 0x100000")
        a("s_mov_b32 s99, 0x20000")
        a("v_lshrrev_b32 v255, 6, v255")
        a("v_lshlrev_b32 v255, 8, v255")
        a("s_lshl_b32 s59, s2, 10")
        a("v_add_u32 v255, s59, v255")
        a("v_mov_b32 v253, s60"); a("v_mov_b32 v254, s62")
        a("s_mov_b64 exec, 1")
        a("buffer_store_dword v253, v255, s[96:99], 0 offen")
        a("buffer_store_dword v254, v255, s[96:99], 0 offen offset:4")
        a(f"v_mov_b32 v253, {_stamp_n[0]}")
        a("buffer_store_dword v253, v255, s[96:99], 0 offen offset:8")
        for n in range(_stamp_n[0]):
            a(f"s_sub_u32 s59, s{64+2*n}, s64")
            a(f"v_mov_b32 v{253 + n % 2}, s59")
            a(f"buffer_store_dword v{253 + n % 2}, v255, s[96:99], 0 offen offset:{16+4*n}")
    a("s_endpgm")

G1_SLOT = 24576
def gemm1(a, wg0):
    R = Alloc(1)
    acc = [[R(4, 4) for ct in range(2)] for rt in range(6)]
    sx = [R(4, 4) for _ in range(2)]
    sxx = [R(4, 4) for _ in range(2)]
    cs = [R(4, 4) for _ in range(2)]
    NXS = 12
    X = [[R(4, 4) for ct in range(2)] for _ in range(NXS)]
    A = [[R(4, 4) for rt in range(6)] for _ in range(2)]
    ones = R(4, 4)
    vE = [R() for _ in range(3)]; vO = [R() for _ in range(3)]
    vW = [R() for _ in range(3)]
    vX = [R() for _ in range(2)]
    lane = R(); t0 = R(); t1 = R(); t2 = R(); t3 = R()
    b1r = [R(2, 2) for _ in range(2)]
    sX, sW1, sB1, sACT = 8, 12, 16, 20
    sWave, sRB, sCB, sT, sT2, sWoff, sM0 = 24, 25, 26, 27, 28, 29, 30
    sP = [32, 33, 34]
    sRot, sXk, sCB192 = 44, 45, 46
    stamp_begin(a)
    a("s_load_dwordx2 s[8:9], s[0:1], 0")
    a("s_load_dwordx2 s[12:13], s[0:1], 80")
    a("s_load_dwordx2 s[16:17], s[0:1], 88")
    a("s_load_dwordx2 s[4:5], s[0:1], 120")
    a(f"v_lshrrev_b32 v{t0}, 6, v0")
    a(f"v_and_b32 v{lane}, 63, v0")
    a(f"v_readfirstlane_b32 s{sWave}, v{t0}")
    a(f"s_sub_u32 s3, s2, {wg0}")
    a(f"s_and_b32 s{sT}, s3, 7")
    a(f"s_lshr_b32 s{sT2}, s3, 3")
    a(f"s_lshr_b32 s{sRB}, s{sT}, 1")
    a(f"s_lshl_b32 s{sRB}, s{sRB}, 2")
    a(f"s_and_b32 s{sCB}, s{sT2}, 3")
    a(f"s_add_u32 s{sRB}, s{sRB}, s{sCB}")
    a(f"s_and_b32 s{sCB}, s{sT}, 1")
    a(f"s_lshl_b32 s{sCB}, s{sCB}, 3")
    a(f"s_lshr_b32 s{sT2}, s{sT2}, 2")
    a(f"s_add_u32 s{sCB}, s{sCB}, s{sT2}")
    srd(a, sX, size=L * D * 2); srd(a, sW1, size=D * F * 2); srd(a, sB1, size=F * 2)
    if PF1:
        a(f"s_lshr_b32 s{sRot}, s3, 3")
        a(f"s_lshl_b32 s{sRot}, s{sRot}, 2")
        a(f"s_add_u32 s{sRot}, s{sRot}, s{sWave}")
        a(f"v_mul_u32_u24 v{t1}, 0xaaab, v{lane}")
        a(f"v_lshrrev_b32 v{t1}, 19, v{t1}")
        a(f"v_mul_u32_u24 v{t2}, 12, v{t1}")
        a(f"v_sub_u32 v{t2}, v{lane}, v{t2}")
        a(f"v_mul_u32_u24 v{t1}, {128*3072}, v{t1}")
        a(f"v_lshl_add_u32 v{t1}, v{t2}, 7, v{t1}")
        a(f"s_mul_i32 s{sXk}, s{sRot}, 3072")
        a(f"s_and_b32 s{sT}, s3, 1")
        a(f"s_mul_i32 s{sT}, s{sT}, 1536")
        a(f"s_add_u32 s{sXk}, s{sXk}, s{sT}")
        a(f"v_lshrrev_b32 v{t2}, 3, v{lane}")
        a(f"v_min_u32 v{t2}, 4, v{t2}")
        a(f"v_lshlrev_b32 v{t2}, 8, v{t2}")
        a(f"v_and_b32 v{t3}, 1, v{lane}")
        a(f"v_lshl_add_u32 v{t2}, v{t3}, 7, v{t2}")
        a(f"v_bfe_u32 v{t3}, v{lane}, 1, 2")
        a(f"v_mul_u32_u24 v{t3}, 1280, v{t3}")
        a(f"v_add_u32 v{t2}, v{t2}, v{t3}")
        a(f"s_bfe_u32 s{sT}, s3, 0x20001")
        a(f"s_lshl_b32 s{sT}, s{sT}, 7")
        a(f"s_add_u32 s{sT}, s{sT}, s{sRot}")
        a(f"s_mul_i32 s{sT}, s{sT}, {4*1280}")
        a("s_waitcnt lgkmcnt(0)")
        a(f"buffer_load_dword v{ones}, v{t2}, s[{sX}:{sX+3}], s{sT} offen {PFMOD}")
        a(f"buffer_load_dword v{ones+1}, v{t1}, s[{sW1}:{sW1+3}], s{sXk} offen {PFMOD}")
    for i in range(3):
        a(f"v_add_u32 v{t0}, {64*i}, v{lane}")
        a(f"v_mul_u32_u24 v{t1}, 0xaaab, v{t0}")
        a(f"v_lshrrev_b32 v{t1}, 19, v{t1}")
        a(f"v_mul_u32_u24 v{t2}, 12, v{t1}")
        a(f"v_sub_u32 v{t2}, v{t0}, v{t2}")
        a(f"v_lshrrev_b32 v{t3}, 2, v{t1}")
        a(f"v_and_b32 v{t3}, 2, v{t3}")
        a(f"v_xor_b32 v{t2}, v{t2}, v{t3}")
        a(f"v_lshlrev_b32 v{t2}, 4, v{t2}")
        a(f"v_mul_u32_u24 v{t1}, 3072, v{t1}")
        a(f"v_add_u32 v{vW[i]}, v{t1}, v{t2}")
    a(f"s_and_b32 s{sRot}, s{sRB}, 3")
    a(f"s_mul_i32 s{sRot}, s{sRot}, 5")
    a(f"s_and_b32 s{sT}, s{sCB}, 7")
    a(f"s_mul_i32 s{sT}, s{sT}, 5")
    a(f"s_lshr_b32 s{sT}, s{sT}, 1")
    a(f"s_add_u32 s{sRot}, s{sRot}, s{sT}")
    a(f"s_lshr_b32 s{sT}, s{sRB}, 2")
    a(f"s_add_u32 s{sRot}, s{sRot}, s{sT}")
    a(f"s_cmp_ge_u32 s{sRot}, 20")
    a(f"s_cselect_b32 s{sT}, 20, 0")
    a(f"s_sub_u32 s{sRot}, s{sRot}, s{sT}")
    if not ROT1: a(f"s_mov_b32 s{sRot}, 0")
    a(f"s_lshl_b32 s{sXk}, s{sRot}, 6")
    a(f"s_add_u32 s{sWoff}, s{sWave}, s{sRot}")
    a(f"s_cmp_ge_u32 s{sWoff}, 20")
    a(f"s_cselect_b32 s{sT}, 20, 0")
    a(f"s_sub_u32 s{sWoff}, s{sWoff}, s{sT}")
    a(f"s_mul_i32 s{sWoff}, s{sWoff}, {32*3072}")
    a(f"s_mul_i32 s{sCB192}, s{sCB}, 192")
    for i in range(3): a(f"v_add_u32 v{vW[i]}, s{sCB192}, v{vW[i]}")
    a(f"s_mul_i32 s{sM0}, s{sWave}, 6144")
    a(f"s_lshl_b32 s{sT}, s{sRB}, 7")
    a(f"s_lshl_b32 s{sT2}, s{sWave}, 5")
    a(f"s_add_u32 s{sT}, s{sT}, s{sT2}")
    a(f"v_and_b32 v{t0}, 15, v{lane}")
    a(f"v_add_u32 v{t0}, s{sT}, v{t0}")
    a(f"v_mul_u32_u24 v{t0}, 1280, v{t0}")
    a(f"v_lshrrev_b32 v{t1}, 4, v{lane}")
    a(f"v_lshl_add_u32 v{vX[0]}, v{t1}, 4, v{t0}")
    a(f"v_add_u32 v{vX[1]}, {16*1280}, v{vX[0]}")
    a("s_waitcnt lgkmcnt(0)")
    srd_from(a, sACT, 4, WS_ACT, SZ_ACT)

    tokW = {}; tokX = {}
    def issue_w(c):
        for i in range(6):
            a(f"s_add_u32 m0, s{sM0}, {(c % 3) * G1_SLOT + i * 1024}")
            if i == 3:
                a(f"s_add_u32 s{sT}, s{sWoff}, {16 * 3072}")
            a(f"buffer_load_dwordx4 v{vW[i % 3]}, s[{sW1}:{sW1+3}], s{sWoff if i < 3 else sT} offen lds")
        tokW[c] = a.vtok()
        if c < 4:
            a(f"s_add_u32 s{sWoff}, s{sWoff}, {128 * 3072}")
            a(f"s_cmp_ge_u32 s{sWoff}, {640 * 3072}")
            a(f"s_cselect_b32 s{sT}, {640 * 3072}, 0")
            a(f"s_sub_u32 s{sWoff}, s{sWoff}, s{sT}")
    def issue_x(ks):
        for ct in range(2):
            a(f"buffer_load_dwordx4 {v(X[ks % NXS][ct], 4)}, v{vX[ct]}, s[{sX}:{sX+3}], s{sXk} offen")
        tokX[ks] = a.vtok()
        if ks < 19:
            a(f"s_add_u32 s{sXk}, s{sXk}, 64")
            a(f"s_cmp_ge_u32 s{sXk}, 1280")
            a(f"s_cselect_b32 s{sXk}, 0, s{sXk}")
    for c in range(3):
        issue_w(c)
        for ks in range(4 * c, 4 * c + 4): issue_x(ks)

    a(f"v_lshrrev_b32 v{t0}, 4, v{lane}")
    a(f"v_bfe_u32 v{t1}, v{lane}, 2, 2")
    a(f"v_lshl_add_u32 v{t1}, v{t0}, 3, v{t1}")
    a(f"v_mul_u32_u24 v{t1}, 192, v{t1}")
    a(f"v_and_b32 v{t2}, 3, v{lane}")
    a(f"v_lshl_add_u32 v{t1}, v{t2}, 3, v{t1}")
    a(f"v_and_b32 v{t0}, 1, v{t0}")
    a(f"v_lshlrev_b32 v{t0}, 5, v{t0}")
    a(f"v_add_u32 v{t2}, v{t1}, v{t0}")
    a(f"v_sub_u32 v{t3}, v{t1}, v{t0}")
    a(f"v_add_u32 v{t3}, 32, v{t3}")
    for P in range(3):
        a(f"s_add_u32 s{sP[P]}, s{sWave}, {P}")
        a(f"s_cmp_ge_u32 s{sP[P]}, 3")
        a(f"s_cselect_b32 s{sT}, 3, 0")
        a(f"s_sub_u32 s{sP[P]}, s{sP[P]}, s{sT}")
        a(f"s_lshl_b32 s{sT}, s{sP[P]}, 6")
        a(f"v_add_u32 v{vE[P]}, s{sT}, v{t2}")
        a(f"v_add_u32 v{vO[P]}, s{sT}, v{t3}")

    tokA = {}
    def read_a(ks):
        off = (ks % 4) * 6144
        for rt in range(6):
            ad = (vE if rt % 2 == 0 else vO)[rt // 2]
            for e in range(2):
                a(f"ds_read_b64_tr_b16 {v(A[ks % 2][rt] + 2*e, 2)}, v{ad} offset:{off + 768*e}")
            tokA[(ks, rt)] = a.ltok()
    def bump(c):
        d = ((c % 3) - ((c - 1) % 3)) * G1_SLOT
        for r_ in vE + vO:
            if d > 0: a(f"v_add_u32 v{r_}, {d}, v{r_}")
            else: a(f"v_subrev_u32 v{r_}, {-d}, v{r_}")
    def mf(d, A_, B_, first):
        c = "0" if first else v(d, 4)
        a(f"v_mfma_f32_16x16x32_bf16 {v(d,4)}, {v(A_,4)}, {v(B_,4)}, {c}")

    stamp(a)
    a.wait(vm=tokW[0])
    for i in range(4): a(f"v_mov_b32 v{ones+i}, 0x3f803f80")
    a("s_barrier")
    stamp(a)
    read_a(0)
    for ks in range(20):
        c = ks // 4
        first = ks == 0
        last_in_chunk = ks % 4 == 3
        if last_in_chunk and ks < 19:
            a.wait(vm=max(tokW[c + 1], tokX[ks]), lg=a.ltok())
            a("s_barrier")
            stamp(a)
            bump(c + 1)
            read_a(ks + 1)
            if c + 3 < 5: issue_w(c + 3)
        else:
            if ks < 19: read_a(ks + 1)
            a.wait(vm=tokX[ks])
        Xs = X[ks % NXS]; As = A[ks % 2]
        for ct in range(2):
            mf(sx[ct], ones, Xs[ct], first)
            mf(sxx[ct], Xs[ct], Xs[ct], first)
        for rt in range(6):
            a.wait(lg=tokA[(ks, rt)])
            for ct in range(2): mf(acc[rt][ct], As[rt], Xs[ct], first)
            if rt < 2: mf(cs[rt], As[rt], ones, first)
        if ks + NXS < 20: issue_x(ks + NXS)

    stamp(a)
    E = Alloc(X[0][0], limit=A[1][5] + 4)
    csv = [E(4, 4) for _ in range(6)]
    b1v = [E(4, 4) for _ in range(6)]
    b1p = [E(2, 2) for _ in range(6)]
    rr = [E(2, 2) for _ in range(2)]
    tmp = [E(2, 2) for _ in range(12)]
    outp = [E(4, 4) for _ in range(2)]
    vq = E(); vcs = E(); vst = E(); vbp = E()
    a(f"v_lshrrev_b32 v{vq}, 4, v{lane}")
    a(f"v_lshlrev_b32 v{t0}, 3, v{vq}")
    a(f"s_mul_i32 s{sT2}, s{sCB}, 192")
    for P in range(3):
        a(f"s_lshl_b32 s{sT}, s{sP[P]}, 6")
        a(f"s_add_u32 s{sT}, s{sT}, s{sT2}")
        for o in range(2):
            a(f"buffer_load_dwordx2 {v(b1p[2*P+o],2)}, v{t0}, s[{sB1}:{sB1+3}], s{sT} offen offset:{32*o}")
    tokb = a.vtok()
    CSOFF = 2 * G1_SLOT
    a(f"v_lshlrev_b32 v{vcs}, 4, v{vq}")
    a(f"s_lshl_b32 s{sT}, s{sP[0]}, 7")
    a(f"v_add_u32 v{t1}, s{sT}, v{vcs}")
    for o in range(2):
        a(f"ds_write_b128 v{t1}, {v(cs[o],4)} offset:{CSOFF + 64*o}")
    a(f"s_mov_b32 s36, 0x22222222"); a(f"s_mov_b32 s37, 0x22222222")
    a(f"s_mov_b32 s38, 0x44444444"); a(f"s_mov_b32 s39, 0x44444444")
    a(f"s_mov_b32 s40, 0x88888888"); a(f"s_mov_b32 s41, 0x88888888")
    a(f"v_and_b32 v{t2}, 15, v{lane}")
    a(f"v_lshrrev_b32 v{t3}, 2, v{t2}")
    a(f"v_lshl_add_u32 v{vbp}, v{t3}, 4, v{t2}")
    a(f"v_lshlrev_b32 v{vbp}, 2, v{vbp}")
    for ct in range(2):
        d = tmp[ct]
        a(f"v_cndmask_b32 v{d}, v{sxx[ct]}, v{sxx[ct]+1}, s[36:37]")
        a(f"v_cndmask_b32 v{d}, v{d}, v{sxx[ct]+2}, s[38:39]")
        a(f"v_cndmask_b32 v{d}, v{d}, v{sxx[ct]+3}, s[40:41]")
        a(f"ds_bpermute_b32 v{d+1}, v{vbp}, v{d}")
    a("s_waitcnt lgkmcnt(0)")
    a("s_barrier")
    for P in range(3):
        a(f"s_lshl_b32 s{sT}, s{sP[P]}, 7")
        a(f"v_add_u32 v{t1}, s{sT}, v{vcs}")
        for o in range(2):
            a(f"ds_read_b128 {v(csv[2*P+o],4)}, v{t1} offset:{CSOFF + 64*o}")
    for ct in range(2):
        d = tmp[ct]; m = tmp[2 + ct]
        a(f"v_mul_f32 v{m}, {f32(1.0/D)}, v{sx[ct]}")
        a(f"v_mul_f32 v{d}, v{m}, v{m}")
        a(f"v_mul_f32 v{d+1}, {f32(1.0/D)}, v{d+1}")
        a(f"v_sub_f32 v{d}, v{d+1}, v{d}")
        a(f"v_max_f32 v{d}, 0, v{d}")
        bf16r(a, d, d)
        a(f"v_add_f32 v{d}, {f32(1e-5)}, v{d}")
        bf16r(a, d, d)
        a(f"v_sqrt_f32 v{d}, v{d}")
        bf16r(a, d, d)
        a(f"v_rcp_f32 v{rr[ct]}, v{d}")
        bf16r(a, m, m)
        a(f"v_mul_f32 v{rr[ct]+1}, v{m}, v{rr[ct]}")
        a(f"v_sub_f32 v{rr[ct]+1}, 0, v{rr[ct]+1}")
    a.wait(vm=tokb)
    for rt in range(6):
        a(f"v_lshlrev_b32 v{b1v[rt]}, 16, v{b1p[rt]}")
        a(f"v_and_b32 v{b1v[rt]+1}, 0xffff0000, v{b1p[rt]}")
        a(f"v_lshlrev_b32 v{b1v[rt]+2}, 16, v{b1p[rt]+1}")
        a(f"v_and_b32 v{b1v[rt]+3}, 0xffff0000, v{b1p[rt]+1}")
    a(f"v_lshlrev_b32 v{vst}, 4, v{lane}")
    a(f"s_lshl_b32 s{sT}, s{sRB}, 3")
    a(f"s_lshl_b32 s{sT2}, s{sWave}, 1")
    a(f"s_add_u32 s{sT}, s{sT}, s{sT2}")
    a(f"s_mul_i32 s{sT}, s{sT}, 48")
    a(f"s_mul_i32 s{sT2}, s{sCB}, 3")
    a(f"s_add_u32 s{sT}, s{sT}, s{sT2}")
    for P in range(3):
        a(f"s_add_u32 s{sP[P]}, s{sP[P]}, s{sT}")
        a(f"s_lshl_b32 s{sP[P]}, s{sP[P]}, 10")
    a(f"s_mov_b32 s42, {f32(LOG2E)}"); a(f"s_mov_b32 s43, {f32(LOG2E)}")
    a("s_waitcnt lgkmcnt(0)")
    stamp(a)
    k = 0
    for P in range(3):
        for ct in range(2):
            op = outp[k % 2]; k += 1
            hs = []
            for o in range(2):
                rt = 2 * P + o
                for hf in range(2):
                    h = acc[rt][ct] + 2 * hf
                    tt = tmp[len(hs)]
                    a(f"v_pk_fma_f32 {v(tt,2)}, {v(csv[rt]+2*hf,2)}, {v(rr[ct],2)}, {v(b1v[rt]+2*hf,2)} op_sel:[0,1,0] op_sel_hi:[1,1,1]")
                    a(f"v_pk_fma_f32 {v(h,2)}, {v(h,2)}, {v(rr[ct],2)}, {v(tt,2)} op_sel:[0,0,0] op_sel_hi:[1,0,1]")
                    hs.append(h)
            for i, h in enumerate(hs):
                a(f"v_pk_mul_f32 {v(tmp[i],2)}, {v(h,2)}, s[42:43]")
            for i, h in enumerate(hs):
                a(f"v_min_f32 v{tmp[i]}, {f32(30.0)}, v{tmp[i]}")
                a(f"v_min_f32 v{tmp[i]+1}, {f32(30.0)}, v{tmp[i]+1}")
            for i, h in enumerate(hs):
                a(f"v_exp_f32 v{tmp[i]}, v{tmp[i]}")
                a(f"v_exp_f32 v{tmp[i]+1}, v{tmp[i]+1}")
            for i, h in enumerate(hs):
                a(f"v_pk_add_f32 {v(tmp[4+i],2)}, {v(tmp[i],2)}, 2.0 op_sel_hi:[1,0]")
            for i, h in enumerate(hs):
                a(f"v_pk_mul_f32 {v(tmp[i],2)}, {v(tmp[i],2)}, {v(tmp[4+i],2)}")
            for i, h in enumerate(hs):
                a(f"v_pk_add_f32 {v(tmp[4+i],2)}, {v(tmp[i],2)}, 2.0 op_sel_hi:[1,0]")
            for i, h in enumerate(hs):
                a(f"v_rcp_f32 v{tmp[4+i]}, v{tmp[4+i]}")
                a(f"v_rcp_f32 v{tmp[4+i]+1}, v{tmp[4+i]+1}")
            for i, h in enumerate(hs):
                a(f"v_pk_mul_f32 {v(h,2)}, {v(h,2)}, {v(tmp[i],2)}")
            for i, h in enumerate(hs):
                a(f"v_pk_mul_f32 {v(h,2)}, {v(h,2)}, {v(tmp[4+i],2)}")
            for i, h in enumerate(hs):
                a(f"v_cvt_pk_bf16_f32 v{op+i}, v{h}, v{h+1}")
            if ct == 0:
                a(f"buffer_store_dwordx4 {v(op,4)}, v{vst}, s[{sACT}:{sACT+3}], s{sP[P]} offen")
            else:
                a(f"s_add_u32 s{sT}, s{sP[P]}, {48*1024}")
                a(f"buffer_store_dwordx4 {v(op,4)}, v{vst}, s[{sACT}:{sACT+3}], s{sT} offen")
    stamp_end(a, 0)
    return R.hi

KG_S = 272
KG_WAVE = 64 * KG_S
COARSE = list(range(8)) + [256, 258, 260, 262, 512, 516, 768, 772, 1024, 1280, 1536, 1792, 2048]
def kgen(a, wg0):
    R = Alloc(1)
    lane = R(); t0 = R(); t1 = R(); t2 = R(); t3 = R()
    P = [[R() for _ in range(6)] for _ in range(3)]
    vdt = R(); vwr = R(); vrdA = R(); voff = R()
    accK = R(16, 4)
    FA = [R(4, 4) for _ in range(8)]; FB = [R(4, 4) for _ in range(8)]
    pr = lambda: R(2, 2)
    l1, l8, l256, W, Fc, Fn, G, Gn, T, T2, G2, G4, G6, V, a2b = [pr() for _ in range(15)]
    pk = [R() for _ in range(4)]
    sWave, sD, sT, sCnt = 24, 25, 26, 27
    SP = [8, 12, 16, 20, 28, 32]
    sLD, sKR = 36, 40
    stamp_begin(a)
    for i, sr in enumerate(SP):
        a(f"s_load_dwordx2 s[{sr}:{sr+1}], s[0:1], {8 + 8*i}")
    a(f"s_load_dwordx2 s[{sLD}:{sLD+1}], s[0:1], 56")
    a("s_load_dwordx2 s[4:5], s[0:1], 120")
    a(f"v_lshrrev_b32 v{t0}, 6, v0")
    a(f"v_and_b32 v{lane}, 63, v0")
    a(f"v_readfirstlane_b32 s{sWave}, v{t0}")
    a(f"s_sub_u32 s{sD}, s2, {wg0}")
    a(f"s_lshl_b32 s{sD}, s{sD}, 2")
    a(f"s_add_u32 s{sD}, s{sD}, s{sWave}")
    for sr in SP: srd(a, sr, size=D * N * 2)
    srd(a, sLD, size=D * 2)
    a(f"s_mul_i32 s{sT}, s{sD}, {N*2}")
    a(f"v_lshlrev_b32 v{voff}, 1, v{lane}")
    a(f"s_lshl_b32 s{sCnt}, s{sD}, 1")
    a(f"v_mov_b32 v{t1}, s{sCnt}")
    a("s_waitcnt lgkmcnt(0)")
    a(f"buffer_load_ushort v{vdt}, v{t1}, s[{sLD}:{sLD+3}], 0 offen")
    for p in range(3):
        for i, sr in enumerate(SP):
            a(f"buffer_load_ushort v{P[p][i]}, v{voff}, s[{sr}:{sr+3}], s{sT} offen offset:{128*p}")
    a(f"s_lshl_b32 s{sT}, s{sD}, 12")
    a(f"s_add_u32 s{sT}, s{sT}, {WS_KR}")
    srd_from(a, sKR, 4, f"s{sT}", 4096)
    a(f"s_mul_i32 s{sT}, s{sWave}, {KG_WAVE}")
    a(f"v_lshlrev_b32 v{vwr}, 2, v{lane}")
    a(f"v_add_u32 v{vwr}, s{sT}, v{vwr}")
    a(f"v_and_b32 v{t0}, 31, v{lane}")
    a(f"v_mul_u32_u24 v{t0}, {KG_S}, v{t0}")
    a(f"v_lshrrev_b32 v{t1}, 5, v{lane}")
    a(f"v_lshl_add_u32 v{t0}, v{t1}, 4, v{t0}")
    a(f"v_add_u32 v{vrdA}, s{sT}, v{t0}")
    for i in range(16): a(f"v_mov_b32 v{accK+i}, 0")
    a("s_waitcnt vmcnt(0)")
    stamp(a)
    a(f"v_lshlrev_b32 v{vdt}, 16, v{vdt}")
    a(f"v_mul_f32 v{t0}, {f32(LOG2E)}, v{vdt}")
    a(f"s_mov_b32 s{sT}, {f32(LOG2E)}")
    a(f"v_fma_f32 v{t1}, v{vdt}, s{sT}, -v{t0}")
    lo = LOG2E - struct.unpack("<f", struct.pack("<f", LOG2E))[0]
    a(f"v_fmac_f32 v{t1}, {f32(lo)}, v{vdt}")
    a(f"v_exp_f32 v{t0}, v{t0}")
    a(f"v_mul_f32 v{t1}, {f32(LN2)}, v{t1}")
    a(f"v_fma_f32 v{t0}, v{t0}, v{t1}, v{t0}")
    bf16r(a, vdt, t0)
    a(f"s_mov_b32 s{sCnt}, 0")

    def cmul(dst, e, m):
        a(f"v_pk_mul_f32 {v(T,2)}, {v(e,2)}, {v(m,2)} op_sel:[0,0] op_sel_hi:[0,1]")
        a(f"v_pk_fma_f32 {v(dst,2)}, {v(e,2)}, {v(m,2)}, {v(T,2)} op_sel:[1,1,0] op_sel_hi:[1,0,1] neg_lo:[0,1,0]")
    npk = [0]
    def put(src, row, conj):
        r_ = pk[npk[0] % 4]; npk[0] += 1
        a(f"v_cvt_pk_bf16_f32 v{r_}, v{src}, {'-' if conj else ''}v{src+1}")
        a(f"ds_write_b32 v{vwr}, v{r_} offset:{row*KG_S}")
    def cexp(dst, scale):
        if scale == 1:
            a(f"v_exp_f32 v{t0}, v{a2b}")
            a(f"v_fract_f32 v{t1}, v{a2b+1}")
        else:
            a(f"v_mul_f32 v{t0}, {f32(float(scale))}, v{a2b}")
            a(f"v_mul_f32 v{t1}, {f32(float(scale))}, v{a2b+1}")
            a(f"v_exp_f32 v{t0}, v{t0}")
            a(f"v_fract_f32 v{t1}, v{t1}")
        a(f"v_cos_f32 v{dst}, v{t1}")
        a(f"v_sin_f32 v{dst+1}, v{t1}")
        a(f"v_mul_f32 v{dst}, v{dst}, v{t0}")
        a(f"v_mul_f32 v{dst+1}, v{dst+1}, v{t0}")
    def mfmas():
        for ks in range(8):
            a(f"v_mfma_f32_32x32x16_bf16 {v(accK,16)}, {v(FA[ks],4)}, {v(FB[ks],4)}, {v(accK,16)}")

    a.label("KG_loop")
    a.flush_hist()
    p0 = P[0]
    for i in range(6): a(f"v_lshlrev_b32 v{p0[i]}, 16, v{p0[i]}")
    a(f"v_mul_f32 v{p0[0]}, v{vdt}, v{p0[0]}")
    a(f"v_mul_f32 v{p0[1]}, v{vdt}, v{p0[1]}")
    a(f"v_mul_f32 v{T2}, v{vdt}, v{p0[2]}")
    a(f"v_mul_f32 v{T2+1}, v{vdt}, v{p0[3]}")
    a(f"v_mul_f32 v{a2b}, {f32(LOG2E)}, v{p0[0]}")
    a(f"v_mul_f32 v{a2b+1}, {f32(1.0/(2*math.pi))}, v{p0[1]}")
    a(f"v_mov_b32 v{V}, v{p0[4]}")
    a(f"v_mov_b32 v{V+1}, v{p0[5]}")
    cmul(W, V, T2)
    cexp(l8, 8); cexp(l1, 1); cexp(l256, 256)
    a(f"s_cmp_eq_u32 s{sCnt}, 0")
    a("s_cbranch_scc1 KG_skip")
    a("s_waitcnt lgkmcnt(0)")
    mfmas()
    a.label("KG_skip")
    a(f"v_mov_b32 v{pk[3]}, 0x3f80")
    a(f"ds_write_b32 v{vwr}, v{pk[3]}")
    put(l8, 1, False)
    cur = l8; bufs = [Fc, Fn]
    for f in range(2, 32):
        nx = bufs[f % 2]
        cmul(nx, cur, l8); put(nx, f, False); cur = nx
    put(W, 32, True)
    cur = W
    dst_of = {1: G, 2: G2, 3: G, 4: G4, 5: G, 6: G6, 7: G}
    for c in range(1, 8):
        nx = dst_of[c]
        cmul(nx, cur, l1); put(nx, 32 + c, True); cur = nx
    row = {val: 32 + i for i, val in enumerate(COARSE)}
    cur = W
    for j in range(1, 9):
        nx = bufs[j % 2]
        cmul(nx, cur, l256); put(nx, row[256 * j], True); cur = nx
    cmul(G, G2, l256); put(G, row[258], True)
    cmul(G, G6, l256); put(G, row[262], True)
    cmul(G, G4, l256); put(G, row[260], True)
    cmul(Gn, G, l256); put(Gn, row[516], True)
    cmul(G, Gn, l256); put(G, row[772], True)
    for ks in range(8):
        a(f"ds_read_b128 {v(FA[ks],4)}, v{vrdA} offset:{32*ks}")
        a(f"ds_read_b128 {v(FB[ks],4)}, v{vrdA} offset:{32*KG_S + 32*ks}")
    for i in range(6):
        a(f"v_mov_b32 v{P[0][i]}, v{P[1][i]}")
        a(f"v_mov_b32 v{P[1][i]}, v{P[2][i]}")
    a(f"s_add_u32 s{sCnt}, s{sCnt}, 1")
    a(f"s_cmp_lt_u32 s{sCnt}, 3")
    a("s_cbranch_scc1 KG_loop")
    stamp(a)
    vB = P[0][0]; vS = P[0][1]; c_ = P[0][2]; u0 = P[0][3]; u1 = P[0][4]; vJ = P[0][5]
    a(f"v_and_b32 v{c_}, 31, v{lane}")
    a(f"v_lshlrev_b32 v{vB}, 5, v{c_}")
    a(f"v_mov_b32 v{vS}, 1")
    a(f"v_subrev_u32 v{u0}, 12, v{c_}")
    a(f"v_and_b32 v{u1}, 1, v{u0}")
    a(f"v_lshrrev_b32 v{u0}, 1, v{u0}")
    a(f"v_lshl_add_u32 v{u0}, v{u0}, 6, v{u1}")
    a(f"v_add_u32 v{u0}, 384, v{u0}")
    a(f"v_cmp_gt_u32 vcc, 16, v{c_}")
    a(f"v_cndmask_b32 v{vB}, v{vB}, v{u0}, vcc")
    a(f"v_cndmask_b32 v{vS}, v{vS}, 2, vcc")
    a(f"v_add_u32 v{u0}, 248, v{c_}")
    a(f"v_cmp_gt_u32 vcc, 12, v{c_}")
    a(f"v_cndmask_b32 v{vB}, v{vB}, v{u0}, vcc")
    a(f"v_cndmask_b32 v{vS}, v{vS}, 4, vcc")
    a(f"v_cmp_gt_u32 vcc, 8, v{c_}")
    a(f"v_cndmask_b32 v{vB}, v{vB}, v{c_}, vcc")
    a(f"v_cndmask_b32 v{vS}, v{vS}, 8, vcc")
    a(f"v_lshlrev_b32 v{vS}, 2, v{vS}")
    a(f"v_lshrrev_b32 v{u0}, 5, v{lane}")
    a(f"v_lshlrev_b32 v{u0}, 2, v{u0}")
    a(f"v_mul_u32_u24 v{u0}, v{u0}, v{vS}")
    a(f"v_lshl_add_u32 v{vB}, v{vB}, 2, v{u0}")
    a(f"s_mul_i32 s{sT}, s{sWave}, {KG_WAVE}")
    a(f"v_add_u32 v{vB}, s{sT}, v{vB}")
    a("s_waitcnt lgkmcnt(0)")
    mfmas()
    for g in range(4):
        for i in range(4):
            r_ = pk[i]
            a(f"v_mad_u32_u24 v{t0+ (i%2)}, v{vS}, {8*g+i}, v{vB}")
            a(f"v_cvt_pk_bf16_f32 v{r_}, v{accK+4*g+i}, v{accK+4*g+i}")
            a(f"ds_write_b32 v{t0+(i%2)}, v{r_}")
    O = [FA[i] for i in range(4)]
    Tm = FB[0]
    a(f"v_lshlrev_b32 v{u0}, 2, v{lane}")
    a(f"v_add_u32 v{u0}, s{sT}, v{u0}")
    a(f"v_lshl_add_u32 v{u1}, v{lane}, 2, v{u0}")
    for p in (2, 3):
        e0 = 384 + 64 * p
        a(f"ds_read_b32 v{O[p]}, v{u0} offset:{4*(e0+1)}")
        a(f"ds_read_b32 v{O[p]+2}, v{u0} offset:{4*e0}")
        a(f"ds_read_b32 v{O[p]+3}, v{u0} offset:{4*e0}")
    a(f"ds_read_b32 v{O[1]}, v{u1} offset:{4*(384+2)}")
    a(f"ds_read_b32 v{O[1]+1}, v{u1} offset:{4*(384+1)}")
    a(f"ds_read_b32 v{O[1]+3}, v{u1} offset:{4*384}")
    a(f"v_lshlrev_b32 v{t0}, 5, v{lane}")
    a(f"v_add_u32 v{t0}, s{sT}, v{t0}")
    a(f"v_lshlrev_b32 v{t1}, 4, v{lane}")
    a(f"v_add_u32 v{t1}, s{sT}, v{t1}")
    a("s_mov_b32 exec_hi, 0")
    a(f"ds_read_b128 {v(Tm,4)}, v{t0}")
    a(f"ds_read_b128 {v(Tm+4,4)}, v{t0} offset:16")
    a("s_mov_b32 exec_hi, -1")
    a("s_mov_b32 exec_lo, 0")
    for k_, (o0, o1) in enumerate([(0, 0), (1, 2), (2, 2), (3, 4)]):
        a(f"ds_read2_b32 {v(Tm+2*k_,2)}, v{t1} offset0:{128+o0} offset1:{128+o1}")
    a("s_mov_b32 exec_lo, -1")
    a(f"v_and_b32 v{t2}, 1, v{lane}")
    a(f"v_subrev_u32 v{t2}, 1, v{t2}")
    a(f"v_and_b32 v{t2}, 0xffff0000, v{t2}")
    a(f"v_mov_b32 v{t3}, 0xffff0000")
    a(f"v_sub_u32 v{vJ}, 63, v{lane}")
    a(f"v_lshlrev_b32 v{vJ}, 4, v{vJ}")
    a("s_waitcnt lgkmcnt(0)")
    for p in (2, 3):
        a(f"v_bfi_b32 v{O[p]+1}, v{t2}, v{O[p]+2}, v{O[p]}")
    a(f"v_bfi_b32 v{O[1]+2}, v{t3}, v{O[1]+3}, v{O[1]+1}")
    for m in range(4):
        a(f"v_bfi_b32 v{O[0]+m}, v{t3}, v{Tm+6-2*m}, v{Tm+7-2*m}")
    for p in range(4):
        a(f"buffer_store_dwordx4 {v(O[p],4)}, v{vJ}, s[{sKR}:{sKR+3}], 0 offen offset:{1024*(3-p)}")
    stamp_end(a, 0)
    return R.hi

LN_S = 1312
def lnrole(a, wg0):
    R = Alloc(1)
    lane = R(); t0 = R(); t1 = R(); t2 = R(); voff = R(); vlw = R(); vtr = R(); vst = R()
    Xr = [R(4, 4) for _ in range(10)]
    Wr = [R(4, 4) for _ in range(10)]
    U = [R(2, 2) for _ in range(40)]
    sm = R(2, 2); mb = R(2, 2); rs = R(2, 2); T = [R(2, 2) for _ in range(4)]
    ones = R()
    O = [R(4, 4) for _ in range(4)]
    sX, sW2, sXT, sWA = 8, 12, 16, 20
    sWave, sJ, sT, sT2 = 24, 25, 26, 27
    stamp_begin(a)
    a("s_load_dwordx2 s[8:9], s[0:1], 0")
    a("s_load_dwordx2 s[12:13], s[0:1], 96")
    a("s_load_dwordx2 s[4:5], s[0:1], 120")
    a(f"v_lshrrev_b32 v{t0}, 6, v0")
    a(f"v_and_b32 v{lane}, 63, v0")
    a(f"v_readfirstlane_b32 s{sWave}, v{t0}")
    a(f"s_sub_u32 s{sJ}, s2, {wg0}")
    srd(a, sX, size=L * D * 2); srd(a, sW2, size=F * D * 2)
    a(f"v_lshrrev_b32 v{t0}, 3, v0")
    a(f"v_and_b32 v{t1}, 7, v0")
    a(f"v_lshlrev_b32 v{t1}, 4, v{t1}")
    a(f"v_mul_u32_u24 v{voff}, 1280, v{t0}")
    a(f"v_add_u32 v{voff}, v{voff}, v{t1}")
    a(f"v_mul_u32_u24 v{vlw}, {LN_S}, v{t0}")
    a(f"v_add_u32 v{vlw}, v{vlw}, v{t1}")
    a(f"s_mul_i32 s{sT}, s{sJ}, {32*1280}")
    a("s_waitcnt lgkmcnt(0)")
    for i in range(10):
        a(f"buffer_load_dwordx4 {v(Xr[i],4)}, v{voff}, s[{sX}:{sX+3}], s{sT} offen offset:{128*i}")
    tokx = a.vtok()
    for i in range(10):
        a(f"buffer_load_dwordx4 {v(Wr[i],4)}, v{voff}, s[{sW2}:{sW2+3}], s{sT} offen offset:{128*i}")
    tokw = a.vtok()
    srd_from(a, sXT, 4, WS_XT, SZ_T)
    srd_from(a, sWA, 4, WS_W2A, SZ_W2A)
    srd_from(a, 28, 4, WS_FLAG, 4096)
    a(f"s_cmp_lg_u32 s{sJ}, 63")
    a(f"s_cselect_b32 s30, 0, s30")
    a(f"v_lshlrev_b32 v{t2}, 4, v0")
    for i in range(4): a(f"v_mov_b32 v{O[0]+i}, 0")
    a(f"buffer_store_dwordx4 {v(O[0],4)}, v{t2}, s[28:31], 0 offen")
    a(f"v_mov_b32 v{ones}, 0x3f803f80")
    a(f"v_mov_b32 v{sm}, 0")
    a.wait(vm=tokx)
    stamp(a)
    for i in range(40):
        a(f"v_dot2_f32_bf16 v{sm}, v{Xr[i//4] + i%4}, v{ones}, v{sm}")
    def red8(r_):
        a(f"v_add_f32_dpp v{r_}, v{r_}, v{r_} quad_perm:[1,0,3,2] row_mask:0xf bank_mask:0xf")
        a(f"v_add_f32_dpp v{r_}, v{r_}, v{r_} quad_perm:[2,3,0,1] row_mask:0xf bank_mask:0xf")
        a(f"v_add_f32_dpp v{r_}, v{r_}, v{r_} row_half_mirror row_mask:0xf bank_mask:0xf")
    for i in range(40):
        x = Xr[i//4] + i % 4
        a(f"v_lshlrev_b32 v{U[i]}, 16, v{x}")
        a(f"v_and_b32 v{U[i]+1}, 0xffff0000, v{x}")
    red8(sm)
    a(f"v_mul_f32 v{sm}, {f32(1.0/D)}, v{sm}")
    a(f"v_mov_b32 v{rs}, 0"); a(f"v_mov_b32 v{rs+1}, 0")
    for i in range(40):
        t = T[i % 4]
        a(f"v_pk_add_f32 {v(t,2)}, {v(U[i],2)}, {v(sm,2)} op_sel_hi:[1,0] neg_lo:[0,1] neg_hi:[0,1]")
        a(f"v_pk_fma_f32 {v(rs,2)}, {v(t,2)}, {v(t,2)}, {v(rs,2)}")
    a(f"v_add_f32 v{rs}, v{rs}, v{rs+1}")
    red8(rs)
    a(f"v_mul_f32 v{rs}, {f32(1.0/D)}, v{rs}")
    bf16r(a, rs, rs)
    a(f"v_add_f32 v{rs}, {f32(1e-5)}, v{rs}")
    bf16r(a, rs, rs)
    a(f"v_sqrt_f32 v{rs}, v{rs}")
    bf16r(a, rs, rs)
    a(f"v_rcp_f32 v{rs}, v{rs}")
    bf16r(a, mb, sm)
    for i in range(40):
        x = Xr[i//4] + i % 4; t = T[i % 4]
        a(f"v_pk_add_f32 {v(U[i],2)}, {v(U[i],2)}, {v(mb,2)} op_sel_hi:[1,0] neg_lo:[0,1] neg_hi:[0,1]")
        a(f"v_cvt_pk_bf16_f32 v{x}, v{U[i]}, v{U[i]+1}")
        a(f"v_lshlrev_b32 v{t}, 16, v{x}")
        a(f"v_and_b32 v{t+1}, 0xffff0000, v{x}")
        a(f"v_pk_mul_f32 {v(t,2)}, {v(t,2)}, {v(rs,2)} op_sel_hi:[1,0]")
        a(f"v_cvt_pk_bf16_f32 v{x}, v{t}, v{t+1}")
        if i % 4 == 3:
            a(f"ds_write_b128 v{vlw}, {v(Xr[i//4],4)} offset:{128*(i//4)}")
    a(f"v_lshrrev_b32 v{t0}, 4, v{lane}")
    a(f"v_bfe_u32 v{t1}, v{lane}, 2, 2")
    a(f"v_lshl_add_u32 v{t1}, v{t0}, 3, v{t1}")
    a(f"v_mul_u32_u24 v{t1}, {LN_S}, v{t1}")
    a(f"v_and_b32 v{t2}, 3, v{lane}")
    a(f"v_lshl_add_u32 v{t1}, v{t2}, 3, v{t1}")
    a(f"s_mul_i32 s{sT}, s{sWave}, 320")
    a(f"v_add_u32 v{vtr}, s{sT}, v{t1}")
    a(f"v_and_b32 v{t1}, 15, v{lane}")
    a(f"v_lshlrev_b32 v{t1}, 12, v{t1}")
    a(f"v_lshl_add_u32 v{vst}, v{t0}, 4, v{t1}")
    a(f"s_mul_i32 s{sT}, s{sWave}, {160*4096}")
    a(f"s_lshl_b32 s{sT2}, s{sJ}, 6")
    a(f"s_add_u32 s{sT}, s{sT}, s{sT2}")
    a("s_waitcnt lgkmcnt(0)")
    a("s_barrier")
    stamp(a)
    toks = {}
    def rd(i):
        o = O[i % 4]
        for e in range(2):
            a(f"ds_read_b64_tr_b16 {v(o+2*e,2)}, v{vtr} offset:{32*i + 4*e*LN_S}")
        toks[i] = a.ltok()
    for i in range(3): rd(i)
    for i in range(10):
        if i + 3 < 10: rd(i + 3)
        a.wait(lg=toks[i])
        a(f"buffer_store_dwordx4 {v(O[i%4],4)}, v{vst}, s[{sXT}:{sXT+3}], s{sT} offen")
        a(f"s_add_u32 s{sT}, s{sT}, {16*4096}")
    stamp(a)
    a(f"s_cmp_ge_u32 s{sJ}, 48")
    a("s_cbranch_scc1 LN_end")
    a("s_barrier")
    a.wait(vm=tokw)
    for i in range(10):
        a(f"ds_write_b128 v{vlw}, {v(Wr[i],4)} offset:{128*i}")
    vt8 = U[0]; vt4 = U[0] + 1
    a(f"v_lshrrev_b32 v{t1}, 2, v{lane}")
    a(f"v_mul_u32_u24 v{t1}, {LN_S}, v{t1}")
    a(f"s_mul_i32 s{sT}, s{sWave}, 320")
    a(f"v_add_u32 v{t1}, s{sT}, v{t1}")
    a(f"v_lshl_add_u32 v{vt8}, v{t2}, 4, v{t1}")
    a(f"v_lshl_add_u32 v{vt4}, v{t2}, 3, v{t1}")
    a(f"v_lshlrev_b32 v{vst}, 4, v{lane}")
    a(f"s_mul_i32 s{sT}, s{sWave}, {2*48*5*1024}")
    a(f"s_mul_i32 s{sT2}, s{sJ}, {5*1024}")
    a(f"s_add_u32 s{sT}, s{sT}, s{sT2}")
    a("s_waitcnt lgkmcnt(0)")
    a("s_barrier")
    def rd2(i):
        o = O[i % 4]; jd = i // 5; rt = i % 5
        for e in range(2):
            if rt < 4: a(f"ds_read_b64_tr_b16 {v(o+2*e,2)}, v{vt8} offset:{160*jd + 64*(rt>>1) + 8*(rt&1) + 16*e*LN_S}")
            else: a(f"ds_read_b64_tr_b16 {v(o+2*e,2)}, v{vt4} offset:{160*jd + 128 + 16*e*LN_S}")
        toks[i] = a.ltok()
    for i in range(3): rd2(i)
    for i in range(10):
        if i + 3 < 10: rd2(i + 3)
        a.wait(lg=toks[i])
        a(f"buffer_store_dwordx4 {v(O[i%4],4)}, v{vst}, s[{sWA}:{sWA+3}], s{sT} offen")
        a(f"s_add_u32 s{sT}, s{sT}, {1024 if i != 4 else 48*5*1024 - 4*1024}")
    a.label("LN_end")
    stamp_end(a, 0)
    return R.hi

CV_S = 4160
CV_K = [0, 4 * CV_S]
CV_U = [8 * CV_S + 512, 8 * CV_S + 512 + 4608, 8 * CV_S + 512 + 2 * 4608]
CV_RED = 8 * CV_S + 3 * 4608
CV_LDS = CV_RED + 32768
def conv(a):
    R = Alloc(1)
    lane = R(); t0 = R(); t1 = R(); t2 = R(); t3 = R()
    acc = [R(4, 4) for _ in range(8)]
    FA = [[R(4, 4) for _ in range(8)] for _ in range(2)]
    FB = [[R(4, 4) for _ in range(8)] for _ in range(2)]
    Kin = [R(8, 4) for _ in range(3)]
    Kt = [R(4, 4) for _ in range(3)]
    vA = R(); vBq = R(); vA0 = R(); vB0 = R(); vkw = R(); vrw = R(); vrr = R(); vur = R(); vso = R(); vz = R(4, 4)
    vdk = [R(), R()]
    sKR, sXT, sST, sDS, sKR2, sDBG = 8, 12, 16, 20, 28, 32
    sWave, sT, sT2, sCh, sPar, sCnt, sD2, sRound = 24, 25, 26, 27, 36, 37, 38, 39
    stamp_begin(a)
    a("s_load_dwordx2 s[4:5], s[0:1], 120")
    a(f"s_load_dwordx2 s[{sDS}:{sDS+1}], s[0:1], 64")
    a(f"v_lshrrev_b32 v{t0}, 6, v0")
    a(f"v_and_b32 v{lane}, 63, v0")
    a(f"v_readfirstlane_b32 s{sWave}, v{t0}")
    srd(a, sDS, size=D * 2)
    a(f"s_lshr_b32 s{sT}, s{sWave}, 1")
    a(f"s_and_b32 s{sPar}, s{sWave}, 1")
    a(f"s_lshl_b32 s{sCh}, s2, 1")
    a(f"s_add_u32 s{sCh}, s{sCh}, s{sT}")
    a(f"s_add_u32 s{sD2}, s2, 512")
    a("s_waitcnt lgkmcnt(0)")
    a(f"s_lshl_b32 s{sT2}, s{sCh}, 12")
    a(f"s_add_u32 s{sT2}, s{sT2}, {WS_KR}")
    srd_from(a, sKR, 4, f"s{sT2}", 4096)
    a(f"s_lshl_b32 s{sT2}, s{sD2}, 12")
    a(f"s_add_u32 s{sT2}, s{sT2}, {WS_KR}")
    srd_from(a, sKR2, 4, f"s{sT2}", 4096)
    a(f"s_cmp_lt_u32 s2, 128")
    a(f"s_cselect_b32 s{sKR2+2}, 4096, 0")
    srd_from(a, sXT, 4, WS_XT, SZ_T)
    srd_from(a, sST, 4, WS_ST, SZ_T)
    srd_from(a, sDBG, 4, WS_FLAG, 4096)
    a(f"v_lshlrev_b32 v{t1}, 4, v{lane}")
    a(f"v_mov_b32 v{vso}, v{t1}")
    a(f"s_lshl_b32 s{sT2}, s{sPar}, 11")
    for i in range(2):
        a(f"buffer_load_dwordx4 {v(Kin[i],4)}, v{t1}, s[{sKR}:{sKR+3}], s{sT2} offen offset:{1024*i}")
        a(f"buffer_load_dwordx2 {v(Kin[i]+4,2)}, v{t1}, s[{sKR}:{sKR+3}], s{sT2} offen offset:{1024*i+16}")
    tokK1 = a.vtok()
    a(f"s_mul_i32 s{sCnt}, s{sT}, 4608")
    a(f"s_add_u32 s{sCnt}, s{sCnt}, s{sT2}")
    a(f"s_add_u32 m0, s{sCnt}, {CV_U[0]}")
    a(f"s_lshl_b32 s{sCnt}, s{sCh}, 12")
    a(f"s_add_u32 s{sCnt}, s{sCnt}, s{sT2}")
    for i in range(2):
        a(f"buffer_load_dwordx4 v{t1}, s[{sXT}:{sXT+3}], s{sCnt} offen offset:{1024*i} lds")
    tokU1 = a.vtok()
    a(f"s_lshl_b32 s{sCnt}, s{sCh}, 1")
    a(f"v_mov_b32 v{t2}, s{sCnt}")
    a(f"buffer_load_ushort v{vdk[0]}, v{t2}, s[{sDS}:{sDS+3}], 0 offen")
    a(f"s_lshl_b32 s{sCnt}, s{sD2}, 1")
    a(f"v_mov_b32 v{t3}, s{sCnt}")
    a(f"buffer_load_ushort v{vdk[1]}, v{t3}, s[{sDS}:{sDS+3}], 0 offen")
    a(f"s_lshl_b32 s{sT2}, s{sWave}, 10")
    a(f"buffer_load_dwordx4 {v(Kin[2],4)}, v{t1}, s[{sKR2}:{sKR2+3}], s{sT2} offen")
    a(f"buffer_load_dwordx2 {v(Kin[2]+4,2)}, v{t1}, s[{sKR2}:{sKR2+3}], s{sT2} offen offset:16")
    a(f"s_add_u32 m0, s{sT2}, {CV_U[2]}")
    a(f"s_lshl_b32 s{sCnt}, s{sD2}, 12")
    a(f"s_add_u32 s{sCnt}, s{sCnt}, s{sT2}")
    a(f"buffer_load_dwordx4 v{t1}, s[{sXT}:{sXT+3}], s{sCnt} offen lds")
    tokR2 = a.vtok()
    for i in range(4): a(f"v_mov_b32 v{vz+i}, 0")
    a(f"s_mul_i32 s{sCnt}, s{sWave}, 4608")
    a(f"s_add_u32 s{sCnt}, s{sCnt}, {CV_U[0] - 512}")
    a(f"v_add_u32 v{t2}, s{sCnt}, v{t1}")
    a(f"v_lshrrev_b32 v{t3}, 2, v{lane}")
    a(f"v_mul_u32_u24 v{t3}, {CV_S}, v{t3}")
    a(f"v_and_b32 v{t0}, 3, v{lane}")
    a(f"v_lshl_add_u32 v{t3}, v{t0}, 4, v{t3}")
    a(f"v_add_u32 v{t3}, 4096, v{t3}")
    a(f"s_cmp_eq_u32 s{sWave}, 3")
    a(f"s_cselect_b64 vcc, -1, 0")
    a(f"v_cndmask_b32 v{t2}, v{t2}, v{t3}, vcc")
    a("s_mov_b32 exec_hi, 0")
    a(f"ds_write_b128 v{t2}, {v(vz,4)}")
    a("s_mov_b32 exec_hi, -1")
    a(f"v_and_b32 v{t0}, 15, v{lane}")
    a(f"v_sub_u32 v{t2}, 15, v{t0}")
    a(f"v_and_b32 v{t3}, 3, v{t2}")
    a(f"v_sub_u32 v{t2}, v{t2}, v{t3}")
    a(f"v_mul_u32_u24 v{t3}, {CV_S}, v{t3}")
    a(f"v_lshl_add_u32 v{t3}, v{t2}, 1, v{t3}")
    a(f"v_lshrrev_b32 v{t2}, 4, v{lane}")
    a(f"v_lshl_add_u32 v{vA0}, v{t2}, 4, v{t3}")
    a(f"v_lshlrev_b32 v{t3}, 4, v{t2}")
    a(f"v_lshl_add_u32 v{vB0}, v{t0}, 5, v{t3}")
    a(f"v_lshrrev_b32 v{t3}, 1, v{t2}")
    a(f"v_lshlrev_b32 v{t3}, 3, v{t3}")
    a(f"v_xor_b32 v{t3}, v{t3}, v{t0}")
    a(f"v_lshlrev_b32 v{t3}, 4, v{t3}")
    a(f"v_lshl_add_u32 v{t3}, v{t2}, 8, v{t3}")
    a(f"s_lshl_b32 s{sCnt}, s{sWave}, 13")
    a(f"s_add_u32 s{sCnt}, s{sCnt}, {CV_RED}")
    a(f"v_add_u32 v{vrw}, s{sCnt}, v{t3}")
    a(f"v_bfe_u32 v{t0}, v{lane}, 1, 4")
    a(f"v_and_b32 v{t2}, 1, v{lane}")
    a(f"v_lshlrev_b32 v{t3}, 3, v{t2}")
    a(f"v_xor_b32 v{t0}, v{t0}, v{t3}")
    a(f"v_lshlrev_b32 v{t0}, 4, v{t0}")
    a(f"v_lshl_add_u32 v{t0}, v{t2}, 9, v{t0}")
    a(f"v_lshrrev_b32 v{t2}, 5, v{lane}")
    a(f"v_lshl_add_u32 v{vrr}, v{t2}, 10, v{t0}")
    def build_copies(kin, vaddr, off):
        for k in range(4): a(f"v_alignbyte_b32 v{Kt[0]+k}, v{kin+k+1}, v{kin+k}, 2")
        for k in range(4): a(f"v_mov_b32 v{Kt[1]+k}, v{kin+k+1}")
        for k in range(4): a(f"v_alignbyte_b32 v{Kt[2]+k}, v{kin+k+2}, v{kin+k+1}, 2")
        a(f"ds_write_b128 v{vaddr}, {v(kin,4)} offset:{off}")
        for c in range(3): a(f"ds_write_b128 v{vaddr}, {v(Kt[c],4)} offset:{off + (c+1)*CV_S}")
    a(f"s_mul_i32 s{sCnt}, s{sT}, {4*CV_S}")
    a(f"s_lshl_b32 s{sT2}, s{sPar}, 11")
    a(f"s_add_u32 s{sCnt}, s{sCnt}, s{sT2}")
    a(f"v_add_u32 v{vkw}, s{sCnt}, v{t1}")
    a.wait(vm=tokK1)
    stamp(a)
    build_copies(Kin[0], vkw, 0)
    a("s_nop 1")
    build_copies(Kin[1], vkw, 1024)
    a(f"s_mul_i32 s{sCnt}, s{sT}, {4*CV_S}")
    a(f"s_lshl_b32 s{sT2}, s{sPar}, 8")
    a(f"s_sub_u32 s{sCnt}, s{sCnt}, s{sT2}")
    a(f"s_add_u32 s{sCnt}, s{sCnt}, {32*14}")
    a(f"v_add_u32 v{vA}, s{sCnt}, v{vA0}")
    a(f"s_mul_i32 s{sCnt}, s{sT}, 4608")
    a(f"s_sub_u32 s{sCnt}, s{sCnt}, s{sT2}")
    a(f"s_add_u32 s{sCnt}, s{sCnt}, {CV_U[0] - 512 + 32*15}")
    a(f"v_add_u32 v{vBq}, s{sCnt}, v{vB0}")
    a(f"s_mov_b32 s{sCnt}, 2")
    a(f"s_mov_b32 s{sRound}, 0")
    a.wait(vm=tokU1, lg=a.ltok())
    a("s_barrier")
    stamp(a)

    def reads(st):
        toks = []
        for j in range(8):
            a(f"ds_read_b128 {v(FB[st][j],4)}, v{vBq} offset:{512*j}")
            a(f"ds_read_b64 {v(FA[st][j],2)}, v{vA} offset:{512*(7-j)}")
            a(f"ds_read_b64 {v(FA[st][j]+2,2)}, v{vA} offset:{512*(7-j)+8}")
        a(f"v_subrev_u32 v{vA}, 64, v{vA}")
        a(f"v_subrev_u32 v{vBq}, 64, v{vBq}")
    def group(st, nxt):
        pairs = [(c, j) for c in range(8) for j in range(c + 1)]
        rd = []
        for j in range(8):
            rd.append(f"ds_read_b128 {v(FB[nxt][j],4)}, v{vBq} offset:{512*j}")
            rd.append(f"ds_read_b64 {v(FA[nxt][j],2)}, v{vA} offset:{512*(7-j)}")
            rd.append(f"ds_read_b64 {v(FA[nxt][j]+2,2)}, v{vA} offset:{512*(7-j)+8}")
        rd.append(f"v_subrev_u32 v{vA}, 64, v{vA}")
        rd.append(f"v_subrev_u32 v{vBq}, 64, v{vBq}")
        pairs.sort(key=lambda cj: (cj[1], cj[0]))
        for i, (c, j) in enumerate(pairs):
            a(f"v_mfma_f32_16x16x32_bf16 {v(acc[c],4)}, {v(FA[st][j],4)}, {v(FB[st][c-j],4)}, {v(acc[c],4)}")
            if i < len(rd): a(rd[i])

    a.label("CV_round")
    a.flush_hist()
    reads(0)
    for c in range(8):
        for i in range(4): a(f"v_mov_b32 v{acc[c]+i}, 0")
    a.label("CV_loop")
    a("s_waitcnt lgkmcnt(0)")
    group(0, 1)
    a("s_waitcnt lgkmcnt(0)")
    group(1, 0)
    a(f"s_sub_u32 s{sCnt}, s{sCnt}, 1")
    a(f"s_cmp_lg_u32 s{sCnt}, 0")
    a("s_cbranch_scc1 CV_loop")
    for c in range(8):
        a(f"ds_write_b128 v{vrw}, {v(acc[c],4)} offset:{1024*c}")
    a("s_waitcnt lgkmcnt(0)")
    a("s_barrier")
    Rd = FA[1]
    Uq = FB[1]
    def finish(npart, nblk, vdsk):
        for b in range(nblk):
            base = b * npart * 2
            for p in range(1, npart):
                for e in range(2):
                    for hf in range(2):
                        a(f"v_pk_add_f32 {v(Rd[base+e]+2*hf,2)}, {v(Rd[base+e]+2*hf,2)}, {v(Rd[base+2*p+e]+2*hf,2)}")
            o = FB[0][b]; T = FB[0][4]; T2 = FB[0][5]
            for m in range(4):
                y = Rd[base + m // 2] + 2 * (m % 2)
                u = Uq[b] + m
                a(f"v_cvt_pk_bf16_f32 v{o+m}, v{y}, v{y+1}")
                a(f"v_lshlrev_b32 v{T}, 16, v{u}")
                a(f"v_and_b32 v{T+1}, 0xffff0000, v{u}")
                a(f"v_pk_mul_f32 {v(T,2)}, {v(T,2)}, {v(vdsk,2)} op_sel_hi:[1,0]")
                a(f"v_cvt_pk_bf16_f32 v{T+2}, v{T}, v{T+1}")
                a(f"v_lshlrev_b32 v{T}, 16, v{T+2}")
                a(f"v_and_b32 v{T+1}, 0xffff0000, v{T+2}")
                a(f"v_lshlrev_b32 v{T2}, 16, v{o+m}")
                a(f"v_and_b32 v{T2+1}, 0xffff0000, v{o+m}")
                a(f"v_pk_add_f32 {v(T,2)}, {v(T,2)}, {v(T2,2)}")
                a(f"v_cvt_pk_bf16_f32 v{o+m}, v{T}, v{T+1}")
            a(f"buffer_store_dwordx4 {v(o,4)}, v{vso}, s[{sST}:{sST+3}], s{sT2} offen offset:{1024*b} sc1")
    dsk = FB[0][6]
    a(f"s_cmp_lg_u32 s{sRound}, 0")
    a("s_cbranch_scc1 CV_fin2")
    stamp(a)
    a(f"s_lshl_b32 s{sCnt}, s{sT}, 14")
    a(f"s_lshl_b32 s{sT2}, s{sPar}, 12")
    a(f"s_add_u32 s{sCnt}, s{sCnt}, s{sT2}")
    a(f"s_add_u32 s{sCnt}, s{sCnt}, {CV_RED}")
    a(f"v_add_u32 v{t0}, s{sCnt}, v{vrr}")
    for b in range(2):
        for p in range(2):
            for e in range(2):
                a(f"ds_read_b128 {v(Rd[(b*2+p)*2+e],4)}, v{t0} offset:{8192*p + 2048*b + 256*e}")
    a(f"s_mul_i32 s{sCnt}, s{sT}, 4608")
    a(f"s_lshl_b32 s{sT2}, s{sPar}, 11")
    a(f"s_add_u32 s{sCnt}, s{sCnt}, s{sT2}")
    a(f"v_add_u32 v{t2}, s{sCnt}, v{t1}")
    for b in range(2):
        a(f"ds_read_b128 {v(Uq[b],4)}, v{t2} offset:{CV_U[0] + 1024*b}")
    a(f"s_lshl_b32 s{sCnt}, s{sWave}, 10")
    a(f"v_add_u32 v{vkw}, s{sCnt}, v{t1}")
    a("s_waitcnt vmcnt(0)")
    build_copies(Kin[2], vkw, 0)
    a(f"v_lshlrev_b32 v{dsk}, 16, v{vdk[0]}")
    a(f"s_lshl_b32 s{sCnt}, s{sCh}, 12")
    a(f"s_add_u32 s{sT2}, s{sT2}, s{sCnt}")
    a("s_waitcnt lgkmcnt(0)")
    finish(2, 2, dsk)
    stamp(a)
    a(f"s_lshl_b32 s{sT2}, s{sWave}, 7")
    a(f"s_sub_u32 s{sCnt}, {32*14}, s{sT2}")
    a(f"v_add_u32 v{vA}, s{sCnt}, v{vA0}")
    a(f"s_sub_u32 s{sCnt}, {CV_U[2] - 512 + 32*15}, s{sT2}")
    a(f"v_add_u32 v{vBq}, s{sCnt}, v{vB0}")
    a("s_waitcnt vmcnt(0)")
    a("s_barrier")
    stamp(a)
    a(f"s_cmp_lg_u32 s{sWave}, 0")
    a("s_cbranch_scc1 CV_nosig1")
    a(f"s_mul_i32 s{sCnt}, s2, 1639")
    a(f"s_lshr_b32 s{sCnt}, s{sCnt}, 16")
    a(f"s_lshl_b32 s{sCnt}, s{sCnt}, 8")
    a(f"v_mov_b32 v{t0}, s{sCnt}")
    a(f"v_mov_b32 v{t2}, 2")
    a("s_mov_b64 exec, 1")
    a(f"buffer_atomic_add v{t2}, v{t0}, s[{sDBG}:{sDBG+3}], 0 offen")
    a("s_mov_b64 exec, -1")
    a.label("CV_nosig1")
    a(f"s_cmp_ge_u32 s2, 128")
    a("s_cbranch_scc1 CV_end")
    a(f"s_mov_b32 s{sCnt}, 1")
    a(f"s_mov_b32 s{sRound}, 1")
    a("s_branch CV_round")
    a.label("CV_fin2")
    a.flush_hist()
    stamp(a)
    a(f"s_lshl_b32 s{sCnt}, s{sWave}, 11")
    a(f"s_add_u32 s{sCnt}, s{sCnt}, {CV_RED}")
    a(f"v_add_u32 v{t0}, s{sCnt}, v{vrr}")
    for p in range(4):
        for e in range(2):
            a(f"ds_read_b128 {v(Rd[p*2+e],4)}, v{t0} offset:{8192*p + 256*e}")
    a(f"ds_read_b128 {v(Uq[0],4)}, v{vkw} offset:{CV_U[2]}")
    a(f"v_lshlrev_b32 v{dsk}, 16, v{vdk[1]}")
    a(f"s_lshl_b32 s{sT2}, s{sWave}, 10")
    a(f"s_lshl_b32 s{sCnt}, s{sD2}, 12")
    a(f"s_add_u32 s{sT2}, s{sT2}, s{sCnt}")
    a("s_waitcnt lgkmcnt(0)")
    finish(4, 1, dsk)
    a("s_waitcnt vmcnt(0)")
    a("s_barrier")
    a(f"s_cmp_lg_u32 s{sWave}, 0")
    a("s_cbranch_scc1 CV_end")
    a(f"s_cmp_ge_u32 s{sD2}, 560")
    a(f"s_cselect_b32 s{sCnt}, 7, 6")
    a(f"s_lshl_b32 s{sCnt}, s{sCnt}, 8")
    a(f"v_mov_b32 v{t0}, s{sCnt}")
    a(f"v_mov_b32 v{t2}, 1")
    a("s_mov_b64 exec, 1")
    a(f"buffer_atomic_add v{t2}, v{t0}, s[{sDBG}:{sDBG+3}], 0 offen")
    a.label("CV_end")
    stamp_end(a, 1)
    return R.hi

def gemm2(a, wg0):
    R = Alloc(1)
    lane = R(); t0 = R(); t1 = R(); t2 = R(); t3 = R()
    acc = [[R(4, 4) for ct in range(4)] for rt in range(5)]
    NST = 4
    FA = [[R(4, 4) for _ in range(5)] for _ in range(NST)]
    FB = [[R(4, 4) for _ in range(4)] for _ in range(NST)]
    vA = R(); vA2 = R(); vB = [R() for _ in range(4)]
    xr = R(10, 4); vxo = R(); vxo2 = R()
    sWA, sACT, sX, sOUT, sST, sDBG = 8, 12, 16, 20, 28, 32
    sWave, sT, sT2, sTB, sJD, sOA, sOB = 24, 25, 26, 27, 36, 37, 38
    sK, sOA0, sOB0 = 39, 40, 41
    stamp_begin(a)
    a("s_load_dwordx2 s[4:5], s[0:1], 120")
    a(f"s_load_dwordx2 s[{sX}:{sX+1}], s[0:1], 0")
    a(f"s_load_dwordx2 s[{sOUT}:{sOUT+1}], s[0:1], 104")
    a(f"v_lshrrev_b32 v{t0}, 6, v0")
    a(f"v_and_b32 v{lane}, 63, v0")
    a(f"v_readfirstlane_b32 s{sWave}, v{t0}")
    a(f"s_sub_u32 s{sT}, s2, {wg0}")
    a(f"s_lshr_b32 s{sT2}, s{sT}, 3")
    a(f"s_and_b32 s{sT}, s{sT}, 7")
    a(f"s_lshr_b32 s{sTB}, s{sT}, 1")
    a(f"s_lshl_b32 s{sTB}, s{sTB}, 3")
    a(f"s_and_b32 s{sJD}, s{sT2}, 7")
    a(f"s_add_u32 s{sTB}, s{sTB}, s{sJD}")
    a(f"s_and_b32 s{sJD}, s{sT}, 1")
    a(f"s_lshl_b32 s{sJD}, s{sJD}, 2")
    a(f"s_lshr_b32 s{sT2}, s{sT2}, 3")
    a(f"s_add_u32 s{sJD}, s{sJD}, s{sT2}")
    srd(a, sX, size=L * D * 2); srd(a, sOUT, size=L * D * 2)
    a(f"v_lshlrev_b32 v{vA}, 4, v{lane}")
    a(f"v_add_u32 v{vA2}, 4096, v{vA}")
    for ct in range(4):
        a(f"s_add_u32 s{sT}, s{sWave}, {ct}")
        a(f"s_and_b32 s{sT}, s{sT}, 3")
        a(f"s_mul_i32 s{sT}, s{sT}, {48*1024}")
        a(f"v_add_u32 v{vB[ct]}, s{sT}, v{vA}")
    a(f"s_mul_i32 s{sT}, s{sWave}, 12")
    a(f"s_mul_i32 s{sOA}, s{sJD}, 48")
    a(f"s_add_u32 s{sOA}, s{sOA}, s{sT}")
    a(f"s_mul_i32 s{sOA}, s{sOA}, 5120")
    a(f"s_mul_i32 s{sOB}, s{sTB}, 192")
    a(f"s_add_u32 s{sOB}, s{sOB}, s{sT}")
    a(f"s_lshl_b32 s{sOB}, s{sOB}, 10")
    a(f"s_mov_b32 s{sOA0}, s{sOA}")
    a(f"s_mov_b32 s{sOB0}, s{sOB}")
    a(f"s_and_b32 s{sK}, s{sJD}, 3")
    a(f"s_mul_i32 s{sK}, s{sK}, 3")
    a(f"s_and_b32 s{sT}, s{sTB}, 7")
    a(f"s_mul_i32 s{sT}, s{sT}, 3")
    a(f"s_lshr_b32 s{sT}, s{sT}, 1")
    a(f"s_add_u32 s{sK}, s{sK}, s{sT}")
    a(f"s_lshr_b32 s{sT}, s{sTB}, 3")
    a(f"s_add_u32 s{sK}, s{sK}, s{sT}")
    a(f"s_cmp_ge_u32 s{sK}, 12")
    a(f"s_cselect_b32 s{sT}, 12, 0")
    a(f"s_sub_u32 s{sK}, s{sK}, s{sT}")
    if not ROT2: a(f"s_mov_b32 s{sK}, 0")
    a(f"s_mul_i32 s{sT}, s{sK}, 5120")
    a(f"s_add_u32 s{sOA}, s{sOA}, s{sT}")
    a(f"s_lshl_b32 s{sT}, s{sK}, 10")
    a(f"s_add_u32 s{sOB}, s{sOB}, s{sT}")
    a("s_waitcnt lgkmcnt(0)")
    srd_from(a, sWA, 4, WS_W2A, WS_ACT - WS_W2A + SZ_ACT)
    srd_from(a, sACT, 4, WS_ACT, SZ_ACT)
    vpf = xr; vpd = xr + 1; vps = xr + 2
    if PF2:
        a(f"s_sub_u32 s3, s2, {wg0}")
        a(f"s_lshr_b32 s{sT2}, s3, 3")
        a(f"s_bfe_u32 s{sT}, s3, 0x20001")
        a(f"s_lshl_b32 s{sT}, s{sT}, 5")
        a(f"s_add_u32 s{sT}, s{sT}, s{sT2}")
        a(f"s_mul_i32 s{sT}, s{sT}, 48")
        a(f"s_mul_i32 s3, s{sWave}, 12")
        a(f"s_add_u32 s{sT}, s{sT}, s3")
        a(f"s_lshl_b32 s{sT}, s{sT}, 10")
        a(f"s_add_u32 s{sT}, s{sT}, {WS_ACT - WS_W2A}")
        a(f"v_lshlrev_b32 v{t0}, 7, v{lane}")
        a(f"v_add_u32 v{t0}, s{sT}, v{t0}")
        a(f"v_subrev_u32 v{t1}, 32, v{lane}")
        a(f"v_min_u32 v{t1}, 19, v{t1}")
        a(f"v_mul_u32_u24 v{t2}, 52, v{t1}")
        a(f"v_lshrrev_b32 v{t2}, 8, v{t2}")
        a(f"v_mul_u32_u24 v{t3}, 5, v{t2}")
        a(f"v_sub_u32 v{t1}, v{t1}, v{t3}")
        a(f"v_mul_u32_u24 v{t2}, 5120, v{t2}")
        a(f"v_lshl_add_u32 v{t1}, v{t1}, 7, v{t2}")
        a(f"s_and_b32 s{sT2}, s{sT2}, 7")
        a(f"s_mul_i32 s{sT2}, s{sT2}, 640")
        a(f"s_add_u32 s{sT2}, s{sT2}, s{sOA0}")
        a(f"v_add_u32 v{t1}, s{sT2}, v{t1}")
        a(f"v_cmp_gt_u32 vcc, 32, v{lane}")
        a(f"v_cndmask_b32 v{vpf}, v{t1}, v{t0}, vcc")
        a(f"v_mov_b32 v{t0}, 4096")
        a(f"v_mov_b32 v{t1}, 20480")
        a(f"v_cndmask_b32 v{vps}, v{t1}, v{t0}, vcc")
        for i in range(2):
            a(f"buffer_load_dword v{vpd}, v{vpf}, s[{sWA}:{sWA+3}], 0 offen {PFMOD}")
            a(f"v_add_u32 v{vpf}, v{vpf}, v{vps}")
    tok = {}
    def issue(k):
        st = k % NST
        for ct in range(4):
            a(f"buffer_load_dwordx4 {v(FB[st][ct],4)}, v{vB[ct]}, s[{sACT}:{sACT+3}], s{sOB} offen")
        for rt in range(5):
            if rt < 4: a(f"buffer_load_dwordx4 {v(FA[st][rt],4)}, v{vA}, s[{sWA}:{sWA+3}], s{sOA} offen offset:{1024*rt}")
            else: a(f"buffer_load_dwordx4 {v(FA[st][rt],4)}, v{vA2}, s[{sWA}:{sWA+3}], s{sOA} offen")
            tok[(k, rt)] = a.vtok()
        if k < 11:
            a(f"s_add_u32 s{sOA}, s{sOA}, 5120")
            a(f"s_add_u32 s{sOB}, s{sOB}, 1024")
            a(f"s_add_u32 s{sK}, s{sK}, 1")
            a(f"s_cmp_eq_u32 s{sK}, 12")
            a(f"s_cselect_b32 s{sOA}, s{sOA0}, s{sOA}")
            a(f"s_cselect_b32 s{sOB}, s{sOB0}, s{sOB}")
    for k in range(NST):
        issue(k)
        if k == 1 and PF2: a(f"buffer_load_dword v{vpd}, v{vpf}, s[{sWA}:{sWA+3}], 0 offen {PFMOD}")
    srd_from(a, sST, 4, WS_ST, SZ_T)
    srd_from(a, sDBG, 4, WS_FLAG, 4096)
    a(f"s_lshl_b32 s{sT}, s{sTB}, 6")
    a(f"s_lshl_b32 s{sT2}, s{sWave}, 4")
    a(f"s_add_u32 s{sT}, s{sT}, s{sT2}")
    a(f"v_and_b32 v{t0}, 15, v{lane}")
    a(f"v_add_u32 v{t0}, s{sT}, v{t0}")
    a(f"v_mul_u32_u24 v{t1}, 1280, v{t0}")
    a(f"s_mul_i32 s{sT2}, s{sJD}, 160")
    a(f"v_add_u32 v{t1}, s{sT2}, v{t1}")
    a(f"v_lshrrev_b32 v{t2}, 4, v{lane}")
    a(f"v_lshl_add_u32 v{vxo}, v{t2}, 4, v{t1}")
    a(f"v_lshl_add_u32 v{vxo2}, v{t2}, 3, v{t1}")
    for k in range(12):
        st = k % NST
        for rt in range(5):
            a.wait(vm=tok[(k, rt)])
            for ct in range(4):
                c = "0" if k == 0 else v(acc[rt][ct], 4)
                a(f"v_mfma_f32_16x16x32_bf16 {v(acc[rt][ct],4)}, {v(FA[st][rt],4)}, {v(FB[st][ct],4)}, {c}")
        if k in (0, 3, 7): stamp(a)
        if k + NST < 12: issue(k + NST)
        if k == 7:
            a(f"buffer_load_dwordx4 {v(xr,4)}, v{vxo}, s[{sX}:{sX+3}], 0 offen")
            a(f"buffer_load_dwordx4 {v(xr+4,4)}, v{vxo}, s[{sX}:{sX+3}], 0 offen offset:64")
            a(f"buffer_load_dwordx2 {v(xr+8,2)}, v{vxo2}, s[{sX}:{sX+3}], 0 offen offset:128")
    stamp(a)
    E = Alloc(FA[0][0], limit=FB[NST-1][3] + 4)
    Pr = [[E(4, 4) for rt in range(5)] for p in range(3)]
    sv = E(20, 4); T = [E(2, 2) for _ in range(10)]; op = E(10, 4); vso = E(); vso2 = E(); vpl = E(); vfl = E()
    for ct in range(1, 4):
        a(f"s_add_u32 s{sT2}, s{sWave}, {ct}")
        a(f"s_and_b32 s{sT2}, s{sT2}, 3")
        a(f"s_mul_i32 s{sT2}, s{sT2}, 15360")
        a(f"v_add_u32 v{t3}, s{sT2}, v{vA}")
        for rt in range(5):
            a(f"ds_write_b128 v{t3}, {v(acc[rt][ct],4)} offset:{(ct-1)*5120 + rt*1024}")
    a(f"s_lshl_b32 s{sT2}, s{sJD}, 8")
    a(f"v_mov_b32 v{vpl}, s{sT2}")
    a(f"s_mul_i32 s{sT2}, s{sJD}, {80*4096}")
    a(f"v_lshlrev_b32 v{t0}, 1, v{t0}")
    a(f"v_add_u32 v{t0}, s{sT2}, v{t0}")
    a(f"v_lshl_add_u32 v{vso}, v{t2}, 15, v{t0}")
    a(f"v_lshl_add_u32 v{vso2}, v{t2}, 14, v{t0}")
    a(f"s_mov_b32 s{sT}, 0")
    a(f"s_cmp_lg_u32 s{sWave}, 0")
    a("s_cbranch_scc1 G2_ready")
    a.label("G2_poll")
    a.flush_hist()
    a(f"buffer_load_dword v{vfl}, v{vpl}, s[{sDBG}:{sDBG+3}], 0 offen sc1")
    a("s_waitcnt vmcnt(0)")
    a(f"v_readfirstlane_b32 s{sT2}, v{vfl}")
    a(f"s_cmp_ge_u32 s{sT2}, 80")
    a("s_cbranch_scc1 G2_ready")
    a("s_sleep 16")
    a(f"s_add_u32 s{sT}, s{sT}, 1")
    a(f"s_cmp_lt_u32 s{sT}, 0x8000")
    a("s_cbranch_scc1 G2_poll")
    a.label("G2_ready")
    a.flush_hist()
    a("s_waitcnt lgkmcnt(0)")
    a("s_barrier")
    stamp(a)
    for j in range(20):
        if j < 16:
            d = 32 * (j // 8) + j % 8
            a(f"s_mov_b32 s{sT2}, {d*4096}")
            a(f"buffer_load_ushort v{sv+j}, v{vso}, s[{sST}:{sST+3}], s{sT2} offen sc1")
        else:
            a(f"s_mov_b32 s{sT2}, {(64 + j - 16)*4096}")
            a(f"buffer_load_ushort v{sv+j}, v{vso2}, s[{sST}:{sST+3}], s{sT2} offen sc1")
    a(f"s_mul_i32 s{sT2}, s{sWave}, 15360")
    a(f"v_add_u32 v{t3}, s{sT2}, v{vA}")
    for p in range(3):
        for rt in range(5):
            a(f"ds_read_b128 {v(Pr[p][rt],4)}, v{t3} offset:{p*5120 + rt*1024}")
    a(f"s_mov_b32 s42, {f32(-LOG2E)}"); a(f"s_mov_b32 s43, {f32(-LOG2E)}")
    a("s_waitcnt lgkmcnt(0)")
    o2 = []
    for rt in range(5):
        for hf in range(2):
            d = acc[rt][0] + 2 * hf
            for p in range(3):
                a(f"v_pk_add_f32 {v(d,2)}, {v(d,2)}, {v(Pr[p][rt]+2*hf,2)}")
            o2.append(d)
    for i, d in enumerate(o2):
        a(f"v_cvt_pk_bf16_f32 v{T[i]}, v{d}, v{d+1}")
        a(f"v_lshlrev_b32 v{d}, 16, v{T[i]}")
        a(f"v_and_b32 v{d+1}, 0xffff0000, v{T[i]}")
        a(f"v_pk_mul_f32 {v(T[i],2)}, {v(d,2)}, s[42:43]")
    for i, d in enumerate(o2):
        a(f"v_exp_f32 v{T[i]}, v{T[i]}")
        a(f"v_exp_f32 v{T[i]+1}, v{T[i]+1}")
    for i, d in enumerate(o2):
        a(f"v_pk_add_f32 {v(T[i],2)}, {v(T[i],2)}, 1.0 op_sel_hi:[1,0]")
    for i, d in enumerate(o2):
        a(f"v_rcp_f32 v{T[i]}, v{T[i]}")
        a(f"v_rcp_f32 v{T[i]+1}, v{T[i]+1}")
    for i, d in enumerate(o2):
        a(f"v_pk_mul_f32 {v(d,2)}, {v(d,2)}, {v(T[i],2)}")
        a(f"v_cvt_pk_bf16_f32 v{T[i]}, v{d}, v{d+1}")
        a(f"v_lshlrev_b32 v{d}, 16, v{T[i]}")
        a(f"v_and_b32 v{d+1}, 0xffff0000, v{T[i]}")
    stamp(a)
    a("s_waitcnt vmcnt(0)")
    stamp(a)
    for i, d in enumerate(o2):
        sj = sv + 2 * i
        a(f"v_lshlrev_b32 v{sj}, 16, v{sj}")
        a(f"v_lshlrev_b32 v{sj+1}, 16, v{sj+1}")
        a(f"v_pk_mul_f32 {v(d,2)}, {v(d,2)}, {v(sj,2)}")
        a(f"v_cvt_pk_bf16_f32 v{T[i]}, v{d}, v{d+1}")
        a(f"v_lshlrev_b32 v{d}, 16, v{T[i]}")
        a(f"v_and_b32 v{d+1}, 0xffff0000, v{T[i]}")
        a(f"v_lshlrev_b32 v{T[i]}, 16, v{xr+i}")
        a(f"v_and_b32 v{T[i]+1}, 0xffff0000, v{xr+i}")
        a(f"v_pk_add_f32 {v(d,2)}, {v(d,2)}, {v(T[i],2)}")
        a(f"v_cvt_pk_bf16_f32 v{op+i}, v{d}, v{d+1}")
    a(f"buffer_store_dwordx4 {v(op,4)}, v{vxo}, s[{sOUT}:{sOUT+3}], 0 offen")
    a(f"buffer_store_dwordx4 {v(op+4,4)}, v{vxo}, s[{sOUT}:{sOUT+3}], 0 offen offset:64")
    a(f"buffer_store_dwordx2 {v(op+8,2)}, v{vxo2}, s[{sOUT}:{sOUT+3}], 0 offen offset:128")
    stamp_end(a, 1)
    return R.hi

def kd(name, vgpr, sgpr=48):
    if STAMPS: vgpr, sgpr = 256, 102
    vg = (vgpr + 7) // 8 * 8
    return f""".p2align 6
.amdhsa_kernel {name}
  .amdhsa_next_free_vgpr {vg}
  .amdhsa_next_free_sgpr {sgpr}
  .amdhsa_accum_offset {vg}
  .amdhsa_group_segment_fixed_size 0
  .amdhsa_kernarg_size 128
  .amdhsa_user_sgpr_count 2
  .amdhsa_user_sgpr_kernarg_segment_ptr 1
  .amdhsa_system_sgpr_workgroup_id_x 1
  .amdhsa_float_denorm_mode_32 3
  .amdhsa_float_denorm_mode_16_64 3
.end_amdhsa_kernel
"""

def main(out):
    ref = open(f"cdna_kernels/{NAME}.s.ref").read().split("\n")
    hdr = [l for l in ref if l.startswith(";") and "@launch" not in l and "Override launch" not in l and "grid=ceil" not in l]
    L1_LDS = 3 * G1_SLOT
    L2_LDS = max(CV_LDS, 61440)
    assert L2_LDS <= 81920 and L1_LDS <= 81920 and 4 * KG_WAVE <= L1_LDS and 32 * LN_S <= L1_LDS
    hdr.append(f"; @launch kernel=s4a_kernel grid=(480,1,1) block=(256,1,1) lds={L1_LDS}")
    hdr.append(f"; @launch kernel=s4b_kernel grid=(512,1,1) block=(256,1,1) lds={L2_LDS}")
    a = Asm()
    a.raw('.amdgcn_target "amdgcn-amd-amdhsa--gfx950"\n.text')
    a.raw(".globl s4a_kernel\n.p2align 8\n.type s4a_kernel,@function")
    a.label("s4a_kernel")
    a("s_cmp_lt_u32 s2, 224")
    a("s_cbranch_scc1 K1_aux")
    a("s_cmp_ge_u32 s2, 480")
    a("s_cbranch_scc1 K1_exit")
    h1 = gemm1(a, 224)
    a.label("K1_aux"); a.flush_hist()
    a("s_cmp_ge_u32 s2, 160")
    a("s_cbranch_scc1 K1_ln")
    h2 = kgen(a, 0)
    a.label("K1_ln"); a.flush_hist()
    h3 = lnrole(a, 160)
    a.label("K1_exit")
    a("s_endpgm")
    a.raw(".globl s4b_kernel\n.p2align 8\n.type s4b_kernel,@function")
    a.label("s4b_kernel"); a.flush_hist()
    a("s_cmp_ge_u32 s2, 256")
    a("s_cbranch_scc1 K2_g2")
    h4 = conv(a)
    a.label("K2_g2"); a.flush_hist()
    a("s_cmp_ge_u32 s2, 512")
    a("s_cbranch_scc1 K2_exit")
    h5 = gemm2(a, 256)
    a.label("K2_exit")
    a("s_endpgm")
    print("vgprs", h1, h2, h3, h4, h5, "nops", a.nnop, "lds", L1_LDS, L2_LDS, file=sys.stderr)
    txt = "\n".join(hdr) + "\n" + a.text() + '.section .rodata,"a"\n' + kd("s4a_kernel", max(h1, h2, h3)) + kd("s4b_kernel", max(h4, h5))
    open(out, "w").write(txt)

if __name__ == "__main__":
    main(sys.argv[1] if len(sys.argv) > 1 else f"cdna_kernels/{NAME}.s")
```

```python
import sys, os, struct, math
sys.path.insert(0, os.path.dirname(os.path.abspath(__file__)))
from asmlib import *

NAME = "recurrent_scan__ssm_conv_s4__dense_activation_mish__prompt"
L, D, N, F = 2048, 640, 192, 1536

WS_XT  = 0x0000000
WS_KR  = 0x0400000
WS_ST  = 0x0800000
WS_W2A = 0x0C00000
WS_ACT = 0x1000000
SZ_T = D * L * 2
SZ_W2A = F * D * 2
SZ_ACT = L * F * 2

def f32(x): return "0x%08x" % struct.unpack("<I", struct.pack("<f", x))[0]
LOG2E = 1.4426950408889634
LN2 = 0.6931471805599453

def srd(a, sreg, karg_off=None, size=None):
    a(f"s_mov_b32 s{sreg+2}, {size}")
    a(f"s_mov_b32 s{sreg+3}, 0x20000")

def srd_from(a, sreg, base, off, size):
    a(f"s_add_u32 s{sreg}, s{base}, {off}")
    a(f"s_addc_u32 s{sreg+1}, s{base+1}, 0")
    a(f"s_mov_b32 s{sreg+2}, {size}")
    a(f"s_mov_b32 s{sreg+3}, 0x20000")

def bf16r(a, dst, src):
    a(f"v_cvt_pk_bf16_f32 v{dst}, v{src}, v{src}")
    a(f"v_and_b32 v{dst}, 0xffff0000, v{dst}")

STAMPS = bool(int(os.environ.get("STAMPS", "0")))
ROT1 = int(os.environ.get("ROT1", "0")); ROT2 = int(os.environ.get("ROT2", "0"))
PF1 = int(os.environ.get("PF1", "1")); PF2 = int(os.environ.get("PF2", "1"))
PFMOD = os.environ.get("PFMOD", "")
WS_FLAG = 0x3000000
WS_STAMP = 0x4000000
_stamp_n = [0]
def stamp_begin(a):
    _stamp_n[0] = 0
    if STAMPS:
        a("s_memrealtime s[60:61]")
        a("s_memtime s[64:65]")
        a("v_mov_b32 v255, v0")
        _stamp_n[0] = 1
def stamp(a):
    if STAMPS:
        n = _stamp_n[0]; assert n < 14
        a(f"s_memtime s[{64+2*n}:{65+2*n}]")
        _stamp_n[0] += 1
def stamp_end(a, kern):
    if STAMPS:
        stamp(a)
        a("s_memrealtime s[62:63]")
        a("s_load_dwordx2 s[96:97], s[0:1], 120")
        a("s_waitcnt lgkmcnt(0)")
        a("s_mov_b64 exec, -1")
        a(f"s_add_u32 s96, s96, {WS_STAMP + kern * 0x100000}")
        a("s_addc_u32 s97, s97, 0")
        a("s_mov_b32 s98, 0x100000")
        a("s_mov_b32 s99, 0x20000")
        a("v_lshrrev_b32 v255, 6, v255")
        a("v_lshlrev_b32 v255, 8, v255")
        a("s_lshl_b32 s59, s2, 10")
        a("v_add_u32 v255, s59, v255")
        a("v_mov_b32 v253, s60"); a("v_mov_b32 v254, s62")
        a("s_mov_b64 exec, 1")
        a("buffer_store_dword v253, v255, s[96:99], 0 offen")
        a("buffer_store_dword v254, v255, s[96:99], 0 offen offset:4")
        a(f"v_mov_b32 v253, {_stamp_n[0]}")
        a("buffer_store_dword v253, v255, s[96:99], 0 offen offset:8")
        for n in range(_stamp_n[0]):
            a(f"s_sub_u32 s59, s{64+2*n}, s64")
            a(f"v_mov_b32 v{253 + n % 2}, s59")
            a(f"buffer_store_dword v{253 + n % 2}, v255, s[96:99], 0 offen offset:{16+4*n}")
    a("s_endpgm")

G1_SLOT = 24576
def gemm1(a, wg0):
    R = Alloc(1)
    acc = [[R(4, 4) for ct in range(2)] for rt in range(6)]
    sx = [R(4, 4) for _ in range(2)]
    sxx = [R(4, 4) for _ in range(2)]
    cs = [R(4, 4) for _ in range(2)]
    NXS = 12
    X = [[R(4, 4) for ct in range(2)] for _ in range(NXS)]
    A = [[R(4, 4) for rt in range(6)] for _ in range(2)]
    ones = R(4, 4)
    vE = [R() for _ in range(3)]; vO = [R() for _ in range(3)]
    vW = [R() for _ in range(3)]
    vX = [R() for _ in range(2)]
    lane = R(); t0 = R(); t1 = R(); t2 = R(); t3 = R()
    b1r = [R(2, 2) for _ in range(2)]
    sX, sW1, sB1, sACT = 8, 12, 16, 20
    sWave, sRB, sCB, sT, sT2, sWoff, sM0 = 24, 25, 26, 27, 28, 29, 30
    sP = [32, 33, 34]
    sRot, sXk, sCB192 = 44, 45, 46
    stamp_begin(a)
    a("s_load_dwordx2 s[8:9], s[0:1], 0")
    a("s_load_dwordx2 s[12:13], s[0:1], 80")
    a("s_load_dwordx2 s[16:17], s[0:1], 88")
    a("s_load_dwordx2 s[4:5], s[0:1], 120")
    a(f"v_lshrrev_b32 v{t0}, 6, v0")
    a(f"v_and_b32 v{lane}, 63, v0")
    a(f"v_readfirstlane_b32 s{sWave}, v{t0}")
    a(f"s_sub_u32 s3, s2, {wg0}")
    a(f"s_and_b32 s{sT}, s3, 7")
    a(f"s_lshr_b32 s{sT2}, s3, 3")
    a(f"s_lshr_b32 s{sRB}, s{sT}, 1")
    a(f"s_lshl_b32 s{sRB}, s{sRB}, 2")
    a(f"s_and_b32 s{sCB}, s{sT2}, 3")
    a(f"s_add_u32 s{sRB}, s{sRB}, s{sCB}")
    a(f"s_and_b32 s{sCB}, s{sT}, 1")
    a(f"s_lshl_b32 s{sCB}, s{sCB}, 3")
    a(f"s_lshr_b32 s{sT2}, s{sT2}, 2")
    a(f"s_add_u32 s{sCB}, s{sCB}, s{sT2}")
    srd(a, sX, size=L * D * 2); srd(a, sW1, size=D * F * 2); srd(a, sB1, size=F * 2)
    if PF1:
        a(f"s_lshr_b32 s{sRot}, s3, 3")
        a(f"s_lshl_b32 s{sRot}, s{sRot}, 2")
        a(f"s_add_u32 s{sRot}, s{sRot}, s{sWave}")
        a(f"v_mul_u32_u24 v{t1}, 0xaaab, v{lane}")
        a(f"v_lshrrev_b32 v{t1}, 19, v{t1}")
        a(f"v_mul_u32_u24 v{t2}, 12, v{t1}")
        a(f"v_sub_u32 v{t2}, v{lane}, v{t2}")
        a(f"v_mul_u32_u24 v{t1}, {128*3072}, v{t1}")
        a(f"v_lshl_add_u32 v{t1}, v{t2}, 7, v{t1}")
        a(f"s_mul_i32 s{sXk}, s{sRot}, 3072")
        a(f"s_and_b32 s{sT}, s3, 1")
        a(f"s_mul_i32 s{sT}, s{sT}, 1536")
        a(f"s_add_u32 s{sXk}, s{sXk}, s{sT}")
        a(f"v_lshrrev_b32 v{t2}, 3, v{lane}")
        a(f"v_min_u32 v{t2}, 4, v{t2}")
        a(f"v_lshlrev_b32 v{t2}, 8, v{t2}")
        a(f"v_and_b32 v{t3}, 1, v{lane}")
        a(f"v_lshl_add_u32 v{t2}, v{t3}, 7, v{t2}")
        a(f"v_bfe_u32 v{t3}, v{lane}, 1, 2")
        a(f"v_mul_u32_u24 v{t3}, 1280, v{t3}")
        a(f"v_add_u32 v{t2}, v{t2}, v{t3}")
        a(f"s_bfe_u32 s{sT}, s3, 0x20001")
        a(f"s_lshl_b32 s{sT}, s{sT}, 7")
        a(f"s_add_u32 s{sT}, s{sT}, s{sRot}")
        a(f"s_mul_i32 s{sT}, s{sT}, {4*1280}")
        a("s_waitcnt lgkmcnt(0)")
        a(f"buffer_load_dword v{ones}, v{t2}, s[{sX}:{sX+3}], s{sT} offen {PFMOD}")
        a(f"buffer_load_dword v{ones+1}, v{t1}, s[{sW1}:{sW1+3}], s{sXk} offen {PFMOD}")
    for i in range(3):
        a(f"v_add_u32 v{t0}, {64*i}, v{lane}")
        a(f"v_mul_u32_u24 v{t1}, 0xaaab, v{t0}")
        a(f"v_lshrrev_b32 v{t1}, 19, v{t1}")
        a(f"v_mul_u32_u24 v{t2}, 12, v{t1}")
        a(f"v_sub_u32 v{t2}, v{t0}, v{t2}")
        a(f"v_lshrrev_b32 v{t3}, 2, v{t1}")
        a(f"v_and_b32 v{t3}, 2, v{t3}")
        a(f"v_xor_b32 v{t2}, v{t2}, v{t3}")
        a(f"v_lshlrev_b32 v{t2}, 4, v{t2}")
        a(f"v_mul_u32_u24 v{t1}, 3072, v{t1}")
        a(f"v_add_u32 v{vW[i]}, v{t1}, v{t2}")
    a(f"s_and_b32 s{sRot}, s{sRB}, 3")
    a(f"s_mul_i32 s{sRot}, s{sRot}, 5")
    a(f"s_and_b32 s{sT}, s{sCB}, 7")
    a(f"s_mul_i32 s{sT}, s{sT}, 5")
    a(f"s_lshr_b32 s{sT}, s{sT}, 1")
    a(f"s_add_u32 s{sRot}, s{sRot}, s{sT}")
    a(f"s_lshr_b32 s{sT}, s{sRB}, 2")
    a(f"s_add_u32 s{sRot}, s{sRot}, s{sT}")
    a(f"s_cmp_ge_u32 s{sRot}, 20")
    a(f"s_cselect_b32 s{sT}, 20, 0")
    a(f"s_sub_u32 s{sRot}, s{sRot}, s{sT}")
    if not ROT1: a(f"s_mov_b32 s{sRot}, 0")
    a(f"s_lshl_b32 s{sXk}, s{sRot}, 6")
    a(f"s_add_u32 s{sWoff}, s{sWave}, s{sRot}")
    a(f"s_cmp_ge_u32 s{sWoff}, 20")
    a(f"s_cselect_b32 s{sT}, 20, 0")
    a(f"s_sub_u32 s{sWoff}, s{sWoff}, s{sT}")
    a(f"s_mul_i32 s{sWoff}, s{sWoff}, {32*3072}")
    a(f"s_mul_i32 s{sCB192}, s{sCB}, 192")
    for i in range(3): a(f"v_add_u32 v{vW[i]}, s{sCB192}, v{vW[i]}")
    a(f"s_mul_i32 s{sM0}, s{sWave}, 6144")
    a(f"s_lshl_b32 s{sT}, s{sRB}, 7")
    a(f"s_lshl_b32 s{sT2}, s{sWave}, 5")
    a(f"s_add_u32 s{sT}, s{sT}, s{sT2}")
    a(f"v_and_b32 v{t0}, 15, v{lane}")
    a(f"v_add_u32 v{t0}, s{sT}, v{t0}")
    a(f"v_mul_u32_u24 v{t0}, 1280, v{t0}")
    a(f"v_lshrrev_b32 v{t1}, 4, v{lane}")
    a(f"v_lshl_add_u32 v{vX[0]}, v{t1}, 4, v{t0}")
    a(f"v_add_u32 v{vX[1]}, {16*1280}, v{vX[0]}")
    a("s_waitcnt lgkmcnt(0)")
    srd_from(a, sACT, 4, WS_ACT, SZ_ACT)

    tokW = {}; tokX = {}
    def issue_w(c):
        for i in range(6):
            a(f"s_add_u32 m0, s{sM0}, {(c % 3) * G1_SLOT + i * 1024}")
            if i == 3:
                a(f"s_add_u32 s{sT}, s{sWoff}, {16 * 3072}")
            a(f"buffer_load_dwordx4 v{vW[i % 3]}, s[{sW1}:{sW1+3}], s{sWoff if i < 3 else sT} offen lds")
        tokW[c] = a.vtok()
        if c < 4:
            a(f"s_add_u32 s{sWoff}, s{sWoff}, {128 * 3072}")
            a(f"s_cmp_ge_u32 s{sWoff}, {640 * 3072}")
            a(f"s_cselect_b32 s{sT}, {640 * 3072}, 0")
            a(f"s_sub_u32 s{sWoff}, s{sWoff}, s{sT}")
    def issue_x(ks):
        for ct in range(2):
            a(f"buffer_load_dwordx4 {v(X[ks % NXS][ct], 4)}, v{vX[ct]}, s[{sX}:{sX+3}], s{sXk} offen")
        tokX[ks] = a.vtok()
        if ks < 19:
            a(f"s_add_u32 s{sXk}, s{sXk}, 64")
            a(f"s_cmp_ge_u32 s{sXk}, 1280")
            a(f"s_cselect_b32 s{sXk}, 0, s{sXk}")
    for c in range(3):
        issue_w(c)
        for ks in range(4 * c, 4 * c + 4): issue_x(ks)

    a(f"v_lshrrev_b32 v{t0}, 4, v{lane}")
    a(f"v_bfe_u32 v{t1}, v{lane}, 2, 2")
    a(f"v_lshl_add_u32 v{t1}, v{t0}, 3, v{t1}")
    a(f"v_mul_u32_u24 v{t1}, 192, v{t1}")
    a(f"v_and_b32 v{t2}, 3, v{lane}")
    a(f"v_lshl_add_u32 v{t1}, v{t2}, 3, v{t1}")
    a(f"v_and_b32 v{t0}, 1, v{t0}")
    a(f"v_lshlrev_b32 v{t0}, 5, v{t0}")
    a(f"v_add_u32 v{t2}, v{t1}, v{t0}")
    a(f"v_sub_u32 v{t3}, v{t1}, v{t0}")
    a(f"v_add_u32 v{t3}, 32, v{t3}")
    for P in range(3):
        a(f"s_add_u32 s{sP[P]}, s{sWave}, {P}")
        a(f"s_cmp_ge_u32 s{sP[P]}, 3")
        a(f"s_cselect_b32 s{sT}, 3, 0")
        a(f"s_sub_u32 s{sP[P]}, s{sP[P]}, s{sT}")
        a(f"s_lshl_b32 s{sT}, s{sP[P]}, 6")
        a(f"v_add_u32 v{vE[P]}, s{sT}, v{t2}")
        a(f"v_add_u32 v{vO[P]}, s{sT}, v{t3}")

    tokA = {}
    def read_a(ks):
        off = (ks % 4) * 6144
        for rt in range(6):
            ad = (vE if rt % 2 == 0 else vO)[rt // 2]
            for e in range(2):
                a(f"ds_read_b64_tr_b16 {v(A[ks % 2][rt] + 2*e, 2)}, v{ad} offset:{off + 768*e}")
            tokA[(ks, rt)] = a.ltok()
    def bump(c):
        d = ((c % 3) - ((c - 1) % 3)) * G1_SLOT
        for r_ in vE + vO:
            if d > 0: a(f"v_add_u32 v{r_}, {d}, v{r_}")
            else: a(f"v_subrev_u32 v{r_}, {-d}, v{r_}")
    def mf(d, A_, B_, first):
        c = "0" if first else v(d, 4)
        a(f"v_mfma_f32_16x16x32_bf16 {v(d,4)}, {v(A_,4)}, {v(B_,4)}, {c}")

    stamp(a)
    a.wait(vm=tokW[0])
    for i in range(4): a(f"v_mov_b32 v{ones+i}, 0x3f803f80")
    a("s_barrier")
    stamp(a)
    read_a(0)
    for ks in range(20):
        c = ks // 4
        first = ks == 0
        last_in_chunk = ks % 4 == 3
        if last_in_chunk and ks < 19:
            a.wait(vm=max(tokW[c + 1], tokX[ks]), lg=a.ltok())
            a("s_barrier")
            stamp(a)
            bump(c + 1)
            read_a(ks + 1)
            if c + 3 < 5: issue_w(c + 3)
        else:
            if ks < 19: read_a(ks + 1)
            a.wait(vm=tokX[ks])
        Xs = X[ks % NXS]; As = A[ks % 2]
        for ct in range(2):
            mf(sx[ct], ones, Xs[ct], first)
            mf(sxx[ct], Xs[ct], Xs[ct], first)
        for rt in range(6):
            a.wait(lg=tokA[(ks, rt)])
            for ct in range(2): mf(acc[rt][ct], As[rt], Xs[ct], first)
            if rt < 2: mf(cs[rt], As[rt], ones, first)
        if ks + NXS < 20: issue_x(ks + NXS)

    stamp(a)
    E = Alloc(X[0][0], limit=A[1][5] + 4)
    csv = [E(4, 4) for _ in range(6)]
    b1v = [E(4, 4) for _ in range(6)]
    b1p = [E(2, 2) for _ in range(6)]
    rr = [E(2, 2) for _ in range(2)]
    tmp = [E(2, 2) for _ in range(12)]
    outp = [E(4, 4) for _ in range(2)]
    vq = E(); vcs = E(); vst = E(); vbp = E()
    a(f"v_lshrrev_b32 v{vq}, 4, v{lane}")
    a(f"v_lshlrev_b32 v{t0}, 3, v{vq}")
    a(f"s_mul_i32 s{sT2}, s{sCB}, 192")
    for P in range(3):
        a(f"s_lshl_b32 s{sT}, s{sP[P]}, 6")
        a(f"s_add_u32 s{sT}, s{sT}, s{sT2}")
        for o in range(2):
            a(f"buffer_load_dwordx2 {v(b1p[2*P+o],2)}, v{t0}, s[{sB1}:{sB1+3}], s{sT} offen offset:{32*o}")
    tokb = a.vtok()
    CSOFF = 2 * G1_SLOT
    a(f"v_lshlrev_b32 v{vcs}, 4, v{vq}")
    a(f"s_lshl_b32 s{sT}, s{sP[0]}, 7")
    a(f"v_add_u32 v{t1}, s{sT}, v{vcs}")
    for o in range(2):
        a(f"ds_write_b128 v{t1}, {v(cs[o],4)} offset:{CSOFF + 64*o}")
    a(f"s_mov_b32 s36, 0x22222222"); a(f"s_mov_b32 s37, 0x22222222")
    a(f"s_mov_b32 s38, 0x44444444"); a(f"s_mov_b32 s39, 0x44444444")
    a(f"s_mov_b32 s40, 0x88888888"); a(f"s_mov_b32 s41, 0x88888888")
    a(f"v_and_b32 v{t2}, 15, v{lane}")
    a(f"v_lshrrev_b32 v{t3}, 2, v{t2}")
    a(f"v_lshl_add_u32 v{vbp}, v{t3}, 4, v{t2}")
    a(f"v_lshlrev_b32 v{vbp}, 2, v{vbp}")
    for ct in range(2):
        d = tmp[ct]
        a(f"v_cndmask_b32 v{d}, v{sxx[ct]}, v{sxx[ct]+1}, s[36:37]")
        a(f"v_cndmask_b32 v{d}, v{d}, v{sxx[ct]+2}, s[38:39]")
        a(f"v_cndmask_b32 v{d}, v{d}, v{sxx[ct]+3}, s[40:41]")
        a(f"ds_bpermute_b32 v{d+1}, v{vbp}, v{d}")
    a("s_waitcnt lgkmcnt(0)")
    a("s_barrier")
    for P in range(3):
        a(f"s_lshl_b32 s{sT}, s{sP[P]}, 7")
        a(f"v_add_u32 v{t1}, s{sT}, v{vcs}")
        for o in range(2):
            a(f"ds_read_b128 {v(csv[2*P+o],4)}, v{t1} offset:{CSOFF + 64*o}")
    for ct in range(2):
        d = tmp[ct]; m = tmp[2 + ct]
        a(f"v_mul_f32 v{m}, {f32(1.0/D)}, v{sx[ct]}")
        a(f"v_mul_f32 v{d}, v{m}, v{m}")
        a(f"v_mul_f32 v{d+1}, {f32(1.0/D)}, v{d+1}")
        a(f"v_sub_f32 v{d}, v{d+1}, v{d}")
        a(f"v_max_f32 v{d}, 0, v{d}")
        bf16r(a, d, d)
        a(f"v_add_f32 v{d}, {f32(1e-5)}, v{d}")
        bf16r(a, d, d)
        a(f"v_sqrt_f32 v{d}, v{d}")
        bf16r(a, d, d)
        a(f"v_rcp_f32 v{rr[ct]}, v{d}")
        bf16r(a, m, m)
        a(f"v_mul_f32 v{rr[ct]+1}, v{m}, v{rr[ct]}")
        a(f"v_sub_f32 v{rr[ct]+1}, 0, v{rr[ct]+1}")
    a.wait(vm=tokb)
    for rt in range(6):
        a(f"v_lshlrev_b32 v{b1v[rt]}, 16, v{b1p[rt]}")
        a(f"v_and_b32 v{b1v[rt]+1}, 0xffff0000, v{b1p[rt]}")
        a(f"v_lshlrev_b32 v{b1v[rt]+2}, 16, v{b1p[rt]+1}")
        a(f"v_and_b32 v{b1v[rt]+3}, 0xffff0000, v{b1p[rt]+1}")
    a(f"v_lshlrev_b32 v{vst}, 4, v{lane}")
    a(f"s_lshl_b32 s{sT}, s{sRB}, 3")
    a(f"s_lshl_b32 s{sT2}, s{sWave}, 1")
    a(f"s_add_u32 s{sT}, s{sT}, s{sT2}")
    a(f"s_mul_i32 s{sT}, s{sT}, 48")
    a(f"s_mul_i32 s{sT2}, s{sCB}, 3")
    a(f"s_add_u32 s{sT}, s{sT}, s{sT2}")
    for P in range(3):
        a(f"s_add_u32 s{sP[P]}, s{sP[P]}, s{sT}")
        a(f"s_lshl_b32 s{sP[P]}, s{sP[P]}, 10")
    a(f"s_mov_b32 s42, {f32(LOG2E)}"); a(f"s_mov_b32 s43, {f32(LOG2E)}")
    a("s_waitcnt lgkmcnt(0)")
    stamp(a)
    k = 0
    for P in range(3):
        for ct in range(2):
            op = outp[k % 2]; k += 1
            hs = []
            for o in range(2):
                rt = 2 * P + o
                for hf in range(2):
                    h = acc[rt][ct] + 2 * hf
                    tt = tmp[len(hs)]
                    a(f"v_pk_fma_f32 {v(tt,2)}, {v(csv[rt]+2*hf,2)}, {v(rr[ct],2)}, {v(b1v[rt]+2*hf,2)} op_sel:[0,1,0] op_sel_hi:[1,1,1]")
                    a(f"v_pk_fma_f32 {v(h,2)}, {v(h,2)}, {v(rr[ct],2)}, {v(tt,2)} op_sel:[0,0,0] op_sel_hi:[1,0,1]")
                    hs.append(h)
            for i, h in enumerate(hs):
                a(f"v_pk_mul_f32 {v(tmp[i],2)}, {v(h,2)}, s[42:43]")
            for i, h in enumerate(hs):
                a(f"v_min_f32 v{tmp[i]}, {f32(30.0)}, v{tmp[i]}")
                a(f"v_min_f32 v{tmp[i]+1}, {f32(30.0)}, v{tmp[i]+1}")
            for i, h in enumerate(hs):
                a(f"v_exp_f32 v{tmp[i]}, v{tmp[i]}")
                a(f"v_exp_f32 v{tmp[i]+1}, v{tmp[i]+1}")
            for i, h in enumerate(hs):
                a(f"v_pk_add_f32 {v(tmp[4+i],2)}, {v(tmp[i],2)}, 2.0 op_sel_hi:[1,0]")
            for i, h in enumerate(hs):
                a(f"v_pk_mul_f32 {v(tmp[i],2)}, {v(tmp[i],2)}, {v(tmp[4+i],2)}")
            for i, h in enumerate(hs):
                a(f"v_pk_add_f32 {v(tmp[4+i],2)}, {v(tmp[i],2)}, 2.0 op_sel_hi:[1,0]")
            for i, h in enumerate(hs):
                a(f"v_rcp_f32 v{tmp[4+i]}, v{tmp[4+i]}")
                a(f"v_rcp_f32 v{tmp[4+i]+1}, v{tmp[4+i]+1}")
            for i, h in enumerate(hs):
                a(f"v_pk_mul_f32 {v(h,2)}, {v(h,2)}, {v(tmp[i],2)}")
            for i, h in enumerate(hs):
                a(f"v_pk_mul_f32 {v(h,2)}, {v(h,2)}, {v(tmp[4+i],2)}")
            for i, h in enumerate(hs):
                a(f"v_cvt_pk_bf16_f32 v{op+i}, v{h}, v{h+1}")
            if ct == 0:
                a(f"buffer_store_dwordx4 {v(op,4)}, v{vst}, s[{sACT}:{sACT+3}], s{sP[P]} offen")
            else:
                a(f"s_add_u32 s{sT}, s{sP[P]}, {48*1024}")
                a(f"buffer_store_dwordx4 {v(op,4)}, v{vst}, s[{sACT}:{sACT+3}], s{sT} offen")
    stamp_end(a, 0)
    return R.hi

KG_S = 272
KG_WAVE = 64 * KG_S
COARSE = list(range(8)) + [256, 258, 260, 262, 512, 516, 768, 772, 1024, 1280, 1536, 1792, 2048]
def kgen(a, wg0):
    R = Alloc(1)
    lane = R(); t0 = R(); t1 = R(); t2 = R(); t3 = R()
    P = [[R() for _ in range(6)] for _ in range(3)]
    vdt = R(); vwr = R(); vrdA = R(); voff = R()
    accK = R(16, 4)
    FA = [R(4, 4) for _ in range(8)]; FB = [R(4, 4) for _ in range(8)]
    pr = lambda: R(2, 2)
    l1, l8, l256, W, Fc, Fn, G, Gn, T, T2, G2, G4, G6, V, a2b = [pr() for _ in range(15)]
    pk = [R() for _ in range(4)]
    sWave, sD, sT, sCnt = 24, 25, 26, 27
    SP = [8, 12, 16, 20, 28, 32]
    sLD, sKR = 36, 40
    stamp_begin(a)
    for i, sr in enumerate(SP):
        a(f"s_load_dwordx2 s[{sr}:{sr+1}], s[0:1], {8 + 8*i}")
    a(f"s_load_dwordx2 s[{sLD}:{sLD+1}], s[0:1], 56")
    a("s_load_dwordx2 s[4:5], s[0:1], 120")
    a(f"v_lshrrev_b32 v{t0}, 6, v0")
    a(f"v_and_b32 v{lane}, 63, v0")
    a(f"v_readfirstlane_b32 s{sWave}, v{t0}")
    a(f"s_sub_u32 s{sD}, s2, {wg0}")
    a(f"s_lshl_b32 s{sD}, s{sD}, 2")
    a(f"s_add_u32 s{sD}, s{sD}, s{sWave}")
    for sr in SP: srd(a, sr, size=D * N * 2)
    srd(a, sLD, size=D * 2)
    a(f"s_mul_i32 s{sT}, s{sD}, {N*2}")
    a(f"v_lshlrev_b32 v{voff}, 1, v{lane}")
    a(f"s_lshl_b32 s{sCnt}, s{sD}, 1")
    a(f"v_mov_b32 v{t1}, s{sCnt}")
    a("s_waitcnt lgkmcnt(0)")
    a(f"buffer_load_ushort v{vdt}, v{t1}, s[{sLD}:{sLD+3}], 0 offen")
    for p in range(3):
        for i, sr in enumerate(SP):
            a(f"buffer_load_ushort v{P[p][i]}, v{voff}, s[{sr}:{sr+3}], s{sT} offen offset:{128*p}")
    a(f"s_lshl_b32 s{sT}, s{sD}, 12")
    a(f"s_add_u32 s{sT}, s{sT}, {WS_KR}")
    srd_from(a, sKR, 4, f"s{sT}", 4096)
    a(f"s_mul_i32 s{sT}, s{sWave}, {KG_WAVE}")
    a(f"v_lshlrev_b32 v{vwr}, 2, v{lane}")
    a(f"v_add_u32 v{vwr}, s{sT}, v{vwr}")
    a(f"v_and_b32 v{t0}, 31, v{lane}")
    a(f"v_mul_u32_u24 v{t0}, {KG_S}, v{t0}")
    a(f"v_lshrrev_b32 v{t1}, 5, v{lane}")
    a(f"v_lshl_add_u32 v{t0}, v{t1}, 4, v{t0}")
    a(f"v_add_u32 v{vrdA}, s{sT}, v{t0}")
    for i in range(16): a(f"v_mov_b32 v{accK+i}, 0")
    a("s_waitcnt vmcnt(0)")
    stamp(a)
    a(f"v_lshlrev_b32 v{vdt}, 16, v{vdt}")
    a(f"v_mul_f32 v{t0}, {f32(LOG2E)}, v{vdt}")
    a(f"s_mov_b32 s{sT}, {f32(LOG2E)}")
    a(f"v_fma_f32 v{t1}, v{vdt}, s{sT}, -v{t0}")
    lo = LOG2E - struct.unpack("<f", struct.pack("<f", LOG2E))[0]
    a(f"v_fmac_f32 v{t1}, {f32(lo)}, v{vdt}")
    a(f"v_exp_f32 v{t0}, v{t0}")
    a(f"v_mul_f32 v{t1}, {f32(LN2)}, v{t1}")
    a(f"v_fma_f32 v{t0}, v{t0}, v{t1}, v{t0}")
    bf16r(a, vdt, t0)
    a(f"s_mov_b32 s{sCnt}, 0")

    def cmul(dst, e, m):
        a(f"v_pk_mul_f32 {v(T,2)}, {v(e,2)}, {v(m,2)} op_sel:[0,0] op_sel_hi:[0,1]")
        a(f"v_pk_fma_f32 {v(dst,2)}, {v(e,2)}, {v(m,2)}, {v(T,2)} op_sel:[1,1,0] op_sel_hi:[1,0,1] neg_lo:[0,1,0]")
    npk = [0]
    def put(src, row, conj):
        r_ = pk[npk[0] % 4]; npk[0] += 1
        a(f"v_cvt_pk_bf16_f32 v{r_}, v{src}, {'-' if conj else ''}v{src+1}")
        a(f"ds_write_b32 v{vwr}, v{r_} offset:{row*KG_S}")
    def cexp(dst, scale):
        if scale == 1:
            a(f"v_exp_f32 v{t0}, v{a2b}")
            a(f"v_fract_f32 v{t1}, v{a2b+1}")
        else:
            a(f"v_mul_f32 v{t0}, {f32(float(scale))}, v{a2b}")
            a(f"v_mul_f32 v{t1}, {f32(float(scale))}, v{a2b+1}")
            a(f"v_exp_f32 v{t0}, v{t0}")
            a(f"v_fract_f32 v{t1}, v{t1}")
        a(f"v_cos_f32 v{dst}, v{t1}")
        a(f"v_sin_f32 v{dst+1}, v{t1}")
        a(f"v_mul_f32 v{dst}, v{dst}, v{t0}")
        a(f"v_mul_f32 v{dst+1}, v{dst+1}, v{t0}")
    def mfmas():
        for ks in range(8):
            a(f"v_mfma_f32_32x32x16_bf16 {v(accK,16)}, {v(FA[ks],4)}, {v(FB[ks],4)}, {v(accK,16)}")

    a.label("KG_loop")
    a.flush_hist()
    p0 = P[0]
    for i in range(6): a(f"v_lshlrev_b32 v{p0[i]}, 16, v{p0[i]}")
    a(f"v_mul_f32 v{p0[0]}, v{vdt}, v{p0[0]}")
    a(f"v_mul_f32 v{p0[1]}, v{vdt}, v{p0[1]}")
    a(f"v_mul_f32 v{T2}, v{vdt}, v{p0[2]}")
    a(f"v_mul_f32 v{T2+1}, v{vdt}, v{p0[3]}")
    a(f"v_mul_f32 v{a2b}, {f32(LOG2E)}, v{p0[0]}")
    a(f"v_mul_f32 v{a2b+1}, {f32(1.0/(2*math.pi))}, v{p0[1]}")
    a(f"v_mov_b32 v{V}, v{p0[4]}")
    a(f"v_mov_b32 v{V+1}, v{p0[5]}")
    cmul(W, V, T2)
    cexp(l8, 8); cexp(l1, 1); cexp(l256, 256)
    a(f"s_cmp_eq_u32 s{sCnt}, 0")
    a("s_cbranch_scc1 KG_skip")
    a("s_waitcnt lgkmcnt(0)")
    mfmas()
    a.label("KG_skip")
    a(f"v_mov_b32 v{pk[3]}, 0x3f80")
    a(f"ds_write_b32 v{vwr}, v{pk[3]}")
    put(l8, 1, False)
    cur = l8; bufs = [Fc, Fn]
    for f in range(2, 32):
        nx = bufs[f % 2]
        cmul(nx, cur, l8); put(nx, f, False); cur = nx
    put(W, 32, True)
    cur = W
    dst_of = {1: G, 2: G2, 3: G, 4: G4, 5: G, 6: G6, 7: G}
    for c in range(1, 8):
        nx = dst_of[c]
        cmul(nx, cur, l1); put(nx, 32 + c, True); cur = nx
    row = {val: 32 + i for i, val in enumerate(COARSE)}
    cur = W
    for j in range(1, 9):
        nx = bufs[j % 2]
        cmul(nx, cur, l256); put(nx, row[256 * j], True); cur = nx
    cmul(G, G2, l256); put(G, row[258], True)
    cmul(G, G6, l256); put(G, row[262], True)
    cmul(G, G4, l256); put(G, row[260], True)
    cmul(Gn, G, l256); put(Gn, row[516], True)
    cmul(G, Gn, l256); put(G, row[772], True)
    for ks in range(8):
        a(f"ds_read_b128 {v(FA[ks],4)}, v{vrdA} offset:{32*ks}")
        a(f"ds_read_b128 {v(FB[ks],4)}, v{vrdA} offset:{32*KG_S + 32*ks}")
    for i in range(6):
        a(f"v_mov_b32 v{P[0][i]}, v{P[1][i]}")
        a(f"v_mov_b32 v{P[1][i]}, v{P[2][i]}")
    a(f"s_add_u32 s{sCnt}, s{sCnt}, 1")
    a(f"s_cmp_lt_u32 s{sCnt}, 3")
    a("s_cbranch_scc1 KG_loop")
    stamp(a)
    vB = P[0][0]; vS = P[0][1]; c_ = P[0][2]; u0 = P[0][3]; u1 = P[0][4]; vJ = P[0][5]
    a(f"v_and_b32 v{c_}, 31, v{lane}")
    a(f"v_lshlrev_b32 v{vB}, 5, v{c_}")
    a(f"v_mov_b32 v{vS}, 1")
    a(f"v_subrev_u32 v{u0}, 12, v{c_}")
    a(f"v_and_b32 v{u1}, 1, v{u0}")
    a(f"v_lshrrev_b32 v{u0}, 1, v{u0}")
    a(f"v_lshl_add_u32 v{u0}, v{u0}, 6, v{u1}")
    a(f"v_add_u32 v{u0}, 384, v{u0}")
    a(f"v_cmp_gt_u32 vcc, 16, v{c_}")
    a(f"v_cndmask_b32 v{vB}, v{vB}, v{u0}, vcc")
    a(f"v_cndmask_b32 v{vS}, v{vS}, 2, vcc")
    a(f"v_add_u32 v{u0}, 248, v{c_}")
    a(f"v_cmp_gt_u32 vcc, 12, v{c_}")
    a(f"v_cndmask_b32 v{vB}, v{vB}, v{u0}, vcc")
    a(f"v_cndmask_b32 v{vS}, v{vS}, 4, vcc")
    a(f"v_cmp_gt_u32 vcc, 8, v{c_}")
    a(f"v_cndmask_b32 v{vB}, v{vB}, v{c_}, vcc")
    a(f"v_cndmask_b32 v{vS}, v{vS}, 8, vcc")
    a(f"v_lshlrev_b32 v{vS}, 2, v{vS}")
    a(f"v_lshrrev_b32 v{u0}, 5, v{lane}")
    a(f"v_lshlrev_b32 v{u0}, 2, v{u0}")
    a(f"v_mul_u32_u24 v{u0}, v{u0}, v{vS}")
    a(f"v_lshl_add_u32 v{vB}, v{vB}, 2, v{u0}")
    a(f"s_mul_i32 s{sT}, s{sWave}, {KG_WAVE}")
    a(f"v_add_u32 v{vB}, s{sT}, v{vB}")
    a("s_waitcnt lgkmcnt(0)")
    mfmas()
    for g in range(4):
        for i in range(4):
            r_ = pk[i]
            a(f"v_mad_u32_u24 v{t0+ (i%2)}, v{vS}, {8*g+i}, v{vB}")
            a(f"v_cvt_pk_bf16_f32 v{r_}, v{accK+4*g+i}, v{accK+4*g+i}")
            a(f"ds_write_b32 v{t0+(i%2)}, v{r_}")
    O = [FA[i] for i in range(4)]
    Tm = FB[0]
    a(f"v_lshlrev_b32 v{u0}, 2, v{lane}")
    a(f"v_add_u32 v{u0}, s{sT}, v{u0}")
    a(f"v_lshl_add_u32 v{u1}, v{lane}, 2, v{u0}")
    for p in (2, 3):
        e0 = 384 + 64 * p
        a(f"ds_read_b32 v{O[p]}, v{u0} offset:{4*(e0+1)}")
        a(f"ds_read_b32 v{O[p]+2}, v{u0} offset:{4*e0}")
        a(f"ds_read_b32 v{O[p]+3}, v{u0} offset:{4*e0}")
    a(f"ds_read_b32 v{O[1]}, v{u1} offset:{4*(384+2)}")
    a(f"ds_read_b32 v{O[1]+1}, v{u1} offset:{4*(384+1)}")
    a(f"ds_read_b32 v{O[1]+3}, v{u1} offset:{4*384}")
    a(f"v_lshlrev_b32 v{t0}, 5, v{lane}")
    a(f"v_add_u32 v{t0}, s{sT}, v{t0}")
    a(f"v_lshlrev_b32 v{t1}, 4, v{lane}")
    a(f"v_add_u32 v{t1}, s{sT}, v{t1}")
    a("s_mov_b32 exec_hi, 0")
    a(f"ds_read_b128 {v(Tm,4)}, v{t0}")
    a(f"ds_read_b128 {v(Tm+4,4)}, v{t0} offset:16")
    a("s_mov_b32 exec_hi, -1")
    a("s_mov_b32 exec_lo, 0")
    for k_, (o0, o1) in enumerate([(0, 0), (1, 2), (2, 2), (3, 4)]):
        a(f"ds_read2_b32 {v(Tm+2*k_,2)}, v{t1} offset0:{128+o0} offset1:{128+o1}")
    a("s_mov_b32 exec_lo, -1")
    a(f"v_and_b32 v{t2}, 1, v{lane}")
    a(f"v_subrev_u32 v{t2}, 1, v{t2}")
    a(f"v_and_b32 v{t2}, 0xffff0000, v{t2}")
    a(f"v_mov_b32 v{t3}, 0xffff0000")
    a(f"v_sub_u32 v{vJ}, 63, v{lane}")
    a(f"v_lshlrev_b32 v{vJ}, 4, v{vJ}")
    a("s_waitcnt lgkmcnt(0)")
    for p in (2, 3):
        a(f"v_bfi_b32 v{O[p]+1}, v{t2}, v{O[p]+2}, v{O[p]}")
    a(f"v_bfi_b32 v{O[1]+2}, v{t3}, v{O[1]+3}, v{O[1]+1}")
    for m in range(4):
        a(f"v_bfi_b32 v{O[0]+m}, v{t3}, v{Tm+6-2*m}, v{Tm+7-2*m}")
    for p in range(4):
        a(f"buffer_store_dwordx4 {v(O[p],4)}, v{vJ}, s[{sKR}:{sKR+3}], 0 offen offset:{1024*(3-p)}")
    stamp_end(a, 0)
    return R.hi

LN_S = 1312
def lnrole(a, wg0):
    R = Alloc(1)
    lane = R(); t0 = R(); t1 = R(); t2 = R(); voff = R(); vlw = R(); vtr = R(); vst = R()
    Xr = [R(4, 4) for _ in range(10)]
    Wr = [R(4, 4) for _ in range(10)]
    U = [R(2, 2) for _ in range(40)]
    sm = R(2, 2); mb = R(2, 2); rs = R(2, 2); T = [R(2, 2) for _ in range(4)]
    ones = R()
    O = [R(4, 4) for _ in range(4)]
    sX, sW2, sXT, sWA = 8, 12, 16, 20
    sWave, sJ, sT, sT2 = 24, 25, 26, 27
    stamp_begin(a)
    a("s_load_dwordx2 s[8:9], s[0:1], 0")
    a("s_load_dwordx2 s[12:13], s[0:1], 96")
    a("s_load_dwordx2 s[4:5], s[0:1], 120")
    a(f"v_lshrrev_b32 v{t0}, 6, v0")
    a(f"v_and_b32 v{lane}, 63, v0")
    a(f"v_readfirstlane_b32 s{sWave}, v{t0}")
    a(f"s_sub_u32 s{sJ}, s2, {wg0}")
    srd(a, sX, size=L * D * 2); srd(a, sW2, size=F * D * 2)
    a(f"v_lshrrev_b32 v{t0}, 3, v0")
    a(f"v_and_b32 v{t1}, 7, v0")
    a(f"v_lshlrev_b32 v{t1}, 4, v{t1}")
    a(f"v_mul_u32_u24 v{voff}, 1280, v{t0}")
    a(f"v_add_u32 v{voff}, v{voff}, v{t1}")
    a(f"v_mul_u32_u24 v{vlw}, {LN_S}, v{t0}")
    a(f"v_add_u32 v{vlw}, v{vlw}, v{t1}")
    a(f"s_mul_i32 s{sT}, s{sJ}, {32*1280}")
    a("s_waitcnt lgkmcnt(0)")
    for i in range(10):
        a(f"buffer_load_dwordx4 {v(Xr[i],4)}, v{voff}, s[{sX}:{sX+3}], s{sT} offen offset:{128*i}")
    tokx = a.vtok()
    for i in range(10):
        a(f"buffer_load_dwordx4 {v(Wr[i],4)}, v{voff}, s[{sW2}:{sW2+3}], s{sT} offen offset:{128*i}")
    tokw = a.vtok()
    srd_from(a, sXT, 4, WS_XT, SZ_T)
    srd_from(a, sWA, 4, WS_W2A, SZ_W2A)
    srd_from(a, 28, 4, WS_FLAG, 4096)
    a(f"s_cmp_lg_u32 s{sJ}, 63")
    a(f"s_cselect_b32 s30, 0, s30")
    a(f"v_lshlrev_b32 v{t2}, 4, v0")
    for i in range(4): a(f"v_mov_b32 v{O[0]+i}, 0")
    a(f"buffer_store_dwordx4 {v(O[0],4)}, v{t2}, s[28:31], 0 offen")
    a(f"v_mov_b32 v{ones}, 0x3f803f80")
    a(f"v_mov_b32 v{sm}, 0")
    a.wait(vm=tokx)
    stamp(a)
    for i in range(40):
        a(f"v_dot2_f32_bf16 v{sm}, v{Xr[i//4] + i%4}, v{ones}, v{sm}")
    def red8(r_):
        a(f"v_add_f32_dpp v{r_}, v{r_}, v{r_} quad_perm:[1,0,3,2] row_mask:0xf bank_mask:0xf")
        a(f"v_add_f32_dpp v{r_}, v{r_}, v{r_} quad_perm:[2,3,0,1] row_mask:0xf bank_mask:0xf")
        a(f"v_add_f32_dpp v{r_}, v{r_}, v{r_} row_half_mirror row_mask:0xf bank_mask:0xf")
    for i in range(40):
        x = Xr[i//4] + i % 4
        a(f"v_lshlrev_b32 v{U[i]}, 16, v{x}")
        a(f"v_and_b32 v{U[i]+1}, 0xffff0000, v{x}")
    red8(sm)
    a(f"v_mul_f32 v{sm}, {f32(1.0/D)}, v{sm}")
    a(f"v_mov_b32 v{rs}, 0"); a(f"v_mov_b32 v{rs+1}, 0")
    for i in range(40):
        t = T[i % 4]
        a(f"v_pk_add_f32 {v(t,2)}, {v(U[i],2)}, {v(sm,2)} op_sel_hi:[1,0] neg_lo:[0,1] neg_hi:[0,1]")
        a(f"v_pk_fma_f32 {v(rs,2)}, {v(t,2)}, {v(t,2)}, {v(rs,2)}")
    a(f"v_add_f32 v{rs}, v{rs}, v{rs+1}")
    red8(rs)
    a(f"v_mul_f32 v{rs}, {f32(1.0/D)}, v{rs}")
    bf16r(a, rs, rs)
    a(f"v_add_f32 v{rs}, {f32(1e-5)}, v{rs}")
    bf16r(a, rs, rs)
    a(f"v_sqrt_f32 v{rs}, v{rs}")
    bf16r(a, rs, rs)
    a(f"v_rcp_f32 v{rs}, v{rs}")
    bf16r(a, mb, sm)
    for i in range(40):
        x = Xr[i//4] + i % 4; t = T[i % 4]
        a(f"v_pk_add_f32 {v(U[i],2)}, {v(U[i],2)}, {v(mb,2)} op_sel_hi:[1,0] neg_lo:[0,1] neg_hi:[0,1]")
        a(f"v_cvt_pk_bf16_f32 v{x}, v{U[i]}, v{U[i]+1}")
        a(f"v_lshlrev_b32 v{t}, 16, v{x}")
        a(f"v_and_b32 v{t+1}, 0xffff0000, v{x}")
        a(f"v_pk_mul_f32 {v(t,2)}, {v(t,2)}, {v(rs,2)} op_sel_hi:[1,0]")
        a(f"v_cvt_pk_bf16_f32 v{x}, v{t}, v{t+1}")
        if i % 4 == 3:
            a(f"ds_write_b128 v{vlw}, {v(Xr[i//4],4)} offset:{128*(i//4)}")
    a(f"v_lshrrev_b32 v{t0}, 4, v{lane}")
    a(f"v_bfe_u32 v{t1}, v{lane}, 2, 2")
    a(f"v_lshl_add_u32 v{t1}, v{t0}, 3, v{t1}")
    a(f"v_mul_u32_u24 v{t1}, {LN_S}, v{t1}")
    a(f"v_and_b32 v{t2}, 3, v{lane}")
    a(f"v_lshl_add_u32 v{t1}, v{t2}, 3, v{t1}")
    a(f"s_mul_i32 s{sT}, s{sWave}, 320")
    a(f"v_add_u32 v{vtr}, s{sT}, v{t1}")
    a(f"v_and_b32 v{t1}, 15, v{lane}")
    a(f"v_lshlrev_b32 v{t1}, 12, v{t1}")
    a(f"v_lshl_add_u32 v{vst}, v{t0}, 4, v{t1}")
    a(f"s_mul_i32 s{sT}, s{sWave}, {160*4096}")
    a(f"s_lshl_b32 s{sT2}, s{sJ}, 6")
    a(f"s_add_u32 s{sT}, s{sT}, s{sT2}")
    a("s_waitcnt lgkmcnt(0)")
    a("s_barrier")
    stamp(a)
    toks = {}
    def rd(i):
        o = O[i % 4]
        for e in range(2):
            a(f"ds_read_b64_tr_b16 {v(o+2*e,2)}, v{vtr} offset:{32*i + 4*e*LN_S}")
        toks[i] = a.ltok()
    for i in range(3): rd(i)
    for i in range(10):
        if i + 3 < 10: rd(i + 3)
        a.wait(lg=toks[i])
        a(f"buffer_store_dwordx4 {v(O[i%4],4)}, v{vst}, s[{sXT}:{sXT+3}], s{sT} offen")
        a(f"s_add_u32 s{sT}, s{sT}, {16*4096}")
    stamp(a)
    a(f"s_cmp_ge_u32 s{sJ}, 48")
    a("s_cbranch_scc1 LN_end")
    a("s_barrier")
    a.wait(vm=tokw)
    for i in range(10):
        a(f"ds_write_b128 v{vlw}, {v(Wr[i],4)} offset:{128*i}")
    vt8 = U[0]; vt4 = U[0] + 1
    a(f"v_lshrrev_b32 v{t1}, 2, v{lane}")
    a(f"v_mul_u32_u24 v{t1}, {LN_S}, v{t1}")
    a(f"s_mul_i32 s{sT}, s{sWave}, 320")
    a(f"v_add_u32 v{t1}, s{sT}, v{t1}")
    a(f"v_lshl_add_u32 v{vt8}, v{t2}, 4, v{t1}")
    a(f"v_lshl_add_u32 v{vt4}, v{t2}, 3, v{t1}")
    a(f"v_lshlrev_b32 v{vst}, 4, v{lane}")
    a(f"s_mul_i32 s{sT}, s{sWave}, {2*48*5*1024}")
    a(f"s_mul_i32 s{sT2}, s{sJ}, {5*1024}")
    a(f"s_add_u32 s{sT}, s{sT}, s{sT2}")
    a("s_waitcnt lgkmcnt(0)")
    a("s_barrier")
    def rd2(i):
        o = O[i % 4]; jd = i // 5; rt = i % 5
        for e in range(2):
            if rt < 4: a(f"ds_read_b64_tr_b16 {v(o+2*e,2)}, v{vt8} offset:{160*jd + 64*(rt>>1) + 8*(rt&1) + 16*e*LN_S}")
            else: a(f"ds_read_b64_tr_b16 {v(o+2*e,2)}, v{vt4} offset:{160*jd + 128 + 16*e*LN_S}")
        toks[i] = a.ltok()
    for i in range(3): rd2(i)
    for i in range(10):
        if i + 3 < 10: rd2(i + 3)
        a.wait(lg=toks[i])
        a(f"buffer_store_dwordx4 {v(O[i%4],4)}, v{vst}, s[{sWA}:{sWA+3}], s{sT} offen")
        a(f"s_add_u32 s{sT}, s{sT}, {1024 if i != 4 else 48*5*1024 - 4*1024}")
    a.label("LN_end")
    stamp_end(a, 0)
    return R.hi

CV_S = 4160
CV_K = [0, 4 * CV_S]
CV_U = [8 * CV_S + 512, 8 * CV_S + 512 + 4608, 8 * CV_S + 512 + 2 * 4608]
CV_RED = 8 * CV_S + 3 * 4608
CV_LDS = CV_RED + 32768
def conv(a):
    R = Alloc(1)
    lane = R(); t0 = R(); t1 = R(); t2 = R(); t3 = R()
    acc = [R(4, 4) for _ in range(8)]
    FA = [[R(4, 4) for _ in range(8)] for _ in range(2)]
    FB = [[R(4, 4) for _ in range(8)] for _ in range(2)]
    Kin = [R(8, 4) for _ in range(3)]
    Kt = [R(4, 4) for _ in range(3)]
    vA = R(); vBq = R(); vA0 = R(); vB0 = R(); vkw = R(); vrw = R(); vrr = R(); vur = R(); vso = R(); vz = R(4, 4)
    vdk = [R(), R()]
    sKR, sXT, sST, sDS, sKR2, sDBG = 8, 12, 16, 20, 28, 32
    sWave, sT, sT2, sCh, sPar, sCnt, sD2, sRound = 24, 25, 26, 27, 36, 37, 38, 39
    stamp_begin(a)
    a("s_load_dwordx2 s[4:5], s[0:1], 120")
    a(f"s_load_dwordx2 s[{sDS}:{sDS+1}], s[0:1], 64")
    a(f"v_lshrrev_b32 v{t0}, 6, v0")
    a(f"v_and_b32 v{lane}, 63, v0")
    a(f"v_readfirstlane_b32 s{sWave}, v{t0}")
    srd(a, sDS, size=D * 2)
    a(f"s_lshr_b32 s{sT}, s{sWave}, 1")
    a(f"s_and_b32 s{sPar}, s{sWave}, 1")
    a(f"s_lshl_b32 s{sCh}, s2, 1")
    a(f"s_add_u32 s{sCh}, s{sCh}, s{sT}")
    a(f"s_add_u32 s{sD2}, s2, 512")
    a("s_waitcnt lgkmcnt(0)")
    a(f"s_lshl_b32 s{sT2}, s{sCh}, 12")
    a(f"s_add_u32 s{sT2}, s{sT2}, {WS_KR}")
    srd_from(a, sKR, 4, f"s{sT2}", 4096)
    a(f"s_lshl_b32 s{sT2}, s{sD2}, 12")
    a(f"s_add_u32 s{sT2}, s{sT2}, {WS_KR}")
    srd_from(a, sKR2, 4, f"s{sT2}", 4096)
    a(f"s_cmp_lt_u32 s2, 128")
    a(f"s_cselect_b32 s{sKR2+2}, 4096, 0")
    srd_from(a, sXT, 4, WS_XT, SZ_T)
    srd_from(a, sST, 4, WS_ST, SZ_T)
    srd_from(a, sDBG, 4, WS_FLAG, 4096)
    a(f"v_lshlrev_b32 v{t1}, 4, v{lane}")
    a(f"v_mov_b32 v{vso}, v{t1}")
    a(f"s_lshl_b32 s{sT2}, s{sPar}, 11")
    for i in range(2):
        a(f"buffer_load_dwordx4 {v(Kin[i],4)}, v{t1}, s[{sKR}:{sKR+3}], s{sT2} offen offset:{1024*i}")
        a(f"buffer_load_dwordx2 {v(Kin[i]+4,2)}, v{t1}, s[{sKR}:{sKR+3}], s{sT2} offen offset:{1024*i+16}")
    tokK1 = a.vtok()
    a(f"s_mul_i32 s{sCnt}, s{sT}, 4608")
    a(f"s_add_u32 s{sCnt}, s{sCnt}, s{sT2}")
    a(f"s_add_u32 m0, s{sCnt}, {CV_U[0]}")
    a(f"s_lshl_b32 s{sCnt}, s{sCh}, 12")
    a(f"s_add_u32 s{sCnt}, s{sCnt}, s{sT2}")
    for i in range(2):
        a(f"buffer_load_dwordx4 v{t1}, s[{sXT}:{sXT+3}], s{sCnt} offen offset:{1024*i} lds")
    tokU1 = a.vtok()
    a(f"s_lshl_b32 s{sCnt}, s{sCh}, 1")
    a(f"v_mov_b32 v{t2}, s{sCnt}")
    a(f"buffer_load_ushort v{vdk[0]}, v{t2}, s[{sDS}:{sDS+3}], 0 offen")
    a(f"s_lshl_b32 s{sCnt}, s{sD2}, 1")
    a(f"v_mov_b32 v{t3}, s{sCnt}")
    a(f"buffer_load_ushort v{vdk[1]}, v{t3}, s[{sDS}:{sDS+3}], 0 offen")
    a(f"s_lshl_b32 s{sT2}, s{sWave}, 10")
    a(f"buffer_load_dwordx4 {v(Kin[2],4)}, v{t1}, s[{sKR2}:{sKR2+3}], s{sT2} offen")
    a(f"buffer_load_dwordx2 {v(Kin[2]+4,2)}, v{t1}, s[{sKR2}:{sKR2+3}], s{sT2} offen offset:16")
    a(f"s_add_u32 m0, s{sT2}, {CV_U[2]}")
    a(f"s_lshl_b32 s{sCnt}, s{sD2}, 12")
    a(f"s_add_u32 s{sCnt}, s{sCnt}, s{sT2}")
    a(f"buffer_load_dwordx4 v{t1}, s[{sXT}:{sXT+3}], s{sCnt} offen lds")
    tokR2 = a.vtok()
    for i in range(4): a(f"v_mov_b32 v{vz+i}, 0")
    a(f"s_mul_i32 s{sCnt}, s{sWave}, 4608")
    a(f"s_add_u32 s{sCnt}, s{sCnt}, {CV_U[0] - 512}")
    a(f"v_add_u32 v{t2}, s{sCnt}, v{t1}")
    a(f"v_lshrrev_b32 v{t3}, 2, v{lane}")
    a(f"v_mul_u32_u24 v{t3}, {CV_S}, v{t3}")
    a(f"v_and_b32 v{t0}, 3, v{lane}")
    a(f"v_lshl_add_u32 v{t3}, v{t0}, 4, v{t3}")
    a(f"v_add_u32 v{t3}, 4096, v{t3}")
    a(f"s_cmp_eq_u32 s{sWave}, 3")
    a(f"s_cselect_b64 vcc, -1, 0")
    a(f"v_cndmask_b32 v{t2}, v{t2}, v{t3}, vcc")
    a("s_mov_b32 exec_hi, 0")
    a(f"ds_write_b128 v{t2}, {v(vz,4)}")
    a("s_mov_b32 exec_hi, -1")
    a(f"v_and_b32 v{t0}, 15, v{lane}")
    a(f"v_sub_u32 v{t2}, 15, v{t0}")
    a(f"v_and_b32 v{t3}, 3, v{t2}")
    a(f"v_sub_u32 v{t2}, v{t2}, v{t3}")
    a(f"v_mul_u32_u24 v{t3}, {CV_S}, v{t3}")
    a(f"v_lshl_add_u32 v{t3}, v{t2}, 1, v{t3}")
    a(f"v_lshrrev_b32 v{t2}, 4, v{lane}")
    a(f"v_lshl_add_u32 v{vA0}, v{t2}, 4, v{t3}")
    a(f"v_lshlrev_b32 v{t3}, 4, v{t2}")
    a(f"v_lshl_add_u32 v{vB0}, v{t0}, 5, v{t3}")
    a(f"v_lshrrev_b32 v{t3}, 1, v{t2}")
    a(f"v_lshlrev_b32 v{t3}, 3, v{t3}")
    a(f"v_xor_b32 v{t3}, v{t3}, v{t0}")
    a(f"v_lshlrev_b32 v{t3}, 4, v{t3}")
    a(f"v_lshl_add_u32 v{t3}, v{t2}, 8, v{t3}")
    a(f"s_lshl_b32 s{sCnt}, s{sWave}, 13")
    a(f"s_add_u32 s{sCnt}, s{sCnt}, {CV_RED}")
    a(f"v_add_u32 v{vrw}, s{sCnt}, v{t3}")
    a(f"v_bfe_u32 v{t0}, v{lane}, 1, 4")
    a(f"v_and_b32 v{t2}, 1, v{lane}")
    a(f"v_lshlrev_b32 v{t3}, 3, v{t2}")
    a(f"v_xor_b32 v{t0}, v{t0}, v{t3}")
    a(f"v_lshlrev_b32 v{t0}, 4, v{t0}")
    a(f"v_lshl_add_u32 v{t0}, v{t2}, 9, v{t0}")
    a(f"v_lshrrev_b32 v{t2}, 5, v{lane}")
    a(f"v_lshl_add_u32 v{vrr}, v{t2}, 10, v{t0}")
    def build_copies(kin, vaddr, off):
        for k in range(4): a(f"v_alignbyte_b32 v{Kt[0]+k}, v{kin+k+1}, v{kin+k}, 2")
        for k in range(4): a(f"v_mov_b32 v{Kt[1]+k}, v{kin+k+1}")
        for k in range(4): a(f"v_alignbyte_b32 v{Kt[2]+k}, v{kin+k+2}, v{kin+k+1}, 2")
        a(f"ds_write_b128 v{vaddr}, {v(kin,4)} offset:{off}")
        for c in range(3): a(f"ds_write_b128 v{vaddr}, {v(Kt[c],4)} offset:{off + (c+1)*CV_S}")
    a(f"s_mul_i32 s{sCnt}, s{sT}, {4*CV_S}")
    a(f"s_lshl_b32 s{sT2}, s{sPar}, 11")
    a(f"s_add_u32 s{sCnt}, s{sCnt}, s{sT2}")
    a(f"v_add_u32 v{vkw}, s{sCnt}, v{t1}")
    a.wait(vm=tokK1)
    stamp(a)
    build_copies(Kin[0], vkw, 0)
    a("s_nop 1")
    build_copies(Kin[1], vkw, 1024)
    a(f"s_mul_i32 s{sCnt}, s{sT}, {4*CV_S}")
    a(f"s_lshl_b32 s{sT2}, s{sPar}, 8")
    a(f"s_sub_u32 s{sCnt}, s{sCnt}, s{sT2}")
    a(f"s_add_u32 s{sCnt}, s{sCnt}, {32*14}")
    a(f"v_add_u32 v{vA}, s{sCnt}, v{vA0}")
    a(f"s_mul_i32 s{sCnt}, s{sT}, 4608")
    a(f"s_sub_u32 s{sCnt}, s{sCnt}, s{sT2}")
    a(f"s_add_u32 s{sCnt}, s{sCnt}, {CV_U[0] - 512 + 32*15}")
    a(f"v_add_u32 v{vBq}, s{sCnt}, v{vB0}")
    a(f"s_mov_b32 s{sCnt}, 2")
    a(f"s_mov_b32 s{sRound}, 0")
    a.wait(vm=tokU1, lg=a.ltok())
    a("s_barrier")
    stamp(a)

    def reads(st):
        toks = []
        for j in range(8):
            a(f"ds_read_b128 {v(FB[st][j],4)}, v{vBq} offset:{512*j}")
            a(f"ds_read_b64 {v(FA[st][j],2)}, v{vA} offset:{512*(7-j)}")
            a(f"ds_read_b64 {v(FA[st][j]+2,2)}, v{vA} offset:{512*(7-j)+8}")
        a(f"v_subrev_u32 v{vA}, 64, v{vA}")
        a(f"v_subrev_u32 v{vBq}, 64, v{vBq}")
    def group(st, nxt):
        pairs = [(c, j) for c in range(8) for j in range(c + 1)]
        rd = []
        for j in range(8):
            rd.append(f"ds_read_b128 {v(FB[nxt][j],4)}, v{vBq} offset:{512*j}")
            rd.append(f"ds_read_b64 {v(FA[nxt][j],2)}, v{vA} offset:{512*(7-j)}")
            rd.append(f"ds_read_b64 {v(FA[nxt][j]+2,2)}, v{vA} offset:{512*(7-j)+8}")
        rd.append(f"v_subrev_u32 v{vA}, 64, v{vA}")
        rd.append(f"v_subrev_u32 v{vBq}, 64, v{vBq}")
        pairs.sort(key=lambda cj: (cj[1], cj[0]))
        for i, (c, j) in enumerate(pairs):
            a(f"v_mfma_f32_16x16x32_bf16 {v(acc[c],4)}, {v(FA[st][j],4)}, {v(FB[st][c-j],4)}, {v(acc[c],4)}")
            if i < len(rd): a(rd[i])

    a.label("CV_round")
    a.flush_hist()
    reads(0)
    for c in range(8):
        for i in range(4): a(f"v_mov_b32 v{acc[c]+i}, 0")
    a.label("CV_loop")
    a("s_waitcnt lgkmcnt(0)")
    group(0, 1)
    a("s_waitcnt lgkmcnt(0)")
    group(1, 0)
    a(f"s_sub_u32 s{sCnt}, s{sCnt}, 1")
    a(f"s_cmp_lg_u32 s{sCnt}, 0")
    a("s_cbranch_scc1 CV_loop")
    for c in range(8):
        a(f"ds_write_b128 v{vrw}, {v(acc[c],4)} offset:{1024*c}")
    a("s_waitcnt lgkmcnt(0)")
    a("s_barrier")
    Rd = FA[1]
    Uq = FB[1]
    def finish(npart, nblk, vdsk):
        for b in range(nblk):
            base = b * npart * 2
            for p in range(1, npart):
                for e in range(2):
                    for hf in range(2):
                        a(f"v_pk_add_f32 {v(Rd[base+e]+2*hf,2)}, {v(Rd[base+e]+2*hf,2)}, {v(Rd[base+2*p+e]+2*hf,2)}")
            o = FB[0][b]; T = FB[0][4]; T2 = FB[0][5]
            for m in range(4):
                y = Rd[base + m // 2] + 2 * (m % 2)
                u = Uq[b] + m
                a(f"v_cvt_pk_bf16_f32 v{o+m}, v{y}, v{y+1}")
                a(f"v_lshlrev_b32 v{T}, 16, v{u}")
                a(f"v_and_b32 v{T+1}, 0xffff0000, v{u}")
                a(f"v_pk_mul_f32 {v(T,2)}, {v(T,2)}, {v(vdsk,2)} op_sel_hi:[1,0]")
                a(f"v_cvt_pk_bf16_f32 v{T+2}, v{T}, v{T+1}")
                a(f"v_lshlrev_b32 v{T}, 16, v{T+2}")
                a(f"v_and_b32 v{T+1}, 0xffff0000, v{T+2}")
                a(f"v_lshlrev_b32 v{T2}, 16, v{o+m}")
                a(f"v_and_b32 v{T2+1}, 0xffff0000, v{o+m}")
                a(f"v_pk_add_f32 {v(T,2)}, {v(T,2)}, {v(T2,2)}")
                a(f"v_cvt_pk_bf16_f32 v{o+m}, v{T}, v{T+1}")
            a(f"buffer_store_dwordx4 {v(o,4)}, v{vso}, s[{sST}:{sST+3}], s{sT2} offen offset:{1024*b} sc1")
    dsk = FB[0][6]
    a(f"s_cmp_lg_u32 s{sRound}, 0")
    a("s_cbranch_scc1 CV_fin2")
    stamp(a)
    a(f"s_lshl_b32 s{sCnt}, s{sT}, 14")
    a(f"s_lshl_b32 s{sT2}, s{sPar}, 12")
    a(f"s_add_u32 s{sCnt}, s{sCnt}, s{sT2}")
    a(f"s_add_u32 s{sCnt}, s{sCnt}, {CV_RED}")
    a(f"v_add_u32 v{t0}, s{sCnt}, v{vrr}")
    for b in range(2):
        for p in range(2):
            for e in range(2):
                a(f"ds_read_b128 {v(Rd[(b*2+p)*2+e],4)}, v{t0} offset:{8192*p + 2048*b + 256*e}")
    a(f"s_mul_i32 s{sCnt}, s{sT}, 4608")
    a(f"s_lshl_b32 s{sT2}, s{sPar}, 11")
    a(f"s_add_u32 s{sCnt}, s{sCnt}, s{sT2}")
    a(f"v_add_u32 v{t2}, s{sCnt}, v{t1}")
    for b in range(2):
        a(f"ds_read_b128 {v(Uq[b],4)}, v{t2} offset:{CV_U[0] + 1024*b}")
    a(f"s_lshl_b32 s{sCnt}, s{sWave}, 10")
    a(f"v_add_u32 v{vkw}, s{sCnt}, v{t1}")
    a("s_waitcnt vmcnt(0)")
    build_copies(Kin[2], vkw, 0)
    a(f"v_lshlrev_b32 v{dsk}, 16, v{vdk[0]}")
    a(f"s_lshl_b32 s{sCnt}, s{sCh}, 12")
    a(f"s_add_u32 s{sT2}, s{sT2}, s{sCnt}")
    a("s_waitcnt lgkmcnt(0)")
    finish(2, 2, dsk)
    stamp(a)
    a(f"s_lshl_b32 s{sT2}, s{sWave}, 7")
    a(f"s_sub_u32 s{sCnt}, {32*14}, s{sT2}")
    a(f"v_add_u32 v{vA}, s{sCnt}, v{vA0}")
    a(f"s_sub_u32 s{sCnt}, {CV_U[2] - 512 + 32*15}, s{sT2}")
    a(f"v_add_u32 v{vBq}, s{sCnt}, v{vB0}")
    a("s_waitcnt vmcnt(0)")
    a("s_barrier")
    stamp(a)
    a(f"s_cmp_lg_u32 s{sWave}, 0")
    a("s_cbranch_scc1 CV_nosig1")
    a(f"s_mul_i32 s{sCnt}, s2, 1639")
    a(f"s_lshr_b32 s{sCnt}, s{sCnt}, 16")
    a(f"s_lshl_b32 s{sCnt}, s{sCnt}, 8")
    a(f"v_mov_b32 v{t0}, s{sCnt}")
    a(f"v_mov_b32 v{t2}, 2")
    a("s_mov_b64 exec, 1")
    a(f"buffer_atomic_add v{t2}, v{t0}, s[{sDBG}:{sDBG+3}], 0 offen")
    a("s_mov_b64 exec, -1")
    a.label("CV_nosig1")
    a(f"s_cmp_ge_u32 s2, 128")
    a("s_cbranch_scc1 CV_end")
    a(f"s_mov_b32 s{sCnt}, 1")
    a(f"s_mov_b32 s{sRound}, 1")
    a("s_branch CV_round")
    a.label("CV_fin2")
    a.flush_hist()
    stamp(a)
    a(f"s_lshl_b32 s{sCnt}, s{sWave}, 11")
    a(f"s_add_u32 s{sCnt}, s{sCnt}, {CV_RED}")
    a(f"v_add_u32 v{t0}, s{sCnt}, v{vrr}")
    for p in range(4):
        for e in range(2):
            a(f"ds_read_b128 {v(Rd[p*2+e],4)}, v{t0} offset:{8192*p + 256*e}")
    a(f"ds_read_b128 {v(Uq[0],4)}, v{vkw} offset:{CV_U[2]}")
    a(f"v_lshlrev_b32 v{dsk}, 16, v{vdk[1]}")
    a(f"s_lshl_b32 s{sT2}, s{sWave}, 10")
    a(f"s_lshl_b32 s{sCnt}, s{sD2}, 12")
    a(f"s_add_u32 s{sT2}, s{sT2}, s{sCnt}")
    a("s_waitcnt lgkmcnt(0)")
    finish(4, 1, dsk)
    a("s_waitcnt vmcnt(0)")
    a("s_barrier")
    a(f"s_cmp_lg_u32 s{sWave}, 0")
    a("s_cbranch_scc1 CV_end")
    a(f"s_cmp_ge_u32 s{sD2}, 560")
    a(f"s_cselect_b32 s{sCnt}, 7, 6")
    a(f"s_lshl_b32 s{sCnt}, s{sCnt}, 8")
    a(f"v_mov_b32 v{t0}, s{sCnt}")
    a(f"v_mov_b32 v{t2}, 1")
    a("s_mov_b64 exec, 1")
    a(f"buffer_atomic_add v{t2}, v{t0}, s[{sDBG}:{sDBG+3}], 0 offen")
    a.label("CV_end")
    stamp_end(a, 1)
    return R.hi

def gemm2(a, wg0):
    R = Alloc(1)
    lane = R(); t0 = R(); t1 = R(); t2 = R(); t3 = R()
    acc = [[R(4, 4) for ct in range(4)] for rt in range(5)]
    NST = 4
    FA = [[R(4, 4) for _ in range(5)] for _ in range(NST)]
    FB = [[R(4, 4) for _ in range(4)] for _ in range(NST)]
    vA = R(); vA2 = R(); vB = [R() for _ in range(4)]
    xr = R(10, 4); vxo = R(); vxo2 = R()
    sWA, sACT, sX, sOUT, sST, sDBG = 8, 12, 16, 20, 28, 32
    sWave, sT, sT2, sTB, sJD, sOA, sOB = 24, 25, 26, 27, 36, 37, 38
    sK, sOA0, sOB0 = 39, 40, 41
    stamp_begin(a)
    a("s_load_dwordx2 s[4:5], s[0:1], 120")
    a(f"s_load_dwordx2 s[{sX}:{sX+1}], s[0:1], 0")
    a(f"s_load_dwordx2 s[{sOUT}:{sOUT+1}], s[0:1], 104")
    a(f"v_lshrrev_b32 v{t0}, 6, v0")
    a(f"v_and_b32 v{lane}, 63, v0")
    a(f"v_readfirstlane_b32 s{sWave}, v{t0}")
    a(f"s_sub_u32 s{sT}, s2, {wg0}")
    a(f"s_lshr_b32 s{sT2}, s{sT}, 3")
    a(f"s_and_b32 s{sT}, s{sT}, 7")
    a(f"s_lshr_b32 s{sTB}, s{sT}, 1")
    a(f"s_lshl_b32 s{sTB}, s{sTB}, 3")
    a(f"s_and_b32 s{sJD}, s{sT2}, 7")
    a(f"s_add_u32 s{sTB}, s{sTB}, s{sJD}")
    a(f"s_and_b32 s{sJD}, s{sT}, 1")
    a(f"s_lshl_b32 s{sJD}, s{sJD}, 2")
    a(f"s_lshr_b32 s{sT2}, s{sT2}, 3")
    a(f"s_add_u32 s{sJD}, s{sJD}, s{sT2}")
    srd(a, sX, size=L * D * 2); srd(a, sOUT, size=L * D * 2)
    a(f"v_lshlrev_b32 v{vA}, 4, v{lane}")
    a(f"v_add_u32 v{vA2}, 4096, v{vA}")
    for ct in range(4):
        a(f"s_add_u32 s{sT}, s{sWave}, {ct}")
        a(f"s_and_b32 s{sT}, s{sT}, 3")
        a(f"s_mul_i32 s{sT}, s{sT}, {48*1024}")
        a(f"v_add_u32 v{vB[ct]}, s{sT}, v{vA}")
    a(f"s_mul_i32 s{sT}, s{sWave}, 12")
    a(f"s_mul_i32 s{sOA}, s{sJD}, 48")
    a(f"s_add_u32 s{sOA}, s{sOA}, s{sT}")
    a(f"s_mul_i32 s{sOA}, s{sOA}, 5120")
    a(f"s_mul_i32 s{sOB}, s{sTB}, 192")
    a(f"s_add_u32 s{sOB}, s{sOB}, s{sT}")
    a(f"s_lshl_b32 s{sOB}, s{sOB}, 10")
    a(f"s_mov_b32 s{sOA0}, s{sOA}")
    a(f"s_mov_b32 s{sOB0}, s{sOB}")
    a(f"s_and_b32 s{sK}, s{sJD}, 3")
    a(f"s_mul_i32 s{sK}, s{sK}, 3")
    a(f"s_and_b32 s{sT}, s{sTB}, 7")
    a(f"s_mul_i32 s{sT}, s{sT}, 3")
    a(f"s_lshr_b32 s{sT}, s{sT}, 1")
    a(f"s_add_u32 s{sK}, s{sK}, s{sT}")
    a(f"s_lshr_b32 s{sT}, s{sTB}, 3")
    a(f"s_add_u32 s{sK}, s{sK}, s{sT}")
    a(f"s_cmp_ge_u32 s{sK}, 12")
    a(f"s_cselect_b32 s{sT}, 12, 0")
    a(f"s_sub_u32 s{sK}, s{sK}, s{sT}")
    if not ROT2: a(f"s_mov_b32 s{sK}, 0")
    a(f"s_mul_i32 s{sT}, s{sK}, 5120")
    a(f"s_add_u32 s{sOA}, s{sOA}, s{sT}")
    a(f"s_lshl_b32 s{sT}, s{sK}, 10")
    a(f"s_add_u32 s{sOB}, s{sOB}, s{sT}")
    a("s_waitcnt lgkmcnt(0)")
    srd_from(a, sWA, 4, WS_W2A, WS_ACT - WS_W2A + SZ_ACT)
    srd_from(a, sACT, 4, WS_ACT, SZ_ACT)
    vpf = xr; vpd = xr + 1; vps = xr + 2
    if PF2:
        a(f"s_sub_u32 s3, s2, {wg0}")
        a(f"s_lshr_b32 s{sT2}, s3, 3")
        a(f"s_bfe_u32 s{sT}, s3, 0x20001")
        a(f"s_lshl_b32 s{sT}, s{sT}, 5")
        a(f"s_add_u32 s{sT}, s{sT}, s{sT2}")
        a(f"s_mul_i32 s{sT}, s{sT}, 48")
        a(f"s_mul_i32 s3, s{sWave}, 12")
        a(f"s_add_u32 s{sT}, s{sT}, s3")
        a(f"s_lshl_b32 s{sT}, s{sT}, 10")
        a(f"s_add_u32 s{sT}, s{sT}, {WS_ACT - WS_W2A}")
        a(f"v_lshlrev_b32 v{t0}, 7, v{lane}")
        a(f"v_add_u32 v{t0}, s{sT}, v{t0}")
        a(f"v_subrev_u32 v{t1}, 32, v{lane}")
        a(f"v_min_u32 v{t1}, 19, v{t1}")
        a(f"v_mul_u32_u24 v{t2}, 52, v{t1}")
        a(f"v_lshrrev_b32 v{t2}, 8, v{t2}")
        a(f"v_mul_u32_u24 v{t3}, 5, v{t2}")
        a(f"v_sub_u32 v{t1}, v{t1}, v{t3}")
        a(f"v_mul_u32_u24 v{t2}, 5120, v{t2}")
        a(f"v_lshl_add_u32 v{t1}, v{t1}, 7, v{t2}")
        a(f"s_and_b32 s{sT2}, s{sT2}, 7")
        a(f"s_mul_i32 s{sT2}, s{sT2}, 640")
        a(f"s_add_u32 s{sT2}, s{sT2}, s{sOA0}")
        a(f"v_add_u32 v{t1}, s{sT2}, v{t1}")
        a(f"v_cmp_gt_u32 vcc, 32, v{lane}")
        a(f"v_cndmask_b32 v{vpf}, v{t1}, v{t0}, vcc")
        a(f"v_mov_b32 v{t0}, 4096")
        a(f"v_mov_b32 v{t1}, 20480")
        a(f"v_cndmask_b32 v{vps}, v{t1}, v{t0}, vcc")
        for i in range(2):
            a(f"buffer_load_dword v{vpd}, v{vpf}, s[{sWA}:{sWA+3}], 0 offen {PFMOD}")
            a(f"v_add_u32 v{vpf}, v{vpf}, v{vps}")
    tok = {}
    def issue(k):
        st = k % NST
        for ct in range(4):
            a(f"buffer_load_dwordx4 {v(FB[st][ct],4)}, v{vB[ct]}, s[{sACT}:{sACT+3}], s{sOB} offen")
        for rt in range(5):
            if rt < 4: a(f"buffer_load_dwordx4 {v(FA[st][rt],4)}, v{vA}, s[{sWA}:{sWA+3}], s{sOA} offen offset:{1024*rt}")
            else: a(f"buffer_load_dwordx4 {v(FA[st][rt],4)}, v{vA2}, s[{sWA}:{sWA+3}], s{sOA} offen")
            tok[(k, rt)] = a.vtok()
        if k < 11:
            a(f"s_add_u32 s{sOA}, s{sOA}, 5120")
            a(f"s_add_u32 s{sOB}, s{sOB}, 1024")
            a(f"s_add_u32 s{sK}, s{sK}, 1")
            a(f"s_cmp_eq_u32 s{sK}, 12")
            a(f"s_cselect_b32 s{sOA}, s{sOA0}, s{sOA}")
            a(f"s_cselect_b32 s{sOB}, s{sOB0}, s{sOB}")
    for k in range(NST):
        issue(k)
        if k == 1 and PF2: a(f"buffer_load_dword v{vpd}, v{vpf}, s[{sWA}:{sWA+3}], 0 offen {PFMOD}")
    srd_from(a, sST, 4, WS_ST, SZ_T)
    srd_from(a, sDBG, 4, WS_FLAG, 4096)
    a(f"s_lshl_b32 s{sT}, s{sTB}, 6")
    a(f"s_lshl_b32 s{sT2}, s{sWave}, 4")
    a(f"s_add_u32 s{sT}, s{sT}, s{sT2}")
    a(f"v_and_b32 v{t0}, 15, v{lane}")
    a(f"v_add_u32 v{t0}, s{sT}, v{t0}")
    a(f"v_mul_u32_u24 v{t1}, 1280, v{t0}")
    a(f"s_mul_i32 s{sT2}, s{sJD}, 160")
    a(f"v_add_u32 v{t1}, s{sT2}, v{t1}")
    a(f"v_lshrrev_b32 v{t2}, 4, v{lane}")
    a(f"v_lshl_add_u32 v{vxo}, v{t2}, 4, v{t1}")
    a(f"v_lshl_add_u32 v{vxo2}, v{t2}, 3, v{t1}")
    for k in range(12):
        st = k % NST
        for rt in range(5):
            a.wait(vm=tok[(k, rt)])
            for ct in range(4):
                c = "0" if k == 0 else v(acc[rt][ct], 4)
                a(f"v_mfma_f32_16x16x32_bf16 {v(acc[rt][ct],4)}, {v(FA[st][rt],4)}, {v(FB[st][ct],4)}, {c}")
        if k in (0, 3, 7): stamp(a)
        if k + NST < 12: issue(k + NST)
        if k == 7:
            a(f"buffer_load_dwordx4 {v(xr,4)}, v{vxo}, s[{sX}:{sX+3}], 0 offen")
            a(f"buffer_load_dwordx4 {v(xr+4,4)}, v{vxo}, s[{sX}:{sX+3}], 0 offen offset:64")
            a(f"buffer_load_dwordx2 {v(xr+8,2)}, v{vxo2}, s[{sX}:{sX+3}], 0 offen offset:128")
    stamp(a)
    E = Alloc(FA[0][0], limit=FB[NST-1][3] + 4)
    Pr = [[E(4, 4) for rt in range(5)] for p in range(3)]
    sv = E(20, 4); T = [E(2, 2) for _ in range(10)]; op = E(10, 4); vso = E(); vso2 = E(); vpl = E(); vfl = E()
    for ct in range(1, 4):
        a(f"s_add_u32 s{sT2}, s{sWave}, {ct}")
        a(f"s_and_b32 s{sT2}, s{sT2}, 3")
        a(f"s_mul_i32 s{sT2}, s{sT2}, 15360")
        a(f"v_add_u32 v{t3}, s{sT2}, v{vA}")
        for rt in range(5):
            a(f"ds_write_b128 v{t3}, {v(acc[rt][ct],4)} offset:{(ct-1)*5120 + rt*1024}")
    a(f"s_lshl_b32 s{sT2}, s{sJD}, 8")
    a(f"v_mov_b32 v{vpl}, s{sT2}")
    a(f"s_mul_i32 s{sT2}, s{sJD}, {80*4096}")
    a(f"v_lshlrev_b32 v{t0}, 1, v{t0}")
    a(f"v_add_u32 v{t0}, s{sT2}, v{t0}")
    a(f"v_lshl_add_u32 v{vso}, v{t2}, 15, v{t0}")
    a(f"v_lshl_add_u32 v{vso2}, v{t2}, 14, v{t0}")
    a(f"s_mov_b32 s{sT}, 0")
    a(f"s_cmp_lg_u32 s{sWave}, 0")
    a("s_cbranch_scc1 G2_ready")
    a.label("G2_poll")
    a.flush_hist()
    a(f"buffer_load_dword v{vfl}, v{vpl}, s[{sDBG}:{sDBG+3}], 0 offen sc1")
    a("s_waitcnt vmcnt(0)")
    a(f"v_readfirstlane_b32 s{sT2}, v{vfl}")
    a(f"s_cmp_ge_u32 s{sT2}, 80")
    a("s_cbranch_scc1 G2_ready")
    a("s_sleep 16")
    a(f"s_add_u32 s{sT}, s{sT}, 1")
    a(f"s_cmp_lt_u32 s{sT}, 0x8000")
    a("s_cbranch_scc1 G2_poll")
    a.label("G2_ready")
    a.flush_hist()
    a("s_waitcnt lgkmcnt(0)")
    a("s_barrier")
    stamp(a)
    for j in range(20):
        if j < 16:
            d = 32 * (j // 8) + j % 8
            a(f"s_mov_b32 s{sT2}, {d*4096}")
            a(f"buffer_load_ushort v{sv+j}, v{vso}, s[{sST}:{sST+3}], s{sT2} offen sc1")
        else:
            a(f"s_mov_b32 s{sT2}, {(64 + j - 16)*4096}")
            a(f"buffer_load_ushort v{sv+j}, v{vso2}, s[{sST}:{sST+3}], s{sT2} offen sc1")
    a(f"s_mul_i32 s{sT2}, s{sWave}, 15360")
    a(f"v_add_u32 v{t3}, s{sT2}, v{vA}")
    for p in range(3):
        for rt in range(5):
            a(f"ds_read_b128 {v(Pr[p][rt],4)}, v{t3} offset:{p*5120 + rt*1024}")
    a(f"s_mov_b32 s42, {f32(-LOG2E)}"); a(f"s_mov_b32 s43, {f32(-LOG2E)}")
    a("s_waitcnt lgkmcnt(0)")
    o2 = []
    for rt in range(5):
        for hf in range(2):
            d = acc[rt][0] + 2 * hf
            for p in range(3):
                a(f"v_pk_add_f32 {v(d,2)}, {v(d,2)}, {v(Pr[p][rt]+2*hf,2)}")
            o2.append(d)
    for i, d in enumerate(o2):
        a(f"v_cvt_pk_bf16_f32 v{T[i]}, v{d}, v{d+1}")
        a(f"v_lshlrev_b32 v{d}, 16, v{T[i]}")
        a(f"v_and_b32 v{d+1}, 0xffff0000, v{T[i]}")
        a(f"v_pk_mul_f32 {v(T[i],2)}, {v(d,2)}, s[42:43]")
    for i, d in enumerate(o2):
        a(f"v_exp_f32 v{T[i]}, v{T[i]}")
        a(f"v_exp_f32 v{T[i]+1}, v{T[i]+1}")
    for i, d in enumerate(o2):
        a(f"v_pk_add_f32 {v(T[i],2)}, {v(T[i],2)}, 1.0 op_sel_hi:[1,0]")
    for i, d in enumerate(o2):
        a(f"v_rcp_f32 v{T[i]}, v{T[i]}")
        a(f"v_rcp_f32 v{T[i]+1}, v{T[i]+1}")
    for i, d in enumerate(o2):
        a(f"v_pk_mul_f32 {v(d,2)}, {v(d,2)}, {v(T[i],2)}")
        a(f"v_cvt_pk_bf16_f32 v{T[i]}, v{d}, v{d+1}")
        a(f"v_lshlrev_b32 v{d}, 16, v{T[i]}")
        a(f"v_and_b32 v{d+1}, 0xffff0000, v{T[i]}")
    stamp(a)
    a("s_waitcnt vmcnt(0)")
    stamp(a)
    for i, d in enumerate(o2):
        sj = sv + 2 * i
        a(f"v_lshlrev_b32 v{sj}, 16, v{sj}")
        a(f"v_lshlrev_b32 v{sj+1}, 16, v{sj+1}")
        a(f"v_pk_mul_f32 {v(d,2)}, {v(d,2)}, {v(sj,2)}")
        a(f"v_cvt_pk_bf16_f32 v{T[i]}, v{d}, v{d+1}")
        a(f"v_lshlrev_b32 v{d}, 16, v{T[i]}")
        a(f"v_and_b32 v{d+1}, 0xffff0000, v{T[i]}")
        a(f"v_lshlrev_b32 v{T[i]}, 16, v{xr+i}")
        a(f"v_and_b32 v{T[i]+1}, 0xffff0000, v{xr+i}")
        a(f"v_pk_add_f32 {v(d,2)}, {v(d,2)}, {v(T[i],2)}")
        a(f"v_cvt_pk_bf16_f32 v{op+i}, v{d}, v{d+1}")
    a(f"buffer_store_dwordx4 {v(op,4)}, v{vxo}, s[{sOUT}:{sOUT+3}], 0 offen")
    a(f"buffer_store_dwordx4 {v(op+4,4)}, v{vxo}, s[{sOUT}:{sOUT+3}], 0 offen offset:64")
    a(f"buffer_store_dwordx2 {v(op+8,2)}, v{vxo2}, s[{sOUT}:{sOUT+3}], 0 offen offset:128")
    stamp_end(a, 1)
    return R.hi

def summarize(a, counts):
    a.raw(".globl sum_kernel\n.p2align 8\n.type sum_kernel,@function")
    a.label("sum_kernel"); a.flush_hist()
    a("s_cmp_ge_u32 s2, 1")
    a("s_cbranch_scc1 SUM_end")
    a("s_memrealtime s[20:21]")
    a("s_load_dwordx2 s[4:5], s[0:1], 120")
    a("s_load_dwordx2 s[12:13], s[0:1], 112")
    a("s_waitcnt lgkmcnt(0)")
    srd(a, 12, size=256)
    for k, (lo, hi, slot) in enumerate(counts):
        srd_from(a, 8, 4, WS_STAMP + (slot // 8) * 0x100000 + lo * 1024, (hi - lo) * 1024)
        a("v_mov_b32 v10, 0"); a("v_mov_b32 v11, 0")
        a("v_lshlrev_b32 v1, 8, v0")
        for i in range((hi - lo + 63) // 64):
            a("buffer_load_dwordx2 v[2:3], v1, s[8:11], 0 offen")
            a("s_waitcnt vmcnt(0)")
            a("v_cmp_ne_u32 vcc, 0, v2")
            a("v_not_b32 v2, v2")
            a("v_cndmask_b32 v2, 0, v2, vcc")
            a("v_max_u32 v10, v10, v2"); a("v_max_u32 v11, v11, v3")
            a("v_add_u32 v1, 0x10000, v1")
        a(f"v_mov_b32 v4, {8*k}")
        a("buffer_atomic_umax v10, v4, s[12:15], 0 offen")
        a("buffer_atomic_umax v11, v4, s[12:15], 0 offen offset:4")
    a("v_mov_b32 v4, 60"); a("v_mov_b32 v5, s20")
    a("buffer_store_dword v5, v4, s[12:15], 0 offen")
    a.label("SUM_end")
    a("s_endpgm")

def kd(name, vgpr, sgpr=48):
    if STAMPS: vgpr, sgpr = 256, 102
    vg = (vgpr + 7) // 8 * 8
    return f""".p2align 6
.amdhsa_kernel {name}
  .amdhsa_next_free_vgpr {vg}
  .amdhsa_next_free_sgpr {sgpr}
  .amdhsa_accum_offset {vg}
  .amdhsa_group_segment_fixed_size 0
  .amdhsa_kernarg_size 128
  .amdhsa_user_sgpr_count 2
  .amdhsa_user_sgpr_kernarg_segment_ptr 1
  .amdhsa_system_sgpr_workgroup_id_x 1
  .amdhsa_float_denorm_mode_32 3
  .amdhsa_float_denorm_mode_16_64 3
.end_amdhsa_kernel
"""

def main(out):
    ref = open(f"cdna_kernels/{NAME}.s.ref").read().split("\n")
    hdr = [l for l in ref if l.startswith(";") and "@launch" not in l and "Override launch" not in l and "grid=ceil" not in l]
    L1_LDS = 3 * G1_SLOT
    L2_LDS = max(CV_LDS, 61440)
    assert L2_LDS <= 81920 and L1_LDS <= 81920 and 4 * KG_WAVE <= L1_LDS and 32 * LN_S <= L1_LDS
    hdr.append(f"; @launch kernel=s4a_kernel grid=(480,1,1) block=(256,1,1) lds={L1_LDS}")
    hdr.append(f"; @launch kernel=s4b_kernel grid=(512,1,1) block=(256,1,1) lds={L2_LDS}")
    SUM = int(os.environ.get("SUM", "0"))
    if SUM: hdr.append("; @launch kernel=sum_kernel grid=(1,1,1) block=(256,1,1) lds=0")
    a = Asm()
    a.raw('.amdgcn_target "amdgcn-amd-amdhsa--gfx950"\n.text')
    a.raw(".globl s4a_kernel\n.p2align 8\n.type s4a_kernel,@function")
    a.label("s4a_kernel")
    a("s_cmp_lt_u32 s2, 224")
    a("s_cbranch_scc1 K1_aux")
    a("s_cmp_ge_u32 s2, 480")
    a("s_cbranch_scc1 K1_exit")
    h1 = gemm1(a, 224)
    a.label("K1_aux"); a.flush_hist()
    a("s_cmp_ge_u32 s2, 160")
    a("s_cbranch_scc1 K1_ln")
    h2 = kgen(a, 0)
    a.label("K1_ln"); a.flush_hist()
    h3 = lnrole(a, 160)
    a.label("K1_exit")
    a("s_endpgm")
    a.raw(".globl s4b_kernel\n.p2align 8\n.type s4b_kernel,@function")
    a.label("s4b_kernel"); a.flush_hist()
    a("s_cmp_ge_u32 s2, 256")
    a("s_cbranch_scc1 K2_g2")
    h4 = conv(a)
    a.label("K2_g2"); a.flush_hist()
    a("s_cmp_ge_u32 s2, 512")
    a("s_cbranch_scc1 K2_exit")
    h5 = gemm2(a, 256)
    a.label("K2_exit")
    a("s_endpgm")
    if SUM: summarize(a, [(0, 160, 0), (160, 224, 0), (224, 480, 0), (0, 256, 8), (256, 512, 8)])
    print("vgprs", h1, h2, h3, h4, h5, "nops", a.nnop, "lds", L1_LDS, L2_LDS, file=sys.stderr)
    txt = "\n".join(hdr) + "\n" + a.text() + '.section .rodata,"a"\n' + kd("s4a_kernel", max(h1, h2, h3)) + kd("s4b_kernel", max(h4, h5)) + (kd("sum_kernel", 16) if SUM else "")
    open(out, "w").write(txt)

if __name__ == "__main__":
    main(sys.argv[1] if len(sys.argv) > 1 else f"cdna_kernels/{NAME}.s")
```

```python
import sys, os, struct, math
sys.path.insert(0, os.path.dirname(os.path.abspath(__file__)))
from asmlib import *

NAME = "recurrent_scan__ssm_conv_s4__dense_activation_mish__prompt"
KN = NAME + "_kernel"
L, D, N, F = 2048, 640, 192, 1536
ENV = lambda k, d: int(os.environ.get(k, str(d)))
STAMPS = ENV("STAMPS", 0)

WS_XT2 = 0x0000000
WS_ST  = 0x0400000
WS_W2A = 0x0800000
WS_ACT = 0x0C00000
WS_STAT = 0x1400000
WS_FLN = 0x1500000
WS_FW2 = 0x1510000
WS_FACT = 0x1520000
WS_FST = 0x1560000
WS_SIZE = 0x1600000
WS_STAMP = 0x4000000
LDS_BYTES = 81920
SPIN_MAX = 0x4000

def f32(x): return "0x%08x" % struct.unpack("<I", struct.pack("<f", x))[0]
LOG2E = 1.4426950408889634
LN2 = 0.6931471805599453

def srd(a, sreg, size):
    a(f"s_mov_b32 s{sreg+2}, {size}")
    a(f"s_mov_b32 s{sreg+3}, 0x20000")

def bf16r(a, dst, src):
    a(f"v_cvt_pk_bf16_f32 v{dst}, v{src}, v{src}")
    a(f"v_and_b32 v{dst}, 0xffff0000, v{dst}")

_sn = [0]
def stamp_begin(a):
    _sn[0] = 0
    if STAMPS:
        a("s_memrealtime s[60:61]")
        for i in range(64, 96, 2): a(f"s_mov_b64 s[{i}:{i+1}], 0")
        a("s_memtime s[64:65]")
        _sn[0] = 1
def stamp(a, n=None):
    if STAMPS:
        if n is None:
            n = _sn[0]; _sn[0] += 1
        assert n < 16
        a(f"s_memtime s[{64+2*n}:{65+2*n}]")
def stamp_end(a, sWave):
    if STAMPS:
        stamp(a, 15)
        a("s_memrealtime s[62:63]")
        a("s_load_dwordx2 s[96:97], s[0:1], 120")
        a("s_waitcnt lgkmcnt(0)")
        a(f"s_add_u32 s96, s96, {WS_STAMP}")
        a("s_addc_u32 s97, s97, 0")
        a("s_mov_b32 s98, 0x100000")
        a("s_mov_b32 s99, 0x20000")
        a("s_lshl_b32 s59, s2, 10")
        a(f"s_lshl_b32 s58, s{sWave}, 8")
        a("s_add_u32 s59, s59, s58")
        a("s_mov_b64 exec, 1")
        a("v_mov_b32 v1, s59")
        a("v_mov_b32 v2, s60"); a("v_mov_b32 v3, s62")
        a("buffer_store_dwordx2 v[2:3], v1, s[96:99], 0 offen")
        for n in range(16):
            a(f"s_sub_u32 s59, s{64+2*n}, s64")
            a(f"s_cmp_eq_u32 s{64+2*n}, 0")
            a(f"s_cselect_b32 s59, 0, s59")
            a(f"v_mov_b32 v{4 + n}, s59")
            a(f"buffer_store_dword v{4 + n}, v1, s[96:99], 0 offen offset:{16+4*n}")
    a("s_endpgm")

_lab = [0]
def newlab(p):
    _lab[0] += 1
    return f"{p}_{_lab[0]}"

sWS, sDBG = 4, 8
sWave, sTok, sSpin = 12, 13, 14
sT, sT2, sT3 = 15, 16, 17

def check_token(a, vtok, vzero):
    done = newlab("TK"); loop = newlab("TL")
    a(f"v_readfirstlane_b32 s{sTok}, v{vtok}")
    a(f"s_cmp_lg_u32 s{sTok}, 0")
    a(f"s_cbranch_scc1 {done}")
    a(f"s_mov_b32 s{sSpin}, 0")
    a.label(loop)
    a("s_sleep 2")
    a(f"buffer_load_dword v{vtok}, v{vzero}, s[{sDBG}:{sDBG+3}], 0 offen sc1"); a.vm -= 1
    a("s_waitcnt vmcnt(0)")
    a(f"v_readfirstlane_b32 s{sTok}, v{vtok}")
    a(f"s_cmp_lg_u32 s{sTok}, 0")
    a(f"s_cbranch_scc1 {done}")
    a(f"s_add_u32 s{sSpin}, s{sSpin}, 1")
    a(f"s_cmp_lt_u32 s{sSpin}, {SPIN_MAX}")
    a(f"s_cbranch_scc1 {loop}")
    a.label(done)

def check_flags(a, vfl, vaddr, reload, sleep=2):
    done = newlab("FD"); loop = newlab("FL")
    def cmpall():
        a(f"v_cmp_ne_u32 vcc, s{sTok}, v{vfl[0]}")
        for r_ in vfl[1:]:
            a(f"v_cmp_ne_u32 s[18:19], s{sTok}, v{r_}")
            a("s_or_b64 vcc, vcc, s[18:19]")
        a("s_cmp_eq_u64 vcc, 0")
    cmpall()
    a(f"s_cbranch_scc1 {done}")
    a(f"s_mov_b32 s{sSpin}, 0")
    a.label(loop)
    a(f"s_sleep {sleep}")
    n0 = a.vm
    reload()
    a.vm = n0
    a("s_waitcnt vmcnt(0)")
    cmpall()
    a(f"s_cbranch_scc1 {done}")
    a(f"s_add_u32 s{sSpin}, s{sSpin}, 1")
    a(f"s_cmp_lt_u32 s{sSpin}, {SPIN_MAX}")
    a(f"s_cbranch_scc1 {loop}")
    a.label(done)

CV_S = 4160
CH_REG = 4 * CV_S
CV_U = [3 * CH_REG + 512 + 4608 * i for i in range(3)]
LN_OFF = 3 * CH_REG + 3 * 4608
LN_S = 1344
KG_S = 272
COARSE = list(range(8)) + [256, 258, 260, 262, 512, 516, 768, 772, 1024, 1280, 1536, 1792, 2048]
assert LN_OFF + 8 * LN_S <= LDS_BYTES and 53 * KG_S <= CH_REG

def s_role(a):
    sX_, sA, sXc = 20, 24, 25
    sD = [26, 27, 28]
    sCnt, sPar, sSlot, sRound, sHeavy = 29, 30, 31, 56, 57
    SP = [32, 36, 40, 44, 48, 52]
    R = Alloc(1)
    lane = R(); t0 = R(); t1 = R(); t2 = R(); t3 = R(); vzero = R(); vtok = R(); v16 = R()
    vdk = [R(), R()]
    base = R.mark()
    stamp_begin(a)
    a(f"s_load_dwordx2 s[{sWS}:{sWS+1}], s[0:1], 120")
    a(f"s_load_dwordx2 s[{sDBG}:{sDBG+1}], s[0:1], 112")
    a(f"v_lshrrev_b32 v{t0}, 6, v0")
    a(f"v_and_b32 v{lane}, 63, v0")
    a(f"v_readfirstlane_b32 s{sWave}, v{t0}")
    srd(a, sWS, WS_SIZE); srd(a, sDBG, 256)
    a(f"s_and_b32 s{sXc}, s2, 7")
    a(f"s_lshr_b32 s{sA}, s2, 3")
    a(f"s_lshl_b32 s{sD[0]}, s{sXc}, 6")
    a(f"s_lshl_b32 s{sT}, s{sA}, 1")
    a(f"s_add_u32 s{sD[0]}, s{sD[0]}, s{sT}")
    a(f"s_add_u32 s{sD[1]}, s{sD[0]}, 1")
    a(f"s_lshl_b32 s{sD[2]}, s{sXc}, 4")
    a(f"s_add_u32 s{sD[2]}, s{sD[2]}, s{sA}")
    a(f"s_add_u32 s{sD[2]}, s{sD[2]}, 512")
    a(f"s_cmp_lt_u32 s{sA}, 16")
    a(f"s_cselect_b32 s{sHeavy}, 1, 0")
    a(f"v_mov_b32 v{vzero}, 0")
    a(f"v_lshlrev_b32 v{v16}, 4, v{lane}")
    a(f"s_cmp_eq_u32 s{sWave}, 3")
    a("s_cbranch_scc1 S_ln")
    a(f"s_add_u32 s{sT}, s{sHeavy}, 2")
    a(f"s_cmp_ge_u32 s{sWave}, s{sT}")
    a("s_cbranch_scc1 S_w2t")

    P = [[R() for _ in range(6)] for _ in range(3)]
    vdt = R(); vwr = R(); vrdA = R(); voff = R()
    accK = R(16, 4)
    FA = [R(4, 4) for _ in range(8)]; FB = [R(4, 4) for _ in range(8)]
    pr = lambda: R(2, 2)
    l1, l8, l256, W, Fc, Fn, G, Gn, T, T2, G2, G4, G6, V, a2b = [pr() for _ in range(15)]
    pk = [R() for _ in range(4)]
    sDd, sBase = 58, 59
    if STAMPS: sDd, sBase = 100, 101
    for i, sr in enumerate(SP):
        a(f"s_load_dwordx2 s[{sr}:{sr+1}], s[0:1], {8 + 8*i}")
    a(f"s_load_dwordx2 s[{sX_}:{sX_+1}], s[0:1], 56")
    a(f"s_cmp_eq_u32 s{sWave}, 1")
    a(f"s_cselect_b32 s{sDd}, s{sD[1]}, s{sD[0]}")
    a(f"s_cmp_eq_u32 s{sWave}, 2")
    a(f"s_cselect_b32 s{sDd}, s{sD[2]}, s{sDd}")
    for sr in SP: srd(a, sr, D * N * 2)
    srd(a, sX_, D * 2)
    a(f"s_mul_i32 s{sT}, s{sDd}, {N*2}")
    a(f"v_lshlrev_b32 v{voff}, 1, v{lane}")
    a(f"s_lshl_b32 s{sT2}, s{sDd}, 1")
    a("s_waitcnt lgkmcnt(0)")
    a(f"buffer_load_ushort v{vdt}, v{vzero}, s[{sX_}:{sX_+3}], s{sT2} offen")
    for p in range(3):
        for i, sr in enumerate(SP):
            a(f"buffer_load_ushort v{P[p][i]}, v{voff}, s[{sr}:{sr+3}], s{sT} offen offset:{128*p}")
        if p == 0: tokp0 = a.vtok()
    a(f"s_mul_i32 s{sBase}, s{sWave}, {CH_REG}")
    a(f"v_lshlrev_b32 v{vwr}, 2, v{lane}")
    a(f"v_add_u32 v{vwr}, s{sBase}, v{vwr}")
    a(f"v_and_b32 v{t0}, 31, v{lane}")
    a(f"v_mul_u32_u24 v{t0}, {KG_S}, v{t0}")
    a(f"v_lshrrev_b32 v{t1}, 5, v{lane}")
    a(f"v_lshl_add_u32 v{t0}, v{t1}, 4, v{t0}")
    a(f"v_add_u32 v{vrdA}, s{sBase}, v{t0}")
    for i in range(16): a(f"v_mov_b32 v{accK+i}, 0")
    a("s_waitcnt vmcnt(0)")
    stamp(a, 1)
    a(f"v_lshlrev_b32 v{vdt}, 16, v{vdt}")
    a(f"v_mul_f32 v{t0}, {f32(LOG2E)}, v{vdt}")
    a(f"s_mov_b32 s{sT}, {f32(LOG2E)}")
    a(f"v_fma_f32 v{t1}, v{vdt}, s{sT}, -v{t0}")
    lo = LOG2E - struct.unpack("<f", struct.pack("<f", LOG2E))[0]
    a(f"v_fmac_f32 v{t1}, {f32(lo)}, v{vdt}")
    a(f"v_exp_f32 v{t0}, v{t0}")
    a(f"v_mul_f32 v{t1}, {f32(LN2)}, v{t1}")
    a(f"v_fma_f32 v{t0}, v{t0}, v{t1}, v{t0}")
    bf16r(a, vdt, t0)
    a(f"s_mov_b32 s{sCnt}, 0")
    def cmul(dst, e, m):
        a(f"v_pk_mul_f32 {v(T,2)}, {v(e,2)}, {v(m,2)} op_sel:[0,0] op_sel_hi:[0,1]")
        a(f"v_pk_fma_f32 {v(dst,2)}, {v(e,2)}, {v(m,2)}, {v(T,2)} op_sel:[1,1,0] op_sel_hi:[1,0,1] neg_lo:[0,1,0]")
    npk = [0]
    def put(src, row, conj):
        r_ = pk[npk[0] % 4]; npk[0] += 1
        a(f"v_cvt_pk_bf16_f32 v{r_}, v{src}, {'-' if conj else ''}v{src+1}")
        a(f"ds_write_b32 v{vwr}, v{r_} offset:{row*KG_S}")
    def cexp(dst, scale):
        if scale == 1:
            a(f"v_exp_f32 v{t0}, v{a2b}")
            a(f"v_fract_f32 v{t1}, v{a2b+1}")
        else:
            a(f"v_mul_f32 v{t0}, {f32(float(scale))}, v{a2b}")
            a(f"v_mul_f32 v{t1}, {f32(float(scale))}, v{a2b+1}")
            a(f"v_exp_f32 v{t0}, v{t0}")
            a(f"v_fract_f32 v{t1}, v{t1}")
        a(f"v_cos_f32 v{dst}, v{t1}")
        a(f"v_sin_f32 v{dst+1}, v{t1}")
        a(f"v_mul_f32 v{dst}, v{dst}, v{t0}")
        a(f"v_mul_f32 v{dst+1}, v{dst+1}, v{t0}")
    def mfmas():
        for ks in range(8):
            a(f"v_mfma_f32_32x32x16_bf16 {v(accK,16)}, {v(FA[ks],4)}, {v(FB[ks],4)}, {v(accK,16)}")
    a.label("KG_loop")
    a.flush_hist()
    p0 = P[0]
    for i in range(6): a(f"v_lshlrev_b32 v{p0[i]}, 16, v{p0[i]}")
    a(f"v_mul_f32 v{p0[0]}, v{vdt}, v{p0[0]}")
    a(f"v_mul_f32 v{p0[1]}, v{vdt}, v{p0[1]}")
    a(f"v_mul_f32 v{T2}, v{vdt}, v{p0[2]}")
    a(f"v_mul_f32 v{T2+1}, v{vdt}, v{p0[3]}")
    a(f"v_mul_f32 v{a2b}, {f32(LOG2E)}, v{p0[0]}")
    a(f"v_mul_f32 v{a2b+1}, {f32(1.0/(2*math.pi))}, v{p0[1]}")
    a(f"v_mov_b32 v{V}, v{p0[4]}")
    a(f"v_mov_b32 v{V+1}, v{p0[5]}")
    cmul(W, V, T2)
    cexp(l8, 8); cexp(l1, 1); cexp(l256, 256)
    a(f"s_cmp_eq_u32 s{sCnt}, 0")
    a("s_cbranch_scc1 KG_skip")
    a("s_waitcnt lgkmcnt(0)")
    mfmas()
    a.label("KG_skip")
    a(f"v_mov_b32 v{pk[3]}, 0x3f80")
    a(f"ds_write_b32 v{vwr}, v{pk[3]}")
    put(l8, 1, False)
    cur = l8; bufs = [Fc, Fn]
    for f in range(2, 32):
        nx = bufs[f % 2]
        cmul(nx, cur, l8); put(nx, f, False); cur = nx
    put(W, 32, True)
    cur = W
    dst_of = {1: G, 2: G2, 3: G, 4: G4, 5: G, 6: G6, 7: G}
    for c in range(1, 8):
        nx = dst_of[c]
        cmul(nx, cur, l1); put(nx, 32 + c, True); cur = nx
    row = {val: 32 + i for i, val in enumerate(COARSE)}
    cur = W
    for j in range(1, 9):
        nx = bufs[j % 2]
        cmul(nx, cur, l256); put(nx, row[256 * j], True); cur = nx
    cmul(G, G2, l256); put(G, row[258], True)
    cmul(G, G6, l256); put(G, row[262], True)
    cmul(G, G4, l256); put(G, row[260], True)
    cmul(Gn, G, l256); put(Gn, row[516], True)
    cmul(G, Gn, l256); put(G, row[772], True)
    for ks in range(8):
        a(f"ds_read_b128 {v(FA[ks],4)}, v{vrdA} offset:{32*ks}")
        a(f"ds_read_b128 {v(FB[ks],4)}, v{vrdA} offset:{32*KG_S + 32*ks}")
    for i in range(6):
        a(f"v_mov_b32 v{P[0][i]}, v{P[1][i]}")
        a(f"v_mov_b32 v{P[1][i]}, v{P[2][i]}")
    if STAMPS:
        a("s_memtime s[18:19]")
        a("s_waitcnt lgkmcnt(0)")
        a(f"s_cmp_eq_u32 s{sCnt}, 0")
        a("s_cselect_b32 s82, s18, s82")
        a(f"s_cmp_eq_u32 s{sCnt}, 1")
        a("s_cselect_b32 s84, s18, s84")
    a(f"s_add_u32 s{sCnt}, s{sCnt}, 1")
    a(f"s_cmp_lt_u32 s{sCnt}, 3")
    a("s_cbranch_scc1 KG_loop")
    stamp(a, 2)
    vB = P[0][0]; vS = P[0][1]; c_ = P[0][2]; u0 = P[0][3]; u1 = P[0][4]; vJ = P[0][5]
    a(f"v_and_b32 v{c_}, 31, v{lane}")
    a(f"v_lshlrev_b32 v{vB}, 5, v{c_}")
    a(f"v_mov_b32 v{vS}, 1")
    a(f"v_subrev_u32 v{u0}, 12, v{c_}")
    a(f"v_and_b32 v{u1}, 1, v{u0}")
    a(f"v_lshrrev_b32 v{u0}, 1, v{u0}")
    a(f"v_lshl_add_u32 v{u0}, v{u0}, 6, v{u1}")
    a(f"v_add_u32 v{u0}, 384, v{u0}")
    a(f"v_cmp_gt_u32 vcc, 16, v{c_}")
    a(f"v_cndmask_b32 v{vB}, v{vB}, v{u0}, vcc")
    a(f"v_cndmask_b32 v{vS}, v{vS}, 2, vcc")
    a(f"v_add_u32 v{u0}, 248, v{c_}")
    a(f"v_cmp_gt_u32 vcc, 12, v{c_}")
    a(f"v_cndmask_b32 v{vB}, v{vB}, v{u0}, vcc")
    a(f"v_cndmask_b32 v{vS}, v{vS}, 4, vcc")
    a(f"v_cmp_gt_u32 vcc, 8, v{c_}")
    a(f"v_cndmask_b32 v{vB}, v{vB}, v{c_}, vcc")
    a(f"v_cndmask_b32 v{vS}, v{vS}, 8, vcc")
    a(f"v_lshlrev_b32 v{vS}, 2, v{vS}")
    a(f"v_lshrrev_b32 v{u0}, 5, v{lane}")
    a(f"v_lshlrev_b32 v{u0}, 2, v{u0}")
    a(f"v_mul_u32_u24 v{u0}, v{u0}, v{vS}")
    a(f"v_lshl_add_u32 v{vB}, v{vB}, 2, v{u0}")
    a(f"v_add_u32 v{vB}, s{sBase}, v{vB}")
    a("s_waitcnt lgkmcnt(0)")
    mfmas()
    for g in range(4):
        for i in range(4):
            r_ = pk[i]
            a(f"v_mad_u32_u24 v{t0+(i%2)}, v{vS}, {8*g+i}, v{vB}")
            a(f"v_cvt_pk_bf16_f32 v{r_}, v{accK+4*g+i}, v{accK+4*g+i}")
            a(f"ds_write_b32 v{t0+(i%2)}, v{r_}")
    stamp(a, 11)
    O = [FA[2*i] for i in range(4)]
    Tm = FB[0]
    a(f"v_lshlrev_b32 v{u0}, 2, v{lane}")
    a(f"v_add_u32 v{u0}, s{sBase}, v{u0}")
    a(f"v_lshl_add_u32 v{u1}, v{lane}, 2, v{u0}")
    for p in (2, 3):
        e0 = 384 + 64 * p
        a(f"ds_read_b32 v{O[p]}, v{u0} offset:{4*(e0+1)}")
        a(f"ds_read_b32 v{O[p]+2}, v{u0} offset:{4*e0}")
        a(f"ds_read_b32 v{O[p]+3}, v{u0} offset:{4*e0}")
    a(f"ds_read_b32 v{O[1]}, v{u1} offset:{4*(384+2)}")
    a(f"ds_read_b32 v{O[1]+1}, v{u1} offset:{4*(384+1)}")
    a(f"ds_read_b32 v{O[1]+3}, v{u1} offset:{4*384}")
    a(f"v_lshlrev_b32 v{t0}, 5, v{lane}")
    a(f"v_add_u32 v{t0}, s{sBase}, v{t0}")
    a(f"v_add_u32 v{t1}, s{sBase}, v{v16}")
    a("s_mov_b32 exec_hi, 0")
    a(f"ds_read_b128 {v(Tm,4)}, v{t0}")
    a(f"ds_read_b128 {v(Tm+4,4)}, v{t0} offset:16")
    a("s_mov_b32 exec_hi, -1")
    a("s_mov_b32 exec_lo, 0")
    for k_, (o0, o1) in enumerate([(0, 0), (1, 2), (2, 2), (3, 4)]):
        a(f"ds_read2_b32 {v(Tm+2*k_,2)}, v{t1} offset0:{128+o0} offset1:{128+o1}")
    a("s_mov_b32 exec_lo, -1")
    a(f"v_and_b32 v{t2}, 1, v{lane}")
    a(f"v_subrev_u32 v{t2}, 1, v{t2}")
    a(f"v_and_b32 v{t2}, 0xffff0000, v{t2}")
    a(f"v_mov_b32 v{t3}, 0xffff0000")
    a(f"v_sub_u32 v{vJ}, {63*16}, v{v16}")
    a(f"v_add_u32 v{vJ}, s{sBase}, v{vJ}")
    Z = FB[2]
    for i in range(4): a(f"v_mov_b32 v{Z+i}, 0")
    a(f"v_lshrrev_b32 v{u0}, 2, v{lane}")
    a(f"v_mul_u32_u24 v{u0}, {CV_S}, v{u0}")
    a(f"v_and_b32 v{u1}, 3, v{lane}")
    a(f"v_lshl_add_u32 v{u0}, v{u1}, 4, v{u0}")
    a(f"v_add_u32 v{u0}, s{sBase}, v{u0}")
    a("s_waitcnt lgkmcnt(0)")
    stamp(a, 12)
    a("s_mov_b64 exec, 0xffff")
    a(f"ds_write_b128 v{u0}, {v(Z,4)} offset:4096")
    a("s_mov_b64 exec, -1")
    for p in (2, 3):
        a(f"v_bfi_b32 v{O[p]+1}, v{t2}, v{O[p]+2}, v{O[p]}")
    a(f"v_bfi_b32 v{O[1]+2}, v{t3}, v{O[1]+3}, v{O[1]+1}")
    for m in range(4):
        a(f"v_bfi_b32 v{O[0]+m}, v{t3}, v{Tm+6-2*m}, v{Tm+7-2*m}")
    for p in range(4):
        a(f"ds_write_b128 v{vJ}, {v(O[p],4)} offset:{1024*(3-p)}")
    for p in range(4):
        a(f"ds_read_b64 {v(O[p]+4,2)}, v{vJ} offset:{1024*(3-p)+16}")
    a("s_waitcnt lgkmcnt(0)")
    for p in range(4):
        Kt = [FB[(3*p + c) % 8] for c in range(3)]
        kin = O[p]
        for k in range(4): a(f"v_alignbyte_b32 v{Kt[0]+k}, v{kin+k+1}, v{kin+k}, 2")
        for k in range(4): a(f"v_mov_b32 v{Kt[1]+k}, v{kin+k+1}")
        for k in range(4): a(f"v_alignbyte_b32 v{Kt[2]+k}, v{kin+k+2}, v{kin+k+1}, 2")
        for c in range(3): a(f"ds_write_b128 v{vJ}, {v(Kt[c],4)} offset:{1024*(3-p) + (c+1)*CV_S}")
    stamp(a, 13)
    a(f"buffer_load_dword v{vtok}, v{vzero}, s[{sDBG}:{sDBG+3}], 0 offen sc1")
    a("s_waitcnt vmcnt(0)")
    check_token(a, vtok, vzero)
    a("s_branch S_join")
    hi = R.hi

    a.label("S_w2t"); a.flush_hist()
    R.reset(base)
    vw = [R() for _ in range(5)]; vt8 = R(); vt4 = R()
    O = [R(4, 4) for _ in range(4)]
    a(f"s_load_dwordx2 s[{sX_}:{sX_+1}], s[0:1], 96")
    srd(a, sX_, F * D * 2)
    for i in range(5):
        a(f"v_add_u32 v{t0}, {64*i}, v{lane}")
        a(f"v_mul_u32_u24 v{t1}, 0xcccd, v{t0}")
        a(f"v_lshrrev_b32 v{t1}, 19, v{t1}")
        a(f"v_mul_u32_u24 v{t2}, 10, v{t1}")
        a(f"v_sub_u32 v{t2}, v{t0}, v{t2}")
        a(f"v_mul_u32_u24 v{t1}, 1280, v{t1}")
        a(f"v_lshl_add_u32 v{vw[i]}, v{t2}, 4, v{t1}")
    a(f"s_sub_u32 s{sT3}, s{sA}, 16")
    a(f"s_mul_i32 s{sT}, s{sT3}, {96*1280}")
    a(f"s_mul_i32 s{sT2}, s{sXc}, 160")
    a(f"s_add_u32 s{sT}, s{sT}, s{sT2}")
    a("s_waitcnt lgkmcnt(0)")
    for i in range(15):
        a(f"s_mov_b32 m0, {2*CH_REG + 1024*i}")
        if i % 5 == 0 and i: a(f"s_add_u32 s{sT}, s{sT}, {32*1280}")
        a(f"buffer_load_dwordx4 v{vw[i%5]}, s[{sX_}:{sX_+3}], s{sT} offen lds")
    a(f"buffer_load_dword v{vtok}, v{vzero}, s[{sDBG}:{sDBG+3}], 0 offen sc1")
    a(f"v_lshrrev_b32 v{t1}, 2, v{lane}")
    a(f"v_mul_u32_u24 v{t1}, 160, v{t1}")
    a(f"v_add_u32 v{t1}, {2*CH_REG}, v{t1}")
    a(f"v_and_b32 v{t2}, 3, v{lane}")
    a(f"v_lshl_add_u32 v{vt8}, v{t2}, 4, v{t1}")
    a(f"v_lshl_add_u32 v{vt4}, v{t2}, 3, v{t1}")
    a(f"s_mul_i32 s{sT}, s{sXc}, 48")
    a(f"s_mul_i32 s{sT2}, s{sT3}, 3")
    a(f"s_add_u32 s{sT}, s{sT}, s{sT2}")
    a(f"s_mul_i32 s{sT}, s{sT}, 5120")
    a(f"s_add_u32 s{sT}, s{sT}, {WS_W2A}")
    a("s_waitcnt vmcnt(0)")
    stamp(a, 1)
    toks = {}
    def rd2(i):
        o = O[i % 4]; k = i // 5; rt = i % 5
        for e in range(2):
            if rt < 4: a(f"ds_read_b64_tr_b16 {v(o+2*e,2)}, v{vt8} offset:{5120*k + 64*(rt>>1) + 8*(rt&1) + 2560*e}")
            else: a(f"ds_read_b64_tr_b16 {v(o+2*e,2)}, v{vt4} offset:{5120*k + 128 + 2560*e}")
        toks[i] = a.ltok()
    for i in range(3): rd2(i)
    for i in range(15):
        if i + 3 < 15: rd2(i + 3)
        a.wait(lg=toks[i])
        a(f"buffer_store_dwordx4 {v(O[i%4],4)}, v{v16}, s[{sWS}:{sWS+3}], s{sT} offen sc1")
        a(f"s_add_u32 s{sT}, s{sT}, 1024")
    check_token(a, vtok, vzero)
    a(f"s_lshl_b32 s{sT}, s{sXc}, 4")
    a(f"s_add_u32 s{sT}, s{sT}, s{sT3}")
    a(f"s_lshl_b32 s{sT}, s{sT}, 7")
    a(f"s_add_u32 s{sT}, s{sT}, {WS_FW2}")
    a(f"v_mov_b32 v{t0}, s{sTok}")
    a("s_waitcnt vmcnt(0)")
    a("s_mov_b64 exec, 1")
    a(f"buffer_store_dword v{t0}, v{vzero}, s[{sWS}:{sWS+3}], s{sT} offen sc1")
    a("s_mov_b64 exec, -1")
    stamp(a, 2)
    a("s_branch S_join")

    a.label("S_ln"); a.flush_hist()
    R.reset(base)
    voff = R(); vlw = R(); vtr = R()
    Xr = [R(4, 4) for _ in range(10)]
    U = [R(2, 2) for _ in range(40)]
    sm = R(2, 2); mb = R(2, 2); rs = R(2, 2); T = [R(2, 2) for _ in range(4)]; gr = R(2, 2)
    ones = R()
    O = [R(4, 4) for _ in range(4)]
    a(f"s_load_dwordx2 s[{sX_}:{sX_+1}], s[0:1], 0")
    a("s_memrealtime s[18:19]")
    srd(a, sX_, L * D * 2)
    a(f"v_lshrrev_b32 v{t0}, 3, v{lane}")
    a(f"v_and_b32 v{t1}, 7, v{lane}")
    a(f"v_lshlrev_b32 v{t1}, 4, v{t1}")
    a(f"v_mul_u32_u24 v{voff}, 1280, v{t0}")
    a(f"v_add_u32 v{voff}, v{voff}, v{t1}")
    a(f"v_mul_u32_u24 v{vlw}, {LN_S}, v{t0}")
    a(f"v_add_u32 v{vlw}, v{vlw}, v{t1}")
    a(f"v_add_u32 v{vlw}, {LN_OFF}, v{vlw}")
    a(f"s_lshl_b32 s{sT3}, s{sXc}, 5")
    a(f"s_add_u32 s{sT3}, s{sT3}, s{sA}")
    a(f"s_mul_i32 s{sT}, s{sT3}, {8*1280}")
    a("s_waitcnt lgkmcnt(0)")
    a(f"s_cmp_ge_u32 s2, 8")
    a("s_cbranch_scc1 S_ln_nt")
    a("s_or_b32 s18, s18, 1")
    a(f"v_mov_b32 v{gr}, s18")
    a(f"v_mov_b32 v{gr+1}, 0")
    a("s_mov_b64 exec, 1")
    a(f"buffer_atomic_cmpswap {v(gr,2)}, v{vzero}, s[{sDBG}:{sDBG+3}], 0 offen"); a.vm -= 1
    a("s_mov_b64 exec, -1")
    a.label("S_ln_nt")
    for i in range(10):
        a(f"buffer_load_dwordx4 {v(Xr[i],4)}, v{voff}, s[{sX_}:{sX_+3}], s{sT} offen offset:{128*i}")
    a(f"v_mov_b32 v{ones}, 0x3f803f80")
    a(f"v_mov_b32 v{sm}, 0")
    a("s_waitcnt vmcnt(0)")
    stamp(a, 1)
    a(f"buffer_load_dword v{vtok}, v{vzero}, s[{sDBG}:{sDBG+3}], 0 offen sc1")
    for i in range(40):
        a(f"v_dot2_f32_bf16 v{sm}, v{Xr[i//4] + i%4}, v{ones}, v{sm}")
    def red8(r_):
        a(f"v_add_f32_dpp v{r_}, v{r_}, v{r_} quad_perm:[1,0,3,2] row_mask:0xf bank_mask:0xf")
        a(f"v_add_f32_dpp v{r_}, v{r_}, v{r_} quad_perm:[2,3,0,1] row_mask:0xf bank_mask:0xf")
        a(f"v_add_f32_dpp v{r_}, v{r_}, v{r_} row_half_mirror row_mask:0xf bank_mask:0xf")
    for i in range(40):
        x = Xr[i//4] + i % 4
        a(f"v_lshlrev_b32 v{U[i]}, 16, v{x}")
        a(f"v_and_b32 v{U[i]+1}, 0xffff0000, v{x}")
    red8(sm)
    a(f"v_mul_f32 v{sm}, {f32(1.0/D)}, v{sm}")
    a(f"v_mov_b32 v{rs}, 0"); a(f"v_mov_b32 v{rs+1}, 0")
    for i in range(40):
        t = T[i % 4]
        a(f"v_pk_add_f32 {v(t,2)}, {v(U[i],2)}, {v(sm,2)} op_sel_hi:[1,0] neg_lo:[0,1] neg_hi:[0,1]")
        a(f"v_pk_fma_f32 {v(rs,2)}, {v(t,2)}, {v(t,2)}, {v(rs,2)}")
    a(f"v_add_f32 v{rs}, v{rs}, v{rs+1}")
    red8(rs)
    a(f"v_mul_f32 v{rs}, {f32(1.0/D)}, v{rs}")
    bf16r(a, rs, rs)
    a(f"v_add_f32 v{rs}, {f32(1e-5)}, v{rs}")
    bf16r(a, rs, rs)
    a(f"v_sqrt_f32 v{rs}, v{rs}")
    a(f"v_cvt_pk_bf16_f32 v{gr}, v{sm}, v{rs}")
    a(f"v_and_b32 v{rs}, 0xffff0000, v{gr}")
    a(f"v_lshlrev_b32 v{mb}, 16, v{gr}")
    a(f"v_rcp_f32 v{rs}, v{rs}")
    a("s_waitcnt vmcnt(0)")
    check_token(a, vtok, vzero)
    a(f"v_mov_b32 v{gr+1}, s{sTok}")
    a(f"s_lshl_b32 s{sT}, s{sT3}, 7")
    a(f"s_add_u32 s{sT}, s{sT}, {WS_STAT}")
    a("s_mov_b32 exec_lo, 0x01010101"); a("s_mov_b32 exec_hi, 0x01010101")
    a(f"buffer_store_dwordx2 {v(gr,2)}, v{lane}, s[{sWS}:{sWS+3}], s{sT} offen sc1")
    a("s_mov_b64 exec, -1")
    for i in range(40):
        x = Xr[i//4] + i % 4; t = T[i % 4]
        a(f"v_pk_add_f32 {v(U[i],2)}, {v(U[i],2)}, {v(mb,2)} op_sel_hi:[1,0] neg_lo:[0,1] neg_hi:[0,1]")
        a(f"v_cvt_pk_bf16_f32 v{x}, v{U[i]}, v{U[i]+1}")
        a(f"v_lshlrev_b32 v{t}, 16, v{x}")
        a(f"v_and_b32 v{t+1}, 0xffff0000, v{x}")
        a(f"v_pk_mul_f32 {v(t,2)}, {v(t,2)}, {v(rs,2)} op_sel_hi:[1,0]")
        a(f"v_cvt_pk_bf16_f32 v{x}, v{t}, v{t+1}")
        if i % 4 == 3:
            a(f"ds_write_b128 v{vlw}, {v(Xr[i//4],4)} offset:{128*(i//4)}")
    a(f"v_bfe_u32 v{t1}, v{lane}, 2, 2")
    a(f"v_mul_u32_u24 v{t1}, {LN_S}, v{t1}")
    a(f"v_lshrrev_b32 v{t0}, 4, v{lane}")
    a(f"v_lshl_add_u32 v{t1}, v{t0}, 5, v{t1}")
    a(f"v_and_b32 v{t2}, 3, v{lane}")
    a(f"v_lshl_add_u32 v{t1}, v{t2}, 3, v{t1}")
    a(f"v_add_u32 v{vtr}, {LN_OFF}, v{t1}")
    a(f"s_mul_i32 s{sT}, s{sT3}, 10240")
    def rd(i):
        o = O[i % 4]
        for e in range(2):
            a(f"ds_read_b64_tr_b16 {v(o+2*e,2)}, v{vtr} offset:{128*i + 4*e*LN_S}")
        toks[i] = a.ltok()
    for i in range(3): rd(i)
    for i in range(10):
        if i + 3 < 10: rd(i + 3)
        a.wait(lg=toks[i])
        a(f"buffer_store_dwordx4 {v(O[i%4],4)}, v{v16}, s[{sWS}:{sWS+3}], s{sT} offen sc1")
        a(f"s_add_u32 s{sT}, s{sT}, 1024")
    a(f"s_lshl_b32 s{sT}, s{sT3}, 7")
    a(f"s_add_u32 s{sT}, s{sT}, {WS_FLN}")
    a("s_waitcnt vmcnt(0)")
    a("s_mov_b64 exec, 1")
    a(f"buffer_store_dword v{gr+1}, v{vzero}, s[{sWS}:{sWS+3}], s{sT} offen sc1")
    a("s_mov_b64 exec, -1")
    stamp(a, 2)
    hi = max(hi, R.hi)

    a.label("S_join"); a.flush_hist()
    stamp(a, 3)
    R.reset(base)
    acc = [R(4, 4) for _ in range(8)]
    FA = [[R(4, 4) for _ in range(8)] for _ in range(2)]
    FB = [[R(4, 4) for _ in range(8)] for _ in range(2)]
    vA = R(); vBq = R(); vA0 = R(); vB0 = R(); vrw = R(); vrr = R(); vfl = R(); vfa = R(); vtk = R()
    a(f"s_load_dwordx2 s[{sX_}:{sX_+1}], s[0:1], 64")
    srd(a, sX_, D * 2)
    a(f"s_lshl_b32 s{sT}, s{sWave}, 13")
    a(f"s_add_u32 s{sT3}, s{sT}, {WS_FLN}")
    a(f"v_lshlrev_b32 v{vfa}, 7, v{lane}")
    ldf = lambda: a(f"buffer_load_dword v{vfl}, v{vfa}, s[{sWS}:{sWS+3}], s{sT3} offen sc1")
    ldf()
    a(f"s_lshr_b32 s{sSlot}, s{sWave}, 1")
    a(f"s_and_b32 s{sPar}, s{sWave}, 1")
    ua = FA[0][0]; ub = FA[0][0] + 1; uw = FA[0][0] + 2; uw3 = FA[0][0] + 3
    Ud = [FB[0][0], FB[0][1], FB[0][2]]; Z = FB[0][3]
    a(f"v_lshrrev_b32 v{t0}, 1, v{lane}")
    a(f"v_mul_u32_u24 v{ua}, 10240, v{t0}")
    a(f"v_and_b32 v{t1}, 1, v{lane}")
    a(f"v_lshl_add_u32 v{ua}, v{t1}, 4, v{ua}")
    a(f"v_mul_u32_u24 v{ub}, 10240, v{lane}")
    a(f"v_mul_u32_u24 v{uw}, 4608, v{t1}")
    a(f"v_lshl_add_u32 v{uw}, v{t0}, 4, v{uw}")
    a(f"s_lshl_b32 s{sT}, s{sWave}, 10")
    a(f"v_add_u32 v{uw}, s{sT}, v{uw}")
    a(f"v_add_u32 v{uw3}, s{sT}, v{v16}")
    for i in range(4): a(f"v_mov_b32 v{Z+i}, 0")
    a(f"s_min_u32 s{sT}, s{sWave}, 2")
    a(f"s_mul_i32 s{sT}, s{sT}, 4608")
    a(f"v_add_u32 v{t2}, s{sT}, v{v16}")
    a("s_mov_b32 exec_hi, 0")
    a(f"ds_write_b128 v{t2}, {v(Z,4)} offset:{CV_U[0]-512}")
    a("s_mov_b32 exec_hi, -1")
    a(f"v_and_b32 v{t0}, 15, v{lane}")
    a(f"v_sub_u32 v{t2}, 15, v{t0}")
    a(f"v_and_b32 v{t3}, 3, v{t2}")
    a(f"v_sub_u32 v{t2}, v{t2}, v{t3}")
    a(f"v_mul_u32_u24 v{t3}, {CV_S}, v{t3}")
    a(f"v_lshl_add_u32 v{t3}, v{t2}, 1, v{t3}")
    a(f"v_lshrrev_b32 v{t2}, 4, v{lane}")
    a(f"v_lshl_add_u32 v{vA0}, v{t2}, 4, v{t3}")
    a(f"v_lshlrev_b32 v{t3}, 4, v{t2}")
    a(f"v_lshl_add_u32 v{vB0}, v{t0}, 5, v{t3}")
    a(f"v_lshrrev_b32 v{t3}, 1, v{t2}")
    a(f"v_lshlrev_b32 v{t3}, 3, v{t3}")
    a(f"v_xor_b32 v{t3}, v{t3}, v{t0}")
    a(f"v_lshlrev_b32 v{t3}, 4, v{t3}")
    a(f"v_lshl_add_u32 v{t3}, v{t2}, 8, v{t3}")
    a(f"s_lshl_b32 s{sT}, s{sWave}, 13")
    a(f"v_add_u32 v{vrw}, s{sT}, v{t3}")
    a(f"v_bfe_u32 v{t0}, v{lane}, 1, 4")
    a(f"v_and_b32 v{t2}, 1, v{lane}")
    a(f"v_lshlrev_b32 v{t3}, 3, v{t2}")
    a(f"v_xor_b32 v{t0}, v{t0}, v{t3}")
    a(f"v_lshlrev_b32 v{t0}, 4, v{t0}")
    a(f"v_lshl_add_u32 v{t0}, v{t2}, 9, v{t0}")
    a(f"v_lshrrev_b32 v{t2}, 5, v{lane}")
    a(f"v_lshl_add_u32 v{vrr}, v{t2}, 10, v{t0}")
    a(f"v_mov_b32 v{vtk}, s{sTok}")
    a(f"s_mul_i32 s{sT}, s{sSlot}, {CH_REG}")
    a(f"s_lshl_b32 s{sT2}, s{sPar}, 8")
    a(f"s_sub_u32 s{sT}, s{sT}, s{sT2}")
    a(f"s_add_u32 s{sT}, s{sT}, {32*14}")
    a(f"v_add_u32 v{vA}, s{sT}, v{vA0}")
    a(f"s_mul_i32 s{sT}, s{sSlot}, 4608")
    a(f"s_sub_u32 s{sT}, s{sT}, s{sT2}")
    a(f"s_add_u32 s{sT}, s{sT}, {CV_U[0] - 512 + 32*15}")
    a(f"v_add_u32 v{vBq}, s{sT}, v{vB0}")
    a("s_waitcnt vmcnt(0) lgkmcnt(0)")
    a(f"s_add_u32 s{sT}, s{sD[0]}, s{sSlot}")
    a(f"s_lshl_b32 s{sT}, s{sT}, 1")
    a(f"buffer_load_ushort v{vdk[0]}, v{vzero}, s[{sX_}:{sX_+3}], s{sT} offen")
    a(f"s_lshl_b32 s{sT}, s{sD[2]}, 1")
    a(f"buffer_load_ushort v{vdk[1]}, v{vzero}, s[{sX_}:{sX_+3}], s{sT} offen")
    check_flags(a, [vfl], vfa, ldf)
    stamp(a, 4)
    a(f"s_mul_i32 s{sT}, s{sWave}, {64*10240}")
    a(f"s_lshl_b32 s{sT2}, s{sD[0]}, 4")
    a(f"s_add_u32 s{sT2}, s{sT2}, s{sT}")
    a(f"buffer_load_dwordx4 {v(Ud[0],4)}, v{ua}, s[{sWS}:{sWS+3}], s{sT2} offen sc1")
    a(f"s_add_u32 s{sT2}, s{sT2}, {32*10240}")
    a(f"buffer_load_dwordx4 {v(Ud[1],4)}, v{ua}, s[{sWS}:{sWS+3}], s{sT2} offen sc1")
    a(f"s_cmp_eq_u32 s{sHeavy}, 0")
    a("s_cbranch_scc1 S_nou3")
    a(f"s_lshl_b32 s{sT2}, s{sD[2]}, 4")
    a(f"s_add_u32 s{sT2}, s{sT2}, s{sT}")
    a(f"buffer_load_dwordx4 {v(Ud[2],4)}, v{ub}, s[{sWS}:{sWS+3}], s{sT2} offen sc1")
    a.label("S_nou3")
    a(f"s_mov_b32 s{sCnt}, 2")
    a(f"s_mov_b32 s{sRound}, 0")
    a("s_waitcnt vmcnt(0)")
    a(f"ds_write_b128 v{uw}, {v(Ud[0],4)} offset:{CV_U[0]}")
    a(f"ds_write_b128 v{uw}, {v(Ud[1],4)} offset:{CV_U[0]+512}")
    a(f"ds_write_b128 v{uw3}, {v(Ud[2],4)} offset:{CV_U[2]}")
    a("s_waitcnt lgkmcnt(0)")
    a("s_barrier")
    stamp(a, 5)

    def rdlist(st):
        rd_ = []
        for j in range(8):
            rd_.append(f"ds_read_b128 {v(FB[st][j],4)}, v{vBq} offset:{512*j}")
            rd_.append(f"ds_read_b64 {v(FA[st][j],2)}, v{vA} offset:{512*(7-j)}")
            rd_.append(f"ds_read_b64 {v(FA[st][j]+2,2)}, v{vA} offset:{512*(7-j)+8}")
        rd_.append(f"v_subrev_u32 v{vA}, 64, v{vA}")
        rd_.append(f"v_subrev_u32 v{vBq}, 64, v{vBq}")
        return rd_
    def group(st, nxt):
        pairs = sorted([(c, j) for c in range(8) for j in range(c + 1)], key=lambda cj: (cj[1], cj[0]))
        rd_ = rdlist(nxt)
        for i, (c, j) in enumerate(pairs):
            a(f"v_mfma_f32_16x16x32_bf16 {v(acc[c],4)}, {v(FA[st][j],4)}, {v(FB[st][c-j],4)}, {v(acc[c],4)}")
            if i < len(rd_): a(rd_[i])
    a.label("CV_round"); a.flush_hist()
    for x in rdlist(0): a(x)
    for c in range(8):
        for i in range(4): a(f"v_mov_b32 v{acc[c]+i}, 0")
    a.label("CV_loop")
    a("s_waitcnt lgkmcnt(0)")
    group(0, 1)
    a("s_waitcnt lgkmcnt(0)")
    group(1, 0)
    a(f"s_sub_u32 s{sCnt}, s{sCnt}, 1")
    a(f"s_cmp_lg_u32 s{sCnt}, 0")
    a("s_cbranch_scc1 CV_loop")
    a("s_waitcnt lgkmcnt(0)")
    a("s_barrier")
    for c in range(8):
        a(f"ds_write_b128 v{vrw}, {v(acc[c],4)} offset:{1024*c}")
    a("s_waitcnt lgkmcnt(0)")
    a("s_barrier")
    Rd = FA[1]; Uq = FB[1]
    def finish(npart, nblk, vdsk):
        for b in range(nblk):
            bs = b * npart * 2
            for p in range(1, npart):
                for e in range(2):
                    for hf in range(2):
                        a(f"v_pk_add_f32 {v(Rd[bs+e]+2*hf,2)}, {v(Rd[bs+e]+2*hf,2)}, {v(Rd[bs+2*p+e]+2*hf,2)}")
            o = FB[1][4 + b]; T_ = FB[1][2]; T2_ = FB[1][3]
            for m in range(4):
                y = Rd[bs + m // 2] + 2 * (m % 2)
                u = Uq[b] + m
                a(f"v_cvt_pk_bf16_f32 v{o+m}, v{y}, v{y+1}")
                a(f"v_lshlrev_b32 v{T_}, 16, v{u}")
                a(f"v_and_b32 v{T_+1}, 0xffff0000, v{u}")
                a(f"v_pk_mul_f32 {v(T_,2)}, {v(T_,2)}, {v(vdsk,2)} op_sel_hi:[1,0]")
                a(f"v_cvt_pk_bf16_f32 v{T_+2}, v{T_}, v{T_+1}")
                a(f"v_lshlrev_b32 v{T_}, 16, v{T_+2}")
                a(f"v_and_b32 v{T_+1}, 0xffff0000, v{T_+2}")
                a(f"v_lshlrev_b32 v{T2_}, 16, v{o+m}")
                a(f"v_and_b32 v{T2_+1}, 0xffff0000, v{o+m}")
                a(f"v_pk_add_f32 {v(T_,2)}, {v(T_,2)}, {v(T2_,2)}")
                a(f"v_cvt_pk_bf16_f32 v{o+m}, v{T_}, v{T_+1}")
            a(f"buffer_store_dwordx4 {v(o,4)}, v{v16}, s[{sWS}:{sWS+3}], s{sT2} offen offset:{1024*b} sc1")
    dsk = FB[1][6]
    def flag1():
        a(f"s_add_u32 s{sT}, s{sD[0]}, s{sSlot}")
        a(f"s_lshl_b32 s{sT}, s{sT}, 7")
        a(f"s_lshl_b32 s{sT2}, s{sPar}, 3")
        a(f"s_add_u32 s{sT}, s{sT}, s{sT2}")
        a(f"s_add_u32 s{sT}, s{sT}, {WS_FST}")
        a(f"v_lshlrev_b32 v{t0}, 2, v{lane}")
        a("s_waitcnt vmcnt(0)")
        a("s_mov_b64 exec, 3")
        a(f"buffer_store_dword v{vtk}, v{t0}, s[{sWS}:{sWS+3}], s{sT} offen sc1")
        a("s_mov_b64 exec, -1")
    a(f"s_cmp_lg_u32 s{sRound}, 0")
    a("s_cbranch_scc1 CV_fin2")
    stamp(a, 6)
    a(f"s_lshl_b32 s{sT}, s{sSlot}, 14")
    a(f"s_lshl_b32 s{sT2}, s{sPar}, 12")
    a(f"s_add_u32 s{sT}, s{sT}, s{sT2}")
    a(f"v_add_u32 v{t0}, s{sT}, v{vrr}")
    for b in range(2):
        for p in range(2):
            for e in range(2):
                a(f"ds_read_b128 {v(Rd[(b*2+p)*2+e],4)}, v{t0} offset:{8192*p + 2048*b + 256*e}")
    a(f"s_mul_i32 s{sT}, s{sSlot}, 4608")
    a(f"s_lshl_b32 s{sT2}, s{sPar}, 11")
    a(f"s_add_u32 s{sT}, s{sT}, s{sT2}")
    a(f"v_add_u32 v{t2}, s{sT}, v{v16}")
    for b in range(2):
        a(f"ds_read_b128 {v(Uq[b],4)}, v{t2} offset:{CV_U[0] + 1024*b}")
    a(f"v_lshlrev_b32 v{dsk}, 16, v{vdk[0]}")
    a(f"s_add_u32 s{sT}, s{sD[0]}, s{sSlot}")
    a(f"s_lshl_b32 s{sT}, s{sT}, 12")
    a(f"s_add_u32 s{sT2}, s{sT2}, s{sT}")
    a(f"s_add_u32 s{sT2}, s{sT2}, {WS_ST}")
    a("s_waitcnt lgkmcnt(0)")
    finish(2, 2, dsk)
    stamp(a, 7)
    a(f"s_cmp_lg_u32 s{sHeavy}, 0")
    a("s_cbranch_scc1 CV_r2")
    flag1()
    a("s_branch S_end")
    a.label("CV_r2"); a.flush_hist()
    a(f"s_lshl_b32 s{sT2}, s{sWave}, 7")
    a(f"s_sub_u32 s{sT}, {2*CH_REG + 32*14}, s{sT2}")
    a(f"v_add_u32 v{vA}, s{sT}, v{vA0}")
    a(f"s_sub_u32 s{sT}, {CV_U[2] - 512 + 32*15}, s{sT2}")
    a(f"v_add_u32 v{vBq}, s{sT}, v{vB0}")
    a(f"s_mov_b32 s{sCnt}, 1")
    a(f"s_mov_b32 s{sRound}, 1")
    a("s_branch CV_round")
    a.label("CV_fin2"); a.flush_hist()
    stamp(a, 8)
    a(f"s_lshl_b32 s{sT}, s{sWave}, 11")
    a(f"v_add_u32 v{t0}, s{sT}, v{vrr}")
    for p in range(4):
        for e in range(2):
            a(f"ds_read_b128 {v(Rd[p*2+e],4)}, v{t0} offset:{8192*p + 256*e}")
    a(f"s_lshl_b32 s{sT3}, s{sWave}, 10")
    a(f"v_add_u32 v{t2}, s{sT3}, v{v16}")
    a(f"ds_read_b128 {v(Uq[0],4)}, v{t2} offset:{CV_U[2]}")
    flag1()
    a(f"v_lshlrev_b32 v{dsk}, 16, v{vdk[1]}")
    a(f"s_lshl_b32 s{sT}, s{sD[2]}, 12")
    a(f"s_add_u32 s{sT2}, s{sT3}, s{sT}")
    a(f"s_add_u32 s{sT2}, s{sT2}, {WS_ST}")
    a("s_waitcnt lgkmcnt(0)")
    finish(4, 1, dsk)
    a(f"s_lshl_b32 s{sT}, s{sD[2]}, 7")
    a(f"s_lshl_b32 s{sT2}, s{sWave}, 2")
    a(f"s_add_u32 s{sT}, s{sT}, s{sT2}")
    a(f"s_add_u32 s{sT}, s{sT}, {WS_FST}")
    a("s_waitcnt vmcnt(0)")
    a("s_mov_b64 exec, 1")
    a(f"buffer_store_dword v{vtk}, v{vzero}, s[{sWS}:{sWS+3}], s{sT} offen sc1")
    a.label("S_end")
    stamp_end(a, sWave)
    return max(hi, R.hi)

W_SLOT = 12288
X_OFF = 3 * W_SLOT
X_WAVE = 11264
NXU = 5
def g_role(a):
    sX, sW1, sB1, sOUT = 20, 24, 28, 32
    sRB, sCB, sTB, sJD, sId = 36, 37, 38, 39, 3
    sP = [40, 41, 42]
    sWoff, sXoff, sM0w, sM0x, sOA, sOB = 43, 44, 45, 46, 47, 48
    R = Alloc(1)
    lane = R(); t0 = R(); t1 = R(); t2 = R(); t3 = R(); vzero = R(); vtok = R(); v16 = R(); vfa = R()
    vfl = R(); vsa = R()
    NWR = 25
    NWI = 18
    WR = [R(4, 4) for _ in range(NWR)]
    base2 = pool = R.mark()
    R.reset(184)
    acc = [[R(4, 4) for ct in range(2)] for rt in range(6)]
    cs = [R(4, 4) for _ in range(2)]
    st = [R(2, 2) for _ in range(2)]
    b1p = [R(2, 2) for _ in range(6)]
    R.reset(WR[NWI]); R.limit = 184
    A = [[R(4, 4) for rt in range(6)] for _ in range(2)]
    X = [[[R(4, 4) for ct in range(2)] for e in range(2)] for _ in range(2)]
    ones = R(4, 4)
    vE = [R() for _ in range(3)]; vO = [R() for _ in range(3)]
    vW = [R() for _ in range(3)]; vXs = [R(), R()]; vXr = [R(), R()]
    vpf = R()
    stamp_begin(a)
    if ENV("GPRIO", 0): a(f"s_setprio {ENV('GPRIO', 0)}")
    a(f"s_load_dwordx2 s[{sX}:{sX+1}], s[0:1], 0")
    a(f"s_load_dwordx2 s[{sW1}:{sW1+1}], s[0:1], 80")
    a(f"v_lshrrev_b32 v{t0}, 6, v0")
    a(f"v_and_b32 v{lane}, 63, v0")
    a(f"v_readfirstlane_b32 s{sWave}, v{t0}")
    a(f"s_sub_u32 s{sId}, s2, 256")
    srd(a, sX, L * D * 2); srd(a, sW1, D * F * 2)
    a(f"s_lshr_b32 s{sT3}, s{sId}, 3")
    a(f"s_lshl_b32 s{sT3}, s{sT3}, 2")
    a(f"s_add_u32 s{sT3}, s{sT3}, s{sWave}")
    a(f"v_mul_u32_u24 v{t1}, 0xaaab, v{lane}")
    a(f"v_lshrrev_b32 v{t1}, 19, v{t1}")
    a(f"v_mul_u32_u24 v{t2}, 12, v{t1}")
    a(f"v_sub_u32 v{t2}, v{lane}, v{t2}")
    a(f"v_mul_u32_u24 v{t1}, {128*3072}, v{t1}")
    a(f"v_lshl_add_u32 v{t1}, v{t2}, 7, v{t1}")
    a(f"s_mul_i32 s{sT2}, s{sT3}, 3072")
    a(f"s_and_b32 s{sT}, s{sId}, 1")
    a(f"s_mul_i32 s{sT}, s{sT}, 1536")
    a(f"s_add_u32 s{sT2}, s{sT2}, s{sT}")
    a(f"v_lshrrev_b32 v{t2}, 3, v{lane}")
    a(f"v_lshlrev_b32 v{t2}, 8, v{t2}")
    a(f"v_and_b32 v{t3}, 1, v{lane}")
    a(f"v_lshl_add_u32 v{t2}, v{t3}, 7, v{t2}")
    a(f"v_bfe_u32 v{t3}, v{lane}, 1, 2")
    a(f"v_mul_u32_u24 v{t3}, 1280, v{t3}")
    a(f"v_add_u32 v{t2}, v{t2}, v{t3}")
    a(f"s_bfe_u32 s{sT}, s{sId}, 0x20001")
    a(f"s_lshl_b32 s{sT}, s{sT}, 7")
    a(f"s_add_u32 s{sT}, s{sT}, s{sT3}")
    a(f"s_mul_i32 s{sT}, s{sT}, {4*1280}")
    a("s_waitcnt lgkmcnt(0)")
    stamp(a, 1)
    if ENV("PF1", 1):
        a("s_mov_b32 exec_hi, 0xff")
        a(f"buffer_load_dword v{ones}, v{t2}, s[{sX}:{sX+3}], s{sT} offen")
        a("s_mov_b32 exec_hi, 0x0fffffff")
        a(f"buffer_load_dword v{ones+1}, v{t1}, s[{sW1}:{sW1+3}], s{sT2} offen")
        a("s_mov_b32 exec_hi, -1")
    a(f"s_load_dwordx2 s[{sB1}:{sB1+1}], s[0:1], 88")
    a(f"s_load_dwordx2 s[{sWS}:{sWS+1}], s[0:1], 120")
    a(f"s_load_dwordx2 s[{sDBG}:{sDBG+1}], s[0:1], 112")
    a(f"s_load_dwordx2 s[{sOUT}:{sOUT+1}], s[0:1], 104")
    srd(a, sB1, F * 2); srd(a, sWS, WS_SIZE); srd(a, sDBG, 256); srd(a, sOUT, L * D * 2)
    a(f"s_and_b32 s{sT}, s{sId}, 7")
    a(f"s_lshr_b32 s{sT2}, s{sId}, 3")
    a(f"s_lshr_b32 s{sRB}, s{sT}, 1")
    a(f"s_lshl_b32 s{sTB}, s{sRB}, 3")
    a(f"s_lshl_b32 s{sRB}, s{sRB}, 2")
    a(f"s_and_b32 s{sT3}, s{sT2}, 3")
    a(f"s_add_u32 s{sRB}, s{sRB}, s{sT3}")
    a(f"s_and_b32 s{sT3}, s{sT2}, 7")
    a(f"s_add_u32 s{sTB}, s{sTB}, s{sT3}")
    a(f"s_and_b32 s{sT}, s{sT}, 1")
    a(f"s_lshl_b32 s{sCB}, s{sT}, 3")
    a(f"s_lshr_b32 s{sT3}, s{sT2}, 2")
    a(f"s_add_u32 s{sCB}, s{sCB}, s{sT3}")
    a(f"s_lshl_b32 s{sJD}, s{sT}, 2")
    a(f"s_lshr_b32 s{sT3}, s{sT2}, 3")
    a(f"s_add_u32 s{sJD}, s{sJD}, s{sT3}")
    a(f"v_mov_b32 v{vzero}, 0")
    a(f"v_lshlrev_b32 v{v16}, 4, v{lane}")
    for i in range(3):
        a(f"v_add_u32 v{t0}, {64*i}, v{lane}")
        a(f"v_mul_u32_u24 v{t1}, 0xaaab, v{t0}")
        a(f"v_lshrrev_b32 v{t1}, 19, v{t1}")
        a(f"v_mul_u32_u24 v{t2}, 12, v{t1}")
        a(f"v_sub_u32 v{t2}, v{t0}, v{t2}")
        a(f"v_lshrrev_b32 v{t3}, 2, v{t1}")
        a(f"v_and_b32 v{t3}, 2, v{t3}")
        a(f"v_xor_b32 v{t2}, v{t2}, v{t3}")
        a(f"v_lshlrev_b32 v{t2}, 4, v{t2}")
        a(f"v_mul_u32_u24 v{t1}, 3072, v{t1}")
        a(f"v_add_u32 v{vW[i]}, v{t1}, v{t2}")
        if i: a(f"v_subrev_u32 v{vW[i]}, {1024*i}, v{vW[i]}")
    a(f"s_mul_i32 s{sWoff}, s{sWave}, {16*3072}")
    a(f"s_mul_i32 s{sT}, s{sCB}, 192")
    a(f"s_add_u32 s{sWoff}, s{sWoff}, s{sT}")
    a(f"s_mul_i32 s{sM0w}, s{sWave}, 3072")
    a(f"v_lshrrev_b32 v{t0}, 3, v{lane}")
    a(f"v_and_b32 v{t1}, 7, v{lane}")
    a(f"v_lshrrev_b32 v{t2}, 1, v{t0}")
    a(f"v_xor_b32 v{t1}, v{t1}, v{t2}")
    a(f"v_mul_u32_u24 v{t0}, 1280, v{t0}")
    a(f"v_lshl_add_u32 v{vXs[0]}, v{t1}, 4, v{t0}")
    a(f"v_xor_b32 v{vXs[1]}, 64, v{vXs[0]}")
    a(f"v_add_u32 v{vXs[1]}, {8*1280 - 1024}, v{vXs[1]}")
    a(f"s_lshl_b32 s{sXoff}, s{sRB}, 7")
    a(f"s_lshl_b32 s{sT}, s{sWave}, 5")
    a(f"s_add_u32 s{sXoff}, s{sXoff}, s{sT}")
    a(f"s_mul_i32 s{sXoff}, s{sXoff}, 1280")
    a(f"s_mul_i32 s{sM0x}, s{sWave}, {X_WAVE}")
    a(f"s_add_u32 s{sM0x}, s{sM0x}, {X_OFF}")

    tokW = {}; tokXu = {}
    def ops_w(c):
        def f0():
            a(f"s_add_u32 m0, s{sM0w}, {(c % 3) * W_SLOT}")
            if c: a(f"s_add_u32 s{sWoff}, s{sWoff}, {64*3072}")
        def fi(i):
            def f():
                a(f"buffer_load_dwordx4 v{vW[i]}, s[{sW1}:{sW1+3}], s{sWoff} offen offset:{1024*i} lds")
                if i == 2: tokW[c] = a.vtok()
            return f
        return [f0] + [fi(i) for i in range(3)]
    def ops_x(u):
        c, ct = u // 2, u % 2
        def f0():
            a(f"s_add_u32 m0, s{sM0x}, {(u % NXU) * 2048}")
            a(f"s_add_u32 s{sT}, s{sXoff}, {ct*16*1280 + c*128}")
        def fi(h):
            def f():
                a(f"buffer_load_dwordx4 v{vXs[h]}, s[{sX}:{sX+3}], s{sT} offen offset:{1024*h} lds")
                if h == 1: tokXu[u] = a.vtok()
            return f
        return [f0, fi(0), fi(1)]
    for f in ops_w(0) + ops_x(0) + ops_x(1) + ops_w(1) + ops_x(2) + ops_x(3) + ops_x(4) + ops_w(2): f()

    a(f"v_lshrrev_b32 v{t0}, 4, v{lane}")
    a(f"v_bfe_u32 v{t1}, v{lane}, 2, 2")
    a(f"v_lshl_add_u32 v{t1}, v{t0}, 3, v{t1}")
    a(f"v_mul_u32_u24 v{t1}, 192, v{t1}")
    a(f"v_and_b32 v{t2}, 3, v{lane}")
    a(f"v_lshl_add_u32 v{t1}, v{t2}, 3, v{t1}")
    a(f"v_and_b32 v{t2}, 1, v{t0}")
    a(f"v_lshlrev_b32 v{t2}, 5, v{t2}")
    a(f"v_sub_u32 v{t3}, v{t1}, v{t2}")
    a(f"v_add_u32 v{t3}, 32, v{t3}")
    a(f"v_add_u32 v{t2}, v{t1}, v{t2}")
    for P in range(3):
        a(f"s_add_u32 s{sP[P]}, s{sWave}, {P}")
        a(f"s_cmp_ge_u32 s{sP[P]}, 3")
        a(f"s_cselect_b32 s{sT}, 3, 0")
        a(f"s_sub_u32 s{sP[P]}, s{sP[P]}, s{sT}")
        a(f"s_lshl_b32 s{sT}, s{sP[P]}, 6")
        a(f"v_add_u32 v{vE[P]}, s{sT}, v{t2}")
        a(f"v_add_u32 v{vO[P]}, s{sT}, v{t3}")
    a(f"v_and_b32 v{t1}, 15, v{lane}")
    a(f"v_lshrrev_b32 v{t2}, 1, v{t1}")
    a(f"v_xor_b32 v{t2}, v{t2}, v{t0}")
    a(f"v_lshlrev_b32 v{t2}, 4, v{t2}")
    a(f"v_lshl_add_u32 v{t2}, v{t1}, 7, v{t2}")
    a(f"v_add_u32 v{vXr[0]}, s{sM0x}, v{t2}")
    a(f"v_xor_b32 v{t2}, 64, v{t2}")
    a(f"v_add_u32 v{vXr[1]}, s{sM0x}, v{t2}")
    a(f"v_lshrrev_b32 v{t2}, 3, v{t1}")
    a(f"v_and_b32 v{t1}, 7, v{t1}")
    a(f"v_lshlrev_b32 v{t1}, 3, v{t1}")
    a(f"v_lshl_add_u32 v{vsa}, v{t2}, 7, v{t1}")
    a(f"v_and_b32 v{vfa}, 3, v{lane}")
    a(f"v_lshlrev_b32 v{vfa}, 7, v{vfa}")
    a(f"s_mul_i32 s{sT}, s{sWave}, 12")
    a(f"s_mul_i32 s{sOA}, s{sJD}, 48")
    a(f"s_add_u32 s{sOA}, s{sOA}, s{sT}")
    a(f"s_mul_i32 s{sOA}, s{sOA}, 5120")
    a(f"s_add_u32 s{sOA}, s{sOA}, {WS_W2A}")
    a(f"s_mul_i32 s{sOB}, s{sTB}, 192")
    a(f"s_add_u32 s{sOB}, s{sOB}, s{sT}")
    a(f"s_lshl_b32 s{sOB}, s{sOB}, 10")
    a(f"s_add_u32 s{sOB}, s{sOB}, {WS_ACT}")
    a(f"s_and_b32 s{sT}, s{sTB}, 7")
    a(f"s_lshl_b32 s{sT}, s{sT}, 7")
    a(f"v_lshl_add_u32 v{vpf}, v{lane}, 10, s{sT}")
    a(f"v_lshlrev_b32 v{t0}, 3, v{t0}")

    tokA = {}; tokXr = {}
    def ops_ra(ks):
        c, e = ks // 2, ks % 2
        off = (c % 3) * W_SLOT + e * 6144
        out = []
        for rt in range(6):
            ad = (vE if rt % 2 == 0 else vO)[rt // 2]
            for h in range(2):
                def f(rt=rt, h=h, ad=ad):
                    a(f"ds_read_b64_tr_b16 {v(A[ks%2][rt] + 2*h, 2)}, v{ad} offset:{off + 768*h}")
                    tokA[(ks, rt)] = a.ltok()
                out.append(f)
        return out
    def ops_rx(c):
        out = []
        for e in range(2):
            for ct in range(2):
                def f(e=e, ct=ct):
                    a(f"ds_read_b128 {v(X[c%2][e][ct],4)}, v{vXr[e]} offset:{((2*c+ct) % NXU) * 2048}")
                    tokXr[c] = a.ltok()
                out.append(f)
        return out
    def mf(d, A_, B_, first):
        c = "0" if first else v(d, 4)
        a(f"v_mfma_f32_16x16x32_bf16 {v(d,4)}, {v(A_,4)}, {v(B_,4)}, {c}")
    wq = [0]
    tokWR = {}
    def ops_wr(n, lim=NWI):
        out = []
        for it_ in range(n):
            f_ = wq[0]
            if f_ >= lim: break
            def f(f_=f_, it_=it_):
                if f_ % 4 == 0 or it_ == 0: a(f"s_add_u32 s{sT2}, s{sOA}, {1024*(f_ - f_%4)}")
                a(f"buffer_load_dwordx4 {v(WR[f_],4)}, v{v16}, s[{sWS}:{sWS+3}], s{sT2} offen offset:{1024*(f_%4)} sc1")
                tokWR[f_] = a.vtok()
            out.append(f); wq[0] += 1
        return out
    def ld_w2flags():
        a(f"buffer_load_dword v{vfl}, v{vfa}, s[{sWS}:{sWS+3}], s{sT3} offen sc1")
    def ld_stats():
        for ct in range(2):
            a(f"buffer_load_dwordx2 {v(st[ct],2)}, v{vsa}, s[{sWS}:{sWS+3}], s{sT3} offen offset:{256*ct} sc1")
    tk = {}
    def op_tok():
        a(f"buffer_load_dword v{vtok}, v{vzero}, s[{sDBG}:{sDBG+3}], 0 offen sc1")
        tk["tok"] = a.vtok()
    def op_chk_tok():
        a.wait(vm=tk["tok"])
        check_token(a, vtok, vzero)
        a(f"s_lshl_b32 s{sT3}, s{sJD}, 4")
        a(f"s_lshl_b32 s{sT2}, s{sWave}, 2")
        a(f"s_add_u32 s{sT3}, s{sT3}, s{sT2}")
        a(f"s_lshl_b32 s{sT3}, s{sT3}, 7")
        a(f"s_add_u32 s{sT3}, s{sT3}, {WS_FW2}")
        ld_w2flags(); tk["fl"] = a.vtok()
    def op_chk_w2():
        a.wait(vm=tk["fl"])
        check_flags(a, [vfl], vfa, ld_w2flags)
        if ENV("PFW", 1):
            a("s_mov_b32 exec_hi, 0x0fffffff")
            a(f"buffer_load_dword v{vfl}, v{vpf}, s[{sWS}:{sWS+3}], s{sOA} offen sc1")
            a("s_mov_b32 exec_hi, -1")
    def op_stats():
        a(f"s_lshl_b32 s{sT3}, s{sRB}, 4")
        a(f"s_lshl_b32 s{sT2}, s{sWave}, 2")
        a(f"s_add_u32 s{sT3}, s{sT3}, s{sT2}")
        a(f"s_lshl_b32 s{sT3}, s{sT3}, 7")
        a(f"s_add_u32 s{sT3}, s{sT3}, {WS_STAT}")
        ld_stats()
    def op_b1(P):
        def f():
            a(f"s_mul_i32 s{sT2}, s{sCB}, 192")
            a(f"s_lshl_b32 s{sT}, s{sP[P]}, 6")
            a(f"s_add_u32 s{sT}, s{sT}, s{sT2}")
            for o in range(2):
                a(f"buffer_load_dwordx2 {v(b1p[2*P+o],2)}, v{t0}, s[{sB1}:{sB1+3}], s{sT} offen offset:{32*o}")
            tk["st"] = a.vtok()
        return f

    a("s_waitcnt lgkmcnt(0)")
    a.wait(vm=max(tokW[0], tokXu[1]))
    for i in range(4): a(f"v_mov_b32 v{ones+i}, 0x3f803f80")
    a("s_barrier")
    stamp(a, 2)
    for f in ops_rx(0) + ops_ra(0): f()
    extra = {1: [op_tok], 7: [op_chk_tok], 11: [op_chk_w2], 14: [op_stats, op_b1(0), op_b1(1), op_b1(2)]}
    for ks in range(20):
        c, e = ks // 2, ks % 2
        first = ks == 0
        Xs = X[c % 2][e]; As = A[ks % 2]
        mlist = []
        for rt in range(6):
            for ct in range(2): mlist.append((rt, acc[rt][ct], As[rt], Xs[ct]))
            if rt < 2: mlist.append((rt, cs[rt], As[rt], ones))
        if e == 0:
            fill = ops_ra(ks + 1)
            dma = []
            for u in (2 * c + 5, 2 * c + 6):
                if u < 20: dma += ops_x(u)
            fl2 = []
            for i, f in enumerate(fill):
                fl2.append(f)
                if i % 2 == 1 and dma: fl2.append(dma.pop(0))
            fill = fl2 + dma + extra.get(ks, [])
            if ks >= 16: fill += ops_wr(5)
            start = 0
            a.wait(lg=tokXr[c])
        else:
            fill = []
            if ks < 19:
                fill = ops_rx(c + 1) + ops_ra(ks + 1)
                if c + 3 < 10: fill += ops_w(c + 3)
            fill += extra.get(ks, [])
            if ks >= 15: fill += ops_wr(4)
            start = 6 if ks < 19 else 0
        nslots = len(mlist) - start
        per = [len(fill) // nslots + (1 if i < len(fill) % nslots else 0) for i in range(nslots)]
        lastrt = -1
        for i, (rt, d, A_, B_) in enumerate(mlist):
            if e == 1 and ks < 19 and i == start:
                a.wait(vm=max(tokW[c + 1], tokXu[2 * c + 3]), lg=a.ltok())
                a("s_barrier")
                if ks in (5, 11): stamp(a, {5: 3, 11: 4}[ks])
                lastrt = 99
            if rt > lastrt:
                a.wait(lg=tokA[(ks, rt)]); lastrt = rt
            mf(d, A_, B_, first)
            if i >= start:
                for _ in range(per[i - start]): fill.pop(0)()
        assert not fill
    for f in ops_wr(NWR, NWR): f()
    tokst = tk["st"]
    stamp(a, 5)

    E = Alloc(pool, limit=184)
    csv = [E(4, 4) for _ in range(6)]
    b1v = [E(4, 4) for _ in range(6)]
    rr = [E(2, 2) for _ in range(2)]
    tmp = [E(2, 2) for _ in range(8)]
    outp = cs
    vcs = E()
    CSOFF = 2 * W_SLOT
    a(f"v_lshrrev_b32 v{t0}, 4, v{lane}")
    a(f"v_lshlrev_b32 v{vcs}, 4, v{t0}")
    a(f"s_lshl_b32 s{sT}, s{sP[0]}, 7")
    a(f"v_add_u32 v{t1}, s{sT}, v{vcs}")
    for o in range(2):
        a(f"ds_write_b128 v{t1}, {v(cs[o],4)} offset:{CSOFF + 64*o}")
    a.wait(vm=tokst)
    check_flags(a, [st[0] + 1, st[1] + 1], vsa, ld_stats)
    a("s_waitcnt lgkmcnt(0)")
    a("s_barrier")
    for P in range(3):
        a(f"s_lshl_b32 s{sT}, s{sP[P]}, 7")
        a(f"v_add_u32 v{t1}, s{sT}, v{vcs}")
        for o in range(2):
            a(f"ds_read_b128 {v(csv[2*P+o],4)}, v{t1} offset:{CSOFF + 64*o}")
    for ct in range(2):
        a(f"v_and_b32 v{t1}, 0xffff0000, v{st[ct]}")
        a(f"v_rcp_f32 v{rr[ct]}, v{t1}")
        a(f"v_lshlrev_b32 v{t2}, 16, v{st[ct]}")
        a(f"v_mul_f32 v{rr[ct]+1}, v{t2}, v{rr[ct]}")
        a(f"v_sub_f32 v{rr[ct]+1}, 0, v{rr[ct]+1}")
    for rt in range(6):
        a(f"v_lshlrev_b32 v{b1v[rt]}, 16, v{b1p[rt]}")
        a(f"v_and_b32 v{b1v[rt]+1}, 0xffff0000, v{b1p[rt]}")
        a(f"v_lshlrev_b32 v{b1v[rt]+2}, 16, v{b1p[rt]+1}")
        a(f"v_and_b32 v{b1v[rt]+3}, 0xffff0000, v{b1p[rt]+1}")
    a(f"s_lshl_b32 s{sT}, s{sRB}, 3")
    a(f"s_lshl_b32 s{sT2}, s{sWave}, 1")
    a(f"s_add_u32 s{sT}, s{sT}, s{sT2}")
    a(f"s_mul_i32 s{sT}, s{sT}, 48")
    a(f"s_mul_i32 s{sT2}, s{sCB}, 3")
    a(f"s_add_u32 s{sT}, s{sT}, s{sT2}")
    for P in range(3):
        a(f"s_add_u32 s{sP[P]}, s{sP[P]}, s{sT}")
        a(f"s_lshl_b32 s{sP[P]}, s{sP[P]}, 10")
        a(f"s_add_u32 s{sP[P]}, s{sP[P]}, {WS_ACT}")
    a(f"s_mov_b32 s50, {f32(LOG2E)}"); a(f"s_mov_b32 s51, {f32(LOG2E)}")
    a("s_waitcnt lgkmcnt(0)")
    a("s_barrier")
    stamp(a, 6)
    NWL = 20
    a(f"s_mul_i32 s{sM0w}, s{sWave}, {NWL*1024}")
    lq = [0]
    def issue_wl(n):
        for _ in range(n):
            i = lq[0]
            if i >= NWL: return
            a(f"s_add_u32 m0, s{sM0w}, {1024*i}")
            a(f"s_add_u32 s{sT2}, s{sOA}, {1024*(NWR+i)}")
            a(f"buffer_load_dwordx4 v{v16}, s[{sWS}:{sWS+3}], s{sT2} offen sc1 lds")
            lq[0] += 1
    k = 0
    for P in range(3):
        for ct in range(2):
            op = outp[k % 2]; k += 1
            issue_wl(4)
            hs = []
            for o in range(2):
                rt = 2 * P + o
                for hf in range(2):
                    h = acc[rt][ct] + 2 * hf
                    tt = tmp[len(hs)]
                    a(f"v_pk_fma_f32 {v(tt,2)}, {v(csv[rt]+2*hf,2)}, {v(rr[ct],2)}, {v(b1v[rt]+2*hf,2)} op_sel:[0,1,0] op_sel_hi:[1,1,1]")
                    a(f"v_pk_fma_f32 {v(h,2)}, {v(h,2)}, {v(rr[ct],2)}, {v(tt,2)} op_sel:[0,0,0] op_sel_hi:[1,0,1]")
                    hs.append(h)
            for i, h in enumerate(hs): a(f"v_pk_mul_f32 {v(tmp[i],2)}, {v(h,2)}, s[50:51]")
            for i, h in enumerate(hs):
                a(f"v_min_f32 v{tmp[i]}, {f32(30.0)}, v{tmp[i]}")
                a(f"v_min_f32 v{tmp[i]+1}, {f32(30.0)}, v{tmp[i]+1}")
            for i, h in enumerate(hs):
                a(f"v_exp_f32 v{tmp[i]}, v{tmp[i]}")
                a(f"v_exp_f32 v{tmp[i]+1}, v{tmp[i]+1}")
            for i, h in enumerate(hs): a(f"v_pk_add_f32 {v(tmp[4+i],2)}, {v(tmp[i],2)}, 2.0 op_sel_hi:[1,0]")
            for i, h in enumerate(hs): a(f"v_pk_mul_f32 {v(tmp[i],2)}, {v(tmp[i],2)}, {v(tmp[4+i],2)}")
            for i, h in enumerate(hs): a(f"v_pk_add_f32 {v(tmp[4+i],2)}, {v(tmp[i],2)}, 2.0 op_sel_hi:[1,0]")
            for i, h in enumerate(hs):
                a(f"v_rcp_f32 v{tmp[4+i]}, v{tmp[4+i]}")
                a(f"v_rcp_f32 v{tmp[4+i]+1}, v{tmp[4+i]+1}")
            for i, h in enumerate(hs): a(f"v_pk_mul_f32 {v(h,2)}, {v(h,2)}, {v(tmp[i],2)}")
            for i, h in enumerate(hs): a(f"v_pk_mul_f32 {v(h,2)}, {v(h,2)}, {v(tmp[4+i],2)}")
            for i, h in enumerate(hs): a(f"v_cvt_pk_bf16_f32 v{op+i}, v{h}, v{h+1}")
            if ct == 0:
                a(f"buffer_store_dwordx4 {v(op,4)}, v{v16}, s[{sWS}:{sWS+3}], s{sP[P]} offen sc1")
            else:
                a(f"s_add_u32 s{sT}, s{sP[P]}, {48*1024}")
                a(f"buffer_store_dwordx4 {v(op,4)}, v{v16}, s[{sWS}:{sWS+3}], s{sT} offen sc1")
    stamp(a, 7)
    a(f"s_lshl_b32 s{sT}, s{sRB}, 4")
    a(f"s_add_u32 s{sT}, s{sT}, s{sCB}")
    a(f"s_lshl_b32 s{sT}, s{sT}, 2")
    a(f"s_add_u32 s{sT}, s{sT}, s{sWave}")
    a(f"s_lshl_b32 s{sT}, s{sT}, 7")
    a(f"s_add_u32 s{sT}, s{sT}, {WS_FACT}")
    a(f"v_mov_b32 v{vtok}, s{sTok}")

    Q = Alloc(base2, limit=256)
    acc2 = [[Q(4, 4) for ct in range(4)] for rt in range(5)]
    NST = 3
    FB = [[Q(4, 4) for _ in range(4)] for _ in range(NST)]
    vB = [Q() for _ in range(4)]
    vxo = Q(); vxo2 = Q(); vlr = Q()
    for ct in range(4):
        a(f"s_add_u32 s{sT2}, s{sWave}, {ct}")
        a(f"s_and_b32 s{sT2}, s{sT2}, 3")
        a(f"s_mul_i32 s{sT2}, s{sT2}, {48*1024}")
        a(f"v_add_u32 v{vB[ct]}, s{sT2}, v{v16}")
    a(f"v_add_u32 v{vlr}, s{sM0w}, v{v16}")
    a(f"v_and_b32 v{t0}, 3, v{lane}")
    a(f"v_bfe_u32 v{t1}, v{lane}, 2, 1")
    a(f"v_lshl_add_u32 v{vfa}, v{t0}, 2, v{t1}")
    a(f"v_lshlrev_b32 v{vfa}, 7, v{vfa}")
    a(f"s_lshr_b32 s{sT3}, s{sTB}, 1")
    a(f"s_lshl_b32 s{sT3}, s{sT3}, 2")
    a(f"s_add_u32 s{sT3}, s{sT3}, s{sWave}")
    a(f"s_lshl_b32 s{sT3}, s{sT3}, 3")
    a(f"s_and_b32 s{sT2}, s{sTB}, 1")
    a(f"s_add_u32 s{sT3}, s{sT3}, s{sT2}")
    a(f"s_lshl_b32 s{sT3}, s{sT3}, 8")
    a(f"s_add_u32 s{sT3}, s{sT3}, {WS_FACT}")
    a("s_waitcnt vmcnt(0)")
    a("s_mov_b64 exec, 1")
    a(f"buffer_store_dword v{vtok}, v{vzero}, s[{sWS}:{sWS+3}], s{sT} offen sc1")
    a("s_mov_b64 exec, -1")
    stamp(a, 8)
    ld_w2flags()
    a("s_waitcnt vmcnt(0)")
    check_flags(a, [vfl], vfa, ld_w2flags, sleep=1)
    stamp(a, 9)
    tokB = {}
    def issue_b(k):
        for ct in range(4):
            a(f"buffer_load_dwordx4 {v(FB[k%NST][ct],4)}, v{vB[ct]}, s[{sWS}:{sWS+3}], s{sOB} offen sc1")
        tokB[k] = a.vtok()
        if k < 11: a(f"s_add_u32 s{sOB}, s{sOB}, 1024")
    for k in range(NST): issue_b(k)
    a(f"s_lshl_b32 s{sT}, s{sTB}, 6")
    a(f"s_lshl_b32 s{sT2}, s{sWave}, 4")
    a(f"s_add_u32 s{sT}, s{sT}, s{sT2}")
    a(f"v_and_b32 v{t0}, 15, v{lane}")
    a(f"v_add_u32 v{t0}, s{sT}, v{t0}")
    a(f"v_mul_u32_u24 v{t1}, 1280, v{t0}")
    a(f"s_mul_i32 s{sT2}, s{sJD}, 160")
    a(f"v_add_u32 v{t1}, s{sT2}, v{t1}")
    a(f"v_lshrrev_b32 v{t2}, 4, v{lane}")
    a(f"v_lshl_add_u32 v{vxo}, v{t2}, 4, v{t1}")
    a(f"v_lshl_add_u32 v{vxo2}, v{t2}, 3, v{t1}")
    a(f"v_min_u32 v{vfa}, 19, v{lane}")
    a(f"v_lshlrev_b32 v{vfa}, 7, v{vfa}")
    a(f"s_mul_i32 s{sT3}, s{sJD}, 80")
    a(f"s_mul_i32 s{sT}, s{sWave}, 20")
    a(f"s_add_u32 s{sWoff}, s{sT3}, s{sT}")
    a(f"s_lshl_b32 s{sT3}, s{sWoff}, 7")
    a(f"s_lshr_b32 s{sT}, s{sTB}, 3")
    a(f"s_lshl_b32 s{sT}, s{sT}, 2")
    a(f"s_add_u32 s{sT3}, s{sT3}, s{sT}")
    a(f"s_add_u32 s{sT3}, s{sT3}, {WS_FST}")
    slot = {f: f for f in range(NWR)}
    tokL = {}; tokG = {}
    for k in range(12):
        for rt in range(5):
            f = 5 * k + rt
            if rt == 0: a.wait(vm=tokB[k])
            if f in tokL: a.wait(lg=tokL[f])
            if f in tokG: a.wait(vm=tokG[f])
            for ct in range(4):
                c = "0" if k == 0 else v(acc2[rt][ct], 4)
                a(f"v_mfma_f32_16x16x32_bf16 {v(acc2[rt][ct],4)}, {v(WR[slot[f]],4)}, {v(FB[k%NST][ct],4)}, {c}")
        if k in (0, 5): stamp(a, {0: 10, 5: 11}[k])
        if k + NST < 12: issue_b(k + NST)
        order = {0: 9, 1: 5, 2: 10, 3: 6, 4: 11, 5: 7, 6: 8}
        if k in order:
            k2 = order[k]
            for rt in range(5):
                f2 = 5 * k2 + rt; sl = slot[5 * k + rt]; slot[f2] = sl
                if f2 >= NWR + NWL:
                    if rt == 0: a(f"s_add_u32 s{sT2}, s{sOA}, {1024*f2}")
                    if rt < 4: a(f"buffer_load_dwordx4 {v(WR[sl],4)}, v{v16}, s[{sWS}:{sWS+3}], s{sT2} offen offset:{1024*rt} sc1")
                    else:
                        a(f"s_add_u32 s{sT2}, s{sT2}, 4096")
                        a(f"buffer_load_dwordx4 {v(WR[sl],4)}, v{v16}, s[{sWS}:{sWS+3}], s{sT2} offen sc1")
                    tokG[f2] = a.vtok()
                else:
                    a(f"ds_read_b128 {v(WR[sl],4)}, v{vlr} offset:{1024*(f2-NWR)}")
                    tokL[f2] = a.ltok()
        if k == 8:
            ld_w2flags(); tokfl = a.vtok()
            xr = WR[slot[35]]
            xq = [WR[slot[35]], WR[slot[36]], WR[slot[37]]]
            a(f"buffer_load_dwordx4 {v(xq[0],4)}, v{vxo}, s[{sX}:{sX+3}], 0 offen")
            a(f"buffer_load_dwordx4 {v(xq[1],4)}, v{vxo}, s[{sX}:{sX+3}], 0 offen offset:64")
            a(f"buffer_load_dwordx2 {v(xq[2],2)}, v{vxo2}, s[{sX}:{sX+3}], 0 offen offset:128")
            a("s_barrier")
        if k == 10:
            a.wait(vm=tokfl)
            check_flags(a, [vfl], vfa, ld_w2flags)
            sq = [WR[slot[40]], WR[slot[41]], WR[slot[42]]]
            vso = WR[slot[43]]; vsw = vso + 1
            a(f"v_lshrrev_b32 v{t0}, 3, v{lane}")
            a(f"v_and_b32 v{t1}, 7, v{lane}")
            a(f"v_lshlrev_b32 v{t1}, 4, v{t1}")
            a(f"v_lshl_add_u32 v{vso}, v{t0}, 12, v{t1}")
            a(f"v_mul_u32_u24 v{vsw}, 160, v{t0}")
            a(f"v_add_u32 v{vsw}, v{vsw}, v{t1}")
            a(f"s_mul_i32 s{sT}, s{sWave}, {20*160}")
            a(f"v_add_u32 v{vsw}, s{sT}, v{vsw}")
            a(f"s_lshl_b32 s{sT}, s{sWoff}, 12")
            a(f"s_lshl_b32 s{sT2}, s{sTB}, 7")
            a(f"s_add_u32 s{sT}, s{sT}, s{sT2}")
            a(f"s_add_u32 s{sT}, s{sT}, {WS_ST}")
            for i in range(3):
                if i == 2: a("s_mov_b32 exec_hi, 0")
                a(f"buffer_load_dwordx4 {v(sq[i],4)}, v{vso}, s[{sWS}:{sWS+3}], s{sT} offen sc1")
                if i < 2: a(f"s_add_u32 s{sT}, s{sT}, {8*4096}")
            a("s_mov_b32 exec_hi, -1")
            toks_ = a.vtok()
    stamp(a, 12)
    STOFF = 61440
    for ct in range(1, 4):
        a(f"s_add_u32 s{sT2}, s{sWave}, {ct}")
        a(f"s_and_b32 s{sT2}, s{sT2}, 3")
        a(f"s_mul_i32 s{sT2}, s{sT2}, 15360")
        a(f"v_add_u32 v{t3}, s{sT2}, v{v16}")
        for rt in range(5):
            a(f"ds_write_b128 v{t3}, {v(acc2[rt][ct],4)} offset:{(ct-1)*5120 + rt*1024}")
    a("s_waitcnt vmcnt(0)")
    for i in range(3):
        if i == 2: a("s_mov_b32 exec_hi, 0")
        a(f"ds_write_b128 v{vsw}, {v(sq[i],4)} offset:{STOFF + 8*160*i}")
    a("s_mov_b32 exec_hi, -1")
    Pr = [[acc2[rt][p + 1] for rt in range(5)] for p in range(3)]
    T = [FB[i // 8][(i // 2) % 4] + 2 * (i % 2) for i in range(10)]
    sv = [FB[2][i // 2] + 2 * (i % 2) for i in range(5)]
    op = [FB[1][1], FB[1][2], FB[1][3]]
    vt8 = vB[0]; vt4 = vB[1]
    a(f"v_bfe_u32 v{t0}, v{lane}, 2, 2")
    a(f"v_lshl_add_u32 v{t1}, v{t2}, 3, v{t0}")
    a(f"v_lshl_add_u32 v{t0}, v{t2}, 2, v{t0}")
    a(f"v_mul_u32_u24 v{t1}, 160, v{t1}")
    a(f"v_mul_u32_u24 v{t0}, 160, v{t0}")
    a(f"v_and_b32 v{t3}, 3, v{lane}")
    a(f"s_lshl_b32 s{sT}, s{sWave}, 5")
    a(f"s_add_u32 s{sT}, s{sT}, {STOFF}")
    a(f"v_lshl_add_u32 v{t3}, v{t3}, 3, s{sT}")
    a(f"v_add_u32 v{vt8}, v{t1}, v{t3}")
    a(f"v_add_u32 v{vt4}, v{t0}, v{t3}")
    a(f"s_mul_i32 s{sT2}, s{sWave}, 15360")
    a(f"v_add_u32 v{t3}, s{sT2}, v{v16}")
    a(f"s_mov_b32 s50, {f32(-LOG2E)}"); a(f"s_mov_b32 s51, {f32(-LOG2E)}")
    a("s_waitcnt lgkmcnt(0)")
    a("s_barrier")
    stamp(a, 13)
    tk = {}
    for rt in range(5):
        for p in range(3):
            a(f"ds_read_b128 {v(Pr[p][rt],4)}, v{t3} offset:{p*5120 + rt*1024}")
        tk[rt] = a.ltok()
    for rt in range(5):
        if rt < 4: a(f"ds_read_b64_tr_b16 {v(sv[rt],2)}, v{vt8} offset:{160*(32*(rt>>1) + 4*(rt&1))}")
        else: a(f"ds_read_b64_tr_b16 {v(sv[rt],2)}, v{vt4} offset:{160*64}")
    o2 = []
    for rt in range(5):
        a.wait(lg=tk[rt])
        for hf in range(2):
            d = acc2[rt][0] + 2 * hf
            for p in range(3):
                a(f"v_pk_add_f32 {v(d,2)}, {v(d,2)}, {v(Pr[p][rt]+2*hf,2)}")
            o2.append(d)
    for i, d in enumerate(o2):
        a(f"v_cvt_pk_bf16_f32 v{T[i]}, v{d}, v{d+1}")
        a(f"v_lshlrev_b32 v{d}, 16, v{T[i]}")
        a(f"v_and_b32 v{d+1}, 0xffff0000, v{T[i]}")
        a(f"v_pk_mul_f32 {v(T[i],2)}, {v(d,2)}, s[50:51]")
    for i, d in enumerate(o2):
        a(f"v_exp_f32 v{T[i]}, v{T[i]}")
        a(f"v_exp_f32 v{T[i]+1}, v{T[i]+1}")
    for i, d in enumerate(o2): a(f"v_pk_add_f32 {v(T[i],2)}, {v(T[i],2)}, 1.0 op_sel_hi:[1,0]")
    for i, d in enumerate(o2):
        a(f"v_rcp_f32 v{T[i]}, v{T[i]}")
        a(f"v_rcp_f32 v{T[i]+1}, v{T[i]+1}")
    a("s_waitcnt lgkmcnt(0)")
    for i, d in enumerate(o2):
        s_ = sv[i // 2] + i % 2
        x_ = xq[i // 4] + i % 4
        U_ = Pr[0][i // 2] + 2 * (i % 2)
        a(f"v_pk_mul_f32 {v(d,2)}, {v(d,2)}, {v(T[i],2)}")
        a(f"v_cvt_pk_bf16_f32 v{T[i]}, v{d}, v{d+1}")
        a(f"v_lshlrev_b32 v{d}, 16, v{T[i]}")
        a(f"v_and_b32 v{d+1}, 0xffff0000, v{T[i]}")
        a(f"v_lshlrev_b32 v{U_}, 16, v{s_}")
        a(f"v_and_b32 v{U_+1}, 0xffff0000, v{s_}")
        a(f"v_pk_mul_f32 {v(d,2)}, {v(d,2)}, {v(U_,2)}")
        a(f"v_cvt_pk_bf16_f32 v{T[i]}, v{d}, v{d+1}")
        a(f"v_lshlrev_b32 v{d}, 16, v{T[i]}")
        a(f"v_and_b32 v{d+1}, 0xffff0000, v{T[i]}")
        a(f"v_lshlrev_b32 v{U_}, 16, v{x_}")
        a(f"v_and_b32 v{U_+1}, 0xffff0000, v{x_}")
        a(f"v_pk_add_f32 {v(d,2)}, {v(d,2)}, {v(U_,2)}")
        a(f"v_cvt_pk_bf16_f32 v{op[i//4] + i%4}, v{d}, v{d+1}")
        if i == 3: a(f"buffer_store_dwordx4 {v(op[0],4)}, v{vxo}, s[{sOUT}:{sOUT+3}], 0 offen")
        if i == 7: a(f"buffer_store_dwordx4 {v(op[1],4)}, v{vxo}, s[{sOUT}:{sOUT+3}], 0 offen offset:64")
    a(f"buffer_store_dwordx2 {v(op[2],2)}, v{vxo2}, s[{sOUT}:{sOUT+3}], 0 offen offset:128")
    stamp_end(a, sWave)
    return max(R.hi, E.hi, Q.hi)

def main(out):
    ref = open(f"cdna_kernels/{NAME}.s.ref").read().split("\n")
    hdr = [l for l in ref if l.startswith(";") and "@launch" not in l]
    hdr.append(f"; @launch grid=(512,1,1) block=(256,1,1) lds={LDS_BYTES}")
    a = Asm()
    a.raw(f'.amdgcn_target "amdgcn-amd-amdhsa--gfx950"\n.text\n.globl {KN}\n.p2align 8\n.type {KN},@function')
    a.label(KN)
    a("s_cmp_lt_u32 s2, 256")
    a("s_cbranch_scc1 S_role")
    a(f"s_cmp_ge_u32 s2, {256 if ENV('NOG', 0) else 512}")
    a("s_cbranch_scc1 K_exit")
    hg = g_role(a)
    a.label("S_role"); a.flush_hist()
    hs = s_role(a)
    a.label("K_exit")
    a("s_endpgm")
    print("vgprs", hg, hs, "nops", a.nnop, "lines", len(a.items), file=sys.stderr)
    kd = f""".section .rodata,"a"
.p2align 6
.amdhsa_kernel {KN}
  .amdhsa_next_free_vgpr 256
  .amdhsa_next_free_sgpr {102 if STAMPS else 64}
  .amdhsa_accum_offset 256
  .amdhsa_group_segment_fixed_size 0
  .amdhsa_kernarg_size 128
  .amdhsa_user_sgpr_count 2
  .amdhsa_user_sgpr_kernarg_segment_ptr 1
  .amdhsa_system_sgpr_workgroup_id_x 1
  .amdhsa_float_denorm_mode_32 3
  .amdhsa_float_denorm_mode_16_64 3
.end_amdhsa_kernel
"""
    open(out, "w").write("\n".join(hdr) + "\n" + a.text() + kd)

if __name__ == "__main__":
    main(sys.argv[1] if len(sys.argv) > 1 else f"cdna_kernels/{NAME}.s")
```

```python
import sys, os, struct, math
sys.path.insert(0, os.path.dirname(os.path.abspath(__file__)))
from asmlib import *

NAME = "recurrent_scan__ssm_conv_s4__dense_activation_mish__prompt"
KN = NAME + "_kernel"
L, D, N, F = 2048, 640, 192, 1536
ENV = lambda k, d: int(os.environ.get(k, str(d)))
STAMPS = ENV("STAMPS", 0)

WS_XT2 = 0x0000000
WS_ST  = 0x0400000
WS_W2A = 0x0800000
WS_ACT = 0x0C00000
WS_STAT = 0x1400000
WS_FLN = 0x1500000
WS_FPACE = 0x1510000
WS_FACT = 0x1520000
WS_FST = 0x1560000
WS_SIZE = 0x1600000
WS_STAMP = 0x4000000
LDS_BYTES = 81920
SPIN_MAX = 0x4000

def f32(x): return "0x%08x" % struct.unpack("<I", struct.pack("<f", x))[0]
LOG2E = 1.4426950408889634
LN2 = 0.6931471805599453

def srd(a, sreg, size):
    a(f"s_mov_b32 s{sreg+2}, {size}")
    a(f"s_mov_b32 s{sreg+3}, 0x20000")

def bf16r(a, dst, src):
    a(f"v_cvt_pk_bf16_f32 v{dst}, v{src}, v{src}")
    a(f"v_and_b32 v{dst}, 0xffff0000, v{dst}")

_sn = [0]
def stamp_begin(a):
    _sn[0] = 0
    if STAMPS:
        a("s_memrealtime s[60:61]")
        for i in range(64, 96, 2): a(f"s_mov_b64 s[{i}:{i+1}], 0")
        a("s_memtime s[64:65]")
        _sn[0] = 1
def stamp(a, n=None):
    if STAMPS:
        if n is None:
            n = _sn[0]; _sn[0] += 1
        assert n < 16
        a(f"s_memtime s[{64+2*n}:{65+2*n}]")
def stamp_end(a, sWave):
    if STAMPS:
        stamp(a, 15)
        a("s_memrealtime s[62:63]")
        a("s_load_dwordx2 s[96:97], s[0:1], 120")
        a("s_waitcnt lgkmcnt(0)")
        a(f"s_add_u32 s96, s96, {WS_STAMP}")
        a("s_addc_u32 s97, s97, 0")
        a("s_mov_b32 s98, 0x100000")
        a("s_mov_b32 s99, 0x20000")
        a("s_lshl_b32 s59, s2, 10")
        a(f"s_lshl_b32 s58, s{sWave}, 8")
        a("s_add_u32 s59, s59, s58")
        a("s_mov_b64 exec, 1")
        a("v_mov_b32 v1, s59")
        a("v_mov_b32 v2, s60"); a("v_mov_b32 v3, s62")
        a("buffer_store_dwordx2 v[2:3], v1, s[96:99], 0 offen")
        for n in range(16):
            a(f"s_sub_u32 s59, s{64+2*n}, s64")
            a(f"s_cmp_eq_u32 s{64+2*n}, 0")
            a(f"s_cselect_b32 s59, 0, s59")
            a(f"v_mov_b32 v{4 + n}, s59")
            a(f"buffer_store_dword v{4 + n}, v1, s[96:99], 0 offen offset:{16+4*n}")
    a("s_endpgm")

_lab = [0]
def newlab(p):
    _lab[0] += 1
    return f"{p}_{_lab[0]}"

sWS, sDBG = 4, 8
sWave, sTok, sSpin = 12, 13, 14
sT, sT2, sT3 = 15, 16, 17

def check_token(a, vtok, vzero):
    done = newlab("TK"); loop = newlab("TL")
    if ENV("NOS", 0) or os.environ.get("ONLY", ""):
        a(f"s_mov_b32 s{sTok}, 0x12345"); return
    a(f"v_readfirstlane_b32 s{sTok}, v{vtok}")
    a(f"s_cmp_lg_u32 s{sTok}, 0")
    a(f"s_cbranch_scc1 {done}")
    a(f"s_mov_b32 s{sSpin}, 0")
    a.label(loop)
    a("s_sleep 2")
    a(f"buffer_load_dword v{vtok}, v{vzero}, s[{sDBG}:{sDBG+3}], 0 offen sc1"); a.vm -= 1
    a("s_waitcnt vmcnt(0)")
    a(f"v_readfirstlane_b32 s{sTok}, v{vtok}")
    a(f"s_cmp_lg_u32 s{sTok}, 0")
    a(f"s_cbranch_scc1 {done}")
    a(f"s_add_u32 s{sSpin}, s{sSpin}, 1")
    a(f"s_cmp_lt_u32 s{sSpin}, {SPIN_MAX}")
    a(f"s_cbranch_scc1 {loop}")
    a.label(done)

def check_flags(a, vfl, vaddr, reload, sleep=2):
    if (ENV("NOS", 0) or os.environ.get("ONLY", "")) and sleep != 3: return
    done = newlab("FD"); loop = newlab("FL")
    def cmpall():
        a(f"v_cmp_ne_u32 vcc, s{sTok}, v{vfl[0]}")
        for r_ in vfl[1:]:
            a(f"v_cmp_ne_u32 s[18:19], s{sTok}, v{r_}")
            a("s_or_b64 vcc, vcc, s[18:19]")
        a("s_cmp_eq_u64 vcc, 0")
    cmpall()
    a(f"s_cbranch_scc1 {done}")
    a(f"s_mov_b32 s{sSpin}, 0")
    a.label(loop)
    a(f"s_sleep {sleep}")
    n0 = a.vm
    a("s_mov_b64 exec, vcc")
    reload()
    a("s_mov_b64 exec, -1")
    a.vm = n0
    a("s_waitcnt vmcnt(0)")
    cmpall()
    a(f"s_cbranch_scc1 {done}")
    a(f"s_add_u32 s{sSpin}, s{sSpin}, 1")
    a(f"s_cmp_lt_u32 s{sSpin}, {SPIN_MAX}")
    a(f"s_cbranch_scc1 {loop}")
    a.label(done)

CV_S = 4160
CH_REG = 64 * 272
CV_U = [3 * CH_REG + 512 + 4608 * i for i in range(3)]
LN_OFF = 3 * CH_REG + 3 * 4608
LN_S = 1344
PACE_OFF = LDS_BYTES - 16
KG_S = 272
COARSE = list(range(8)) + [256, 258, 260, 262, 512, 516, 768, 772, 1024, 1280, 1536, 1792, 2048]
assert LN_OFF + 8 * LN_S <= LDS_BYTES and 4 * CV_S <= CH_REG

def s_role(a):
    sX_, sA, sXc = 20, 24, 25
    sD = [26, 27, 28]
    sCnt, sPar, sSlot, sRound, sHeavy = 29, 30, 31, 56, 57
    SP = [32, 36, 40, 44, 48, 52]
    R = Alloc(1)
    lane = R(); t0 = R(); t1 = R(); t2 = R(); t3 = R(); vzero = R(); vtok = R(); v16 = R()
    vdk = [R(), R()]
    base = R.mark()
    stamp_begin(a)
    a(f"s_load_dwordx2 s[{sWS}:{sWS+1}], s[0:1], 120")
    a(f"s_load_dwordx2 s[{sDBG}:{sDBG+1}], s[0:1], 112")
    a(f"v_lshrrev_b32 v{t0}, 6, v0")
    a(f"v_and_b32 v{lane}, 63, v0")
    a(f"v_readfirstlane_b32 s{sWave}, v{t0}")
    srd(a, sWS, WS_SIZE); srd(a, sDBG, 256)
    a(f"s_and_b32 s{sXc}, s2, 7")
    a(f"s_lshr_b32 s{sA}, s2, 3")
    a(f"s_lshl_b32 s{sD[0]}, s{sXc}, 6")
    a(f"s_lshl_b32 s{sT}, s{sA}, 1")
    a(f"s_add_u32 s{sD[0]}, s{sD[0]}, s{sT}")
    a(f"s_add_u32 s{sD[1]}, s{sD[0]}, 1")
    a(f"s_lshl_b32 s{sD[2]}, s{sXc}, 4")
    a(f"s_add_u32 s{sD[2]}, s{sD[2]}, s{sA}")
    a(f"s_add_u32 s{sD[2]}, s{sD[2]}, 512")
    a(f"s_cmp_lt_u32 s{sA}, 16")
    a(f"s_cselect_b32 s{sHeavy}, 1, 0")
    a(f"v_mov_b32 v{vzero}, 0")
    a(f"v_lshlrev_b32 v{v16}, 4, v{lane}")
    ONLY = os.environ.get("ONLY", "")
    a(f"s_cmp_eq_u32 s{sWave}, 3")
    a("s_cbranch_scc1 " + ("S_ln" if (not ONLY or "l" in ONLY) else "K_exit"))
    a(f"s_add_u32 s{sT}, s{sHeavy}, 2")
    a(f"s_cmp_ge_u32 s{sWave}, s{sT}")
    a("s_cbranch_scc1 " + ("S_w2t" if (not ONLY or "w" in ONLY) else "K_exit"))
    if ONLY and "k" not in ONLY: a("s_branch K_exit")

    P = [[R() for _ in range(6)] for _ in range(3)]
    vdt = R(); vwr = R(); vrd = R(); voff = R()
    accK = R(16, 4)
    FA = [R(4, 4) for _ in range(8)]; FB = [R(4, 4) for _ in range(8)]
    pr = lambda: R(2, 2)
    l1, l8, l256, W, E0, E1, E2, T, T2, G2, G4, G6, V, a2b = [pr() for _ in range(14)]
    Qr = [R(4, 4) for _ in range(2)]; Qi = [R(4, 4) for _ in range(2)]
    Cr = R(16, 4); Ci = R(16, 4)
    sDd, sBase = 58, 59
    if STAMPS: sDd, sBase = 100, 101
    for i, sr in enumerate(SP):
        a(f"s_load_dwordx2 s[{sr}:{sr+1}], s[0:1], {8 + 8*i}")
    a(f"s_load_dwordx2 s[{sX_}:{sX_+1}], s[0:1], 56")
    a(f"s_cmp_eq_u32 s{sWave}, 1")
    a(f"s_cselect_b32 s{sDd}, s{sD[1]}, s{sD[0]}")
    a(f"s_cmp_eq_u32 s{sWave}, 2")
    a(f"s_cselect_b32 s{sDd}, s{sD[2]}, s{sDd}")
    for sr in SP: srd(a, sr, D * N * 2)
    srd(a, sX_, D * 2)
    a(f"s_mul_i32 s{sT}, s{sDd}, {N*2}")
    a(f"v_lshlrev_b32 v{voff}, 1, v{lane}")
    a(f"s_lshl_b32 s{sT2}, s{sDd}, 1")
    a("s_waitcnt lgkmcnt(0)")
    a(f"buffer_load_ushort v{vdt}, v{vzero}, s[{sX_}:{sX_+3}], s{sT2} offen")
    for p in range(3):
        for i, sr in enumerate(SP):
            a(f"buffer_load_ushort v{P[p][i]}, v{voff}, s[{sr}:{sr+3}], s{sT} offen offset:{128*p}")
    a(f"s_mul_i32 s{sBase}, s{sWave}, {CH_REG}")
    a(f"v_mul_u32_u24 v{vwr}, {KG_S}, v{lane}")
    a(f"v_add_u32 v{vwr}, s{sBase}, v{vwr}")
    a(f"v_bfe_u32 v{t0}, v{lane}, 2, 2")
    a(f"v_lshrrev_b32 v{t1}, 5, v{lane}")
    a(f"v_lshl_add_u32 v{t0}, v{t0}, 2, v{t1}")
    a(f"v_mul_u32_u24 v{t0}, {KG_S}, v{t0}")
    a(f"v_bfe_u32 v{t1}, v{lane}, 4, 1")
    a(f"v_lshl_add_u32 v{t0}, v{t1}, 5, v{t0}")
    a(f"v_and_b32 v{t1}, 3, v{lane}")
    a(f"v_lshl_add_u32 v{t0}, v{t1}, 3, v{t0}")
    a(f"v_add_u32 v{vrd}, s{sBase}, v{t0}")
    for i in (13, 15): a(f"v_mov_b32 v{Cr+i}, 0"); a(f"v_mov_b32 v{Ci+i}, 0")
    a("s_waitcnt vmcnt(0)")
    stamp(a, 1)
    a(f"v_lshlrev_b32 v{vdt}, 16, v{vdt}")
    a(f"v_mul_f32 v{t0}, {f32(LOG2E)}, v{vdt}")
    a(f"s_mov_b32 s{sT}, {f32(LOG2E)}")
    a(f"v_fma_f32 v{t1}, v{vdt}, s{sT}, -v{t0}")
    lo = LOG2E - struct.unpack("<f", struct.pack("<f", LOG2E))[0]
    a(f"v_fmac_f32 v{t1}, {f32(lo)}, v{vdt}")
    a(f"v_exp_f32 v{t0}, v{t0}")
    a(f"v_mul_f32 v{t1}, {f32(LN2)}, v{t1}")
    a(f"v_fma_f32 v{t0}, v{t0}, v{t1}, v{t0}")
    bf16r(a, vdt, t0)
    a(f"s_mov_b32 s{sCnt}, 0")
    def cmul(dst, e, m):
        if ENV("KPK", 1):
            a(f"v_pk_mul_f32 {v(T,2)}, {v(e,2)}, {v(m,2)} op_sel:[0,0] op_sel_hi:[0,1]")
            a(f"v_pk_fma_f32 {v(dst,2)}, {v(e,2)}, {v(m,2)}, {v(T,2)} op_sel:[1,1,0] op_sel_hi:[1,0,1] neg_lo:[0,1,0]")
        else:
            assert dst != e and dst != m
            a(f"v_mul_f32 v{dst}, v{e}, v{m}")
            a(f"v_mul_f32 v{dst+1}, v{e}, v{m+1}")
            a(f"v_fma_f32 v{dst}, -v{e+1}, v{m+1}, v{dst}")
            a(f"v_fmac_f32 v{dst+1}, v{e+1}, v{m}")
    def cexp(dst, scale):
        if scale == 1:
            a(f"v_exp_f32 v{t0}, v{a2b}")
            a(f"v_fract_f32 v{t1}, v{a2b+1}")
        else:
            a(f"v_mul_f32 v{t0}, {f32(float(scale))}, v{a2b}")
            a(f"v_mul_f32 v{t1}, {f32(float(scale))}, v{a2b+1}")
            a(f"v_exp_f32 v{t0}, v{t0}")
            a(f"v_fract_f32 v{t1}, v{t1}")
        a(f"v_cos_f32 v{dst}, v{t1}")
        a(f"v_sin_f32 v{dst+1}, v{t1}")
        a(f"v_mul_f32 v{dst}, v{dst}, v{t0}")
        a(f"v_mul_f32 v{dst+1}, v{dst+1}, v{t0}")
    def mfmas():
        for ks in range(8):
            a(f"v_mfma_f32_32x32x16_bf16 {v(accK,16)}, {v(FA[ks],4)}, {v(FB[ks],4)}, {v(accK,16)}")
    def cpair(dw, x, y):
        a(f"v_cvt_pk_bf16_f32 v{Cr+dw}, v{x}, v{y}")
        a(f"v_cvt_pk_bf16_f32 v{Ci+dw}, -v{x+1}, -v{y+1}")
    if ENV("XKG", 0): a("s_branch KG_after")
    a.label("KG_loop")
    a.flush_hist()
    _a = a
    if ENV("XKW", 0) or ENV("XKM", 0) or ENV("XKR", 0):
        class Filt:
            def __call__(self, t):
                if ENV("XKW", 0) and t.startswith("ds_write"): return
                if ENV("XKR", 0) and t.startswith("ds_read"): return
                if ENV("XKM", 0) and t.startswith("v_mfma"): return
                _a(t)
            def __getattr__(self, n): return getattr(_a, n)
        a = Filt()
    p0 = P[0]
    for i in range(4): a(f"v_lshlrev_b32 v{p0[i]}, 16, v{p0[i]}")
    a(f"v_lshlrev_b32 v{V}, 16, v{p0[4]}")
    a(f"v_lshlrev_b32 v{V+1}, 16, v{p0[5]}")
    a(f"v_mul_f32 v{p0[0]}, v{vdt}, v{p0[0]}")
    a(f"v_mul_f32 v{p0[1]}, v{vdt}, v{p0[1]}")
    a(f"v_mul_f32 v{T2}, v{vdt}, v{p0[2]}")
    a(f"v_mul_f32 v{T2+1}, v{vdt}, v{p0[3]}")
    a(f"v_mul_f32 v{a2b}, {f32(LOG2E)}, v{p0[0]}")
    a(f"v_mul_f32 v{a2b+1}, {f32(1.0/(2*math.pi))}, v{p0[1]}")
    cmul(W, V, T2)
    cexp(l8, 8); cexp(l1, 1); cexp(l256, 256)
    if STAMPS: a("s_memtime s[18:19]")
    a("s_waitcnt lgkmcnt(0)")
    if STAMPS:
        a(f"s_cmp_eq_u32 s{sCnt}, 1")
        a("s_cselect_b32 s82, s18, s82")
        a(f"s_cmp_eq_u32 s{sCnt}, 2")
        a("s_cselect_b32 s84, s18, s84")
    a(f"v_cvt_pk_bf16_f32 v{Qr[0]}, 1.0, v{l8}")
    a(f"v_cvt_pk_bf16_f32 v{Qi[0]}, 0, v{l8+1}")
    cur = l8
    for f in range(2, 32, 2):
        if f // 2 - 1 < 8:
            ks = f // 2 - 1
            a(f"v_mfma_f32_32x32x16_bf16 {v(accK,16)}, {v(FA[ks],4)}, {v(FB[ks],4)}, {v(accK,16)}")
        cmul(E0, cur, l8); cmul(E1, E0, l8); cur = E1
        g, dw = f // 8, (f % 8) // 2
        a(f"v_cvt_pk_bf16_f32 v{Qr[g%2]+dw}, v{E0}, v{E1}")
        a(f"v_cvt_pk_bf16_f32 v{Qi[g%2]+dw}, v{E0+1}, v{E1+1}")
        if dw == 3:
            a(f"ds_write_b128 v{vwr}, {v(Qr[g%2],4)} offset:{16*g}")
            a(f"ds_write_b128 v{vwr}, {v(Qi[g%2],4)} offset:{64+16*g}")
    cmul(E0, W, l1); cpair(0, W, E0)
    cmul(G2, E0, l1); cmul(E0, G2, l1); cpair(1, G2, E0)
    cmul(G4, E0, l1); cmul(E0, G4, l1); cpair(4, G4, E0)
    cmul(G6, E0, l1); cmul(E0, G6, l1); cpair(5, G6, E0)
    cmul(E0, G2, l256); cmul(E1, G6, l256); cpair(3, E0, E1)
    cmul(E0, G4, l256); cmul(E1, E0, l256); cpair(7, E0, E1)
    cmul(E0, E1, l256); cpair(11, E0, E0)
    cur = W
    dwv = {1: 2, 2: 6, 3: 10, 4: 8, 5: 9, 6: 12, 7: 14}
    for j in range(1, 8):
        nx = [E0, E2][j % 2]
        cmul(nx, cur, l256); cmul(E1, nx, l8); cpair(dwv[j], nx, E1); cur = nx
        if j in (1, 2):
            g = j - 1
            a(f"ds_write_b128 v{vwr}, {v(Cr+4*g,4)} offset:{128+16*g}")
            a(f"ds_write_b128 v{vwr}, {v(Ci+4*g,4)} offset:{192+16*g}")
        if j in (5, 7):
            g = {5: 2, 7: 3}[j]
            a(f"ds_write_b128 v{vwr}, {v(Cr+4*g,4)} offset:{128+16*g}")
            a(f"ds_write_b128 v{vwr}, {v(Ci+4*g,4)} offset:{192+16*g}")
    for ks in range(8):
        o = (16 * (ks >> 1) + 2 * (ks & 1)) * KG_S
        a(f"ds_read_b64_tr_b16 {v(FA[ks],2)}, v{vrd} offset:{o+128}")
        a(f"ds_read_b64_tr_b16 {v(FA[ks]+2,2)}, v{vrd} offset:{o+192}")
        a(f"ds_read_b64_tr_b16 {v(FB[ks],2)}, v{vrd} offset:{o}")
        a(f"ds_read_b64_tr_b16 {v(FB[ks]+2,2)}, v{vrd} offset:{o+64}")
    for i in range(6):
        a(f"v_mov_b32 v{P[0][i]}, v{P[1][i]}")
        a(f"v_mov_b32 v{P[1][i]}, v{P[2][i]}")
    a(f"s_cmp_eq_u32 s{sCnt}, 0")
    a(f"s_cselect_b32 s{sT}, 0, -1")
    for i in range(16): a(f"v_and_b32 v{accK+i}, s{sT}, v{accK+i}")
    if STAMPS and 0:
        a("s_memtime s[18:19]")
        a("s_waitcnt lgkmcnt(0)")
        a(f"s_cmp_eq_u32 s{sCnt}, 0")
        a("s_cselect_b32 s82, s18, s82")
        a(f"s_cmp_eq_u32 s{sCnt}, 1")
        a("s_cselect_b32 s84, s18, s84")
    a(f"s_add_u32 s{sCnt}, s{sCnt}, 1")
    a(f"s_cmp_lt_u32 s{sCnt}, 3")
    a("s_cbranch_scc1 KG_loop")
    a = _a
    a.label("KG_after")
    stamp(a, 2)
    a(f"buffer_load_dword v{vtok}, v{vzero}, s[{sDBG}:{sDBG+3}], 0 offen sc1")
    vJa = P[0][0]; vJb = P[0][1]; u0 = P[0][2]; u1 = P[0][3]
    a(f"v_and_b32 v{t0}, 31, v{lane}")
    a(f"v_lshlrev_b32 v{t0}, 4, v{t0}")
    a(f"v_lshrrev_b32 v{t1}, 5, v{lane}")
    a(f"v_lshl_add_u32 v{t2}, v{t1}, 9, v{t0}")
    a(f"s_add_u32 s{sT}, s{sBase}, 1008")
    a(f"v_sub_u32 v{vJa}, s{sT}, v{t2}")
    a(f"v_lshlrev_b32 v{t2}, 10, v{t1}")
    a(f"v_sub_u32 v{t2}, v{t2}, v{t0}")
    a(f"s_add_u32 s{sT}, s{sBase}, 496")
    a(f"v_add_u32 v{vJb}, s{sT}, v{t2}")
    Z = Qr[0]
    for i in range(4): a(f"v_mov_b32 v{Z+i}, 0")
    a(f"v_lshrrev_b32 v{u0}, 2, v{lane}")
    a(f"v_mul_u32_u24 v{u0}, {CV_S}, v{u0}")
    a(f"v_and_b32 v{u1}, 3, v{lane}")
    a(f"v_lshl_add_u32 v{u0}, v{u1}, 4, v{u0}")
    a(f"v_add_u32 v{u0}, s{sBase}, v{u0}")
    a("s_mov_b32 s18, 0xaaaaaaaa"); a("s_mov_b32 s19, 0xaaaaaaaa")
    a("s_waitcnt lgkmcnt(0)")
    mfmas()
    a("s_mov_b64 exec, 0xffff")
    a(f"ds_write_b128 v{u0}, {v(Z,4)} offset:4096")
    a("s_mov_b64 exec, -1")
    O = [Cr, Cr + 8, Ci, Ci + 8]
    ac = lambda i: accK + i
    def cv(d, lo_, hi_): a(f"v_cvt_pk_bf16_f32 v{d}, v{lo_}, v{hi_}")
    def seg3(o, e0, e1):
        a(f"v_cndmask_b32 v{t0}, v{e0}, v{e1}, s[18:19]")
        cv(o, e1, e1); cv(o + 1, e1, t0); cv(o + 2, e0, e0); cv(o + 3, e0, e0)
    def seg2(o, e0, e1, e2):
        cv(o, e2, e2); cv(o + 1, e1, e1); cv(o + 2, e1, e0); cv(o + 3, e0, e0)
    seg3(O[3], ac(12), ac(13))
    a("s_mov_b32 exec_hi, 0")
    for m in range(4): cv(O[0] + m, ac(7 - 2*m), ac(6 - 2*m))
    seg3(O[1], ac(8), ac(9)); seg3(O[2], ac(10), ac(11))
    a("s_mov_b32 exec_hi, -1")
    a("s_mov_b32 exec_lo, 0")
    cv(O[0], ac(1), ac(3)); cv(O[0] + 1, ac(6), ac(6)); cv(O[0] + 2, ac(6), ac(2)); cv(O[0] + 3, ac(0), ac(0))
    seg2(O[1], ac(4), ac(7), ac(5)); seg2(O[2], ac(8), ac(10), ac(9))
    a("s_mov_b32 exec_lo, -1")
    adr = [(vJa, 3072), (vJb, 1536), (vJb, 1024), (vJa, 0)]
    for p in range(4):
        a(f"ds_write_b128 v{adr[p][0]}, {v(O[p],4)} offset:{adr[p][1]}")
    for p in range(4):
        a(f"ds_read_b64 {v(O[p]+4,2)}, v{adr[p][0]} offset:{adr[p][1]+16}")
    stamp(a, 11)
    a("s_waitcnt vmcnt(0)")
    check_token(a, vtok, vzero)
    a("s_waitcnt lgkmcnt(0)")
    for p in range(4):
        Kt = [FA[(3*p + c) % 8] for c in range(3)]
        kin = O[p]
        for k in range(4): a(f"v_alignbyte_b32 v{Kt[0]+k}, v{kin+k+1}, v{kin+k}, 2")
        for k in range(4): a(f"v_mov_b32 v{Kt[1]+k}, v{kin+k+1}")
        for k in range(4): a(f"v_alignbyte_b32 v{Kt[2]+k}, v{kin+k+2}, v{kin+k+1}, 2")
        for c in range(3): a(f"ds_write_b128 v{adr[p][0]}, {v(Kt[c],4)} offset:{adr[p][1] + (c+1)*CV_S}")
    a("s_branch S_join")
    hi = R.hi

    a.label("S_w2t"); a.flush_hist()
    toks = {}
    a("s_waitcnt lgkmcnt(0)")
    a("s_sleep 64")
    a(f"buffer_load_dword v{vtok}, v{vzero}, s[{sDBG}:{sDBG+3}], 0 offen sc1")
    a("s_waitcnt vmcnt(0)")
    check_token(a, vtok, vzero)
    a("s_branch S_join")

    a.label("S_ln"); a.flush_hist()
    R.reset(base)
    voff = R(); vlw = R(); vtr = R()
    Xr = [R(4, 4) for _ in range(10)]
    U = [R(2, 2) for _ in range(40)]
    sm = R(2, 2); mb = R(2, 2); rs = R(2, 2); T = [R(2, 2) for _ in range(4)]; gr = R(2, 2)
    ones = R()
    O = [R(4, 4) for _ in range(4)]
    a(f"s_load_dwordx2 s[{sX_}:{sX_+1}], s[0:1], 0")
    a("s_memrealtime s[18:19]")
    srd(a, sX_, L * D * 2)
    a(f"v_lshrrev_b32 v{t0}, 3, v{lane}")
    a(f"v_and_b32 v{t1}, 7, v{lane}")
    a(f"v_lshlrev_b32 v{t1}, 4, v{t1}")
    a(f"v_mul_u32_u24 v{voff}, 1280, v{t0}")
    a(f"v_add_u32 v{voff}, v{voff}, v{t1}")
    a(f"v_mul_u32_u24 v{vlw}, {LN_S}, v{t0}")
    a(f"v_add_u32 v{vlw}, v{vlw}, v{t1}")
    a(f"v_add_u32 v{vlw}, {LN_OFF}, v{vlw}")
    a(f"s_lshl_b32 s{sT3}, s{sXc}, 5")
    a(f"s_add_u32 s{sT3}, s{sT3}, s{sA}")
    a(f"s_mul_i32 s{sT}, s{sT3}, {8*1280}")
    a("s_waitcnt lgkmcnt(0)")
    a(f"s_cmp_ge_u32 s2, 8")
    a("s_cbranch_scc1 S_ln_nt")
    a("s_or_b32 s18, s18, 1")
    a(f"v_mov_b32 v{gr}, s18")
    a(f"v_mov_b32 v{gr+1}, 0")
    a("s_mov_b64 exec, 1")
    a(f"buffer_atomic_cmpswap {v(gr,2)}, v{vzero}, s[{sDBG}:{sDBG+3}], 0 offen"); a.vm -= 1
    a("s_mov_b64 exec, -1")
    a.label("S_ln_nt")
    for i in range(10):
        a(f"buffer_load_dwordx4 {v(Xr[i],4)}, v{voff}, s[{sX_}:{sX_+3}], s{sT} offen offset:{128*i}")
    a(f"v_mov_b32 v{ones}, 0x3f803f80")
    a(f"v_mov_b32 v{sm}, 0")
    a("s_waitcnt vmcnt(0)")
    stamp(a, 1)
    a(f"buffer_load_dword v{vtok}, v{vzero}, s[{sDBG}:{sDBG+3}], 0 offen sc1")
    for i in range(40):
        a(f"v_dot2_f32_bf16 v{sm}, v{Xr[i//4] + i%4}, v{ones}, v{sm}")
    def red8(r_):
        a(f"v_add_f32_dpp v{r_}, v{r_}, v{r_} quad_perm:[1,0,3,2] row_mask:0xf bank_mask:0xf")
        a(f"v_add_f32_dpp v{r_}, v{r_}, v{r_} quad_perm:[2,3,0,1] row_mask:0xf bank_mask:0xf")
        a(f"v_add_f32_dpp v{r_}, v{r_}, v{r_} row_half_mirror row_mask:0xf bank_mask:0xf")
    for i in range(40):
        x = Xr[i//4] + i % 4
        a(f"v_lshlrev_b32 v{U[i]}, 16, v{x}")
        a(f"v_and_b32 v{U[i]+1}, 0xffff0000, v{x}")
    red8(sm)
    a(f"v_mul_f32 v{sm}, {f32(1.0/D)}, v{sm}")
    bf16r(a, mb, sm)
    a(f"v_mov_b32 v{rs}, 0"); a(f"v_mov_b32 v{rs+1}, 0")
    for i in range(40):
        if ENV("LPK", 1):
            a(f"v_pk_add_f32 {v(U[i],2)}, {v(U[i],2)}, {v(mb,2)} op_sel_hi:[1,0] neg_lo:[0,1] neg_hi:[0,1]")
            a(f"v_pk_fma_f32 {v(rs,2)}, {v(U[i],2)}, {v(U[i],2)}, {v(rs,2)}")
        else:
            for h in range(2):
                a(f"v_sub_f32 v{U[i]+h}, v{U[i]+h}, v{mb}")
                a(f"v_fmac_f32 v{rs+h}, v{U[i]+h}, v{U[i]+h}")
    a(f"v_add_f32 v{rs}, v{rs}, v{rs+1}")
    red8(rs)
    a(f"v_sub_f32 v{t0}, v{sm}, v{mb}")
    a(f"v_mul_f32 v{t0}, v{t0}, v{t0}")
    a(f"v_mul_f32 v{rs}, {f32(1.0/D)}, v{rs}")
    a(f"v_sub_f32 v{rs}, v{rs}, v{t0}")
    a(f"v_max_f32 v{rs}, 0, v{rs}")
    bf16r(a, rs, rs)
    a(f"v_add_f32 v{rs}, {f32(1e-5)}, v{rs}")
    bf16r(a, rs, rs)
    a(f"v_sqrt_f32 v{rs}, v{rs}")
    a(f"v_cvt_pk_bf16_f32 v{gr}, v{mb}, v{rs}")
    a(f"v_and_b32 v{rs}, 0xffff0000, v{gr}")
    a(f"v_rcp_f32 v{rs}, v{rs}")
    for i in range(40):
        x = Xr[i//4] + i % 4
        if ENV("LPK", 1): a(f"v_pk_mul_f32 {v(U[i],2)}, {v(U[i],2)}, {v(rs,2)} op_sel_hi:[1,0]")
        else:
            for h in range(2): a(f"v_mul_f32 v{U[i]+h}, v{U[i]+h}, v{rs}")
        a(f"v_cvt_pk_bf16_f32 v{x}, v{U[i]}, v{U[i]+1}")
        if i % 4 == 3:
            a(f"ds_write_b128 v{vlw}, {v(Xr[i//4],4)} offset:{128*(i//4)}")
    a(f"v_bfe_u32 v{t1}, v{lane}, 2, 2")
    a(f"v_mul_u32_u24 v{t1}, {LN_S}, v{t1}")
    a(f"v_lshrrev_b32 v{t0}, 4, v{lane}")
    a(f"v_lshl_add_u32 v{t1}, v{t0}, 5, v{t1}")
    a(f"v_and_b32 v{t2}, 3, v{lane}")
    a(f"v_lshl_add_u32 v{t1}, v{t2}, 3, v{t1}")
    a(f"v_add_u32 v{vtr}, {LN_OFF}, v{t1}")
    a(f"s_mul_i32 s{sT}, s{sT3}, 10240")
    def rd(i):
        o = O[i % 4]
        for e in range(2):
            a(f"ds_read_b64_tr_b16 {v(o+2*e,2)}, v{vtr} offset:{128*i + 4*e*LN_S}")
        toks[i] = a.ltok()
    for i in range(3): rd(i)
    for i in range(10):
        if i + 3 < 10: rd(i + 3)
        a.wait(lg=toks[i])
        a(f"buffer_store_dwordx4 {v(O[i%4],4)}, v{v16}, s[{sWS}:{sWS+3}], s{sT} offen sc1")
        a(f"s_add_u32 s{sT}, s{sT}, 1024")
    a("s_waitcnt vmcnt(10)")
    check_token(a, vtok, vzero)
    a(f"v_mov_b32 v{gr+1}, s{sTok}")
    a(f"s_lshl_b32 s{sT}, s{sT3}, 7")
    a(f"s_add_u32 s{sT2}, s{sT}, {WS_STAT}")
    a("s_mov_b32 exec_lo, 0x01010101"); a("s_mov_b32 exec_hi, 0x01010101")
    a(f"buffer_store_dwordx2 {v(gr,2)}, v{lane}, s[{sWS}:{sWS+3}], s{sT2} offen sc1")
    a(f"s_add_u32 s{sT}, s{sT}, {WS_FLN}")
    a("s_waitcnt vmcnt(0)")
    a("s_mov_b64 exec, 1")
    a(f"buffer_store_dword v{gr+1}, v{vzero}, s[{sWS}:{sWS+3}], s{sT} offen sc1")
    a("s_mov_b64 exec, -1")
    stamp(a, 2)
    if ONLY: a("s_branch S_end")
    a(f"v_mul_u32_u24 v{t0}, 10240, v{lane}")
    a(f"v_lshlrev_b32 v{t1}, 7, v{lane}")
    a(f"s_cmp_eq_u32 s{sHeavy}, 0")
    a(f"s_cselect_b32 s{sCnt}, s{sD[0]}, s{sD[2]}")
    a(f"s_lshl_b32 s{sT3}, s2, 7")
    a(f"s_add_u32 s{sT3}, s{sT3}, {WS_FPACE}")
    a(f"s_mov_b32 s{sSpin}, 0")
    a("s_mov_b64 exec, 1")
    a.label("S_pace")
    a(f"s_sleep {ENV('PSLEEP', 8)}")
    a(f"buffer_load_dword v{t2}, v{vzero}, s[{sWS}:{sWS+3}], s{sT3} offen sc1")
    a("s_waitcnt vmcnt(0)")
    a(f"v_readfirstlane_b32 s{sT}, v{t2}")
    a(f"s_cmp_eq_u32 s{sT}, s{sTok}")
    a("s_cbranch_scc1 S_paced")
    a(f"s_add_u32 s{sSpin}, s{sSpin}, 1")
    a(f"s_cmp_lt_u32 s{sSpin}, {ENV('PMAX', 24)}")
    a("s_cbranch_scc1 S_pace")
    a.label("S_paced")
    a("s_mov_b64 exec, -1")
    stamp(a, 10)
    for g in range(4):
        a(f"s_mov_b32 s{sT3}, {WS_FLN + 8192*g}")
        a(f"buffer_load_dword v{O[0]+g}, v{t1}, s[{sWS}:{sWS+3}], s{sT3} offen sc1")
    a("s_waitcnt vmcnt(0)")
    for g in range(4):
        a(f"s_mov_b32 s{sT3}, {WS_FLN + 8192*g}")
        ldf = lambda: a(f"buffer_load_dword v{O[0]+g}, v{t1}, s[{sWS}:{sWS+3}], s{sT3} offen sc1")
        check_flags(a, [O[0] + g], t1, ldf, sleep=ENV("LNSLEEP", 6))
    stamp(a, 9)
    Uq_ = [U[0] + 4 * i for i in range(12)]
    assert U[0] % 4 == 0
    for ch in range(3):
        a(f"s_lshl_b32 s{sT}, s{[sD[0], sD[1], sCnt][ch]}, 4")
        for g in range(4):
            if g: a(f"s_add_u32 s{sT}, s{sT}, {64*10240}")
            a(f"buffer_load_dwordx4 {v(Uq_[4*ch+g],4)}, v{t0}, s[{sWS}:{sWS+3}], s{sT} offen sc1")
    for i in range(12):
        a(f"s_waitcnt vmcnt({11-i})")
        a(f"ds_write_b128 v{v16}, {v(Uq_[i],4)} offset:{CV_U[i//4] + 1024*(i%4)}")
    stamp(a, 4)
    hi = max(hi, R.hi)

    a.label("S_join"); a.flush_hist()
    if ONLY: a("s_branch S_end")
    stamp(a, 3)
    R.reset(base)
    acc = [R(4, 4) for _ in range(8)]
    FA = [[R(4, 4) for _ in range(8)] for _ in range(2)]
    FB = [[R(4, 4) for _ in range(8)] for _ in range(2)]
    vA = R(); vBq = R(); vA0 = R(); vB0 = R(); vrw = R(); vrr = R(); vfl = R(); vfa = R(); vtk = R()
    a(f"s_load_dwordx2 s[{sX_}:{sX_+1}], s[0:1], 64")
    srd(a, sX_, D * 2)
    a(f"s_lshr_b32 s{sSlot}, s{sWave}, 1")
    a(f"s_and_b32 s{sPar}, s{sWave}, 1")
    Z = FB[0][3]
    for i in range(4): a(f"v_mov_b32 v{Z+i}, 0")
    a(f"s_min_u32 s{sT}, s{sWave}, 2")
    a(f"s_mul_i32 s{sT}, s{sT}, 4608")
    a(f"v_add_u32 v{t2}, s{sT}, v{v16}")
    a("s_mov_b32 exec_hi, 0")
    a(f"ds_write_b128 v{t2}, {v(Z,4)} offset:{CV_U[0]-512}")
    a("s_mov_b32 exec_hi, -1")
    a(f"v_and_b32 v{t0}, 15, v{lane}")
    a(f"v_sub_u32 v{t2}, 15, v{t0}")
    a(f"v_and_b32 v{t3}, 3, v{t2}")
    a(f"v_sub_u32 v{t2}, v{t2}, v{t3}")
    a(f"v_mul_u32_u24 v{t3}, {CV_S}, v{t3}")
    a(f"v_lshl_add_u32 v{t3}, v{t2}, 1, v{t3}")
    a(f"v_lshrrev_b32 v{t2}, 4, v{lane}")
    a(f"v_lshl_add_u32 v{vA0}, v{t2}, 4, v{t3}")
    a(f"v_lshlrev_b32 v{t3}, 4, v{t2}")
    a(f"v_lshl_add_u32 v{vB0}, v{t0}, 5, v{t3}")
    a(f"v_lshrrev_b32 v{t3}, 1, v{t2}")
    a(f"v_lshlrev_b32 v{t3}, 3, v{t3}")
    a(f"v_xor_b32 v{t3}, v{t3}, v{t0}")
    a(f"v_lshlrev_b32 v{t3}, 4, v{t3}")
    a(f"v_lshl_add_u32 v{t3}, v{t2}, 8, v{t3}")
    a(f"s_lshl_b32 s{sT}, s{sWave}, 13")
    a(f"v_add_u32 v{vrw}, s{sT}, v{t3}")
    a(f"v_bfe_u32 v{t0}, v{lane}, 1, 4")
    a(f"v_and_b32 v{t2}, 1, v{lane}")
    a(f"v_lshlrev_b32 v{t3}, 3, v{t2}")
    a(f"v_xor_b32 v{t0}, v{t0}, v{t3}")
    a(f"v_lshlrev_b32 v{t0}, 4, v{t0}")
    a(f"v_lshl_add_u32 v{t0}, v{t2}, 9, v{t0}")
    a(f"v_lshrrev_b32 v{t2}, 5, v{lane}")
    a(f"v_lshl_add_u32 v{vrr}, v{t2}, 10, v{t0}")
    a(f"v_mov_b32 v{vtk}, s{sTok}")
    a(f"s_mul_i32 s{sT}, s{sSlot}, {CH_REG}")
    a(f"s_lshl_b32 s{sT2}, s{sPar}, 8")
    a(f"s_sub_u32 s{sT}, s{sT}, s{sT2}")
    a(f"s_add_u32 s{sT}, s{sT}, {32*14}")
    a(f"v_add_u32 v{vA}, s{sT}, v{vA0}")
    a(f"s_mul_i32 s{sT}, s{sSlot}, 4608")
    a(f"s_sub_u32 s{sT}, s{sT}, s{sT2}")
    a(f"s_add_u32 s{sT}, s{sT}, {CV_U[0] - 512 + 32*15}")
    a(f"v_add_u32 v{vBq}, s{sT}, v{vB0}")
    a("s_waitcnt lgkmcnt(0)")
    a(f"s_add_u32 s{sT}, s{sD[0]}, s{sSlot}")
    a(f"s_lshl_b32 s{sT}, s{sT}, 1")
    a(f"buffer_load_ushort v{vdk[0]}, v{vzero}, s[{sX_}:{sX_+3}], s{sT} offen")
    a(f"s_lshl_b32 s{sT}, s{sD[2]}, 1")
    a(f"buffer_load_ushort v{vdk[1]}, v{vzero}, s[{sX_}:{sX_+3}], s{sT} offen")
    a(f"s_mov_b32 s{sCnt}, 2")
    a(f"s_mov_b32 s{sRound}, 0")
    a("s_waitcnt vmcnt(0)")
    a("s_barrier")
    stamp(a, 5)

    def rdlist(st):
        rd_ = []
        for j in range(8):
            rd_.append(f"ds_read_b128 {v(FB[st][j],4)}, v{vBq} offset:{512*j}")
            rd_.append(f"ds_read_b64 {v(FA[st][j],2)}, v{vA} offset:{512*(7-j)}")
            rd_.append(f"ds_read_b64 {v(FA[st][j]+2,2)}, v{vA} offset:{512*(7-j)+8}")
        rd_.append(f"v_subrev_u32 v{vA}, 64, v{vA}")
        rd_.append(f"v_subrev_u32 v{vBq}, 64, v{vBq}")
        return rd_
    def group(st, nxt):
        pairs = sorted([(c, j) for c in range(8) for j in range(c + 1)], key=lambda cj: (cj[1], cj[0]))
        rd_ = rdlist(nxt)
        for i, (c, j) in enumerate(pairs):
            a(f"v_mfma_f32_16x16x32_bf16 {v(acc[c],4)}, {v(FA[st][j],4)}, {v(FB[st][c-j],4)}, {v(acc[c],4)}")
            if i < len(rd_): a(rd_[i])
    a.label("CV_round"); a.flush_hist()
    for x in rdlist(0): a(x)
    for c in range(8):
        for i in range(4): a(f"v_mov_b32 v{acc[c]+i}, 0")
    a.label("CV_loop")
    a("s_waitcnt lgkmcnt(0)")
    group(0, 1)
    a("s_waitcnt lgkmcnt(0)")
    group(1, 0)
    a(f"s_sub_u32 s{sCnt}, s{sCnt}, 1")
    a(f"s_cmp_lg_u32 s{sCnt}, 0")
    a("s_cbranch_scc1 CV_loop")
    a("s_waitcnt lgkmcnt(0)")
    a("s_barrier")
    for c in range(8):
        a(f"ds_write_b128 v{vrw}, {v(acc[c],4)} offset:{1024*c}")
    a("s_waitcnt lgkmcnt(0)")
    a("s_barrier")
    Rd = FA[1]; Uq = FB[1]
    def finish(npart, nblk, vdsk):
        for b in range(nblk):
            bs = b * npart * 2
            for p in range(1, npart):
                for e in range(2):
                    for hf in range(2):
                        a(f"v_pk_add_f32 {v(Rd[bs+e]+2*hf,2)}, {v(Rd[bs+e]+2*hf,2)}, {v(Rd[bs+2*p+e]+2*hf,2)}")
            o = FB[1][4 + b]; T_ = FB[1][2]; T2_ = FB[1][3]
            for m in range(4):
                y = Rd[bs + m // 2] + 2 * (m % 2)
                u = Uq[b] + m
                a(f"v_cvt_pk_bf16_f32 v{o+m}, v{y}, v{y+1}")
                a(f"v_lshlrev_b32 v{T_}, 16, v{u}")
                a(f"v_and_b32 v{T_+1}, 0xffff0000, v{u}")
                a(f"v_pk_mul_f32 {v(T_,2)}, {v(T_,2)}, {v(vdsk,2)} op_sel_hi:[1,0]")
                a(f"v_cvt_pk_bf16_f32 v{T_+2}, v{T_}, v{T_+1}")
                a(f"v_lshlrev_b32 v{T_}, 16, v{T_+2}")
                a(f"v_and_b32 v{T_+1}, 0xffff0000, v{T_+2}")
                a(f"v_lshlrev_b32 v{T2_}, 16, v{o+m}")
                a(f"v_and_b32 v{T2_+1}, 0xffff0000, v{o+m}")
                a(f"v_pk_add_f32 {v(T_,2)}, {v(T_,2)}, {v(T2_,2)}")
                a(f"v_cvt_pk_bf16_f32 v{o+m}, v{T_}, v{T_+1}")
            a(f"buffer_store_dwordx4 {v(o,4)}, v{v16}, s[{sWS}:{sWS+3}], s{sT2} offen offset:{1024*b} sc1")
    dsk = FB[1][6]
    def flag1():
        a(f"s_add_u32 s{sT}, s{sD[0]}, s{sSlot}")
        a(f"s_lshl_b32 s{sT}, s{sT}, 7")
        a(f"s_lshl_b32 s{sT2}, s{sPar}, 3")
        a(f"s_add_u32 s{sT}, s{sT}, s{sT2}")
        a(f"s_add_u32 s{sT}, s{sT}, {WS_FST}")
        a(f"v_lshlrev_b32 v{t0}, 2, v{lane}")
        a("s_waitcnt vmcnt(0)")
        a("s_mov_b64 exec, 3")
        a(f"buffer_store_dword v{vtk}, v{t0}, s[{sWS}:{sWS+3}], s{sT} offen sc1")
        a("s_mov_b64 exec, -1")
    a(f"s_cmp_lg_u32 s{sRound}, 0")
    a("s_cbranch_scc1 CV_fin2")
    stamp(a, 6)
    a(f"s_lshl_b32 s{sT}, s{sSlot}, 14")
    a(f"s_lshl_b32 s{sT2}, s{sPar}, 12")
    a(f"s_add_u32 s{sT}, s{sT}, s{sT2}")
    a(f"v_add_u32 v{t0}, s{sT}, v{vrr}")
    for b in range(2):
        for p in range(2):
            for e in range(2):
                a(f"ds_read_b128 {v(Rd[(b*2+p)*2+e],4)}, v{t0} offset:{8192*p + 2048*b + 256*e}")
    a(f"s_mul_i32 s{sT}, s{sSlot}, 4608")
    a(f"s_lshl_b32 s{sT2}, s{sPar}, 11")
    a(f"s_add_u32 s{sT}, s{sT}, s{sT2}")
    a(f"v_add_u32 v{t2}, s{sT}, v{v16}")
    for b in range(2):
        a(f"ds_read_b128 {v(Uq[b],4)}, v{t2} offset:{CV_U[0] + 1024*b}")
    a(f"v_lshlrev_b32 v{dsk}, 16, v{vdk[0]}")
    a(f"s_add_u32 s{sT}, s{sD[0]}, s{sSlot}")
    a(f"s_lshl_b32 s{sT}, s{sT}, 12")
    a(f"s_add_u32 s{sT2}, s{sT2}, s{sT}")
    a(f"s_add_u32 s{sT2}, s{sT2}, {WS_ST}")
    a("s_waitcnt lgkmcnt(0)")
    finish(2, 2, dsk)
    stamp(a, 7)
    a(f"s_cmp_lg_u32 s{sHeavy}, 0")
    a("s_cbranch_scc1 CV_r2")
    flag1()
    a("s_branch S_end")
    a.label("CV_r2"); a.flush_hist()
    a(f"s_lshl_b32 s{sT2}, s{sWave}, 7")
    a(f"s_sub_u32 s{sT}, {2*CH_REG + 32*14}, s{sT2}")
    a(f"v_add_u32 v{vA}, s{sT}, v{vA0}")
    a(f"s_sub_u32 s{sT}, {CV_U[2] - 512 + 32*15}, s{sT2}")
    a(f"v_add_u32 v{vBq}, s{sT}, v{vB0}")
    a(f"s_mov_b32 s{sCnt}, 1")
    a(f"s_mov_b32 s{sRound}, 1")
    a("s_branch CV_round")
    a.label("CV_fin2"); a.flush_hist()
    stamp(a, 8)
    a(f"s_lshl_b32 s{sT}, s{sWave}, 11")
    a(f"v_add_u32 v{t0}, s{sT}, v{vrr}")
    for p in range(4):
        for e in range(2):
            a(f"ds_read_b128 {v(Rd[p*2+e],4)}, v{t0} offset:{8192*p + 256*e}")
    a(f"s_lshl_b32 s{sT3}, s{sWave}, 10")
    a(f"v_add_u32 v{t2}, s{sT3}, v{v16}")
    a(f"ds_read_b128 {v(Uq[0],4)}, v{t2} offset:{CV_U[2]}")
    flag1()
    a(f"v_lshlrev_b32 v{dsk}, 16, v{vdk[1]}")
    a(f"s_lshl_b32 s{sT}, s{sD[2]}, 12")
    a(f"s_add_u32 s{sT2}, s{sT3}, s{sT}")
    a(f"s_add_u32 s{sT2}, s{sT2}, {WS_ST}")
    a("s_waitcnt lgkmcnt(0)")
    finish(4, 1, dsk)
    a(f"s_lshl_b32 s{sT}, s{sD[2]}, 7")
    a(f"s_lshl_b32 s{sT2}, s{sWave}, 2")
    a(f"s_add_u32 s{sT}, s{sT}, s{sT2}")
    a(f"s_add_u32 s{sT}, s{sT}, {WS_FST}")
    a("s_waitcnt vmcnt(0)")
    a("s_mov_b64 exec, 1")
    a(f"buffer_store_dword v{vtk}, v{vzero}, s[{sWS}:{sWS+3}], s{sT} offen sc1")
    a.label("S_end")
    stamp_end(a, sWave)
    return max(hi, R.hi)

W_SLOT = 12288
X_OFF = 3 * W_SLOT
X_WAVE = 11264
NXU = 5
def g_role(a):
    sX, sW1, sB1, sOUT, sW2 = 20, 24, 28, 32, 52
    sRB, sCB, sTB, sJD, sId = 36, 37, 38, 39, 3
    sP = [40, 41, 42]
    sWoff, sXoff, sM0w, sM0x, sOA, sOB = 43, 44, 45, 46, 47, 48
    R = Alloc(1)
    lane = R(); t0 = R(); t1 = R(); t2 = R(); t3 = R(); vzero = R(); vtok = R(); v16 = R(); vfa = R()
    vfl = R(); vsa = R()
    NWR = 25
    NWI = 18
    WR = [R(4, 4) for _ in range(NWR)]
    base2 = pool = R.mark()
    R.reset(184)
    acc = [[R(4, 4) for ct in range(2)] for rt in range(6)]
    cs = [R(4, 4) for _ in range(2)]
    st = [R(2, 2) for _ in range(2)]
    b1p = [R(2, 2) for _ in range(6)]
    R.reset(WR[NWI]); R.limit = 184
    A = [[R(4, 4) for rt in range(6)] for _ in range(2)]
    X = [[[R(4, 4) for ct in range(2)] for e in range(2)] for _ in range(2)]
    ones = R(4, 4)
    vE = [R() for _ in range(3)]; vO = [R() for _ in range(3)]
    vW = [R() for _ in range(3)]; vXs = [R(), R()]; vXr = [R(), R()]
    vpf = R(); vpd = R()
    stamp_begin(a)
    if ENV("GPRIO", 0): a(f"s_setprio {ENV('GPRIO', 0)}")
    a(f"s_load_dwordx2 s[{sX}:{sX+1}], s[0:1], 0")
    a(f"s_load_dwordx2 s[{sW1}:{sW1+1}], s[0:1], 80")
    a(f"s_load_dwordx2 s[{sW2}:{sW2+1}], s[0:1], 96")
    a(f"v_lshrrev_b32 v{t0}, 6, v0")
    a(f"v_and_b32 v{lane}, 63, v0")
    a(f"v_readfirstlane_b32 s{sWave}, v{t0}")
    a(f"s_sub_u32 s{sId}, s2, 256")
    if ENV("CPF", 1):
        a("s_getpc_b64 s[18:19]")
        a("s_and_b32 s18, s18, 0xffffff00")
        a(f"s_lshr_b32 s{sT3}, s{sId}, 3")
        a(f"s_lshl_b32 s{sT3}, s{sT3}, 10")
        a(f"s_add_u32 s18, s18, s{sT3}")
        a(f"s_addc_u32 s19, s19, 0")
        a(f"v_lshrrev_b32 v{A[0][0]}, 5, v0")
        a(f"v_lshlrev_b32 v{A[0][0]}, 7, v{A[0][0]}")
        a(f"v_mov_b32 v{A[0][0]+1}, s19")
        a(f"v_add_co_u32 v{A[0][0]}, vcc, s18, v{A[0][0]}")
        a(f"v_addc_co_u32 v{A[0][0]+1}, vcc, 0, v{A[0][0]+1}, vcc")
        a("s_mov_b32 exec_lo, 1"); a("s_mov_b32 exec_hi, 1")
        a(f"global_load_dword v{vpd}, {v(A[0][0],2)}, off")
        a("s_mov_b64 exec, -1")
    srd(a, sX, L * D * 2); srd(a, sW1, D * F * 2)
    pfx = A[1][0]; pfw = A[1][0] + 1
    a(f"s_lshr_b32 s{sT3}, s{sId}, 3")
    a(f"s_lshl_b32 s{sT3}, s{sT3}, 2")
    a(f"s_add_u32 s{sT3}, s{sT3}, s{sWave}")
    a(f"v_mul_u32_u24 v{t1}, 0xaaab, v{lane}")
    a(f"v_lshrrev_b32 v{t1}, 18, v{t1}")
    a(f"v_mul_u32_u24 v{t2}, 6, v{t1}")
    a(f"v_sub_u32 v{t2}, v{lane}, v{t2}")
    a(f"v_mul_u32_u24 v{t1}, {64*3072}, v{t1}")
    a(f"v_lshl_add_u32 v{t1}, v{t2}, 7, v{t1}")
    a(f"s_lshr_b32 s{sT2}, s{sT3}, 1")
    a(f"s_mul_i32 s{sT2}, s{sT2}, 3072")
    a(f"s_and_b32 s{sT}, s{sId}, 1")
    a(f"s_lshl_b32 s{sT}, s{sT}, 1")
    a(f"s_and_b32 s{sRB}, s{sT3}, 1")
    a(f"s_add_u32 s{sT}, s{sT}, s{sRB}")
    a(f"s_mul_i32 s{sT}, s{sT}, 768")
    a(f"s_add_u32 s{sT2}, s{sT2}, s{sT}")
    a(f"v_add_u32 v{pfw}, s{sT2}, v{t1}")
    a(f"v_lshrrev_b32 v{t2}, 2, v{lane}")
    a(f"v_lshlrev_b32 v{t2}, 7, v{t2}")
    a(f"v_and_b32 v{t3}, 3, v{lane}")
    a(f"v_mul_u32_u24 v{t3}, 1280, v{t3}")
    a(f"v_add_u32 v{t2}, v{t2}, v{t3}")
    a(f"s_bfe_u32 s{sT}, s{sId}, 0x20001")
    a(f"s_lshl_b32 s{sT}, s{sT}, 7")
    a(f"s_add_u32 s{sT}, s{sT}, s{sT3}")
    a(f"s_mul_i32 s{sT}, s{sT}, {4*1280}")
    a(f"v_add_u32 v{pfx}, s{sT}, v{t2}")
    a("s_waitcnt lgkmcnt(0)")
    stamp(a, 1)
    def do_pf(c0, c1):
        def mask(lo, hi):
            m = ((1 << hi) - 1) & ~((1 << lo) - 1)
            a(f"s_mov_b32 exec_lo, {hex(m & 0xffffffff)}"); a(f"s_mov_b32 exec_hi, {hex(m >> 32)}")
        mask(4 * c0, 4 * c1)
        a(f"buffer_load_dword v{vpd}, v{pfx}, s[{sX}:{sX+3}], 0 offen")
        mask(6 * c0, 6 * c1)
        a(f"buffer_load_dword v{vpd}, v{pfw}, s[{sW1}:{sW1+3}], 0 offen")
        a("s_mov_b64 exec, -1")
    PFA_ = ENV("PFSPLIT", 3)
    do_pf(0, PFA_)
    srd(a, sW2, F * D * 2)
    a(f"s_mul_i32 s{sT}, s{sT3}, {15*128}")
    a(f"v_lshl_add_u32 v{vpf}, v{lane}, 7, s{sT}")
    def op_pf2(j):
        def f():
            a(f"s_add_u32 s{sT2}, s{sId}, {j}")
            a(f"s_and_b32 s{sT2}, s{sT2}, 7")
            a(f"s_mul_i32 s{sT2}, s{sT2}, {128*15*128}")
            a("s_mov_b64 exec, 0x7fff")
            a(f"buffer_load_dword v{vpd}, v{vpf}, s[{sW2}:{sW2+3}], s{sT2} offen")
            a("s_mov_b64 exec, -1")
        return f
    a(f"s_load_dwordx2 s[{sB1}:{sB1+1}], s[0:1], 88")
    a(f"s_load_dwordx2 s[{sWS}:{sWS+1}], s[0:1], 120")
    a(f"s_load_dwordx2 s[{sDBG}:{sDBG+1}], s[0:1], 112")
    a(f"s_load_dwordx2 s[{sOUT}:{sOUT+1}], s[0:1], 104")
    srd(a, sB1, F * 2); srd(a, sWS, WS_SIZE); srd(a, sDBG, 256); srd(a, sOUT, L * D * 2)
    a(f"s_and_b32 s{sT}, s{sId}, 7")
    a(f"s_lshr_b32 s{sT2}, s{sId}, 3")
    a(f"s_lshr_b32 s{sRB}, s{sT}, 1")
    a(f"s_lshl_b32 s{sTB}, s{sT}, 2")
    a(f"s_lshl_b32 s{sRB}, s{sRB}, 2")
    a(f"s_and_b32 s{sT3}, s{sT2}, 3")
    a(f"s_add_u32 s{sRB}, s{sRB}, s{sT3}")
    a(f"s_add_u32 s{sTB}, s{sTB}, s{sT3}")
    a(f"s_and_b32 s{sT}, s{sT}, 1")
    a(f"s_lshl_b32 s{sCB}, s{sT}, 3")
    a(f"s_lshr_b32 s{sJD}, s{sT2}, 2")
    a(f"s_add_u32 s{sCB}, s{sCB}, s{sJD}")
    a(f"v_mov_b32 v{vzero}, 0")
    a(f"v_lshlrev_b32 v{v16}, 4, v{lane}")
    for i in range(3):
        a(f"v_add_u32 v{t0}, {64*i}, v{lane}")
        a(f"v_mul_u32_u24 v{t1}, 0xaaab, v{t0}")
        a(f"v_lshrrev_b32 v{t1}, 19, v{t1}")
        a(f"v_mul_u32_u24 v{t2}, 12, v{t1}")
        a(f"v_sub_u32 v{t2}, v{t0}, v{t2}")
        a(f"v_lshrrev_b32 v{t3}, 2, v{t1}")
        a(f"v_and_b32 v{t3}, 2, v{t3}")
        a(f"v_xor_b32 v{t2}, v{t2}, v{t3}")
        a(f"v_lshlrev_b32 v{t2}, 4, v{t2}")
        a(f"v_mul_u32_u24 v{t1}, 3072, v{t1}")
        a(f"v_add_u32 v{vW[i]}, v{t1}, v{t2}")
        if i: a(f"v_subrev_u32 v{vW[i]}, {1024*i}, v{vW[i]}")
    a(f"s_mul_i32 s{sWoff}, s{sWave}, {16*3072}")
    a(f"s_mul_i32 s{sT}, s{sCB}, 192")
    a(f"s_add_u32 s{sWoff}, s{sWoff}, s{sT}")
    a(f"s_mul_i32 s{sM0w}, s{sWave}, 3072")
    a(f"v_lshrrev_b32 v{t0}, 3, v{lane}")
    a(f"v_and_b32 v{t1}, 7, v{lane}")
    a(f"v_lshrrev_b32 v{t2}, 1, v{t0}")
    a(f"v_xor_b32 v{t1}, v{t1}, v{t2}")
    a(f"v_mul_u32_u24 v{t0}, 1280, v{t0}")
    a(f"v_lshl_add_u32 v{vXs[0]}, v{t1}, 4, v{t0}")
    a(f"v_xor_b32 v{vXs[1]}, 64, v{vXs[0]}")
    a(f"v_add_u32 v{vXs[1]}, {8*1280 - 1024}, v{vXs[1]}")
    a(f"s_lshl_b32 s{sXoff}, s{sRB}, 7")
    a(f"s_lshl_b32 s{sT}, s{sWave}, 5")
    a(f"s_add_u32 s{sXoff}, s{sXoff}, s{sT}")
    a(f"s_mul_i32 s{sXoff}, s{sXoff}, 1280")
    a(f"s_mul_i32 s{sM0x}, s{sWave}, {X_WAVE}")
    a(f"s_add_u32 s{sM0x}, s{sM0x}, {X_OFF}")

    tokW = {}; tokXu = {}
    def ops_w(c):
        def f0():
            a(f"s_add_u32 m0, s{sM0w}, {(c % 3) * W_SLOT}")
            if c: a(f"s_add_u32 s{sWoff}, s{sWoff}, {64*3072}")
        def fi(i):
            def f():
                a(f"buffer_load_dwordx4 v{vW[i]}, s[{sW1}:{sW1+3}], s{sWoff} offen offset:{1024*i} lds")
                if i == 2: tokW[c] = a.vtok()
            return f
        return [f0] + [fi(i) for i in range(3)]
    def ops_x(u):
        c, ct = u // 2, u % 2
        def f0():
            a(f"s_add_u32 m0, s{sM0x}, {(u % NXU) * 2048}")
            a(f"s_add_u32 s{sT}, s{sXoff}, {ct*16*1280 + c*128}")
        def fi(h):
            def f():
                a(f"buffer_load_dwordx4 v{vXs[h]}, s[{sX}:{sX+3}], s{sT} offen offset:{1024*h} lds")
                if h == 1: tokXu[u] = a.vtok()
            return f
        return [f0, fi(0), fi(1)]
    def do_first():
        for f in ops_w(0) + ops_x(0) + ops_x(1) + ops_w(1) + ops_x(2) + ops_x(3): f()
    do_first()

    a(f"v_lshrrev_b32 v{t0}, 4, v{lane}")
    a(f"v_bfe_u32 v{t1}, v{lane}, 2, 2")
    a(f"v_lshl_add_u32 v{t1}, v{t0}, 3, v{t1}")
    a(f"v_mul_u32_u24 v{t1}, 192, v{t1}")
    a(f"v_and_b32 v{t2}, 3, v{lane}")
    a(f"v_lshl_add_u32 v{t1}, v{t2}, 3, v{t1}")
    a(f"v_and_b32 v{t2}, 1, v{t0}")
    a(f"v_lshlrev_b32 v{t2}, 5, v{t2}")
    a(f"v_sub_u32 v{t3}, v{t1}, v{t2}")
    a(f"v_add_u32 v{t3}, 32, v{t3}")
    a(f"v_add_u32 v{t2}, v{t1}, v{t2}")
    for P in range(3):
        a(f"s_add_u32 s{sP[P]}, s{sWave}, {P}")
        a(f"s_cmp_ge_u32 s{sP[P]}, 3")
        a(f"s_cselect_b32 s{sT}, 3, 0")
        a(f"s_sub_u32 s{sP[P]}, s{sP[P]}, s{sT}")
        a(f"s_lshl_b32 s{sT}, s{sP[P]}, 6")
        a(f"v_add_u32 v{vE[P]}, s{sT}, v{t2}")
        a(f"v_add_u32 v{vO[P]}, s{sT}, v{t3}")
    a(f"v_and_b32 v{t1}, 15, v{lane}")
    a(f"v_lshrrev_b32 v{t2}, 1, v{t1}")
    a(f"v_xor_b32 v{t2}, v{t2}, v{t0}")
    a(f"v_lshlrev_b32 v{t2}, 4, v{t2}")
    a(f"v_lshl_add_u32 v{t2}, v{t1}, 7, v{t2}")
    a(f"v_add_u32 v{vXr[0]}, s{sM0x}, v{t2}")
    a(f"v_xor_b32 v{t2}, 64, v{t2}")
    a(f"v_add_u32 v{vXr[1]}, s{sM0x}, v{t2}")
    a(f"v_lshrrev_b32 v{t2}, 3, v{t1}")
    a(f"v_and_b32 v{t1}, 7, v{t1}")
    a(f"v_lshlrev_b32 v{t1}, 3, v{t1}")
    a(f"v_lshl_add_u32 v{vsa}, v{t2}, 7, v{t1}")
    a(f"s_mul_i32 s{sT}, s{sWave}, 12")
    a(f"s_mul_i32 s{sOA}, s{sT}, {32*1280}")
    a(f"s_mul_i32 s{sT2}, s{sJD}, 160")
    a(f"s_add_u32 s{sOA}, s{sOA}, s{sT2}")
    a(f"s_mul_i32 s{sOB}, s{sTB}, 192")
    a(f"s_add_u32 s{sOB}, s{sOB}, s{sT}")
    a(f"s_lshl_b32 s{sOB}, s{sOB}, 10")
    a(f"s_add_u32 s{sOB}, s{sOB}, {WS_ACT}")
    a(f"v_lshlrev_b32 v{t0}, 3, v{t0}")

    tokA = {}; tokXr = {}
    def ops_ra(ks):
        c, e = ks // 2, ks % 2
        off = (c % 3) * W_SLOT + e * 6144
        out = []
        for rt in range(6):
            ad = (vE if rt % 2 == 0 else vO)[rt // 2]
            for h in range(2):
                def f(rt=rt, h=h, ad=ad):
                    a(f"ds_read_b64_tr_b16 {v(A[ks%2][rt] + 2*h, 2)}, v{ad} offset:{off + 768*h}")
                    tokA[(ks, rt)] = a.ltok()
                out.append(f)
        return out
    def ops_rx(c):
        out = []
        for e in range(2):
            for ct in range(2):
                def f(e=e, ct=ct):
                    a(f"ds_read_b128 {v(X[c%2][e][ct],4)}, v{vXr[e]} offset:{((2*c+ct) % NXU) * 2048}")
                    tokXr[c] = a.ltok()
                out.append(f)
        return out
    def mf(d, A_, B_, first):
        c = "0" if first else v(d, 4)
        a(f"v_mfma_f32_16x16x32_bf16 {v(d,4)}, {v(A_,4)}, {v(B_,4)}, {c}")
    wq = [0]
    tokWR = {}
    def ops_wr(n, lim=NWI):
        out = []
        for it_ in range(n):
            f_ = wq[0]
            if f_ >= lim: break
            def f(f_=f_, it_=it_):
                if f_ % 4 == 0 or it_ == 0: a(f"s_add_u32 s{sT2}, s{sOA}, {1024*(f_ - f_%4)}")
                a(f"buffer_load_dwordx4 {v(WR[f_],4)}, v{v16}, s[{sWS}:{sWS+3}], s{sT2} offen offset:{1024*(f_%4)} sc1")
                tokWR[f_] = a.vtok()
            out.append(f); wq[0] += 1
        return out
    sFB = 49
    def ld_w2flags():
        a(f"buffer_load_dword v{vfl}, v{vfa}, s[{sWS}:{sWS+3}], s{sFB} offen sc1")
    def ld_first(nl):
        a(f"v_mov_b32 v{vfl}, s{sTok}")
        a(f"s_mov_b64 exec, {hex((1 << nl) - 1)}")
        ld_w2flags()
        a("s_mov_b64 exec, -1")
    def ld_stats():
        for ct in range(2):
            a(f"buffer_load_dwordx2 {v(st[ct],2)}, v{vsa}, s[{sWS}:{sWS+3}], s{sT3} offen offset:{256*ct} sc1")
    tk = {}
    def op_tok():
        a(f"buffer_load_dword v{vtok}, v{vzero}, s[{sDBG}:{sDBG+3}], 0 offen sc1")
        tk["tok"] = a.vtok()
    def op_chk_tok():
        a.wait(vm=tk["tok"])
        check_token(a, vtok, vzero)
    def op_pace():
        a(f"v_mov_b32 v{vtok}, s{sTok}")
        a(f"s_lshl_b32 s{sT2}, s{sId}, 7")
        a(f"s_add_u32 s{sT2}, s{sT2}, {WS_FPACE}")
        a(f"s_cmp_eq_u32 s{sWave}, 0")
        a(f"s_cselect_b32 s{sT2}, s{sT2}, {WS_SIZE}")
        a("s_mov_b64 exec, 1")
        a(f"buffer_store_dword v{vtok}, v{vzero}, s[{sWS}:{sWS+3}], s{sT2} offen sc1")
        a("s_mov_b64 exec, -1")
    def op_stats():
        a(f"s_lshl_b32 s{sT3}, s{sRB}, 4")
        a(f"s_lshl_b32 s{sT2}, s{sWave}, 2")
        a(f"s_add_u32 s{sT3}, s{sT3}, s{sT2}")
        a(f"s_lshl_b32 s{sT3}, s{sT3}, 7")
        a(f"s_add_u32 s{sT3}, s{sT3}, {WS_STAT}")
        ld_stats()
        tk["st"] = a.vtok()
    def op_b1(P):
        def f():
            a(f"s_mul_i32 s{sT2}, s{sCB}, 192")
            a(f"s_lshl_b32 s{sT}, s{sP[P]}, 6")
            a(f"s_add_u32 s{sT}, s{sT}, s{sT2}")
            for o in range(2):
                a(f"buffer_load_dwordx2 {v(b1p[2*P+o],2)}, v{t0}, s[{sB1}:{sB1+3}], s{sT} offen offset:{32*o}")
        return f

    a("s_waitcnt lgkmcnt(0)")
    for P in range(3): op_b1(P)()
    a("s_waitcnt lgkmcnt(0)")
    a.wait(vm=max(tokW[0], tokXu[1]))
    for i in range(4): a(f"v_mov_b32 v{ones+i}, 0x3f803f80")
    a("s_barrier")
    stamp(a, 2)
    for f in ops_rx(0) + ops_ra(0) + ops_x(4) + ops_w(2): f()
    if PFA_ < 10: do_pf(PFA_, 10)
    op_pf2(0)()
    op_tok()
    extra = {9: [op_chk_tok], ENV("PACEKS", 13): [op_pace], 17: [op_stats]}
    for j in range(1, 8): extra.setdefault(ENV("PF2KS", 7) + j, []).append(op_pf2(j))
    if ENV("GPRIO2", 2): a(f"s_setprio {ENV('GPRIO2', 2)}")
    for ks in range(20):
        c, e = ks // 2, ks % 2
        first = ks == 0
        Xs = X[c % 2][e]; As = A[ks % 2]
        mlist = []
        for rt in range(6):
            for ct in range(2): mlist.append((rt, acc[rt][ct], As[rt], Xs[ct]))
            if rt < 2: mlist.append((rt, cs[rt], As[rt], ones))
        if e == 0:
            fill = ops_ra(ks + 1)
            dma = []
            for u in (2 * c + 5, 2 * c + 6):
                if u < 20: dma += ops_x(u)
            fl2 = []
            for i, f in enumerate(fill):
                fl2.append(f)
                if i % 2 == 1 and dma: fl2.append(dma.pop(0))
            fill = fl2 + dma + extra.get(ks, [])
            start = 0
            a.wait(lg=tokXr[c])
        else:
            fill = []
            if ks < 19:
                fill = ops_rx(c + 1) + ops_ra(ks + 1)
                if c + 3 < 10: fill += ops_w(c + 3)
            fill += extra.get(ks, [])
            start = 6 if ks < 19 else 0
        nslots = len(mlist) - start
        per = [len(fill) // nslots + (1 if i < len(fill) % nslots else 0) for i in range(nslots)]
        lastrt = -1
        for i, (rt, d, A_, B_) in enumerate(mlist):
            if e == 1 and ks < 19 and i == start:
                a.wait(vm=max(tokW[c + 1], tokXu[2 * c + 3]), lg=a.ltok())
                a("s_barrier")
                if ks in (5, 11): stamp(a, {5: 3, 11: 4}[ks])
                lastrt = 99
            if rt > lastrt:
                a.wait(lg=tokA[(ks, rt)]); lastrt = rt
            mf(d, A_, B_, first)
            if i >= start:
                for _ in range(per[i - start]): fill.pop(0)()
        assert not fill
    tokst = tk["st"]
    stamp(a, 5)

    E = Alloc(pool, limit=vpf)
    csv = [E(4, 4) for _ in range(6)]
    b1v = [E(4, 4) for _ in range(6)]
    rr = [E(2, 2) for _ in range(2)]
    tmp = [E(2, 2) for _ in range(8)]
    outp = cs
    vcs = E()
    CSOFF = 2 * W_SLOT
    a(f"v_lshrrev_b32 v{t0}, 4, v{lane}")
    a(f"v_lshlrev_b32 v{vcs}, 4, v{t0}")
    a(f"s_lshl_b32 s{sT}, s{sP[0]}, 7")
    a(f"v_add_u32 v{t1}, s{sT}, v{vcs}")
    for o in range(2):
        a(f"ds_write_b128 v{t1}, {v(cs[o],4)} offset:{CSOFF + 64*o}")
    a.wait(vm=tokst)
    check_flags(a, [st[0] + 1, st[1] + 1], vsa, ld_stats)
    a("s_waitcnt lgkmcnt(0)")
    a("s_barrier")
    for P in range(3):
        a(f"s_lshl_b32 s{sT}, s{sP[P]}, 7")
        a(f"v_add_u32 v{t1}, s{sT}, v{vcs}")
        for o in range(2):
            a(f"ds_read_b128 {v(csv[2*P+o],4)}, v{t1} offset:{CSOFF + 64*o}")
    for ct in range(2):
        a(f"v_and_b32 v{t1}, 0xffff0000, v{st[ct]}")
        a(f"v_rcp_f32 v{rr[ct]}, v{t1}")
        a(f"v_lshlrev_b32 v{t2}, 16, v{st[ct]}")
        a(f"v_mul_f32 v{rr[ct]+1}, v{t2}, v{rr[ct]}")
        a(f"v_sub_f32 v{rr[ct]+1}, 0, v{rr[ct]+1}")
    for rt in range(6):
        a(f"v_lshlrev_b32 v{b1v[rt]}, 16, v{b1p[rt]}")
        a(f"v_and_b32 v{b1v[rt]+1}, 0xffff0000, v{b1p[rt]}")
        a(f"v_lshlrev_b32 v{b1v[rt]+2}, 16, v{b1p[rt]+1}")
        a(f"v_and_b32 v{b1v[rt]+3}, 0xffff0000, v{b1p[rt]+1}")
    a(f"s_lshl_b32 s{sT}, s{sRB}, 3")
    a(f"s_lshl_b32 s{sT2}, s{sWave}, 1")
    a(f"s_add_u32 s{sT}, s{sT}, s{sT2}")
    a(f"s_mul_i32 s{sT}, s{sT}, 48")
    a(f"s_mul_i32 s{sT2}, s{sCB}, 3")
    a(f"s_add_u32 s{sT}, s{sT}, s{sT2}")
    for P in range(3):
        a(f"s_add_u32 s{sP[P]}, s{sP[P]}, s{sT}")
        a(f"s_lshl_b32 s{sP[P]}, s{sP[P]}, 10")
        a(f"s_add_u32 s{sP[P]}, s{sP[P]}, {WS_ACT}")
    a(f"s_mov_b32 s50, {f32(LOG2E)}"); a(f"s_mov_b32 s51, {f32(LOG2E)}")
    Q = Alloc(base2, limit=256)
    acc2 = [[Q(4, 4) for ct in range(4)] for rt in range(5)]
    NST = 3
    FB = [[Q(4, 4) for _ in range(4)] for _ in range(NST)]
    vB = [Q() for _ in range(4)]
    vxo = Q(); vxo2 = Q()
    vw = [Q() for _ in range(5)]; vw8 = Q(); vw4 = Q()
    a(f"s_mul_i32 s{sM0w}, s{sWave}, 20480")
    for i in range(5):
        a(f"v_add_u32 v{t0}, {64*i}, v{lane}")
        a(f"v_mul_u32_u24 v{t1}, 0xcccd, v{t0}")
        a(f"v_lshrrev_b32 v{t1}, 19, v{t1}")
        a(f"v_mul_u32_u24 v{t2}, 10, v{t1}")
        a(f"v_sub_u32 v{t2}, v{t0}, v{t2}")
        a(f"v_mul_u32_u24 v{t1}, 1280, v{t1}")
        a(f"v_lshl_add_u32 v{vw[i]}, v{t2}, 4, v{t1}")
        if 0 < i < 4: a(f"v_subrev_u32 v{vw[i]}, {1024*i}, v{vw[i]}")
    tokD = {}
    def ops_dma(k):
        out = []
        for i in range(5):
            def f(i=i):
                if i == 0:
                    a(f"s_add_u32 m0, s{sM0w}, {5120*(k%4)}")
                    a(f"s_add_u32 s{sXoff}, s{sOA}, {32*1280*k}")
                if i == 4: a(f"s_add_u32 m0, s{sM0w}, {5120*(k%4) + 4096}")
                a(f"buffer_load_dwordx4 v{vw[i]}, s[{sW2}:{sW2+3}], s{sXoff} offen offset:{1024*i if i < 4 else 0} lds")
                tokD[k] = a.vtok()
            out.append(f)
        return out
    tokL = {}
    def op_rw(k, rt):
        o = WR[5 * (k % 5) + rt]
        for e in range(2):
            if rt < 4: a(f"ds_read_b64_tr_b16 {v(o+2*e,2)}, v{vw8} offset:{5120*(k%4) + 64*(rt>>1) + 8*(rt&1) + 2560*e}")
            else: a(f"ds_read_b64_tr_b16 {v(o+2*e,2)}, v{vw4} offset:{5120*(k%4) + 128 + 2560*e}")
        tokL[(k, rt)] = a.ltok()
    a("s_waitcnt lgkmcnt(0)")
    a("s_barrier")
    stamp(a, 6)
    k = 0
    for P in range(3):
        for ct in range(2):
            op = outp[k % 2]; k += 1
            if k <= 4:
                for f in ops_dma(k - 1): f()
            hs = []
            for o in range(2):
                rt = 2 * P + o
                for hf in range(2):
                    h = acc[rt][ct] + 2 * hf
                    tt = tmp[len(hs)]
                    a(f"v_pk_fma_f32 {v(tt,2)}, {v(csv[rt]+2*hf,2)}, {v(rr[ct],2)}, {v(b1v[rt]+2*hf,2)} op_sel:[0,1,0] op_sel_hi:[1,1,1]")
                    a(f"v_pk_fma_f32 {v(h,2)}, {v(h,2)}, {v(rr[ct],2)}, {v(tt,2)} op_sel:[0,0,0] op_sel_hi:[1,0,1]")
                    hs.append(h)
            for i, h in enumerate(hs): a(f"v_pk_mul_f32 {v(tmp[i],2)}, {v(h,2)}, s[50:51]")
            for i, h in enumerate(hs):
                a(f"v_min_f32 v{tmp[i]}, {f32(30.0)}, v{tmp[i]}")
                a(f"v_min_f32 v{tmp[i]+1}, {f32(30.0)}, v{tmp[i]+1}")
            for i, h in enumerate(hs):
                a(f"v_exp_f32 v{tmp[i]}, v{tmp[i]}")
                a(f"v_exp_f32 v{tmp[i]+1}, v{tmp[i]+1}")
            for i, h in enumerate(hs): a(f"v_pk_add_f32 {v(tmp[4+i],2)}, {v(tmp[i],2)}, 2.0 op_sel_hi:[1,0]")
            for i, h in enumerate(hs): a(f"v_pk_mul_f32 {v(tmp[i],2)}, {v(tmp[i],2)}, {v(tmp[4+i],2)}")
            for i, h in enumerate(hs): a(f"v_pk_add_f32 {v(tmp[4+i],2)}, {v(tmp[i],2)}, 2.0 op_sel_hi:[1,0]")
            for i, h in enumerate(hs):
                a(f"v_rcp_f32 v{tmp[4+i]}, v{tmp[4+i]}")
                a(f"v_rcp_f32 v{tmp[4+i]+1}, v{tmp[4+i]+1}")
            for i, h in enumerate(hs): a(f"v_pk_mul_f32 {v(h,2)}, {v(h,2)}, {v(tmp[i],2)}")
            for i, h in enumerate(hs): a(f"v_pk_mul_f32 {v(h,2)}, {v(h,2)}, {v(tmp[4+i],2)}")
            for i, h in enumerate(hs): a(f"v_cvt_pk_bf16_f32 v{op+i}, v{h}, v{h+1}")
            if ct == 0:
                a(f"buffer_store_dwordx4 {v(op,4)}, v{v16}, s[{sWS}:{sWS+3}], s{sP[P]} offen sc1")
            else:
                a(f"s_add_u32 s{sT}, s{sP[P]}, {48*1024}")
                a(f"buffer_store_dwordx4 {v(op,4)}, v{v16}, s[{sWS}:{sWS+3}], s{sT} offen sc1")
    stamp(a, 7)
    a(f"s_lshl_b32 s{sT}, s{sRB}, 4")
    a(f"s_add_u32 s{sT}, s{sT}, s{sCB}")
    a(f"s_lshl_b32 s{sT}, s{sT}, 2")
    a(f"s_add_u32 s{sT}, s{sT}, s{sWave}")
    a(f"s_lshl_b32 s{sT}, s{sT}, 7")
    a(f"s_add_u32 s{sT}, s{sT}, {WS_FACT}")
    a(f"v_mov_b32 v{vtok}, s{sTok}")

    for ct in range(4):
        a(f"s_add_u32 s{sT2}, s{sWave}, {ct}")
        a(f"s_and_b32 s{sT2}, s{sT2}, 3")
        a(f"s_mul_i32 s{sT2}, s{sT2}, {48*1024}")
        a(f"v_add_u32 v{vB[ct]}, s{sT2}, v{v16}")
    a(f"v_lshrrev_b32 v{t1}, 2, v{lane}")
    a(f"v_mul_u32_u24 v{t1}, 160, v{t1}")
    a(f"v_add_u32 v{t1}, s{sM0w}, v{t1}")
    a(f"v_and_b32 v{t2}, 3, v{lane}")
    a(f"v_lshl_add_u32 v{vw8}, v{t2}, 4, v{t1}")
    a(f"v_lshl_add_u32 v{vw4}, v{t2}, 3, v{t1}")
    a.wait(vm=tokD[3])
    for k in range(4):
        for rt in range(5): op_rw(k, rt)
    a("s_waitcnt vmcnt(0)")
    a("s_mov_b64 exec, 1")
    a(f"buffer_store_dword v{vtok}, v{vzero}, s[{sWS}:{sWS+3}], s{sT} offen sc1")
    a("s_mov_b64 exec, -1")
    if ENV("GPRIO2", 2): a(f"s_setprio {ENV('GPRIO3', 0)}")
    stamp(a, 8)
    a("s_waitcnt lgkmcnt(0)")
    for k in range(4, 8):
        for f in ops_dma(k): f()
    a.wait(vm=tokD[4])
    for rt in range(5): op_rw(4, rt)
    a(f"v_and_b32 v{t0}, 3, v{lane}")
    a(f"v_bfe_u32 v{t1}, v{lane}, 2, 1")
    a(f"v_lshl_add_u32 v{vfa}, v{t0}, 2, v{t1}")
    a(f"v_lshlrev_b32 v{vfa}, 7, v{vfa}")
    a(f"s_lshr_b32 s{sFB}, s{sTB}, 1")
    a(f"s_lshl_b32 s{sFB}, s{sFB}, 2")
    a(f"s_add_u32 s{sFB}, s{sFB}, s{sWave}")
    a(f"s_lshl_b32 s{sFB}, s{sFB}, 3")
    a(f"s_and_b32 s{sT2}, s{sTB}, 1")
    a(f"s_add_u32 s{sFB}, s{sFB}, s{sT2}")
    a(f"s_lshl_b32 s{sFB}, s{sFB}, 8")
    a(f"s_add_u32 s{sFB}, s{sFB}, {WS_FACT}")
    a("s_waitcnt lgkmcnt(0)")
    for f in ops_dma(8): f()
    ld_first(8)
    a(f"v_mul_u32_u24 v{t0}, {48*1024}, v{t0}")
    a(f"v_lshrrev_b32 v{t1}, 2, v{lane}")
    a(f"v_lshl_add_u32 v{t0}, v{t1}, 10, v{t0}")
    a(f"s_lshl_b32 s{sT2}, s{sJD}, 7")
    a(f"s_add_u32 s{sT2}, s{sT2}, s{sOB}")
    stamp(a, 14)
    a("s_waitcnt vmcnt(0)")
    check_flags(a, [vfl], vfa, ld_w2flags, sleep=ENV("ASLEEP", 3))
    stamp(a, 9)
    if ENV("GPRIO2", 2): a(f"s_setprio {ENV('GPRIO4', 0)}")
    if ENV("PFA", 1):
        a("s_mov_b32 exec_hi, 0xffff")
        a(f"buffer_load_dword v{t3}, v{t0}, s[{sWS}:{sWS+3}], s{sT2} offen sc1")
        a("s_mov_b32 exec_hi, -1")
    tokB = {}
    def issue_b(k):
        for ct in range(4):
            a(f"buffer_load_dwordx4 {v(FB[k%NST][ct],4)}, v{vB[ct]}, s[{sWS}:{sWS+3}], s{sOB} offen sc1")
        tokB[k] = a.vtok()
        if k < 11: a(f"s_add_u32 s{sOB}, s{sOB}, 1024")
    for k in range(NST): issue_b(k)
    a(f"s_lshl_b32 s{sT}, s{sTB}, 6")
    a(f"s_lshl_b32 s{sT2}, s{sWave}, 4")
    a(f"s_add_u32 s{sT}, s{sT}, s{sT2}")
    a(f"v_and_b32 v{t0}, 15, v{lane}")
    a(f"v_add_u32 v{t0}, s{sT}, v{t0}")
    a(f"v_mul_u32_u24 v{t1}, 1280, v{t0}")
    a(f"s_mul_i32 s{sT2}, s{sJD}, 160")
    a(f"v_add_u32 v{t1}, s{sT2}, v{t1}")
    a(f"v_lshrrev_b32 v{t2}, 4, v{lane}")
    a(f"v_lshl_add_u32 v{vxo}, v{t2}, 4, v{t1}")
    a(f"v_lshl_add_u32 v{vxo2}, v{t2}, 3, v{t1}")
    a(f"v_min_u32 v{vfa}, 19, v{lane}")
    a(f"v_lshlrev_b32 v{vfa}, 7, v{vfa}")
    a(f"s_mul_i32 s{sT3}, s{sJD}, 80")
    a(f"s_mul_i32 s{sT}, s{sWave}, 20")
    a(f"s_add_u32 s{sWoff}, s{sT3}, s{sT}")
    a(f"s_lshl_b32 s{sT3}, s{sWoff}, 7")
    a(f"s_lshr_b32 s{sT}, s{sTB}, 3")
    a(f"s_lshl_b32 s{sT}, s{sT}, 2")
    a(f"s_add_u32 s{sT3}, s{sT3}, s{sT}")
    a(f"s_add_u32 s{sFB}, s{sT3}, {WS_FST}")
    slot = {f: f % 25 for f in range(60)}
    for k in range(12):
        dma = ops_dma(k + 8) if 1 <= k <= 3 else []
        for rt in range(5):
            if rt == 0: a.wait(vm=tokB[k])
            if k >= 5: a.wait(lg=tokL[(k, rt)])
            if rt == 1 and dma: a.wait(lg=tokL[(k + 4, 4)])
            for ct in range(4):
                c = "0" if k == 0 else v(acc2[rt][ct], 4)
                a(f"v_mfma_f32_16x16x32_bf16 {v(acc2[rt][ct],4)}, {v(WR[slot[5*k+rt]],4)}, {v(FB[k%NST][ct],4)}, {c}")
                if ct == 0 and rt >= 1 and k + 5 < 12:
                    if rt == 1 and k + 5 >= 9: a.wait(vm=tokD[k + 5])
                    op_rw(k + 5, rt - 1)
                if ct == 2 and rt >= 1 and dma: dma.pop(0)()
        if k + 5 < 12: op_rw(k + 5, 4)
        while dma: dma.pop(0)()
        if k in (0, 5): stamp(a, {0: 10, 5: 11}[k])
        if k + NST < 12: issue_b(k + NST)
        if k == 8:
            ld_first(20); tokfl = a.vtok()
            xr = WR[slot[35]]
            xq = [WR[slot[35]], WR[slot[36]], WR[slot[37]]]
            a(f"buffer_load_dwordx4 {v(xq[0],4)}, v{vxo}, s[{sX}:{sX+3}], 0 offen")
            a(f"buffer_load_dwordx4 {v(xq[1],4)}, v{vxo}, s[{sX}:{sX+3}], 0 offen offset:64")
            a(f"buffer_load_dwordx2 {v(xq[2],2)}, v{vxo2}, s[{sX}:{sX+3}], 0 offen offset:128")
            a("s_waitcnt lgkmcnt(0)")
            a("s_barrier")
        if k == 10:
            a.wait(vm=tokfl)
            check_flags(a, [vfl], vfa, ld_w2flags)
            sq = [WR[slot[40]], WR[slot[41]], WR[slot[42]]]
            vso = WR[slot[43]]; vsw = vso + 1
            a(f"v_lshrrev_b32 v{t0}, 3, v{lane}")
            a(f"v_and_b32 v{t1}, 7, v{lane}")
            a(f"v_lshlrev_b32 v{t1}, 4, v{t1}")
            a(f"v_lshl_add_u32 v{vso}, v{t0}, 12, v{t1}")
            a(f"v_mul_u32_u24 v{vsw}, 160, v{t0}")
            a(f"v_add_u32 v{vsw}, v{vsw}, v{t1}")
            a(f"s_mul_i32 s{sT}, s{sWave}, {20*160}")
            a(f"v_add_u32 v{vsw}, s{sT}, v{vsw}")
            a(f"s_lshl_b32 s{sT}, s{sWoff}, 12")
            a(f"s_lshl_b32 s{sT2}, s{sTB}, 7")
            a(f"s_add_u32 s{sT}, s{sT}, s{sT2}")
            a(f"s_add_u32 s{sT}, s{sT}, {WS_ST}")
            for i in range(3):
                if i == 2: a("s_mov_b32 exec_hi, 0")
                a(f"buffer_load_dwordx4 {v(sq[i],4)}, v{vso}, s[{sWS}:{sWS+3}], s{sT} offen sc1")
                if i < 2: a(f"s_add_u32 s{sT}, s{sT}, {8*4096}")
            a("s_mov_b32 exec_hi, -1")
            toks_ = a.vtok()
    stamp(a, 12)
    STOFF = 61440
    for ct in range(1, 4):
        a(f"s_add_u32 s{sT2}, s{sWave}, {ct}")
        a(f"s_and_b32 s{sT2}, s{sT2}, 3")
        a(f"s_mul_i32 s{sT2}, s{sT2}, 15360")
        a(f"v_add_u32 v{t3}, s{sT2}, v{v16}")
        for rt in range(5):
            a(f"ds_write_b128 v{t3}, {v(acc2[rt][ct],4)} offset:{(ct-1)*5120 + rt*1024}")
    a("s_waitcnt vmcnt(0)")
    for i in range(3):
        if i == 2: a("s_mov_b32 exec_hi, 0")
        a(f"ds_write_b128 v{vsw}, {v(sq[i],4)} offset:{STOFF + 8*160*i}")
    a("s_mov_b32 exec_hi, -1")
    Pr = [[acc2[rt][p + 1] for rt in range(5)] for p in range(3)]
    T = [FB[i // 8][(i // 2) % 4] + 2 * (i % 2) for i in range(10)]
    sv = [FB[2][i // 2] + 2 * (i % 2) for i in range(5)]
    op = [FB[1][1], FB[1][2], FB[1][3]]
    vt8 = vB[0]; vt4 = vB[1]
    a(f"v_bfe_u32 v{t0}, v{lane}, 2, 2")
    a(f"v_lshl_add_u32 v{t1}, v{t2}, 3, v{t0}")
    a(f"v_lshl_add_u32 v{t0}, v{t2}, 2, v{t0}")
    a(f"v_mul_u32_u24 v{t1}, 160, v{t1}")
    a(f"v_mul_u32_u24 v{t0}, 160, v{t0}")
    a(f"v_and_b32 v{t3}, 3, v{lane}")
    a(f"s_lshl_b32 s{sT}, s{sWave}, 5")
    a(f"s_add_u32 s{sT}, s{sT}, {STOFF}")
    a(f"v_lshl_add_u32 v{t3}, v{t3}, 3, s{sT}")
    a(f"v_add_u32 v{vt8}, v{t1}, v{t3}")
    a(f"v_add_u32 v{vt4}, v{t0}, v{t3}")
    a(f"s_mul_i32 s{sT2}, s{sWave}, 15360")
    a(f"v_add_u32 v{t3}, s{sT2}, v{v16}")
    a(f"s_mov_b32 s50, {f32(-LOG2E)}"); a(f"s_mov_b32 s51, {f32(-LOG2E)}")
    a("s_waitcnt lgkmcnt(0)")
    a("s_barrier")
    stamp(a, 13)
    tk = {}
    for rt in range(5):
        for p in range(3):
            a(f"ds_read_b128 {v(Pr[p][rt],4)}, v{t3} offset:{p*5120 + rt*1024}")
        tk[rt] = a.ltok()
    for rt in range(5):
        if rt < 4: a(f"ds_read_b64_tr_b16 {v(sv[rt],2)}, v{vt8} offset:{160*(32*(rt>>1) + 4*(rt&1))}")
        else: a(f"ds_read_b64_tr_b16 {v(sv[rt],2)}, v{vt4} offset:{160*64}")
    o2 = []
    for rt in range(5):
        a.wait(lg=tk[rt])
        for hf in range(2):
            d = acc2[rt][0] + 2 * hf
            for p in range(3):
                a(f"v_pk_add_f32 {v(d,2)}, {v(d,2)}, {v(Pr[p][rt]+2*hf,2)}")
            o2.append(d)
    for i, d in enumerate(o2):
        a(f"v_cvt_pk_bf16_f32 v{T[i]}, v{d}, v{d+1}")
        a(f"v_lshlrev_b32 v{d}, 16, v{T[i]}")
        a(f"v_and_b32 v{d+1}, 0xffff0000, v{T[i]}")
        a(f"v_pk_mul_f32 {v(T[i],2)}, {v(d,2)}, s[50:51]")
    for i, d in enumerate(o2):
        a(f"v_exp_f32 v{T[i]}, v{T[i]}")
        a(f"v_exp_f32 v{T[i]+1}, v{T[i]+1}")
    for i, d in enumerate(o2): a(f"v_pk_add_f32 {v(T[i],2)}, {v(T[i],2)}, 1.0 op_sel_hi:[1,0]")
    for i, d in enumerate(o2):
        a(f"v_rcp_f32 v{T[i]}, v{T[i]}")
        a(f"v_rcp_f32 v{T[i]+1}, v{T[i]+1}")
    a("s_waitcnt lgkmcnt(0)")
    for i, d in enumerate(o2):
        s_ = sv[i // 2] + i % 2
        x_ = xq[i // 4] + i % 4
        U_ = Pr[0][i // 2] + 2 * (i % 2)
        a(f"v_pk_mul_f32 {v(d,2)}, {v(d,2)}, {v(T[i],2)}")
        a(f"v_cvt_pk_bf16_f32 v{T[i]}, v{d}, v{d+1}")
        a(f"v_lshlrev_b32 v{d}, 16, v{T[i]}")
        a(f"v_and_b32 v{d+1}, 0xffff0000, v{T[i]}")
        a(f"v_lshlrev_b32 v{U_}, 16, v{s_}")
        a(f"v_and_b32 v{U_+1}, 0xffff0000, v{s_}")
        a(f"v_pk_mul_f32 {v(d,2)}, {v(d,2)}, {v(U_,2)}")
        a(f"v_cvt_pk_bf16_f32 v{T[i]}, v{d}, v{d+1}")
        a(f"v_lshlrev_b32 v{d}, 16, v{T[i]}")
        a(f"v_and_b32 v{d+1}, 0xffff0000, v{T[i]}")
        a(f"v_lshlrev_b32 v{U_}, 16, v{x_}")
        a(f"v_and_b32 v{U_+1}, 0xffff0000, v{x_}")
        a(f"v_pk_add_f32 {v(d,2)}, {v(d,2)}, {v(U_,2)}")
        a(f"v_cvt_pk_bf16_f32 v{op[i//4] + i%4}, v{d}, v{d+1}")
        if i == 3: a(f"buffer_store_dwordx4 {v(op[0],4)}, v{vxo}, s[{sOUT}:{sOUT+3}], 0 offen")
        if i == 7: a(f"buffer_store_dwordx4 {v(op[1],4)}, v{vxo}, s[{sOUT}:{sOUT+3}], 0 offen offset:64")
    a(f"buffer_store_dwordx2 {v(op[2],2)}, v{vxo2}, s[{sOUT}:{sOUT+3}], 0 offen offset:128")
    stamp_end(a, sWave)
    return max(R.hi, E.hi, Q.hi)

def main(out):
    ref = open(f"cdna_kernels/{NAME}.s.ref").read().split("\n")
    hdr = [l for l in ref if l.startswith(";") and "@launch" not in l]
    hdr.append(f"; @launch grid=(512,1,1) block=(256,1,1) lds={LDS_BYTES}")
    a = Asm()
    a.raw(f'.amdgcn_target "amdgcn-amd-amdhsa--gfx950"\n.text\n.globl {KN}\n.p2align 8\n.type {KN},@function')
    a.label(KN)
    a("s_cmp_lt_u32 s2, 256")
    a("s_cbranch_scc1 " + ("K_exit" if ENV("NOS", 0) else "S_role"))
    a(f"s_cmp_ge_u32 s2, {256 if ENV('NOG', 0) else 512}")
    a("s_cbranch_scc1 K_exit")
    hg = g_role(a)
    a.label("S_role"); a.flush_hist()
    hs = s_role(a)
    a.label("K_exit")
    a("s_endpgm")
    a.raw(".p2align 15")
    print("vgprs", hg, hs, "nops", a.nnop, "lines", len(a.items), file=sys.stderr)
    kd = f""".section .rodata,"a"
.p2align 6
.amdhsa_kernel {KN}
  .amdhsa_next_free_vgpr 256
  .amdhsa_next_free_sgpr {102 if STAMPS else 64}
  .amdhsa_accum_offset 256
  .amdhsa_group_segment_fixed_size 0
  .amdhsa_kernarg_size 128
  .amdhsa_user_sgpr_count 2
  .amdhsa_user_sgpr_kernarg_segment_ptr 1
  .amdhsa_system_sgpr_workgroup_id_x 1
  .amdhsa_float_denorm_mode_32 3
  .amdhsa_float_denorm_mode_16_64 3
.end_amdhsa_kernel
"""
    open(out, "w").write("\n".join(hdr) + "\n" + a.text() + kd)

if __name__ == "__main__":
    main(sys.argv[1] if len(sys.argv) > 1 else f"cdna_kernels/{NAME}.s")
```

```python
import sys, os, struct, math
sys.path.insert(0, os.path.dirname(os.path.abspath(__file__)))
from asmlib import *

NAME = "recurrent_scan__ssm_conv_s4__dense_activation_mish__prompt"
KN = NAME + "_kernel"
L, D, N, F = 2048, 640, 192, 1536
ENV = lambda k, d: int(os.environ.get(k, str(d)))
STAMPS = ENV("STAMPS", 0)

WS_XT2 = 0x0000000
WS_ST  = 0x0400000
WS_W2A = 0x0800000
WS_ACT = 0x0C00000
WS_STAT = 0x1400000
WS_FLN = 0x1500000
WS_FPACE = 0x1510000
WS_FACT = 0x1520000
WS_FST = 0x1560000
WS_SIZE = 0x1600000
WS_STAMP = 0x4000000
LDS_BYTES = 81920
SPIN_MAX = 0x4000

def f32(x): return "0x%08x" % struct.unpack("<I", struct.pack("<f", x))[0]
LOG2E = 1.4426950408889634
LN2 = 0.6931471805599453

def srd(a, sreg, size):
    a(f"s_mov_b32 s{sreg+2}, {size}")
    a(f"s_mov_b32 s{sreg+3}, 0x20000")

def bf16r(a, dst, src):
    a(f"v_cvt_pk_bf16_f32 v{dst}, v{src}, v{src}")
    a(f"v_and_b32 v{dst}, 0xffff0000, v{dst}")

_sn = [0]
def stamp_begin(a):
    _sn[0] = 0
    if STAMPS:
        a("s_memrealtime s[60:61]")
        for i in range(64, 96, 2): a(f"s_mov_b64 s[{i}:{i+1}], 0")
        a("s_memtime s[64:65]")
        _sn[0] = 1
def stamp(a, n=None):
    if STAMPS:
        if n is None:
            n = _sn[0]; _sn[0] += 1
        assert n < 16
        a(f"s_memtime s[{64+2*n}:{65+2*n}]")
def stamp_end(a, sWave):
    if STAMPS:
        stamp(a, 15)
        a("s_memrealtime s[62:63]")
        a("s_load_dwordx2 s[96:97], s[0:1], 120")
        a("s_waitcnt lgkmcnt(0)")
        a(f"s_add_u32 s96, s96, {WS_STAMP}")
        a("s_addc_u32 s97, s97, 0")
        a("s_mov_b32 s98, 0x100000")
        a("s_mov_b32 s99, 0x20000")
        a("s_lshl_b32 s59, s2, 10")
        a(f"s_lshl_b32 s58, s{sWave}, 8")
        a("s_add_u32 s59, s59, s58")
        a("s_mov_b64 exec, 1")
        a("v_mov_b32 v1, s59")
        a("v_mov_b32 v2, s60"); a("v_mov_b32 v3, s62")
        a("buffer_store_dwordx2 v[2:3], v1, s[96:99], 0 offen")
        for n in range(16):
            a(f"s_sub_u32 s59, s{64+2*n}, s64")
            a(f"s_cmp_eq_u32 s{64+2*n}, 0")
            a(f"s_cselect_b32 s59, 0, s59")
            a(f"v_mov_b32 v{4 + n}, s59")
            a(f"buffer_store_dword v{4 + n}, v1, s[96:99], 0 offen offset:{16+4*n}")
    a("s_endpgm")

_lab = [0]
def newlab(p):
    _lab[0] += 1
    return f"{p}_{_lab[0]}"

sWS, sDBG = 4, 8
sWave, sTok, sSpin = 12, 13, 14
sT, sT2, sT3 = 15, 16, 17

def check_token(a, vtok, vzero):
    done = newlab("TK"); loop = newlab("TL")
    if ENV("NOS", 0) or os.environ.get("ONLY", ""):
        a(f"s_mov_b32 s{sTok}, 0x12345"); return
    a(f"v_readfirstlane_b32 s{sTok}, v{vtok}")
    a(f"s_cmp_lg_u32 s{sTok}, 0")
    a(f"s_cbranch_scc1 {done}")
    a(f"s_mov_b32 s{sSpin}, 0")
    a.label(loop)
    a("s_sleep 2")
    a(f"buffer_load_dword v{vtok}, v{vzero}, s[{sDBG}:{sDBG+3}], 0 offen sc1"); a.vm -= 1
    a("s_waitcnt vmcnt(0)")
    a(f"v_readfirstlane_b32 s{sTok}, v{vtok}")
    a(f"s_cmp_lg_u32 s{sTok}, 0")
    a(f"s_cbranch_scc1 {done}")
    a(f"s_add_u32 s{sSpin}, s{sSpin}, 1")
    a(f"s_cmp_lt_u32 s{sSpin}, {SPIN_MAX}")
    a(f"s_cbranch_scc1 {loop}")
    a.label(done)

def check_flags(a, vfl, vaddr, reload, sleep=2):
    if (ENV("NOS", 0) or os.environ.get("ONLY", "")) and sleep != 3: return
    done = newlab("FD"); loop = newlab("FL")
    def cmpall():
        a(f"v_cmp_ne_u32 vcc, s{sTok}, v{vfl[0]}")
        for r_ in vfl[1:]:
            a(f"v_cmp_ne_u32 s[18:19], s{sTok}, v{r_}")
            a("s_or_b64 vcc, vcc, s[18:19]")
        a("s_cmp_eq_u64 vcc, 0")
    cmpall()
    a(f"s_cbranch_scc1 {done}")
    a(f"s_mov_b32 s{sSpin}, 0")
    a.label(loop)
    a(f"s_sleep {sleep}")
    n0 = a.vm
    a("s_mov_b64 exec, vcc")
    reload()
    a("s_mov_b64 exec, -1")
    a.vm = n0
    a("s_waitcnt vmcnt(0)")
    cmpall()
    a(f"s_cbranch_scc1 {done}")
    a(f"s_add_u32 s{sSpin}, s{sSpin}, 1")
    a(f"s_cmp_lt_u32 s{sSpin}, {SPIN_MAX}")
    a(f"s_cbranch_scc1 {loop}")
    a.label(done)

CV_S = 4160
CH_REG = 64 * 272
CV_U = [3 * CH_REG + 512 + 4608 * i for i in range(3)]
LN_OFF = 3 * CH_REG + 3 * 4608
LN_S = 1344
PACE_OFF = LDS_BYTES - 16
KG_S = 272
COARSE = list(range(8)) + [256, 258, 260, 262, 512, 516, 768, 772, 1024, 1280, 1536, 1792, 2048]
assert LN_OFF + 8 * LN_S <= LDS_BYTES and 4 * CV_S <= CH_REG

def s_role(a):
    sX_, sA, sXc = 20, 24, 25
    sD = [26, 27, 28]
    sCnt, sPar, sSlot, sRound, sHeavy = 29, 30, 31, 56, 57
    SP = [32, 36, 40, 44, 48, 52]
    R = Alloc(1)
    lane = R(); t0 = R(); t1 = R(); t2 = R(); t3 = R(); vzero = R(); vtok = R(); v16 = R()
    vdk = [R(), R()]
    base = R.mark()
    stamp_begin(a)
    a(f"s_load_dwordx2 s[{sWS}:{sWS+1}], s[0:1], 120")
    a(f"s_load_dwordx2 s[{sDBG}:{sDBG+1}], s[0:1], 112")
    a(f"v_lshrrev_b32 v{t0}, 6, v0")
    a(f"v_and_b32 v{lane}, 63, v0")
    a(f"v_readfirstlane_b32 s{sWave}, v{t0}")
    srd(a, sWS, WS_SIZE); srd(a, sDBG, 256)
    a(f"s_and_b32 s{sXc}, s2, 7")
    a(f"s_lshr_b32 s{sA}, s2, 3")
    a(f"s_lshl_b32 s{sD[0]}, s{sXc}, 6")
    a(f"s_lshl_b32 s{sT}, s{sA}, 1")
    a(f"s_add_u32 s{sD[0]}, s{sD[0]}, s{sT}")
    a(f"s_add_u32 s{sD[1]}, s{sD[0]}, 1")
    a(f"s_lshl_b32 s{sD[2]}, s{sXc}, 4")
    a(f"s_add_u32 s{sD[2]}, s{sD[2]}, s{sA}")
    a(f"s_add_u32 s{sD[2]}, s{sD[2]}, 512")
    a(f"s_cmp_lt_u32 s{sA}, 16")
    a(f"s_cselect_b32 s{sHeavy}, 1, 0")
    a(f"v_mov_b32 v{vzero}, 0")
    a(f"v_lshlrev_b32 v{v16}, 4, v{lane}")
    ONLY = os.environ.get("ONLY", "")
    if ENV("SPRIO0", 0): a(f"s_setprio {ENV('SPRIO0', 0)}")
    a(f"s_load_dwordx2 s[{sX_}:{sX_+1}], s[0:1], 64")
    srd(a, sX_, D * 2)
    a(f"s_lshr_b32 s{sSlot}, s{sWave}, 1")
    a(f"s_add_u32 s{sT}, s{sD[0]}, s{sSlot}")
    a(f"s_lshl_b32 s{sT}, s{sT}, 1")
    a(f"s_lshl_b32 s{sT2}, s{sD[2]}, 1")
    a("s_waitcnt lgkmcnt(0)")
    a(f"buffer_load_ushort v{vdk[0]}, v{vzero}, s[{sX_}:{sX_+3}], s{sT} offen")
    a(f"buffer_load_ushort v{vdk[1]}, v{vzero}, s[{sX_}:{sX_+3}], s{sT2} offen")
    a(f"s_cmp_eq_u32 s{sWave}, 3")
    a("s_cbranch_scc1 " + ("S_ln" if (not ONLY or "l" in ONLY) else "K_exit"))
    a(f"s_add_u32 s{sT}, s{sHeavy}, 2")
    a(f"s_cmp_ge_u32 s{sWave}, s{sT}")
    a("s_cbranch_scc1 " + ("S_w2t" if (not ONLY or "w" in ONLY) else "K_exit"))
    if ONLY and "k" not in ONLY: a("s_branch K_exit")

    P = [[R() for _ in range(6)] for _ in range(3)]
    vdt = R(); vwr = R(); vrd = R(); voff = R()
    accK = R(16, 4)
    FA = [R(4, 4) for _ in range(8)]; FB = [R(4, 4) for _ in range(8)]
    pr = lambda: R(2, 2)
    l1, l8, l256, W, E0, E1, E2, T, T2, G2, G4, G6, V, a2b = [pr() for _ in range(14)]
    Qr = [R(4, 4) for _ in range(2)]; Qi = [R(4, 4) for _ in range(2)]
    Cr = R(16, 4); Ci = R(16, 4)
    sDd, sBase = 58, 59
    if STAMPS: sDd, sBase = 100, 101
    for i, sr in enumerate(SP):
        a(f"s_load_dwordx2 s[{sr}:{sr+1}], s[0:1], {8 + 8*i}")
    a(f"s_load_dwordx2 s[{sX_}:{sX_+1}], s[0:1], 56")
    a(f"s_cmp_eq_u32 s{sWave}, 1")
    a(f"s_cselect_b32 s{sDd}, s{sD[1]}, s{sD[0]}")
    a(f"s_cmp_eq_u32 s{sWave}, 2")
    a(f"s_cselect_b32 s{sDd}, s{sD[2]}, s{sDd}")
    for sr in SP: srd(a, sr, D * N * 2)
    srd(a, sX_, D * 2)
    a(f"s_mul_i32 s{sT}, s{sDd}, {N*2}")
    a(f"v_lshlrev_b32 v{voff}, 1, v{lane}")
    a(f"s_lshl_b32 s{sT2}, s{sDd}, 1")
    a("s_waitcnt lgkmcnt(0)")
    a(f"buffer_load_ushort v{vdt}, v{vzero}, s[{sX_}:{sX_+3}], s{sT2} offen")
    for p in range(3):
        for i, sr in enumerate(SP):
            a(f"buffer_load_ushort v{P[p][i]}, v{voff}, s[{sr}:{sr+3}], s{sT} offen offset:{128*p}")
    a(f"s_mul_i32 s{sBase}, s{sWave}, {CH_REG}")
    a(f"v_mul_u32_u24 v{vwr}, {KG_S}, v{lane}")
    a(f"v_add_u32 v{vwr}, s{sBase}, v{vwr}")
    a(f"v_bfe_u32 v{t0}, v{lane}, 2, 2")
    a(f"v_lshrrev_b32 v{t1}, 5, v{lane}")
    a(f"v_lshl_add_u32 v{t0}, v{t0}, 2, v{t1}")
    a(f"v_mul_u32_u24 v{t0}, {KG_S}, v{t0}")
    a(f"v_bfe_u32 v{t1}, v{lane}, 4, 1")
    a(f"v_lshl_add_u32 v{t0}, v{t1}, 5, v{t0}")
    a(f"v_and_b32 v{t1}, 3, v{lane}")
    a(f"v_lshl_add_u32 v{t0}, v{t1}, 3, v{t0}")
    a(f"v_add_u32 v{vrd}, s{sBase}, v{t0}")
    for i in (13, 15): a(f"v_mov_b32 v{Cr+i}, 0"); a(f"v_mov_b32 v{Ci+i}, 0")
    a("s_waitcnt vmcnt(0)")
    stamp(a, 1)
    a(f"v_lshlrev_b32 v{vdt}, 16, v{vdt}")
    a(f"v_mul_f32 v{t0}, {f32(LOG2E)}, v{vdt}")
    a(f"s_mov_b32 s{sT}, {f32(LOG2E)}")
    a(f"v_fma_f32 v{t1}, v{vdt}, s{sT}, -v{t0}")
    lo = LOG2E - struct.unpack("<f", struct.pack("<f", LOG2E))[0]
    a(f"v_fmac_f32 v{t1}, {f32(lo)}, v{vdt}")
    a(f"v_exp_f32 v{t0}, v{t0}")
    a(f"v_mul_f32 v{t1}, {f32(LN2)}, v{t1}")
    a(f"v_fma_f32 v{t0}, v{t0}, v{t1}, v{t0}")
    bf16r(a, vdt, t0)
    a(f"s_mov_b32 s{sCnt}, 0")
    def cmul(dst, e, m):
        if ENV("KPK", 0):
            a(f"v_pk_mul_f32 {v(T,2)}, {v(e,2)}, {v(m,2)} op_sel:[0,0] op_sel_hi:[0,1]")
            a(f"v_pk_fma_f32 {v(dst,2)}, {v(e,2)}, {v(m,2)}, {v(T,2)} op_sel:[1,1,0] op_sel_hi:[1,0,1] neg_lo:[0,1,0]")
        else:
            assert dst != e and dst != m
            a(f"v_mul_f32 v{dst}, v{e}, v{m}")
            a(f"v_mul_f32 v{dst+1}, v{e}, v{m+1}")
            a(f"v_fma_f32 v{dst}, -v{e+1}, v{m+1}, v{dst}")
            a(f"v_fmac_f32 v{dst+1}, v{e+1}, v{m}")
    def cexp(dst, scale):
        if scale == 1:
            a(f"v_exp_f32 v{t0}, v{a2b}")
            a(f"v_fract_f32 v{t1}, v{a2b+1}")
        else:
            a(f"v_mul_f32 v{t0}, {f32(float(scale))}, v{a2b}")
            a(f"v_mul_f32 v{t1}, {f32(float(scale))}, v{a2b+1}")
            a(f"v_exp_f32 v{t0}, v{t0}")
            a(f"v_fract_f32 v{t1}, v{t1}")
        a(f"v_cos_f32 v{dst}, v{t1}")
        a(f"v_sin_f32 v{dst+1}, v{t1}")
        a(f"v_mul_f32 v{dst}, v{dst}, v{t0}")
        a(f"v_mul_f32 v{dst+1}, v{dst+1}, v{t0}")
    def mfmas():
        for ks in range(8):
            a(f"v_mfma_f32_32x32x16_bf16 {v(accK,16)}, {v(FA[ks],4)}, {v(FB[ks],4)}, {v(accK,16)}")
    def cpair(dw, x, y):
        a(f"v_cvt_pk_bf16_f32 v{Cr+dw}, v{x}, v{y}")
        a(f"v_cvt_pk_bf16_f32 v{Ci+dw}, -v{x+1}, -v{y+1}")
    if ENV("XKG", 0): a("s_branch KG_after")
    a.label("KG_loop")
    a.flush_hist()
    _a = a
    if ENV("XKW", 0) or ENV("XKM", 0) or ENV("XKR", 0):
        class Filt:
            def __call__(self, t):
                if ENV("XKW", 0) and t.startswith("ds_write"): return
                if ENV("XKR", 0) and t.startswith("ds_read"): return
                if ENV("XKM", 0) and t.startswith("v_mfma"): return
                _a(t)
            def __getattr__(self, n): return getattr(_a, n)
        a = Filt()
    p0 = P[0]
    for i in range(4): a(f"v_lshlrev_b32 v{p0[i]}, 16, v{p0[i]}")
    a(f"v_lshlrev_b32 v{V}, 16, v{p0[4]}")
    a(f"v_lshlrev_b32 v{V+1}, 16, v{p0[5]}")
    a(f"v_mul_f32 v{p0[0]}, v{vdt}, v{p0[0]}")
    a(f"v_mul_f32 v{p0[1]}, v{vdt}, v{p0[1]}")
    a(f"v_mul_f32 v{T2}, v{vdt}, v{p0[2]}")
    a(f"v_mul_f32 v{T2+1}, v{vdt}, v{p0[3]}")
    a(f"v_mul_f32 v{a2b}, {f32(LOG2E)}, v{p0[0]}")
    a(f"v_mul_f32 v{a2b+1}, {f32(1.0/(2*math.pi))}, v{p0[1]}")
    cmul(W, V, T2)
    cexp(l8, 8); cexp(l1, 1); cexp(l256, 256)
    if STAMPS: a("s_memtime s[18:19]")
    a("s_waitcnt lgkmcnt(0)")
    if STAMPS:
        a(f"s_cmp_eq_u32 s{sCnt}, 1")
        a("s_cselect_b32 s82, s18, s82")
        a(f"s_cmp_eq_u32 s{sCnt}, 2")
        a("s_cselect_b32 s84, s18, s84")
    a(f"v_cvt_pk_bf16_f32 v{Qr[0]}, 1.0, v{l8}")
    a(f"v_cvt_pk_bf16_f32 v{Qi[0]}, 0, v{l8+1}")
    cur = l8
    for f in range(2, 32, 2):
        if f // 2 - 1 < 8:
            ks = f // 2 - 1
            a(f"v_mfma_f32_32x32x16_bf16 {v(accK,16)}, {v(FA[ks],4)}, {v(FB[ks],4)}, {v(accK,16)}")
        cmul(E0, cur, l8); cmul(E1, E0, l8); cur = E1
        g, dw = f // 8, (f % 8) // 2
        a(f"v_cvt_pk_bf16_f32 v{Qr[g%2]+dw}, v{E0}, v{E1}")
        a(f"v_cvt_pk_bf16_f32 v{Qi[g%2]+dw}, v{E0+1}, v{E1+1}")
        if dw == 3:
            a(f"ds_write_b128 v{vwr}, {v(Qr[g%2],4)} offset:{16*g}")
            a(f"ds_write_b128 v{vwr}, {v(Qi[g%2],4)} offset:{64+16*g}")
    cmul(E0, W, l1); cpair(0, W, E0)
    cmul(G2, E0, l1); cmul(E0, G2, l1); cpair(1, G2, E0)
    cmul(G4, E0, l1); cmul(E0, G4, l1); cpair(4, G4, E0)
    cmul(G6, E0, l1); cmul(E0, G6, l1); cpair(5, G6, E0)
    cmul(E0, G2, l256); cmul(E1, G6, l256); cpair(3, E0, E1)
    cmul(E0, G4, l256); cmul(E1, E0, l256); cpair(7, E0, E1)
    cmul(E0, E1, l256); cpair(11, E0, E0)
    cur = W
    dwv = {1: 2, 2: 6, 3: 10, 4: 8, 5: 9, 6: 12, 7: 14}
    for j in range(1, 8):
        nx = [E0, E2][j % 2]
        cmul(nx, cur, l256); cmul(E1, nx, l8); cpair(dwv[j], nx, E1); cur = nx
        if j in (1, 2):
            g = j - 1
            a(f"ds_write_b128 v{vwr}, {v(Cr+4*g,4)} offset:{128+16*g}")
            a(f"ds_write_b128 v{vwr}, {v(Ci+4*g,4)} offset:{192+16*g}")
        if j in (5, 7):
            g = {5: 2, 7: 3}[j]
            a(f"ds_write_b128 v{vwr}, {v(Cr+4*g,4)} offset:{128+16*g}")
            a(f"ds_write_b128 v{vwr}, {v(Ci+4*g,4)} offset:{192+16*g}")
    for ks in range(8):
        o = (16 * (ks >> 1) + 2 * (ks & 1)) * KG_S
        a(f"ds_read_b64_tr_b16 {v(FA[ks],2)}, v{vrd} offset:{o+128}")
        a(f"ds_read_b64_tr_b16 {v(FA[ks]+2,2)}, v{vrd} offset:{o+192}")
        a(f"ds_read_b64_tr_b16 {v(FB[ks],2)}, v{vrd} offset:{o}")
        a(f"ds_read_b64_tr_b16 {v(FB[ks]+2,2)}, v{vrd} offset:{o+64}")
    for i in range(6):
        a(f"v_mov_b32 v{P[0][i]}, v{P[1][i]}")
        a(f"v_mov_b32 v{P[1][i]}, v{P[2][i]}")
    a(f"s_cmp_eq_u32 s{sCnt}, 0")
    a(f"s_cselect_b32 s{sT}, 0, -1")
    for i in range(16): a(f"v_and_b32 v{accK+i}, s{sT}, v{accK+i}")
    if STAMPS and 0:
        a("s_memtime s[18:19]")
        a("s_waitcnt lgkmcnt(0)")
        a(f"s_cmp_eq_u32 s{sCnt}, 0")
        a("s_cselect_b32 s82, s18, s82")
        a(f"s_cmp_eq_u32 s{sCnt}, 1")
        a("s_cselect_b32 s84, s18, s84")
    a(f"s_add_u32 s{sCnt}, s{sCnt}, 1")
    a(f"s_cmp_lt_u32 s{sCnt}, 3")
    a("s_cbranch_scc1 KG_loop")
    a = _a
    a.label("KG_after")
    stamp(a, 2)
    a(f"buffer_load_dword v{vtok}, v{vzero}, s[{sDBG}:{sDBG+3}], 0 offen sc1")
    vJa = P[0][0]; vJb = P[0][1]; u0 = P[0][2]; u1 = P[0][3]
    a(f"v_and_b32 v{t0}, 31, v{lane}")
    a(f"v_lshlrev_b32 v{t0}, 4, v{t0}")
    a(f"v_lshrrev_b32 v{t1}, 5, v{lane}")
    a(f"v_lshl_add_u32 v{t2}, v{t1}, 9, v{t0}")
    a(f"s_add_u32 s{sT}, s{sBase}, 1008")
    a(f"v_sub_u32 v{vJa}, s{sT}, v{t2}")
    a(f"v_lshlrev_b32 v{t2}, 10, v{t1}")
    a(f"v_sub_u32 v{t2}, v{t2}, v{t0}")
    a(f"s_add_u32 s{sT}, s{sBase}, 496")
    a(f"v_add_u32 v{vJb}, s{sT}, v{t2}")
    Z = Qr[0]
    for i in range(4): a(f"v_mov_b32 v{Z+i}, 0")
    a(f"v_lshrrev_b32 v{u0}, 2, v{lane}")
    a(f"v_mul_u32_u24 v{u0}, {CV_S}, v{u0}")
    a(f"v_and_b32 v{u1}, 3, v{lane}")
    a(f"v_lshl_add_u32 v{u0}, v{u1}, 4, v{u0}")
    a(f"v_add_u32 v{u0}, s{sBase}, v{u0}")
    a("s_mov_b32 s18, 0xaaaaaaaa"); a("s_mov_b32 s19, 0xaaaaaaaa")
    a("s_waitcnt lgkmcnt(0)")
    mfmas()
    a("s_mov_b64 exec, 0xffff")
    a(f"ds_write_b128 v{u0}, {v(Z,4)} offset:4096")
    a("s_mov_b64 exec, -1")
    O = [Cr, Cr + 8, Ci, Ci + 8]
    ac = lambda i: accK + i
    def cv(d, lo_, hi_): a(f"v_cvt_pk_bf16_f32 v{d}, v{lo_}, v{hi_}")
    def seg3(o, e0, e1):
        a(f"v_cndmask_b32 v{t0}, v{e0}, v{e1}, s[18:19]")
        cv(o, e1, e1); cv(o + 1, e1, t0); cv(o + 2, e0, e0); cv(o + 3, e0, e0)
    def seg2(o, e0, e1, e2):
        cv(o, e2, e2); cv(o + 1, e1, e1); cv(o + 2, e1, e0); cv(o + 3, e0, e0)
    seg3(O[3], ac(12), ac(13))
    a("s_mov_b32 exec_hi, 0")
    for m in range(4): cv(O[0] + m, ac(7 - 2*m), ac(6 - 2*m))
    seg3(O[1], ac(8), ac(9)); seg3(O[2], ac(10), ac(11))
    a("s_mov_b32 exec_hi, -1")
    a("s_mov_b32 exec_lo, 0")
    cv(O[0], ac(1), ac(3)); cv(O[0] + 1, ac(6), ac(6)); cv(O[0] + 2, ac(6), ac(2)); cv(O[0] + 3, ac(0), ac(0))
    seg2(O[1], ac(4), ac(7), ac(5)); seg2(O[2], ac(8), ac(10), ac(9))
    a("s_mov_b32 exec_lo, -1")
    adr = [(vJa, 3072), (vJb, 1536), (vJb, 1024), (vJa, 0)]
    for p in range(4):
        a(f"ds_write_b128 v{adr[p][0]}, {v(O[p],4)} offset:{adr[p][1]}")
    for p in range(4):
        a(f"ds_read_b64 {v(O[p]+4,2)}, v{adr[p][0]} offset:{adr[p][1]+16}")
    stamp(a, 11)
    a("s_waitcnt vmcnt(0)")
    check_token(a, vtok, vzero)
    a("s_waitcnt lgkmcnt(0)")
    for p in range(4):
        Kt = [FA[(3*p + c) % 8] for c in range(3)]
        kin = O[p]
        for k in range(4): a(f"v_alignbyte_b32 v{Kt[0]+k}, v{kin+k+1}, v{kin+k}, 2")
        for k in range(4): a(f"v_mov_b32 v{Kt[1]+k}, v{kin+k+1}")
        for k in range(4): a(f"v_alignbyte_b32 v{Kt[2]+k}, v{kin+k+2}, v{kin+k+1}, 2")
        for c in range(3): a(f"ds_write_b128 v{adr[p][0]}, {v(Kt[c],4)} offset:{adr[p][1] + (c+1)*CV_S}")
    a("s_branch S_join")
    hi = R.hi

    a.label("S_w2t"); a.flush_hist()
    toks = {}
    a("s_waitcnt lgkmcnt(0)")
    a("s_sleep 64")
    a(f"buffer_load_dword v{vtok}, v{vzero}, s[{sDBG}:{sDBG+3}], 0 offen sc1")
    a("s_waitcnt vmcnt(0)")
    check_token(a, vtok, vzero)
    a("s_branch S_join")

    a.label("S_ln"); a.flush_hist()
    R.reset(base)
    voff = R(); vlw = R(); vtr = R()
    Xr = [R(4, 4) for _ in range(10)]
    U = [R(2, 2) for _ in range(40)]
    sm = R(2, 2); mb = R(2, 2); rs = R(2, 2); T = [R(2, 2) for _ in range(4)]; gr = R(2, 2)
    ones = R()
    O = [R(4, 4) for _ in range(4)]
    a(f"s_load_dwordx2 s[{sX_}:{sX_+1}], s[0:1], 0")
    a("s_memrealtime s[18:19]")
    srd(a, sX_, L * D * 2)
    a(f"v_lshrrev_b32 v{t0}, 3, v{lane}")
    a(f"v_and_b32 v{t1}, 7, v{lane}")
    a(f"v_lshlrev_b32 v{t1}, 4, v{t1}")
    a(f"v_mul_u32_u24 v{voff}, 1280, v{t0}")
    a(f"v_add_u32 v{voff}, v{voff}, v{t1}")
    a(f"v_mul_u32_u24 v{vlw}, {LN_S}, v{t0}")
    a(f"v_add_u32 v{vlw}, v{vlw}, v{t1}")
    a(f"v_add_u32 v{vlw}, {LN_OFF}, v{vlw}")
    a(f"s_lshl_b32 s{sT3}, s{sXc}, 5")
    a(f"s_add_u32 s{sT3}, s{sT3}, s{sA}")
    a(f"s_mul_i32 s{sT}, s{sT3}, {8*1280}")
    a("s_waitcnt lgkmcnt(0)")
    a(f"s_cmp_ge_u32 s2, 8")
    a("s_cbranch_scc1 S_ln_nt")
    a("s_or_b32 s18, s18, 1")
    a(f"v_mov_b32 v{gr}, s18")
    a(f"v_mov_b32 v{gr+1}, 0")
    a("s_mov_b64 exec, 1")
    a(f"buffer_atomic_cmpswap {v(gr,2)}, v{vzero}, s[{sDBG}:{sDBG+3}], 0 offen"); a.vm -= 1
    a("s_mov_b64 exec, -1")
    a.label("S_ln_nt")
    for i in range(10):
        a(f"buffer_load_dwordx4 {v(Xr[i],4)}, v{voff}, s[{sX_}:{sX_+3}], s{sT} offen offset:{128*i}")
    a(f"v_mov_b32 v{ones}, 0x3f803f80")
    a(f"v_mov_b32 v{sm}, 0")
    a("s_waitcnt vmcnt(0)")
    stamp(a, 1)
    a(f"buffer_load_dword v{vtok}, v{vzero}, s[{sDBG}:{sDBG+3}], 0 offen sc1")
    for i in range(40):
        a(f"v_dot2_f32_bf16 v{sm}, v{Xr[i//4] + i%4}, v{ones}, v{sm}")
    def red8(r_):
        a(f"v_add_f32_dpp v{r_}, v{r_}, v{r_} quad_perm:[1,0,3,2] row_mask:0xf bank_mask:0xf")
        a(f"v_add_f32_dpp v{r_}, v{r_}, v{r_} quad_perm:[2,3,0,1] row_mask:0xf bank_mask:0xf")
        a(f"v_add_f32_dpp v{r_}, v{r_}, v{r_} row_half_mirror row_mask:0xf bank_mask:0xf")
    for i in range(40):
        x = Xr[i//4] + i % 4
        a(f"v_lshlrev_b32 v{U[i]}, 16, v{x}")
        a(f"v_and_b32 v{U[i]+1}, 0xffff0000, v{x}")
    red8(sm)
    a(f"v_mul_f32 v{sm}, {f32(1.0/D)}, v{sm}")
    bf16r(a, mb, sm)
    a(f"v_mov_b32 v{rs}, 0"); a(f"v_mov_b32 v{rs+1}, 0")
    for i in range(40):
        if ENV("LPK", 1):
            a(f"v_pk_add_f32 {v(U[i],2)}, {v(U[i],2)}, {v(mb,2)} op_sel_hi:[1,0] neg_lo:[0,1] neg_hi:[0,1]")
            a(f"v_pk_fma_f32 {v(rs,2)}, {v(U[i],2)}, {v(U[i],2)}, {v(rs,2)}")
        else:
            for h in range(2):
                a(f"v_sub_f32 v{U[i]+h}, v{U[i]+h}, v{mb}")
                a(f"v_fmac_f32 v{rs+h}, v{U[i]+h}, v{U[i]+h}")
    a(f"v_add_f32 v{rs}, v{rs}, v{rs+1}")
    red8(rs)
    a(f"v_sub_f32 v{t0}, v{sm}, v{mb}")
    a(f"v_mul_f32 v{t0}, v{t0}, v{t0}")
    a(f"v_mul_f32 v{rs}, {f32(1.0/D)}, v{rs}")
    a(f"v_sub_f32 v{rs}, v{rs}, v{t0}")
    a(f"v_max_f32 v{rs}, 0, v{rs}")
    bf16r(a, rs, rs)
    a(f"v_add_f32 v{rs}, {f32(1e-5)}, v{rs}")
    bf16r(a, rs, rs)
    a(f"v_sqrt_f32 v{rs}, v{rs}")
    a(f"v_cvt_pk_bf16_f32 v{gr}, v{mb}, v{rs}")
    a(f"v_and_b32 v{rs}, 0xffff0000, v{gr}")
    a(f"v_rcp_f32 v{rs}, v{rs}")
    for i in range(40):
        x = Xr[i//4] + i % 4
        if ENV("LPK", 1): a(f"v_pk_mul_f32 {v(U[i],2)}, {v(U[i],2)}, {v(rs,2)} op_sel_hi:[1,0]")
        else:
            for h in range(2): a(f"v_mul_f32 v{U[i]+h}, v{U[i]+h}, v{rs}")
        a(f"v_cvt_pk_bf16_f32 v{x}, v{U[i]}, v{U[i]+1}")
        if i % 4 == 3:
            a(f"ds_write_b128 v{vlw}, {v(Xr[i//4],4)} offset:{128*(i//4)}")
    a(f"v_bfe_u32 v{t1}, v{lane}, 2, 2")
    a(f"v_mul_u32_u24 v{t1}, {LN_S}, v{t1}")
    a(f"v_lshrrev_b32 v{t0}, 4, v{lane}")
    a(f"v_lshl_add_u32 v{t1}, v{t0}, 5, v{t1}")
    a(f"v_and_b32 v{t2}, 3, v{lane}")
    a(f"v_lshl_add_u32 v{t1}, v{t2}, 3, v{t1}")
    a(f"v_add_u32 v{vtr}, {LN_OFF}, v{t1}")
    a(f"s_mul_i32 s{sT}, s{sT3}, 10240")
    def rd(i):
        o = O[i % 4]
        for e in range(2):
            a(f"ds_read_b64_tr_b16 {v(o+2*e,2)}, v{vtr} offset:{128*i + 4*e*LN_S}")
        toks[i] = a.ltok()
    for i in range(3): rd(i)
    for i in range(10):
        if i + 3 < 10: rd(i + 3)
        a.wait(lg=toks[i])
        a(f"buffer_store_dwordx4 {v(O[i%4],4)}, v{v16}, s[{sWS}:{sWS+3}], s{sT} offen sc1")
        a(f"s_add_u32 s{sT}, s{sT}, 1024")
    a("s_waitcnt vmcnt(10)")
    check_token(a, vtok, vzero)
    a(f"v_mov_b32 v{gr+1}, s{sTok}")
    a(f"s_lshl_b32 s{sT}, s{sT3}, 7")
    a(f"s_add_u32 s{sT2}, s{sT}, {WS_STAT}")
    a("s_mov_b32 exec_lo, 0x01010101"); a("s_mov_b32 exec_hi, 0x01010101")
    a(f"buffer_store_dwordx2 {v(gr,2)}, v{lane}, s[{sWS}:{sWS+3}], s{sT2} offen sc1")
    a(f"s_add_u32 s{sT}, s{sT}, {WS_FLN}")
    a("s_waitcnt vmcnt(0)")
    a("s_mov_b64 exec, 1")
    a(f"buffer_store_dword v{gr+1}, v{vzero}, s[{sWS}:{sWS+3}], s{sT} offen sc1")
    a("s_mov_b64 exec, -1")
    stamp(a, 2)
    if ONLY: a("s_branch S_end")
    a(f"v_mul_u32_u24 v{t0}, 10240, v{lane}")
    a(f"v_lshlrev_b32 v{t1}, 7, v{lane}")
    a(f"s_cmp_eq_u32 s{sHeavy}, 0")
    a(f"s_cselect_b32 s{sCnt}, s{sD[0]}, s{sD[2]}")
    a(f"s_lshl_b32 s{sT3}, s2, 7")
    a(f"s_add_u32 s{sT3}, s{sT3}, {WS_FPACE}")
    a(f"s_mov_b32 s{sSpin}, 0")
    a("s_mov_b64 exec, 1")
    a.label("S_pace")
    a(f"s_sleep {ENV('PSLEEP', 8)}")
    a(f"buffer_load_dword v{t2}, v{vzero}, s[{sWS}:{sWS+3}], s{sT3} offen sc1")
    a("s_waitcnt vmcnt(0)")
    a(f"v_readfirstlane_b32 s{sT}, v{t2}")
    a(f"s_cmp_eq_u32 s{sT}, s{sTok}")
    a("s_cbranch_scc1 S_paced")
    a(f"s_add_u32 s{sSpin}, s{sSpin}, 1")
    a(f"s_cmp_lt_u32 s{sSpin}, {ENV('PMAX', 24)}")
    a("s_cbranch_scc1 S_pace")
    a.label("S_paced")
    a("s_mov_b64 exec, -1")
    stamp(a, 10)
    for g in range(4):
        a(f"s_mov_b32 s{sT3}, {WS_FLN + 8192*g}")
        a(f"buffer_load_dword v{O[0]+g}, v{t1}, s[{sWS}:{sWS+3}], s{sT3} offen sc1")
    a("s_waitcnt vmcnt(0)")
    for g in range(4):
        a(f"s_mov_b32 s{sT3}, {WS_FLN + 8192*g}")
        ldf = lambda: a(f"buffer_load_dword v{O[0]+g}, v{t1}, s[{sWS}:{sWS+3}], s{sT3} offen sc1")
        check_flags(a, [O[0] + g], t1, ldf, sleep=ENV("LNSLEEP", 6))
    stamp(a, 9)
    if ENV("UPF", 0):
        a(f"v_lshrrev_b32 v{t2}, 3, v{lane}")
        a(f"v_mul_u32_u24 v{t2}, 10240, v{t2}")
        a(f"v_and_b32 v{t3}, 7, v{lane}")
        a(f"v_lshl_add_u32 v{t2}, v{t3}, 7, v{t2}")
        a(f"s_mul_i32 s{sT}, s{sA}, {8*10240}")
        a(f"s_lshl_b32 s{sT2}, s{sXc}, 10")
        a(f"s_add_u32 s{sT2}, s{sT2}, s{sT}")
        a(f"buffer_load_dword v{O[1]}, v{t2}, s[{sWS}:{sWS+3}], s{sT2} offen sc1")
        a(f"s_lshl_b32 s{sT2}, s{sXc}, 8")
        a(f"s_add_u32 s{sT2}, s{sT2}, s{sT}")
        a(f"s_add_u32 s{sT2}, s{sT2}, 8192")
        a("s_mov_b32 exec_lo, 0x03030303"); a("s_mov_b32 exec_hi, 0x03030303")
        a(f"buffer_load_dword v{O[1]+1}, v{t2}, s[{sWS}:{sWS+3}], s{sT2} offen sc1")
        a("s_mov_b64 exec, -1")
        a("s_waitcnt vmcnt(0)")
    Uq_ = [U[0] + 4 * i for i in range(12)]
    assert U[0] % 4 == 0
    for ch in range(3):
        a(f"s_lshl_b32 s{sT}, s{[sD[0], sD[1], sCnt][ch]}, 4")
        for g in range(4):
            if g: a(f"s_add_u32 s{sT}, s{sT}, {64*10240}")
            a(f"buffer_load_dwordx4 {v(Uq_[4*ch+g],4)}, v{t0}, s[{sWS}:{sWS+3}], s{sT} offen sc1")
    for i in range(12):
        a(f"s_waitcnt vmcnt({11-i})")
        a(f"ds_write_b128 v{v16}, {v(Uq_[i],4)} offset:{CV_U[i//4] + 1024*(i%4)}")
    stamp(a, 4)
    hi = max(hi, R.hi)

    a.label("S_join"); a.flush_hist()
    if ONLY: a("s_branch S_end")
    if ENV("SPRIO", 0): a(f"s_setprio {ENV('SPRIO', 0)}")
    stamp(a, 3)
    R.reset(base)
    acc = [R(4, 4) for _ in range(8)]
    FA = [[R(4, 4) for _ in range(8)] for _ in range(2)]
    FB = [[R(4, 4) for _ in range(8)] for _ in range(2)]
    vA = R(); vBq = R(); vA0 = R(); vB0 = R(); vrw = R(); vrr = R(); vfl = R(); vfa = R(); vtk = R()
    a(f"s_and_b32 s{sPar}, s{sWave}, 1")
    Z = FB[0][3]
    for i in range(4): a(f"v_mov_b32 v{Z+i}, 0")
    a(f"s_min_u32 s{sT}, s{sWave}, 2")
    a(f"s_mul_i32 s{sT}, s{sT}, 4608")
    a(f"v_add_u32 v{t2}, s{sT}, v{v16}")
    a("s_mov_b32 exec_hi, 0")
    a(f"ds_write_b128 v{t2}, {v(Z,4)} offset:{CV_U[0]-512}")
    a("s_mov_b32 exec_hi, -1")
    a(f"v_and_b32 v{t0}, 15, v{lane}")
    a(f"v_sub_u32 v{t2}, 15, v{t0}")
    a(f"v_and_b32 v{t3}, 3, v{t2}")
    a(f"v_sub_u32 v{t2}, v{t2}, v{t3}")
    a(f"v_mul_u32_u24 v{t3}, {CV_S}, v{t3}")
    a(f"v_lshl_add_u32 v{t3}, v{t2}, 1, v{t3}")
    a(f"v_lshrrev_b32 v{t2}, 4, v{lane}")
    a(f"v_lshl_add_u32 v{vA0}, v{t2}, 4, v{t3}")
    a(f"v_lshlrev_b32 v{t3}, 4, v{t2}")
    a(f"v_lshl_add_u32 v{vB0}, v{t0}, 5, v{t3}")
    a(f"v_lshrrev_b32 v{t3}, 1, v{t2}")
    a(f"v_lshlrev_b32 v{t3}, 3, v{t3}")
    a(f"v_xor_b32 v{t3}, v{t3}, v{t0}")
    a(f"v_lshlrev_b32 v{t3}, 4, v{t3}")
    a(f"v_lshl_add_u32 v{t3}, v{t2}, 8, v{t3}")
    a(f"s_lshl_b32 s{sT}, s{sWave}, 13")
    a(f"v_add_u32 v{vrw}, s{sT}, v{t3}")
    a(f"v_bfe_u32 v{t0}, v{lane}, 1, 4")
    a(f"v_and_b32 v{t2}, 1, v{lane}")
    a(f"v_lshlrev_b32 v{t3}, 3, v{t2}")
    a(f"v_xor_b32 v{t0}, v{t0}, v{t3}")
    a(f"v_lshlrev_b32 v{t0}, 4, v{t0}")
    a(f"v_lshl_add_u32 v{t0}, v{t2}, 9, v{t0}")
    a(f"v_lshrrev_b32 v{t2}, 5, v{lane}")
    a(f"v_lshl_add_u32 v{vrr}, v{t2}, 10, v{t0}")
    a(f"v_mov_b32 v{vtk}, s{sTok}")
    a(f"s_mul_i32 s{sT}, s{sSlot}, {CH_REG}")
    a(f"s_lshl_b32 s{sT2}, s{sPar}, 8")
    a(f"s_sub_u32 s{sT}, s{sT}, s{sT2}")
    a(f"s_add_u32 s{sT}, s{sT}, {32*14}")
    a(f"v_add_u32 v{vA}, s{sT}, v{vA0}")
    a(f"s_mul_i32 s{sT}, s{sSlot}, 4608")
    a(f"s_sub_u32 s{sT}, s{sT}, s{sT2}")
    a(f"s_add_u32 s{sT}, s{sT}, {CV_U[0] - 512 + 32*15}")
    a(f"v_add_u32 v{vBq}, s{sT}, v{vB0}")
    a(f"s_mov_b32 s{sCnt}, 2")
    a(f"s_mov_b32 s{sRound}, 0")
    a("s_waitcnt vmcnt(0) lgkmcnt(0)")
    a("s_barrier")
    stamp(a, 5)

    def rdlist(st):
        rd_ = []
        for j in range(8):
            rd_.append(f"ds_read_b128 {v(FB[st][j],4)}, v{vBq} offset:{512*j}")
            rd_.append(f"ds_read_b64 {v(FA[st][j],2)}, v{vA} offset:{512*(7-j)}")
            rd_.append(f"ds_read_b64 {v(FA[st][j]+2,2)}, v{vA} offset:{512*(7-j)+8}")
        rd_.append(f"v_subrev_u32 v{vA}, 64, v{vA}")
        rd_.append(f"v_subrev_u32 v{vBq}, 64, v{vBq}")
        return rd_
    def group(st, nxt):
        pairs = sorted([(c, j) for c in range(8) for j in range(c + 1)], key=lambda cj: (cj[1], cj[0]))
        rd_ = rdlist(nxt)
        for i, (c, j) in enumerate(pairs):
            a(f"v_mfma_f32_16x16x32_bf16 {v(acc[c],4)}, {v(FA[st][j],4)}, {v(FB[st][c-j],4)}, {v(acc[c],4)}")
            if i < len(rd_): a(rd_[i])
    a.label("CV_round"); a.flush_hist()
    for x in rdlist(0): a(x)
    for c in range(8):
        for i in range(4): a(f"v_mov_b32 v{acc[c]+i}, 0")
    a.label("CV_loop")
    a("s_waitcnt lgkmcnt(0)")
    group(0, 1)
    a("s_waitcnt lgkmcnt(0)")
    group(1, 0)
    a(f"s_sub_u32 s{sCnt}, s{sCnt}, 1")
    a(f"s_cmp_lg_u32 s{sCnt}, 0")
    a("s_cbranch_scc1 CV_loop")
    a("s_waitcnt lgkmcnt(0)")
    a("s_barrier")
    for c in range(8):
        a(f"ds_write_b128 v{vrw}, {v(acc[c],4)} offset:{1024*c}")
    a("s_waitcnt lgkmcnt(0)")
    a("s_barrier")
    Rd = FA[1]; Uq = FB[1]
    def finish(npart, nblk, vdsk):
        for b in range(nblk):
            bs = b * npart * 2
            for p in range(1, npart):
                for e in range(2):
                    for hf in range(2):
                        a(f"v_pk_add_f32 {v(Rd[bs+e]+2*hf,2)}, {v(Rd[bs+e]+2*hf,2)}, {v(Rd[bs+2*p+e]+2*hf,2)}")
            o = FB[1][4 + b]; T_ = FB[1][2]; T2_ = FB[1][3]
            for m in range(4):
                y = Rd[bs + m // 2] + 2 * (m % 2)
                u = Uq[b] + m
                a(f"v_cvt_pk_bf16_f32 v{o+m}, v{y}, v{y+1}")
                a(f"v_lshlrev_b32 v{T_}, 16, v{u}")
                a(f"v_and_b32 v{T_+1}, 0xffff0000, v{u}")
                a(f"v_pk_mul_f32 {v(T_,2)}, {v(T_,2)}, {v(vdsk,2)} op_sel_hi:[1,0]")
                a(f"v_cvt_pk_bf16_f32 v{T_+2}, v{T_}, v{T_+1}")
                a(f"v_lshlrev_b32 v{T_}, 16, v{T_+2}")
                a(f"v_and_b32 v{T_+1}, 0xffff0000, v{T_+2}")
                a(f"v_lshlrev_b32 v{T2_}, 16, v{o+m}")
                a(f"v_and_b32 v{T2_+1}, 0xffff0000, v{o+m}")
                a(f"v_pk_add_f32 {v(T_,2)}, {v(T_,2)}, {v(T2_,2)}")
                a(f"v_cvt_pk_bf16_f32 v{o+m}, v{T_}, v{T_+1}")
            a(f"buffer_store_dwordx4 {v(o,4)}, v{v16}, s[{sWS}:{sWS+3}], s{sT2} offen offset:{1024*b} sc1")
    dsk = FB[1][6]
    def flag1():
        a(f"s_add_u32 s{sT}, s{sD[0]}, s{sSlot}")
        a(f"s_lshl_b32 s{sT}, s{sT}, 7")
        a(f"s_lshl_b32 s{sT2}, s{sPar}, 3")
        a(f"s_add_u32 s{sT}, s{sT}, s{sT2}")
        a(f"s_add_u32 s{sT}, s{sT}, {WS_FST}")
        a(f"v_lshlrev_b32 v{t0}, 2, v{lane}")
        a("s_waitcnt vmcnt(0)")
        a("s_mov_b64 exec, 3")
        a(f"buffer_store_dword v{vtk}, v{t0}, s[{sWS}:{sWS+3}], s{sT} offen sc1")
        a("s_mov_b64 exec, -1")
    a(f"s_cmp_lg_u32 s{sRound}, 0")
    a("s_cbranch_scc1 CV_fin2")
    stamp(a, 6)
    a(f"s_lshl_b32 s{sT}, s{sSlot}, 14")
    a(f"s_lshl_b32 s{sT2}, s{sPar}, 12")
    a(f"s_add_u32 s{sT}, s{sT}, s{sT2}")
    a(f"v_add_u32 v{t0}, s{sT}, v{vrr}")
    for b in range(2):
        for p in range(2):
            for e in range(2):
                a(f"ds_read_b128 {v(Rd[(b*2+p)*2+e],4)}, v{t0} offset:{8192*p + 2048*b + 256*e}")
    a(f"s_mul_i32 s{sT}, s{sSlot}, 4608")
    a(f"s_lshl_b32 s{sT2}, s{sPar}, 11")
    a(f"s_add_u32 s{sT}, s{sT}, s{sT2}")
    a(f"v_add_u32 v{t2}, s{sT}, v{v16}")
    for b in range(2):
        a(f"ds_read_b128 {v(Uq[b],4)}, v{t2} offset:{CV_U[0] + 1024*b}")
    a(f"v_lshlrev_b32 v{dsk}, 16, v{vdk[0]}")
    a(f"s_add_u32 s{sT}, s{sD[0]}, s{sSlot}")
    a(f"s_lshl_b32 s{sT}, s{sT}, 12")
    a(f"s_add_u32 s{sT2}, s{sT2}, s{sT}")
    a(f"s_add_u32 s{sT2}, s{sT2}, {WS_ST}")
    a("s_waitcnt lgkmcnt(0)")
    finish(2, 2, dsk)
    stamp(a, 7)
    a(f"s_cmp_lg_u32 s{sHeavy}, 0")
    a("s_cbranch_scc1 CV_r2")
    flag1()
    a("s_branch S_end")
    a.label("CV_r2"); a.flush_hist()
    a(f"s_lshl_b32 s{sT2}, s{sWave}, 7")
    a(f"s_sub_u32 s{sT}, {2*CH_REG + 32*14}, s{sT2}")
    a(f"v_add_u32 v{vA}, s{sT}, v{vA0}")
    a(f"s_sub_u32 s{sT}, {CV_U[2] - 512 + 32*15}, s{sT2}")
    a(f"v_add_u32 v{vBq}, s{sT}, v{vB0}")
    a(f"s_mov_b32 s{sCnt}, 1")
    a(f"s_mov_b32 s{sRound}, 1")
    a("s_branch CV_round")
    a.label("CV_fin2"); a.flush_hist()
    stamp(a, 8)
    a(f"s_lshl_b32 s{sT}, s{sWave}, 11")
    a(f"v_add_u32 v{t0}, s{sT}, v{vrr}")
    for p in range(4):
        for e in range(2):
            a(f"ds_read_b128 {v(Rd[p*2+e],4)}, v{t0} offset:{8192*p + 256*e}")
    a(f"s_lshl_b32 s{sT3}, s{sWave}, 10")
    a(f"v_add_u32 v{t2}, s{sT3}, v{v16}")
    a(f"ds_read_b128 {v(Uq[0],4)}, v{t2} offset:{CV_U[2]}")
    flag1()
    a(f"v_lshlrev_b32 v{dsk}, 16, v{vdk[1]}")
    a(f"s_lshl_b32 s{sT}, s{sD[2]}, 12")
    a(f"s_add_u32 s{sT2}, s{sT3}, s{sT}")
    a(f"s_add_u32 s{sT2}, s{sT2}, {WS_ST}")
    a("s_waitcnt lgkmcnt(0)")
    finish(4, 1, dsk)
    a(f"s_lshl_b32 s{sT}, s{sD[2]}, 7")
    a(f"s_lshl_b32 s{sT2}, s{sWave}, 2")
    a(f"s_add_u32 s{sT}, s{sT}, s{sT2}")
    a(f"s_add_u32 s{sT}, s{sT}, {WS_FST}")
    a("s_waitcnt vmcnt(0)")
    a("s_mov_b64 exec, 1")
    a(f"buffer_store_dword v{vtk}, v{vzero}, s[{sWS}:{sWS+3}], s{sT} offen sc1")
    a.label("S_end")
    stamp_end(a, sWave)
    return max(hi, R.hi)

W_SLOT = 12288
X_OFF = 3 * W_SLOT
X_WAVE = 11264
NXU = 5
def g_role(a):
    sX, sW1, sB1, sOUT, sW2 = 20, 24, 28, 32, 52
    sRB, sCB, sTB, sJD, sId = 36, 37, 38, 39, 3
    sP = [40, 41, 42]
    sWoff, sXoff, sM0w, sM0x, sOA, sOB = 43, 44, 45, 46, 47, 48
    R = Alloc(1)
    lane = R(); t0 = R(); t1 = R(); t2 = R(); t3 = R(); vzero = R(); vtok = R(); v16 = R(); vfa = R()
    vfl = R(); vsa = R()
    NWR = 25
    NWI = 18
    WR = [R(4, 4) for _ in range(NWR)]
    base2 = pool = R.mark()
    R.reset(184)
    acc = [[R(4, 4) for ct in range(2)] for rt in range(6)]
    cs = [R(4, 4) for _ in range(2)]
    st = [R(2, 2) for _ in range(2)]
    b1p = [R(2, 2) for _ in range(6)]
    R.reset(WR[NWI]); R.limit = 184
    A = [[R(4, 4) for rt in range(6)] for _ in range(2)]
    X = [[[R(4, 4) for ct in range(2)] for e in range(2)] for _ in range(2)]
    ones = R(4, 4)
    vE = [R() for _ in range(3)]; vO = [R() for _ in range(3)]
    vW = [R() for _ in range(3)]; vXs = [R(), R()]; vXr = [R(), R()]
    vpf = R(); vpd = R()
    stamp_begin(a)
    if ENV("GPRIO", 0): a(f"s_setprio {ENV('GPRIO', 0)}")
    a(f"s_load_dwordx2 s[{sX}:{sX+1}], s[0:1], 0")
    a(f"s_load_dwordx2 s[{sW1}:{sW1+1}], s[0:1], 80")
    a(f"s_load_dwordx2 s[{sW2}:{sW2+1}], s[0:1], 96")
    a(f"v_lshrrev_b32 v{t0}, 6, v0")
    a(f"v_and_b32 v{lane}, 63, v0")
    a(f"v_readfirstlane_b32 s{sWave}, v{t0}")
    a(f"s_sub_u32 s{sId}, s2, 256")
    if ENV("CPF", 1):
        a("s_getpc_b64 s[18:19]")
        a("s_and_b32 s18, s18, 0xffffff00")
        a(f"s_lshr_b32 s{sT3}, s{sId}, 3")
        a(f"s_lshl_b32 s{sT3}, s{sT3}, 10")
        a(f"s_add_u32 s18, s18, s{sT3}")
        a(f"s_addc_u32 s19, s19, 0")
        a(f"v_lshrrev_b32 v{A[0][0]}, 5, v0")
        a(f"v_lshlrev_b32 v{A[0][0]}, 7, v{A[0][0]}")
        a(f"v_mov_b32 v{A[0][0]+1}, s19")
        a(f"v_add_co_u32 v{A[0][0]}, vcc, s18, v{A[0][0]}")
        a(f"v_addc_co_u32 v{A[0][0]+1}, vcc, 0, v{A[0][0]+1}, vcc")
        a("s_mov_b32 exec_lo, 1"); a("s_mov_b32 exec_hi, 1")
        a(f"global_load_dword v{vpd}, {v(A[0][0],2)}, off")
        a("s_mov_b64 exec, -1")
    srd(a, sX, L * D * 2); srd(a, sW1, D * F * 2)
    pfx = A[1][0]; pfw = A[1][0] + 1
    a(f"s_lshr_b32 s{sT3}, s{sId}, 3")
    a(f"s_lshl_b32 s{sT3}, s{sT3}, 2")
    a(f"s_add_u32 s{sT3}, s{sT3}, s{sWave}")
    a(f"v_mul_u32_u24 v{t1}, 0xaaab, v{lane}")
    a(f"v_lshrrev_b32 v{t1}, 18, v{t1}")
    a(f"v_mul_u32_u24 v{t2}, 6, v{t1}")
    a(f"v_sub_u32 v{t2}, v{lane}, v{t2}")
    a(f"v_mul_u32_u24 v{t1}, {64*3072}, v{t1}")
    a(f"v_lshl_add_u32 v{t1}, v{t2}, 7, v{t1}")
    a(f"s_lshr_b32 s{sT2}, s{sT3}, 1")
    a(f"s_mul_i32 s{sT2}, s{sT2}, 3072")
    a(f"s_and_b32 s{sT}, s{sId}, 1")
    a(f"s_lshl_b32 s{sT}, s{sT}, 1")
    a(f"s_and_b32 s{sRB}, s{sT3}, 1")
    a(f"s_add_u32 s{sT}, s{sT}, s{sRB}")
    a(f"s_mul_i32 s{sT}, s{sT}, 768")
    a(f"s_add_u32 s{sT2}, s{sT2}, s{sT}")
    a(f"v_add_u32 v{pfw}, s{sT2}, v{t1}")
    a(f"v_lshrrev_b32 v{t2}, 2, v{lane}")
    a(f"v_lshlrev_b32 v{t2}, 7, v{t2}")
    a(f"v_and_b32 v{t3}, 3, v{lane}")
    a(f"v_mul_u32_u24 v{t3}, 1280, v{t3}")
    a(f"v_add_u32 v{t2}, v{t2}, v{t3}")
    a(f"s_bfe_u32 s{sT}, s{sId}, 0x20001")
    a(f"s_lshl_b32 s{sT}, s{sT}, 7")
    a(f"s_add_u32 s{sT}, s{sT}, s{sT3}")
    a(f"s_mul_i32 s{sT}, s{sT}, {4*1280}")
    a(f"v_add_u32 v{pfx}, s{sT}, v{t2}")
    a("s_waitcnt lgkmcnt(0)")
    stamp(a, 1)
    def do_pf(c0, c1):
        def mask(lo, hi):
            m = ((1 << hi) - 1) & ~((1 << lo) - 1)
            a(f"s_mov_b32 exec_lo, {hex(m & 0xffffffff)}"); a(f"s_mov_b32 exec_hi, {hex(m >> 32)}")
        mask(4 * c0, 4 * c1)
        a(f"buffer_load_dword v{vpd}, v{pfx}, s[{sX}:{sX+3}], 0 offen")
        mask(6 * c0, 6 * c1)
        a(f"buffer_load_dword v{vpd}, v{pfw}, s[{sW1}:{sW1+3}], 0 offen")
        a("s_mov_b64 exec, -1")
    PFA_ = ENV("PFSPLIT", 3)
    do_pf(0, PFA_)
    srd(a, sW2, F * D * 2)
    a(f"s_mul_i32 s{sT}, s{sT3}, {15*128}")
    a(f"v_lshl_add_u32 v{vpf}, v{lane}, 7, s{sT}")
    def op_pf2(j):
        def f():
            a(f"s_add_u32 s{sT2}, s{sId}, {j}")
            a(f"s_and_b32 s{sT2}, s{sT2}, 7")
            a(f"s_mul_i32 s{sT2}, s{sT2}, {128*15*128}")
            a("s_mov_b64 exec, 0x7fff")
            a(f"buffer_load_dword v{vpd}, v{vpf}, s[{sW2}:{sW2+3}], s{sT2} offen")
            a("s_mov_b64 exec, -1")
        return f
    a(f"s_load_dwordx2 s[{sB1}:{sB1+1}], s[0:1], 88")
    a(f"s_load_dwordx2 s[{sWS}:{sWS+1}], s[0:1], 120")
    a(f"s_load_dwordx2 s[{sDBG}:{sDBG+1}], s[0:1], 112")
    a(f"s_load_dwordx2 s[{sOUT}:{sOUT+1}], s[0:1], 104")
    srd(a, sB1, F * 2); srd(a, sWS, WS_SIZE); srd(a, sDBG, 256); srd(a, sOUT, L * D * 2)
    a(f"s_and_b32 s{sT}, s{sId}, 7")
    a(f"s_lshr_b32 s{sT2}, s{sId}, 3")
    a(f"s_lshr_b32 s{sRB}, s{sT}, 1")
    a(f"s_lshl_b32 s{sTB}, s{sT}, 2")
    a(f"s_lshl_b32 s{sRB}, s{sRB}, 2")
    a(f"s_and_b32 s{sT3}, s{sT2}, 3")
    a(f"s_add_u32 s{sRB}, s{sRB}, s{sT3}")
    a(f"s_add_u32 s{sTB}, s{sTB}, s{sT3}")
    a(f"s_and_b32 s{sT}, s{sT}, 1")
    a(f"s_lshl_b32 s{sCB}, s{sT}, 3")
    a(f"s_lshr_b32 s{sJD}, s{sT2}, 2")
    a(f"s_add_u32 s{sCB}, s{sCB}, s{sJD}")
    a(f"v_mov_b32 v{vzero}, 0")
    a(f"v_lshlrev_b32 v{v16}, 4, v{lane}")
    for i in range(3):
        a(f"v_add_u32 v{t0}, {64*i}, v{lane}")
        a(f"v_mul_u32_u24 v{t1}, 0xaaab, v{t0}")
        a(f"v_lshrrev_b32 v{t1}, 19, v{t1}")
        a(f"v_mul_u32_u24 v{t2}, 12, v{t1}")
        a(f"v_sub_u32 v{t2}, v{t0}, v{t2}")
        a(f"v_lshrrev_b32 v{t3}, 2, v{t1}")
        a(f"v_and_b32 v{t3}, 2, v{t3}")
        a(f"v_xor_b32 v{t2}, v{t2}, v{t3}")
        a(f"v_lshlrev_b32 v{t2}, 4, v{t2}")
        a(f"v_mul_u32_u24 v{t1}, 3072, v{t1}")
        a(f"v_add_u32 v{vW[i]}, v{t1}, v{t2}")
        if i: a(f"v_subrev_u32 v{vW[i]}, {1024*i}, v{vW[i]}")
    a(f"s_mul_i32 s{sWoff}, s{sWave}, {16*3072}")
    a(f"s_mul_i32 s{sT}, s{sCB}, 192")
    a(f"s_add_u32 s{sWoff}, s{sWoff}, s{sT}")
    a(f"s_mul_i32 s{sM0w}, s{sWave}, 3072")
    a(f"v_lshrrev_b32 v{t0}, 3, v{lane}")
    a(f"v_and_b32 v{t1}, 7, v{lane}")
    a(f"v_lshrrev_b32 v{t2}, 1, v{t0}")
    a(f"v_xor_b32 v{t1}, v{t1}, v{t2}")
    a(f"v_mul_u32_u24 v{t0}, 1280, v{t0}")
    a(f"v_lshl_add_u32 v{vXs[0]}, v{t1}, 4, v{t0}")
    a(f"v_xor_b32 v{vXs[1]}, 64, v{vXs[0]}")
    a(f"v_add_u32 v{vXs[1]}, {8*1280 - 1024}, v{vXs[1]}")
    a(f"s_lshl_b32 s{sXoff}, s{sRB}, 7")
    a(f"s_lshl_b32 s{sT}, s{sWave}, 5")
    a(f"s_add_u32 s{sXoff}, s{sXoff}, s{sT}")
    a(f"s_mul_i32 s{sXoff}, s{sXoff}, 1280")
    a(f"s_mul_i32 s{sM0x}, s{sWave}, {X_WAVE}")
    a(f"s_add_u32 s{sM0x}, s{sM0x}, {X_OFF}")

    tokW = {}; tokXu = {}
    def ops_w(c):
        def f0():
            a(f"s_add_u32 m0, s{sM0w}, {(c % 3) * W_SLOT}")
            if c: a(f"s_add_u32 s{sWoff}, s{sWoff}, {64*3072}")
        def fi(i):
            def f():
                a(f"buffer_load_dwordx4 v{vW[i]}, s[{sW1}:{sW1+3}], s{sWoff} offen offset:{1024*i} lds")
                if i == 2: tokW[c] = a.vtok()
            return f
        return [f0] + [fi(i) for i in range(3)]
    def ops_x(u):
        c, ct = u // 2, u % 2
        def f0():
            a(f"s_add_u32 m0, s{sM0x}, {(u % NXU) * 2048}")
            a(f"s_add_u32 s{sT}, s{sXoff}, {ct*16*1280 + c*128}")
        def fi(h):
            def f():
                a(f"buffer_load_dwordx4 v{vXs[h]}, s[{sX}:{sX+3}], s{sT} offen offset:{1024*h} lds")
                if h == 1: tokXu[u] = a.vtok()
            return f
        return [f0, fi(0), fi(1)]
    def do_first():
        for f in ops_w(0) + ops_x(0) + ops_x(1) + ops_w(1) + ops_x(2) + ops_x(3): f()
    do_first()

    a(f"v_lshrrev_b32 v{t0}, 4, v{lane}")
    a(f"v_bfe_u32 v{t1}, v{lane}, 2, 2")
    a(f"v_lshl_add_u32 v{t1}, v{t0}, 3, v{t1}")
    a(f"v_mul_u32_u24 v{t1}, 192, v{t1}")
    a(f"v_and_b32 v{t2}, 3, v{lane}")
    a(f"v_lshl_add_u32 v{t1}, v{t2}, 3, v{t1}")
    a(f"v_and_b32 v{t2}, 1, v{t0}")
    a(f"v_lshlrev_b32 v{t2}, 5, v{t2}")
    a(f"v_sub_u32 v{t3}, v{t1}, v{t2}")
    a(f"v_add_u32 v{t3}, 32, v{t3}")
    a(f"v_add_u32 v{t2}, v{t1}, v{t2}")
    for P in range(3):
        a(f"s_add_u32 s{sP[P]}, s{sWave}, {P}")
        a(f"s_cmp_ge_u32 s{sP[P]}, 3")
        a(f"s_cselect_b32 s{sT}, 3, 0")
        a(f"s_sub_u32 s{sP[P]}, s{sP[P]}, s{sT}")
        a(f"s_lshl_b32 s{sT}, s{sP[P]}, 6")
        a(f"v_add_u32 v{vE[P]}, s{sT}, v{t2}")
        a(f"v_add_u32 v{vO[P]}, s{sT}, v{t3}")
    a(f"v_and_b32 v{t1}, 15, v{lane}")
    a(f"v_lshrrev_b32 v{t2}, 1, v{t1}")
    a(f"v_xor_b32 v{t2}, v{t2}, v{t0}")
    a(f"v_lshlrev_b32 v{t2}, 4, v{t2}")
    a(f"v_lshl_add_u32 v{t2}, v{t1}, 7, v{t2}")
    a(f"v_add_u32 v{vXr[0]}, s{sM0x}, v{t2}")
    a(f"v_xor_b32 v{t2}, 64, v{t2}")
    a(f"v_add_u32 v{vXr[1]}, s{sM0x}, v{t2}")
    a(f"v_lshrrev_b32 v{t2}, 3, v{t1}")
    a(f"v_and_b32 v{t1}, 7, v{t1}")
    a(f"v_lshlrev_b32 v{t1}, 3, v{t1}")
    a(f"v_lshl_add_u32 v{vsa}, v{t2}, 7, v{t1}")
    a(f"s_mul_i32 s{sT}, s{sWave}, 12")
    a(f"s_mul_i32 s{sOA}, s{sT}, {32*1280}")
    a(f"s_mul_i32 s{sT2}, s{sJD}, 160")
    a(f"s_add_u32 s{sOA}, s{sOA}, s{sT2}")
    a(f"s_mul_i32 s{sOB}, s{sTB}, 192")
    a(f"s_add_u32 s{sOB}, s{sOB}, s{sT}")
    a(f"s_lshl_b32 s{sOB}, s{sOB}, 10")
    a(f"s_add_u32 s{sOB}, s{sOB}, {WS_ACT}")
    a(f"v_lshlrev_b32 v{t0}, 3, v{t0}")

    tokA = {}; tokXr = {}
    def ops_ra(ks):
        c, e = ks // 2, ks % 2
        off = (c % 3) * W_SLOT + e * 6144
        out = []
        for rt in range(6):
            ad = (vE if rt % 2 == 0 else vO)[rt // 2]
            for h in range(2):
                def f(rt=rt, h=h, ad=ad):
                    a(f"ds_read_b64_tr_b16 {v(A[ks%2][rt] + 2*h, 2)}, v{ad} offset:{off + 768*h}")
                    tokA[(ks, rt)] = a.ltok()
                out.append(f)
        return out
    def ops_rx(c):
        out = []
        for e in range(2):
            for ct in range(2):
                def f(e=e, ct=ct):
                    a(f"ds_read_b128 {v(X[c%2][e][ct],4)}, v{vXr[e]} offset:{((2*c+ct) % NXU) * 2048}")
                    tokXr[c] = a.ltok()
                out.append(f)
        return out
    def mf(d, A_, B_, first):
        c = "0" if first else v(d, 4)
        a(f"v_mfma_f32_16x16x32_bf16 {v(d,4)}, {v(A_,4)}, {v(B_,4)}, {c}")
    wq = [0]
    tokWR = {}
    def ops_wr(n, lim=NWI):
        out = []
        for it_ in range(n):
            f_ = wq[0]
            if f_ >= lim: break
            def f(f_=f_, it_=it_):
                if f_ % 4 == 0 or it_ == 0: a(f"s_add_u32 s{sT2}, s{sOA}, {1024*(f_ - f_%4)}")
                a(f"buffer_load_dwordx4 {v(WR[f_],4)}, v{v16}, s[{sWS}:{sWS+3}], s{sT2} offen offset:{1024*(f_%4)} sc1")
                tokWR[f_] = a.vtok()
            out.append(f); wq[0] += 1
        return out
    sFB = 49
    def ld_w2flags():
        a(f"buffer_load_dword v{vfl}, v{vfa}, s[{sWS}:{sWS+3}], s{sFB} offen sc1")
    def ld_first(nl):
        a(f"v_mov_b32 v{vfl}, s{sTok}")
        a(f"s_mov_b64 exec, {hex((1 << nl) - 1)}")
        ld_w2flags()
        a("s_mov_b64 exec, -1")
    def ld_stats():
        for ct in range(2):
            a(f"buffer_load_dwordx2 {v(st[ct],2)}, v{vsa}, s[{sWS}:{sWS+3}], s{sT3} offen offset:{256*ct} sc1")
    tk = {}
    def op_tok():
        a(f"buffer_load_dword v{vtok}, v{vzero}, s[{sDBG}:{sDBG+3}], 0 offen sc1")
        tk["tok"] = a.vtok()
    def op_chk_tok():
        a.wait(vm=tk["tok"])
        check_token(a, vtok, vzero)
    def op_pace():
        a(f"v_mov_b32 v{vtok}, s{sTok}")
        a(f"s_lshl_b32 s{sT2}, s{sId}, 7")
        a(f"s_add_u32 s{sT2}, s{sT2}, {WS_FPACE}")
        a(f"s_cmp_eq_u32 s{sWave}, 0")
        a(f"s_cselect_b32 s{sT2}, s{sT2}, {WS_SIZE}")
        a("s_mov_b64 exec, 1")
        a(f"buffer_store_dword v{vtok}, v{vzero}, s[{sWS}:{sWS+3}], s{sT2} offen sc1")
        a("s_mov_b64 exec, -1")
    def op_stats():
        a(f"s_lshl_b32 s{sT3}, s{sRB}, 4")
        a(f"s_lshl_b32 s{sT2}, s{sWave}, 2")
        a(f"s_add_u32 s{sT3}, s{sT3}, s{sT2}")
        a(f"s_lshl_b32 s{sT3}, s{sT3}, 7")
        a(f"s_add_u32 s{sT3}, s{sT3}, {WS_STAT}")
        ld_stats()
        tk["st"] = a.vtok()
    def op_b1(P):
        def f():
            a(f"s_mul_i32 s{sT2}, s{sCB}, 192")
            a(f"s_lshl_b32 s{sT}, s{sP[P]}, 6")
            a(f"s_add_u32 s{sT}, s{sT}, s{sT2}")
            for o in range(2):
                a(f"buffer_load_dwordx2 {v(b1p[2*P+o],2)}, v{t0}, s[{sB1}:{sB1+3}], s{sT} offen offset:{32*o}")
        return f

    a("s_waitcnt lgkmcnt(0)")
    for P in range(3): op_b1(P)()
    a("s_waitcnt lgkmcnt(0)")
    a.wait(vm=max(tokW[0], tokXu[1]))
    for i in range(4): a(f"v_mov_b32 v{ones+i}, 0x3f803f80")
    a("s_barrier")
    stamp(a, 2)
    for f in ops_rx(0) + ops_ra(0) + ops_x(4) + ops_w(2): f()
    if PFA_ < 10: do_pf(PFA_, 10)
    op_pf2(0)()
    op_tok()
    extra = {9: [op_chk_tok], ENV("PACEKS", 13): [op_pace], 17: [op_stats]}
    for j in range(1, 8): extra.setdefault(ENV("PF2KS", 7) + j, []).append(op_pf2(j))
    if ENV("GPRIO2", 2): a(f"s_setprio {ENV('GPRIO2', 2)}")
    for ks in range(20):
        c, e = ks // 2, ks % 2
        first = ks == 0
        Xs = X[c % 2][e]; As = A[ks % 2]
        mlist = []
        for rt in range(6):
            for ct in range(2): mlist.append((rt, acc[rt][ct], As[rt], Xs[ct]))
            if rt < 2: mlist.append((rt, cs[rt], As[rt], ones))
        if e == 0:
            fill = ops_ra(ks + 1)
            dma = []
            for u in (2 * c + 5, 2 * c + 6):
                if u < 20: dma += ops_x(u)
            fl2 = []
            for i, f in enumerate(fill):
                fl2.append(f)
                if i % 2 == 1 and dma: fl2.append(dma.pop(0))
            fill = fl2 + dma + extra.get(ks, [])
            start = 0
            a.wait(lg=tokXr[c])
        else:
            fill = []
            if ks < 19:
                fill = ops_rx(c + 1) + ops_ra(ks + 1)
                if c + 3 < 10: fill += ops_w(c + 3)
            fill += extra.get(ks, [])
            start = 6 if ks < 19 else 0
        nslots = len(mlist) - start
        per = [len(fill) // nslots + (1 if i < len(fill) % nslots else 0) for i in range(nslots)]
        lastrt = -1
        for i, (rt, d, A_, B_) in enumerate(mlist):
            if e == 1 and ks < 19 and i == start:
                a.wait(vm=max(tokW[c + 1], tokXu[2 * c + 3]), lg=a.ltok())
                a("s_barrier")
                if ks in (5, 11): stamp(a, {5: 3, 11: 4}[ks])
                lastrt = 99
            if rt > lastrt:
                a.wait(lg=tokA[(ks, rt)]); lastrt = rt
            mf(d, A_, B_, first)
            if i >= start:
                for _ in range(per[i - start]): fill.pop(0)()
        assert not fill
    tokst = tk["st"]
    stamp(a, 5)

    E = Alloc(pool, limit=vpf)
    csv = [E(4, 4) for _ in range(6)]
    b1v = [E(4, 4) for _ in range(6)]
    rr = [E(2, 2) for _ in range(2)]
    rm = [st[0], st[1]]
    tmp = [E(2, 2) for _ in range(8)]
    outp = cs
    vcs = E()
    CSOFF = 2 * W_SLOT
    a(f"v_lshrrev_b32 v{t0}, 4, v{lane}")
    a(f"v_lshlrev_b32 v{vcs}, 4, v{t0}")
    a(f"s_lshl_b32 s{sT}, s{sP[0]}, 7")
    a(f"v_add_u32 v{t1}, s{sT}, v{vcs}")
    for o in range(2):
        a(f"ds_write_b128 v{t1}, {v(cs[o],4)} offset:{CSOFF + 64*o}")
    a.wait(vm=tokst)
    check_flags(a, [st[0] + 1, st[1] + 1], vsa, ld_stats)
    a("s_waitcnt lgkmcnt(0)")
    a("s_barrier")
    for P in range(3):
        a(f"s_lshl_b32 s{sT}, s{sP[P]}, 7")
        a(f"v_add_u32 v{t1}, s{sT}, v{vcs}")
        for o in range(2):
            a(f"ds_read_b128 {v(csv[2*P+o],4)}, v{t1} offset:{CSOFF + 64*o}")
    for ct in range(2):
        a(f"v_and_b32 v{t1}, 0xffff0000, v{st[ct]}")
        a(f"v_rcp_f32 v{rr[ct]}, v{t1}")
        a(f"v_lshlrev_b32 v{t2}, 16, v{st[ct]}")
        a(f"v_mul_f32 v{rr[ct]+1}, v{t2}, v{rr[ct]}")
        a(f"v_sub_f32 v{rm[ct]}, 0, v{rr[ct]+1}")
    for rt in range(6):
        a(f"v_lshlrev_b32 v{b1v[rt]}, 16, v{b1p[rt]}")
        a(f"v_and_b32 v{b1v[rt]+1}, 0xffff0000, v{b1p[rt]}")
        a(f"v_lshlrev_b32 v{b1v[rt]+2}, 16, v{b1p[rt]+1}")
        a(f"v_and_b32 v{b1v[rt]+3}, 0xffff0000, v{b1p[rt]+1}")
    a(f"s_lshl_b32 s{sT}, s{sRB}, 3")
    a(f"s_lshl_b32 s{sT2}, s{sWave}, 1")
    a(f"s_add_u32 s{sT}, s{sT}, s{sT2}")
    a(f"s_mul_i32 s{sT}, s{sT}, 48")
    a(f"s_mul_i32 s{sT2}, s{sCB}, 3")
    a(f"s_add_u32 s{sT}, s{sT}, s{sT2}")
    for P in range(3):
        a(f"s_add_u32 s{sP[P]}, s{sP[P]}, s{sT}")
        a(f"s_lshl_b32 s{sP[P]}, s{sP[P]}, 10")
        a(f"s_add_u32 s{sP[P]}, s{sP[P]}, {WS_ACT}")
    a(f"s_mov_b32 s50, {f32(LOG2E)}"); a(f"s_mov_b32 s51, {f32(LOG2E)}")
    Q = Alloc(base2, limit=256)
    acc2 = [[Q(4, 4) for ct in range(4)] for rt in range(5)]
    NST = 3
    FB = [[Q(4, 4) for _ in range(4)] for _ in range(NST)]
    vB = [Q() for _ in range(4)]
    vxo = Q(); vxo2 = Q()
    vw = [Q() for _ in range(5)]; vw8 = Q(); vw4 = Q()
    a(f"s_mul_i32 s{sM0w}, s{sWave}, 20480")
    for i in range(5):
        a(f"v_add_u32 v{t0}, {64*i}, v{lane}")
        a(f"v_mul_u32_u24 v{t1}, 0xcccd, v{t0}")
        a(f"v_lshrrev_b32 v{t1}, 19, v{t1}")
        a(f"v_mul_u32_u24 v{t2}, 10, v{t1}")
        a(f"v_sub_u32 v{t2}, v{t0}, v{t2}")
        a(f"v_mul_u32_u24 v{t1}, 1280, v{t1}")
        a(f"v_lshl_add_u32 v{vw[i]}, v{t2}, 4, v{t1}")
        if 0 < i < 4: a(f"v_subrev_u32 v{vw[i]}, {1024*i}, v{vw[i]}")
    tokD = {}
    def ops_dma(k):
        out = []
        for i in range(5):
            def f(i=i):
                if i == 0:
                    a(f"s_add_u32 m0, s{sM0w}, {5120*(k%4)}")
                    a(f"s_add_u32 s{sXoff}, s{sOA}, {32*1280*k}")
                if i == 4: a(f"s_add_u32 m0, s{sM0w}, {5120*(k%4) + 4096}")
                a(f"buffer_load_dwordx4 v{vw[i]}, s[{sW2}:{sW2+3}], s{sXoff} offen offset:{1024*i if i < 4 else 0} lds")
                tokD[k] = a.vtok()
            out.append(f)
        return out
    tokL = {}
    def op_rw(k, rt):
        o = WR[5 * (k % 5) + rt]
        for e in range(2):
            if rt < 4: a(f"ds_read_b64_tr_b16 {v(o+2*e,2)}, v{vw8} offset:{5120*(k%4) + 64*(rt>>1) + 8*(rt&1) + 2560*e}")
            else: a(f"ds_read_b64_tr_b16 {v(o+2*e,2)}, v{vw4} offset:{5120*(k%4) + 128 + 2560*e}")
        tokL[(k, rt)] = a.ltok()
    a("s_waitcnt lgkmcnt(0)")
    a("s_barrier")
    stamp(a, 6)
    k = 0
    for P in range(3):
        for ct in range(2):
            op = outp[k % 2]; k += 1
            if k == 1: dq = sum([ops_dma(k_) for k_ in range(4)], [])
            def dq_pop():
                if dq: dq.pop(0)()
            dq_pop()
            hs = []
            for o in range(2):
                rt = 2 * P + o
                for hf in range(2):
                    h = acc[rt][ct] + 2 * hf
                    tt = tmp[len(hs)]
                    a(f"v_pk_fma_f32 {v(tt,2)}, {v(csv[rt]+2*hf,2)}, {v(rm[ct],2)}, {v(b1v[rt]+2*hf,2)} op_sel_hi:[1,0,1]")
                    a(f"v_pk_fma_f32 {v(h,2)}, {v(h,2)}, {v(rr[ct],2)}, {v(tt,2)} op_sel:[0,0,0] op_sel_hi:[1,0,1]")
                    hs.append(h)
            for i, h in enumerate(hs): a(f"v_pk_mul_f32 {v(tmp[i],2)}, {v(h,2)}, s[50:51]")
            for i, h in enumerate(hs):
                a(f"v_min_f32 v{tmp[i]}, {f32(30.0)}, v{tmp[i]}")
                a(f"v_min_f32 v{tmp[i]+1}, {f32(30.0)}, v{tmp[i]+1}")
            dq_pop()
            for i, h in enumerate(hs):
                a(f"v_exp_f32 v{tmp[i]}, v{tmp[i]}")
                a(f"v_exp_f32 v{tmp[i]+1}, v{tmp[i]+1}")
            dq_pop()
            for i, h in enumerate(hs): a(f"v_pk_add_f32 {v(tmp[4+i],2)}, {v(tmp[i],2)}, 2.0 op_sel_hi:[1,0]")
            for i, h in enumerate(hs): a(f"v_pk_mul_f32 {v(tmp[i],2)}, {v(tmp[i],2)}, {v(tmp[4+i],2)}")
            for i, h in enumerate(hs): a(f"v_pk_add_f32 {v(tmp[4+i],2)}, {v(tmp[i],2)}, 2.0 op_sel_hi:[1,0]")
            for i, h in enumerate(hs):
                a(f"v_rcp_f32 v{tmp[4+i]}, v{tmp[4+i]}")
                a(f"v_rcp_f32 v{tmp[4+i]+1}, v{tmp[4+i]+1}")
            dq_pop()
            for i, h in enumerate(hs): a(f"v_pk_mul_f32 {v(h,2)}, {v(h,2)}, {v(tmp[i],2)}")
            for i, h in enumerate(hs): a(f"v_pk_mul_f32 {v(h,2)}, {v(h,2)}, {v(tmp[4+i],2)}")
            for i, h in enumerate(hs): a(f"v_cvt_pk_bf16_f32 v{op+i}, v{h}, v{h+1}")
            if ct == 0:
                a(f"buffer_store_dwordx4 {v(op,4)}, v{v16}, s[{sWS}:{sWS+3}], s{sP[P]} offen sc1")
            else:
                a(f"s_add_u32 s{sT}, s{sP[P]}, {48*1024}")
                a(f"buffer_store_dwordx4 {v(op,4)}, v{v16}, s[{sWS}:{sWS+3}], s{sT} offen sc1")
    stamp(a, 7)
    a(f"s_lshl_b32 s{sT}, s{sRB}, 4")
    a(f"s_add_u32 s{sT}, s{sT}, s{sCB}")
    a(f"s_lshl_b32 s{sT}, s{sT}, 2")
    a(f"s_add_u32 s{sT}, s{sT}, s{sWave}")
    a(f"s_lshl_b32 s{sT}, s{sT}, 7")
    a(f"s_add_u32 s{sT}, s{sT}, {WS_FACT}")
    a(f"v_mov_b32 v{vtok}, s{sTok}")

    for ct in range(4):
        a(f"s_add_u32 s{sT2}, s{sWave}, {ct}")
        a(f"s_and_b32 s{sT2}, s{sT2}, 3")
        a(f"s_mul_i32 s{sT2}, s{sT2}, {48*1024}")
        a(f"v_add_u32 v{vB[ct]}, s{sT2}, v{v16}")
    a(f"v_lshrrev_b32 v{t1}, 2, v{lane}")
    a(f"v_mul_u32_u24 v{t1}, 160, v{t1}")
    a(f"v_add_u32 v{t1}, s{sM0w}, v{t1}")
    a(f"v_and_b32 v{t2}, 3, v{lane}")
    a(f"v_lshl_add_u32 v{vw8}, v{t2}, 4, v{t1}")
    a(f"v_lshl_add_u32 v{vw4}, v{t2}, 3, v{t1}")
    a.wait(vm=tokD[3])
    for k in range(4):
        for rt in range(5): op_rw(k, rt)
    a("s_waitcnt vmcnt(0)")
    a("s_mov_b64 exec, 1")
    a(f"buffer_store_dword v{vtok}, v{vzero}, s[{sWS}:{sWS+3}], s{sT} offen sc1")
    a("s_mov_b64 exec, -1")
    if ENV("GPRIO2", 2): a(f"s_setprio {ENV('GPRIO3', 0)}")
    stamp(a, 8)
    a("s_waitcnt lgkmcnt(0)")
    for k in range(4, 8):
        for f in ops_dma(k): f()
    a.wait(vm=tokD[4])
    for rt in range(5): op_rw(4, rt)
    a(f"v_and_b32 v{t0}, 3, v{lane}")
    a(f"v_bfe_u32 v{t1}, v{lane}, 2, 1")
    a(f"v_lshl_add_u32 v{vfa}, v{t0}, 2, v{t1}")
    a(f"v_lshlrev_b32 v{vfa}, 7, v{vfa}")
    a(f"s_lshr_b32 s{sFB}, s{sTB}, 1")
    a(f"s_lshl_b32 s{sFB}, s{sFB}, 2")
    a(f"s_add_u32 s{sFB}, s{sFB}, s{sWave}")
    a(f"s_lshl_b32 s{sFB}, s{sFB}, 3")
    a(f"s_and_b32 s{sT2}, s{sTB}, 1")
    a(f"s_add_u32 s{sFB}, s{sFB}, s{sT2}")
    a(f"s_lshl_b32 s{sFB}, s{sFB}, 8")
    a(f"s_add_u32 s{sFB}, s{sFB}, {WS_FACT}")
    a("s_waitcnt lgkmcnt(0)")
    for f in ops_dma(8): f()
    ld_first(8)
    a(f"v_mul_u32_u24 v{t0}, {48*1024}, v{t0}")
    a(f"v_lshrrev_b32 v{t1}, 2, v{lane}")
    a(f"v_lshl_add_u32 v{t0}, v{t1}, 10, v{t0}")
    a(f"s_lshl_b32 s{sT2}, s{sJD}, 7")
    a(f"s_add_u32 s{sT2}, s{sT2}, s{sOB}")
    stamp(a, 14)
    a("s_waitcnt vmcnt(0)")
    check_flags(a, [vfl], vfa, ld_w2flags, sleep=ENV("ASLEEP", 3))
    stamp(a, 9)
    if ENV("GPRIO2", 2): a(f"s_setprio {ENV('GPRIO4', 0)}")
    if ENV("PFA", 1):
        a("s_mov_b32 exec_hi, 0xffff")
        a(f"buffer_load_dword v{t3}, v{t0}, s[{sWS}:{sWS+3}], s{sT2} offen sc1")
        a("s_mov_b32 exec_hi, -1")
    tokB = {}
    def issue_b(k):
        for ct in range(4):
            a(f"buffer_load_dwordx4 {v(FB[k%NST][ct],4)}, v{vB[ct]}, s[{sWS}:{sWS+3}], s{sOB} offen sc1")
        tokB[k] = a.vtok()
        if k < 11: a(f"s_add_u32 s{sOB}, s{sOB}, 1024")
    for k in range(NST): issue_b(k)
    a(f"s_lshl_b32 s{sT}, s{sTB}, 6")
    a(f"s_lshl_b32 s{sT2}, s{sWave}, 4")
    a(f"s_add_u32 s{sT}, s{sT}, s{sT2}")
    a(f"v_and_b32 v{t0}, 15, v{lane}")
    a(f"v_add_u32 v{t0}, s{sT}, v{t0}")
    a(f"v_mul_u32_u24 v{t1}, 1280, v{t0}")
    a(f"s_mul_i32 s{sT2}, s{sJD}, 160")
    a(f"v_add_u32 v{t1}, s{sT2}, v{t1}")
    a(f"v_lshrrev_b32 v{t2}, 4, v{lane}")
    a(f"v_lshl_add_u32 v{vxo}, v{t2}, 4, v{t1}")
    a(f"v_lshl_add_u32 v{vxo2}, v{t2}, 3, v{t1}")
    a(f"v_min_u32 v{vfa}, 19, v{lane}")
    a(f"v_lshlrev_b32 v{vfa}, 7, v{vfa}")
    a(f"s_mul_i32 s{sT3}, s{sJD}, 80")
    a(f"s_mul_i32 s{sT}, s{sWave}, 20")
    a(f"s_add_u32 s{sWoff}, s{sT3}, s{sT}")
    a(f"s_lshl_b32 s{sT3}, s{sWoff}, 7")
    a(f"s_lshr_b32 s{sT}, s{sTB}, 3")
    a(f"s_lshl_b32 s{sT}, s{sT}, 2")
    a(f"s_add_u32 s{sT3}, s{sT3}, s{sT}")
    a(f"s_add_u32 s{sFB}, s{sT3}, {WS_FST}")
    slot = {f: f % 25 for f in range(60)}
    for k in range(12):
        dma = ops_dma(k + 8) if 1 <= k <= 3 else []
        for rt in range(5):
            if rt == 0: a.wait(vm=tokB[k])
            if k >= 5: a.wait(lg=tokL[(k, rt)])
            if rt == 1 and dma: a.wait(lg=tokL[(k + 4, 4)])
            for ct in range(4):
                c = "0" if k == 0 else v(acc2[rt][ct], 4)
                a(f"v_mfma_f32_16x16x32_bf16 {v(acc2[rt][ct],4)}, {v(WR[slot[5*k+rt]],4)}, {v(FB[k%NST][ct],4)}, {c}")
                if ct == 0 and rt >= 1 and k + 5 < 12:
                    if rt == 1 and k + 5 >= 9: a.wait(vm=tokD[k + 5])
                    op_rw(k + 5, rt - 1)
                if ct == 2 and rt >= 1 and dma: dma.pop(0)()
        if k + 5 < 12: op_rw(k + 5, 4)
        while dma: dma.pop(0)()
        if k in (0, 5): stamp(a, {0: 10, 5: 11}[k])
        if k + NST < 12: issue_b(k + NST)
        if k == 8:
            ld_first(20); tokfl = a.vtok()
            xr = WR[slot[35]]
            xq = [WR[slot[35]], WR[slot[36]], WR[slot[37]]]
            a(f"buffer_load_dwordx4 {v(xq[0],4)}, v{vxo}, s[{sX}:{sX+3}], 0 offen")
            a(f"buffer_load_dwordx4 {v(xq[1],4)}, v{vxo}, s[{sX}:{sX+3}], 0 offen offset:64")
            a(f"buffer_load_dwordx2 {v(xq[2],2)}, v{vxo2}, s[{sX}:{sX+3}], 0 offen offset:128")
            a("s_waitcnt lgkmcnt(0)")
            a("s_barrier")
        if k == 10:
            a.wait(vm=tokfl)
            check_flags(a, [vfl], vfa, ld_w2flags)
            sq = [WR[slot[40]], WR[slot[41]], WR[slot[42]]]
            vso = WR[slot[43]]; vsw = vso + 1
            a(f"v_lshrrev_b32 v{t0}, 3, v{lane}")
            a(f"v_and_b32 v{t1}, 7, v{lane}")
            a(f"v_lshlrev_b32 v{t1}, 4, v{t1}")
            a(f"v_lshl_add_u32 v{vso}, v{t0}, 12, v{t1}")
            a(f"v_mul_u32_u24 v{vsw}, 160, v{t0}")
            a(f"v_add_u32 v{vsw}, v{vsw}, v{t1}")
            a(f"s_mul_i32 s{sT}, s{sWave}, {20*160}")
            a(f"v_add_u32 v{vsw}, s{sT}, v{vsw}")
            a(f"s_lshl_b32 s{sT}, s{sWoff}, 12")
            a(f"s_lshl_b32 s{sT2}, s{sTB}, 7")
            a(f"s_add_u32 s{sT}, s{sT}, s{sT2}")
            a(f"s_add_u32 s{sT}, s{sT}, {WS_ST}")
            for i in range(3):
                if i == 2: a("s_mov_b32 exec_hi, 0")
                a(f"buffer_load_dwordx4 {v(sq[i],4)}, v{vso}, s[{sWS}:{sWS+3}], s{sT} offen sc1")
                if i < 2: a(f"s_add_u32 s{sT}, s{sT}, {8*4096}")
            a("s_mov_b32 exec_hi, -1")
            toks_ = a.vtok()
    stamp(a, 12)
    STOFF = 61440
    for ct in range(1, 4):
        a(f"s_add_u32 s{sT2}, s{sWave}, {ct}")
        a(f"s_and_b32 s{sT2}, s{sT2}, 3")
        a(f"s_mul_i32 s{sT2}, s{sT2}, 15360")
        a(f"v_add_u32 v{t3}, s{sT2}, v{v16}")
        for rt in range(5):
            a(f"ds_write_b128 v{t3}, {v(acc2[rt][ct],4)} offset:{(ct-1)*5120 + rt*1024}")
    a("s_waitcnt vmcnt(0)")
    for i in range(3):
        if i == 2: a("s_mov_b32 exec_hi, 0")
        a(f"ds_write_b128 v{vsw}, {v(sq[i],4)} offset:{STOFF + 8*160*i}")
    a("s_mov_b32 exec_hi, -1")
    Pr = [[acc2[rt][p + 1] for rt in range(5)] for p in range(3)]
    T = [FB[i // 8][(i // 2) % 4] + 2 * (i % 2) for i in range(10)]
    sv = [FB[2][i // 2] + 2 * (i % 2) for i in range(5)]
    op = [FB[1][1], FB[1][2], FB[1][3]]
    vt8 = vB[0]; vt4 = vB[1]
    a(f"v_bfe_u32 v{t0}, v{lane}, 2, 2")
    a(f"v_lshl_add_u32 v{t1}, v{t2}, 3, v{t0}")
    a(f"v_lshl_add_u32 v{t0}, v{t2}, 2, v{t0}")
    a(f"v_mul_u32_u24 v{t1}, 160, v{t1}")
    a(f"v_mul_u32_u24 v{t0}, 160, v{t0}")
    a(f"v_and_b32 v{t3}, 3, v{lane}")
    a(f"s_lshl_b32 s{sT}, s{sWave}, 5")
    a(f"s_add_u32 s{sT}, s{sT}, {STOFF}")
    a(f"v_lshl_add_u32 v{t3}, v{t3}, 3, s{sT}")
    a(f"v_add_u32 v{vt8}, v{t1}, v{t3}")
    a(f"v_add_u32 v{vt4}, v{t0}, v{t3}")
    a(f"s_mul_i32 s{sT2}, s{sWave}, 15360")
    a(f"v_add_u32 v{t3}, s{sT2}, v{v16}")
    a(f"s_mov_b32 s50, {f32(-LOG2E)}"); a(f"s_mov_b32 s51, {f32(-LOG2E)}")
    a("s_waitcnt lgkmcnt(0)")
    a("s_barrier")
    stamp(a, 13)
    tk = {}
    for rt in range(5):
        for p in range(3):
            a(f"ds_read_b128 {v(Pr[p][rt],4)}, v{t3} offset:{p*5120 + rt*1024}")
        tk[rt] = a.ltok()
    for rt in range(5):
        if rt < 4: a(f"ds_read_b64_tr_b16 {v(sv[rt],2)}, v{vt8} offset:{160*(32*(rt>>1) + 4*(rt&1))}")
        else: a(f"ds_read_b64_tr_b16 {v(sv[rt],2)}, v{vt4} offset:{160*64}")
    o2 = []
    for rt in range(5):
        a.wait(lg=tk[rt])
        for hf in range(2):
            d = acc2[rt][0] + 2 * hf
            for p in range(3):
                a(f"v_pk_add_f32 {v(d,2)}, {v(d,2)}, {v(Pr[p][rt]+2*hf,2)}")
            o2.append(d)
    for i, d in enumerate(o2):
        a(f"v_cvt_pk_bf16_f32 v{T[i]}, v{d}, v{d+1}")
        a(f"v_lshlrev_b32 v{d}, 16, v{T[i]}")
        a(f"v_and_b32 v{d+1}, 0xffff0000, v{T[i]}")
        a(f"v_pk_mul_f32 {v(T[i],2)}, {v(d,2)}, s[50:51]")
    for i, d in enumerate(o2):
        a(f"v_exp_f32 v{T[i]}, v{T[i]}")
        a(f"v_exp_f32 v{T[i]+1}, v{T[i]+1}")
    for i, d in enumerate(o2): a(f"v_pk_add_f32 {v(T[i],2)}, {v(T[i],2)}, 1.0 op_sel_hi:[1,0]")
    for i, d in enumerate(o2):
        a(f"v_rcp_f32 v{T[i]}, v{T[i]}")
        a(f"v_rcp_f32 v{T[i]+1}, v{T[i]+1}")
    a("s_waitcnt lgkmcnt(0)")
    for i, d in enumerate(o2):
        s_ = sv[i // 2] + i % 2
        x_ = xq[i // 4] + i % 4
        U_ = Pr[0][i // 2] + 2 * (i % 2)
        a(f"v_pk_mul_f32 {v(d,2)}, {v(d,2)}, {v(T[i],2)}")
        a(f"v_cvt_pk_bf16_f32 v{T[i]}, v{d}, v{d+1}")
        a(f"v_lshlrev_b32 v{d}, 16, v{T[i]}")
        a(f"v_and_b32 v{d+1}, 0xffff0000, v{T[i]}")
        a(f"v_lshlrev_b32 v{U_}, 16, v{s_}")
        a(f"v_and_b32 v{U_+1}, 0xffff0000, v{s_}")
        a(f"v_pk_mul_f32 {v(d,2)}, {v(d,2)}, {v(U_,2)}")
        a(f"v_cvt_pk_bf16_f32 v{T[i]}, v{d}, v{d+1}")
        a(f"v_lshlrev_b32 v{d}, 16, v{T[i]}")
        a(f"v_and_b32 v{d+1}, 0xffff0000, v{T[i]}")
        a(f"v_lshlrev_b32 v{U_}, 16, v{x_}")
        a(f"v_and_b32 v{U_+1}, 0xffff0000, v{x_}")
        a(f"v_pk_add_f32 {v(d,2)}, {v(d,2)}, {v(U_,2)}")
        a(f"v_cvt_pk_bf16_f32 v{op[i//4] + i%4}, v{d}, v{d+1}")
        if i == 3: a(f"buffer_store_dwordx4 {v(op[0],4)}, v{vxo}, s[{sOUT}:{sOUT+3}], 0 offen")
        if i == 7: a(f"buffer_store_dwordx4 {v(op[1],4)}, v{vxo}, s[{sOUT}:{sOUT+3}], 0 offen offset:64")
    a(f"buffer_store_dwordx2 {v(op[2],2)}, v{vxo2}, s[{sOUT}:{sOUT+3}], 0 offen offset:128")
    stamp_end(a, sWave)
    return max(R.hi, E.hi, Q.hi)

def main(out):
    ref = open(f"cdna_kernels/{NAME}.s.ref").read().split("\n")
    hdr = [l for l in ref if l.startswith(";") and "@launch" not in l]
    hdr.append(f"; @launch grid=(512,1,1) block=(256,1,1) lds={LDS_BYTES}")
    a = Asm()
    a.raw(f'.amdgcn_target "amdgcn-amd-amdhsa--gfx950"\n.text\n.globl {KN}\n.p2align 8\n.type {KN},@function')
    a.label(KN)
    a("s_cmp_lt_u32 s2, 256")
    a("s_cbranch_scc1 " + ("K_exit" if ENV("NOS", 0) else "S_role"))
    a(f"s_cmp_ge_u32 s2, {256 if ENV('NOG', 0) else 512}")
    a("s_cbranch_scc1 K_exit")
    hg = g_role(a)
    a.label("S_role"); a.flush_hist()
    hs = s_role(a)
    a.label("K_exit")
    a("s_endpgm")
    a.raw(".p2align 15")
    print("vgprs", hg, hs, "nops", a.nnop, "lines", len(a.items), file=sys.stderr)
    kd = f""".section .rodata,"a"
.p2align 6
.amdhsa_kernel {KN}
  .amdhsa_next_free_vgpr 256
  .amdhsa_next_free_sgpr {102 if STAMPS else 64}
  .amdhsa_accum_offset 256
  .amdhsa_group_segment_fixed_size 0
  .amdhsa_kernarg_size 128
  .amdhsa_user_sgpr_count 2
  .amdhsa_user_sgpr_kernarg_segment_ptr 1
  .amdhsa_system_sgpr_workgroup_id_x 1
  .amdhsa_float_denorm_mode_32 3
  .amdhsa_float_denorm_mode_16_64 3
.end_amdhsa_kernel
"""
    open(out, "w").write("\n".join(hdr) + "\n" + a.text() + kd)

if __name__ == "__main__":
    main(sys.argv[1] if len(sys.argv) > 1 else f"cdna_kernels/{NAME}.s")
```

```python
import sys, os, struct, math
sys.path.insert(0, os.path.dirname(os.path.abspath(__file__)))
from asmlib import *

NAME = "recurrent_scan__ssm_conv_s4__dense_activation_mish__prompt"
KN = NAME + "_kernel"
L, D, N, F = 2048, 640, 192, 1536
ENV = lambda k, d: int(os.environ.get(k, str(d)))
STAMPS = ENV("STAMPS", 0)

WS_XT2 = 0x0000000
WS_ST  = 0x0400000
WS_W2A = 0x0800000
WS_ACT = 0x0C00000
WS_STAT = 0x1400000
WS_FLN = 0x1500000
WS_FPACE = 0x1510000
WS_FACT = 0x1520000
WS_FST = 0x1560000
WS_SIZE = 0x1600000
WS_STAMP = 0x4000000
LDS_BYTES = 81920
SPIN_MAX = 0x4000

def f32(x): return "0x%08x" % struct.unpack("<I", struct.pack("<f", x))[0]
LOG2E = 1.4426950408889634
LN2 = 0.6931471805599453

def srd(a, sreg, size):
    a(f"s_mov_b32 s{sreg+2}, {size}")
    a(f"s_mov_b32 s{sreg+3}, 0x20000")

def bf16r(a, dst, src):
    a(f"v_cvt_pk_bf16_f32 v{dst}, v{src}, v{src}")
    a(f"v_and_b32 v{dst}, 0xffff0000, v{dst}")

_sn = [0]
def stamp_begin(a):
    _sn[0] = 0
    if STAMPS:
        a("s_memrealtime s[60:61]")
        for i in range(64, 96, 2): a(f"s_mov_b64 s[{i}:{i+1}], 0")
        a("s_memtime s[64:65]")
        _sn[0] = 1
def stamp(a, n=None):
    if STAMPS:
        if n is None:
            n = _sn[0]; _sn[0] += 1
        assert n < 16
        a(f"s_memtime s[{64+2*n}:{65+2*n}]")
def stamp_end(a, sWave):
    if STAMPS:
        stamp(a, 15)
        a("s_memrealtime s[62:63]")
        a("s_load_dwordx2 s[96:97], s[0:1], 120")
        a("s_waitcnt lgkmcnt(0)")
        a(f"s_add_u32 s96, s96, {WS_STAMP}")
        a("s_addc_u32 s97, s97, 0")
        a("s_mov_b32 s98, 0x100000")
        a("s_mov_b32 s99, 0x20000")
        a("s_lshl_b32 s59, s2, 10")
        a(f"s_lshl_b32 s58, s{sWave}, 8")
        a("s_add_u32 s59, s59, s58")
        a("s_mov_b64 exec, 1")
        a("v_mov_b32 v1, s59")
        a("v_mov_b32 v2, s60"); a("v_mov_b32 v3, s62")
        a("buffer_store_dwordx2 v[2:3], v1, s[96:99], 0 offen")
        for n in range(16):
            a(f"s_sub_u32 s59, s{64+2*n}, s64")
            a(f"s_cmp_eq_u32 s{64+2*n}, 0")
            a(f"s_cselect_b32 s59, 0, s59")
            a(f"v_mov_b32 v{4 + n}, s59")
            a(f"buffer_store_dword v{4 + n}, v1, s[96:99], 0 offen offset:{16+4*n}")
    a("s_endpgm")

_lab = [0]
def newlab(p):
    _lab[0] += 1
    return f"{p}_{_lab[0]}"

sWS, sDBG = 4, 8
sWave, sTok, sSpin = 12, 13, 14
sT, sT2, sT3 = 15, 16, 17

def check_token(a, vtok, vzero):
    done = newlab("TK"); loop = newlab("TL")
    if ENV("NOS", 0) or os.environ.get("ONLY", ""):
        a(f"s_mov_b32 s{sTok}, 0x12345"); return
    a(f"v_readfirstlane_b32 s{sTok}, v{vtok}")
    a(f"s_cmp_lg_u32 s{sTok}, 0")
    a(f"s_cbranch_scc1 {done}")
    a(f"s_mov_b32 s{sSpin}, 0")
    a.label(loop)
    a("s_sleep 2")
    a(f"buffer_load_dword v{vtok}, v{vzero}, s[{sDBG}:{sDBG+3}], 0 offen sc1"); a.vm -= 1
    a("s_waitcnt vmcnt(0)")
    a(f"v_readfirstlane_b32 s{sTok}, v{vtok}")
    a(f"s_cmp_lg_u32 s{sTok}, 0")
    a(f"s_cbranch_scc1 {done}")
    a(f"s_add_u32 s{sSpin}, s{sSpin}, 1")
    a(f"s_cmp_lt_u32 s{sSpin}, {SPIN_MAX}")
    a(f"s_cbranch_scc1 {loop}")
    a.label(done)

def check_flags(a, vfl, vaddr, reload, sleep=2):
    if (ENV("NOS", 0) or os.environ.get("ONLY", "")) and sleep != 3: return
    done = newlab("FD"); loop = newlab("FL")
    def cmpall():
        a(f"v_cmp_ne_u32 vcc, s{sTok}, v{vfl[0]}")
        for r_ in vfl[1:]:
            a(f"v_cmp_ne_u32 s[18:19], s{sTok}, v{r_}")
            a("s_or_b64 vcc, vcc, s[18:19]")
        a("s_cmp_eq_u64 vcc, 0")
    cmpall()
    a(f"s_cbranch_scc1 {done}")
    a(f"s_mov_b32 s{sSpin}, 0")
    a.label(loop)
    a(f"s_sleep {sleep}")
    n0 = a.vm
    a("s_mov_b64 exec, vcc")
    reload()
    a("s_mov_b64 exec, -1")
    a.vm = n0
    a("s_waitcnt vmcnt(0)")
    cmpall()
    a(f"s_cbranch_scc1 {done}")
    a(f"s_add_u32 s{sSpin}, s{sSpin}, 1")
    a(f"s_cmp_lt_u32 s{sSpin}, {SPIN_MAX}")
    a(f"s_cbranch_scc1 {loop}")
    a.label(done)

CV_S = 4160
CH_REG = 64 * 272
CV_U = [3 * CH_REG + 512 + 4608 * i for i in range(3)]
LN_OFF = 3 * CH_REG + 3 * 4608
LN_S = 1344
PACE_OFF = LDS_BYTES - 16
KG_S = 272
COARSE = list(range(8)) + [256, 258, 260, 262, 512, 516, 768, 772, 1024, 1280, 1536, 1792, 2048]
assert LN_OFF + 8 * LN_S <= LDS_BYTES and 4 * CV_S <= CH_REG

def s_role(a):
    sX_, sA, sXc = 20, 24, 25
    sD = [26, 27, 28]
    sCnt, sPar, sSlot, sRound, sHeavy = 29, 30, 31, 56, 57
    SP = [32, 36, 40, 44, 48, 52]
    R = Alloc(1)
    lane = R(); t0 = R(); t1 = R(); t2 = R(); t3 = R(); vzero = R(); vtok = R(); v16 = R()
    vdk = [R(), R()]
    base = R.mark()
    stamp_begin(a)
    a(f"s_load_dwordx2 s[{sWS}:{sWS+1}], s[0:1], 120")
    a(f"s_load_dwordx2 s[{sDBG}:{sDBG+1}], s[0:1], 112")
    a(f"v_lshrrev_b32 v{t0}, 6, v0")
    a(f"v_and_b32 v{lane}, 63, v0")
    a(f"v_readfirstlane_b32 s{sWave}, v{t0}")
    srd(a, sWS, WS_SIZE); srd(a, sDBG, 256)
    a(f"s_and_b32 s{sXc}, s2, 7")
    a(f"s_lshr_b32 s{sA}, s2, 3")
    a(f"s_lshl_b32 s{sD[0]}, s{sXc}, 6")
    a(f"s_lshl_b32 s{sT}, s{sA}, 1")
    a(f"s_add_u32 s{sD[0]}, s{sD[0]}, s{sT}")
    a(f"s_add_u32 s{sD[1]}, s{sD[0]}, 1")
    a(f"s_lshl_b32 s{sD[2]}, s{sXc}, 4")
    a(f"s_add_u32 s{sD[2]}, s{sD[2]}, s{sA}")
    a(f"s_add_u32 s{sD[2]}, s{sD[2]}, 512")
    a(f"s_cmp_lt_u32 s{sA}, 16")
    a(f"s_cselect_b32 s{sHeavy}, 1, 0")
    a(f"v_mov_b32 v{vzero}, 0")
    a(f"v_lshlrev_b32 v{v16}, 4, v{lane}")
    ONLY = os.environ.get("ONLY", "")
    if ENV("SPRIO0", 0): a(f"s_setprio {ENV('SPRIO0', 0)}")
    a(f"s_lshr_b32 s{sSlot}, s{sWave}, 1")
    a(f"s_cmp_eq_u32 s{sWave}, 3")
    a("s_cbranch_scc1 " + ("S_ln" if (not ONLY or "l" in ONLY) else "K_exit"))
    a(f"s_add_u32 s{sT}, s{sHeavy}, 2")
    a(f"s_cmp_ge_u32 s{sWave}, s{sT}")
    a("s_cbranch_scc1 " + ("S_w2t" if (not ONLY or "w" in ONLY) else "K_exit"))
    if ONLY and "k" not in ONLY: a("s_branch K_exit")

    P = [[R() for _ in range(6)] for _ in range(3)]
    vdt = R(); vwr = R(); vrd = R(); voff = R()
    accK = R(16, 4)
    FA = [R(4, 4) for _ in range(8)]; FB = [R(4, 4) for _ in range(8)]
    pr = lambda: R(2, 2)
    l1, l8, l256, W, E0, E1, E2, T, T2, G2, G4, G6, V, a2b = [pr() for _ in range(14)]
    Qr = [R(4, 4) for _ in range(2)]; Qi = [R(4, 4) for _ in range(2)]
    Cr = R(16, 4); Ci = R(16, 4)
    sDd, sBase = 58, 59
    if STAMPS: sDd, sBase = 100, 101
    for i, sr in enumerate(SP):
        a(f"s_load_dwordx2 s[{sr}:{sr+1}], s[0:1], {8 + 8*i}")
    a(f"s_load_dwordx2 s[{sX_}:{sX_+1}], s[0:1], 56")
    a(f"s_load_dwordx2 s[18:19], s[0:1], 64")
    a(f"s_cmp_eq_u32 s{sWave}, 1")
    a(f"s_cselect_b32 s{sDd}, s{sD[1]}, s{sD[0]}")
    a(f"s_cmp_eq_u32 s{sWave}, 2")
    a(f"s_cselect_b32 s{sDd}, s{sD[2]}, s{sDd}")
    for sr in SP: srd(a, sr, D * N * 2)
    srd(a, sX_, D * 2)
    a(f"s_mul_i32 s{sT}, s{sDd}, {N*2}")
    a(f"v_lshlrev_b32 v{voff}, 1, v{lane}")
    a(f"s_lshl_b32 s{sT2}, s{sDd}, 1")
    a("s_waitcnt lgkmcnt(0)")
    a(f"buffer_load_ushort v{vdt}, v{vzero}, s[{sX_}:{sX_+3}], s{sT2} offen")
    a(f"s_mov_b32 s{sX_}, s18"); a(f"s_mov_b32 s{sX_+1}, s19")
    a(f"buffer_load_ushort v{vdk[0]}, v{vzero}, s[{sX_}:{sX_+3}], s{sT2} offen")
    for p in range(3):
        for i, sr in enumerate(SP):
            a(f"buffer_load_ushort v{P[p][i]}, v{voff}, s[{sr}:{sr+3}], s{sT} offen offset:{128*p}")
    a(f"s_mul_i32 s{sBase}, s{sWave}, {CH_REG}")
    a(f"v_mul_u32_u24 v{vwr}, {KG_S}, v{lane}")
    a(f"v_add_u32 v{vwr}, s{sBase}, v{vwr}")
    a(f"v_bfe_u32 v{t0}, v{lane}, 2, 2")
    a(f"v_lshrrev_b32 v{t1}, 5, v{lane}")
    a(f"v_lshl_add_u32 v{t0}, v{t0}, 2, v{t1}")
    a(f"v_mul_u32_u24 v{t0}, {KG_S}, v{t0}")
    a(f"v_bfe_u32 v{t1}, v{lane}, 4, 1")
    a(f"v_lshl_add_u32 v{t0}, v{t1}, 5, v{t0}")
    a(f"v_and_b32 v{t1}, 3, v{lane}")
    a(f"v_lshl_add_u32 v{t0}, v{t1}, 3, v{t0}")
    a(f"v_add_u32 v{vrd}, s{sBase}, v{t0}")
    for i in (13, 15): a(f"v_mov_b32 v{Cr+i}, 0"); a(f"v_mov_b32 v{Ci+i}, 0")
    a("s_waitcnt vmcnt(0)")
    stamp(a, 1)
    a(f"v_lshlrev_b32 v{vdt}, 16, v{vdt}")
    a(f"v_mul_f32 v{t0}, {f32(LOG2E)}, v{vdt}")
    a(f"s_mov_b32 s{sT}, {f32(LOG2E)}")
    a(f"v_fma_f32 v{t1}, v{vdt}, s{sT}, -v{t0}")
    lo = LOG2E - struct.unpack("<f", struct.pack("<f", LOG2E))[0]
    a(f"v_fmac_f32 v{t1}, {f32(lo)}, v{vdt}")
    a(f"v_exp_f32 v{t0}, v{t0}")
    a(f"v_mul_f32 v{t1}, {f32(LN2)}, v{t1}")
    a(f"v_fma_f32 v{t0}, v{t0}, v{t1}, v{t0}")
    bf16r(a, vdt, t0)
    a(f"s_mov_b32 s{sCnt}, 0")
    def cmul(dst, e, m):
        if ENV("KPK", 0):
            a(f"v_pk_mul_f32 {v(T,2)}, {v(e,2)}, {v(m,2)} op_sel:[0,0] op_sel_hi:[0,1]")
            a(f"v_pk_fma_f32 {v(dst,2)}, {v(e,2)}, {v(m,2)}, {v(T,2)} op_sel:[1,1,0] op_sel_hi:[1,0,1] neg_lo:[0,1,0]")
        else:
            assert dst != e and dst != m
            a(f"v_mul_f32 v{dst}, v{e}, v{m}")
            a(f"v_mul_f32 v{dst+1}, v{e}, v{m+1}")
            a(f"v_fma_f32 v{dst}, -v{e+1}, v{m+1}, v{dst}")
            a(f"v_fmac_f32 v{dst+1}, v{e+1}, v{m}")
    def cexp(dst, scale):
        if scale == 1:
            a(f"v_exp_f32 v{t0}, v{a2b}")
            a(f"v_fract_f32 v{t1}, v{a2b+1}")
        else:
            a(f"v_mul_f32 v{t0}, {f32(float(scale))}, v{a2b}")
            a(f"v_mul_f32 v{t1}, {f32(float(scale))}, v{a2b+1}")
            a(f"v_exp_f32 v{t0}, v{t0}")
            a(f"v_fract_f32 v{t1}, v{t1}")
        a(f"v_cos_f32 v{dst}, v{t1}")
        a(f"v_sin_f32 v{dst+1}, v{t1}")
        a(f"v_mul_f32 v{dst}, v{dst}, v{t0}")
        a(f"v_mul_f32 v{dst+1}, v{dst+1}, v{t0}")
    def mfmas():
        for ks in range(8):
            a(f"v_mfma_f32_32x32x16_bf16 {v(accK,16)}, {v(FA[ks],4)}, {v(FB[ks],4)}, {v(accK,16)}")
    def cpair(dw, x, y):
        a(f"v_cvt_pk_bf16_f32 v{Cr+dw}, v{x}, v{y}")
        a(f"v_cvt_pk_bf16_f32 v{Ci+dw}, -v{x+1}, -v{y+1}")
    if ENV("XKG", 0): a("s_branch KG_after")
    a.label("KG_loop")
    a.flush_hist()
    _a = a
    if ENV("XKW", 0) or ENV("XKM", 0) or ENV("XKR", 0):
        class Filt:
            def __call__(self, t):
                if ENV("XKW", 0) and t.startswith("ds_write"): return
                if ENV("XKR", 0) and t.startswith("ds_read"): return
                if ENV("XKM", 0) and t.startswith("v_mfma"): return
                _a(t)
            def __getattr__(self, n): return getattr(_a, n)
        a = Filt()
    p0 = P[0]
    for i in range(4): a(f"v_lshlrev_b32 v{p0[i]}, 16, v{p0[i]}")
    a(f"v_lshlrev_b32 v{V}, 16, v{p0[4]}")
    a(f"v_lshlrev_b32 v{V+1}, 16, v{p0[5]}")
    a(f"v_mul_f32 v{p0[0]}, v{vdt}, v{p0[0]}")
    a(f"v_mul_f32 v{p0[1]}, v{vdt}, v{p0[1]}")
    a(f"v_mul_f32 v{T2}, v{vdt}, v{p0[2]}")
    a(f"v_mul_f32 v{T2+1}, v{vdt}, v{p0[3]}")
    a(f"v_mul_f32 v{a2b}, {f32(LOG2E)}, v{p0[0]}")
    a(f"v_mul_f32 v{a2b+1}, {f32(1.0/(2*math.pi))}, v{p0[1]}")
    cmul(W, V, T2)
    cexp(l8, 8); cexp(l1, 1); cexp(l256, 256)
    if STAMPS: a("s_memtime s[18:19]")
    a("s_waitcnt lgkmcnt(0)")
    if STAMPS:
        a(f"s_cmp_eq_u32 s{sCnt}, 1")
        a("s_cselect_b32 s82, s18, s82")
        a(f"s_cmp_eq_u32 s{sCnt}, 2")
        a("s_cselect_b32 s84, s18, s84")
    a(f"v_cvt_pk_bf16_f32 v{Qr[0]}, 1.0, v{l8}")
    a(f"v_cvt_pk_bf16_f32 v{Qi[0]}, 0, v{l8+1}")
    cur = l8
    for f in range(2, 32, 2):
        if f // 2 - 1 < 8:
            ks = f // 2 - 1
            a(f"v_mfma_f32_32x32x16_bf16 {v(accK,16)}, {v(FA[ks],4)}, {v(FB[ks],4)}, {v(accK,16)}")
        cmul(E0, cur, l8); cmul(E1, E0, l8); cur = E1
        g, dw = f // 8, (f % 8) // 2
        a(f"v_cvt_pk_bf16_f32 v{Qr[g%2]+dw}, v{E0}, v{E1}")
        a(f"v_cvt_pk_bf16_f32 v{Qi[g%2]+dw}, v{E0+1}, v{E1+1}")
        if dw == 3:
            a(f"ds_write_b128 v{vwr}, {v(Qr[g%2],4)} offset:{16*g}")
            a(f"ds_write_b128 v{vwr}, {v(Qi[g%2],4)} offset:{64+16*g}")
    cmul(E0, W, l1); cpair(0, W, E0)
    cmul(G2, E0, l1); cmul(E0, G2, l1); cpair(1, G2, E0)
    cmul(G4, E0, l1); cmul(E0, G4, l1); cpair(4, G4, E0)
    cmul(G6, E0, l1); cmul(E0, G6, l1); cpair(5, G6, E0)
    cmul(E0, G2, l256); cmul(E1, G6, l256); cpair(3, E0, E1)
    cmul(E0, G4, l256); cmul(E1, E0, l256); cpair(7, E0, E1)
    cmul(E0, E1, l256); cpair(11, E0, E0)
    cur = W
    dwv = {1: 2, 2: 6, 3: 10, 4: 8, 5: 9, 6: 12, 7: 14}
    for j in range(1, 8):
        nx = [E0, E2][j % 2]
        cmul(nx, cur, l256); cmul(E1, nx, l8); cpair(dwv[j], nx, E1); cur = nx
        if j in (1, 2):
            g = j - 1
            a(f"ds_write_b128 v{vwr}, {v(Cr+4*g,4)} offset:{128+16*g}")
            a(f"ds_write_b128 v{vwr}, {v(Ci+4*g,4)} offset:{192+16*g}")
        if j in (5, 7):
            g = {5: 2, 7: 3}[j]
            a(f"ds_write_b128 v{vwr}, {v(Cr+4*g,4)} offset:{128+16*g}")
            a(f"ds_write_b128 v{vwr}, {v(Ci+4*g,4)} offset:{192+16*g}")
    for ks in range(8):
        o = (16 * (ks >> 1) + 2 * (ks & 1)) * KG_S
        a(f"ds_read_b64_tr_b16 {v(FA[ks],2)}, v{vrd} offset:{o+128}")
        a(f"ds_read_b64_tr_b16 {v(FA[ks]+2,2)}, v{vrd} offset:{o+192}")
        a(f"ds_read_b64_tr_b16 {v(FB[ks],2)}, v{vrd} offset:{o}")
        a(f"ds_read_b64_tr_b16 {v(FB[ks]+2,2)}, v{vrd} offset:{o+64}")
    for i in range(6):
        a(f"v_mov_b32 v{P[0][i]}, v{P[1][i]}")
        a(f"v_mov_b32 v{P[1][i]}, v{P[2][i]}")
    a(f"s_cmp_eq_u32 s{sCnt}, 0")
    a(f"s_cselect_b32 s{sT}, 0, -1")
    for i in range(16): a(f"v_and_b32 v{accK+i}, s{sT}, v{accK+i}")
    if STAMPS and 0:
        a("s_memtime s[18:19]")
        a("s_waitcnt lgkmcnt(0)")
        a(f"s_cmp_eq_u32 s{sCnt}, 0")
        a("s_cselect_b32 s82, s18, s82")
        a(f"s_cmp_eq_u32 s{sCnt}, 1")
        a("s_cselect_b32 s84, s18, s84")
    a(f"s_add_u32 s{sCnt}, s{sCnt}, 1")
    a(f"s_cmp_lt_u32 s{sCnt}, 3")
    a("s_cbranch_scc1 KG_loop")
    a = _a
    a.label("KG_after")
    stamp(a, 2)
    a(f"buffer_load_dword v{vtok}, v{vzero}, s[{sDBG}:{sDBG+3}], 0 offen sc1")
    vJa = P[0][0]; vJb = P[0][1]; u0 = P[0][2]; u1 = P[0][3]
    a(f"v_and_b32 v{t0}, 31, v{lane}")
    a(f"v_lshlrev_b32 v{t0}, 4, v{t0}")
    a(f"v_lshrrev_b32 v{t1}, 5, v{lane}")
    a(f"v_lshl_add_u32 v{t2}, v{t1}, 9, v{t0}")
    a(f"s_add_u32 s{sT}, s{sBase}, 1008")
    a(f"v_sub_u32 v{vJa}, s{sT}, v{t2}")
    a(f"v_lshlrev_b32 v{t2}, 10, v{t1}")
    a(f"v_sub_u32 v{t2}, v{t2}, v{t0}")
    a(f"s_add_u32 s{sT}, s{sBase}, 496")
    a(f"v_add_u32 v{vJb}, s{sT}, v{t2}")
    Z = Qr[0]
    for i in range(4): a(f"v_mov_b32 v{Z+i}, 0")
    a(f"v_lshrrev_b32 v{u0}, 2, v{lane}")
    a(f"v_mul_u32_u24 v{u0}, {CV_S}, v{u0}")
    a(f"v_and_b32 v{u1}, 3, v{lane}")
    a(f"v_lshl_add_u32 v{u0}, v{u1}, 4, v{u0}")
    a(f"v_add_u32 v{u0}, s{sBase}, v{u0}")
    a("s_mov_b32 s18, 0xaaaaaaaa"); a("s_mov_b32 s19, 0xaaaaaaaa")
    a("s_waitcnt lgkmcnt(0)")
    mfmas()
    a("s_mov_b64 exec, 0xffff")
    a(f"ds_write_b128 v{u0}, {v(Z,4)} offset:4096")
    a("s_mov_b64 exec, -1")
    O = [Cr, Cr + 8, Ci, Ci + 8]
    ac = lambda i: accK + i
    def cv(d, lo_, hi_): a(f"v_cvt_pk_bf16_f32 v{d}, v{lo_}, v{hi_}")
    def seg3(o, e0, e1):
        a(f"v_cndmask_b32 v{t0}, v{e0}, v{e1}, s[18:19]")
        cv(o, e1, e1); cv(o + 1, e1, t0); cv(o + 2, e0, e0); cv(o + 3, e0, e0)
    def seg2(o, e0, e1, e2):
        cv(o, e2, e2); cv(o + 1, e1, e1); cv(o + 2, e1, e0); cv(o + 3, e0, e0)
    seg3(O[3], ac(12), ac(13))
    a(f"v_lshlrev_b32 v{vdk[0]}, 16, v{vdk[0]}")
    a("s_mov_b64 exec, 1")
    a(f"v_add_f32 v{ac(0)}, v{ac(0)}, v{vdk[0]}")
    a("s_mov_b32 exec_lo, -1")
    for m in range(4): cv(O[0] + m, ac(7 - 2*m), ac(6 - 2*m))
    seg3(O[1], ac(8), ac(9)); seg3(O[2], ac(10), ac(11))
    a("s_mov_b32 exec_hi, -1")
    a("s_mov_b32 exec_lo, 0")
    cv(O[0], ac(1), ac(3)); cv(O[0] + 1, ac(6), ac(6)); cv(O[0] + 2, ac(6), ac(2)); cv(O[0] + 3, ac(0), ac(0))
    seg2(O[1], ac(4), ac(7), ac(5)); seg2(O[2], ac(8), ac(10), ac(9))
    a("s_mov_b32 exec_lo, -1")
    adr = [(vJa, 3072), (vJb, 1536), (vJb, 1024), (vJa, 0)]
    for p in range(4):
        a(f"ds_write_b128 v{adr[p][0]}, {v(O[p],4)} offset:{adr[p][1]}")
    for p in range(4):
        a(f"ds_read_b64 {v(O[p]+4,2)}, v{adr[p][0]} offset:{adr[p][1]+16}")
    stamp(a, 11)
    a("s_waitcnt vmcnt(0)")
    check_token(a, vtok, vzero)
    a("s_waitcnt lgkmcnt(0)")
    for p in range(4):
        Kt = [FA[(3*p + c) % 8] for c in range(3)]
        kin = O[p]
        for k in range(4): a(f"v_alignbyte_b32 v{Kt[0]+k}, v{kin+k+1}, v{kin+k}, 2")
        for k in range(4): a(f"v_mov_b32 v{Kt[1]+k}, v{kin+k+1}")
        for k in range(4): a(f"v_alignbyte_b32 v{Kt[2]+k}, v{kin+k+2}, v{kin+k+1}, 2")
        for c in range(3): a(f"ds_write_b128 v{adr[p][0]}, {v(Kt[c],4)} offset:{adr[p][1] + (c+1)*CV_S}")
    a("s_branch S_join")
    hi = R.hi

    a.label("S_w2t"); a.flush_hist()
    toks = {}
    a("s_waitcnt lgkmcnt(0)")
    a("s_sleep 64")
    a(f"buffer_load_dword v{vtok}, v{vzero}, s[{sDBG}:{sDBG+3}], 0 offen sc1")
    a("s_waitcnt vmcnt(0)")
    check_token(a, vtok, vzero)
    a("s_branch S_join")

    a.label("S_ln"); a.flush_hist()
    R.reset(base)
    voff = R(); vlw = R(); vtr = R()
    Xr = [R(4, 4) for _ in range(10)]
    U = [R(2, 2) for _ in range(40)]
    sm = R(2, 2); mb = R(2, 2); rs = R(2, 2); T = [R(2, 2) for _ in range(4)]; gr = R(2, 2)
    ones = R()
    O = [R(4, 4) for _ in range(4)]
    a(f"s_load_dwordx2 s[{sX_}:{sX_+1}], s[0:1], 0")
    a("s_memrealtime s[18:19]")
    srd(a, sX_, L * D * 2)
    a(f"v_lshrrev_b32 v{t0}, 3, v{lane}")
    a(f"v_and_b32 v{t1}, 7, v{lane}")
    a(f"v_lshlrev_b32 v{t1}, 4, v{t1}")
    a(f"v_mul_u32_u24 v{voff}, 1280, v{t0}")
    a(f"v_add_u32 v{voff}, v{voff}, v{t1}")
    a(f"v_mul_u32_u24 v{vlw}, {LN_S}, v{t0}")
    a(f"v_add_u32 v{vlw}, v{vlw}, v{t1}")
    a(f"v_add_u32 v{vlw}, {LN_OFF}, v{vlw}")
    a(f"s_lshl_b32 s{sT3}, s{sXc}, 5")
    a(f"s_add_u32 s{sT3}, s{sT3}, s{sA}")
    a(f"s_mul_i32 s{sT}, s{sT3}, {8*1280}")
    a("s_waitcnt lgkmcnt(0)")
    a(f"s_cmp_ge_u32 s2, 8")
    a("s_cbranch_scc1 S_ln_nt")
    a("s_or_b32 s18, s18, 1")
    a(f"v_mov_b32 v{gr}, s18")
    a(f"v_mov_b32 v{gr+1}, 0")
    a("s_mov_b64 exec, 1")
    a(f"buffer_atomic_cmpswap {v(gr,2)}, v{vzero}, s[{sDBG}:{sDBG+3}], 0 offen"); a.vm -= 1
    a("s_mov_b64 exec, -1")
    a.label("S_ln_nt")
    for i in range(10):
        a(f"buffer_load_dwordx4 {v(Xr[i],4)}, v{voff}, s[{sX_}:{sX_+3}], s{sT} offen offset:{128*i}")
    a(f"v_mov_b32 v{ones}, 0x3f803f80")
    a(f"v_mov_b32 v{sm}, 0")
    a("s_waitcnt vmcnt(0)")
    stamp(a, 1)
    a(f"buffer_load_dword v{vtok}, v{vzero}, s[{sDBG}:{sDBG+3}], 0 offen sc1")
    for i in range(40):
        a(f"v_dot2_f32_bf16 v{sm}, v{Xr[i//4] + i%4}, v{ones}, v{sm}")
    def red8(r_):
        a(f"v_add_f32_dpp v{r_}, v{r_}, v{r_} quad_perm:[1,0,3,2] row_mask:0xf bank_mask:0xf")
        a(f"v_add_f32_dpp v{r_}, v{r_}, v{r_} quad_perm:[2,3,0,1] row_mask:0xf bank_mask:0xf")
        a(f"v_add_f32_dpp v{r_}, v{r_}, v{r_} row_half_mirror row_mask:0xf bank_mask:0xf")
    for i in range(40):
        x = Xr[i//4] + i % 4
        a(f"v_lshlrev_b32 v{U[i]}, 16, v{x}")
        a(f"v_and_b32 v{U[i]+1}, 0xffff0000, v{x}")
    red8(sm)
    a(f"v_mul_f32 v{sm}, {f32(1.0/D)}, v{sm}")
    bf16r(a, mb, sm)
    a(f"v_mov_b32 v{rs}, 0"); a(f"v_mov_b32 v{rs+1}, 0")
    for i in range(40):
        if ENV("LPK", 1):
            a(f"v_pk_add_f32 {v(U[i],2)}, {v(U[i],2)}, {v(mb,2)} op_sel_hi:[1,0] neg_lo:[0,1] neg_hi:[0,1]")
            a(f"v_pk_fma_f32 {v(rs,2)}, {v(U[i],2)}, {v(U[i],2)}, {v(rs,2)}")
        else:
            for h in range(2):
                a(f"v_sub_f32 v{U[i]+h}, v{U[i]+h}, v{mb}")
                a(f"v_fmac_f32 v{rs+h}, v{U[i]+h}, v{U[i]+h}")
    a(f"v_add_f32 v{rs}, v{rs}, v{rs+1}")
    red8(rs)
    a(f"v_sub_f32 v{t0}, v{sm}, v{mb}")
    a(f"v_mul_f32 v{t0}, v{t0}, v{t0}")
    a(f"v_mul_f32 v{rs}, {f32(1.0/D)}, v{rs}")
    a(f"v_sub_f32 v{rs}, v{rs}, v{t0}")
    a(f"v_max_f32 v{rs}, 0, v{rs}")
    bf16r(a, rs, rs)
    a(f"v_add_f32 v{rs}, {f32(1e-5)}, v{rs}")
    bf16r(a, rs, rs)
    a(f"v_sqrt_f32 v{rs}, v{rs}")
    a(f"v_cvt_pk_bf16_f32 v{gr}, v{mb}, v{rs}")
    a(f"v_and_b32 v{rs}, 0xffff0000, v{gr}")
    a(f"v_rcp_f32 v{rs}, v{rs}")
    for i in range(40):
        x = Xr[i//4] + i % 4
        if ENV("LPK", 1): a(f"v_pk_mul_f32 {v(U[i],2)}, {v(U[i],2)}, {v(rs,2)} op_sel_hi:[1,0]")
        else:
            for h in range(2): a(f"v_mul_f32 v{U[i]+h}, v{U[i]+h}, v{rs}")
        a(f"v_cvt_pk_bf16_f32 v{x}, v{U[i]}, v{U[i]+1}")
        if i % 4 == 3:
            a(f"ds_write_b128 v{vlw}, {v(Xr[i//4],4)} offset:{128*(i//4)}")
    a(f"v_bfe_u32 v{t1}, v{lane}, 2, 2")
    a(f"v_mul_u32_u24 v{t1}, {LN_S}, v{t1}")
    a(f"v_lshrrev_b32 v{t0}, 4, v{lane}")
    a(f"v_lshl_add_u32 v{t1}, v{t0}, 5, v{t1}")
    a(f"v_and_b32 v{t2}, 3, v{lane}")
    a(f"v_lshl_add_u32 v{t1}, v{t2}, 3, v{t1}")
    a(f"v_add_u32 v{vtr}, {LN_OFF}, v{t1}")
    a(f"s_mul_i32 s{sT}, s{sT3}, 10240")
    def rd(i):
        o = O[i % 4]
        for e in range(2):
            a(f"ds_read_b64_tr_b16 {v(o+2*e,2)}, v{vtr} offset:{128*i + 4*e*LN_S}")
        toks[i] = a.ltok()
    for i in range(3): rd(i)
    for i in range(10):
        if i + 3 < 10: rd(i + 3)
        a.wait(lg=toks[i])
        a(f"buffer_store_dwordx4 {v(O[i%4],4)}, v{v16}, s[{sWS}:{sWS+3}], s{sT} offen sc1")
        a(f"s_add_u32 s{sT}, s{sT}, 1024")
    a("s_waitcnt vmcnt(10)")
    check_token(a, vtok, vzero)
    a(f"v_mov_b32 v{gr+1}, s{sTok}")
    a(f"s_lshl_b32 s{sT}, s{sT3}, 7")
    a(f"s_add_u32 s{sT2}, s{sT}, {WS_STAT}")
    a("s_mov_b32 exec_lo, 0x01010101"); a("s_mov_b32 exec_hi, 0x01010101")
    a(f"buffer_store_dwordx2 {v(gr,2)}, v{lane}, s[{sWS}:{sWS+3}], s{sT2} offen sc1")
    a(f"s_add_u32 s{sT}, s{sT}, {WS_FLN}")
    a("s_waitcnt vmcnt(0)")
    a("s_mov_b64 exec, 1")
    a(f"buffer_store_dword v{gr+1}, v{vzero}, s[{sWS}:{sWS+3}], s{sT} offen sc1")
    a("s_mov_b64 exec, -1")
    stamp(a, 2)
    if ONLY: a("s_branch S_end")
    a(f"v_mul_u32_u24 v{t0}, 10240, v{lane}")
    a(f"v_lshlrev_b32 v{t1}, 7, v{lane}")
    a(f"s_cmp_eq_u32 s{sHeavy}, 0")
    a(f"s_cselect_b32 s{sCnt}, s{sD[0]}, s{sD[2]}")
    a(f"s_lshl_b32 s{sT3}, s2, 7")
    a(f"s_add_u32 s{sT3}, s{sT3}, {WS_FPACE}")
    a(f"s_mov_b32 s{sSpin}, 0")
    a("s_mov_b64 exec, 1")
    a.label("S_pace")
    a(f"s_sleep {ENV('PSLEEP', 8)}")
    a(f"buffer_load_dword v{t2}, v{vzero}, s[{sWS}:{sWS+3}], s{sT3} offen sc1")
    a("s_waitcnt vmcnt(0)")
    a(f"v_readfirstlane_b32 s{sT}, v{t2}")
    a(f"s_cmp_eq_u32 s{sT}, s{sTok}")
    a("s_cbranch_scc1 S_paced")
    a(f"s_add_u32 s{sSpin}, s{sSpin}, 1")
    a(f"s_cmp_lt_u32 s{sSpin}, {ENV('PMAX', 24)}")
    a("s_cbranch_scc1 S_pace")
    a.label("S_paced")
    a("s_mov_b64 exec, -1")
    stamp(a, 10)
    for g in range(4):
        a(f"s_mov_b32 s{sT3}, {WS_FLN + 8192*g}")
        a(f"buffer_load_dword v{O[0]+g}, v{t1}, s[{sWS}:{sWS+3}], s{sT3} offen sc1")
    a("s_waitcnt vmcnt(0)")
    for g in range(4):
        a(f"s_mov_b32 s{sT3}, {WS_FLN + 8192*g}")
        ldf = lambda: a(f"buffer_load_dword v{O[0]+g}, v{t1}, s[{sWS}:{sWS+3}], s{sT3} offen sc1")
        check_flags(a, [O[0] + g], t1, ldf, sleep=ENV("LNSLEEP", 6))
    stamp(a, 9)
    if ENV("UPF", 0):
        a(f"v_lshrrev_b32 v{t2}, 3, v{lane}")
        a(f"v_mul_u32_u24 v{t2}, 10240, v{t2}")
        a(f"v_and_b32 v{t3}, 7, v{lane}")
        a(f"v_lshl_add_u32 v{t2}, v{t3}, 7, v{t2}")
        a(f"s_mul_i32 s{sT}, s{sA}, {8*10240}")
        a(f"s_lshl_b32 s{sT2}, s{sXc}, 10")
        a(f"s_add_u32 s{sT2}, s{sT2}, s{sT}")
        a(f"buffer_load_dword v{O[1]}, v{t2}, s[{sWS}:{sWS+3}], s{sT2} offen sc1")
        a(f"s_lshl_b32 s{sT2}, s{sXc}, 8")
        a(f"s_add_u32 s{sT2}, s{sT2}, s{sT}")
        a(f"s_add_u32 s{sT2}, s{sT2}, 8192")
        a("s_mov_b32 exec_lo, 0x03030303"); a("s_mov_b32 exec_hi, 0x03030303")
        a(f"buffer_load_dword v{O[1]+1}, v{t2}, s[{sWS}:{sWS+3}], s{sT2} offen sc1")
        a("s_mov_b64 exec, -1")
        a("s_waitcnt vmcnt(0)")
    Uq_ = [U[0] + 4 * i for i in range(12)]
    assert U[0] % 4 == 0
    a(f"v_lshrrev_b32 v{t1}, 1, v{lane}")
    a(f"v_and_b32 v{t3}, 1, v{lane}")
    a(f"v_mul_u32_u24 v{t2}, 10240, v{t1}")
    a(f"v_lshl_add_u32 v{t2}, v{t3}, 4, v{t2}")
    a(f"v_mul_u32_u24 v{t3}, 4608, v{t3}")
    a(f"v_lshl_add_u32 v{t3}, v{t1}, 4, v{t3}")
    a(f"s_lshl_b32 s{sT}, s{sD[0]}, 4")
    for g in range(8):
        if g: a(f"s_add_u32 s{sT}, s{sT}, {32*10240}")
        a(f"buffer_load_dwordx4 {v(Uq_[g],4)}, v{t2}, s[{sWS}:{sWS+3}], s{sT} offen sc1")
    a(f"s_cmp_eq_u32 s{sHeavy}, 0")
    a("s_cbranch_scc1 S_g2")
    a(f"s_lshl_b32 s{sT}, s{sD[2]}, 4")
    for g in range(4):
        if g: a(f"s_add_u32 s{sT}, s{sT}, {64*10240}")
        a(f"buffer_load_dwordx4 {v(Uq_[8+g],4)}, v{t0}, s[{sWS}:{sWS+3}], s{sT} offen sc1")
    a("s_waitcnt vmcnt(0)")
    for g in range(4):
        a(f"ds_write_b128 v{v16}, {v(Uq_[8+g],4)} offset:{CV_U[2] + 1024*g}")
    a.label("S_g2")
    for g in range(8):
        a(f"s_waitcnt vmcnt({7-g})")
        a(f"ds_write_b128 v{t3}, {v(Uq_[g],4)} offset:{CV_U[0] + 512*g}")
    stamp(a, 4)
    hi = max(hi, R.hi)

    a.label("S_join"); a.flush_hist()
    if ONLY: a("s_branch S_end")
    if ENV("SPRIO", 0): a(f"s_setprio {ENV('SPRIO', 0)}")
    stamp(a, 3)
    R.reset(base)
    acc = [R(4, 4) for _ in range(8)]
    FA = [[R(4, 4) for _ in range(8)] for _ in range(2)]
    FB = [[R(4, 4) for _ in range(8)] for _ in range(2)]
    vA = R(); vBq = R(); vA0 = R(); vB0 = R(); vrw = R(); vrr = R(); vfl = R(); vfa = R(); vtk = R()
    a(f"s_and_b32 s{sPar}, s{sWave}, 1")
    Z = FB[0][3]
    for i in range(4): a(f"v_mov_b32 v{Z+i}, 0")
    a(f"s_min_u32 s{sT}, s{sWave}, 2")
    a(f"s_mul_i32 s{sT}, s{sT}, 4608")
    a(f"v_add_u32 v{t2}, s{sT}, v{v16}")
    a("s_mov_b32 exec_hi, 0")
    a(f"ds_write_b128 v{t2}, {v(Z,4)} offset:{CV_U[0]-512}")
    a("s_mov_b32 exec_hi, -1")
    a(f"v_and_b32 v{t0}, 15, v{lane}")
    a(f"v_sub_u32 v{t2}, 15, v{t0}")
    a(f"v_and_b32 v{t3}, 3, v{t2}")
    a(f"v_sub_u32 v{t2}, v{t2}, v{t3}")
    a(f"v_mul_u32_u24 v{t3}, {CV_S}, v{t3}")
    a(f"v_lshl_add_u32 v{t3}, v{t2}, 1, v{t3}")
    a(f"v_lshrrev_b32 v{t2}, 4, v{lane}")
    a(f"v_lshl_add_u32 v{vA0}, v{t2}, 4, v{t3}")
    a(f"v_lshlrev_b32 v{t3}, 4, v{t2}")
    a(f"v_lshl_add_u32 v{vB0}, v{t0}, 5, v{t3}")
    a(f"v_lshrrev_b32 v{t3}, 1, v{t2}")
    a(f"v_lshlrev_b32 v{t3}, 3, v{t3}")
    a(f"v_xor_b32 v{t3}, v{t3}, v{t0}")
    a(f"v_lshlrev_b32 v{t3}, 4, v{t3}")
    a(f"v_lshl_add_u32 v{t3}, v{t2}, 8, v{t3}")
    a(f"s_lshl_b32 s{sT}, s{sWave}, 13")
    a(f"v_add_u32 v{vrw}, s{sT}, v{t3}")
    a(f"v_bfe_u32 v{t0}, v{lane}, 1, 4")
    a(f"v_and_b32 v{t2}, 1, v{lane}")
    a(f"v_lshlrev_b32 v{t3}, 3, v{t2}")
    a(f"v_xor_b32 v{t0}, v{t0}, v{t3}")
    a(f"v_lshlrev_b32 v{t0}, 4, v{t0}")
    a(f"v_lshl_add_u32 v{t0}, v{t2}, 9, v{t0}")
    a(f"v_lshrrev_b32 v{t2}, 5, v{lane}")
    a(f"v_lshl_add_u32 v{vrr}, v{t2}, 10, v{t0}")
    a(f"v_mov_b32 v{vtk}, s{sTok}")
    a(f"s_mul_i32 s{sT}, s{sSlot}, {CH_REG}")
    a(f"s_lshl_b32 s{sT2}, s{sPar}, 8")
    a(f"s_sub_u32 s{sT}, s{sT}, s{sT2}")
    a(f"s_add_u32 s{sT}, s{sT}, {32*14}")
    a(f"v_add_u32 v{vA}, s{sT}, v{vA0}")
    a(f"s_mul_i32 s{sT}, s{sSlot}, 4608")
    a(f"s_sub_u32 s{sT}, s{sT}, s{sT2}")
    a(f"s_add_u32 s{sT}, s{sT}, {CV_U[0] - 512 + 32*15}")
    a(f"v_add_u32 v{vBq}, s{sT}, v{vB0}")
    sDa, sDb, sJa, sJb = 20, 21, 22, 23
    a(f"s_lshl_b32 s{sT3}, s{sWave}, 7")
    a(f"s_sub_u32 s{sJb}, s{sT}, 192")
    a(f"s_sub_u32 s{sJb}, s{sJb}, {CV_U[2] - 512 + 32*15}")
    a(f"s_add_u32 s{sJb}, s{sJb}, s{sT3}")
    a(f"s_mul_i32 s{sJa}, s{sSlot}, {CH_REG}")
    a(f"s_sub_u32 s{sJa}, s{sJa}, s{sT2}")
    a(f"s_sub_u32 s{sJa}, s{sJa}, {192 + 2*CH_REG}")
    a(f"s_add_u32 s{sJa}, s{sJa}, s{sT3}")
    acc1 = [R(4, 4) for _ in range(8)]
    for c in range(8):
        for i in range(4):
            a(f"v_mov_b32 v{acc[c]+i}, 0"); a(f"v_mov_b32 v{acc1[c]+i}, 0")
    a(f"s_mov_b32 s{sCnt}, 0")
    a(f"s_add_u32 s{sRound}, s{sHeavy}, 2")
    a("s_waitcnt vmcnt(0) lgkmcnt(0)")
    a("s_barrier")
    stamp(a, 5)

    def rdlist(st, da="64", db="64"):
        rd_ = []
        for j in range(8):
            rd_.append(f"ds_read_b128 {v(FB[st][j],4)}, v{vBq} offset:{512*j}")
            rd_.append(f"ds_read_b64 {v(FA[st][j],2)}, v{vA} offset:{512*(7-j)}")
            rd_.append(f"ds_read_b64 {v(FA[st][j]+2,2)}, v{vA} offset:{512*(7-j)+8}")
        rd_.append(f"v_subrev_u32 v{vA}, {da}, v{vA}")
        rd_.append(f"v_subrev_u32 v{vBq}, {db}, v{vBq}")
        return rd_
    def group(st, nxt, da="64", db="64"):
        pairs = sorted([(c, j) for c in range(8) for j in range(c + 1)], key=lambda cj: (max(cj[1], cj[0] - cj[1]), cj[0]))
        rd_ = rdlist(nxt, da, db)
        for i, (c, j) in enumerate(pairs):
            a(f"v_mfma_f32_16x16x32_bf16 {v(acc[c],4)}, {v(FA[st][j],4)}, {v(FB[st][c-j],4)}, {v(acc[c],4)}")
            if i < len(rd_): a(rd_[i])
    for x in rdlist(0): a(x)
    a.label("CV_loop")
    a(f"s_cmp_eq_u32 s{sCnt}, 1")
    a(f"s_cselect_b32 s{sDa}, s{sJa}, 64")
    a(f"s_cselect_b32 s{sDb}, s{sJb}, 64")
    a("s_waitcnt lgkmcnt(0)")
    group(0, 1, f"s{sDa}", f"s{sDb}")
    a("s_waitcnt lgkmcnt(0)")
    group(1, 0)
    a(f"s_add_u32 s{sCnt}, s{sCnt}, 1")
    a(f"s_cmp_eq_u32 s{sCnt}, 1")
    a("s_cbranch_scc1 CV_loop")
    a(f"s_cmp_eq_u32 s{sCnt}, 3")
    a("s_cbranch_scc1 CV_done")
    for c in range(8):
        for i in range(4): a(f"v_swap_b32 v{acc[c]+i}, v{acc1[c]+i}")
    a(f"s_cmp_lg_u32 s{sHeavy}, 0")
    a("s_nop 0")
    a("s_cbranch_scc1 CV_loop")
    a.label("CV_done")
    a("s_nop 7")
    a("s_waitcnt lgkmcnt(0)")
    a("s_barrier")
    stamp(a, 6)
    for c in range(8):
        a(f"ds_write_b128 v{vrw}, {v(acc1[c],4)} offset:{1024*c}")
    a(f"s_cmp_eq_u32 s{sHeavy}, 0")
    a("s_cbranch_scc1 CV_w1")
    for c in range(8):
        a(f"ds_write_b128 v{vrw}, {v(acc[c],4)} offset:{32768 + 1024*c}")
    a.label("CV_w1")
    a(f"s_lshl_b32 s{sT}, s{sSlot}, 14")
    a(f"s_lshl_b32 s{sT2}, s{sPar}, 12")
    a(f"s_add_u32 s{sT}, s{sT}, s{sT2}")
    a(f"v_add_u32 v{t0}, s{sT}, v{vrr}")
    a(f"s_lshl_b32 s{sT}, s{sWave}, 11")
    a(f"v_add_u32 v{t1}, s{sT}, v{vrr}")
    a(f"s_add_u32 s{sT}, s{sD[0]}, s{sSlot}")
    a(f"s_lshl_b32 s{sT3}, s{sT}, 12")
    a(f"s_lshl_b32 s{sT2}, s{sPar}, 11")
    a(f"s_add_u32 s{sT3}, s{sT3}, s{sT2}")
    a(f"s_add_u32 s{sT3}, s{sT3}, {WS_ST}")
    a(f"s_lshl_b32 s{sT}, s{sT}, 7")
    a(f"s_lshl_b32 s{sT2}, s{sPar}, 3")
    a(f"s_add_u32 s{sT}, s{sT}, s{sT2}")
    a(f"s_add_u32 s{sJa}, s{sT}, {WS_FST}")
    a(f"v_lshlrev_b32 v{t2}, 2, v{lane}")
    a("s_waitcnt lgkmcnt(0)")
    a("s_barrier")
    stamp(a, 7)
    Rd = FA[1]; Re = FA[0]
    for b in range(2):
        for p in range(2):
            for e in range(2):
                a(f"ds_read_b128 {v(Rd[(b*2+p)*2+e],4)}, v{t0} offset:{8192*p + 2048*b + 256*e}")
    for p in range(4):
        for e in range(2):
            a(f"ds_read_b128 {v(Re[p*2+e],4)}, v{t1} offset:{32768 + 8192*p + 256*e}")
    def finish(Rr, bs, npart, o):
        for p in range(1, npart):
            for e in range(2):
                for z in range(4):
                    a(f"v_add_f32 v{Rr[bs+e]+z}, v{Rr[bs+e]+z}, v{Rr[bs+2*p+e]+z}")
        for m in range(4):
            y = Rr[bs + m // 2] + 2 * (m % 2)
            a(f"v_cvt_pk_bf16_f32 v{o+m}, v{y}, v{y+1}")
    for b in range(2):
        a(f"s_waitcnt lgkmcnt({12 - 4*b})")
        finish(Rd, 4 * b, 2, FB[1][b])
        a(f"buffer_store_dwordx4 {v(FB[1][b],4)}, v{v16}, s[{sWS}:{sWS+3}], s{sT3} offen offset:{1024*b} sc1")
    a(f"s_cmp_eq_u32 s{sHeavy}, 0")
    a("s_cbranch_scc1 CV_f1")
    a(f"s_lshl_b32 s{sT3}, s{sWave}, 10")
    a(f"s_lshl_b32 s{sT}, s{sD[2]}, 12")
    a(f"s_add_u32 s{sT2}, s{sT3}, s{sT}")
    a(f"s_add_u32 s{sT2}, s{sT2}, {WS_ST}")
    a("s_waitcnt lgkmcnt(0)")
    finish(Re, 0, 4, FB[1][2])
    a(f"buffer_store_dwordx4 {v(FB[1][2],4)}, v{v16}, s[{sWS}:{sWS+3}], s{sT2} offen sc1")
    a(f"s_lshl_b32 s{sT}, s{sD[2]}, 7")
    a(f"s_lshl_b32 s{sT2}, s{sWave}, 2")
    a(f"s_add_u32 s{sT}, s{sT}, s{sT2}")
    a(f"s_add_u32 s{sT}, s{sT}, {WS_FST}")
    a("s_waitcnt vmcnt(0)")
    a("s_mov_b64 exec, 1")
    a(f"buffer_store_dword v{vtk}, v{vzero}, s[{sWS}:{sWS+3}], s{sT} offen sc1")
    a("s_branch CV_f2")
    a.label("CV_f1")
    a("s_waitcnt vmcnt(0)")
    a.label("CV_f2")
    a("s_mov_b64 exec, 3")
    a(f"buffer_store_dword v{vtk}, v{t2}, s[{sWS}:{sWS+3}], s{sJa} offen sc1")
    a.label("S_end")
    stamp_end(a, sWave)
    return max(hi, R.hi)

W_SLOT = 12288
X_OFF = 3 * W_SLOT
X_WAVE = 11264
NXU = 5
def g_role(a):
    sX, sW1, sB1, sOUT, sW2 = 20, 24, 28, 32, 52
    sRB, sCB, sTB, sJD, sId = 36, 37, 38, 39, 3
    sP = [40, 41, 42]
    sWoff, sXoff, sM0w, sM0x, sOA, sOB = 43, 44, 45, 46, 47, 48
    R = Alloc(1)
    lane = R(); t0 = R(); t1 = R(); t2 = R(); t3 = R(); vzero = R(); vtok = R(); v16 = R(); vfa = R()
    vfl = R(); vsa = R()
    NWR = 25
    NWI = 18
    WR = [R(4, 4) for _ in range(NWR)]
    base2 = pool = R.mark()
    R.reset(184)
    acc = [[R(4, 4) for ct in range(2)] for rt in range(6)]
    cs = [R(4, 4) for _ in range(2)]
    st = [R(2, 2) for _ in range(2)]
    b1p = [R(2, 2) for _ in range(6)]
    R.reset(WR[NWI]); R.limit = 184
    A = [[R(4, 4) for rt in range(6)] for _ in range(2)]
    X = [[[R(4, 4) for ct in range(2)] for e in range(2)] for _ in range(2)]
    ones = R(4, 4)
    vE = [R() for _ in range(3)]; vO = [R() for _ in range(3)]
    vW = [R() for _ in range(3)]; vXs = [R(), R()]; vXr = [R(), R()]
    vpf = R(); vpd = R()
    stamp_begin(a)
    if ENV("GPRIO", 0): a(f"s_setprio {ENV('GPRIO', 0)}")
    a(f"s_load_dwordx2 s[{sX}:{sX+1}], s[0:1], 0")
    a(f"s_load_dwordx2 s[{sW1}:{sW1+1}], s[0:1], 80")
    a(f"s_load_dwordx2 s[{sW2}:{sW2+1}], s[0:1], 96")
    a(f"v_lshrrev_b32 v{t0}, 6, v0")
    a(f"v_and_b32 v{lane}, 63, v0")
    a(f"v_readfirstlane_b32 s{sWave}, v{t0}")
    a(f"s_sub_u32 s{sId}, s2, 256")
    if ENV("CPF", 1):
        a("s_getpc_b64 s[18:19]")
        a("s_and_b32 s18, s18, 0xffffff00")
        a(f"s_lshr_b32 s{sT3}, s{sId}, 3")
        a(f"s_lshl_b32 s{sT3}, s{sT3}, 10")
        a(f"s_add_u32 s18, s18, s{sT3}")
        a(f"s_addc_u32 s19, s19, 0")
        a(f"v_lshrrev_b32 v{A[0][0]}, 5, v0")
        a(f"v_lshlrev_b32 v{A[0][0]}, 7, v{A[0][0]}")
        a(f"v_mov_b32 v{A[0][0]+1}, s19")
        a(f"v_add_co_u32 v{A[0][0]}, vcc, s18, v{A[0][0]}")
        a(f"v_addc_co_u32 v{A[0][0]+1}, vcc, 0, v{A[0][0]+1}, vcc")
        a("s_mov_b32 exec_lo, 1"); a("s_mov_b32 exec_hi, 1")
        a(f"global_load_dword v{vpd}, {v(A[0][0],2)}, off")
        a("s_mov_b64 exec, -1")
    srd(a, sX, L * D * 2); srd(a, sW1, D * F * 2)
    pfx = A[1][0]; pfw = A[1][0] + 1
    a(f"s_lshr_b32 s{sT3}, s{sId}, 3")
    a(f"s_lshl_b32 s{sT3}, s{sT3}, 2")
    a(f"s_add_u32 s{sT3}, s{sT3}, s{sWave}")
    a(f"v_mul_u32_u24 v{t1}, 0xaaab, v{lane}")
    a(f"v_lshrrev_b32 v{t1}, 18, v{t1}")
    a(f"v_mul_u32_u24 v{t2}, 6, v{t1}")
    a(f"v_sub_u32 v{t2}, v{lane}, v{t2}")
    a(f"v_mul_u32_u24 v{t1}, {64*3072}, v{t1}")
    a(f"v_lshl_add_u32 v{t1}, v{t2}, 7, v{t1}")
    a(f"s_lshr_b32 s{sT2}, s{sT3}, 1")
    a(f"s_mul_i32 s{sT2}, s{sT2}, 3072")
    a(f"s_and_b32 s{sT}, s{sId}, 1")
    a(f"s_lshl_b32 s{sT}, s{sT}, 1")
    a(f"s_and_b32 s{sRB}, s{sT3}, 1")
    a(f"s_add_u32 s{sT}, s{sT}, s{sRB}")
    a(f"s_mul_i32 s{sT}, s{sT}, 768")
    a(f"s_add_u32 s{sT2}, s{sT2}, s{sT}")
    a(f"v_add_u32 v{pfw}, s{sT2}, v{t1}")
    a(f"v_lshrrev_b32 v{t2}, 2, v{lane}")
    a(f"v_lshlrev_b32 v{t2}, 7, v{t2}")
    a(f"v_and_b32 v{t3}, 3, v{lane}")
    a(f"v_mul_u32_u24 v{t3}, 1280, v{t3}")
    a(f"v_add_u32 v{t2}, v{t2}, v{t3}")
    a(f"s_bfe_u32 s{sT}, s{sId}, 0x20001")
    a(f"s_lshl_b32 s{sT}, s{sT}, 7")
    a(f"s_add_u32 s{sT}, s{sT}, s{sT3}")
    a(f"s_mul_i32 s{sT}, s{sT}, {4*1280}")
    a(f"v_add_u32 v{pfx}, s{sT}, v{t2}")
    a("s_waitcnt lgkmcnt(0)")
    stamp(a, 1)
    def do_pf(c0, c1):
        def mask(lo, hi):
            m = ((1 << hi) - 1) & ~((1 << lo) - 1)
            a(f"s_mov_b32 exec_lo, {hex(m & 0xffffffff)}"); a(f"s_mov_b32 exec_hi, {hex(m >> 32)}")
        mask(4 * c0, 4 * c1)
        a(f"buffer_load_dword v{vpd}, v{pfx}, s[{sX}:{sX+3}], 0 offen")
        mask(6 * c0, 6 * c1)
        a(f"buffer_load_dword v{vpd}, v{pfw}, s[{sW1}:{sW1+3}], 0 offen")
        a("s_mov_b64 exec, -1")
    PFA_ = ENV("PFSPLIT", 3)
    do_pf(0, PFA_)
    srd(a, sW2, F * D * 2)
    a(f"s_mul_i32 s{sT}, s{sT3}, {15*128}")
    a(f"v_lshl_add_u32 v{vpf}, v{lane}, 7, s{sT}")
    def op_pf2(j):
        def f():
            a(f"s_add_u32 s{sT2}, s{sId}, {j}")
            a(f"s_and_b32 s{sT2}, s{sT2}, 7")
            a(f"s_mul_i32 s{sT2}, s{sT2}, {128*15*128}")
            a("s_mov_b64 exec, 0x7fff")
            a(f"buffer_load_dword v{vpd}, v{vpf}, s[{sW2}:{sW2+3}], s{sT2} offen")
            a("s_mov_b64 exec, -1")
        return f
    a(f"s_load_dwordx2 s[{sB1}:{sB1+1}], s[0:1], 88")
    a(f"s_load_dwordx2 s[{sWS}:{sWS+1}], s[0:1], 120")
    a(f"s_load_dwordx2 s[{sDBG}:{sDBG+1}], s[0:1], 112")
    a(f"s_load_dwordx2 s[{sOUT}:{sOUT+1}], s[0:1], 104")
    srd(a, sB1, F * 2); srd(a, sWS, WS_SIZE); srd(a, sDBG, 256); srd(a, sOUT, L * D * 2)
    a(f"s_and_b32 s{sT}, s{sId}, 7")
    a(f"s_lshr_b32 s{sT2}, s{sId}, 3")
    a(f"s_lshr_b32 s{sRB}, s{sT}, 1")
    a(f"s_lshl_b32 s{sTB}, s{sT}, 2")
    a(f"s_lshl_b32 s{sRB}, s{sRB}, 2")
    a(f"s_and_b32 s{sT3}, s{sT2}, 3")
    a(f"s_add_u32 s{sRB}, s{sRB}, s{sT3}")
    a(f"s_add_u32 s{sTB}, s{sTB}, s{sT3}")
    a(f"s_and_b32 s{sT}, s{sT}, 1")
    a(f"s_lshl_b32 s{sCB}, s{sT}, 3")
    a(f"s_lshr_b32 s{sJD}, s{sT2}, 2")
    a(f"s_add_u32 s{sCB}, s{sCB}, s{sJD}")
    a(f"v_mov_b32 v{vzero}, 0")
    a(f"v_lshlrev_b32 v{v16}, 4, v{lane}")
    for i in range(3):
        a(f"v_add_u32 v{t0}, {64*i}, v{lane}")
        a(f"v_mul_u32_u24 v{t1}, 0xaaab, v{t0}")
        a(f"v_lshrrev_b32 v{t1}, 19, v{t1}")
        a(f"v_mul_u32_u24 v{t2}, 12, v{t1}")
        a(f"v_sub_u32 v{t2}, v{t0}, v{t2}")
        a(f"v_lshrrev_b32 v{t3}, 2, v{t1}")
        a(f"v_and_b32 v{t3}, 2, v{t3}")
        a(f"v_xor_b32 v{t2}, v{t2}, v{t3}")
        a(f"v_lshlrev_b32 v{t2}, 4, v{t2}")
        a(f"v_mul_u32_u24 v{t1}, 3072, v{t1}")
        a(f"v_add_u32 v{vW[i]}, v{t1}, v{t2}")
        if i: a(f"v_subrev_u32 v{vW[i]}, {1024*i}, v{vW[i]}")
    a(f"s_mul_i32 s{sWoff}, s{sWave}, {16*3072}")
    a(f"s_mul_i32 s{sT}, s{sCB}, 192")
    a(f"s_add_u32 s{sWoff}, s{sWoff}, s{sT}")
    a(f"s_mul_i32 s{sM0w}, s{sWave}, 3072")
    a(f"v_lshrrev_b32 v{t0}, 3, v{lane}")
    a(f"v_and_b32 v{t1}, 7, v{lane}")
    a(f"v_lshrrev_b32 v{t2}, 1, v{t0}")
    a(f"v_xor_b32 v{t1}, v{t1}, v{t2}")
    a(f"v_mul_u32_u24 v{t0}, 1280, v{t0}")
    a(f"v_lshl_add_u32 v{vXs[0]}, v{t1}, 4, v{t0}")
    a(f"v_xor_b32 v{vXs[1]}, 64, v{vXs[0]}")
    a(f"v_add_u32 v{vXs[1]}, {8*1280 - 1024}, v{vXs[1]}")
    a(f"s_lshl_b32 s{sXoff}, s{sRB}, 7")
    a(f"s_lshl_b32 s{sT}, s{sWave}, 5")
    a(f"s_add_u32 s{sXoff}, s{sXoff}, s{sT}")
    a(f"s_mul_i32 s{sXoff}, s{sXoff}, 1280")
    a(f"s_mul_i32 s{sM0x}, s{sWave}, {X_WAVE}")
    a(f"s_add_u32 s{sM0x}, s{sM0x}, {X_OFF}")

    tokW = {}; tokXu = {}
    def ops_w(c):
        def f0():
            a(f"s_add_u32 m0, s{sM0w}, {(c % 3) * W_SLOT}")
            if c: a(f"s_add_u32 s{sWoff}, s{sWoff}, {64*3072}")
        def fi(i):
            def f():
                a(f"buffer_load_dwordx4 v{vW[i]}, s[{sW1}:{sW1+3}], s{sWoff} offen offset:{1024*i} lds")
                if i == 2: tokW[c] = a.vtok()
            return f
        return [f0] + [fi(i) for i in range(3)]
    def ops_x(u):
        c, ct = u // 2, u % 2
        def f0():
            a(f"s_add_u32 m0, s{sM0x}, {(u % NXU) * 2048}")
            a(f"s_add_u32 s{sT}, s{sXoff}, {ct*16*1280 + c*128}")
        def fi(h):
            def f():
                a(f"buffer_load_dwordx4 v{vXs[h]}, s[{sX}:{sX+3}], s{sT} offen offset:{1024*h} lds")
                if h == 1: tokXu[u] = a.vtok()
            return f
        return [f0, fi(0), fi(1)]
    def do_first():
        for f in ops_w(0) + ops_x(0) + ops_x(1) + ops_w(1) + ops_x(2) + ops_x(3): f()
    do_first()

    a(f"v_lshrrev_b32 v{t0}, 4, v{lane}")
    a(f"v_bfe_u32 v{t1}, v{lane}, 2, 2")
    a(f"v_lshl_add_u32 v{t1}, v{t0}, 3, v{t1}")
    a(f"v_mul_u32_u24 v{t1}, 192, v{t1}")
    a(f"v_and_b32 v{t2}, 3, v{lane}")
    a(f"v_lshl_add_u32 v{t1}, v{t2}, 3, v{t1}")
    a(f"v_and_b32 v{t2}, 1, v{t0}")
    a(f"v_lshlrev_b32 v{t2}, 5, v{t2}")
    a(f"v_sub_u32 v{t3}, v{t1}, v{t2}")
    a(f"v_add_u32 v{t3}, 32, v{t3}")
    a(f"v_add_u32 v{t2}, v{t1}, v{t2}")
    for P in range(3):
        a(f"s_add_u32 s{sP[P]}, s{sWave}, {P}")
        a(f"s_cmp_ge_u32 s{sP[P]}, 3")
        a(f"s_cselect_b32 s{sT}, 3, 0")
        a(f"s_sub_u32 s{sP[P]}, s{sP[P]}, s{sT}")
        a(f"s_lshl_b32 s{sT}, s{sP[P]}, 6")
        a(f"v_add_u32 v{vE[P]}, s{sT}, v{t2}")
        a(f"v_add_u32 v{vO[P]}, s{sT}, v{t3}")
    a(f"v_and_b32 v{t1}, 15, v{lane}")
    a(f"v_lshrrev_b32 v{t2}, 1, v{t1}")
    a(f"v_xor_b32 v{t2}, v{t2}, v{t0}")
    a(f"v_lshlrev_b32 v{t2}, 4, v{t2}")
    a(f"v_lshl_add_u32 v{t2}, v{t1}, 7, v{t2}")
    a(f"v_add_u32 v{vXr[0]}, s{sM0x}, v{t2}")
    a(f"v_xor_b32 v{t2}, 64, v{t2}")
    a(f"v_add_u32 v{vXr[1]}, s{sM0x}, v{t2}")
    a(f"v_lshrrev_b32 v{t2}, 3, v{t1}")
    a(f"v_and_b32 v{t1}, 7, v{t1}")
    a(f"v_lshlrev_b32 v{t1}, 3, v{t1}")
    a(f"v_lshl_add_u32 v{vsa}, v{t2}, 7, v{t1}")
    a(f"s_mul_i32 s{sT}, s{sWave}, 12")
    a(f"s_mul_i32 s{sOA}, s{sT}, {32*1280}")
    a(f"s_mul_i32 s{sT2}, s{sJD}, 160")
    a(f"s_add_u32 s{sOA}, s{sOA}, s{sT2}")
    a(f"s_mul_i32 s{sOB}, s{sTB}, 192")
    a(f"s_add_u32 s{sOB}, s{sOB}, s{sT}")
    a(f"s_lshl_b32 s{sOB}, s{sOB}, 10")
    a(f"s_add_u32 s{sOB}, s{sOB}, {WS_ACT}")
    a(f"v_lshlrev_b32 v{t0}, 3, v{t0}")

    tokA = {}; tokXr = {}
    def ops_ra(ks):
        c, e = ks // 2, ks % 2
        off = (c % 3) * W_SLOT + e * 6144
        out = []
        for rt in range(6):
            ad = (vE if rt % 2 == 0 else vO)[rt // 2]
            for h in range(2):
                def f(rt=rt, h=h, ad=ad):
                    a(f"ds_read_b64_tr_b16 {v(A[ks%2][rt] + 2*h, 2)}, v{ad} offset:{off + 768*h}")
                    tokA[(ks, rt)] = a.ltok()
                out.append(f)
        return out
    def ops_rx(c):
        out = []
        for e in range(2):
            for ct in range(2):
                def f(e=e, ct=ct):
                    a(f"ds_read_b128 {v(X[c%2][e][ct],4)}, v{vXr[e]} offset:{((2*c+ct) % NXU) * 2048}")
                    tokXr[c] = a.ltok()
                out.append(f)
        return out
    def mf(d, A_, B_, first):
        c = "0" if first else v(d, 4)
        a(f"v_mfma_f32_16x16x32_bf16 {v(d,4)}, {v(A_,4)}, {v(B_,4)}, {c}")
    wq = [0]
    tokWR = {}
    def ops_wr(n, lim=NWI):
        out = []
        for it_ in range(n):
            f_ = wq[0]
            if f_ >= lim: break
            def f(f_=f_, it_=it_):
                if f_ % 4 == 0 or it_ == 0: a(f"s_add_u32 s{sT2}, s{sOA}, {1024*(f_ - f_%4)}")
                a(f"buffer_load_dwordx4 {v(WR[f_],4)}, v{v16}, s[{sWS}:{sWS+3}], s{sT2} offen offset:{1024*(f_%4)} sc1")
                tokWR[f_] = a.vtok()
            out.append(f); wq[0] += 1
        return out
    sFB = 49
    def ld_w2flags():
        a(f"buffer_load_dword v{vfl}, v{vfa}, s[{sWS}:{sWS+3}], s{sFB} offen sc1")
    def ld_first(nl):
        a(f"v_mov_b32 v{vfl}, s{sTok}")
        a(f"s_mov_b64 exec, {hex((1 << nl) - 1)}")
        ld_w2flags()
        a("s_mov_b64 exec, -1")
    def ld_stats():
        for ct in range(2):
            a(f"buffer_load_dwordx2 {v(st[ct],2)}, v{vsa}, s[{sWS}:{sWS+3}], s{sT3} offen offset:{256*ct} sc1")
    tk = {}
    def op_tok():
        a(f"buffer_load_dword v{vtok}, v{vzero}, s[{sDBG}:{sDBG+3}], 0 offen sc1")
        tk["tok"] = a.vtok()
    def op_chk_tok():
        a.wait(vm=tk["tok"])
        check_token(a, vtok, vzero)
    def op_pace():
        a(f"v_mov_b32 v{vtok}, s{sTok}")
        a(f"s_lshl_b32 s{sT2}, s{sId}, 7")
        a(f"s_add_u32 s{sT2}, s{sT2}, {WS_FPACE}")
        a(f"s_cmp_eq_u32 s{sWave}, 0")
        a(f"s_cselect_b32 s{sT2}, s{sT2}, {WS_SIZE}")
        a("s_mov_b64 exec, 1")
        a(f"buffer_store_dword v{vtok}, v{vzero}, s[{sWS}:{sWS+3}], s{sT2} offen sc1")
        a("s_mov_b64 exec, -1")
    def op_stats():
        a(f"s_lshl_b32 s{sT3}, s{sRB}, 4")
        a(f"s_lshl_b32 s{sT2}, s{sWave}, 2")
        a(f"s_add_u32 s{sT3}, s{sT3}, s{sT2}")
        a(f"s_lshl_b32 s{sT3}, s{sT3}, 7")
        a(f"s_add_u32 s{sT3}, s{sT3}, {WS_STAT}")
        ld_stats()
        tk["st"] = a.vtok()
    def op_b1(P):
        def f():
            a(f"s_mul_i32 s{sT2}, s{sCB}, 192")
            a(f"s_lshl_b32 s{sT}, s{sP[P]}, 6")
            a(f"s_add_u32 s{sT}, s{sT}, s{sT2}")
            for o in range(2):
                a(f"buffer_load_dwordx2 {v(b1p[2*P+o],2)}, v{t0}, s[{sB1}:{sB1+3}], s{sT} offen offset:{32*o}")
        return f

    a("s_waitcnt lgkmcnt(0)")
    for P in range(3): op_b1(P)()
    a("s_waitcnt lgkmcnt(0)")
    a.wait(vm=max(tokW[0], tokXu[1]))
    for i in range(4): a(f"v_mov_b32 v{ones+i}, 0x3f803f80")
    a("s_barrier")
    stamp(a, 2)
    for f in ops_rx(0) + ops_ra(0) + ops_x(4) + ops_w(2): f()
    if PFA_ < 10: do_pf(PFA_, 10)
    op_pf2(0)()
    op_tok()
    extra = {9: [op_chk_tok], ENV("PACEKS", 13): [op_pace], 17: [op_stats]}
    for j in range(1, 8): extra.setdefault(ENV("PF2KS", 7) + j, []).append(op_pf2(j))
    if ENV("GPRIO2", 2): a(f"s_setprio {ENV('GPRIO2', 2)}")
    for ks in range(20):
        c, e = ks // 2, ks % 2
        first = ks == 0
        Xs = X[c % 2][e]; As = A[ks % 2]
        mlist = []
        for rt in range(6):
            for ct in range(2): mlist.append((rt, acc[rt][ct], As[rt], Xs[ct]))
            if rt < 2: mlist.append((rt, cs[rt], As[rt], ones))
        if e == 0:
            fill = ops_ra(ks + 1)
            dma = []
            for u in (2 * c + 5, 2 * c + 6):
                if u < 20: dma += ops_x(u)
            fl2 = []
            for i, f in enumerate(fill):
                fl2.append(f)
                if i % 2 == 1 and dma: fl2.append(dma.pop(0))
            fill = fl2 + dma + extra.get(ks, [])
            start = 0
            a.wait(lg=tokXr[c])
        else:
            fill = []
            if ks < 19:
                fill = ops_rx(c + 1) + ops_ra(ks + 1)
                if c + 3 < 10: fill += ops_w(c + 3)
            fill += extra.get(ks, [])
            start = 6 if ks < 19 else 0
        nslots = len(mlist) - start
        per = [len(fill) // nslots + (1 if i < len(fill) % nslots else 0) for i in range(nslots)]
        lastrt = -1
        for i, (rt, d, A_, B_) in enumerate(mlist):
            if e == 1 and ks < 19 and i == start:
                a.wait(vm=max(tokW[c + 1], tokXu[2 * c + 3]), lg=a.ltok())
                a("s_barrier")
                if ks in (5, 11): stamp(a, {5: 3, 11: 4}[ks])
                lastrt = 99
            if rt > lastrt:
                a.wait(lg=tokA[(ks, rt)]); lastrt = rt
            mf(d, A_, B_, first)
            if i >= start:
                for _ in range(per[i - start]): fill.pop(0)()
        assert not fill
    tokst = tk["st"]
    stamp(a, 5)

    E = Alloc(pool, limit=vpf)
    csv = [E(4, 4) for _ in range(6)]
    b1v = [E(4, 4) for _ in range(6)]
    rr = [E(2, 2) for _ in range(2)]
    rm = [st[0], st[1]]
    tmp = [E(2, 2) for _ in range(8)]
    outp = cs
    vcs = E()
    CSOFF = 2 * W_SLOT
    a(f"v_lshrrev_b32 v{t0}, 4, v{lane}")
    a(f"v_lshlrev_b32 v{vcs}, 4, v{t0}")
    a(f"s_lshl_b32 s{sT}, s{sP[0]}, 7")
    a(f"v_add_u32 v{t1}, s{sT}, v{vcs}")
    for o in range(2):
        a(f"ds_write_b128 v{t1}, {v(cs[o],4)} offset:{CSOFF + 64*o}")
    a.wait(vm=tokst)
    check_flags(a, [st[0] + 1, st[1] + 1], vsa, ld_stats)
    a("s_waitcnt lgkmcnt(0)")
    a("s_barrier")
    for P in range(3):
        a(f"s_lshl_b32 s{sT}, s{sP[P]}, 7")
        a(f"v_add_u32 v{t1}, s{sT}, v{vcs}")
        for o in range(2):
            a(f"ds_read_b128 {v(csv[2*P+o],4)}, v{t1} offset:{CSOFF + 64*o}")
    for ct in range(2):
        a(f"v_and_b32 v{t1}, 0xffff0000, v{st[ct]}")
        a(f"v_rcp_f32 v{rr[ct]}, v{t1}")
        a(f"v_lshlrev_b32 v{t2}, 16, v{st[ct]}")
        a(f"v_mul_f32 v{rr[ct]+1}, v{t2}, v{rr[ct]}")
        a(f"v_sub_f32 v{rm[ct]}, 0, v{rr[ct]+1}")
    for rt in range(6):
        a(f"v_lshlrev_b32 v{b1v[rt]}, 16, v{b1p[rt]}")
        a(f"v_and_b32 v{b1v[rt]+1}, 0xffff0000, v{b1p[rt]}")
        a(f"v_lshlrev_b32 v{b1v[rt]+2}, 16, v{b1p[rt]+1}")
        a(f"v_and_b32 v{b1v[rt]+3}, 0xffff0000, v{b1p[rt]+1}")
    a(f"s_lshl_b32 s{sT}, s{sRB}, 3")
    a(f"s_lshl_b32 s{sT2}, s{sWave}, 1")
    a(f"s_add_u32 s{sT}, s{sT}, s{sT2}")
    a(f"s_mul_i32 s{sT}, s{sT}, 48")
    a(f"s_mul_i32 s{sT2}, s{sCB}, 3")
    a(f"s_add_u32 s{sT}, s{sT}, s{sT2}")
    for P in range(3):
        a(f"s_add_u32 s{sP[P]}, s{sP[P]}, s{sT}")
        a(f"s_lshl_b32 s{sP[P]}, s{sP[P]}, 10")
        a(f"s_add_u32 s{sP[P]}, s{sP[P]}, {WS_ACT}")
    a(f"s_mov_b32 s50, {f32(LOG2E)}"); a(f"s_mov_b32 s51, {f32(LOG2E)}")
    Q = Alloc(base2, limit=256)
    acc2 = [[Q(4, 4) for ct in range(4)] for rt in range(5)]
    NST = 3
    FB = [[Q(4, 4) for _ in range(4)] for _ in range(NST)]
    vB = [Q() for _ in range(4)]
    vxo = Q(); vxo2 = Q()
    vw = [Q() for _ in range(5)]; vw8 = Q(); vw4 = Q()
    a(f"s_mul_i32 s{sM0w}, s{sWave}, 20480")
    for i in range(5):
        a(f"v_add_u32 v{t0}, {64*i}, v{lane}")
        a(f"v_mul_u32_u24 v{t1}, 0xcccd, v{t0}")
        a(f"v_lshrrev_b32 v{t1}, 19, v{t1}")
        a(f"v_mul_u32_u24 v{t2}, 10, v{t1}")
        a(f"v_sub_u32 v{t2}, v{t0}, v{t2}")
        a(f"v_mul_u32_u24 v{t1}, 1280, v{t1}")
        a(f"v_lshl_add_u32 v{vw[i]}, v{t2}, 4, v{t1}")
        if 0 < i < 4: a(f"v_subrev_u32 v{vw[i]}, {1024*i}, v{vw[i]}")
    tokD = {}
    def ops_dma(k):
        out = []
        for i in range(5):
            def f(i=i):
                if i == 0:
                    a(f"s_add_u32 m0, s{sM0w}, {5120*(k%4)}")
                    a(f"s_add_u32 s{sXoff}, s{sOA}, {32*1280*k}")
                if i == 4: a(f"s_add_u32 m0, s{sM0w}, {5120*(k%4) + 4096}")
                a(f"buffer_load_dwordx4 v{vw[i]}, s[{sW2}:{sW2+3}], s{sXoff} offen offset:{1024*i if i < 4 else 0} lds")
                tokD[k] = a.vtok()
            out.append(f)
        return out
    tokL = {}
    def op_rw(k, rt):
        o = WR[5 * (k % 5) + rt]
        for e in range(2):
            if rt < 4: a(f"ds_read_b64_tr_b16 {v(o+2*e,2)}, v{vw8} offset:{5120*(k%4) + 64*(rt>>1) + 8*(rt&1) + 2560*e}")
            else: a(f"ds_read_b64_tr_b16 {v(o+2*e,2)}, v{vw4} offset:{5120*(k%4) + 128 + 2560*e}")
        tokL[(k, rt)] = a.ltok()
    a("s_waitcnt lgkmcnt(0)")
    a("s_barrier")
    stamp(a, 6)
    k = 0
    for P in range(3):
        for ct in range(2):
            op = outp[k % 2]; k += 1
            if k == 1: dq = sum([ops_dma(k_) for k_ in range(4)], [])
            def dq_pop():
                if len(dq) > 20: dq.pop(0)()
            dq_pop()
            hs = []
            EP = ENV("EPLAIN", 0)
            for o in range(2):
                rt = 2 * P + o
                for hf in range(2):
                    h = acc[rt][ct] + 2 * hf
                    tt = tmp[len(hs)]
                    if EP:
                        for z in range(2): a(f"v_fma_f32 v{tt+z}, v{csv[rt]+2*hf+z}, v{rm[ct]}, v{b1v[rt]+2*hf+z}")
                        for z in range(2): a(f"v_fma_f32 v{h+z}, v{h+z}, v{rr[ct]}, v{tt+z}")
                    else:
                        a(f"v_pk_fma_f32 {v(tt,2)}, {v(csv[rt]+2*hf,2)}, {v(rm[ct],2)}, {v(b1v[rt]+2*hf,2)} op_sel_hi:[1,0,1]")
                        a(f"v_pk_fma_f32 {v(h,2)}, {v(h,2)}, {v(rr[ct],2)}, {v(tt,2)} op_sel_hi:[1,0,1]")
                    hs.append(h)
            def pmul(d, x, y):
                if EP:
                    for z in range(2): a(f"v_mul_f32 v{d+z}, " + (f"s50, v{x+z}" if y is None else f"v{x+z}, v{y+z}"))
                else: a(f"v_pk_mul_f32 {v(d,2)}, {v(x,2)}, " + ("s[50:51]" if y is None else v(y, 2)))
            def padd2(d, x):
                if EP:
                    for z in range(2): a(f"v_add_f32 v{d+z}, 2.0, v{x+z}")
                else: a(f"v_pk_add_f32 {v(d,2)}, {v(x,2)}, 2.0 op_sel_hi:[1,0]")
            for i, h in enumerate(hs): pmul(tmp[i], h, None)
            for i, h in enumerate(hs):
                a(f"v_min_f32 v{tmp[i]}, {f32(30.0)}, v{tmp[i]}")
                a(f"v_min_f32 v{tmp[i]+1}, {f32(30.0)}, v{tmp[i]+1}")
            dq_pop()
            for i, h in enumerate(hs):
                a(f"v_exp_f32 v{tmp[i]}, v{tmp[i]}")
                a(f"v_exp_f32 v{tmp[i]+1}, v{tmp[i]+1}")
            dq_pop()
            for i, h in enumerate(hs): padd2(tmp[4+i], tmp[i])
            for i, h in enumerate(hs): pmul(tmp[i], tmp[i], tmp[4+i])
            for i, h in enumerate(hs): padd2(tmp[4+i], tmp[i])
            for i, h in enumerate(hs):
                a(f"v_rcp_f32 v{tmp[4+i]}, v{tmp[4+i]}")
                a(f"v_rcp_f32 v{tmp[4+i]+1}, v{tmp[4+i]+1}")
            dq_pop()
            for i, h in enumerate(hs): pmul(h, h, tmp[i])
            for i, h in enumerate(hs): pmul(h, h, tmp[4+i])
            for i, h in enumerate(hs): a(f"v_cvt_pk_bf16_f32 v{op+i}, v{h}, v{h+1}")
            if ct == 0:
                a(f"buffer_store_dwordx4 {v(op,4)}, v{v16}, s[{sWS}:{sWS+3}], s{sP[P]} offen sc1")
            else:
                a(f"s_add_u32 s{sT}, s{sP[P]}, {48*1024}")
                a(f"buffer_store_dwordx4 {v(op,4)}, v{v16}, s[{sWS}:{sWS+3}], s{sT} offen sc1")
    tokst_ = a.vtok()
    stamp(a, 7)
    a(f"s_lshl_b32 s{sT}, s{sRB}, 4")
    a(f"s_add_u32 s{sT}, s{sT}, s{sCB}")
    a(f"s_lshl_b32 s{sT}, s{sT}, 2")
    a(f"s_add_u32 s{sT}, s{sT}, s{sWave}")
    a(f"s_lshl_b32 s{sT}, s{sT}, 7")
    a(f"s_add_u32 s{sT}, s{sT}, {WS_FACT}")
    a(f"v_mov_b32 v{vtok}, s{sTok}")

    for ct in range(4):
        a(f"s_add_u32 s{sT2}, s{sWave}, {ct}")
        a(f"s_and_b32 s{sT2}, s{sT2}, 3")
        a(f"s_mul_i32 s{sT2}, s{sT2}, {48*1024}")
        a(f"v_add_u32 v{vB[ct]}, s{sT2}, v{v16}")
    a(f"v_lshrrev_b32 v{t1}, 2, v{lane}")
    a(f"v_mul_u32_u24 v{t1}, 160, v{t1}")
    a(f"v_add_u32 v{t1}, s{sM0w}, v{t1}")
    a(f"v_and_b32 v{t2}, 3, v{lane}")
    a(f"v_lshl_add_u32 v{vw8}, v{t2}, 4, v{t1}")
    a(f"v_lshl_add_u32 v{vw4}, v{t2}, 3, v{t1}")
    def do_publish():
        a.wait(vm=tokst_)
        a("s_mov_b64 exec, 1")
        a(f"buffer_store_dword v{vtok}, v{vzero}, s[{sWS}:{sWS+3}], s{sT} offen sc1")
        a("s_mov_b64 exec, -1")
        if ENV("GPRIO2", 2): a(f"s_setprio {ENV('GPRIO3', 0)}")
        stamp(a, 8)
    assert len(dq) == 20
    for _ in range(10): dq.pop(0)()
    a(f"v_and_b32 v{t0}, 3, v{lane}")
    a(f"v_bfe_u32 v{t1}, v{lane}, 2, 1")
    a(f"v_lshl_add_u32 v{vfa}, v{t0}, 2, v{t1}")
    a(f"v_lshlrev_b32 v{vfa}, 7, v{vfa}")
    a(f"s_lshr_b32 s{sFB}, s{sTB}, 1")
    a(f"s_lshl_b32 s{sFB}, s{sFB}, 2")
    a(f"s_add_u32 s{sFB}, s{sFB}, s{sWave}")
    a(f"s_lshl_b32 s{sFB}, s{sFB}, 3")
    a(f"s_and_b32 s{sT2}, s{sTB}, 1")
    a(f"s_add_u32 s{sFB}, s{sFB}, s{sT2}")
    a(f"s_lshl_b32 s{sFB}, s{sFB}, 8")
    a(f"s_add_u32 s{sFB}, s{sFB}, {WS_FACT}")
    a(f"v_mul_u32_u24 v{t0}, {48*1024}, v{t0}")
    a(f"v_lshrrev_b32 v{t1}, 2, v{lane}")
    a(f"v_lshl_add_u32 v{t0}, v{t1}, 10, v{t0}")
    a(f"s_lshl_b32 s{sT2}, s{sJD}, 7")
    a(f"s_add_u32 s{sT2}, s{sT2}, s{sOB}")
    do_publish()
    while dq: dq.pop(0)()
    def rd(k):
        a.wait(vm=tokD[k])
        for rt in range(5): op_rw(k, rt)
    def dm(k):
        a.wait(lg=tokL[(k - 4, 4)])
        for f in ops_dma(k): f()
    tokB = {}
    def issue_b(k):
        for ct in range(4):
            a(f"buffer_load_dwordx4 {v(FB[k%NST][ct],4)}, v{vB[ct]}, s[{sWS}:{sWS+3}], s{sOB} offen sc1")
        tokB[k] = a.vtok()
        if k < 11: a(f"s_add_u32 s{sOB}, s{sOB}, 1024")
    FPOS = ENV("FPOS", 1)
    def fl():
        ld_first(8); tk["fa"] = a.vtok()
    rd(0); rd(1); dm(4); rd(2)
    if FPOS == 0: fl()
    dm(5)
    if FPOS == 1: fl()
    rd(3); dm(6)
    if FPOS == 2:
        fl(); dm(7)
    stamp(a, 14)
    a.wait(vm=tk["fa"])
    check_flags(a, [vfl], vfa, ld_w2flags, sleep=ENV("ASLEEP", 3))
    stamp(a, 9)
    if ENV("GPRIO2", 2): a(f"s_setprio {ENV('GPRIO4', 0)}")
    if ENV("PFA", 1):
        a("s_mov_b32 exec_hi, 0xffff")
        a(f"buffer_load_dword v{t3}, v{t0}, s[{sWS}:{sWS+3}], s{sT2} offen sc1")
        a("s_mov_b32 exec_hi, -1")
    for k in range(NST): issue_b(k)
    if FPOS != 2: dm(7)
    rd(4)
    a(f"s_lshl_b32 s{sT}, s{sTB}, 6")
    a(f"s_lshl_b32 s{sT2}, s{sWave}, 4")
    a(f"s_add_u32 s{sT}, s{sT}, s{sT2}")
    a(f"v_and_b32 v{t0}, 15, v{lane}")
    a(f"v_add_u32 v{t0}, s{sT}, v{t0}")
    a(f"v_mul_u32_u24 v{t1}, 1280, v{t0}")
    a(f"s_mul_i32 s{sT2}, s{sJD}, 160")
    a(f"v_add_u32 v{t1}, s{sT2}, v{t1}")
    a(f"v_lshrrev_b32 v{t2}, 4, v{lane}")
    a(f"v_lshl_add_u32 v{vxo}, v{t2}, 4, v{t1}")
    a(f"v_lshl_add_u32 v{vxo2}, v{t2}, 3, v{t1}")
    a(f"v_min_u32 v{vfa}, 19, v{lane}")
    a(f"v_lshlrev_b32 v{vfa}, 7, v{vfa}")
    a(f"s_mul_i32 s{sT3}, s{sJD}, 80")
    a(f"s_mul_i32 s{sT}, s{sWave}, 20")
    a(f"s_add_u32 s{sWoff}, s{sT3}, s{sT}")
    a(f"s_lshl_b32 s{sT3}, s{sWoff}, 7")
    a(f"s_lshr_b32 s{sT}, s{sTB}, 3")
    a(f"s_lshl_b32 s{sT}, s{sT}, 2")
    a(f"s_add_u32 s{sT3}, s{sT3}, s{sT}")
    a(f"s_add_u32 s{sFB}, s{sT3}, {WS_FST}")
    slot = {f: f % 25 for f in range(60)}
    for k in range(12):
        dma = ops_dma(k + 8) if k <= 3 else []
        for rt in range(5):
            if rt == 0: a.wait(vm=tokB[k])
            if k >= 4: a.wait(lg=tokL[(k, rt)])
            if rt == 1 and dma: a.wait(lg=tokL[(k + 4, 4)])
            for ct in range(4):
                c = "0" if k == 0 else v(acc2[rt][ct], 4)
                a(f"v_mfma_f32_16x16x32_bf16 {v(acc2[rt][ct],4)}, {v(WR[slot[5*k+rt]],4)}, {v(FB[k%NST][ct],4)}, {c}")
                if ct == 0 and rt >= 1 and k + 5 < 12:
                    if rt == 1: a.wait(vm=tokD[k + 5])
                    op_rw(k + 5, rt - 1)
                if ct == 2 and rt >= 1 and dma: dma.pop(0)()
        if k + 5 < 12: op_rw(k + 5, 4)
        while dma: dma.pop(0)()
        if k in (0, 5): stamp(a, {0: 10, 5: 11}[k])
        if k + NST < 12: issue_b(k + NST)
        if k == 8:
            ld_first(20); tokfl = a.vtok()
            xr = WR[slot[35]]
            xq = [WR[slot[35]], WR[slot[36]], WR[slot[37]]]
            a(f"buffer_load_dwordx4 {v(xq[0],4)}, v{vxo}, s[{sX}:{sX+3}], 0 offen")
            a(f"buffer_load_dwordx4 {v(xq[1],4)}, v{vxo}, s[{sX}:{sX+3}], 0 offen offset:64")
            a(f"buffer_load_dwordx2 {v(xq[2],2)}, v{vxo2}, s[{sX}:{sX+3}], 0 offen offset:128")
            a("s_waitcnt lgkmcnt(0)")
            a("s_barrier")
        if k == 10:
            a.wait(vm=tokfl)
            check_flags(a, [vfl], vfa, ld_w2flags, sleep=ENV("STSLEEP", 8))
            sq = [WR[slot[40]], WR[slot[41]], WR[slot[42]]]
            vso = WR[slot[43]]; vsw = vso + 1
            a(f"v_lshrrev_b32 v{t0}, 3, v{lane}")
            a(f"v_and_b32 v{t1}, 7, v{lane}")
            a(f"v_lshlrev_b32 v{t1}, 4, v{t1}")
            a(f"v_lshl_add_u32 v{vso}, v{t0}, 12, v{t1}")
            a(f"v_mul_u32_u24 v{vsw}, 160, v{t0}")
            a(f"v_add_u32 v{vsw}, v{vsw}, v{t1}")
            a(f"s_mul_i32 s{sT}, s{sWave}, {20*160}")
            a(f"v_add_u32 v{vsw}, s{sT}, v{vsw}")
            a(f"s_lshl_b32 s{sT}, s{sWoff}, 12")
            a(f"s_lshl_b32 s{sT2}, s{sTB}, 7")
            a(f"s_add_u32 s{sT}, s{sT}, s{sT2}")
            a(f"s_add_u32 s{sT}, s{sT}, {WS_ST}")
            for i in range(3):
                if i == 2: a("s_mov_b32 exec_hi, 0")
                a(f"buffer_load_dwordx4 {v(sq[i],4)}, v{vso}, s[{sWS}:{sWS+3}], s{sT} offen sc1")
                if i < 2: a(f"s_add_u32 s{sT}, s{sT}, {8*4096}")
            a("s_mov_b32 exec_hi, -1")
            toks_ = a.vtok()
    stamp(a, 12)
    STOFF = 61440
    for ct in range(1, 4):
        a(f"s_add_u32 s{sT2}, s{sWave}, {ct}")
        a(f"s_and_b32 s{sT2}, s{sT2}, 3")
        a(f"s_mul_i32 s{sT2}, s{sT2}, 15360")
        a(f"v_add_u32 v{t3}, s{sT2}, v{v16}")
        for rt in range(5):
            a(f"ds_write_b128 v{t3}, {v(acc2[rt][ct],4)} offset:{(ct-1)*5120 + rt*1024}")
    a("s_waitcnt vmcnt(0)")
    for i in range(3):
        if i == 2: a("s_mov_b32 exec_hi, 0")
        a(f"ds_write_b128 v{vsw}, {v(sq[i],4)} offset:{STOFF + 8*160*i}")
    a("s_mov_b32 exec_hi, -1")
    Pr = [[acc2[rt][p + 1] for rt in range(5)] for p in range(3)]
    T = [FB[i // 8][(i // 2) % 4] + 2 * (i % 2) for i in range(10)]
    sv = [FB[2][i // 2] + 2 * (i % 2) for i in range(5)]
    op = [FB[1][1], FB[1][2], FB[1][3]]
    vt8 = vB[0]; vt4 = vB[1]
    a(f"v_bfe_u32 v{t0}, v{lane}, 2, 2")
    a(f"v_lshl_add_u32 v{t1}, v{t2}, 3, v{t0}")
    a(f"v_lshl_add_u32 v{t0}, v{t2}, 2, v{t0}")
    a(f"v_mul_u32_u24 v{t1}, 160, v{t1}")
    a(f"v_mul_u32_u24 v{t0}, 160, v{t0}")
    a(f"v_and_b32 v{t3}, 3, v{lane}")
    a(f"s_lshl_b32 s{sT}, s{sWave}, 5")
    a(f"s_add_u32 s{sT}, s{sT}, {STOFF}")
    a(f"v_lshl_add_u32 v{t3}, v{t3}, 3, s{sT}")
    a(f"v_add_u32 v{vt8}, v{t1}, v{t3}")
    a(f"v_add_u32 v{vt4}, v{t0}, v{t3}")
    a(f"s_mul_i32 s{sT2}, s{sWave}, 15360")
    a(f"v_add_u32 v{t3}, s{sT2}, v{v16}")
    a(f"s_mov_b32 s50, {f32(-LOG2E)}"); a(f"s_mov_b32 s51, {f32(-LOG2E)}")
    a("s_waitcnt lgkmcnt(0)")
    a("s_barrier")
    stamp(a, 13)
    tk = {}
    for rt in range(5):
        for p in range(3):
            a(f"ds_read_b128 {v(Pr[p][rt],4)}, v{t3} offset:{p*5120 + rt*1024}")
        tk[rt] = a.ltok()
    for rt in range(5):
        if rt < 4: a(f"ds_read_b64_tr_b16 {v(sv[rt],2)}, v{vt8} offset:{160*(32*(rt>>1) + 4*(rt&1))}")
        else: a(f"ds_read_b64_tr_b16 {v(sv[rt],2)}, v{vt4} offset:{160*64}")
    o2 = []
    for rt in range(5):
        a.wait(lg=tk[rt])
        for hf in range(2):
            d = acc2[rt][0] + 2 * hf
            for p in range(3):
                a(f"v_pk_add_f32 {v(d,2)}, {v(d,2)}, {v(Pr[p][rt]+2*hf,2)}")
            o2.append(d)
    for i, d in enumerate(o2):
        a(f"v_cvt_pk_bf16_f32 v{T[i]}, v{d}, v{d+1}")
        a(f"v_lshlrev_b32 v{d}, 16, v{T[i]}")
        a(f"v_and_b32 v{d+1}, 0xffff0000, v{T[i]}")
        a(f"v_pk_mul_f32 {v(T[i],2)}, {v(d,2)}, s[50:51]")
    for i, d in enumerate(o2):
        a(f"v_exp_f32 v{T[i]}, v{T[i]}")
        a(f"v_exp_f32 v{T[i]+1}, v{T[i]+1}")
    for i, d in enumerate(o2): a(f"v_pk_add_f32 {v(T[i],2)}, {v(T[i],2)}, 1.0 op_sel_hi:[1,0]")
    for i, d in enumerate(o2):
        a(f"v_rcp_f32 v{T[i]}, v{T[i]}")
        a(f"v_rcp_f32 v{T[i]+1}, v{T[i]+1}")
    a("s_waitcnt lgkmcnt(0)")
    for i, d in enumerate(o2):
        s_ = sv[i // 2] + i % 2
        x_ = xq[i // 4] + i % 4
        U_ = Pr[0][i // 2] + 2 * (i % 2)
        a(f"v_pk_mul_f32 {v(d,2)}, {v(d,2)}, {v(T[i],2)}")
        a(f"v_cvt_pk_bf16_f32 v{T[i]}, v{d}, v{d+1}")
        a(f"v_lshlrev_b32 v{d}, 16, v{T[i]}")
        a(f"v_and_b32 v{d+1}, 0xffff0000, v{T[i]}")
        a(f"v_lshlrev_b32 v{U_}, 16, v{s_}")
        a(f"v_and_b32 v{U_+1}, 0xffff0000, v{s_}")
        a(f"v_pk_mul_f32 {v(d,2)}, {v(d,2)}, {v(U_,2)}")
        a(f"v_cvt_pk_bf16_f32 v{T[i]}, v{d}, v{d+1}")
        a(f"v_lshlrev_b32 v{d}, 16, v{T[i]}")
        a(f"v_and_b32 v{d+1}, 0xffff0000, v{T[i]}")
        a(f"v_lshlrev_b32 v{U_}, 16, v{x_}")
        a(f"v_and_b32 v{U_+1}, 0xffff0000, v{x_}")
        a(f"v_pk_add_f32 {v(d,2)}, {v(d,2)}, {v(U_,2)}")
        a(f"v_cvt_pk_bf16_f32 v{op[i//4] + i%4}, v{d}, v{d+1}")
        if i == 3: a(f"buffer_store_dwordx4 {v(op[0],4)}, v{vxo}, s[{sOUT}:{sOUT+3}], 0 offen")
        if i == 7: a(f"buffer_store_dwordx4 {v(op[1],4)}, v{vxo}, s[{sOUT}:{sOUT+3}], 0 offen offset:64")
    a(f"buffer_store_dwordx2 {v(op[2],2)}, v{vxo2}, s[{sOUT}:{sOUT+3}], 0 offen offset:128")
    stamp_end(a, sWave)
    return max(R.hi, E.hi, Q.hi)

def main(out):
    ref = open(f"cdna_kernels/{NAME}.s.ref").read().split("\n")
    hdr = [l for l in ref if l.startswith(";") and "@launch" not in l]
    hdr.append(f"; @launch grid=(512,1,1) block=(256,1,1) lds={LDS_BYTES}")
    a = Asm()
    a.raw(f'.amdgcn_target "amdgcn-amd-amdhsa--gfx950"\n.text\n.globl {KN}\n.p2align 8\n.type {KN},@function')
    a.label(KN)
    a("s_cmp_lt_u32 s2, 256")
    a("s_cbranch_scc1 " + ("K_exit" if ENV("NOS", 0) else "S_role"))
    a(f"s_cmp_ge_u32 s2, {256 if ENV('NOG', 0) else 512}")
    a("s_cbranch_scc1 K_exit")
    hg = g_role(a)
    a.label("S_role"); a.flush_hist()
    hs = s_role(a)
    a.label("K_exit")
    a("s_endpgm")
    a.raw(".p2align 15")
    print("vgprs", hg, hs, "nops", a.nnop, "lines", len(a.items), file=sys.stderr)
    kd = f""".section .rodata,"a"
.p2align 6
.amdhsa_kernel {KN}
  .amdhsa_next_free_vgpr 256
  .amdhsa_next_free_sgpr {102 if STAMPS else 64}
  .amdhsa_accum_offset 256
  .amdhsa_group_segment_fixed_size 0
  .amdhsa_kernarg_size 128
  .amdhsa_user_sgpr_count 2
  .amdhsa_user_sgpr_kernarg_segment_ptr 1
  .amdhsa_system_sgpr_workgroup_id_x 1
  .amdhsa_float_denorm_mode_32 3
  .amdhsa_float_denorm_mode_16_64 3
.end_amdhsa_kernel
"""
    open(out, "w").write("\n".join(hdr) + "\n" + a.text() + kd)

if __name__ == "__main__":
    main(sys.argv[1] if len(sys.argv) > 1 else f"cdna_kernels/{NAME}.s")
```

```python
import sys, os, struct, math
sys.path.insert(0, os.path.dirname(os.path.abspath(__file__)))
from asmlib import *

NAME = "recurrent_scan__ssm_conv_s4__dense_activation_mish__prompt"
KN = NAME + "_kernel"
L, D, N, F = 2048, 640, 192, 1536
ENV = lambda k, d: int(os.environ.get(k, str(d)))
STAMPS = ENV("STAMPS", 0)

WS_XT2 = 0x0000000
WS_ST  = 0x0400000
WS_W2A = 0x0800000
WS_ACT = 0x0C00000
WS_STAT = 0x1400000
WS_FLN = 0x1500000
WS_FPACE = 0x1510000
WS_FACT = 0x1520000
WS_FST = 0x1560000
WS_SIZE = 0x1600000
WS_STAMP = 0x4000000
LDS_BYTES = 81920
SPIN_MAX = 0x4000

def f32(x): return "0x%08x" % struct.unpack("<I", struct.pack("<f", x))[0]
LOG2E = 1.4426950408889634
LN2 = 0.6931471805599453

def srd(a, sreg, size):
    a(f"s_mov_b32 s{sreg+2}, {size}")
    a(f"s_mov_b32 s{sreg+3}, 0x20000")

def bf16r(a, dst, src):
    a(f"v_cvt_pk_bf16_f32 v{dst}, v{src}, v{src}")
    a(f"v_and_b32 v{dst}, 0xffff0000, v{dst}")

_sn = [0]
def stamp_begin(a):
    _sn[0] = 0
    if STAMPS:
        a("s_memrealtime s[60:61]")
        for i in range(64, 96, 2): a(f"s_mov_b64 s[{i}:{i+1}], 0")
        a("s_memtime s[64:65]")
        _sn[0] = 1
def stamp(a, n=None):
    if STAMPS:
        if n is None:
            n = _sn[0]; _sn[0] += 1
        assert n < 16
        a(f"s_memtime s[{64+2*n}:{65+2*n}]")
def stamp_end(a, sWave):
    if STAMPS:
        stamp(a, 15)
        a("s_memrealtime s[62:63]")
        a("s_load_dwordx2 s[96:97], s[0:1], 120")
        a("s_waitcnt lgkmcnt(0)")
        a(f"s_add_u32 s96, s96, {WS_STAMP}")
        a("s_addc_u32 s97, s97, 0")
        a("s_mov_b32 s98, 0x100000")
        a("s_mov_b32 s99, 0x20000")
        a("s_lshl_b32 s59, s2, 10")
        a(f"s_lshl_b32 s58, s{sWave}, 8")
        a("s_add_u32 s59, s59, s58")
        a("s_mov_b64 exec, 1")
        a("v_mov_b32 v1, s59")
        a("v_mov_b32 v2, s60"); a("v_mov_b32 v3, s62")
        a("buffer_store_dwordx2 v[2:3], v1, s[96:99], 0 offen")
        for n in range(16):
            a(f"s_sub_u32 s59, s{64+2*n}, s64")
            a(f"s_cmp_eq_u32 s{64+2*n}, 0")
            a(f"s_cselect_b32 s59, 0, s59")
            a(f"v_mov_b32 v{4 + n}, s59")
            a(f"buffer_store_dword v{4 + n}, v1, s[96:99], 0 offen offset:{16+4*n}")
    a("s_endpgm")

_lab = [0]
def newlab(p):
    _lab[0] += 1
    return f"{p}_{_lab[0]}"

sWS, sDBG = 4, 8
sWave, sTok, sSpin = 12, 13, 14
sT, sT2, sT3 = 15, 16, 17

def check_token(a, vtok, vzero):
    done = newlab("TK"); loop = newlab("TL")
    if ENV("NOS", 0) or os.environ.get("ONLY", ""):
        a(f"s_mov_b32 s{sTok}, 0x12345"); return
    a(f"v_readfirstlane_b32 s{sTok}, v{vtok}")
    a(f"s_cmp_lg_u32 s{sTok}, 0")
    a(f"s_cbranch_scc1 {done}")
    a(f"s_mov_b32 s{sSpin}, 0")
    a.label(loop)
    a("s_sleep 2")
    a(f"buffer_load_dword v{vtok}, v{vzero}, s[{sDBG}:{sDBG+3}], 0 offen sc1"); a.vm -= 1
    a("s_waitcnt vmcnt(0)")
    a(f"v_readfirstlane_b32 s{sTok}, v{vtok}")
    a(f"s_cmp_lg_u32 s{sTok}, 0")
    a(f"s_cbranch_scc1 {done}")
    a(f"s_add_u32 s{sSpin}, s{sSpin}, 1")
    a(f"s_cmp_lt_u32 s{sSpin}, {SPIN_MAX}")
    a(f"s_cbranch_scc1 {loop}")
    a.label(done)

def check_flags(a, vfl, vaddr, reload, sleep=2):
    if (ENV("NOS", 0) or os.environ.get("ONLY", "")) and sleep != 3: return
    done = newlab("FD"); loop = newlab("FL")
    def cmpall():
        a(f"v_cmp_ne_u32 vcc, s{sTok}, v{vfl[0]}")
        for r_ in vfl[1:]:
            a(f"v_cmp_ne_u32 s[18:19], s{sTok}, v{r_}")
            a("s_or_b64 vcc, vcc, s[18:19]")
        a("s_cmp_eq_u64 vcc, 0")
    cmpall()
    a(f"s_cbranch_scc1 {done}")
    a(f"s_mov_b32 s{sSpin}, 0")
    a.label(loop)
    a(f"s_sleep {sleep}")
    n0 = a.vm
    a("s_mov_b64 exec, vcc")
    reload()
    a("s_mov_b64 exec, -1")
    a.vm = n0
    a("s_waitcnt vmcnt(0)")
    cmpall()
    a(f"s_cbranch_scc1 {done}")
    a(f"s_add_u32 s{sSpin}, s{sSpin}, 1")
    a(f"s_cmp_lt_u32 s{sSpin}, {SPIN_MAX}")
    a(f"s_cbranch_scc1 {loop}")
    a.label(done)

CV_S = 4160
CH_REG = 64 * 272
CV_U = [3 * CH_REG + 512 + 4608 * i for i in range(3)]
LN_OFF = 3 * CH_REG + 3 * 4608
LN_S = 1344
PACE_OFF = LDS_BYTES - 16
KG_S = 272
COARSE = list(range(8)) + [256, 258, 260, 262, 512, 516, 768, 772, 1024, 1280, 1536, 1792, 2048]
assert LN_OFF + 8 * LN_S <= LDS_BYTES and 4 * CV_S <= CH_REG

def s_role(a):
    sX_, sA, sXc = 20, 24, 25
    sD = [26, 27, 28]
    sCnt, sPar, sSlot, sRound, sHeavy = 29, 30, 31, 56, 57
    SP = [32, 36, 40, 44, 48, 52]
    R = Alloc(1)
    lane = R(); t0 = R(); t1 = R(); t2 = R(); t3 = R(); vzero = R(); vtok = R(); v16 = R()
    vdk = [R(), R()]
    base = R.mark()
    stamp_begin(a)
    a(f"s_load_dwordx2 s[{sWS}:{sWS+1}], s[0:1], 120")
    a(f"s_load_dwordx2 s[{sDBG}:{sDBG+1}], s[0:1], 112")
    a(f"v_lshrrev_b32 v{t0}, 6, v0")
    a(f"v_and_b32 v{lane}, 63, v0")
    a(f"v_readfirstlane_b32 s{sWave}, v{t0}")
    srd(a, sWS, WS_SIZE); srd(a, sDBG, 256)
    a(f"s_and_b32 s{sXc}, s2, 7")
    a(f"s_lshr_b32 s{sA}, s2, 3")
    a(f"s_lshl_b32 s{sD[0]}, s{sXc}, 6")
    a(f"s_lshl_b32 s{sT}, s{sA}, 1")
    a(f"s_add_u32 s{sD[0]}, s{sD[0]}, s{sT}")
    a(f"s_add_u32 s{sD[1]}, s{sD[0]}, 1")
    a(f"s_lshl_b32 s{sD[2]}, s{sXc}, 4")
    a(f"s_add_u32 s{sD[2]}, s{sD[2]}, s{sA}")
    a(f"s_add_u32 s{sD[2]}, s{sD[2]}, 512")
    a(f"s_cmp_lt_u32 s{sA}, 16")
    a(f"s_cselect_b32 s{sHeavy}, 1, 0")
    a(f"v_mov_b32 v{vzero}, 0")
    a(f"v_lshlrev_b32 v{v16}, 4, v{lane}")
    ONLY = os.environ.get("ONLY", "")
    if ENV("SPRIO0", 0): a(f"s_setprio {ENV('SPRIO0', 0)}")
    a(f"s_lshr_b32 s{sSlot}, s{sWave}, 1")
    a(f"s_cmp_eq_u32 s{sWave}, 3")
    a("s_cbranch_scc1 " + ("S_ln" if (not ONLY or "l" in ONLY) else "K_exit"))
    a(f"s_add_u32 s{sT}, s{sHeavy}, 2")
    a(f"s_cmp_ge_u32 s{sWave}, s{sT}")
    a("s_cbranch_scc1 " + ("S_w2t" if (not ONLY or "w" in ONLY) else "K_exit"))
    if ONLY and "k" not in ONLY: a("s_branch K_exit")

    P = [[R() for _ in range(6)] for _ in range(3)]
    vdt = R(); vwr = R(); vrd = R(); voff = R()
    accK = R(16, 4)
    FA = [R(4, 4) for _ in range(8)]; FB = [R(4, 4) for _ in range(8)]
    pr = lambda: R(2, 2)
    l1, l8, l256, W, E0, E1, E2, T, T2, G2, G4, G6, V, a2b = [pr() for _ in range(14)]
    Qr = [R(4, 4) for _ in range(2)]; Qi = [R(4, 4) for _ in range(2)]
    Cr = R(16, 4); Ci = R(16, 4)
    sDd, sBase = 58, 59
    if STAMPS: sDd, sBase = 100, 101
    for i, sr in enumerate(SP):
        a(f"s_load_dwordx2 s[{sr}:{sr+1}], s[0:1], {8 + 8*i}")
    a(f"s_load_dwordx2 s[{sX_}:{sX_+1}], s[0:1], 56")
    a(f"s_load_dwordx2 s[18:19], s[0:1], 64")
    a(f"s_cmp_eq_u32 s{sWave}, 1")
    a(f"s_cselect_b32 s{sDd}, s{sD[1]}, s{sD[0]}")
    a(f"s_cmp_eq_u32 s{sWave}, 2")
    a(f"s_cselect_b32 s{sDd}, s{sD[2]}, s{sDd}")
    for sr in SP: srd(a, sr, D * N * 2)
    srd(a, sX_, D * 2)
    a(f"s_mul_i32 s{sT}, s{sDd}, {N*2}")
    a(f"v_lshlrev_b32 v{voff}, 1, v{lane}")
    a(f"s_lshl_b32 s{sT2}, s{sDd}, 1")
    a("s_waitcnt lgkmcnt(0)")
    a(f"buffer_load_ushort v{vdt}, v{vzero}, s[{sX_}:{sX_+3}], s{sT2} offen")
    a(f"s_mov_b32 s{sX_}, s18"); a(f"s_mov_b32 s{sX_+1}, s19")
    a(f"buffer_load_ushort v{vdk[0]}, v{vzero}, s[{sX_}:{sX_+3}], s{sT2} offen")
    for p in range(3):
        for i, sr in enumerate(SP):
            a(f"buffer_load_ushort v{P[p][i]}, v{voff}, s[{sr}:{sr+3}], s{sT} offen offset:{128*p}")
    a(f"s_mul_i32 s{sBase}, s{sWave}, {CH_REG}")
    a(f"v_mul_u32_u24 v{vwr}, {KG_S}, v{lane}")
    a(f"v_add_u32 v{vwr}, s{sBase}, v{vwr}")
    a(f"v_bfe_u32 v{t0}, v{lane}, 2, 2")
    a(f"v_lshrrev_b32 v{t1}, 5, v{lane}")
    a(f"v_lshl_add_u32 v{t0}, v{t0}, 2, v{t1}")
    a(f"v_mul_u32_u24 v{t0}, {KG_S}, v{t0}")
    a(f"v_bfe_u32 v{t1}, v{lane}, 4, 1")
    a(f"v_lshl_add_u32 v{t0}, v{t1}, 5, v{t0}")
    a(f"v_and_b32 v{t1}, 3, v{lane}")
    a(f"v_lshl_add_u32 v{t0}, v{t1}, 3, v{t0}")
    a(f"v_add_u32 v{vrd}, s{sBase}, v{t0}")
    for i in (13, 15): a(f"v_mov_b32 v{Cr+i}, 0"); a(f"v_mov_b32 v{Ci+i}, 0")
    a("s_waitcnt vmcnt(0)")
    stamp(a, 1)
    a(f"v_lshlrev_b32 v{vdt}, 16, v{vdt}")
    a(f"v_mul_f32 v{t0}, {f32(LOG2E)}, v{vdt}")
    a(f"s_mov_b32 s{sT}, {f32(LOG2E)}")
    a(f"v_fma_f32 v{t1}, v{vdt}, s{sT}, -v{t0}")
    lo = LOG2E - struct.unpack("<f", struct.pack("<f", LOG2E))[0]
    a(f"v_fmac_f32 v{t1}, {f32(lo)}, v{vdt}")
    a(f"v_exp_f32 v{t0}, v{t0}")
    a(f"v_mul_f32 v{t1}, {f32(LN2)}, v{t1}")
    a(f"v_fma_f32 v{t0}, v{t0}, v{t1}, v{t0}")
    bf16r(a, vdt, t0)
    a(f"s_mov_b32 s{sCnt}, 0")
    def cmul(dst, e, m):
        if ENV("KPK", 0):
            a(f"v_pk_mul_f32 {v(T,2)}, {v(e,2)}, {v(m,2)} op_sel:[0,0] op_sel_hi:[0,1]")
            a(f"v_pk_fma_f32 {v(dst,2)}, {v(e,2)}, {v(m,2)}, {v(T,2)} op_sel:[1,1,0] op_sel_hi:[1,0,1] neg_lo:[0,1,0]")
        else:
            assert dst != e and dst != m
            a(f"v_mul_f32 v{dst}, v{e}, v{m}")
            a(f"v_mul_f32 v{dst+1}, v{e}, v{m+1}")
            a(f"v_fma_f32 v{dst}, -v{e+1}, v{m+1}, v{dst}")
            a(f"v_fmac_f32 v{dst+1}, v{e+1}, v{m}")
    def cexp(dst, scale):
        if scale == 1:
            a(f"v_exp_f32 v{t0}, v{a2b}")
            a(f"v_fract_f32 v{t1}, v{a2b+1}")
        else:
            a(f"v_mul_f32 v{t0}, {f32(float(scale))}, v{a2b}")
            a(f"v_mul_f32 v{t1}, {f32(float(scale))}, v{a2b+1}")
            a(f"v_exp_f32 v{t0}, v{t0}")
            a(f"v_fract_f32 v{t1}, v{t1}")
        a(f"v_cos_f32 v{dst}, v{t1}")
        a(f"v_sin_f32 v{dst+1}, v{t1}")
        a(f"v_mul_f32 v{dst}, v{dst}, v{t0}")
        a(f"v_mul_f32 v{dst+1}, v{dst+1}, v{t0}")
    def mfmas():
        for ks in range(8):
            a(f"v_mfma_f32_32x32x16_bf16 {v(accK,16)}, {v(FA[ks],4)}, {v(FB[ks],4)}, {v(accK,16)}")
    def cpair(dw, x, y):
        a(f"v_cvt_pk_bf16_f32 v{Cr+dw}, v{x}, v{y}")
        a(f"v_cvt_pk_bf16_f32 v{Ci+dw}, -v{x+1}, -v{y+1}")
    if ENV("XKG", 0): a("s_branch KG_after")
    a.label("KG_loop")
    a.flush_hist()
    _a = a
    if ENV("XKW", 0) or ENV("XKM", 0) or ENV("XKR", 0):
        class Filt:
            def __call__(self, t):
                if ENV("XKW", 0) and t.startswith("ds_write"): return
                if ENV("XKR", 0) and t.startswith("ds_read"): return
                if ENV("XKM", 0) and t.startswith("v_mfma"): return
                _a(t)
            def __getattr__(self, n): return getattr(_a, n)
        a = Filt()
    p0 = P[0]
    for i in range(4): a(f"v_lshlrev_b32 v{p0[i]}, 16, v{p0[i]}")
    a(f"v_lshlrev_b32 v{V}, 16, v{p0[4]}")
    a(f"v_lshlrev_b32 v{V+1}, 16, v{p0[5]}")
    a(f"v_mul_f32 v{p0[0]}, v{vdt}, v{p0[0]}")
    a(f"v_mul_f32 v{p0[1]}, v{vdt}, v{p0[1]}")
    a(f"v_mul_f32 v{T2}, v{vdt}, v{p0[2]}")
    a(f"v_mul_f32 v{T2+1}, v{vdt}, v{p0[3]}")
    a(f"v_mul_f32 v{a2b}, {f32(LOG2E)}, v{p0[0]}")
    a(f"v_mul_f32 v{a2b+1}, {f32(1.0/(2*math.pi))}, v{p0[1]}")
    cmul(W, V, T2)
    cexp(l8, 8); cexp(l1, 1); cexp(l256, 256)
    if STAMPS: a("s_memtime s[18:19]")
    a("s_waitcnt lgkmcnt(0)")
    if STAMPS:
        a(f"s_cmp_eq_u32 s{sCnt}, 1")
        a("s_cselect_b32 s82, s18, s82")
        a(f"s_cmp_eq_u32 s{sCnt}, 2")
        a("s_cselect_b32 s84, s18, s84")
    a(f"v_cvt_pk_bf16_f32 v{Qr[0]}, 1.0, v{l8}")
    a(f"v_cvt_pk_bf16_f32 v{Qi[0]}, 0, v{l8+1}")
    cur = l8
    for f in range(2, 32, 2):
        if f // 2 - 1 < 8:
            ks = f // 2 - 1
            a(f"v_mfma_f32_32x32x16_bf16 {v(accK,16)}, {v(FA[ks],4)}, {v(FB[ks],4)}, {v(accK,16)}")
        cmul(E0, cur, l8); cmul(E1, E0, l8); cur = E1
        g, dw = f // 8, (f % 8) // 2
        a(f"v_cvt_pk_bf16_f32 v{Qr[g%2]+dw}, v{E0}, v{E1}")
        a(f"v_cvt_pk_bf16_f32 v{Qi[g%2]+dw}, v{E0+1}, v{E1+1}")
        if dw == 3:
            a(f"ds_write_b128 v{vwr}, {v(Qr[g%2],4)} offset:{16*g}")
            a(f"ds_write_b128 v{vwr}, {v(Qi[g%2],4)} offset:{64+16*g}")
    cmul(E0, W, l1); cpair(0, W, E0)
    cmul(G2, E0, l1); cmul(E0, G2, l1); cpair(1, G2, E0)
    cmul(G4, E0, l1); cmul(E0, G4, l1); cpair(4, G4, E0)
    cmul(G6, E0, l1); cmul(E0, G6, l1); cpair(5, G6, E0)
    cmul(E0, G2, l256); cmul(E1, G6, l256); cpair(3, E0, E1)
    cmul(E0, G4, l256); cmul(E1, E0, l256); cpair(7, E0, E1)
    cmul(E0, E1, l256); cpair(11, E0, E0)
    cur = W
    dwv = {1: 2, 2: 6, 3: 10, 4: 8, 5: 9, 6: 12, 7: 14}
    for j in range(1, 8):
        nx = [E0, E2][j % 2]
        cmul(nx, cur, l256); cmul(E1, nx, l8); cpair(dwv[j], nx, E1); cur = nx
        if j in (1, 2):
            g = j - 1
            a(f"ds_write_b128 v{vwr}, {v(Cr+4*g,4)} offset:{128+16*g}")
            a(f"ds_write_b128 v{vwr}, {v(Ci+4*g,4)} offset:{192+16*g}")
        if j in (5, 7):
            g = {5: 2, 7: 3}[j]
            a(f"ds_write_b128 v{vwr}, {v(Cr+4*g,4)} offset:{128+16*g}")
            a(f"ds_write_b128 v{vwr}, {v(Ci+4*g,4)} offset:{192+16*g}")
    for ks in range(8):
        o = (16 * (ks >> 1) + 2 * (ks & 1)) * KG_S
        a(f"ds_read_b64_tr_b16 {v(FA[ks],2)}, v{vrd} offset:{o+128}")
        a(f"ds_read_b64_tr_b16 {v(FA[ks]+2,2)}, v{vrd} offset:{o+192}")
        a(f"ds_read_b64_tr_b16 {v(FB[ks],2)}, v{vrd} offset:{o}")
        a(f"ds_read_b64_tr_b16 {v(FB[ks]+2,2)}, v{vrd} offset:{o+64}")
    for i in range(6):
        a(f"v_mov_b32 v{P[0][i]}, v{P[1][i]}")
        a(f"v_mov_b32 v{P[1][i]}, v{P[2][i]}")
    a(f"s_cmp_eq_u32 s{sCnt}, 0")
    a(f"s_cselect_b32 s{sT}, 0, -1")
    for i in range(16): a(f"v_and_b32 v{accK+i}, s{sT}, v{accK+i}")
    if STAMPS and 0:
        a("s_memtime s[18:19]")
        a("s_waitcnt lgkmcnt(0)")
        a(f"s_cmp_eq_u32 s{sCnt}, 0")
        a("s_cselect_b32 s82, s18, s82")
        a(f"s_cmp_eq_u32 s{sCnt}, 1")
        a("s_cselect_b32 s84, s18, s84")
    a(f"s_add_u32 s{sCnt}, s{sCnt}, 1")
    a(f"s_cmp_lt_u32 s{sCnt}, 3")
    a("s_cbranch_scc1 KG_loop")
    a = _a
    a.label("KG_after")
    stamp(a, 2)
    a(f"buffer_load_dword v{vtok}, v{vzero}, s[{sDBG}:{sDBG+3}], 0 offen sc1")
    vJa = P[0][0]; vJb = P[0][1]; u0 = P[0][2]; u1 = P[0][3]
    a(f"v_and_b32 v{t0}, 31, v{lane}")
    a(f"v_lshlrev_b32 v{t0}, 4, v{t0}")
    a(f"v_lshrrev_b32 v{t1}, 5, v{lane}")
    a(f"v_lshl_add_u32 v{t2}, v{t1}, 9, v{t0}")
    a(f"s_add_u32 s{sT}, s{sBase}, 1008")
    a(f"v_sub_u32 v{vJa}, s{sT}, v{t2}")
    a(f"v_lshlrev_b32 v{t2}, 10, v{t1}")
    a(f"v_sub_u32 v{t2}, v{t2}, v{t0}")
    a(f"s_add_u32 s{sT}, s{sBase}, 496")
    a(f"v_add_u32 v{vJb}, s{sT}, v{t2}")
    Z = Qr[0]
    for i in range(4): a(f"v_mov_b32 v{Z+i}, 0")
    a(f"v_lshrrev_b32 v{u0}, 2, v{lane}")
    a(f"v_mul_u32_u24 v{u0}, {CV_S}, v{u0}")
    a(f"v_and_b32 v{u1}, 3, v{lane}")
    a(f"v_lshl_add_u32 v{u0}, v{u1}, 4, v{u0}")
    a(f"v_add_u32 v{u0}, s{sBase}, v{u0}")
    a("s_mov_b32 s18, 0xaaaaaaaa"); a("s_mov_b32 s19, 0xaaaaaaaa")
    a("s_waitcnt lgkmcnt(0)")
    mfmas()
    a("s_mov_b64 exec, 0xffff")
    a(f"ds_write_b128 v{u0}, {v(Z,4)} offset:4096")
    a("s_mov_b64 exec, -1")
    O = [Cr, Cr + 8, Ci, Ci + 8]
    ac = lambda i: accK + i
    def cv(d, lo_, hi_): a(f"v_cvt_pk_bf16_f32 v{d}, v{lo_}, v{hi_}")
    def seg3(o, e0, e1):
        a(f"v_cndmask_b32 v{t0}, v{e0}, v{e1}, s[18:19]")
        cv(o, e1, e1); cv(o + 1, e1, t0); cv(o + 2, e0, e0); cv(o + 3, e0, e0)
    def seg2(o, e0, e1, e2):
        cv(o, e2, e2); cv(o + 1, e1, e1); cv(o + 2, e1, e0); cv(o + 3, e0, e0)
    seg3(O[3], ac(12), ac(13))
    a(f"v_lshlrev_b32 v{vdk[0]}, 16, v{vdk[0]}")
    a("s_mov_b64 exec, 1")
    a(f"v_add_f32 v{ac(0)}, v{ac(0)}, v{vdk[0]}")
    a("s_mov_b32 exec_lo, -1")
    for m in range(4): cv(O[0] + m, ac(7 - 2*m), ac(6 - 2*m))
    seg3(O[1], ac(8), ac(9)); seg3(O[2], ac(10), ac(11))
    a("s_mov_b32 exec_hi, -1")
    a("s_mov_b32 exec_lo, 0")
    cv(O[0], ac(1), ac(3)); cv(O[0] + 1, ac(6), ac(6)); cv(O[0] + 2, ac(6), ac(2)); cv(O[0] + 3, ac(0), ac(0))
    seg2(O[1], ac(4), ac(7), ac(5)); seg2(O[2], ac(8), ac(10), ac(9))
    a("s_mov_b32 exec_lo, -1")
    adr = [(vJa, 3072), (vJb, 1536), (vJb, 1024), (vJa, 0)]
    for p in range(4):
        a(f"ds_write_b128 v{adr[p][0]}, {v(O[p],4)} offset:{adr[p][1]}")
    for p in range(4):
        a(f"ds_read_b64 {v(O[p]+4,2)}, v{adr[p][0]} offset:{adr[p][1]+16}")
    stamp(a, 11)
    a("s_waitcnt vmcnt(0)")
    check_token(a, vtok, vzero)
    a("s_waitcnt lgkmcnt(0)")
    for p in range(4):
        Kt = [FA[(3*p + c) % 8] for c in range(3)]
        kin = O[p]
        for k in range(4): a(f"v_alignbyte_b32 v{Kt[0]+k}, v{kin+k+1}, v{kin+k}, 2")
        for k in range(4): a(f"v_mov_b32 v{Kt[1]+k}, v{kin+k+1}")
        for k in range(4): a(f"v_alignbyte_b32 v{Kt[2]+k}, v{kin+k+2}, v{kin+k+1}, 2")
        for c in range(3): a(f"ds_write_b128 v{adr[p][0]}, {v(Kt[c],4)} offset:{adr[p][1] + (c+1)*CV_S}")
    a("s_branch S_join")
    hi = R.hi

    a.label("S_w2t"); a.flush_hist()
    toks = {}
    a("s_waitcnt lgkmcnt(0)")
    a("s_sleep 64")
    a(f"buffer_load_dword v{vtok}, v{vzero}, s[{sDBG}:{sDBG+3}], 0 offen sc1")
    a("s_waitcnt vmcnt(0)")
    check_token(a, vtok, vzero)
    a("s_branch S_join")

    a.label("S_ln"); a.flush_hist()
    R.reset(base)
    voff = R(); vlw = R(); vtr = R()
    Xr = [R(4, 4) for _ in range(10)]
    U = [R(2, 2) for _ in range(40)]
    sm = R(2, 2); mb = R(2, 2); rs = R(2, 2); T = [R(2, 2) for _ in range(4)]; gr = R(2, 2)
    ones = R()
    O = [R(4, 4) for _ in range(4)]
    a(f"s_load_dwordx2 s[{sX_}:{sX_+1}], s[0:1], 0")
    a("s_memrealtime s[18:19]")
    srd(a, sX_, L * D * 2)
    a(f"v_lshrrev_b32 v{t0}, 3, v{lane}")
    a(f"v_and_b32 v{t1}, 7, v{lane}")
    a(f"v_lshlrev_b32 v{t1}, 4, v{t1}")
    a(f"v_mul_u32_u24 v{voff}, 1280, v{t0}")
    a(f"v_add_u32 v{voff}, v{voff}, v{t1}")
    a(f"v_mul_u32_u24 v{vlw}, {LN_S}, v{t0}")
    a(f"v_add_u32 v{vlw}, v{vlw}, v{t1}")
    a(f"v_add_u32 v{vlw}, {LN_OFF}, v{vlw}")
    a(f"s_lshl_b32 s{sT3}, s{sXc}, 5")
    a(f"s_add_u32 s{sT3}, s{sT3}, s{sA}")
    a(f"s_mul_i32 s{sT}, s{sT3}, {8*1280}")
    a("s_waitcnt lgkmcnt(0)")
    a(f"s_cmp_ge_u32 s2, 8")
    a("s_cbranch_scc1 S_ln_nt")
    a("s_or_b32 s18, s18, 1")
    a(f"v_mov_b32 v{gr}, s18")
    a(f"v_mov_b32 v{gr+1}, 0")
    a("s_mov_b64 exec, 1")
    a(f"buffer_atomic_cmpswap {v(gr,2)}, v{vzero}, s[{sDBG}:{sDBG+3}], 0 offen"); a.vm -= 1
    a("s_mov_b64 exec, -1")
    a.label("S_ln_nt")
    for i in range(10):
        a(f"buffer_load_dwordx4 {v(Xr[i],4)}, v{voff}, s[{sX_}:{sX_+3}], s{sT} offen offset:{128*i}")
    a(f"v_mov_b32 v{ones}, 0x3f803f80")
    a(f"v_mov_b32 v{sm}, 0")
    a("s_waitcnt vmcnt(0)")
    stamp(a, 1)
    a(f"buffer_load_dword v{vtok}, v{vzero}, s[{sDBG}:{sDBG+3}], 0 offen sc1")
    for i in range(40):
        a(f"v_dot2_f32_bf16 v{sm}, v{Xr[i//4] + i%4}, v{ones}, v{sm}")
    def red8(r_):
        a(f"v_add_f32_dpp v{r_}, v{r_}, v{r_} quad_perm:[1,0,3,2] row_mask:0xf bank_mask:0xf")
        a(f"v_add_f32_dpp v{r_}, v{r_}, v{r_} quad_perm:[2,3,0,1] row_mask:0xf bank_mask:0xf")
        a(f"v_add_f32_dpp v{r_}, v{r_}, v{r_} row_half_mirror row_mask:0xf bank_mask:0xf")
    for i in range(40):
        x = Xr[i//4] + i % 4
        a(f"v_lshlrev_b32 v{U[i]}, 16, v{x}")
        a(f"v_and_b32 v{U[i]+1}, 0xffff0000, v{x}")
    red8(sm)
    a(f"v_mul_f32 v{sm}, {f32(1.0/D)}, v{sm}")
    bf16r(a, mb, sm)
    a(f"v_mov_b32 v{rs}, 0"); a(f"v_mov_b32 v{rs+1}, 0")
    for i in range(40):
        if ENV("LPK", 1):
            a(f"v_pk_add_f32 {v(U[i],2)}, {v(U[i],2)}, {v(mb,2)} op_sel_hi:[1,0] neg_lo:[0,1] neg_hi:[0,1]")
            a(f"v_pk_fma_f32 {v(rs,2)}, {v(U[i],2)}, {v(U[i],2)}, {v(rs,2)}")
        else:
            for h in range(2):
                a(f"v_sub_f32 v{U[i]+h}, v{U[i]+h}, v{mb}")
                a(f"v_fmac_f32 v{rs+h}, v{U[i]+h}, v{U[i]+h}")
    a(f"v_add_f32 v{rs}, v{rs}, v{rs+1}")
    red8(rs)
    a(f"v_sub_f32 v{t0}, v{sm}, v{mb}")
    a(f"v_mul_f32 v{t0}, v{t0}, v{t0}")
    a(f"v_mul_f32 v{rs}, {f32(1.0/D)}, v{rs}")
    a(f"v_sub_f32 v{rs}, v{rs}, v{t0}")
    a(f"v_max_f32 v{rs}, 0, v{rs}")
    bf16r(a, rs, rs)
    a(f"v_add_f32 v{rs}, {f32(1e-5)}, v{rs}")
    bf16r(a, rs, rs)
    a(f"v_sqrt_f32 v{rs}, v{rs}")
    a(f"v_cvt_pk_bf16_f32 v{gr}, v{mb}, v{rs}")
    a(f"v_and_b32 v{rs}, 0xffff0000, v{gr}")
    a(f"v_rcp_f32 v{rs}, v{rs}")
    for i in range(40):
        x = Xr[i//4] + i % 4
        if ENV("LPK", 1): a(f"v_pk_mul_f32 {v(U[i],2)}, {v(U[i],2)}, {v(rs,2)} op_sel_hi:[1,0]")
        else:
            for h in range(2): a(f"v_mul_f32 v{U[i]+h}, v{U[i]+h}, v{rs}")
        a(f"v_cvt_pk_bf16_f32 v{x}, v{U[i]}, v{U[i]+1}")
        if i % 4 == 3:
            a(f"ds_write_b128 v{vlw}, {v(Xr[i//4],4)} offset:{128*(i//4)}")
    a(f"v_bfe_u32 v{t1}, v{lane}, 2, 2")
    a(f"v_mul_u32_u24 v{t1}, {LN_S}, v{t1}")
    a(f"v_lshrrev_b32 v{t0}, 4, v{lane}")
    a(f"v_lshl_add_u32 v{t1}, v{t0}, 5, v{t1}")
    a(f"v_and_b32 v{t2}, 3, v{lane}")
    a(f"v_lshl_add_u32 v{t1}, v{t2}, 3, v{t1}")
    a(f"v_add_u32 v{vtr}, {LN_OFF}, v{t1}")
    a(f"s_mul_i32 s{sT}, s{sT3}, 10240")
    def rd(i):
        o = O[i % 4]
        for e in range(2):
            a(f"ds_read_b64_tr_b16 {v(o+2*e,2)}, v{vtr} offset:{128*i + 4*e*LN_S}")
        toks[i] = a.ltok()
    for i in range(3): rd(i)
    for i in range(10):
        if i + 3 < 10: rd(i + 3)
        a.wait(lg=toks[i])
        a(f"buffer_store_dwordx4 {v(O[i%4],4)}, v{v16}, s[{sWS}:{sWS+3}], s{sT} offen sc1")
        a(f"s_add_u32 s{sT}, s{sT}, 1024")
    a("s_waitcnt vmcnt(10)")
    check_token(a, vtok, vzero)
    a(f"v_mov_b32 v{gr+1}, s{sTok}")
    a(f"s_lshl_b32 s{sT}, s{sT3}, 7")
    a(f"s_add_u32 s{sT2}, s{sT}, {WS_STAT}")
    a("s_mov_b32 exec_lo, 0x01010101"); a("s_mov_b32 exec_hi, 0x01010101")
    a(f"buffer_store_dwordx2 {v(gr,2)}, v{lane}, s[{sWS}:{sWS+3}], s{sT2} offen sc1")
    a(f"s_add_u32 s{sT}, s{sT}, {WS_FLN}")
    a("s_waitcnt vmcnt(0)")
    a("s_mov_b64 exec, 1")
    a(f"buffer_store_dword v{gr+1}, v{vzero}, s[{sWS}:{sWS+3}], s{sT} offen sc1")
    a("s_mov_b64 exec, -1")
    stamp(a, 2)
    if ONLY: a("s_branch S_end")
    a(f"v_mul_u32_u24 v{t0}, 10240, v{lane}")
    a(f"v_lshlrev_b32 v{t1}, 7, v{lane}")
    a(f"s_cmp_eq_u32 s{sHeavy}, 0")
    a(f"s_cselect_b32 s{sCnt}, s{sD[0]}, s{sD[2]}")
    a(f"s_lshl_b32 s{sT3}, s2, 7")
    a(f"s_add_u32 s{sT3}, s{sT3}, {WS_FPACE}")
    a(f"s_mov_b32 s{sSpin}, 0")
    a("s_mov_b64 exec, 1")
    a.label("S_pace")
    a(f"s_sleep {ENV('PSLEEP', 8)}")
    a(f"buffer_load_dword v{t2}, v{vzero}, s[{sWS}:{sWS+3}], s{sT3} offen sc1")
    a("s_waitcnt vmcnt(0)")
    a(f"v_readfirstlane_b32 s{sT}, v{t2}")
    a(f"s_cmp_eq_u32 s{sT}, s{sTok}")
    a("s_cbranch_scc1 S_paced")
    a(f"s_add_u32 s{sSpin}, s{sSpin}, 1")
    a(f"s_cmp_lt_u32 s{sSpin}, {ENV('PMAX', 24)}")
    a("s_cbranch_scc1 S_pace")
    a.label("S_paced")
    a("s_mov_b64 exec, -1")
    stamp(a, 10)
    for g in range(4):
        a(f"s_mov_b32 s{sT3}, {WS_FLN + 8192*g}")
        a(f"buffer_load_dword v{O[0]+g}, v{t1}, s[{sWS}:{sWS+3}], s{sT3} offen sc1")
    a("s_waitcnt vmcnt(0)")
    for g in range(4):
        a(f"s_mov_b32 s{sT3}, {WS_FLN + 8192*g}")
        ldf = lambda: a(f"buffer_load_dword v{O[0]+g}, v{t1}, s[{sWS}:{sWS+3}], s{sT3} offen sc1")
        check_flags(a, [O[0] + g], t1, ldf, sleep=ENV("LNSLEEP", 6))
    stamp(a, 9)
    if ENV("UPF", 0):
        a(f"v_lshrrev_b32 v{t2}, 3, v{lane}")
        a(f"v_mul_u32_u24 v{t2}, 10240, v{t2}")
        a(f"v_and_b32 v{t3}, 7, v{lane}")
        a(f"v_lshl_add_u32 v{t2}, v{t3}, 7, v{t2}")
        a(f"s_mul_i32 s{sT}, s{sA}, {8*10240}")
        a(f"s_lshl_b32 s{sT2}, s{sXc}, 10")
        a(f"s_add_u32 s{sT2}, s{sT2}, s{sT}")
        a(f"buffer_load_dword v{O[1]}, v{t2}, s[{sWS}:{sWS+3}], s{sT2} offen sc1")
        a(f"s_lshl_b32 s{sT2}, s{sXc}, 8")
        a(f"s_add_u32 s{sT2}, s{sT2}, s{sT}")
        a(f"s_add_u32 s{sT2}, s{sT2}, 8192")
        a("s_mov_b32 exec_lo, 0x03030303"); a("s_mov_b32 exec_hi, 0x03030303")
        a(f"buffer_load_dword v{O[1]+1}, v{t2}, s[{sWS}:{sWS+3}], s{sT2} offen sc1")
        a("s_mov_b64 exec, -1")
        a("s_waitcnt vmcnt(0)")
    Uq_ = [U[0] + 4 * i for i in range(12)]
    assert U[0] % 4 == 0
    a(f"v_lshrrev_b32 v{t1}, 1, v{lane}")
    a(f"v_and_b32 v{t3}, 1, v{lane}")
    a(f"v_mul_u32_u24 v{t2}, 10240, v{t1}")
    a(f"v_lshl_add_u32 v{t2}, v{t3}, 4, v{t2}")
    a(f"v_mul_u32_u24 v{t3}, 4608, v{t3}")
    a(f"v_lshl_add_u32 v{t3}, v{t1}, 4, v{t3}")
    a(f"s_lshl_b32 s{sT}, s{sD[0]}, 4")
    for g in range(8):
        if g: a(f"s_add_u32 s{sT}, s{sT}, {32*10240}")
        a(f"buffer_load_dwordx4 {v(Uq_[g],4)}, v{t2}, s[{sWS}:{sWS+3}], s{sT} offen sc1")
    a(f"s_cmp_eq_u32 s{sHeavy}, 0")
    a("s_cbranch_scc1 S_g2")
    a(f"s_lshl_b32 s{sT}, s{sD[2]}, 4")
    for g in range(4):
        if g: a(f"s_add_u32 s{sT}, s{sT}, {64*10240}")
        a(f"buffer_load_dwordx4 {v(Uq_[8+g],4)}, v{t0}, s[{sWS}:{sWS+3}], s{sT} offen sc1")
    a("s_waitcnt vmcnt(0)")
    for g in range(4):
        a(f"ds_write_b128 v{v16}, {v(Uq_[8+g],4)} offset:{CV_U[2] + 1024*g}")
    a.label("S_g2")
    for g in range(8):
        a(f"s_waitcnt vmcnt({7-g})")
        a(f"ds_write_b128 v{t3}, {v(Uq_[g],4)} offset:{CV_U[0] + 512*g}")
    stamp(a, 4)
    hi = max(hi, R.hi)

    a.label("S_join"); a.flush_hist()
    if ONLY: a("s_branch S_end")
    if ENV("SPRIO", 0): a(f"s_setprio {ENV('SPRIO', 0)}")
    stamp(a, 3)
    R.reset(base)
    acc = [R(4, 4) for _ in range(8)]
    FA = [[R(4, 4) for _ in range(8)] for _ in range(2)]
    FB = [[R(4, 4) for _ in range(8)] for _ in range(2)]
    vA = R(); vBq = R(); vA0 = R(); vB0 = R(); vrw = R(); vrr = R(); vfl = R(); vfa = R(); vtk = R()
    a(f"s_and_b32 s{sPar}, s{sWave}, 1")
    Z = FB[0][3]
    for i in range(4): a(f"v_mov_b32 v{Z+i}, 0")
    a(f"s_min_u32 s{sT}, s{sWave}, 2")
    a(f"s_mul_i32 s{sT}, s{sT}, 4608")
    a(f"v_add_u32 v{t2}, s{sT}, v{v16}")
    a("s_mov_b32 exec_hi, 0")
    a(f"ds_write_b128 v{t2}, {v(Z,4)} offset:{CV_U[0]-512}")
    a("s_mov_b32 exec_hi, -1")
    a(f"v_and_b32 v{t0}, 15, v{lane}")
    a(f"v_sub_u32 v{t2}, 15, v{t0}")
    a(f"v_and_b32 v{t3}, 3, v{t2}")
    a(f"v_sub_u32 v{t2}, v{t2}, v{t3}")
    a(f"v_mul_u32_u24 v{t3}, {CV_S}, v{t3}")
    a(f"v_lshl_add_u32 v{t3}, v{t2}, 1, v{t3}")
    a(f"v_lshrrev_b32 v{t2}, 4, v{lane}")
    a(f"v_lshl_add_u32 v{vA0}, v{t2}, 4, v{t3}")
    a(f"v_lshlrev_b32 v{t3}, 4, v{t2}")
    a(f"v_lshl_add_u32 v{vB0}, v{t0}, 5, v{t3}")
    a(f"v_lshrrev_b32 v{t3}, 1, v{t2}")
    a(f"v_lshlrev_b32 v{t3}, 3, v{t3}")
    a(f"v_xor_b32 v{t3}, v{t3}, v{t0}")
    a(f"v_lshlrev_b32 v{t3}, 4, v{t3}")
    a(f"v_lshl_add_u32 v{t3}, v{t2}, 8, v{t3}")
    a(f"s_lshl_b32 s{sT}, s{sWave}, 13")
    a(f"v_add_u32 v{vrw}, s{sT}, v{t3}")
    a(f"v_bfe_u32 v{t0}, v{lane}, 1, 4")
    a(f"v_and_b32 v{t2}, 1, v{lane}")
    a(f"v_lshlrev_b32 v{t3}, 3, v{t2}")
    a(f"v_xor_b32 v{t0}, v{t0}, v{t3}")
    a(f"v_lshlrev_b32 v{t0}, 4, v{t0}")
    a(f"v_lshl_add_u32 v{t0}, v{t2}, 9, v{t0}")
    a(f"v_lshrrev_b32 v{t2}, 5, v{lane}")
    a(f"v_lshl_add_u32 v{vrr}, v{t2}, 10, v{t0}")
    a(f"v_mov_b32 v{vtk}, s{sTok}")
    a(f"s_mul_i32 s{sT}, s{sSlot}, {CH_REG}")
    a(f"s_lshl_b32 s{sT2}, s{sPar}, 8")
    a(f"s_sub_u32 s{sT}, s{sT}, s{sT2}")
    a(f"s_add_u32 s{sT}, s{sT}, {32*14}")
    a(f"v_add_u32 v{vA}, s{sT}, v{vA0}")
    a(f"s_mul_i32 s{sT}, s{sSlot}, 4608")
    a(f"s_sub_u32 s{sT}, s{sT}, s{sT2}")
    a(f"s_add_u32 s{sT}, s{sT}, {CV_U[0] - 512 + 32*15}")
    a(f"v_add_u32 v{vBq}, s{sT}, v{vB0}")
    sDa, sDb, sJa, sJb = 20, 21, 22, 23
    a(f"s_lshl_b32 s{sT3}, s{sWave}, 7")
    a(f"s_sub_u32 s{sJb}, s{sT}, 192")
    a(f"s_sub_u32 s{sJb}, s{sJb}, {CV_U[2] - 512 + 32*15}")
    a(f"s_add_u32 s{sJb}, s{sJb}, s{sT3}")
    a(f"s_mul_i32 s{sJa}, s{sSlot}, {CH_REG}")
    a(f"s_sub_u32 s{sJa}, s{sJa}, s{sT2}")
    a(f"s_sub_u32 s{sJa}, s{sJa}, {192 + 2*CH_REG}")
    a(f"s_add_u32 s{sJa}, s{sJa}, s{sT3}")
    acc1 = [R(4, 4) for _ in range(8)]
    for c in range(8):
        for i in range(4):
            a(f"v_mov_b32 v{acc[c]+i}, 0"); a(f"v_mov_b32 v{acc1[c]+i}, 0")
    a(f"s_mov_b32 s{sCnt}, 0")
    a(f"s_add_u32 s{sRound}, s{sHeavy}, 2")
    a("s_waitcnt vmcnt(0) lgkmcnt(0)")
    a("s_barrier")
    stamp(a, 5)

    def rdlist(st, da="64", db="64"):
        rd_ = []
        for j in range(8):
            rd_.append(f"ds_read_b128 {v(FB[st][j],4)}, v{vBq} offset:{512*j}")
            rd_.append(f"ds_read_b64 {v(FA[st][j],2)}, v{vA} offset:{512*(7-j)}")
            rd_.append(f"ds_read_b64 {v(FA[st][j]+2,2)}, v{vA} offset:{512*(7-j)+8}")
        rd_.append(f"v_subrev_u32 v{vA}, {da}, v{vA}")
        rd_.append(f"v_subrev_u32 v{vBq}, {db}, v{vBq}")
        return rd_
    def group(st, nxt, da="64", db="64"):
        pairs = sorted([(c, j) for c in range(8) for j in range(c + 1)], key=lambda cj: (max(cj[1], cj[0] - cj[1]), cj[0]))
        rd_ = rdlist(nxt, da, db)
        for i, (c, j) in enumerate(pairs):
            a(f"v_mfma_f32_16x16x32_bf16 {v(acc[c],4)}, {v(FA[st][j],4)}, {v(FB[st][c-j],4)}, {v(acc[c],4)}")
            if i < len(rd_): a(rd_[i])
    for x in rdlist(0): a(x)
    a.label("CV_loop")
    a(f"s_cmp_eq_u32 s{sCnt}, 1")
    a(f"s_cselect_b32 s{sDa}, s{sJa}, 64")
    a(f"s_cselect_b32 s{sDb}, s{sJb}, 64")
    a("s_waitcnt lgkmcnt(0)")
    group(0, 1, f"s{sDa}", f"s{sDb}")
    a("s_waitcnt lgkmcnt(0)")
    group(1, 0)
    a(f"s_add_u32 s{sCnt}, s{sCnt}, 1")
    a(f"s_cmp_eq_u32 s{sCnt}, 1")
    a("s_cbranch_scc1 CV_loop")
    a(f"s_cmp_eq_u32 s{sCnt}, 3")
    a("s_cbranch_scc1 CV_done")
    for c in range(8):
        for i in range(4): a(f"v_swap_b32 v{acc[c]+i}, v{acc1[c]+i}")
    a(f"s_cmp_lg_u32 s{sHeavy}, 0")
    a("s_nop 0")
    a("s_cbranch_scc1 CV_loop")
    a.label("CV_done")
    a("s_nop 7")
    a("s_waitcnt lgkmcnt(0)")
    a("s_barrier")
    stamp(a, 6)
    for c in range(8):
        a(f"ds_write_b128 v{vrw}, {v(acc1[c],4)} offset:{1024*c}")
    a(f"s_cmp_eq_u32 s{sHeavy}, 0")
    a("s_cbranch_scc1 CV_w1")
    for c in range(8):
        a(f"ds_write_b128 v{vrw}, {v(acc[c],4)} offset:{32768 + 1024*c}")
    a.label("CV_w1")
    a(f"s_lshl_b32 s{sT}, s{sSlot}, 14")
    a(f"s_lshl_b32 s{sT2}, s{sPar}, 12")
    a(f"s_add_u32 s{sT}, s{sT}, s{sT2}")
    a(f"v_add_u32 v{t0}, s{sT}, v{vrr}")
    a(f"s_lshl_b32 s{sT}, s{sWave}, 11")
    a(f"v_add_u32 v{t1}, s{sT}, v{vrr}")
    a(f"s_add_u32 s{sT}, s{sD[0]}, s{sSlot}")
    a(f"s_lshl_b32 s{sT3}, s{sT}, 12")
    a(f"s_lshl_b32 s{sT2}, s{sPar}, 11")
    a(f"s_add_u32 s{sT3}, s{sT3}, s{sT2}")
    a(f"s_add_u32 s{sT3}, s{sT3}, {WS_ST}")
    a(f"s_lshl_b32 s{sT}, s{sT}, 7")
    a(f"s_lshl_b32 s{sT2}, s{sPar}, 3")
    a(f"s_add_u32 s{sT}, s{sT}, s{sT2}")
    a(f"s_add_u32 s{sJa}, s{sT}, {WS_FST}")
    a(f"v_lshlrev_b32 v{t2}, 2, v{lane}")
    a("s_waitcnt lgkmcnt(0)")
    a("s_barrier")
    stamp(a, 7)
    Rd = FA[1]; Re = FA[0]
    for b in range(2):
        for p in range(2):
            for e in range(2):
                a(f"ds_read_b128 {v(Rd[(b*2+p)*2+e],4)}, v{t0} offset:{8192*p + 2048*b + 256*e}")
    for p in range(4):
        for e in range(2):
            a(f"ds_read_b128 {v(Re[p*2+e],4)}, v{t1} offset:{32768 + 8192*p + 256*e}")
    def finish(Rr, bs, npart, o):
        for p in range(1, npart):
            for e in range(2):
                for z in range(4):
                    a(f"v_add_f32 v{Rr[bs+e]+z}, v{Rr[bs+e]+z}, v{Rr[bs+2*p+e]+z}")
        for m in range(4):
            y = Rr[bs + m // 2] + 2 * (m % 2)
            a(f"v_cvt_pk_bf16_f32 v{o+m}, v{y}, v{y+1}")
    for b in range(2):
        a(f"s_waitcnt lgkmcnt({12 - 4*b})")
        finish(Rd, 4 * b, 2, FB[1][b])
        a(f"buffer_store_dwordx4 {v(FB[1][b],4)}, v{v16}, s[{sWS}:{sWS+3}], s{sT3} offen offset:{1024*b} sc1")
    a(f"s_cmp_eq_u32 s{sHeavy}, 0")
    a("s_cbranch_scc1 CV_f1")
    a(f"s_lshl_b32 s{sT3}, s{sWave}, 10")
    a(f"s_lshl_b32 s{sT}, s{sD[2]}, 12")
    a(f"s_add_u32 s{sT2}, s{sT3}, s{sT}")
    a(f"s_add_u32 s{sT2}, s{sT2}, {WS_ST}")
    a("s_waitcnt lgkmcnt(0)")
    finish(Re, 0, 4, FB[1][2])
    a(f"buffer_store_dwordx4 {v(FB[1][2],4)}, v{v16}, s[{sWS}:{sWS+3}], s{sT2} offen sc1")
    a(f"s_lshl_b32 s{sT}, s{sD[2]}, 7")
    a(f"s_lshl_b32 s{sT2}, s{sWave}, 2")
    a(f"s_add_u32 s{sT}, s{sT}, s{sT2}")
    a(f"s_add_u32 s{sT}, s{sT}, {WS_FST}")
    a("s_waitcnt vmcnt(0)")
    a("s_mov_b64 exec, 1")
    a(f"buffer_store_dword v{vtk}, v{vzero}, s[{sWS}:{sWS+3}], s{sT} offen sc1")
    a("s_branch CV_f2")
    a.label("CV_f1")
    a("s_waitcnt vmcnt(0)")
    a.label("CV_f2")
    a("s_mov_b64 exec, 3")
    a(f"buffer_store_dword v{vtk}, v{t2}, s[{sWS}:{sWS+3}], s{sJa} offen sc1")
    a.label("S_end")
    stamp_end(a, sWave)
    return max(hi, R.hi)

W_SLOT = 12288
X_OFF = 3 * W_SLOT
X_WAVE = 11264
NXU = 5
def g_role(a):
    sX, sW1, sB1, sOUT, sW2 = 20, 24, 28, 32, 52
    sRB, sCB, sTB, sJD, sId = 36, 37, 38, 39, 3
    sP = [40, 41, 42]
    sWoff, sXoff, sM0w, sM0x, sOA, sOB = 43, 44, 45, 46, 47, 48
    R = Alloc(1)
    lane = R(); t0 = R(); t1 = R(); t2 = R(); t3 = R(); vzero = R(); vtok = R(); v16 = R(); vfa = R()
    vfl = R(); vsa = R()
    NWR = 25
    NWI = 18
    WR = [R(4, 4) for _ in range(NWR)]
    base2 = pool = R.mark()
    R.reset(184)
    acc = [[R(4, 4) for ct in range(2)] for rt in range(6)]
    cs = [R(4, 4) for _ in range(2)]
    st = [R(2, 2) for _ in range(2)]
    b1p = [R(2, 2) for _ in range(6)]
    R.reset(WR[NWI]); R.limit = 184
    A = [[R(4, 4) for rt in range(6)] for _ in range(2)]
    X = [[[R(4, 4) for ct in range(2)] for e in range(2)] for _ in range(2)]
    ones = R(4, 4)
    vE = [R() for _ in range(3)]; vO = [R() for _ in range(3)]
    vW = [R() for _ in range(3)]; vXs = [R(), R()]; vXr = [R(), R()]
    vpf = R(); vpd = R()
    stamp_begin(a)
    if ENV("GPRIO", 0): a(f"s_setprio {ENV('GPRIO', 0)}")
    a(f"s_load_dwordx2 s[{sX}:{sX+1}], s[0:1], 0")
    a(f"s_load_dwordx2 s[{sW1}:{sW1+1}], s[0:1], 80")
    a(f"s_load_dwordx2 s[{sW2}:{sW2+1}], s[0:1], 96")
    a(f"v_lshrrev_b32 v{t0}, 6, v0")
    a(f"v_and_b32 v{lane}, 63, v0")
    a(f"v_readfirstlane_b32 s{sWave}, v{t0}")
    a(f"s_sub_u32 s{sId}, s2, 256")
    if ENV("CPF", 1):
        a("s_getpc_b64 s[18:19]")
        a("s_and_b32 s18, s18, 0xffffff00")
        a(f"s_lshr_b32 s{sT3}, s{sId}, 3")
        a(f"s_lshl_b32 s{sT3}, s{sT3}, 10")
        a(f"s_add_u32 s18, s18, s{sT3}")
        a(f"s_addc_u32 s19, s19, 0")
        a(f"v_lshrrev_b32 v{A[0][0]}, 5, v0")
        a(f"v_lshlrev_b32 v{A[0][0]}, 7, v{A[0][0]}")
        a(f"v_mov_b32 v{A[0][0]+1}, s19")
        a(f"v_add_co_u32 v{A[0][0]}, vcc, s18, v{A[0][0]}")
        a(f"v_addc_co_u32 v{A[0][0]+1}, vcc, 0, v{A[0][0]+1}, vcc")
        a("s_mov_b32 exec_lo, 1"); a("s_mov_b32 exec_hi, 1")
        a(f"global_load_dword v{vpd}, {v(A[0][0],2)}, off")
        a("s_mov_b64 exec, -1")
    srd(a, sX, L * D * 2); srd(a, sW1, D * F * 2)
    pfx = A[1][0]; pfw = A[1][0] + 1
    a(f"s_lshr_b32 s{sT3}, s{sId}, 3")
    a(f"s_lshl_b32 s{sT3}, s{sT3}, 2")
    a(f"s_add_u32 s{sT3}, s{sT3}, s{sWave}")
    a(f"v_mul_u32_u24 v{t1}, 0xaaab, v{lane}")
    a(f"v_lshrrev_b32 v{t1}, 18, v{t1}")
    a(f"v_mul_u32_u24 v{t2}, 6, v{t1}")
    a(f"v_sub_u32 v{t2}, v{lane}, v{t2}")
    a(f"v_mul_u32_u24 v{t1}, {64*3072}, v{t1}")
    a(f"v_lshl_add_u32 v{t1}, v{t2}, 7, v{t1}")
    a(f"s_lshr_b32 s{sT2}, s{sT3}, 1")
    a(f"s_mul_i32 s{sT2}, s{sT2}, 3072")
    a(f"s_and_b32 s{sT}, s{sId}, 1")
    a(f"s_lshl_b32 s{sT}, s{sT}, 1")
    a(f"s_and_b32 s{sRB}, s{sT3}, 1")
    a(f"s_add_u32 s{sT}, s{sT}, s{sRB}")
    a(f"s_mul_i32 s{sT}, s{sT}, 768")
    a(f"s_add_u32 s{sT2}, s{sT2}, s{sT}")
    a(f"v_add_u32 v{pfw}, s{sT2}, v{t1}")
    a(f"v_lshrrev_b32 v{t2}, 2, v{lane}")
    a(f"v_lshlrev_b32 v{t2}, 7, v{t2}")
    a(f"v_and_b32 v{t3}, 3, v{lane}")
    a(f"v_mul_u32_u24 v{t3}, 1280, v{t3}")
    a(f"v_add_u32 v{t2}, v{t2}, v{t3}")
    a(f"s_bfe_u32 s{sT}, s{sId}, 0x20001")
    a(f"s_lshl_b32 s{sT}, s{sT}, 7")
    a(f"s_add_u32 s{sT}, s{sT}, s{sT3}")
    a(f"s_mul_i32 s{sT}, s{sT}, {4*1280}")
    a(f"v_add_u32 v{pfx}, s{sT}, v{t2}")
    a("s_waitcnt lgkmcnt(0)")
    stamp(a, 1)
    def do_pf(c0, c1):
        def mask(lo, hi):
            m = ((1 << hi) - 1) & ~((1 << lo) - 1)
            a(f"s_mov_b32 exec_lo, {hex(m & 0xffffffff)}"); a(f"s_mov_b32 exec_hi, {hex(m >> 32)}")
        mask(4 * c0, 4 * c1)
        a(f"buffer_load_dword v{vpd}, v{pfx}, s[{sX}:{sX+3}], 0 offen")
        mask(6 * c0, 6 * c1)
        a(f"buffer_load_dword v{vpd}, v{pfw}, s[{sW1}:{sW1+3}], 0 offen")
        a("s_mov_b64 exec, -1")
    PFA_ = ENV("PFSPLIT", 3)
    do_pf(0, PFA_)
    srd(a, sW2, F * D * 2)
    a(f"s_mul_i32 s{sT}, s{sT3}, {15*128}")
    a(f"v_lshl_add_u32 v{vpf}, v{lane}, 7, s{sT}")
    def op_pf2(j):
        def f():
            a(f"s_add_u32 s{sT2}, s{sId}, {j}")
            a(f"s_and_b32 s{sT2}, s{sT2}, 7")
            a(f"s_mul_i32 s{sT2}, s{sT2}, {128*15*128}")
            a("s_mov_b64 exec, 0x7fff")
            a(f"buffer_load_dword v{vpd}, v{vpf}, s[{sW2}:{sW2+3}], s{sT2} offen")
            a("s_mov_b64 exec, -1")
        return f
    a(f"s_load_dwordx2 s[{sB1}:{sB1+1}], s[0:1], 88")
    a(f"s_load_dwordx2 s[{sWS}:{sWS+1}], s[0:1], 120")
    a(f"s_load_dwordx2 s[{sDBG}:{sDBG+1}], s[0:1], 112")
    a(f"s_load_dwordx2 s[{sOUT}:{sOUT+1}], s[0:1], 104")
    srd(a, sB1, F * 2); srd(a, sWS, WS_SIZE); srd(a, sDBG, 256); srd(a, sOUT, L * D * 2)
    a(f"s_and_b32 s{sT}, s{sId}, 7")
    a(f"s_lshr_b32 s{sT2}, s{sId}, 3")
    a(f"s_lshr_b32 s{sRB}, s{sT}, 1")
    a(f"s_lshl_b32 s{sTB}, s{sT}, 2")
    a(f"s_lshl_b32 s{sRB}, s{sRB}, 2")
    a(f"s_and_b32 s{sT3}, s{sT2}, 3")
    a(f"s_add_u32 s{sRB}, s{sRB}, s{sT3}")
    a(f"s_add_u32 s{sTB}, s{sTB}, s{sT3}")
    a(f"s_and_b32 s{sT}, s{sT}, 1")
    a(f"s_lshl_b32 s{sCB}, s{sT}, 3")
    a(f"s_lshr_b32 s{sJD}, s{sT2}, 2")
    a(f"s_add_u32 s{sCB}, s{sCB}, s{sJD}")
    a(f"v_mov_b32 v{vzero}, 0")
    a(f"v_lshlrev_b32 v{v16}, 4, v{lane}")
    for i in range(3):
        a(f"v_add_u32 v{t0}, {64*i}, v{lane}")
        a(f"v_mul_u32_u24 v{t1}, 0xaaab, v{t0}")
        a(f"v_lshrrev_b32 v{t1}, 19, v{t1}")
        a(f"v_mul_u32_u24 v{t2}, 12, v{t1}")
        a(f"v_sub_u32 v{t2}, v{t0}, v{t2}")
        a(f"v_lshrrev_b32 v{t3}, 2, v{t1}")
        a(f"v_and_b32 v{t3}, 2, v{t3}")
        a(f"v_xor_b32 v{t2}, v{t2}, v{t3}")
        a(f"v_lshlrev_b32 v{t2}, 4, v{t2}")
        a(f"v_mul_u32_u24 v{t1}, 3072, v{t1}")
        a(f"v_add_u32 v{vW[i]}, v{t1}, v{t2}")
        if i: a(f"v_subrev_u32 v{vW[i]}, {1024*i}, v{vW[i]}")
    a(f"s_mul_i32 s{sWoff}, s{sWave}, {16*3072}")
    a(f"s_mul_i32 s{sT}, s{sCB}, 192")
    a(f"s_add_u32 s{sWoff}, s{sWoff}, s{sT}")
    a(f"s_mul_i32 s{sM0w}, s{sWave}, 3072")
    a(f"v_lshrrev_b32 v{t0}, 3, v{lane}")
    a(f"v_and_b32 v{t1}, 7, v{lane}")
    a(f"v_lshrrev_b32 v{t2}, 1, v{t0}")
    a(f"v_xor_b32 v{t1}, v{t1}, v{t2}")
    a(f"v_mul_u32_u24 v{t0}, 1280, v{t0}")
    a(f"v_lshl_add_u32 v{vXs[0]}, v{t1}, 4, v{t0}")
    a(f"v_xor_b32 v{vXs[1]}, 64, v{vXs[0]}")
    a(f"v_add_u32 v{vXs[1]}, {8*1280 - 1024}, v{vXs[1]}")
    a(f"s_lshl_b32 s{sXoff}, s{sRB}, 7")
    a(f"s_lshl_b32 s{sT}, s{sWave}, 5")
    a(f"s_add_u32 s{sXoff}, s{sXoff}, s{sT}")
    a(f"s_mul_i32 s{sXoff}, s{sXoff}, 1280")
    a(f"s_mul_i32 s{sM0x}, s{sWave}, {X_WAVE}")
    a(f"s_add_u32 s{sM0x}, s{sM0x}, {X_OFF}")

    tokW = {}; tokXu = {}
    def ops_w(c):
        def f0():
            a(f"s_add_u32 m0, s{sM0w}, {(c % 3) * W_SLOT}")
            if c: a(f"s_add_u32 s{sWoff}, s{sWoff}, {64*3072}")
        def fi(i):
            def f():
                a(f"buffer_load_dwordx4 v{vW[i]}, s[{sW1}:{sW1+3}], s{sWoff} offen offset:{1024*i} lds")
                if i == 2: tokW[c] = a.vtok()
            return f
        return [f0] + [fi(i) for i in range(3)]
    def ops_x(u):
        c, ct = u // 2, u % 2
        def f0():
            a(f"s_add_u32 m0, s{sM0x}, {(u % NXU) * 2048}")
            a(f"s_add_u32 s{sT}, s{sXoff}, {ct*16*1280 + c*128}")
        def fi(h):
            def f():
                a(f"buffer_load_dwordx4 v{vXs[h]}, s[{sX}:{sX+3}], s{sT} offen offset:{1024*h} lds")
                if h == 1: tokXu[u] = a.vtok()
            return f
        return [f0, fi(0), fi(1)]
    def do_first():
        for f in ops_w(0) + ops_x(0) + ops_x(1) + ops_w(1) + ops_x(2) + ops_x(3): f()
    do_first()

    a(f"v_lshrrev_b32 v{t0}, 4, v{lane}")
    a(f"v_bfe_u32 v{t1}, v{lane}, 2, 2")
    a(f"v_lshl_add_u32 v{t1}, v{t0}, 3, v{t1}")
    a(f"v_mul_u32_u24 v{t1}, 192, v{t1}")
    a(f"v_and_b32 v{t2}, 3, v{lane}")
    a(f"v_lshl_add_u32 v{t1}, v{t2}, 3, v{t1}")
    a(f"v_and_b32 v{t2}, 1, v{t0}")
    a(f"v_lshlrev_b32 v{t2}, 5, v{t2}")
    a(f"v_sub_u32 v{t3}, v{t1}, v{t2}")
    a(f"v_add_u32 v{t3}, 32, v{t3}")
    a(f"v_add_u32 v{t2}, v{t1}, v{t2}")
    for P in range(3):
        a(f"s_add_u32 s{sP[P]}, s{sWave}, {P}")
        a(f"s_cmp_ge_u32 s{sP[P]}, 3")
        a(f"s_cselect_b32 s{sT}, 3, 0")
        a(f"s_sub_u32 s{sP[P]}, s{sP[P]}, s{sT}")
        a(f"s_lshl_b32 s{sT}, s{sP[P]}, 6")
        a(f"v_add_u32 v{vE[P]}, s{sT}, v{t2}")
        a(f"v_add_u32 v{vO[P]}, s{sT}, v{t3}")
    a(f"v_and_b32 v{t1}, 15, v{lane}")
    a(f"v_lshrrev_b32 v{t2}, 1, v{t1}")
    a(f"v_xor_b32 v{t2}, v{t2}, v{t0}")
    a(f"v_lshlrev_b32 v{t2}, 4, v{t2}")
    a(f"v_lshl_add_u32 v{t2}, v{t1}, 7, v{t2}")
    a(f"v_add_u32 v{vXr[0]}, s{sM0x}, v{t2}")
    a(f"v_xor_b32 v{t2}, 64, v{t2}")
    a(f"v_add_u32 v{vXr[1]}, s{sM0x}, v{t2}")
    a(f"v_lshrrev_b32 v{t2}, 3, v{t1}")
    a(f"v_and_b32 v{t1}, 7, v{t1}")
    a(f"v_lshlrev_b32 v{t1}, 3, v{t1}")
    a(f"v_lshl_add_u32 v{vsa}, v{t2}, 7, v{t1}")
    a(f"s_mul_i32 s{sT}, s{sWave}, 12")
    a(f"s_mul_i32 s{sOA}, s{sT}, {32*1280}")
    a(f"s_mul_i32 s{sT2}, s{sJD}, 160")
    a(f"s_add_u32 s{sOA}, s{sOA}, s{sT2}")
    a(f"s_mul_i32 s{sOB}, s{sTB}, 192")
    a(f"s_add_u32 s{sOB}, s{sOB}, s{sT}")
    a(f"s_lshl_b32 s{sOB}, s{sOB}, 10")
    a(f"s_add_u32 s{sOB}, s{sOB}, {WS_ACT}")
    a(f"v_lshlrev_b32 v{t0}, 3, v{t0}")

    tokA = {}; tokXr = {}
    def ops_ra(ks):
        c, e = ks // 2, ks % 2
        off = (c % 3) * W_SLOT + e * 6144
        out = []
        for rt in range(6):
            ad = (vE if rt % 2 == 0 else vO)[rt // 2]
            for h in range(2):
                def f(rt=rt, h=h, ad=ad):
                    a(f"ds_read_b64_tr_b16 {v(A[ks%2][rt] + 2*h, 2)}, v{ad} offset:{off + 768*h}")
                    tokA[(ks, rt)] = a.ltok()
                out.append(f)
        return out
    def ops_rx(c):
        out = []
        for e in range(2):
            for ct in range(2):
                def f(e=e, ct=ct):
                    a(f"ds_read_b128 {v(X[c%2][e][ct],4)}, v{vXr[e]} offset:{((2*c+ct) % NXU) * 2048}")
                    tokXr[c] = a.ltok()
                out.append(f)
        return out
    def mf(d, A_, B_, first):
        c = "0" if first else v(d, 4)
        a(f"v_mfma_f32_16x16x32_bf16 {v(d,4)}, {v(A_,4)}, {v(B_,4)}, {c}")
    wq = [0]
    tokWR = {}
    def ops_wr(n, lim=NWI):
        out = []
        for it_ in range(n):
            f_ = wq[0]
            if f_ >= lim: break
            def f(f_=f_, it_=it_):
                if f_ % 4 == 0 or it_ == 0: a(f"s_add_u32 s{sT2}, s{sOA}, {1024*(f_ - f_%4)}")
                a(f"buffer_load_dwordx4 {v(WR[f_],4)}, v{v16}, s[{sWS}:{sWS+3}], s{sT2} offen offset:{1024*(f_%4)} sc1")
                tokWR[f_] = a.vtok()
            out.append(f); wq[0] += 1
        return out
    sFB = 49
    def ld_w2flags():
        a(f"buffer_load_dword v{vfl}, v{vfa}, s[{sWS}:{sWS+3}], s{sFB} offen sc1")
    def ld_first(nl):
        a(f"v_mov_b32 v{vfl}, s{sTok}")
        a(f"s_mov_b64 exec, {hex((1 << nl) - 1)}")
        ld_w2flags()
        a("s_mov_b64 exec, -1")
    def ld_stats():
        for ct in range(2):
            a(f"buffer_load_dwordx2 {v(st[ct],2)}, v{vsa}, s[{sWS}:{sWS+3}], s{sT3} offen offset:{256*ct} sc1")
    tk = {}
    def op_tok():
        a(f"buffer_load_dword v{vtok}, v{vzero}, s[{sDBG}:{sDBG+3}], 0 offen sc1")
        tk["tok"] = a.vtok()
    def op_chk_tok():
        a.wait(vm=tk["tok"])
        check_token(a, vtok, vzero)
    def op_pace():
        a(f"v_mov_b32 v{vtok}, s{sTok}")
        a(f"s_lshl_b32 s{sT2}, s{sId}, 7")
        a(f"s_add_u32 s{sT2}, s{sT2}, {WS_FPACE}")
        a(f"s_cmp_eq_u32 s{sWave}, 0")
        a(f"s_cselect_b32 s{sT2}, s{sT2}, {WS_SIZE}")
        a("s_mov_b64 exec, 1")
        a(f"buffer_store_dword v{vtok}, v{vzero}, s[{sWS}:{sWS+3}], s{sT2} offen sc1")
        a("s_mov_b64 exec, -1")
    def op_stats():
        a(f"s_lshl_b32 s{sT3}, s{sRB}, 4")
        a(f"s_lshl_b32 s{sT2}, s{sWave}, 2")
        a(f"s_add_u32 s{sT3}, s{sT3}, s{sT2}")
        a(f"s_lshl_b32 s{sT3}, s{sT3}, 7")
        a(f"s_add_u32 s{sT3}, s{sT3}, {WS_STAT}")
        ld_stats()
        tk["st"] = a.vtok()
    def op_b1(P):
        def f():
            a(f"s_mul_i32 s{sT2}, s{sCB}, 192")
            a(f"s_lshl_b32 s{sT}, s{sP[P]}, 6")
            a(f"s_add_u32 s{sT}, s{sT}, s{sT2}")
            for o in range(2):
                a(f"buffer_load_dwordx2 {v(b1p[2*P+o],2)}, v{t0}, s[{sB1}:{sB1+3}], s{sT} offen offset:{32*o}")
        return f

    a("s_waitcnt lgkmcnt(0)")
    for P in range(3): op_b1(P)()
    a("s_waitcnt lgkmcnt(0)")
    a.wait(vm=max(tokW[0], tokXu[1]))
    for i in range(4): a(f"v_mov_b32 v{ones+i}, 0x3f803f80")
    a("s_barrier")
    stamp(a, 2)
    for f in ops_rx(0) + ops_ra(0) + ops_x(4) + ops_w(2): f()
    if PFA_ < 10: do_pf(PFA_, 10)
    if ENV("PF20", -1) < 0: op_pf2(0)()
    op_tok()
    extra = {9: [op_chk_tok], ENV("PACEKS", 13): [op_pace], 17: [op_stats]}
    if ENV("PF20", -1) >= 0: extra.setdefault(ENV("PF20", -1), []).append(op_pf2(0))
    for j in range(1, 8): extra.setdefault(ENV("PF2KS", 7) + j, []).append(op_pf2(j))
    if ENV("GPRIO2", 2): a(f"s_setprio {ENV('GPRIO2', 2)}")
    for ks in range(20):
        c, e = ks // 2, ks % 2
        first = ks == 0
        Xs = X[c % 2][e]; As = A[ks % 2]
        mlist = []
        for rt in range(6):
            for ct in range(2): mlist.append((rt, acc[rt][ct], As[rt], Xs[ct]))
            if rt < 2: mlist.append((rt, cs[rt], As[rt], ones))
        if e == 0:
            fill = ops_ra(ks + 1)
            dma = []
            for u in (2 * c + 5, 2 * c + 6):
                if u < 20: dma += ops_x(u)
            fl2 = []
            for i, f in enumerate(fill):
                fl2.append(f)
                if i % 2 == 1 and dma: fl2.append(dma.pop(0))
            fill = fl2 + dma + extra.get(ks, [])
            start = 0
            a.wait(lg=tokXr[c])
        else:
            fill = []
            if ks < 19:
                fill = ops_rx(c + 1) + ops_ra(ks + 1)
                if c + 3 < 10: fill += ops_w(c + 3)
            fill += extra.get(ks, [])
            start = 6 if ks < 19 else 0
        nslots = len(mlist) - start
        per = [len(fill) // nslots + (1 if i < len(fill) % nslots else 0) for i in range(nslots)]
        lastrt = -1
        for i, (rt, d, A_, B_) in enumerate(mlist):
            if e == 1 and ks < 19 and i == start:
                a.wait(vm=max(tokW[c + 1], tokXu[2 * c + 3]), lg=a.ltok())
                a("s_barrier")
                if ks in (5, 11): stamp(a, {5: 3, 11: 4}[ks])
                lastrt = 99
            if rt > lastrt:
                a.wait(lg=tokA[(ks, rt)]); lastrt = rt
            mf(d, A_, B_, first)
            if i >= start:
                for _ in range(per[i - start]): fill.pop(0)()
        assert not fill
    tokst = tk["st"]
    stamp(a, 5)

    E = Alloc(pool, limit=vpf)
    csv = [E(4, 4) for _ in range(6)]
    b1v = [E(4, 4) for _ in range(6)]
    rr = [E(2, 2) for _ in range(2)]
    rm = [st[0], st[1]]
    tmp = [E(2, 2) for _ in range(8)]
    outp = cs
    vcs = E()
    CSOFF = 2 * W_SLOT
    a(f"v_lshrrev_b32 v{t0}, 4, v{lane}")
    a(f"v_lshlrev_b32 v{vcs}, 4, v{t0}")
    a(f"s_lshl_b32 s{sT}, s{sP[0]}, 7")
    a(f"v_add_u32 v{t1}, s{sT}, v{vcs}")
    for o in range(2):
        a(f"ds_write_b128 v{t1}, {v(cs[o],4)} offset:{CSOFF + 64*o}")
    a.wait(vm=tokst)
    check_flags(a, [st[0] + 1, st[1] + 1], vsa, ld_stats)
    a("s_waitcnt lgkmcnt(0)")
    a("s_barrier")
    for P in range(3):
        a(f"s_lshl_b32 s{sT}, s{sP[P]}, 7")
        a(f"v_add_u32 v{t1}, s{sT}, v{vcs}")
        for o in range(2):
            a(f"ds_read_b128 {v(csv[2*P+o],4)}, v{t1} offset:{CSOFF + 64*o}")
    for ct in range(2):
        a(f"v_and_b32 v{t1}, 0xffff0000, v{st[ct]}")
        a(f"v_rcp_f32 v{rr[ct]}, v{t1}")
        a(f"v_lshlrev_b32 v{t2}, 16, v{st[ct]}")
        a(f"v_mul_f32 v{rr[ct]+1}, v{t2}, v{rr[ct]}")
        a(f"v_sub_f32 v{rm[ct]}, 0, v{rr[ct]+1}")
    for rt in range(6):
        a(f"v_lshlrev_b32 v{b1v[rt]}, 16, v{b1p[rt]}")
        a(f"v_and_b32 v{b1v[rt]+1}, 0xffff0000, v{b1p[rt]}")
        a(f"v_lshlrev_b32 v{b1v[rt]+2}, 16, v{b1p[rt]+1}")
        a(f"v_and_b32 v{b1v[rt]+3}, 0xffff0000, v{b1p[rt]+1}")
    a(f"s_lshl_b32 s{sT}, s{sRB}, 3")
    a(f"s_lshl_b32 s{sT2}, s{sWave}, 1")
    a(f"s_add_u32 s{sT}, s{sT}, s{sT2}")
    a(f"s_mul_i32 s{sT}, s{sT}, 48")
    a(f"s_mul_i32 s{sT2}, s{sCB}, 3")
    a(f"s_add_u32 s{sT}, s{sT}, s{sT2}")
    for P in range(3):
        a(f"s_add_u32 s{sP[P]}, s{sP[P]}, s{sT}")
        a(f"s_lshl_b32 s{sP[P]}, s{sP[P]}, 10")
        a(f"s_add_u32 s{sP[P]}, s{sP[P]}, {WS_ACT}")
    a(f"s_mov_b32 s50, {f32(LOG2E)}"); a(f"s_mov_b32 s51, {f32(LOG2E)}")
    Q = Alloc(base2, limit=256)
    acc2 = [[Q(4, 4) for ct in range(4)] for rt in range(5)]
    NST = 3
    FB = [[Q(4, 4) for _ in range(4)] for _ in range(NST)]
    vB = [Q() for _ in range(4)]
    vxo = Q(); vxo2 = Q()
    vw = [Q() for _ in range(5)]; vw8 = Q(); vw4 = Q()
    a(f"s_mul_i32 s{sM0w}, s{sWave}, 20480")
    for i in range(5):
        a(f"v_add_u32 v{t0}, {64*i}, v{lane}")
        a(f"v_mul_u32_u24 v{t1}, 0xcccd, v{t0}")
        a(f"v_lshrrev_b32 v{t1}, 19, v{t1}")
        a(f"v_mul_u32_u24 v{t2}, 10, v{t1}")
        a(f"v_sub_u32 v{t2}, v{t0}, v{t2}")
        a(f"v_mul_u32_u24 v{t1}, 1280, v{t1}")
        a(f"v_lshl_add_u32 v{vw[i]}, v{t2}, 4, v{t1}")
        if 0 < i < 4: a(f"v_subrev_u32 v{vw[i]}, {1024*i}, v{vw[i]}")
    tokD = {}
    def ops_dma(k):
        out = []
        for i in range(5):
            def f(i=i):
                if i == 0:
                    a(f"s_add_u32 m0, s{sM0w}, {5120*(k%4)}")
                    a(f"s_add_u32 s{sXoff}, s{sOA}, {32*1280*k}")
                if i == 4: a(f"s_add_u32 m0, s{sM0w}, {5120*(k%4) + 4096}")
                a(f"buffer_load_dwordx4 v{vw[i]}, s[{sW2}:{sW2+3}], s{sXoff} offen offset:{1024*i if i < 4 else 0} lds")
                tokD[k] = a.vtok()
            out.append(f)
        return out
    tokL = {}
    def op_rw(k, rt):
        o = WR[5 * (k % 5) + rt]
        for e in range(2):
            if rt < 4: a(f"ds_read_b64_tr_b16 {v(o+2*e,2)}, v{vw8} offset:{5120*(k%4) + 64*(rt>>1) + 8*(rt&1) + 2560*e}")
            else: a(f"ds_read_b64_tr_b16 {v(o+2*e,2)}, v{vw4} offset:{5120*(k%4) + 128 + 2560*e}")
        tokL[(k, rt)] = a.ltok()
    a("s_waitcnt lgkmcnt(0)")
    a("s_barrier")
    stamp(a, 6)
    k = 0
    for P in range(3):
        for ct in range(2):
            op = outp[k % 2]; k += 1
            if k == 1: dq = sum([ops_dma(k_) for k_ in range(4)], [])
            def dq_pop():
                if len(dq) > 20: dq.pop(0)()
            dq_pop()
            hs = []
            EP = ENV("EPLAIN", 0)
            for o in range(2):
                rt = 2 * P + o
                for hf in range(2):
                    h = acc[rt][ct] + 2 * hf
                    tt = tmp[len(hs)]
                    if EP:
                        for z in range(2): a(f"v_fma_f32 v{tt+z}, v{csv[rt]+2*hf+z}, v{rm[ct]}, v{b1v[rt]+2*hf+z}")
                        for z in range(2): a(f"v_fma_f32 v{h+z}, v{h+z}, v{rr[ct]}, v{tt+z}")
                    else:
                        a(f"v_pk_fma_f32 {v(tt,2)}, {v(csv[rt]+2*hf,2)}, {v(rm[ct],2)}, {v(b1v[rt]+2*hf,2)} op_sel_hi:[1,0,1]")
                        a(f"v_pk_fma_f32 {v(h,2)}, {v(h,2)}, {v(rr[ct],2)}, {v(tt,2)} op_sel_hi:[1,0,1]")
                    hs.append(h)
            def pmul(d, x, y):
                if EP:
                    for z in range(2): a(f"v_mul_f32 v{d+z}, " + (f"s50, v{x+z}" if y is None else f"v{x+z}, v{y+z}"))
                else: a(f"v_pk_mul_f32 {v(d,2)}, {v(x,2)}, " + ("s[50:51]" if y is None else v(y, 2)))
            def padd2(d, x):
                if EP:
                    for z in range(2): a(f"v_add_f32 v{d+z}, 2.0, v{x+z}")
                else: a(f"v_pk_add_f32 {v(d,2)}, {v(x,2)}, 2.0 op_sel_hi:[1,0]")
            for i, h in enumerate(hs): pmul(tmp[i], h, None)
            for i, h in enumerate(hs):
                a(f"v_min_f32 v{tmp[i]}, {f32(30.0)}, v{tmp[i]}")
                a(f"v_min_f32 v{tmp[i]+1}, {f32(30.0)}, v{tmp[i]+1}")
            dq_pop()
            for i, h in enumerate(hs):
                a(f"v_exp_f32 v{tmp[i]}, v{tmp[i]}")
                a(f"v_exp_f32 v{tmp[i]+1}, v{tmp[i]+1}")
            dq_pop()
            for i, h in enumerate(hs): padd2(tmp[4+i], tmp[i])
            for i, h in enumerate(hs): pmul(tmp[i], tmp[i], tmp[4+i])
            for i, h in enumerate(hs): padd2(tmp[4+i], tmp[i])
            for i, h in enumerate(hs):
                a(f"v_rcp_f32 v{tmp[4+i]}, v{tmp[4+i]}")
                a(f"v_rcp_f32 v{tmp[4+i]+1}, v{tmp[4+i]+1}")
            dq_pop()
            for i, h in enumerate(hs): pmul(h, h, tmp[i])
            for i, h in enumerate(hs): pmul(h, h, tmp[4+i])
            for i, h in enumerate(hs): a(f"v_cvt_pk_bf16_f32 v{op+i}, v{h}, v{h+1}")
            if ct == 0:
                a(f"buffer_store_dwordx4 {v(op,4)}, v{v16}, s[{sWS}:{sWS+3}], s{sP[P]} offen sc1")
            else:
                a(f"s_add_u32 s{sT}, s{sP[P]}, {48*1024}")
                a(f"buffer_store_dwordx4 {v(op,4)}, v{v16}, s[{sWS}:{sWS+3}], s{sT} offen sc1")
    tokst_ = a.vtok()
    stamp(a, 7)
    a(f"s_lshl_b32 s{sT}, s{sRB}, 4")
    a(f"s_add_u32 s{sT}, s{sT}, s{sCB}")
    a(f"s_lshl_b32 s{sT}, s{sT}, 2")
    a(f"s_add_u32 s{sT}, s{sT}, s{sWave}")
    a(f"s_lshl_b32 s{sT}, s{sT}, 7")
    a(f"s_add_u32 s{sT}, s{sT}, {WS_FACT}")
    a(f"v_mov_b32 v{vtok}, s{sTok}")

    for ct in range(4):
        a(f"s_add_u32 s{sT2}, s{sWave}, {ct}")
        a(f"s_and_b32 s{sT2}, s{sT2}, 3")
        a(f"s_mul_i32 s{sT2}, s{sT2}, {48*1024}")
        a(f"v_add_u32 v{vB[ct]}, s{sT2}, v{v16}")
    a(f"v_lshrrev_b32 v{t1}, 2, v{lane}")
    a(f"v_mul_u32_u24 v{t1}, 160, v{t1}")
    a(f"v_add_u32 v{t1}, s{sM0w}, v{t1}")
    a(f"v_and_b32 v{t2}, 3, v{lane}")
    a(f"v_lshl_add_u32 v{vw8}, v{t2}, 4, v{t1}")
    a(f"v_lshl_add_u32 v{vw4}, v{t2}, 3, v{t1}")
    def do_publish():
        a.wait(vm=tokst_)
        a("s_mov_b64 exec, 1")
        a(f"buffer_store_dword v{vtok}, v{vzero}, s[{sWS}:{sWS+3}], s{sT} offen sc1")
        a("s_mov_b64 exec, -1")
        if ENV("GPRIO2", 2): a(f"s_setprio {ENV('GPRIO3', 0)}")
        stamp(a, 8)
    assert len(dq) == 20
    for _ in range(10): dq.pop(0)()
    a(f"v_and_b32 v{t0}, 3, v{lane}")
    a(f"v_bfe_u32 v{t1}, v{lane}, 2, 1")
    a(f"v_lshl_add_u32 v{vfa}, v{t0}, 2, v{t1}")
    a(f"v_lshlrev_b32 v{vfa}, 7, v{vfa}")
    a(f"s_lshr_b32 s{sFB}, s{sTB}, 1")
    a(f"s_lshl_b32 s{sFB}, s{sFB}, 2")
    a(f"s_add_u32 s{sFB}, s{sFB}, s{sWave}")
    a(f"s_lshl_b32 s{sFB}, s{sFB}, 3")
    a(f"s_and_b32 s{sT2}, s{sTB}, 1")
    a(f"s_add_u32 s{sFB}, s{sFB}, s{sT2}")
    a(f"s_lshl_b32 s{sFB}, s{sFB}, 8")
    a(f"s_add_u32 s{sFB}, s{sFB}, {WS_FACT}")
    a(f"v_mul_u32_u24 v{t0}, {48*1024}, v{t0}")
    a(f"v_lshrrev_b32 v{t1}, 2, v{lane}")
    a(f"v_lshl_add_u32 v{t0}, v{t1}, 10, v{t0}")
    a(f"s_lshl_b32 s{sT2}, s{sJD}, 7")
    a(f"s_add_u32 s{sT2}, s{sT2}, s{sOB}")
    do_publish()
    while dq: dq.pop(0)()
    def rd(k):
        a.wait(vm=tokD[k])
        for rt in range(5): op_rw(k, rt)
    def dm(k):
        a.wait(lg=tokL[(k - 4, 4)])
        for f in ops_dma(k): f()
    tokB = {}
    def issue_b(k):
        for ct in range(4):
            a(f"buffer_load_dwordx4 {v(FB[k%NST][ct],4)}, v{vB[ct]}, s[{sWS}:{sWS+3}], s{sOB} offen sc1")
        tokB[k] = a.vtok()
        if k < 11: a(f"s_add_u32 s{sOB}, s{sOB}, 1024")
    FPOS = ENV("FPOS", 1)
    def fl():
        ld_first(8); tk["fa"] = a.vtok()
    rd(0); rd(1); dm(4); rd(2)
    if FPOS == 0: fl()
    dm(5)
    if FPOS == 1: fl()
    rd(3); dm(6)
    if FPOS == 2:
        fl(); dm(7)
    stamp(a, 14)
    a.wait(vm=tk["fa"])
    check_flags(a, [vfl], vfa, ld_w2flags, sleep=ENV("ASLEEP", 3))
    stamp(a, 9)
    if ENV("GPRIO2", 2): a(f"s_setprio {ENV('GPRIO4', 0)}")
    if ENV("PFA", 1):
        a("s_mov_b32 exec_hi, 0xffff")
        a(f"buffer_load_dword v{t3}, v{t0}, s[{sWS}:{sWS+3}], s{sT2} offen sc1")
        a("s_mov_b32 exec_hi, -1")
    for k in range(NST): issue_b(k)
    if FPOS != 2: dm(7)
    rd(4)
    sXo = 40
    a(f"s_lshl_b32 s{sXo}, s{sTB}, 6")
    a(f"s_lshl_b32 s{sT2}, s{sWave}, 4")
    a(f"s_add_u32 s{sXo}, s{sXo}, s{sT2}")
    a(f"s_mul_i32 s{sXo}, s{sXo}, 1280")
    a(f"s_mul_i32 s{sT2}, s{sJD}, 160")
    a(f"s_add_u32 s{sXo}, s{sXo}, s{sT2}")
    vso = vxo; vlw = vxo2
    a(f"v_lshrrev_b32 v{t0}, 3, v{lane}")
    a(f"v_and_b32 v{t1}, 7, v{lane}")
    a(f"v_lshlrev_b32 v{t1}, 4, v{t1}")
    a(f"v_lshl_add_u32 v{vso}, v{t0}, 12, v{t1}")
    a(f"s_mul_i32 s{sM0x}, s{sWave}, 2560")
    STOFF = 61440; XSOFF = 71680
    a(f"v_min_u32 v{vfa}, 19, v{lane}")
    a(f"v_lshlrev_b32 v{vfa}, 7, v{vfa}")
    a(f"s_mul_i32 s{sT3}, s{sJD}, 80")
    a(f"s_mul_i32 s{sT}, s{sWave}, 20")
    a(f"s_add_u32 s{sWoff}, s{sT3}, s{sT}")
    a(f"s_lshl_b32 s{sT3}, s{sWoff}, 7")
    a(f"s_lshr_b32 s{sT}, s{sTB}, 3")
    a(f"s_lshl_b32 s{sT}, s{sT}, 2")
    a(f"s_add_u32 s{sT3}, s{sT3}, s{sT}")
    a(f"s_add_u32 s{sFB}, s{sT3}, {WS_FST}")
    slot = {f: f % 25 for f in range(60)}
    for k in range(12):
        dma = ops_dma(k + 8) if k <= 3 else []
        for rt in range(5):
            if rt == 0: a.wait(vm=tokB[k])
            if k >= 4: a.wait(lg=tokL[(k, rt)])
            if rt == 1 and dma: a.wait(lg=tokL[(k + 4, 4)])
            for ct in range(4):
                c = "0" if k == 0 else v(acc2[rt][ct], 4)
                a(f"v_mfma_f32_16x16x32_bf16 {v(acc2[rt][ct],4)}, {v(WR[slot[5*k+rt]],4)}, {v(FB[k%NST][ct],4)}, {c}")
                if ct == 0 and rt >= 1 and k + 5 < 12:
                    if rt == 1: a.wait(vm=tokD[k + 5])
                    op_rw(k + 5, rt - 1)
                if ct == 2 and rt >= 1 and dma: dma.pop(0)()
        if k + 5 < 12: op_rw(k + 5, 4)
        while dma: dma.pop(0)()
        if k in (0, 5): stamp(a, {0: 10, 5: 11}[k])
        if k + NST < 12: issue_b(k + NST)
        if k == 8:
            ld_first(20); tokfl = a.vtok()
            a("s_waitcnt lgkmcnt(0)")
            a("s_barrier")
            a(f"s_add_u32 m0, s{sM0x}, {XSOFF}")
            for i in range(3):
                if i == 2: a("s_mov_b32 exec_hi, 0")
                a(f"buffer_load_dwordx4 v{vw[i]}, s[{sX}:{sX+3}], s{sXo} offen offset:{1024*i} lds")
            a("s_mov_b32 exec_hi, -1")
        if k == 9:
            a.wait(vm=tokfl)
            check_flags(a, [vfl], vfa, ld_w2flags, sleep=ENV("STSLEEP", 8))
            a(f"s_lshl_b32 s{sT}, s{sWoff}, 12")
            a(f"s_lshl_b32 s{sT2}, s{sTB}, 7")
            a(f"s_add_u32 s{sT}, s{sT}, s{sT2}")
            a(f"s_add_u32 s{sT}, s{sT}, {WS_ST}")
            for i in range(3):
                if i == 2: a("s_mov_b32 exec_hi, 0")
                a(f"s_add_u32 m0, s{sM0x}, {STOFF + 1024*i}")
                a(f"buffer_load_dwordx4 v{vso}, s[{sWS}:{sWS+3}], s{sT} offen sc1 lds")
                if i < 2: a(f"s_add_u32 s{sT}, s{sT}, {8*4096}")
            a("s_mov_b32 exec_hi, -1")
        if k == 10:
            for ct in range(1, 4):
                a(f"s_add_u32 s{sT2}, s{sWave}, {ct}")
                a(f"s_and_b32 s{sT2}, s{sT2}, 3")
                a(f"s_mul_i32 s{sT2}, s{sT2}, 15360")
                a(f"v_add_u32 v{vB[ct]}, s{sT2}, v{v16}")
            break
    k = 11
    a.wait(vm=tokB[k]); a.wait(lg=tokL[(k, 4)])
    vt8, vt4, vx16, vx8 = [FB[0][0] + i for i in range(4)]
    misc = [f"v_lshrrev_b32 v{t2}, 4, v{lane}", f"v_bfe_u32 v{t0}, v{lane}, 2, 2",
            f"v_lshl_add_u32 v{t1}, v{t2}, 3, v{t0}", f"v_lshl_add_u32 v{t0}, v{t2}, 2, v{t0}", f"v_and_b32 v{t3}, 3, v{lane}"]
    pend = []
    for ct in (1, 2, 3, 0):
        for rt in range(5):
            a(f"v_mfma_f32_16x16x32_bf16 {v(acc2[rt][ct],4)}, {v(WR[slot[5*k+rt]],4)}, {v(FB[k%NST][ct],4)}, {v(acc2[rt][ct],4)}")
            if ct == 1: a(misc[rt])
            elif pend: a(pend.pop(0))
        if ct: pend += [f"ds_write_b128 v{vB[ct]}, {v(acc2[rt][ct],4)} offset:{(ct-1)*5120 + rt*1024}" for rt in range(5)]
    stamp(a, 12)
    Pr = [[acc2[rt][p + 1] for rt in range(5)] for p in range(3)]
    T = [WR[10 + i // 2] + 2 * (i % 2) for i in range(10)]
    sv = [WR[15 + i // 2] + 2 * (i % 2) for i in range(5)]
    xq = [WR[18], WR[19], WR[20]]
    op = [WR[21], WR[22], WR[23]]
    a(f"s_lshl_b32 s{sT}, s{sWave}, 5")
    a(f"s_add_u32 s{sT}, s{sT}, {STOFF}")
    a(f"v_lshl_add_u32 v{t3}, v{t3}, 3, s{sT}")
    a(f"v_lshl_add_u32 v{vt8}, v{t1}, 7, v{t3}")
    a(f"v_lshl_add_u32 v{vt4}, v{t0}, 7, v{t3}")
    a(f"v_and_b32 v{t0}, 15, v{lane}")
    a(f"v_mul_u32_u24 v{t0}, 160, v{t0}")
    a(f"s_add_u32 s{sT}, s{sM0x}, {XSOFF}")
    a(f"v_add_u32 v{t0}, s{sT}, v{t0}")
    a(f"v_lshl_add_u32 v{vx16}, v{t2}, 4, v{t0}")
    a(f"v_lshl_add_u32 v{vx8}, v{t2}, 3, v{t0}")
    a(f"v_add_u32 v{vlw}, s{sT}, v{v16}")
    a(f"s_mul_i32 s{sT2}, s{sWave}, 15360")
    a(f"v_add_u32 v{t3}, s{sT2}, v{v16}")
    a(f"s_mov_b32 s50, {f32(-LOG2E)}"); a(f"s_mov_b32 s51, {f32(-LOG2E)}")
    a("s_waitcnt vmcnt(0) lgkmcnt(0)")
    a("s_barrier")
    stamp(a, 13)
    tkr = {}
    for rt in range(5):
        for p in range(3):
            a(f"ds_read_b128 {v(Pr[p][rt],4)}, v{t3} offset:{p*5120 + rt*1024}")
        tkr[rt] = a.ltok()
    o2 = []
    late = [f"ds_read_b64_tr_b16 {v(sv[rt],2)}, v{vt8} offset:{128*(32*(rt>>1) + 4*(rt&1))}" for rt in range(4)]
    late += [f"ds_read_b64_tr_b16 {v(sv[4],2)}, v{vt4} offset:{128*64}", f"ds_read_b128 {v(xq[0],4)}, v{vx16}",
             f"ds_read_b128 {v(xq[1],4)}, v{vx16} offset:64", f"ds_read_b64 {v(xq[2],2)}, v{vx8} offset:128"]
    for rt in range(5):
        a.wait(lg=tkr[rt])
        for hf in range(2):
            d = acc2[rt][0] + 2 * hf
            a(f"v_pk_add_f32 {v(Pr[0][rt]+2*hf,2)}, {v(Pr[0][rt]+2*hf,2)}, {v(Pr[1][rt]+2*hf,2)}")
            a(f"v_pk_add_f32 {v(d,2)}, {v(d,2)}, {v(Pr[2][rt]+2*hf,2)}")
            a(f"v_pk_add_f32 {v(d,2)}, {v(d,2)}, {v(Pr[0][rt]+2*hf,2)}")
            o2.append(d)
    for x_ in late: a(x_)
    for i, d in enumerate(o2): a(f"v_pk_mul_f32 {v(T[i],2)}, {v(d,2)}, s[50:51]")
    for i, d in enumerate(o2):
        a(f"v_exp_f32 v{T[i]}, v{T[i]}")
        a(f"v_exp_f32 v{T[i]+1}, v{T[i]+1}")
    for i, d in enumerate(o2): a(f"v_pk_add_f32 {v(T[i],2)}, {v(T[i],2)}, 1.0 op_sel_hi:[1,0]")
    for i, d in enumerate(o2):
        a(f"v_rcp_f32 v{T[i]}, v{T[i]}")
        a(f"v_rcp_f32 v{T[i]+1}, v{T[i]+1}")
    a("s_waitcnt lgkmcnt(0)")
    for i, d in enumerate(o2):
        s_ = sv[i // 2] + i % 2
        x_ = xq[i // 4] + i % 4
        U_ = Pr[0][i // 2] + 2 * (i % 2)
        V_ = Pr[1][i // 2] + 2 * (i % 2)
        a(f"v_pk_mul_f32 {v(d,2)}, {v(d,2)}, {v(T[i],2)}")
        a(f"v_lshlrev_b32 v{U_}, 16, v{s_}")
        a(f"v_and_b32 v{U_+1}, 0xffff0000, v{s_}")
        a(f"v_lshlrev_b32 v{V_}, 16, v{x_}")
        a(f"v_and_b32 v{V_+1}, 0xffff0000, v{x_}")
        a(f"v_pk_fma_f32 {v(d,2)}, {v(d,2)}, {v(U_,2)}, {v(V_,2)}")
        a(f"v_cvt_pk_bf16_f32 v{op[i//4] + i%4}, v{d}, v{d+1}")
        if i == 3: a(f"ds_write_b128 v{vx16}, {v(op[0],4)}")
        if i == 7: a(f"ds_write_b128 v{vx16}, {v(op[1],4)} offset:64")
    a(f"ds_write_b64 v{vx8}, {v(op[2],2)} offset:128")
    for i in range(3):
        a(f"ds_read_b128 {v(xq[i],4)}, v{vlw} offset:{1024*i}")
    for i in range(3):
        a(f"s_waitcnt lgkmcnt({2-i})")
        if i == 2: a("s_mov_b32 exec_hi, 0")
        a(f"buffer_store_dwordx4 {v(xq[i],4)}, v{vw[i]}, s[{sOUT}:{sOUT+3}], s{sXo} offen offset:{1024*i}")
    stamp_end(a, sWave)
    return 256

def main(out):
    ref = open(f"cdna_kernels/{NAME}.s.ref").read().split("\n")
    hdr = [l for l in ref if l.startswith(";") and "@launch" not in l]
    hdr.append(f"; @launch grid=(512,1,1) block=(256,1,1) lds={LDS_BYTES}")
    a = Asm()
    a.raw(f'.amdgcn_target "amdgcn-amd-amdhsa--gfx950"\n.text\n.globl {KN}\n.p2align 8\n.type {KN},@function')
    a.label(KN)
    a("s_cmp_lt_u32 s2, 256")
    a("s_cbranch_scc1 " + ("K_exit" if ENV("NOS", 0) else "S_role"))
    a(f"s_cmp_ge_u32 s2, {256 if ENV('NOG', 0) else 512}")
    a("s_cbranch_scc1 K_exit")
    hg = g_role(a)
    a.label("S_role"); a.flush_hist()
    hs = s_role(a)
    a.label("K_exit")
    a("s_endpgm")
    a.raw(".p2align 15")
    print("vgprs", hg, hs, "nops", a.nnop, "lines", len(a.items), file=sys.stderr)
    kd = f""".section .rodata,"a"
.p2align 6
.amdhsa_kernel {KN}
  .amdhsa_next_free_vgpr 256
  .amdhsa_next_free_sgpr {102 if STAMPS else 64}
  .amdhsa_accum_offset 256
  .amdhsa_group_segment_fixed_size 0
  .amdhsa_kernarg_size 128
  .amdhsa_user_sgpr_count 2
  .amdhsa_user_sgpr_kernarg_segment_ptr 1
  .amdhsa_system_sgpr_workgroup_id_x 1
  .amdhsa_float_denorm_mode_32 3
  .amdhsa_float_denorm_mode_16_64 3
.end_amdhsa_kernel
"""
    open(out, "w").write("\n".join(hdr) + "\n" + a.text() + kd)

if __name__ == "__main__":
    main(sys.argv[1] if len(sys.argv) > 1 else f"cdna_kernels/{NAME}.s")
```

```python
import sys, os, struct, math
sys.path.insert(0, os.path.dirname(os.path.abspath(__file__)))
from asmlib import *

NAME = "recurrent_scan__ssm_conv_s4__dense_activation_mish__prompt"
KN = NAME + "_kernel"
L, D, N, F = 2048, 640, 192, 1536
ENV = lambda k, d: int(os.environ.get(k, str(d)))
STAMPS = ENV("STAMPS", 0)

WS_XT2 = 0x0000000
WS_ST  = 0x0400000
WS_W2A = 0x0800000
WS_ACT = 0x0C00000
WS_STAT = 0x1400000
WS_FLN = 0x1500000
WS_FPACE = 0x1510000
WS_FACT = 0x1520000
WS_FST = 0x1560000
WS_SIZE = 0x1600000
WS_STAMP = 0x4000000
LDS_BYTES = 81920
SPIN_MAX = 0x4000

def f32(x): return "0x%08x" % struct.unpack("<I", struct.pack("<f", x))[0]
LOG2E = 1.4426950408889634
LN2 = 0.6931471805599453

def srd(a, sreg, size):
    a(f"s_mov_b32 s{sreg+2}, {size}")
    a(f"s_mov_b32 s{sreg+3}, 0x20000")

def bf16r(a, dst, src):
    a(f"v_cvt_pk_bf16_f32 v{dst}, v{src}, v{src}")
    a(f"v_and_b32 v{dst}, 0xffff0000, v{dst}")

_sn = [0]
DIAG = ENV("DIAG", 0)
_role = ["?"]
def stamp_begin(a):
    _sn[0] = 0
    if DIAG and _role[0] == "G": a("s_memrealtime s[60:61]")
    if STAMPS:
        a("s_memrealtime s[60:61]")
        for i in range(64, 96, 2): a(f"s_mov_b64 s[{i}:{i+1}], 0")
        a("s_memtime s[64:65]")
        _sn[0] = 1
def stamp(a, n=None):
    if DIAG and n == DIAG and _role[0] == "G": a("s_memrealtime s[62:63]")
    if STAMPS:
        if n is None:
            n = _sn[0]; _sn[0] += 1
        assert n < 16
        a(f"s_memtime s[{64+2*n}:{65+2*n}]")
def stamp_end(a, sWave):
    if DIAG and _role[0] == "G":
        if DIAG == 15: a("s_memrealtime s[62:63]")
        a("s_memrealtime s[56:57]")
        a("s_waitcnt lgkmcnt(0)")
        a("s_sub_u32 s62, s62, s60")
        a("s_add_u32 s56, s56, s62")
        a.label("DG_spin")
        a("s_sleep 2")
        a("s_memrealtime s[58:59]")
        a("s_waitcnt lgkmcnt(0)")
        a("s_sub_u32 s58, s58, s56")
        a("s_cmp_lt_i32 s58, 0")
        a("s_cbranch_scc1 DG_spin")
    if STAMPS:
        stamp(a, 15)
        a("s_memrealtime s[62:63]")
        a("s_load_dwordx2 s[96:97], s[0:1], 120")
        a("s_waitcnt lgkmcnt(0)")
        a(f"s_add_u32 s96, s96, {WS_STAMP}")
        a("s_addc_u32 s97, s97, 0")
        a("s_mov_b32 s98, 0x100000")
        a("s_mov_b32 s99, 0x20000")
        a("s_lshl_b32 s59, s2, 10")
        a(f"s_lshl_b32 s58, s{sWave}, 8")
        a("s_add_u32 s59, s59, s58")
        a("s_mov_b64 exec, 1")
        a("v_mov_b32 v1, s59")
        a("v_mov_b32 v2, s60"); a("v_mov_b32 v3, s62")
        a("buffer_store_dwordx2 v[2:3], v1, s[96:99], 0 offen")
        for n in range(16):
            a(f"s_sub_u32 s59, s{64+2*n}, s64")
            a(f"s_cmp_eq_u32 s{64+2*n}, 0")
            a(f"s_cselect_b32 s59, 0, s59")
            a(f"v_mov_b32 v{4 + n}, s59")
            a(f"buffer_store_dword v{4 + n}, v1, s[96:99], 0 offen offset:{16+4*n}")
    a("s_endpgm")

_lab = [0]
def newlab(p):
    _lab[0] += 1
    return f"{p}_{_lab[0]}"

sWS, sDBG = 4, 8
sWave, sTok, sSpin = 12, 13, 14
sT, sT2, sT3 = 15, 16, 17

def check_token(a, vtok, vzero):
    done = newlab("TK"); loop = newlab("TL")
    if ENV("NOS", 0) or os.environ.get("ONLY", ""):
        a(f"s_mov_b32 s{sTok}, 0x12345"); return
    a(f"v_readfirstlane_b32 s{sTok}, v{vtok}")
    a(f"s_cmp_lg_u32 s{sTok}, 0")
    a(f"s_cbranch_scc1 {done}")
    a(f"s_mov_b32 s{sSpin}, 0")
    a.label(loop)
    a("s_sleep 2")
    a(f"buffer_load_dword v{vtok}, v{vzero}, s[{sDBG}:{sDBG+3}], 0 offen sc1"); a.vm -= 1
    a("s_waitcnt vmcnt(0)")
    a(f"v_readfirstlane_b32 s{sTok}, v{vtok}")
    a(f"s_cmp_lg_u32 s{sTok}, 0")
    a(f"s_cbranch_scc1 {done}")
    a(f"s_add_u32 s{sSpin}, s{sSpin}, 1")
    a(f"s_cmp_lt_u32 s{sSpin}, {SPIN_MAX}")
    a(f"s_cbranch_scc1 {loop}")
    a.label(done)

def check_flags(a, vfl, vaddr, reload, sleep=2):
    if (ENV("NOS", 0) or os.environ.get("ONLY", "")) and sleep != 3: return
    done = newlab("FD"); loop = newlab("FL")
    def cmpall():
        a(f"v_cmp_ne_u32 vcc, s{sTok}, v{vfl[0]}")
        for r_ in vfl[1:]:
            a(f"v_cmp_ne_u32 s[18:19], s{sTok}, v{r_}")
            a("s_or_b64 vcc, vcc, s[18:19]")
        a("s_cmp_eq_u64 vcc, 0")
    cmpall()
    a(f"s_cbranch_scc1 {done}")
    a(f"s_mov_b32 s{sSpin}, 0")
    a.label(loop)
    a(f"s_sleep {sleep}")
    n0 = a.vm
    a("s_mov_b64 exec, vcc")
    reload()
    a("s_mov_b64 exec, -1")
    a.vm = n0
    a("s_waitcnt vmcnt(0)")
    cmpall()
    a(f"s_cbranch_scc1 {done}")
    a(f"s_add_u32 s{sSpin}, s{sSpin}, 1")
    a(f"s_cmp_lt_u32 s{sSpin}, {SPIN_MAX}")
    a(f"s_cbranch_scc1 {loop}")
    a.label(done)

CV_S = 4160
CH_REG = 64 * 272
CV_U = [3 * CH_REG + 512 + 4608 * i for i in range(3)]
LN_OFF = 3 * CH_REG + 3 * 4608
LN_S = 1344
PACE_OFF = LDS_BYTES - 16
KG_S = 272
COARSE = list(range(8)) + [256, 258, 260, 262, 512, 516, 768, 772, 1024, 1280, 1536, 1792, 2048]
assert LN_OFF + 8 * LN_S <= LDS_BYTES and 4 * CV_S <= CH_REG

def s_role(a):
    sX_, sA, sXc = 20, 24, 25
    sD = [26, 27, 28]
    sCnt, sPar, sSlot, sRound, sHeavy = 29, 30, 31, 56, 57
    SP = [32, 36, 40, 44, 48, 52]
    R = Alloc(1)
    lane = R(); t0 = R(); t1 = R(); t2 = R(); t3 = R(); vzero = R(); vtok = R(); v16 = R()
    vdk = [R(), R()]
    base = R.mark()
    stamp_begin(a)
    a(f"s_load_dwordx2 s[{sWS}:{sWS+1}], s[0:1], 120")
    a(f"s_load_dwordx2 s[{sDBG}:{sDBG+1}], s[0:1], 112")
    a(f"v_lshrrev_b32 v{t0}, 6, v0")
    a(f"v_and_b32 v{lane}, 63, v0")
    a(f"v_readfirstlane_b32 s{sWave}, v{t0}")
    srd(a, sWS, WS_SIZE); srd(a, sDBG, 256)
    a(f"s_and_b32 s{sXc}, s2, 7")
    a(f"s_lshr_b32 s{sA}, s2, 3")
    a(f"s_lshl_b32 s{sD[0]}, s{sXc}, 6")
    a(f"s_lshl_b32 s{sT}, s{sA}, 1")
    a(f"s_add_u32 s{sD[0]}, s{sD[0]}, s{sT}")
    a(f"s_add_u32 s{sD[1]}, s{sD[0]}, 1")
    a(f"s_lshl_b32 s{sD[2]}, s{sXc}, 4")
    a(f"s_add_u32 s{sD[2]}, s{sD[2]}, s{sA}")
    a(f"s_add_u32 s{sD[2]}, s{sD[2]}, 512")
    a(f"s_cmp_lt_u32 s{sA}, 16")
    a(f"s_cselect_b32 s{sHeavy}, 1, 0")
    a(f"v_mov_b32 v{vzero}, 0")
    a(f"v_lshlrev_b32 v{v16}, 4, v{lane}")
    ONLY = os.environ.get("ONLY", "")
    if ENV("SPRIO0", 0): a(f"s_setprio {ENV('SPRIO0', 0)}")
    a(f"s_lshr_b32 s{sSlot}, s{sWave}, 1")
    a(f"s_cmp_eq_u32 s{sWave}, 3")
    a("s_cbranch_scc1 " + ("S_ln" if (not ONLY or "l" in ONLY) else "K_exit"))
    a(f"s_add_u32 s{sT}, s{sHeavy}, 2")
    a(f"s_cmp_ge_u32 s{sWave}, s{sT}")
    a("s_cbranch_scc1 " + ("S_w2t" if (not ONLY or "w" in ONLY) else "K_exit"))
    if ONLY and "k" not in ONLY: a("s_branch K_exit")

    P = [[R() for _ in range(6)] for _ in range(3)]
    vdt = R(); vwr = R(); vrd = R(); voff = R()
    accK = R(16, 4)
    FA = [R(4, 4) for _ in range(8)]; FB = [R(4, 4) for _ in range(8)]
    pr = lambda: R(2, 2)
    l1, l8, l256, W, E0, E1, E2, T, T2, G2, G4, G6, V, a2b = [pr() for _ in range(14)]
    Qr = [R(4, 4) for _ in range(2)]; Qi = [R(4, 4) for _ in range(2)]
    Cr = R(16, 4); Ci = R(16, 4)
    sDd, sBase = 58, 59
    if STAMPS: sDd, sBase = 100, 101
    for i, sr in enumerate(SP):
        a(f"s_load_dwordx2 s[{sr}:{sr+1}], s[0:1], {8 + 8*i}")
    a(f"s_load_dwordx2 s[{sX_}:{sX_+1}], s[0:1], 56")
    a(f"s_load_dwordx2 s[18:19], s[0:1], 64")
    a(f"s_cmp_eq_u32 s{sWave}, 1")
    a(f"s_cselect_b32 s{sDd}, s{sD[1]}, s{sD[0]}")
    a(f"s_cmp_eq_u32 s{sWave}, 2")
    a(f"s_cselect_b32 s{sDd}, s{sD[2]}, s{sDd}")
    for sr in SP: srd(a, sr, D * N * 2)
    srd(a, sX_, D * 2)
    a(f"s_mul_i32 s{sT}, s{sDd}, {N*2}")
    a(f"v_lshlrev_b32 v{voff}, 1, v{lane}")
    a(f"s_lshl_b32 s{sT2}, s{sDd}, 1")
    a("s_waitcnt lgkmcnt(0)")
    a(f"buffer_load_ushort v{vdt}, v{vzero}, s[{sX_}:{sX_+3}], s{sT2} offen")
    a(f"s_mov_b32 s{sX_}, s18"); a(f"s_mov_b32 s{sX_+1}, s19")
    a(f"buffer_load_ushort v{vdk[0]}, v{vzero}, s[{sX_}:{sX_+3}], s{sT2} offen")
    for p in range(3):
        for i, sr in enumerate(SP):
            a(f"buffer_load_ushort v{P[p][i]}, v{voff}, s[{sr}:{sr+3}], s{sT} offen offset:{128*p}")
    a(f"s_mul_i32 s{sBase}, s{sWave}, {CH_REG}")
    a(f"v_mul_u32_u24 v{vwr}, {KG_S}, v{lane}")
    a(f"v_add_u32 v{vwr}, s{sBase}, v{vwr}")
    a(f"v_bfe_u32 v{t0}, v{lane}, 2, 2")
    a(f"v_lshrrev_b32 v{t1}, 5, v{lane}")
    a(f"v_lshl_add_u32 v{t0}, v{t0}, 2, v{t1}")
    a(f"v_mul_u32_u24 v{t0}, {KG_S}, v{t0}")
    a(f"v_bfe_u32 v{t1}, v{lane}, 4, 1")
    a(f"v_lshl_add_u32 v{t0}, v{t1}, 5, v{t0}")
    a(f"v_and_b32 v{t1}, 3, v{lane}")
    a(f"v_lshl_add_u32 v{t0}, v{t1}, 3, v{t0}")
    a(f"v_add_u32 v{vrd}, s{sBase}, v{t0}")
    for i in (13, 15): a(f"v_mov_b32 v{Cr+i}, 0"); a(f"v_mov_b32 v{Ci+i}, 0")
    a("s_waitcnt vmcnt(0)")
    stamp(a, 1)
    a(f"v_lshlrev_b32 v{vdt}, 16, v{vdt}")
    a(f"v_mul_f32 v{t0}, {f32(LOG2E)}, v{vdt}")
    a(f"s_mov_b32 s{sT}, {f32(LOG2E)}")
    a(f"v_fma_f32 v{t1}, v{vdt}, s{sT}, -v{t0}")
    lo = LOG2E - struct.unpack("<f", struct.pack("<f", LOG2E))[0]
    a(f"v_fmac_f32 v{t1}, {f32(lo)}, v{vdt}")
    a(f"v_exp_f32 v{t0}, v{t0}")
    a(f"v_mul_f32 v{t1}, {f32(LN2)}, v{t1}")
    a(f"v_fma_f32 v{t0}, v{t0}, v{t1}, v{t0}")
    bf16r(a, vdt, t0)
    a(f"s_mov_b32 s{sCnt}, 0")
    def cmul(dst, e, m):
        if ENV("KPK", 0):
            a(f"v_pk_mul_f32 {v(T,2)}, {v(e,2)}, {v(m,2)} op_sel:[0,0] op_sel_hi:[0,1]")
            a(f"v_pk_fma_f32 {v(dst,2)}, {v(e,2)}, {v(m,2)}, {v(T,2)} op_sel:[1,1,0] op_sel_hi:[1,0,1] neg_lo:[0,1,0]")
        else:
            assert dst != e and dst != m
            a(f"v_mul_f32 v{dst}, v{e}, v{m}")
            a(f"v_mul_f32 v{dst+1}, v{e}, v{m+1}")
            a(f"v_fma_f32 v{dst}, -v{e+1}, v{m+1}, v{dst}")
            a(f"v_fmac_f32 v{dst+1}, v{e+1}, v{m}")
    def cexp(dst, scale):
        if scale == 1:
            a(f"v_exp_f32 v{t0}, v{a2b}")
            a(f"v_fract_f32 v{t1}, v{a2b+1}")
        else:
            a(f"v_mul_f32 v{t0}, {f32(float(scale))}, v{a2b}")
            a(f"v_mul_f32 v{t1}, {f32(float(scale))}, v{a2b+1}")
            a(f"v_exp_f32 v{t0}, v{t0}")
            a(f"v_fract_f32 v{t1}, v{t1}")
        a(f"v_cos_f32 v{dst}, v{t1}")
        a(f"v_sin_f32 v{dst+1}, v{t1}")
        a(f"v_mul_f32 v{dst}, v{dst}, v{t0}")
        a(f"v_mul_f32 v{dst+1}, v{dst+1}, v{t0}")
    def mfmas():
        for ks in range(8):
            a(f"v_mfma_f32_32x32x16_bf16 {v(accK,16)}, {v(FA[ks],4)}, {v(FB[ks],4)}, {v(accK,16)}")
    def cpair(dw, x, y):
        a(f"v_cvt_pk_bf16_f32 v{Cr+dw}, v{x}, v{y}")
        a(f"v_cvt_pk_bf16_f32 v{Ci+dw}, -v{x+1}, -v{y+1}")
    if ENV("XKG", 0): a("s_branch KG_after")
    a.label("KG_loop")
    a.flush_hist()
    _a = a
    if ENV("XKW", 0) or ENV("XKM", 0) or ENV("XKR", 0):
        class Filt:
            def __call__(self, t):
                if ENV("XKW", 0) and t.startswith("ds_write"): return
                if ENV("XKR", 0) and t.startswith("ds_read"): return
                if ENV("XKM", 0) and t.startswith("v_mfma"): return
                _a(t)
            def __getattr__(self, n): return getattr(_a, n)
        a = Filt()
    p0 = P[0]
    for i in range(4): a(f"v_lshlrev_b32 v{p0[i]}, 16, v{p0[i]}")
    a(f"v_lshlrev_b32 v{V}, 16, v{p0[4]}")
    a(f"v_lshlrev_b32 v{V+1}, 16, v{p0[5]}")
    a(f"v_mul_f32 v{p0[0]}, v{vdt}, v{p0[0]}")
    a(f"v_mul_f32 v{p0[1]}, v{vdt}, v{p0[1]}")
    a(f"v_mul_f32 v{T2}, v{vdt}, v{p0[2]}")
    a(f"v_mul_f32 v{T2+1}, v{vdt}, v{p0[3]}")
    a(f"v_mul_f32 v{a2b}, {f32(LOG2E)}, v{p0[0]}")
    a(f"v_mul_f32 v{a2b+1}, {f32(1.0/(2*math.pi))}, v{p0[1]}")
    cmul(W, V, T2)
    cexp(l8, 8); cexp(l1, 1); cexp(l256, 256)
    if STAMPS: a("s_memtime s[18:19]")
    a("s_waitcnt lgkmcnt(0)")
    if STAMPS:
        a(f"s_cmp_eq_u32 s{sCnt}, 1")
        a("s_cselect_b32 s82, s18, s82")
        a(f"s_cmp_eq_u32 s{sCnt}, 2")
        a("s_cselect_b32 s84, s18, s84")
    a(f"v_cvt_pk_bf16_f32 v{Qr[0]}, 1.0, v{l8}")
    a(f"v_cvt_pk_bf16_f32 v{Qi[0]}, 0, v{l8+1}")
    cur = l8
    for f in range(2, 32, 2):
        if f // 2 - 1 < 8:
            ks = f // 2 - 1
            a(f"v_mfma_f32_32x32x16_bf16 {v(accK,16)}, {v(FA[ks],4)}, {v(FB[ks],4)}, {v(accK,16)}")
        cmul(E0, cur, l8); cmul(E1, E0, l8); cur = E1
        g, dw = f // 8, (f % 8) // 2
        a(f"v_cvt_pk_bf16_f32 v{Qr[g%2]+dw}, v{E0}, v{E1}")
        a(f"v_cvt_pk_bf16_f32 v{Qi[g%2]+dw}, v{E0+1}, v{E1+1}")
        if dw == 3:
            a(f"ds_write_b128 v{vwr}, {v(Qr[g%2],4)} offset:{16*g}")
            a(f"ds_write_b128 v{vwr}, {v(Qi[g%2],4)} offset:{64+16*g}")
    cmul(E0, W, l1); cpair(0, W, E0)
    cmul(G2, E0, l1); cmul(E0, G2, l1); cpair(1, G2, E0)
    cmul(G4, E0, l1); cmul(E0, G4, l1); cpair(4, G4, E0)
    cmul(G6, E0, l1); cmul(E0, G6, l1); cpair(5, G6, E0)
    cmul(E0, G2, l256); cmul(E1, G6, l256); cpair(3, E0, E1)
    cmul(E0, G4, l256); cmul(E1, E0, l256); cpair(7, E0, E1)
    cmul(E0, E1, l256); cpair(11, E0, E0)
    cur = W
    dwv = {1: 2, 2: 6, 3: 10, 4: 8, 5: 9, 6: 12, 7: 14}
    for j in range(1, 8):
        nx = [E0, E2][j % 2]
        cmul(nx, cur, l256); cmul(E1, nx, l8); cpair(dwv[j], nx, E1); cur = nx
        if j in (1, 2):
            g = j - 1
            a(f"ds_write_b128 v{vwr}, {v(Cr+4*g,4)} offset:{128+16*g}")
            a(f"ds_write_b128 v{vwr}, {v(Ci+4*g,4)} offset:{192+16*g}")
        if j in (5, 7):
            g = {5: 2, 7: 3}[j]
            a(f"ds_write_b128 v{vwr}, {v(Cr+4*g,4)} offset:{128+16*g}")
            a(f"ds_write_b128 v{vwr}, {v(Ci+4*g,4)} offset:{192+16*g}")
    for ks in range(8):
        o = (16 * (ks >> 1) + 2 * (ks & 1)) * KG_S
        a(f"ds_read_b64_tr_b16 {v(FA[ks],2)}, v{vrd} offset:{o+128}")
        a(f"ds_read_b64_tr_b16 {v(FA[ks]+2,2)}, v{vrd} offset:{o+192}")
        a(f"ds_read_b64_tr_b16 {v(FB[ks],2)}, v{vrd} offset:{o}")
        a(f"ds_read_b64_tr_b16 {v(FB[ks]+2,2)}, v{vrd} offset:{o+64}")
    for i in range(6):
        a(f"v_mov_b32 v{P[0][i]}, v{P[1][i]}")
        a(f"v_mov_b32 v{P[1][i]}, v{P[2][i]}")
    a(f"s_cmp_eq_u32 s{sCnt}, 0")
    a(f"s_cselect_b32 s{sT}, 0, -1")
    for i in range(16): a(f"v_and_b32 v{accK+i}, s{sT}, v{accK+i}")
    if STAMPS and 0:
        a("s_memtime s[18:19]")
        a("s_waitcnt lgkmcnt(0)")
        a(f"s_cmp_eq_u32 s{sCnt}, 0")
        a("s_cselect_b32 s82, s18, s82")
        a(f"s_cmp_eq_u32 s{sCnt}, 1")
        a("s_cselect_b32 s84, s18, s84")
    a(f"s_add_u32 s{sCnt}, s{sCnt}, 1")
    a(f"s_cmp_lt_u32 s{sCnt}, 3")
    a("s_cbranch_scc1 KG_loop")
    a = _a
    a.label("KG_after")
    stamp(a, 2)
    a(f"buffer_load_dword v{vtok}, v{vzero}, s[{sDBG}:{sDBG+3}], 0 offen sc1")
    vJa = P[0][0]; vJb = P[0][1]; u0 = P[0][2]; u1 = P[0][3]
    a(f"v_and_b32 v{t0}, 31, v{lane}")
    a(f"v_lshlrev_b32 v{t0}, 4, v{t0}")
    a(f"v_lshrrev_b32 v{t1}, 5, v{lane}")
    a(f"v_lshl_add_u32 v{t2}, v{t1}, 9, v{t0}")
    a(f"s_add_u32 s{sT}, s{sBase}, 1008")
    a(f"v_sub_u32 v{vJa}, s{sT}, v{t2}")
    a(f"v_lshlrev_b32 v{t2}, 10, v{t1}")
    a(f"v_sub_u32 v{t2}, v{t2}, v{t0}")
    a(f"s_add_u32 s{sT}, s{sBase}, 496")
    a(f"v_add_u32 v{vJb}, s{sT}, v{t2}")
    Z = Qr[0]
    for i in range(4): a(f"v_mov_b32 v{Z+i}, 0")
    a(f"v_lshrrev_b32 v{u0}, 2, v{lane}")
    a(f"v_mul_u32_u24 v{u0}, {CV_S}, v{u0}")
    a(f"v_and_b32 v{u1}, 3, v{lane}")
    a(f"v_lshl_add_u32 v{u0}, v{u1}, 4, v{u0}")
    a(f"v_add_u32 v{u0}, s{sBase}, v{u0}")
    a("s_mov_b32 s18, 0xaaaaaaaa"); a("s_mov_b32 s19, 0xaaaaaaaa")
    a("s_waitcnt lgkmcnt(0)")
    mfmas()
    a("s_mov_b64 exec, 0xffff")
    a(f"ds_write_b128 v{u0}, {v(Z,4)} offset:4096")
    a("s_mov_b64 exec, -1")
    O = [Cr, Cr + 8, Ci, Ci + 8]
    ac = lambda i: accK + i
    def cv(d, lo_, hi_): a(f"v_cvt_pk_bf16_f32 v{d}, v{lo_}, v{hi_}")
    def seg3(o, e0, e1):
        a(f"v_cndmask_b32 v{t0}, v{e0}, v{e1}, s[18:19]")
        cv(o, e1, e1); cv(o + 1, e1, t0); cv(o + 2, e0, e0); cv(o + 3, e0, e0)
    def seg2(o, e0, e1, e2):
        cv(o, e2, e2); cv(o + 1, e1, e1); cv(o + 2, e1, e0); cv(o + 3, e0, e0)
    seg3(O[3], ac(12), ac(13))
    a(f"v_lshlrev_b32 v{vdk[0]}, 16, v{vdk[0]}")
    a("s_mov_b64 exec, 1")
    a(f"v_add_f32 v{ac(0)}, v{ac(0)}, v{vdk[0]}")
    a("s_mov_b32 exec_lo, -1")
    for m in range(4): cv(O[0] + m, ac(7 - 2*m), ac(6 - 2*m))
    seg3(O[1], ac(8), ac(9)); seg3(O[2], ac(10), ac(11))
    a("s_mov_b32 exec_hi, -1")
    a("s_mov_b32 exec_lo, 0")
    cv(O[0], ac(1), ac(3)); cv(O[0] + 1, ac(6), ac(6)); cv(O[0] + 2, ac(6), ac(2)); cv(O[0] + 3, ac(0), ac(0))
    seg2(O[1], ac(4), ac(7), ac(5)); seg2(O[2], ac(8), ac(10), ac(9))
    a("s_mov_b32 exec_lo, -1")
    adr = [(vJa, 3072), (vJb, 1536), (vJb, 1024), (vJa, 0)]
    for p in range(4):
        a(f"ds_write_b128 v{adr[p][0]}, {v(O[p],4)} offset:{adr[p][1]}")
    for p in range(4):
        a(f"ds_read_b64 {v(O[p]+4,2)}, v{adr[p][0]} offset:{adr[p][1]+16}")
    stamp(a, 11)
    a("s_waitcnt vmcnt(0)")
    check_token(a, vtok, vzero)
    a("s_waitcnt lgkmcnt(0)")
    for p in range(4):
        Kt = [FA[(3*p + c) % 8] for c in range(3)]
        kin = O[p]
        for k in range(4): a(f"v_alignbyte_b32 v{Kt[0]+k}, v{kin+k+1}, v{kin+k}, 2")
        for k in range(4): a(f"v_mov_b32 v{Kt[1]+k}, v{kin+k+1}")
        for k in range(4): a(f"v_alignbyte_b32 v{Kt[2]+k}, v{kin+k+2}, v{kin+k+1}, 2")
        for c in range(3): a(f"ds_write_b128 v{adr[p][0]}, {v(Kt[c],4)} offset:{adr[p][1] + (c+1)*CV_S}")
    a("s_branch S_join")
    hi = R.hi

    a.label("S_w2t"); a.flush_hist()
    toks = {}
    a("s_waitcnt lgkmcnt(0)")
    a("s_sleep 64")
    a(f"buffer_load_dword v{vtok}, v{vzero}, s[{sDBG}:{sDBG+3}], 0 offen sc1")
    a("s_waitcnt vmcnt(0)")
    check_token(a, vtok, vzero)
    a("s_branch S_join")

    a.label("S_ln"); a.flush_hist()
    R.reset(base)
    voff = R(); vlw = R(); vtr = R()
    Xr = [R(4, 4) for _ in range(10)]
    U = [R(2, 2) for _ in range(40)]
    sm = R(2, 2); mb = R(2, 2); rs = R(2, 2); T = [R(2, 2) for _ in range(4)]; gr = R(2, 2)
    ones = R()
    O = [R(4, 4) for _ in range(4)]
    a(f"s_load_dwordx2 s[{sX_}:{sX_+1}], s[0:1], 0")
    a("s_memrealtime s[18:19]")
    srd(a, sX_, L * D * 2)
    a(f"v_lshrrev_b32 v{t0}, 3, v{lane}")
    a(f"v_and_b32 v{t1}, 7, v{lane}")
    a(f"v_lshlrev_b32 v{t1}, 4, v{t1}")
    a(f"v_mul_u32_u24 v{voff}, 1280, v{t0}")
    a(f"v_add_u32 v{voff}, v{voff}, v{t1}")
    a(f"v_mul_u32_u24 v{vlw}, {LN_S}, v{t0}")
    a(f"v_add_u32 v{vlw}, v{vlw}, v{t1}")
    a(f"v_add_u32 v{vlw}, {LN_OFF}, v{vlw}")
    a(f"s_lshl_b32 s{sT3}, s{sXc}, 5")
    a(f"s_add_u32 s{sT3}, s{sT3}, s{sA}")
    a(f"s_mul_i32 s{sT}, s{sT3}, {8*1280}")
    a("s_waitcnt lgkmcnt(0)")
    a(f"s_cmp_ge_u32 s2, 8")
    a("s_cbranch_scc1 S_ln_nt")
    a("s_or_b32 s18, s18, 1")
    a(f"v_mov_b32 v{gr}, s18")
    a(f"v_mov_b32 v{gr+1}, 0")
    a("s_mov_b64 exec, 1")
    a(f"buffer_atomic_cmpswap {v(gr,2)}, v{vzero}, s[{sDBG}:{sDBG+3}], 0 offen"); a.vm -= 1
    a("s_mov_b64 exec, -1")
    a.label("S_ln_nt")
    for i in range(10):
        a(f"buffer_load_dwordx4 {v(Xr[i],4)}, v{voff}, s[{sX_}:{sX_+3}], s{sT} offen offset:{128*i}")
    a(f"v_mov_b32 v{ones}, 0x3f803f80")
    a(f"v_mov_b32 v{sm}, 0")
    a("s_waitcnt vmcnt(0)")
    stamp(a, 1)
    a(f"buffer_load_dword v{vtok}, v{vzero}, s[{sDBG}:{sDBG+3}], 0 offen sc1")
    for i in range(40):
        a(f"v_dot2_f32_bf16 v{sm}, v{Xr[i//4] + i%4}, v{ones}, v{sm}")
    def red8(r_):
        a(f"v_add_f32_dpp v{r_}, v{r_}, v{r_} quad_perm:[1,0,3,2] row_mask:0xf bank_mask:0xf")
        a(f"v_add_f32_dpp v{r_}, v{r_}, v{r_} quad_perm:[2,3,0,1] row_mask:0xf bank_mask:0xf")
        a(f"v_add_f32_dpp v{r_}, v{r_}, v{r_} row_half_mirror row_mask:0xf bank_mask:0xf")
    for i in range(40):
        x = Xr[i//4] + i % 4
        a(f"v_lshlrev_b32 v{U[i]}, 16, v{x}")
        a(f"v_and_b32 v{U[i]+1}, 0xffff0000, v{x}")
    red8(sm)
    a(f"v_mul_f32 v{sm}, {f32(1.0/D)}, v{sm}")
    bf16r(a, mb, sm)
    a(f"v_mov_b32 v{rs}, 0"); a(f"v_mov_b32 v{rs+1}, 0")
    for i in range(40):
        if ENV("LPK", 1):
            a(f"v_pk_add_f32 {v(U[i],2)}, {v(U[i],2)}, {v(mb,2)} op_sel_hi:[1,0] neg_lo:[0,1] neg_hi:[0,1]")
            a(f"v_pk_fma_f32 {v(rs,2)}, {v(U[i],2)}, {v(U[i],2)}, {v(rs,2)}")
        else:
            for h in range(2):
                a(f"v_sub_f32 v{U[i]+h}, v{U[i]+h}, v{mb}")
                a(f"v_fmac_f32 v{rs+h}, v{U[i]+h}, v{U[i]+h}")
    a(f"v_add_f32 v{rs}, v{rs}, v{rs+1}")
    red8(rs)
    a(f"v_sub_f32 v{t0}, v{sm}, v{mb}")
    a(f"v_mul_f32 v{t0}, v{t0}, v{t0}")
    a(f"v_mul_f32 v{rs}, {f32(1.0/D)}, v{rs}")
    a(f"v_sub_f32 v{rs}, v{rs}, v{t0}")
    a(f"v_max_f32 v{rs}, 0, v{rs}")
    bf16r(a, rs, rs)
    a(f"v_add_f32 v{rs}, {f32(1e-5)}, v{rs}")
    bf16r(a, rs, rs)
    a(f"v_sqrt_f32 v{rs}, v{rs}")
    a(f"v_cvt_pk_bf16_f32 v{gr}, v{mb}, v{rs}")
    a(f"v_and_b32 v{rs}, 0xffff0000, v{gr}")
    a(f"v_rcp_f32 v{rs}, v{rs}")
    for i in range(40):
        x = Xr[i//4] + i % 4
        if ENV("LPK", 1): a(f"v_pk_mul_f32 {v(U[i],2)}, {v(U[i],2)}, {v(rs,2)} op_sel_hi:[1,0]")
        else:
            for h in range(2): a(f"v_mul_f32 v{U[i]+h}, v{U[i]+h}, v{rs}")
        a(f"v_cvt_pk_bf16_f32 v{x}, v{U[i]}, v{U[i]+1}")
        if i % 4 == 3:
            a(f"ds_write_b128 v{vlw}, {v(Xr[i//4],4)} offset:{128*(i//4)}")
    a(f"v_bfe_u32 v{t1}, v{lane}, 2, 2")
    a(f"v_mul_u32_u24 v{t1}, {LN_S}, v{t1}")
    a(f"v_lshrrev_b32 v{t0}, 4, v{lane}")
    a(f"v_lshl_add_u32 v{t1}, v{t0}, 5, v{t1}")
    a(f"v_and_b32 v{t2}, 3, v{lane}")
    a(f"v_lshl_add_u32 v{t1}, v{t2}, 3, v{t1}")
    a(f"v_add_u32 v{vtr}, {LN_OFF}, v{t1}")
    a(f"s_mul_i32 s{sT}, s{sT3}, 10240")
    def rd(i):
        o = O[i % 4]
        for e in range(2):
            a(f"ds_read_b64_tr_b16 {v(o+2*e,2)}, v{vtr} offset:{128*i + 4*e*LN_S}")
        toks[i] = a.ltok()
    for i in range(3): rd(i)
    for i in range(10):
        if i + 3 < 10: rd(i + 3)
        a.wait(lg=toks[i])
        a(f"buffer_store_dwordx4 {v(O[i%4],4)}, v{v16}, s[{sWS}:{sWS+3}], s{sT} offen sc1")
        a(f"s_add_u32 s{sT}, s{sT}, 1024")
    a("s_waitcnt vmcnt(10)")
    check_token(a, vtok, vzero)
    a(f"v_mov_b32 v{gr+1}, s{sTok}")
    a(f"s_lshl_b32 s{sT}, s{sT3}, 7")
    a(f"s_add_u32 s{sT2}, s{sT}, {WS_STAT}")
    a("s_mov_b32 exec_lo, 0x01010101"); a("s_mov_b32 exec_hi, 0x01010101")
    a(f"buffer_store_dwordx2 {v(gr,2)}, v{lane}, s[{sWS}:{sWS+3}], s{sT2} offen sc1")
    a(f"s_add_u32 s{sT}, s{sT}, {WS_FLN}")
    a("s_waitcnt vmcnt(0)")
    a("s_mov_b64 exec, 1")
    a(f"buffer_store_dword v{gr+1}, v{vzero}, s[{sWS}:{sWS+3}], s{sT} offen sc1")
    a("s_mov_b64 exec, -1")
    stamp(a, 2)
    if ONLY: a("s_branch S_end")
    a(f"v_mul_u32_u24 v{t0}, 10240, v{lane}")
    a(f"v_lshlrev_b32 v{t1}, 7, v{lane}")
    a(f"s_cmp_eq_u32 s{sHeavy}, 0")
    a(f"s_cselect_b32 s{sCnt}, s{sD[0]}, s{sD[2]}")
    a(f"s_lshl_b32 s{sT3}, s2, 7")
    a(f"s_add_u32 s{sT3}, s{sT3}, {WS_FPACE}")
    a(f"s_mov_b32 s{sSpin}, 0")
    a("s_mov_b64 exec, 1")
    a.label("S_pace")
    a(f"s_sleep {ENV('PSLEEP', 8)}")
    a(f"buffer_load_dword v{t2}, v{vzero}, s[{sWS}:{sWS+3}], s{sT3} offen sc1")
    a("s_waitcnt vmcnt(0)")
    a(f"v_readfirstlane_b32 s{sT}, v{t2}")
    a(f"s_cmp_eq_u32 s{sT}, s{sTok}")
    a("s_cbranch_scc1 S_paced")
    a(f"s_add_u32 s{sSpin}, s{sSpin}, 1")
    a(f"s_cmp_lt_u32 s{sSpin}, {ENV('PMAX', 24)}")
    a("s_cbranch_scc1 S_pace")
    a.label("S_paced")
    a("s_mov_b64 exec, -1")
    stamp(a, 10)
    for g in range(4):
        a(f"s_mov_b32 s{sT3}, {WS_FLN + 8192*g}")
        a(f"buffer_load_dword v{O[0]+g}, v{t1}, s[{sWS}:{sWS+3}], s{sT3} offen sc1")
    a("s_waitcnt vmcnt(0)")
    for g in range(4):
        a(f"s_mov_b32 s{sT3}, {WS_FLN + 8192*g}")
        ldf = lambda: a(f"buffer_load_dword v{O[0]+g}, v{t1}, s[{sWS}:{sWS+3}], s{sT3} offen sc1")
        check_flags(a, [O[0] + g], t1, ldf, sleep=ENV("LNSLEEP", 6))
    stamp(a, 9)
    if ENV("UPF", 0):
        a(f"v_lshrrev_b32 v{t2}, 3, v{lane}")
        a(f"v_mul_u32_u24 v{t2}, 10240, v{t2}")
        a(f"v_and_b32 v{t3}, 7, v{lane}")
        a(f"v_lshl_add_u32 v{t2}, v{t3}, 7, v{t2}")
        a(f"s_mul_i32 s{sT}, s{sA}, {8*10240}")
        a(f"s_lshl_b32 s{sT2}, s{sXc}, 10")
        a(f"s_add_u32 s{sT2}, s{sT2}, s{sT}")
        a(f"buffer_load_dword v{O[1]}, v{t2}, s[{sWS}:{sWS+3}], s{sT2} offen sc1")
        a(f"s_lshl_b32 s{sT2}, s{sXc}, 8")
        a(f"s_add_u32 s{sT2}, s{sT2}, s{sT}")
        a(f"s_add_u32 s{sT2}, s{sT2}, 8192")
        a("s_mov_b32 exec_lo, 0x03030303"); a("s_mov_b32 exec_hi, 0x03030303")
        a(f"buffer_load_dword v{O[1]+1}, v{t2}, s[{sWS}:{sWS+3}], s{sT2} offen sc1")
        a("s_mov_b64 exec, -1")
        a("s_waitcnt vmcnt(0)")
    Uq_ = [U[0] + 4 * i for i in range(12)]
    assert U[0] % 4 == 0
    a(f"v_lshrrev_b32 v{t1}, 1, v{lane}")
    a(f"v_and_b32 v{t3}, 1, v{lane}")
    a(f"v_mul_u32_u24 v{t2}, 10240, v{t1}")
    a(f"v_lshl_add_u32 v{t2}, v{t3}, 4, v{t2}")
    a(f"v_mul_u32_u24 v{t3}, 4608, v{t3}")
    a(f"v_lshl_add_u32 v{t3}, v{t1}, 4, v{t3}")
    a(f"s_lshl_b32 s{sT}, s{sD[0]}, 4")
    for g in range(8):
        if g: a(f"s_add_u32 s{sT}, s{sT}, {32*10240}")
        a(f"buffer_load_dwordx4 {v(Uq_[g],4)}, v{t2}, s[{sWS}:{sWS+3}], s{sT} offen sc1")
    a(f"s_cmp_eq_u32 s{sHeavy}, 0")
    a("s_cbranch_scc1 S_g2")
    a(f"s_lshl_b32 s{sT}, s{sD[2]}, 4")
    for g in range(4):
        if g: a(f"s_add_u32 s{sT}, s{sT}, {64*10240}")
        a(f"buffer_load_dwordx4 {v(Uq_[8+g],4)}, v{t0}, s[{sWS}:{sWS+3}], s{sT} offen sc1")
    a("s_waitcnt vmcnt(0)")
    for g in range(4):
        a(f"ds_write_b128 v{v16}, {v(Uq_[8+g],4)} offset:{CV_U[2] + 1024*g}")
    a.label("S_g2")
    for g in range(8):
        a(f"s_waitcnt vmcnt({7-g})")
        a(f"ds_write_b128 v{t3}, {v(Uq_[g],4)} offset:{CV_U[0] + 512*g}")
    stamp(a, 4)
    hi = max(hi, R.hi)

    a.label("S_join"); a.flush_hist()
    if ONLY: a("s_branch S_end")
    if ENV("SPRIO", 0): a(f"s_setprio {ENV('SPRIO', 0)}")
    stamp(a, 3)
    R.reset(base)
    acc = [R(4, 4) for _ in range(8)]
    FA = [[R(4, 4) for _ in range(8)] for _ in range(2)]
    FB = [[R(4, 4) for _ in range(8)] for _ in range(2)]
    vA = R(); vBq = R(); vA0 = R(); vB0 = R(); vrw = R(); vrr = R(); vfl = R(); vfa = R(); vtk = R()
    a(f"s_and_b32 s{sPar}, s{sWave}, 1")
    Z = FB[0][3]
    for i in range(4): a(f"v_mov_b32 v{Z+i}, 0")
    a(f"s_min_u32 s{sT}, s{sWave}, 2")
    a(f"s_mul_i32 s{sT}, s{sT}, 4608")
    a(f"v_add_u32 v{t2}, s{sT}, v{v16}")
    a("s_mov_b32 exec_hi, 0")
    a(f"ds_write_b128 v{t2}, {v(Z,4)} offset:{CV_U[0]-512}")
    a("s_mov_b32 exec_hi, -1")
    a(f"v_and_b32 v{t0}, 15, v{lane}")
    a(f"v_sub_u32 v{t2}, 15, v{t0}")
    a(f"v_and_b32 v{t3}, 3, v{t2}")
    a(f"v_sub_u32 v{t2}, v{t2}, v{t3}")
    a(f"v_mul_u32_u24 v{t3}, {CV_S}, v{t3}")
    a(f"v_lshl_add_u32 v{t3}, v{t2}, 1, v{t3}")
    a(f"v_lshrrev_b32 v{t2}, 4, v{lane}")
    a(f"v_lshl_add_u32 v{vA0}, v{t2}, 4, v{t3}")
    a(f"v_lshlrev_b32 v{t3}, 4, v{t2}")
    a(f"v_lshl_add_u32 v{vB0}, v{t0}, 5, v{t3}")
    a(f"v_lshrrev_b32 v{t3}, 1, v{t2}")
    a(f"v_lshlrev_b32 v{t3}, 3, v{t3}")
    a(f"v_xor_b32 v{t3}, v{t3}, v{t0}")
    a(f"v_lshlrev_b32 v{t3}, 4, v{t3}")
    a(f"v_lshl_add_u32 v{t3}, v{t2}, 8, v{t3}")
    a(f"s_lshl_b32 s{sT}, s{sWave}, 13")
    a(f"v_add_u32 v{vrw}, s{sT}, v{t3}")
    a(f"v_bfe_u32 v{t0}, v{lane}, 1, 4")
    a(f"v_and_b32 v{t2}, 1, v{lane}")
    a(f"v_lshlrev_b32 v{t3}, 3, v{t2}")
    a(f"v_xor_b32 v{t0}, v{t0}, v{t3}")
    a(f"v_lshlrev_b32 v{t0}, 4, v{t0}")
    a(f"v_lshl_add_u32 v{t0}, v{t2}, 9, v{t0}")
    a(f"v_lshrrev_b32 v{t2}, 5, v{lane}")
    a(f"v_lshl_add_u32 v{vrr}, v{t2}, 10, v{t0}")
    a(f"v_mov_b32 v{vtk}, s{sTok}")
    a(f"s_mul_i32 s{sT}, s{sSlot}, {CH_REG}")
    a(f"s_lshl_b32 s{sT2}, s{sPar}, 8")
    a(f"s_sub_u32 s{sT}, s{sT}, s{sT2}")
    a(f"s_add_u32 s{sT}, s{sT}, {32*14}")
    a(f"v_add_u32 v{vA}, s{sT}, v{vA0}")
    a(f"s_mul_i32 s{sT}, s{sSlot}, 4608")
    a(f"s_sub_u32 s{sT}, s{sT}, s{sT2}")
    a(f"s_add_u32 s{sT}, s{sT}, {CV_U[0] - 512 + 32*15}")
    a(f"v_add_u32 v{vBq}, s{sT}, v{vB0}")
    sDa, sDb, sJa, sJb = 20, 21, 22, 23
    a(f"s_lshl_b32 s{sT3}, s{sWave}, 7")
    a(f"s_sub_u32 s{sJb}, s{sT}, 192")
    a(f"s_sub_u32 s{sJb}, s{sJb}, {CV_U[2] - 512 + 32*15}")
    a(f"s_add_u32 s{sJb}, s{sJb}, s{sT3}")
    a(f"s_mul_i32 s{sJa}, s{sSlot}, {CH_REG}")
    a(f"s_sub_u32 s{sJa}, s{sJa}, s{sT2}")
    a(f"s_sub_u32 s{sJa}, s{sJa}, {192 + 2*CH_REG}")
    a(f"s_add_u32 s{sJa}, s{sJa}, s{sT3}")
    acc1 = [R(4, 4) for _ in range(8)]
    for c in range(8):
        for i in range(4):
            a(f"v_mov_b32 v{acc[c]+i}, 0"); a(f"v_mov_b32 v{acc1[c]+i}, 0")
    a(f"s_mov_b32 s{sCnt}, 0")
    a(f"s_add_u32 s{sRound}, s{sHeavy}, 2")
    a("s_waitcnt vmcnt(0) lgkmcnt(0)")
    a("s_barrier")
    stamp(a, 5)

    def rdlist(st, da="64", db="64"):
        rd_ = []
        for j in range(8):
            rd_.append(f"ds_read_b128 {v(FB[st][j],4)}, v{vBq} offset:{512*j}")
            rd_.append(f"ds_read_b64 {v(FA[st][j],2)}, v{vA} offset:{512*(7-j)}")
            rd_.append(f"ds_read_b64 {v(FA[st][j]+2,2)}, v{vA} offset:{512*(7-j)+8}")
        rd_.append(f"v_subrev_u32 v{vA}, {da}, v{vA}")
        rd_.append(f"v_subrev_u32 v{vBq}, {db}, v{vBq}")
        return rd_
    def group(st, nxt, da="64", db="64"):
        pairs = sorted([(c, j) for c in range(8) for j in range(c + 1)], key=lambda cj: (max(cj[1], cj[0] - cj[1]), cj[0]))
        rd_ = rdlist(nxt, da, db)
        for i, (c, j) in enumerate(pairs):
            a(f"v_mfma_f32_16x16x32_bf16 {v(acc[c],4)}, {v(FA[st][j],4)}, {v(FB[st][c-j],4)}, {v(acc[c],4)}")
            if i < len(rd_): a(rd_[i])
    for x in rdlist(0): a(x)
    a.label("CV_loop")
    a(f"s_cmp_eq_u32 s{sCnt}, 1")
    a(f"s_cselect_b32 s{sDa}, s{sJa}, 64")
    a(f"s_cselect_b32 s{sDb}, s{sJb}, 64")
    a("s_waitcnt lgkmcnt(0)")
    group(0, 1, f"s{sDa}", f"s{sDb}")
    a("s_waitcnt lgkmcnt(0)")
    group(1, 0)
    a(f"s_add_u32 s{sCnt}, s{sCnt}, 1")
    a(f"s_cmp_eq_u32 s{sCnt}, 1")
    a("s_cbranch_scc1 CV_loop")
    a(f"s_cmp_eq_u32 s{sCnt}, 3")
    a("s_cbranch_scc1 CV_done")
    for c in range(8):
        for i in range(4): a(f"v_swap_b32 v{acc[c]+i}, v{acc1[c]+i}")
    a(f"s_cmp_lg_u32 s{sHeavy}, 0")
    a("s_nop 0")
    a("s_cbranch_scc1 CV_loop")
    a.label("CV_done")
    a("s_nop 7")
    a("s_waitcnt lgkmcnt(0)")
    a("s_barrier")
    stamp(a, 6)
    for c in range(8):
        a(f"ds_write_b128 v{vrw}, {v(acc1[c],4)} offset:{1024*c}")
    a(f"s_cmp_eq_u32 s{sHeavy}, 0")
    a("s_cbranch_scc1 CV_w1")
    for c in range(8):
        a(f"ds_write_b128 v{vrw}, {v(acc[c],4)} offset:{32768 + 1024*c}")
    a.label("CV_w1")
    a(f"s_lshl_b32 s{sT}, s{sSlot}, 14")
    a(f"s_lshl_b32 s{sT2}, s{sPar}, 12")
    a(f"s_add_u32 s{sT}, s{sT}, s{sT2}")
    a(f"v_add_u32 v{t0}, s{sT}, v{vrr}")
    a(f"s_lshl_b32 s{sT}, s{sWave}, 11")
    a(f"v_add_u32 v{t1}, s{sT}, v{vrr}")
    a(f"s_add_u32 s{sT}, s{sD[0]}, s{sSlot}")
    a(f"s_lshl_b32 s{sT3}, s{sT}, 12")
    a(f"s_lshl_b32 s{sT2}, s{sPar}, 11")
    a(f"s_add_u32 s{sT3}, s{sT3}, s{sT2}")
    a(f"s_add_u32 s{sT3}, s{sT3}, {WS_ST}")
    a(f"s_lshl_b32 s{sT}, s{sT}, 7")
    a(f"s_lshl_b32 s{sT2}, s{sPar}, 3")
    a(f"s_add_u32 s{sT}, s{sT}, s{sT2}")
    a(f"s_add_u32 s{sJa}, s{sT}, {WS_FST}")
    a(f"v_lshlrev_b32 v{t2}, 2, v{lane}")
    a("s_waitcnt lgkmcnt(0)")
    a("s_barrier")
    stamp(a, 7)
    Rd = FA[1]; Re = FA[0]
    for b in range(2):
        for p in range(2):
            for e in range(2):
                a(f"ds_read_b128 {v(Rd[(b*2+p)*2+e],4)}, v{t0} offset:{8192*p + 2048*b + 256*e}")
    for p in range(4):
        for e in range(2):
            a(f"ds_read_b128 {v(Re[p*2+e],4)}, v{t1} offset:{32768 + 8192*p + 256*e}")
    def finish(Rr, bs, npart, o):
        for p in range(1, npart):
            for e in range(2):
                for z in range(4):
                    a(f"v_add_f32 v{Rr[bs+e]+z}, v{Rr[bs+e]+z}, v{Rr[bs+2*p+e]+z}")
        for m in range(4):
            y = Rr[bs + m // 2] + 2 * (m % 2)
            a(f"v_cvt_pk_bf16_f32 v{o+m}, v{y}, v{y+1}")
    for b in range(2):
        a(f"s_waitcnt lgkmcnt({12 - 4*b})")
        finish(Rd, 4 * b, 2, FB[1][b])
        a(f"buffer_store_dwordx4 {v(FB[1][b],4)}, v{v16}, s[{sWS}:{sWS+3}], s{sT3} offen offset:{1024*b} sc1")
    a(f"s_cmp_eq_u32 s{sHeavy}, 0")
    a("s_cbranch_scc1 CV_f1")
    a(f"s_lshl_b32 s{sT3}, s{sWave}, 10")
    a(f"s_lshl_b32 s{sT}, s{sD[2]}, 12")
    a(f"s_add_u32 s{sT2}, s{sT3}, s{sT}")
    a(f"s_add_u32 s{sT2}, s{sT2}, {WS_ST}")
    a("s_waitcnt lgkmcnt(0)")
    finish(Re, 0, 4, FB[1][2])
    a(f"buffer_store_dwordx4 {v(FB[1][2],4)}, v{v16}, s[{sWS}:{sWS+3}], s{sT2} offen sc1")
    a(f"s_lshl_b32 s{sT}, s{sD[2]}, 7")
    a(f"s_lshl_b32 s{sT2}, s{sWave}, 2")
    a(f"s_add_u32 s{sT}, s{sT}, s{sT2}")
    a(f"s_add_u32 s{sT}, s{sT}, {WS_FST}")
    a("s_waitcnt vmcnt(0)")
    a("s_mov_b64 exec, 1")
    a(f"buffer_store_dword v{vtk}, v{vzero}, s[{sWS}:{sWS+3}], s{sT} offen sc1")
    a("s_branch CV_f2")
    a.label("CV_f1")
    a("s_waitcnt vmcnt(0)")
    a.label("CV_f2")
    a("s_mov_b64 exec, 3")
    a(f"buffer_store_dword v{vtk}, v{t2}, s[{sWS}:{sWS+3}], s{sJa} offen sc1")
    a.label("S_end")
    stamp_end(a, sWave)
    return max(hi, R.hi)

W_SLOT = 12288
X_OFF = 3 * W_SLOT
X_WAVE = 11264
NXU = 5
def g_role(a):
    sX, sW1, sB1, sOUT, sW2 = 20, 24, 28, 32, 52
    sRB, sCB, sTB, sJD, sId = 36, 37, 38, 39, 3
    sP = [40, 41, 42]
    sWoff, sXoff, sM0w, sM0x, sOA, sOB = 43, 44, 45, 46, 47, 48
    R = Alloc(1)
    lane = R(); t0 = R(); t1 = R(); t2 = R(); t3 = R(); vzero = R(); vtok = R(); v16 = R(); vfa = R()
    vfl = R(); vsa = R()
    NWR = 25
    NWI = 18
    WR = [R(4, 4) for _ in range(NWR)]
    base2 = pool = R.mark()
    R.reset(184)
    acc = [[R(4, 4) for ct in range(2)] for rt in range(6)]
    cs = [R(4, 4) for _ in range(2)]
    st = [R(2, 2) for _ in range(2)]
    b1p = [R(2, 2) for _ in range(6)]
    R.reset(WR[NWI]); R.limit = 184
    A = [[R(4, 4) for rt in range(6)] for _ in range(2)]
    X = [[[R(4, 4) for ct in range(2)] for e in range(2)] for _ in range(2)]
    ones = R(4, 4)
    vE = [R() for _ in range(3)]; vO = [R() for _ in range(3)]
    vW = [R() for _ in range(3)]; vXs = [R(), R()]; vXr = [R(), R()]
    vpf = R(); vpd = R()
    stamp_begin(a)
    if ENV("GPRIO", 0): a(f"s_setprio {ENV('GPRIO', 0)}")
    a(f"s_load_dwordx2 s[{sX}:{sX+1}], s[0:1], 0")
    a(f"s_load_dwordx2 s[{sW1}:{sW1+1}], s[0:1], 80")
    a(f"s_load_dwordx2 s[{sW2}:{sW2+1}], s[0:1], 96")
    a(f"v_lshrrev_b32 v{t0}, 6, v0")
    a(f"v_and_b32 v{lane}, 63, v0")
    a(f"v_readfirstlane_b32 s{sWave}, v{t0}")
    a(f"s_sub_u32 s{sId}, s2, 256")
    if ENV("CPF", 1):
        a("s_getpc_b64 s[18:19]")
        a("s_and_b32 s18, s18, 0xffffff00")
        a(f"s_lshr_b32 s{sT3}, s{sId}, 3")
        a(f"s_lshl_b32 s{sT3}, s{sT3}, 10")
        a(f"s_add_u32 s18, s18, s{sT3}")
        a(f"s_addc_u32 s19, s19, 0")
        a(f"v_lshrrev_b32 v{A[0][0]}, 5, v0")
        a(f"v_lshlrev_b32 v{A[0][0]}, 7, v{A[0][0]}")
        a(f"v_mov_b32 v{A[0][0]+1}, s19")
        a(f"v_add_co_u32 v{A[0][0]}, vcc, s18, v{A[0][0]}")
        a(f"v_addc_co_u32 v{A[0][0]+1}, vcc, 0, v{A[0][0]+1}, vcc")
        a("s_mov_b32 exec_lo, 1"); a("s_mov_b32 exec_hi, 1")
        a(f"global_load_dword v{vpd}, {v(A[0][0],2)}, off")
        a("s_mov_b64 exec, -1")
    srd(a, sX, L * D * 2); srd(a, sW1, D * F * 2)
    pfx = A[1][0]; pfw = A[1][0] + 1
    a(f"s_lshr_b32 s{sT3}, s{sId}, 3")
    a(f"s_lshl_b32 s{sT3}, s{sT3}, 2")
    a(f"s_add_u32 s{sT3}, s{sT3}, s{sWave}")
    a(f"v_mul_u32_u24 v{t1}, 0xaaab, v{lane}")
    a(f"v_lshrrev_b32 v{t1}, 18, v{t1}")
    a(f"v_mul_u32_u24 v{t2}, 6, v{t1}")
    a(f"v_sub_u32 v{t2}, v{lane}, v{t2}")
    a(f"v_mul_u32_u24 v{t1}, {64*3072}, v{t1}")
    a(f"v_lshl_add_u32 v{t1}, v{t2}, 7, v{t1}")
    a(f"s_lshr_b32 s{sT2}, s{sT3}, 1")
    a(f"s_mul_i32 s{sT2}, s{sT2}, 3072")
    a(f"s_and_b32 s{sT}, s{sId}, 1")
    a(f"s_lshl_b32 s{sT}, s{sT}, 1")
    a(f"s_and_b32 s{sRB}, s{sT3}, 1")
    a(f"s_add_u32 s{sT}, s{sT}, s{sRB}")
    a(f"s_mul_i32 s{sT}, s{sT}, 768")
    a(f"s_add_u32 s{sT2}, s{sT2}, s{sT}")
    a(f"v_add_u32 v{pfw}, s{sT2}, v{t1}")
    a(f"v_lshrrev_b32 v{t2}, 2, v{lane}")
    a(f"v_lshlrev_b32 v{t2}, 7, v{t2}")
    a(f"v_and_b32 v{t3}, 3, v{lane}")
    a(f"v_mul_u32_u24 v{t3}, 1280, v{t3}")
    a(f"v_add_u32 v{t2}, v{t2}, v{t3}")
    a(f"s_bfe_u32 s{sT}, s{sId}, 0x20001")
    a(f"s_lshl_b32 s{sT}, s{sT}, 7")
    a(f"s_add_u32 s{sT}, s{sT}, s{sT3}")
    a(f"s_mul_i32 s{sT}, s{sT}, {4*1280}")
    a(f"v_add_u32 v{pfx}, s{sT}, v{t2}")
    a("s_waitcnt lgkmcnt(0)")
    stamp(a, 1)
    def do_pf(c0, c1):
        def mask(lo, hi):
            m = ((1 << hi) - 1) & ~((1 << lo) - 1)
            a(f"s_mov_b32 exec_lo, {hex(m & 0xffffffff)}"); a(f"s_mov_b32 exec_hi, {hex(m >> 32)}")
        mask(4 * c0, 4 * c1)
        a(f"buffer_load_dword v{vpd}, v{pfx}, s[{sX}:{sX+3}], 0 offen")
        mask(6 * c0, 6 * c1)
        a(f"buffer_load_dword v{vpd}, v{pfw}, s[{sW1}:{sW1+3}], 0 offen")
        a("s_mov_b64 exec, -1")
    PFA_ = ENV("PFSPLIT", 3)
    do_pf(0, PFA_)
    srd(a, sW2, F * D * 2)
    a(f"s_mul_i32 s{sT}, s{sT3}, {15*128}")
    a(f"v_lshl_add_u32 v{vpf}, v{lane}, 7, s{sT}")
    def op_pf2(j):
        def f():
            a(f"s_add_u32 s{sT2}, s{sId}, {j}")
            a(f"s_and_b32 s{sT2}, s{sT2}, 7")
            a(f"s_mul_i32 s{sT2}, s{sT2}, {128*15*128}")
            a("s_mov_b64 exec, 0x7fff")
            a(f"buffer_load_dword v{vpd}, v{vpf}, s[{sW2}:{sW2+3}], s{sT2} offen")
            a("s_mov_b64 exec, -1")
        return f
    a(f"s_load_dwordx2 s[{sB1}:{sB1+1}], s[0:1], 88")
    a(f"s_load_dwordx2 s[{sWS}:{sWS+1}], s[0:1], 120")
    a(f"s_load_dwordx2 s[{sDBG}:{sDBG+1}], s[0:1], 112")
    a(f"s_load_dwordx2 s[{sOUT}:{sOUT+1}], s[0:1], 104")
    srd(a, sB1, F * 2); srd(a, sWS, WS_SIZE); srd(a, sDBG, 256); srd(a, sOUT, L * D * 2)
    a(f"s_and_b32 s{sT}, s{sId}, 7")
    a(f"s_lshr_b32 s{sT2}, s{sId}, 3")
    a(f"s_lshr_b32 s{sRB}, s{sT}, 1")
    a(f"s_lshl_b32 s{sTB}, s{sT}, 2")
    a(f"s_lshl_b32 s{sRB}, s{sRB}, 2")
    a(f"s_and_b32 s{sT3}, s{sT2}, 3")
    a(f"s_add_u32 s{sRB}, s{sRB}, s{sT3}")
    a(f"s_add_u32 s{sTB}, s{sTB}, s{sT3}")
    a(f"s_and_b32 s{sT}, s{sT}, 1")
    a(f"s_lshl_b32 s{sCB}, s{sT}, 3")
    a(f"s_lshr_b32 s{sJD}, s{sT2}, 2")
    a(f"s_add_u32 s{sCB}, s{sCB}, s{sJD}")
    a(f"v_mov_b32 v{vzero}, 0")
    a(f"v_lshlrev_b32 v{v16}, 4, v{lane}")
    for i in range(3):
        a(f"v_add_u32 v{t0}, {64*i}, v{lane}")
        a(f"v_mul_u32_u24 v{t1}, 0xaaab, v{t0}")
        a(f"v_lshrrev_b32 v{t1}, 19, v{t1}")
        a(f"v_mul_u32_u24 v{t2}, 12, v{t1}")
        a(f"v_sub_u32 v{t2}, v{t0}, v{t2}")
        a(f"v_lshrrev_b32 v{t3}, 2, v{t1}")
        a(f"v_and_b32 v{t3}, 2, v{t3}")
        a(f"v_xor_b32 v{t2}, v{t2}, v{t3}")
        a(f"v_lshlrev_b32 v{t2}, 4, v{t2}")
        a(f"v_mul_u32_u24 v{t1}, 3072, v{t1}")
        a(f"v_add_u32 v{vW[i]}, v{t1}, v{t2}")
        if i: a(f"v_subrev_u32 v{vW[i]}, {1024*i}, v{vW[i]}")
    a(f"s_mul_i32 s{sWoff}, s{sWave}, {16*3072}")
    a(f"s_mul_i32 s{sT}, s{sCB}, 192")
    a(f"s_add_u32 s{sWoff}, s{sWoff}, s{sT}")
    a(f"s_mul_i32 s{sM0w}, s{sWave}, 3072")
    a(f"v_lshrrev_b32 v{t0}, 3, v{lane}")
    a(f"v_and_b32 v{t1}, 7, v{lane}")
    a(f"v_lshrrev_b32 v{t2}, 1, v{t0}")
    a(f"v_xor_b32 v{t1}, v{t1}, v{t2}")
    a(f"v_mul_u32_u24 v{t0}, 1280, v{t0}")
    a(f"v_lshl_add_u32 v{vXs[0]}, v{t1}, 4, v{t0}")
    a(f"v_xor_b32 v{vXs[1]}, 64, v{vXs[0]}")
    a(f"v_add_u32 v{vXs[1]}, {8*1280 - 1024}, v{vXs[1]}")
    a(f"s_lshl_b32 s{sXoff}, s{sRB}, 7")
    a(f"s_lshl_b32 s{sT}, s{sWave}, 5")
    a(f"s_add_u32 s{sXoff}, s{sXoff}, s{sT}")
    a(f"s_mul_i32 s{sXoff}, s{sXoff}, 1280")
    a(f"s_mul_i32 s{sM0x}, s{sWave}, {X_WAVE}")
    a(f"s_add_u32 s{sM0x}, s{sM0x}, {X_OFF}")

    tokW = {}; tokXu = {}
    def ops_w(c):
        def f0():
            a(f"s_add_u32 m0, s{sM0w}, {(c % 3) * W_SLOT}")
            if c: a(f"s_add_u32 s{sWoff}, s{sWoff}, {64*3072}")
        def fi(i):
            def f():
                a(f"buffer_load_dwordx4 v{vW[i]}, s[{sW1}:{sW1+3}], s{sWoff} offen offset:{1024*i} lds")
                if i == 2: tokW[c] = a.vtok()
            return f
        return [f0] + [fi(i) for i in range(3)]
    def ops_x(u):
        c, ct = u // 2, u % 2
        def f0():
            a(f"s_add_u32 m0, s{sM0x}, {(u % NXU) * 2048}")
            a(f"s_add_u32 s{sT}, s{sXoff}, {ct*16*1280 + c*128}")
        def fi(h):
            def f():
                a(f"buffer_load_dwordx4 v{vXs[h]}, s[{sX}:{sX+3}], s{sT} offen offset:{1024*h} lds")
                if h == 1: tokXu[u] = a.vtok()
            return f
        return [f0, fi(0), fi(1)]
    def do_first():
        for f in ops_w(0) + ops_x(0) + ops_x(1) + ops_w(1) + ops_x(2) + ops_x(3): f()
    do_first()

    a(f"v_lshrrev_b32 v{t0}, 4, v{lane}")
    a(f"v_bfe_u32 v{t1}, v{lane}, 2, 2")
    a(f"v_lshl_add_u32 v{t1}, v{t0}, 3, v{t1}")
    a(f"v_mul_u32_u24 v{t1}, 192, v{t1}")
    a(f"v_and_b32 v{t2}, 3, v{lane}")
    a(f"v_lshl_add_u32 v{t1}, v{t2}, 3, v{t1}")
    a(f"v_and_b32 v{t2}, 1, v{t0}")
    a(f"v_lshlrev_b32 v{t2}, 5, v{t2}")
    a(f"v_sub_u32 v{t3}, v{t1}, v{t2}")
    a(f"v_add_u32 v{t3}, 32, v{t3}")
    a(f"v_add_u32 v{t2}, v{t1}, v{t2}")
    for P in range(3):
        a(f"s_add_u32 s{sP[P]}, s{sWave}, {P}")
        a(f"s_cmp_ge_u32 s{sP[P]}, 3")
        a(f"s_cselect_b32 s{sT}, 3, 0")
        a(f"s_sub_u32 s{sP[P]}, s{sP[P]}, s{sT}")
        a(f"s_lshl_b32 s{sT}, s{sP[P]}, 6")
        a(f"v_add_u32 v{vE[P]}, s{sT}, v{t2}")
        a(f"v_add_u32 v{vO[P]}, s{sT}, v{t3}")
    a(f"v_and_b32 v{t1}, 15, v{lane}")
    a(f"v_lshrrev_b32 v{t2}, 1, v{t1}")
    a(f"v_xor_b32 v{t2}, v{t2}, v{t0}")
    a(f"v_lshlrev_b32 v{t2}, 4, v{t2}")
    a(f"v_lshl_add_u32 v{t2}, v{t1}, 7, v{t2}")
    a(f"v_add_u32 v{vXr[0]}, s{sM0x}, v{t2}")
    a(f"v_xor_b32 v{t2}, 64, v{t2}")
    a(f"v_add_u32 v{vXr[1]}, s{sM0x}, v{t2}")
    a(f"v_lshrrev_b32 v{t2}, 3, v{t1}")
    a(f"v_and_b32 v{t1}, 7, v{t1}")
    a(f"v_lshlrev_b32 v{t1}, 3, v{t1}")
    a(f"v_lshl_add_u32 v{vsa}, v{t2}, 7, v{t1}")
    a(f"s_mul_i32 s{sT}, s{sWave}, 12")
    a(f"s_mul_i32 s{sOA}, s{sT}, {32*1280}")
    a(f"s_mul_i32 s{sT2}, s{sJD}, 160")
    a(f"s_add_u32 s{sOA}, s{sOA}, s{sT2}")
    a(f"s_mul_i32 s{sOB}, s{sTB}, 192")
    a(f"s_add_u32 s{sOB}, s{sOB}, s{sT}")
    a(f"s_lshl_b32 s{sOB}, s{sOB}, 10")
    a(f"s_add_u32 s{sOB}, s{sOB}, {WS_ACT}")
    a(f"v_lshlrev_b32 v{t0}, 3, v{t0}")

    tokA = {}; tokXr = {}
    def ops_ra(ks):
        c, e = ks // 2, ks % 2
        off = (c % 3) * W_SLOT + e * 6144
        out = []
        for rt in range(6):
            ad = (vE if rt % 2 == 0 else vO)[rt // 2]
            for h in range(2):
                def f(rt=rt, h=h, ad=ad):
                    a(f"ds_read_b64_tr_b16 {v(A[ks%2][rt] + 2*h, 2)}, v{ad} offset:{off + 768*h}")
                    tokA[(ks, rt)] = a.ltok()
                out.append(f)
        return out
    def ops_rx(c):
        out = []
        for e in range(2):
            for ct in range(2):
                def f(e=e, ct=ct):
                    a(f"ds_read_b128 {v(X[c%2][e][ct],4)}, v{vXr[e]} offset:{((2*c+ct) % NXU) * 2048}")
                    tokXr[c] = a.ltok()
                out.append(f)
        return out
    def mf(d, A_, B_, first):
        c = "0" if first else v(d, 4)
        a(f"v_mfma_f32_16x16x32_bf16 {v(d,4)}, {v(A_,4)}, {v(B_,4)}, {c}")
    wq = [0]
    tokWR = {}
    def ops_wr(n, lim=NWI):
        out = []
        for it_ in range(n):
            f_ = wq[0]
            if f_ >= lim: break
            def f(f_=f_, it_=it_):
                if f_ % 4 == 0 or it_ == 0: a(f"s_add_u32 s{sT2}, s{sOA}, {1024*(f_ - f_%4)}")
                a(f"buffer_load_dwordx4 {v(WR[f_],4)}, v{v16}, s[{sWS}:{sWS+3}], s{sT2} offen offset:{1024*(f_%4)} sc1")
                tokWR[f_] = a.vtok()
            out.append(f); wq[0] += 1
        return out
    sFB = 49
    def ld_w2flags():
        a(f"buffer_load_dword v{vfl}, v{vfa}, s[{sWS}:{sWS+3}], s{sFB} offen sc1")
    def ld_first(nl):
        a(f"v_mov_b32 v{vfl}, s{sTok}")
        a(f"s_mov_b64 exec, {hex((1 << nl) - 1)}")
        ld_w2flags()
        a("s_mov_b64 exec, -1")
    def ld_stats():
        for ct in range(2):
            a(f"buffer_load_dwordx2 {v(st[ct],2)}, v{vsa}, s[{sWS}:{sWS+3}], s{sT3} offen offset:{256*ct} sc1")
    tk = {}
    def op_tok():
        a(f"buffer_load_dword v{vtok}, v{vzero}, s[{sDBG}:{sDBG+3}], 0 offen sc1")
        tk["tok"] = a.vtok()
    def op_chk_tok():
        a.wait(vm=tk["tok"])
        check_token(a, vtok, vzero)
    def op_pace():
        a(f"v_mov_b32 v{vtok}, s{sTok}")
        a(f"s_lshl_b32 s{sT2}, s{sId}, 7")
        a(f"s_add_u32 s{sT2}, s{sT2}, {WS_FPACE}")
        a(f"s_cmp_eq_u32 s{sWave}, 0")
        a(f"s_cselect_b32 s{sT2}, s{sT2}, {WS_SIZE}")
        a("s_mov_b64 exec, 1")
        a(f"buffer_store_dword v{vtok}, v{vzero}, s[{sWS}:{sWS+3}], s{sT2} offen sc1")
        a("s_mov_b64 exec, -1")
    def op_stats():
        a(f"s_lshl_b32 s{sT3}, s{sRB}, 4")
        a(f"s_lshl_b32 s{sT2}, s{sWave}, 2")
        a(f"s_add_u32 s{sT3}, s{sT3}, s{sT2}")
        a(f"s_lshl_b32 s{sT3}, s{sT3}, 7")
        a(f"s_add_u32 s{sT3}, s{sT3}, {WS_STAT}")
        ld_stats()
        tk["st"] = a.vtok()
    def op_b1(P):
        def f():
            a(f"s_mul_i32 s{sT2}, s{sCB}, 192")
            a(f"s_lshl_b32 s{sT}, s{sP[P]}, 6")
            a(f"s_add_u32 s{sT}, s{sT}, s{sT2}")
            for o in range(2):
                a(f"buffer_load_dwordx2 {v(b1p[2*P+o],2)}, v{t0}, s[{sB1}:{sB1+3}], s{sT} offen offset:{32*o}")
        return f

    a("s_waitcnt lgkmcnt(0)")
    for P in range(3): op_b1(P)()
    a("s_waitcnt lgkmcnt(0)")
    a.wait(vm=max(tokW[0], tokXu[1]))
    for i in range(4): a(f"v_mov_b32 v{ones+i}, 0x3f803f80")
    a("s_barrier")
    stamp(a, 2)
    for f in ops_rx(0) + ops_ra(0) + ops_x(4) + ops_w(2): f()
    if PFA_ < 10: do_pf(PFA_, 10)
    if ENV("PF20", 4) < 0: op_pf2(0)()
    op_tok()
    extra = {9: [op_chk_tok], ENV("PACEKS", 13): [op_pace], 17: [op_stats]}
    if ENV("PF20", 4) >= 0: extra.setdefault(ENV("PF20", 4), []).append(op_pf2(0))
    for j in range(1, 8): extra.setdefault(ENV("PF2KS", 10) + j, []).append(op_pf2(j))
    if ENV("GPRIO2", 2): a(f"s_setprio {ENV('GPRIO2', 2)}")
    for ks in range(20):
        c, e = ks // 2, ks % 2
        first = ks == 0
        Xs = X[c % 2][e]; As = A[ks % 2]
        mlist = []
        for rt in range(6):
            for ct in range(2): mlist.append((rt, acc[rt][ct], As[rt], Xs[ct]))
            if rt < 2: mlist.append((rt, cs[rt], As[rt], ones))
        if e == 0:
            fill = ops_ra(ks + 1)
            dma = []
            for u in (2 * c + 5, 2 * c + 6):
                if u < 20: dma += ops_x(u)
            fl2 = []
            for i, f in enumerate(fill):
                fl2.append(f)
                if i % 2 == 1 and dma: fl2.append(dma.pop(0))
            fill = fl2 + dma + extra.get(ks, [])
            start = 0
            a.wait(lg=tokXr[c])
        else:
            fill = []
            if ks < 19:
                fill = ops_rx(c + 1) + ops_ra(ks + 1)
                if c + 3 < 10: fill += ops_w(c + 3)
            fill += extra.get(ks, [])
            start = 6 if ks < 19 else 0
        nslots = len(mlist) - start
        per = [len(fill) // nslots + (1 if i < len(fill) % nslots else 0) for i in range(nslots)]
        lastrt = -1
        for i, (rt, d, A_, B_) in enumerate(mlist):
            if e == 1 and ks < 19 and i == start:
                a.wait(vm=max(tokW[c + 1], tokXu[2 * c + 3]), lg=a.ltok())
                a("s_barrier")
                if ks in (5, 11): stamp(a, {5: 3, 11: 4}[ks])
                lastrt = 99
            if rt > lastrt:
                a.wait(lg=tokA[(ks, rt)]); lastrt = rt
            mf(d, A_, B_, first)
            if i >= start:
                for _ in range(per[i - start]): fill.pop(0)()
        assert not fill
    tokst = tk["st"]
    stamp(a, 5)

    E = Alloc(pool, limit=vpf)
    csv = [E(4, 4) for _ in range(6)]
    b1v = [E(4, 4) for _ in range(6)]
    rr = [E(2, 2) for _ in range(2)]
    rm = [st[0], st[1]]
    tmp = [E(2, 2) for _ in range(8)]
    outp = cs
    vcs = E()
    CSOFF = 2 * W_SLOT
    a(f"v_lshrrev_b32 v{t0}, 4, v{lane}")
    a(f"v_lshlrev_b32 v{vcs}, 4, v{t0}")
    a(f"s_lshl_b32 s{sT}, s{sP[0]}, 7")
    a(f"v_add_u32 v{t1}, s{sT}, v{vcs}")
    for o in range(2):
        a(f"ds_write_b128 v{t1}, {v(cs[o],4)} offset:{CSOFF + 64*o}")
    a.wait(vm=tokst)
    check_flags(a, [st[0] + 1, st[1] + 1], vsa, ld_stats)
    a("s_waitcnt lgkmcnt(0)")
    a("s_barrier")
    for P in range(3):
        a(f"s_lshl_b32 s{sT}, s{sP[P]}, 7")
        a(f"v_add_u32 v{t1}, s{sT}, v{vcs}")
        for o in range(2):
            a(f"ds_read_b128 {v(csv[2*P+o],4)}, v{t1} offset:{CSOFF + 64*o}")
    for ct in range(2):
        a(f"v_and_b32 v{t1}, 0xffff0000, v{st[ct]}")
        a(f"v_rcp_f32 v{rr[ct]}, v{t1}")
        a(f"v_lshlrev_b32 v{t2}, 16, v{st[ct]}")
        a(f"v_mul_f32 v{rr[ct]+1}, v{t2}, v{rr[ct]}")
        a(f"v_sub_f32 v{rm[ct]}, 0, v{rr[ct]+1}")
    for rt in range(6):
        a(f"v_lshlrev_b32 v{b1v[rt]}, 16, v{b1p[rt]}")
        a(f"v_and_b32 v{b1v[rt]+1}, 0xffff0000, v{b1p[rt]}")
        a(f"v_lshlrev_b32 v{b1v[rt]+2}, 16, v{b1p[rt]+1}")
        a(f"v_and_b32 v{b1v[rt]+3}, 0xffff0000, v{b1p[rt]+1}")
    a(f"s_lshl_b32 s{sT}, s{sRB}, 3")
    a(f"s_lshl_b32 s{sT2}, s{sWave}, 1")
    a(f"s_add_u32 s{sT}, s{sT}, s{sT2}")
    a(f"s_mul_i32 s{sT}, s{sT}, 48")
    a(f"s_mul_i32 s{sT2}, s{sCB}, 3")
    a(f"s_add_u32 s{sT}, s{sT}, s{sT2}")
    for P in range(3):
        a(f"s_add_u32 s{sP[P]}, s{sP[P]}, s{sT}")
        a(f"s_lshl_b32 s{sP[P]}, s{sP[P]}, 10")
        a(f"s_add_u32 s{sP[P]}, s{sP[P]}, {WS_ACT}")
    a(f"s_mov_b32 s50, {f32(LOG2E)}"); a(f"s_mov_b32 s51, {f32(LOG2E)}")
    Q = Alloc(base2, limit=256)
    acc2 = [[Q(4, 4) for ct in range(4)] for rt in range(5)]
    NST = 3
    FB = [[Q(4, 4) for _ in range(4)] for _ in range(NST)]
    vB = [Q() for _ in range(4)]
    vxo = Q(); vxo2 = Q()
    vw = [Q() for _ in range(5)]; vw8 = Q(); vw4 = Q()
    a(f"s_mul_i32 s{sM0w}, s{sWave}, 20480")
    for i in range(5):
        a(f"v_add_u32 v{t0}, {64*i}, v{lane}")
        a(f"v_mul_u32_u24 v{t1}, 0xcccd, v{t0}")
        a(f"v_lshrrev_b32 v{t1}, 19, v{t1}")
        a(f"v_mul_u32_u24 v{t2}, 10, v{t1}")
        a(f"v_sub_u32 v{t2}, v{t0}, v{t2}")
        a(f"v_mul_u32_u24 v{t1}, 1280, v{t1}")
        a(f"v_lshl_add_u32 v{vw[i]}, v{t2}, 4, v{t1}")
        if 0 < i < 4: a(f"v_subrev_u32 v{vw[i]}, {1024*i}, v{vw[i]}")
    tokD = {}
    def ops_dma(k):
        out = []
        for i in range(5):
            def f(i=i):
                if i == 0:
                    a(f"s_add_u32 m0, s{sM0w}, {5120*(k%4)}")
                    a(f"s_add_u32 s{sXoff}, s{sOA}, {32*1280*k}")
                if i == 4: a(f"s_add_u32 m0, s{sM0w}, {5120*(k%4) + 4096}")
                a(f"buffer_load_dwordx4 v{vw[i]}, s[{sW2}:{sW2+3}], s{sXoff} offen offset:{1024*i if i < 4 else 0} lds")
                tokD[k] = a.vtok()
            out.append(f)
        return out
    tokL = {}
    def op_rw(k, rt):
        o = WR[5 * (k % 5) + rt]
        for e in range(2):
            if rt < 4: a(f"ds_read_b64_tr_b16 {v(o+2*e,2)}, v{vw8} offset:{5120*(k%4) + 64*(rt>>1) + 8*(rt&1) + 2560*e}")
            else: a(f"ds_read_b64_tr_b16 {v(o+2*e,2)}, v{vw4} offset:{5120*(k%4) + 128 + 2560*e}")
        tokL[(k, rt)] = a.ltok()
    a("s_waitcnt lgkmcnt(0)")
    a("s_barrier")
    stamp(a, 6)
    k = 0
    for P in range(3):
        for ct in range(2):
            op = outp[k % 2]; k += 1
            if k == 1: dq = sum([ops_dma(k_) for k_ in range(4)], [])
            def dq_pop():
                if len(dq) > 20: dq.pop(0)()
            dq_pop()
            hs = []
            EP = ENV("EPLAIN", 0)
            for o in range(2):
                rt = 2 * P + o
                for hf in range(2):
                    h = acc[rt][ct] + 2 * hf
                    tt = tmp[len(hs)]
                    if EP:
                        for z in range(2): a(f"v_fma_f32 v{tt+z}, v{csv[rt]+2*hf+z}, v{rm[ct]}, v{b1v[rt]+2*hf+z}")
                        for z in range(2): a(f"v_fma_f32 v{h+z}, v{h+z}, v{rr[ct]}, v{tt+z}")
                    else:
                        a(f"v_pk_fma_f32 {v(tt,2)}, {v(csv[rt]+2*hf,2)}, {v(rm[ct],2)}, {v(b1v[rt]+2*hf,2)} op_sel_hi:[1,0,1]")
                        a(f"v_pk_fma_f32 {v(h,2)}, {v(h,2)}, {v(rr[ct],2)}, {v(tt,2)} op_sel_hi:[1,0,1]")
                    hs.append(h)
            def pmul(d, x, y):
                if EP:
                    for z in range(2): a(f"v_mul_f32 v{d+z}, " + (f"s50, v{x+z}" if y is None else f"v{x+z}, v{y+z}"))
                else: a(f"v_pk_mul_f32 {v(d,2)}, {v(x,2)}, " + ("s[50:51]" if y is None else v(y, 2)))
            def padd2(d, x):
                if EP:
                    for z in range(2): a(f"v_add_f32 v{d+z}, 2.0, v{x+z}")
                else: a(f"v_pk_add_f32 {v(d,2)}, {v(x,2)}, 2.0 op_sel_hi:[1,0]")
            for i, h in enumerate(hs): pmul(tmp[i], h, None)
            for i, h in enumerate(hs):
                a(f"v_min_f32 v{tmp[i]}, {f32(30.0)}, v{tmp[i]}")
                a(f"v_min_f32 v{tmp[i]+1}, {f32(30.0)}, v{tmp[i]+1}")
            dq_pop()
            for i, h in enumerate(hs):
                a(f"v_exp_f32 v{tmp[i]}, v{tmp[i]}")
                a(f"v_exp_f32 v{tmp[i]+1}, v{tmp[i]+1}")
            dq_pop()
            for i, h in enumerate(hs): padd2(tmp[4+i], tmp[i])
            for i, h in enumerate(hs): pmul(tmp[i], tmp[i], tmp[4+i])
            for i, h in enumerate(hs): padd2(tmp[4+i], tmp[i])
            for i, h in enumerate(hs):
                a(f"v_rcp_f32 v{tmp[4+i]}, v{tmp[4+i]}")
                a(f"v_rcp_f32 v{tmp[4+i]+1}, v{tmp[4+i]+1}")
            dq_pop()
            for i, h in enumerate(hs): pmul(h, h, tmp[i])
            for i, h in enumerate(hs): pmul(h, h, tmp[4+i])
            for i, h in enumerate(hs): a(f"v_cvt_pk_bf16_f32 v{op+i}, v{h}, v{h+1}")
            if ct == 0:
                a(f"buffer_store_dwordx4 {v(op,4)}, v{v16}, s[{sWS}:{sWS+3}], s{sP[P]} offen sc1")
            else:
                a(f"s_add_u32 s{sT}, s{sP[P]}, {48*1024}")
                a(f"buffer_store_dwordx4 {v(op,4)}, v{v16}, s[{sWS}:{sWS+3}], s{sT} offen sc1")
    tokst_ = a.vtok()
    stamp(a, 7)
    a(f"s_lshl_b32 s{sT}, s{sRB}, 4")
    a(f"s_add_u32 s{sT}, s{sT}, s{sCB}")
    a(f"s_lshl_b32 s{sT}, s{sT}, 2")
    a(f"s_add_u32 s{sT}, s{sT}, s{sWave}")
    a(f"s_lshl_b32 s{sT}, s{sT}, 7")
    a(f"s_add_u32 s{sT}, s{sT}, {WS_FACT}")
    a(f"v_mov_b32 v{vtok}, s{sTok}")

    for ct in range(4):
        a(f"s_add_u32 s{sT2}, s{sWave}, {ct}")
        a(f"s_and_b32 s{sT2}, s{sT2}, 3")
        a(f"s_mul_i32 s{sT2}, s{sT2}, {48*1024}")
        a(f"v_add_u32 v{vB[ct]}, s{sT2}, v{v16}")
    a(f"v_lshrrev_b32 v{t1}, 2, v{lane}")
    a(f"v_mul_u32_u24 v{t1}, 160, v{t1}")
    a(f"v_add_u32 v{t1}, s{sM0w}, v{t1}")
    a(f"v_and_b32 v{t2}, 3, v{lane}")
    a(f"v_lshl_add_u32 v{vw8}, v{t2}, 4, v{t1}")
    a(f"v_lshl_add_u32 v{vw4}, v{t2}, 3, v{t1}")
    def do_publish():
        a.wait(vm=tokst_)
        a("s_mov_b64 exec, 1")
        a(f"buffer_store_dword v{vtok}, v{vzero}, s[{sWS}:{sWS+3}], s{sT} offen sc1")
        a("s_mov_b64 exec, -1")
        if ENV("GPRIO2", 2): a(f"s_setprio {ENV('GPRIO3', 0)}")
        stamp(a, 8)
    assert len(dq) == 20
    for _ in range(10): dq.pop(0)()
    a(f"v_and_b32 v{t0}, 3, v{lane}")
    a(f"v_bfe_u32 v{t1}, v{lane}, 2, 1")
    a(f"v_lshl_add_u32 v{vfa}, v{t0}, 2, v{t1}")
    a(f"v_lshlrev_b32 v{vfa}, 7, v{vfa}")
    a(f"s_lshr_b32 s{sFB}, s{sTB}, 1")
    a(f"s_lshl_b32 s{sFB}, s{sFB}, 2")
    a(f"s_add_u32 s{sFB}, s{sFB}, s{sWave}")
    a(f"s_lshl_b32 s{sFB}, s{sFB}, 3")
    a(f"s_and_b32 s{sT2}, s{sTB}, 1")
    a(f"s_add_u32 s{sFB}, s{sFB}, s{sT2}")
    a(f"s_lshl_b32 s{sFB}, s{sFB}, 8")
    a(f"s_add_u32 s{sFB}, s{sFB}, {WS_FACT}")
    a(f"v_mul_u32_u24 v{t0}, {48*1024}, v{t0}")
    a(f"v_lshrrev_b32 v{t1}, 2, v{lane}")
    a(f"v_lshl_add_u32 v{t0}, v{t1}, 10, v{t0}")
    a(f"s_lshl_b32 s{sT2}, s{sJD}, 7")
    a(f"s_add_u32 s{sT2}, s{sT2}, s{sOB}")
    do_publish()
    while dq: dq.pop(0)()
    def rd(k):
        a.wait(vm=tokD[k])
        for rt in range(5): op_rw(k, rt)
    def dm(k):
        a.wait(lg=tokL[(k - 4, 4)])
        for f in ops_dma(k): f()
    tokB = {}
    def issue_b(k):
        for ct in range(4):
            a(f"buffer_load_dwordx4 {v(FB[k%NST][ct],4)}, v{vB[ct]}, s[{sWS}:{sWS+3}], s{sOB} offen sc1")
        tokB[k] = a.vtok()
        if k < 11: a(f"s_add_u32 s{sOB}, s{sOB}, 1024")
    FPOS = ENV("FPOS", 2)
    def fl():
        ld_first(8); tk["fa"] = a.vtok()
    rd(0); rd(1); dm(4); rd(2)
    if FPOS == 0: fl()
    dm(5)
    if FPOS == 1: fl()
    rd(3); dm(6)
    if FPOS == 2:
        fl(); dm(7)
    stamp(a, 14)
    a.wait(vm=tk["fa"])
    check_flags(a, [vfl], vfa, ld_w2flags, sleep=ENV("ASLEEP", 3))
    stamp(a, 9)
    if ENV("GPRIO2", 2): a(f"s_setprio {ENV('GPRIO4', 0)}")
    if ENV("PFA", 1):
        a("s_mov_b32 exec_hi, 0xffff")
        a(f"buffer_load_dword v{t3}, v{t0}, s[{sWS}:{sWS+3}], s{sT2} offen sc1")
        a("s_mov_b32 exec_hi, -1")
    for k in range(NST): issue_b(k)
    if FPOS != 2: dm(7)
    rd(4)
    sXo = 40
    a(f"s_lshl_b32 s{sXo}, s{sTB}, 6")
    a(f"s_lshl_b32 s{sT2}, s{sWave}, 4")
    a(f"s_add_u32 s{sXo}, s{sXo}, s{sT2}")
    a(f"s_mul_i32 s{sXo}, s{sXo}, 1280")
    a(f"s_mul_i32 s{sT2}, s{sJD}, 160")
    a(f"s_add_u32 s{sXo}, s{sXo}, s{sT2}")
    vso = vxo; vlw = vxo2
    a(f"v_lshrrev_b32 v{t0}, 3, v{lane}")
    a(f"v_and_b32 v{t1}, 7, v{lane}")
    a(f"v_lshlrev_b32 v{t1}, 4, v{t1}")
    a(f"v_lshl_add_u32 v{vso}, v{t0}, 12, v{t1}")
    a(f"s_mul_i32 s{sM0x}, s{sWave}, 2560")
    STOFF = 61440; XSOFF = 71680
    a(f"v_min_u32 v{vfa}, 19, v{lane}")
    a(f"v_lshlrev_b32 v{vfa}, 7, v{vfa}")
    a(f"s_mul_i32 s{sT3}, s{sJD}, 80")
    a(f"s_mul_i32 s{sT}, s{sWave}, 20")
    a(f"s_add_u32 s{sWoff}, s{sT3}, s{sT}")
    a(f"s_lshl_b32 s{sT3}, s{sWoff}, 7")
    a(f"s_lshr_b32 s{sT}, s{sTB}, 3")
    a(f"s_lshl_b32 s{sT}, s{sT}, 2")
    a(f"s_add_u32 s{sT3}, s{sT3}, s{sT}")
    a(f"s_add_u32 s{sFB}, s{sT3}, {WS_FST}")
    slot = {f: f % 25 for f in range(60)}
    for k in range(12):
        dma = ops_dma(k + 8) if k <= 3 else []
        for rt in range(5):
            if rt == 0: a.wait(vm=tokB[k])
            if k >= 4: a.wait(lg=tokL[(k, rt)])
            if rt == 1 and dma: a.wait(lg=tokL[(k + 4, 4)])
            for ct in range(4):
                c = "0" if k == 0 else v(acc2[rt][ct], 4)
                a(f"v_mfma_f32_16x16x32_bf16 {v(acc2[rt][ct],4)}, {v(WR[slot[5*k+rt]],4)}, {v(FB[k%NST][ct],4)}, {c}")
                if ct == 0 and rt >= 1 and k + 5 < 12:
                    if rt == 1: a.wait(vm=tokD[k + 5])
                    op_rw(k + 5, rt - 1)
                if ct == 2 and rt >= 1 and dma: dma.pop(0)()
        if k + 5 < 12: op_rw(k + 5, 4)
        while dma: dma.pop(0)()
        if k in (0, 5): stamp(a, {0: 10, 5: 11}[k])
        if k + NST < 12: issue_b(k + NST)
        if k == 8:
            ld_first(20); tokfl = a.vtok()
            a("s_waitcnt lgkmcnt(0)")
            a("s_barrier")
            a(f"s_add_u32 m0, s{sM0x}, {XSOFF}")
            for i in range(3):
                if i == 2: a("s_mov_b32 exec_hi, 0")
                a(f"buffer_load_dwordx4 v{vw[i]}, s[{sX}:{sX+3}], s{sXo} offen offset:{1024*i} lds")
            a("s_mov_b32 exec_hi, -1")
        if k == 9:
            a.wait(vm=tokfl)
            check_flags(a, [vfl], vfa, ld_w2flags, sleep=ENV("STSLEEP", 8))
            a(f"s_lshl_b32 s{sT}, s{sWoff}, 12")
            a(f"s_lshl_b32 s{sT2}, s{sTB}, 7")
            a(f"s_add_u32 s{sT}, s{sT}, s{sT2}")
            a(f"s_add_u32 s{sT}, s{sT}, {WS_ST}")
            for i in range(3):
                if i == 2: a("s_mov_b32 exec_hi, 0")
                a(f"s_add_u32 m0, s{sM0x}, {STOFF + 1024*i}")
                a(f"buffer_load_dwordx4 v{vso}, s[{sWS}:{sWS+3}], s{sT} offen sc1 lds")
                if i < 2: a(f"s_add_u32 s{sT}, s{sT}, {8*4096}")
            a("s_mov_b32 exec_hi, -1")
        if k == 10:
            for ct in range(1, 4):
                a(f"s_add_u32 s{sT2}, s{sWave}, {ct}")
                a(f"s_and_b32 s{sT2}, s{sT2}, 3")
                a(f"s_mul_i32 s{sT2}, s{sT2}, 15360")
                a(f"v_add_u32 v{vB[ct]}, s{sT2}, v{v16}")
            break
    k = 11
    a.wait(vm=tokB[k]); a.wait(lg=tokL[(k, 4)])
    vt8, vt4, vx16, vx8 = [FB[0][0] + i for i in range(4)]
    misc = [f"v_lshrrev_b32 v{t2}, 4, v{lane}", f"v_bfe_u32 v{t0}, v{lane}, 2, 2",
            f"v_lshl_add_u32 v{t1}, v{t2}, 3, v{t0}", f"v_lshl_add_u32 v{t0}, v{t2}, 2, v{t0}", f"v_and_b32 v{t3}, 3, v{lane}"]
    pend = []
    for ct in (1, 2, 3, 0):
        for rt in range(5):
            a(f"v_mfma_f32_16x16x32_bf16 {v(acc2[rt][ct],4)}, {v(WR[slot[5*k+rt]],4)}, {v(FB[k%NST][ct],4)}, {v(acc2[rt][ct],4)}")
            if ct == 1: a(misc[rt])
            elif pend: a(pend.pop(0))
        if ct: pend += [f"ds_write_b128 v{vB[ct]}, {v(acc2[rt][ct],4)} offset:{(ct-1)*5120 + rt*1024}" for rt in range(5)]
    stamp(a, 12)
    Pr = [[acc2[rt][p + 1] for rt in range(5)] for p in range(3)]
    T = [WR[10 + i // 2] + 2 * (i % 2) for i in range(10)]
    sv = [WR[15 + i // 2] + 2 * (i % 2) for i in range(5)]
    xq = [WR[18], WR[19], WR[20]]
    op = [WR[21], WR[22], WR[23]]
    a(f"s_lshl_b32 s{sT}, s{sWave}, 5")
    a(f"s_add_u32 s{sT}, s{sT}, {STOFF}")
    a(f"v_lshl_add_u32 v{t3}, v{t3}, 3, s{sT}")
    a(f"v_lshl_add_u32 v{vt8}, v{t1}, 7, v{t3}")
    a(f"v_lshl_add_u32 v{vt4}, v{t0}, 7, v{t3}")
    a(f"v_and_b32 v{t0}, 15, v{lane}")
    a(f"v_mul_u32_u24 v{t0}, 160, v{t0}")
    a(f"s_add_u32 s{sT}, s{sM0x}, {XSOFF}")
    a(f"v_add_u32 v{t0}, s{sT}, v{t0}")
    a(f"v_lshl_add_u32 v{vx16}, v{t2}, 4, v{t0}")
    a(f"v_lshl_add_u32 v{vx8}, v{t2}, 3, v{t0}")
    a(f"v_add_u32 v{vlw}, s{sT}, v{v16}")
    a(f"s_mul_i32 s{sT2}, s{sWave}, 15360")
    a(f"v_add_u32 v{t3}, s{sT2}, v{v16}")
    a(f"s_mov_b32 s50, {f32(-LOG2E)}"); a(f"s_mov_b32 s51, {f32(-LOG2E)}")
    a("s_waitcnt vmcnt(0) lgkmcnt(0)")
    a("s_barrier")
    stamp(a, 13)
    tkr = {}
    for rt in range(5):
        for p in range(3):
            a(f"ds_read_b128 {v(Pr[p][rt],4)}, v{t3} offset:{p*5120 + rt*1024}")
        tkr[rt] = a.ltok()
    o2 = []
    late = [f"ds_read_b64_tr_b16 {v(sv[rt],2)}, v{vt8} offset:{128*(32*(rt>>1) + 4*(rt&1))}" for rt in range(4)]
    late += [f"ds_read_b64_tr_b16 {v(sv[4],2)}, v{vt4} offset:{128*64}", f"ds_read_b128 {v(xq[0],4)}, v{vx16}",
             f"ds_read_b128 {v(xq[1],4)}, v{vx16} offset:64", f"ds_read_b64 {v(xq[2],2)}, v{vx8} offset:128"]
    for rt in range(5):
        a.wait(lg=tkr[rt])
        for hf in range(2):
            d = acc2[rt][0] + 2 * hf
            a(f"v_pk_add_f32 {v(Pr[0][rt]+2*hf,2)}, {v(Pr[0][rt]+2*hf,2)}, {v(Pr[1][rt]+2*hf,2)}")
            a(f"v_pk_add_f32 {v(d,2)}, {v(d,2)}, {v(Pr[2][rt]+2*hf,2)}")
            a(f"v_pk_add_f32 {v(d,2)}, {v(d,2)}, {v(Pr[0][rt]+2*hf,2)}")
            o2.append(d)
    for x_ in late: a(x_)
    for i, d in enumerate(o2): a(f"v_pk_mul_f32 {v(T[i],2)}, {v(d,2)}, s[50:51]")
    for i, d in enumerate(o2):
        a(f"v_exp_f32 v{T[i]}, v{T[i]}")
        a(f"v_exp_f32 v{T[i]+1}, v{T[i]+1}")
    for i, d in enumerate(o2): a(f"v_pk_add_f32 {v(T[i],2)}, {v(T[i],2)}, 1.0 op_sel_hi:[1,0]")
    for i, d in enumerate(o2):
        a(f"v_rcp_f32 v{T[i]}, v{T[i]}")
        a(f"v_rcp_f32 v{T[i]+1}, v{T[i]+1}")
    a("s_waitcnt lgkmcnt(0)")
    for i, d in enumerate(o2):
        s_ = sv[i // 2] + i % 2
        x_ = xq[i // 4] + i % 4
        U_ = Pr[0][i // 2] + 2 * (i % 2)
        V_ = Pr[1][i // 2] + 2 * (i % 2)
        a(f"v_pk_mul_f32 {v(d,2)}, {v(d,2)}, {v(T[i],2)}")
        a(f"v_lshlrev_b32 v{U_}, 16, v{s_}")
        a(f"v_and_b32 v{U_+1}, 0xffff0000, v{s_}")
        a(f"v_lshlrev_b32 v{V_}, 16, v{x_}")
        a(f"v_and_b32 v{V_+1}, 0xffff0000, v{x_}")
        a(f"v_pk_fma_f32 {v(d,2)}, {v(d,2)}, {v(U_,2)}, {v(V_,2)}")
        a(f"v_cvt_pk_bf16_f32 v{op[i//4] + i%4}, v{d}, v{d+1}")
        if i == 3: a(f"ds_write_b128 v{vx16}, {v(op[0],4)}")
        if i == 7: a(f"ds_write_b128 v{vx16}, {v(op[1],4)} offset:64")
    a(f"ds_write_b64 v{vx8}, {v(op[2],2)} offset:128")
    for i in range(3):
        a(f"ds_read_b128 {v(xq[i],4)}, v{vlw} offset:{1024*i}")
    for i in range(3):
        a(f"s_waitcnt lgkmcnt({2-i})")
        if i == 2: a("s_mov_b32 exec_hi, 0")
        a(f"buffer_store_dwordx4 {v(xq[i],4)}, v{vw[i]}, s[{sOUT}:{sOUT+3}], s{sXo} offen offset:{1024*i}")
    stamp_end(a, sWave)
    return 256

def main(out):
    ref = open(f"cdna_kernels/{NAME}.s.ref").read().split("\n")
    hdr = [l for l in ref if l.startswith(";") and "@launch" not in l]
    hdr.append(f"; @launch grid=(512,1,1) block=(256,1,1) lds={LDS_BYTES}")
    a = Asm()
    a.raw(f'.amdgcn_target "amdgcn-amd-amdhsa--gfx950"\n.text\n.globl {KN}\n.p2align 8\n.type {KN},@function')
    a.label(KN)
    a("s_cmp_lt_u32 s2, 256")
    a("s_cbranch_scc1 " + ("K_exit" if ENV("NOS", 0) else "S_role"))
    a(f"s_cmp_ge_u32 s2, {256 if ENV('NOG', 0) else 512}")
    a("s_cbranch_scc1 K_exit")
    _role[0] = "G"
    hg = g_role(a)
    _role[0] = "S"
    a.label("S_role"); a.flush_hist()
    hs = s_role(a)
    a.label("K_exit")
    a("s_endpgm")
    a.raw(".p2align 15")
    print("vgprs", hg, hs, "nops", a.nnop, "lines", len(a.items), file=sys.stderr)
    kd = f""".section .rodata,"a"
.p2align 6
.amdhsa_kernel {KN}
  .amdhsa_next_free_vgpr 256
  .amdhsa_next_free_sgpr {102 if STAMPS else 64}
  .amdhsa_accum_offset 256
  .amdhsa_group_segment_fixed_size 0
  .amdhsa_kernarg_size 128
  .amdhsa_user_sgpr_count 2
  .amdhsa_user_sgpr_kernarg_segment_ptr 1
  .amdhsa_system_sgpr_workgroup_id_x 1
  .amdhsa_float_denorm_mode_32 3
  .amdhsa_float_denorm_mode_16_64 3
.end_amdhsa_kernel
"""
    open(out, "w").write("\n".join(hdr) + "\n" + a.text() + kd)

if __name__ == "__main__":
    main(sys.argv[1] if len(sys.argv) > 1 else f"cdna_kernels/{NAME}.s")
```

```python
import sys, os, struct, math
sys.path.insert(0, os.path.dirname(os.path.abspath(__file__)))
from asmlib import *

NAME = "recurrent_scan__ssm_conv_s4__dense_activation_mish__prompt"
KN = NAME + "_kernel"
L, D, N, F = 2048, 640, 192, 1536
ENV = lambda k, d: int(os.environ.get(k, str(d)))
STAMPS = ENV("STAMPS", 0)

WS_XT2 = 0x0000000
WS_ST  = 0x0400000
WS_W2A = 0x0800000
WS_ACT = 0x0C00000
WS_STAT = 0x1400000
WS_FLN = 0x1500000
WS_FPACE = 0x1510000
WS_FACT = 0x1520000
WS_FST = 0x1560000
WS_SIZE = 0x1600000
WS_STAMP = 0x4000000
LDS_BYTES = 81920
SPIN_MAX = 0x4000

def f32(x): return "0x%08x" % struct.unpack("<I", struct.pack("<f", x))[0]
LOG2E = 1.4426950408889634
LN2 = 0.6931471805599453

def srd(a, sreg, size):
    a(f"s_mov_b32 s{sreg+2}, {size}")
    a(f"s_mov_b32 s{sreg+3}, 0x20000")

def bf16r(a, dst, src):
    a(f"v_cvt_pk_bf16_f32 v{dst}, v{src}, v{src}")
    a(f"v_and_b32 v{dst}, 0xffff0000, v{dst}")

_sn = [0]
DIAG = ENV("DIAG", 0)
_role = ["?"]
def stamp_begin(a):
    _sn[0] = 0
    if DIAG and _role[0] == "G": a("s_memrealtime s[60:61]")
    if STAMPS:
        a("s_memrealtime s[60:61]")
        for i in range(64, 96, 2): a(f"s_mov_b64 s[{i}:{i+1}], 0")
        a("s_memtime s[64:65]")
        _sn[0] = 1
def stamp(a, n=None):
    if DIAG and n == DIAG and _role[0] == "G": a("s_memrealtime s[62:63]")
    if STAMPS:
        if n is None:
            n = _sn[0]; _sn[0] += 1
        assert n < 16
        a(f"s_memtime s[{64+2*n}:{65+2*n}]")
def stamp_end(a, sWave):
    if DIAG and _role[0] == "G":
        if DIAG == 15: a("s_memrealtime s[62:63]")
        a("s_memrealtime s[56:57]")
        a("s_waitcnt lgkmcnt(0)")
        a("s_sub_u32 s62, s62, s60")
        a("s_add_u32 s56, s56, s62")
        a.label("DG_spin")
        a("s_sleep 2")
        a("s_memrealtime s[58:59]")
        a("s_waitcnt lgkmcnt(0)")
        a("s_sub_u32 s58, s58, s56")
        a("s_cmp_lt_i32 s58, 0")
        a("s_cbranch_scc1 DG_spin")
    if STAMPS:
        stamp(a, 15)
        a("s_memrealtime s[62:63]")
        a("s_load_dwordx2 s[96:97], s[0:1], 120")
        a("s_waitcnt lgkmcnt(0)")
        a(f"s_add_u32 s96, s96, {WS_STAMP}")
        a("s_addc_u32 s97, s97, 0")
        a("s_mov_b32 s98, 0x100000")
        a("s_mov_b32 s99, 0x20000")
        a("s_lshl_b32 s59, s2, 10")
        a(f"s_lshl_b32 s58, s{sWave}, 8")
        a("s_add_u32 s59, s59, s58")
        a("s_mov_b64 exec, 1")
        a("v_mov_b32 v1, s59")
        a("v_mov_b32 v2, s60"); a("v_mov_b32 v3, s62")
        a("buffer_store_dwordx2 v[2:3], v1, s[96:99], 0 offen")
        for n in range(16):
            a(f"s_sub_u32 s59, s{64+2*n}, s64")
            a(f"s_cmp_eq_u32 s{64+2*n}, 0")
            a(f"s_cselect_b32 s59, 0, s59")
            a(f"v_mov_b32 v{4 + n}, s59")
            a(f"buffer_store_dword v{4 + n}, v1, s[96:99], 0 offen offset:{16+4*n}")
    a("s_endpgm")

_lab = [0]
def newlab(p):
    _lab[0] += 1
    return f"{p}_{_lab[0]}"

sWS, sDBG = 4, 8
sWave, sTok, sSpin = 12, 13, 14
sT, sT2, sT3 = 15, 16, 17

def check_token(a, vtok, vzero, sleep=2):
    done = newlab("TK"); loop = newlab("TL")
    if ENV("NOS", 0) or os.environ.get("ONLY", ""):
        a(f"s_mov_b32 s{sTok}, 0x12345"); return
    a(f"v_readfirstlane_b32 s{sTok}, v{vtok}")
    a(f"s_cmp_lg_u32 s{sTok}, 0")
    a(f"s_cbranch_scc1 {done}")
    a(f"s_mov_b32 s{sSpin}, 0")
    a.label(loop)
    a(f"s_sleep {sleep}")
    a(f"buffer_load_dword v{vtok}, v{vzero}, s[{sDBG}:{sDBG+3}], 0 offen sc1"); a.vm -= 1
    a("s_waitcnt vmcnt(0)")
    a(f"v_readfirstlane_b32 s{sTok}, v{vtok}")
    a(f"s_cmp_lg_u32 s{sTok}, 0")
    a(f"s_cbranch_scc1 {done}")
    a(f"s_add_u32 s{sSpin}, s{sSpin}, 1")
    a(f"s_cmp_lt_u32 s{sSpin}, {SPIN_MAX}")
    a(f"s_cbranch_scc1 {loop}")
    a.label(done)

def check_flags(a, vfl, vaddr, reload, sleep=2):
    if (ENV("NOS", 0) or os.environ.get("ONLY", "")) and sleep != 3: return
    done = newlab("FD"); loop = newlab("FL")
    def cmpall():
        a(f"v_cmp_ne_u32 vcc, s{sTok}, v{vfl[0]}")
        for r_ in vfl[1:]:
            a(f"v_cmp_ne_u32 s[18:19], s{sTok}, v{r_}")
            a("s_or_b64 vcc, vcc, s[18:19]")
        a("s_cmp_eq_u64 vcc, 0")
    cmpall()
    a(f"s_cbranch_scc1 {done}")
    a(f"s_mov_b32 s{sSpin}, 0")
    a.label(loop)
    a(f"s_sleep {sleep}")
    n0 = a.vm
    a("s_mov_b64 exec, vcc")
    reload()
    a("s_mov_b64 exec, -1")
    a.vm = n0
    a("s_waitcnt vmcnt(0)")
    cmpall()
    a(f"s_cbranch_scc1 {done}")
    a(f"s_add_u32 s{sSpin}, s{sSpin}, 1")
    a(f"s_cmp_lt_u32 s{sSpin}, {SPIN_MAX}")
    a(f"s_cbranch_scc1 {loop}")
    a.label(done)

CV_S = 4160
CH_REG = 64 * 272
CV_U = [3 * CH_REG + 512 + 4608 * i for i in range(3)]
LN_OFF = 3 * CH_REG + 3 * 4608
LN_S = 1344
PACE_OFF = LDS_BYTES - 16
KG_S = 272
COARSE = list(range(8)) + [256, 258, 260, 262, 512, 516, 768, 772, 1024, 1280, 1536, 1792, 2048]
assert LN_OFF + 8 * LN_S <= LDS_BYTES and 4 * CV_S <= CH_REG

def s_role(a):
    sX_, sA, sXc = 20, 24, 25
    sD = [26, 27, 28]
    sCnt, sPar, sSlot, sRound, sHeavy = 29, 30, 31, 56, 57
    SP = [32, 36, 40, 44, 48, 52]
    R = Alloc(1)
    lane = R(); t0 = R(); t1 = R(); t2 = R(); t3 = R(); vzero = R(); vtok = R(); v16 = R()
    vdk = [R(), R()]
    base = R.mark()
    stamp_begin(a)
    a(f"s_load_dwordx2 s[{sWS}:{sWS+1}], s[0:1], 120")
    a(f"s_load_dwordx2 s[{sDBG}:{sDBG+1}], s[0:1], 112")
    a(f"v_lshrrev_b32 v{t0}, 6, v0")
    a(f"v_and_b32 v{lane}, 63, v0")
    a(f"v_readfirstlane_b32 s{sWave}, v{t0}")
    srd(a, sWS, WS_SIZE); srd(a, sDBG, 256)
    a(f"s_and_b32 s{sXc}, s2, 7")
    a(f"s_lshr_b32 s{sA}, s2, 3")
    a(f"s_lshl_b32 s{sD[0]}, s{sXc}, 6")
    a(f"s_lshl_b32 s{sT}, s{sA}, 1")
    a(f"s_add_u32 s{sD[0]}, s{sD[0]}, s{sT}")
    a(f"s_add_u32 s{sD[1]}, s{sD[0]}, 1")
    a(f"s_lshl_b32 s{sD[2]}, s{sXc}, 4")
    a(f"s_add_u32 s{sD[2]}, s{sD[2]}, s{sA}")
    a(f"s_add_u32 s{sD[2]}, s{sD[2]}, 512")
    a(f"s_cmp_lt_u32 s{sA}, 16")
    a(f"s_cselect_b32 s{sHeavy}, 1, 0")
    a(f"v_mov_b32 v{vzero}, 0")
    a(f"v_lshlrev_b32 v{v16}, 4, v{lane}")
    ONLY = os.environ.get("ONLY", "")
    if ENV("SPRIO0", 0): a(f"s_setprio {ENV('SPRIO0', 0)}")
    a(f"s_lshr_b32 s{sSlot}, s{sWave}, 1")
    a(f"s_cmp_eq_u32 s{sWave}, 3")
    a("s_cbranch_scc1 " + ("S_ln" if (not ONLY or "l" in ONLY) else "K_exit"))
    a(f"s_add_u32 s{sT}, s{sHeavy}, 2")
    a(f"s_cmp_ge_u32 s{sWave}, s{sT}")
    a("s_cbranch_scc1 " + ("S_w2t" if (not ONLY or "w" in ONLY) else "K_exit"))
    if ONLY and "k" not in ONLY: a("s_branch K_exit")

    P = [[R() for _ in range(6)] for _ in range(3)]
    vdt = R(); vwr = R(); vrd = R(); voff = R()
    accK = R(16, 4)
    FA = [R(4, 4) for _ in range(8)]; FB = [R(4, 4) for _ in range(8)]
    pr = lambda: R(2, 2)
    l1, l8, l256, W, E0, E1, E2, T, T2, G2, G4, G6, V, a2b = [pr() for _ in range(14)]
    Qr = [R(4, 4) for _ in range(2)]; Qi = [R(4, 4) for _ in range(2)]
    Cr = R(16, 4); Ci = R(16, 4)
    sDd, sBase = 58, 59
    if STAMPS: sDd, sBase = 100, 101
    for i, sr in enumerate(SP):
        a(f"s_load_dwordx2 s[{sr}:{sr+1}], s[0:1], {8 + 8*i}")
    a(f"s_load_dwordx2 s[{sX_}:{sX_+1}], s[0:1], 56")
    a(f"s_load_dwordx2 s[18:19], s[0:1], 64")
    a(f"s_cmp_eq_u32 s{sWave}, 1")
    a(f"s_cselect_b32 s{sDd}, s{sD[1]}, s{sD[0]}")
    a(f"s_cmp_eq_u32 s{sWave}, 2")
    a(f"s_cselect_b32 s{sDd}, s{sD[2]}, s{sDd}")
    for sr in SP: srd(a, sr, D * N * 2)
    srd(a, sX_, D * 2)
    a(f"s_mul_i32 s{sT}, s{sDd}, {N*2}")
    a(f"v_lshlrev_b32 v{voff}, 1, v{lane}")
    a(f"s_lshl_b32 s{sT2}, s{sDd}, 1")
    a("s_waitcnt lgkmcnt(0)")
    a(f"buffer_load_ushort v{vdt}, v{vzero}, s[{sX_}:{sX_+3}], s{sT2} offen")
    a(f"s_mov_b32 s{sX_}, s18"); a(f"s_mov_b32 s{sX_+1}, s19")
    a(f"buffer_load_ushort v{vdk[0]}, v{vzero}, s[{sX_}:{sX_+3}], s{sT2} offen")
    for p in range(3):
        for i, sr in enumerate(SP):
            a(f"buffer_load_ushort v{P[p][i]}, v{voff}, s[{sr}:{sr+3}], s{sT} offen offset:{128*p}")
    a(f"s_mul_i32 s{sBase}, s{sWave}, {CH_REG}")
    a(f"v_mul_u32_u24 v{vwr}, {KG_S}, v{lane}")
    a(f"v_add_u32 v{vwr}, s{sBase}, v{vwr}")
    a(f"v_bfe_u32 v{t0}, v{lane}, 2, 2")
    a(f"v_lshrrev_b32 v{t1}, 5, v{lane}")
    a(f"v_lshl_add_u32 v{t0}, v{t0}, 2, v{t1}")
    a(f"v_mul_u32_u24 v{t0}, {KG_S}, v{t0}")
    a(f"v_bfe_u32 v{t1}, v{lane}, 4, 1")
    a(f"v_lshl_add_u32 v{t0}, v{t1}, 5, v{t0}")
    a(f"v_and_b32 v{t1}, 3, v{lane}")
    a(f"v_lshl_add_u32 v{t0}, v{t1}, 3, v{t0}")
    a(f"v_add_u32 v{vrd}, s{sBase}, v{t0}")
    for i in (13, 15): a(f"v_mov_b32 v{Cr+i}, 0"); a(f"v_mov_b32 v{Ci+i}, 0")
    a("s_waitcnt vmcnt(0)")
    stamp(a, 1)
    a(f"v_lshlrev_b32 v{vdt}, 16, v{vdt}")
    a(f"v_mul_f32 v{t0}, {f32(LOG2E)}, v{vdt}")
    a(f"s_mov_b32 s{sT}, {f32(LOG2E)}")
    a(f"v_fma_f32 v{t1}, v{vdt}, s{sT}, -v{t0}")
    lo = LOG2E - struct.unpack("<f", struct.pack("<f", LOG2E))[0]
    a(f"v_fmac_f32 v{t1}, {f32(lo)}, v{vdt}")
    a(f"v_exp_f32 v{t0}, v{t0}")
    a(f"v_mul_f32 v{t1}, {f32(LN2)}, v{t1}")
    a(f"v_fma_f32 v{t0}, v{t0}, v{t1}, v{t0}")
    bf16r(a, vdt, t0)
    a(f"s_mov_b32 s{sCnt}, 0")
    def cmul(dst, e, m):
        if ENV("KPK", 0):
            a(f"v_pk_mul_f32 {v(T,2)}, {v(e,2)}, {v(m,2)} op_sel:[0,0] op_sel_hi:[0,1]")
            a(f"v_pk_fma_f32 {v(dst,2)}, {v(e,2)}, {v(m,2)}, {v(T,2)} op_sel:[1,1,0] op_sel_hi:[1,0,1] neg_lo:[0,1,0]")
        else:
            assert dst != e and dst != m
            a(f"v_mul_f32 v{dst}, v{e}, v{m}")
            a(f"v_mul_f32 v{dst+1}, v{e}, v{m+1}")
            a(f"v_fma_f32 v{dst}, -v{e+1}, v{m+1}, v{dst}")
            a(f"v_fmac_f32 v{dst+1}, v{e+1}, v{m}")
    def cexp(dst, scale):
        if scale == 1:
            a(f"v_exp_f32 v{t0}, v{a2b}")
            a(f"v_fract_f32 v{t1}, v{a2b+1}")
        else:
            a(f"v_mul_f32 v{t0}, {f32(float(scale))}, v{a2b}")
            a(f"v_mul_f32 v{t1}, {f32(float(scale))}, v{a2b+1}")
            a(f"v_exp_f32 v{t0}, v{t0}")
            a(f"v_fract_f32 v{t1}, v{t1}")
        a(f"v_cos_f32 v{dst}, v{t1}")
        a(f"v_sin_f32 v{dst+1}, v{t1}")
        a(f"v_mul_f32 v{dst}, v{dst}, v{t0}")
        a(f"v_mul_f32 v{dst+1}, v{dst+1}, v{t0}")
    def mfmas():
        for ks in range(8):
            a(f"v_mfma_f32_32x32x16_bf16 {v(accK,16)}, {v(FA[ks],4)}, {v(FB[ks],4)}, {v(accK,16)}")
    def cpair(dw, x, y):
        a(f"v_cvt_pk_bf16_f32 v{Cr+dw}, v{x}, v{y}")
        a(f"v_cvt_pk_bf16_f32 v{Ci+dw}, -v{x+1}, -v{y+1}")
    if ENV("XKG", 0): a("s_branch KG_after")
    a.label("KG_loop")
    a.flush_hist()
    _a = a
    if ENV("XKW", 0) or ENV("XKM", 0) or ENV("XKR", 0):
        class Filt:
            def __call__(self, t):
                if ENV("XKW", 0) and t.startswith("ds_write"): return
                if ENV("XKR", 0) and t.startswith("ds_read"): return
                if ENV("XKM", 0) and t.startswith("v_mfma"): return
                _a(t)
            def __getattr__(self, n): return getattr(_a, n)
        a = Filt()
    p0 = P[0]
    for i in range(4): a(f"v_lshlrev_b32 v{p0[i]}, 16, v{p0[i]}")
    a(f"v_lshlrev_b32 v{V}, 16, v{p0[4]}")
    a(f"v_lshlrev_b32 v{V+1}, 16, v{p0[5]}")
    a(f"v_mul_f32 v{p0[0]}, v{vdt}, v{p0[0]}")
    a(f"v_mul_f32 v{p0[1]}, v{vdt}, v{p0[1]}")
    a(f"v_mul_f32 v{T2}, v{vdt}, v{p0[2]}")
    a(f"v_mul_f32 v{T2+1}, v{vdt}, v{p0[3]}")
    a(f"v_mul_f32 v{a2b}, {f32(LOG2E)}, v{p0[0]}")
    a(f"v_mul_f32 v{a2b+1}, {f32(1.0/(2*math.pi))}, v{p0[1]}")
    cmul(W, V, T2)
    cexp(l8, 8); cexp(l1, 1); cexp(l256, 256)
    if STAMPS: a("s_memtime s[18:19]")
    a("s_waitcnt lgkmcnt(0)")
    if STAMPS:
        a(f"s_cmp_eq_u32 s{sCnt}, 1")
        a("s_cselect_b32 s82, s18, s82")
        a(f"s_cmp_eq_u32 s{sCnt}, 2")
        a("s_cselect_b32 s84, s18, s84")
    a(f"v_cvt_pk_bf16_f32 v{Qr[0]}, 1.0, v{l8}")
    a(f"v_cvt_pk_bf16_f32 v{Qi[0]}, 0, v{l8+1}")
    cur = l8
    for f in range(2, 32, 2):
        if f // 2 - 1 < 8:
            ks = f // 2 - 1
            a(f"v_mfma_f32_32x32x16_bf16 {v(accK,16)}, {v(FA[ks],4)}, {v(FB[ks],4)}, {v(accK,16)}")
        cmul(E0, cur, l8); cmul(E1, E0, l8); cur = E1
        g, dw = f // 8, (f % 8) // 2
        a(f"v_cvt_pk_bf16_f32 v{Qr[g%2]+dw}, v{E0}, v{E1}")
        a(f"v_cvt_pk_bf16_f32 v{Qi[g%2]+dw}, v{E0+1}, v{E1+1}")
        if dw == 3:
            a(f"ds_write_b128 v{vwr}, {v(Qr[g%2],4)} offset:{16*g}")
            a(f"ds_write_b128 v{vwr}, {v(Qi[g%2],4)} offset:{64+16*g}")
    cmul(E0, W, l1); cpair(0, W, E0)
    cmul(G2, E0, l1); cmul(E0, G2, l1); cpair(1, G2, E0)
    cmul(G4, E0, l1); cmul(E0, G4, l1); cpair(4, G4, E0)
    cmul(G6, E0, l1); cmul(E0, G6, l1); cpair(5, G6, E0)
    cmul(E0, G2, l256); cmul(E1, G6, l256); cpair(3, E0, E1)
    cmul(E0, G4, l256); cmul(E1, E0, l256); cpair(7, E0, E1)
    cmul(E0, E1, l256); cpair(11, E0, E0)
    cur = W
    dwv = {1: 2, 2: 6, 3: 10, 4: 8, 5: 9, 6: 12, 7: 14}
    for j in range(1, 8):
        nx = [E0, E2][j % 2]
        cmul(nx, cur, l256); cmul(E1, nx, l8); cpair(dwv[j], nx, E1); cur = nx
        if j in (1, 2):
            g = j - 1
            a(f"ds_write_b128 v{vwr}, {v(Cr+4*g,4)} offset:{128+16*g}")
            a(f"ds_write_b128 v{vwr}, {v(Ci+4*g,4)} offset:{192+16*g}")
        if j in (5, 7):
            g = {5: 2, 7: 3}[j]
            a(f"ds_write_b128 v{vwr}, {v(Cr+4*g,4)} offset:{128+16*g}")
            a(f"ds_write_b128 v{vwr}, {v(Ci+4*g,4)} offset:{192+16*g}")
    for ks in range(8):
        o = (16 * (ks >> 1) + 2 * (ks & 1)) * KG_S
        a(f"ds_read_b64_tr_b16 {v(FA[ks],2)}, v{vrd} offset:{o+128}")
        a(f"ds_read_b64_tr_b16 {v(FA[ks]+2,2)}, v{vrd} offset:{o+192}")
        a(f"ds_read_b64_tr_b16 {v(FB[ks],2)}, v{vrd} offset:{o}")
        a(f"ds_read_b64_tr_b16 {v(FB[ks]+2,2)}, v{vrd} offset:{o+64}")
    for i in range(6):
        a(f"v_mov_b32 v{P[0][i]}, v{P[1][i]}")
        a(f"v_mov_b32 v{P[1][i]}, v{P[2][i]}")
    a(f"s_cmp_eq_u32 s{sCnt}, 0")
    a(f"s_cselect_b32 s{sT}, 0, -1")
    for i in range(16): a(f"v_and_b32 v{accK+i}, s{sT}, v{accK+i}")
    if STAMPS and 0:
        a("s_memtime s[18:19]")
        a("s_waitcnt lgkmcnt(0)")
        a(f"s_cmp_eq_u32 s{sCnt}, 0")
        a("s_cselect_b32 s82, s18, s82")
        a(f"s_cmp_eq_u32 s{sCnt}, 1")
        a("s_cselect_b32 s84, s18, s84")
    a(f"s_add_u32 s{sCnt}, s{sCnt}, 1")
    a(f"s_cmp_lt_u32 s{sCnt}, 3")
    a("s_cbranch_scc1 KG_loop")
    a = _a
    a.label("KG_after")
    stamp(a, 2)
    a(f"buffer_load_dword v{vtok}, v{vzero}, s[{sDBG}:{sDBG+3}], 0 offen sc1")
    vJa = P[0][0]; vJb = P[0][1]; u0 = P[0][2]; u1 = P[0][3]
    a(f"v_and_b32 v{t0}, 31, v{lane}")
    a(f"v_lshlrev_b32 v{t0}, 4, v{t0}")
    a(f"v_lshrrev_b32 v{t1}, 5, v{lane}")
    a(f"v_lshl_add_u32 v{t2}, v{t1}, 9, v{t0}")
    a(f"s_add_u32 s{sT}, s{sBase}, 1008")
    a(f"v_sub_u32 v{vJa}, s{sT}, v{t2}")
    a(f"v_lshlrev_b32 v{t2}, 10, v{t1}")
    a(f"v_sub_u32 v{t2}, v{t2}, v{t0}")
    a(f"s_add_u32 s{sT}, s{sBase}, 496")
    a(f"v_add_u32 v{vJb}, s{sT}, v{t2}")
    Z = Qr[0]
    for i in range(4): a(f"v_mov_b32 v{Z+i}, 0")
    a(f"v_lshrrev_b32 v{u0}, 2, v{lane}")
    a(f"v_mul_u32_u24 v{u0}, {CV_S}, v{u0}")
    a(f"v_and_b32 v{u1}, 3, v{lane}")
    a(f"v_lshl_add_u32 v{u0}, v{u1}, 4, v{u0}")
    a(f"v_add_u32 v{u0}, s{sBase}, v{u0}")
    a("s_mov_b32 s18, 0xaaaaaaaa"); a("s_mov_b32 s19, 0xaaaaaaaa")
    a("s_waitcnt lgkmcnt(0)")
    mfmas()
    a("s_mov_b64 exec, 0xffff")
    a(f"ds_write_b128 v{u0}, {v(Z,4)} offset:4096")
    a("s_mov_b64 exec, -1")
    O = [Cr, Cr + 8, Ci, Ci + 8]
    ac = lambda i: accK + i
    def cv(d, lo_, hi_): a(f"v_cvt_pk_bf16_f32 v{d}, v{lo_}, v{hi_}")
    def seg3(o, e0, e1):
        a(f"v_cndmask_b32 v{t0}, v{e0}, v{e1}, s[18:19]")
        cv(o, e1, e1); cv(o + 1, e1, t0); cv(o + 2, e0, e0); cv(o + 3, e0, e0)
    def seg2(o, e0, e1, e2):
        cv(o, e2, e2); cv(o + 1, e1, e1); cv(o + 2, e1, e0); cv(o + 3, e0, e0)
    seg3(O[3], ac(12), ac(13))
    a(f"v_lshlrev_b32 v{vdk[0]}, 16, v{vdk[0]}")
    a("s_mov_b64 exec, 1")
    a(f"v_add_f32 v{ac(0)}, v{ac(0)}, v{vdk[0]}")
    a("s_mov_b32 exec_lo, -1")
    for m in range(4): cv(O[0] + m, ac(7 - 2*m), ac(6 - 2*m))
    seg3(O[1], ac(8), ac(9)); seg3(O[2], ac(10), ac(11))
    a("s_mov_b32 exec_hi, -1")
    a("s_mov_b32 exec_lo, 0")
    cv(O[0], ac(1), ac(3)); cv(O[0] + 1, ac(6), ac(6)); cv(O[0] + 2, ac(6), ac(2)); cv(O[0] + 3, ac(0), ac(0))
    seg2(O[1], ac(4), ac(7), ac(5)); seg2(O[2], ac(8), ac(10), ac(9))
    a("s_mov_b32 exec_lo, -1")
    adr = [(vJa, 3072), (vJb, 1536), (vJb, 1024), (vJa, 0)]
    for p in range(4):
        a(f"ds_write_b128 v{adr[p][0]}, {v(O[p],4)} offset:{adr[p][1]}")
    for p in range(4):
        a(f"ds_read_b64 {v(O[p]+4,2)}, v{adr[p][0]} offset:{adr[p][1]+16}")
    stamp(a, 11)
    a("s_waitcnt vmcnt(0)")
    check_token(a, vtok, vzero)
    a("s_waitcnt lgkmcnt(0)")
    for p in range(4):
        Kt = [FA[(3*p + c) % 8] for c in range(3)]
        kin = O[p]
        for k in range(4): a(f"v_alignbyte_b32 v{Kt[0]+k}, v{kin+k+1}, v{kin+k}, 2")
        for k in range(4): a(f"v_mov_b32 v{Kt[1]+k}, v{kin+k+1}")
        for k in range(4): a(f"v_alignbyte_b32 v{Kt[2]+k}, v{kin+k+2}, v{kin+k+1}, 2")
        for c in range(3): a(f"ds_write_b128 v{adr[p][0]}, {v(Kt[c],4)} offset:{adr[p][1] + (c+1)*CV_S}")
    a("s_branch S_join")
    hi = R.hi

    a.label("S_w2t"); a.flush_hist()
    toks = {}
    a("s_waitcnt lgkmcnt(0)")
    a(f"v_mov_b32 v{vtok}, 0")
    check_token(a, vtok, vzero, sleep=32)
    a("s_branch S_join")

    a.label("S_ln"); a.flush_hist()
    R.reset(base)
    voff = R(); vlw = R(); vtr = R()
    Xr = [R(4, 4) for _ in range(10)]
    U = [R(2, 2) for _ in range(40)]
    sm = R(2, 2); mb = R(2, 2); rs = R(2, 2); T = [R(2, 2) for _ in range(4)]; gr = R(2, 2)
    ones = R()
    O = [R(4, 4) for _ in range(4)]
    a(f"s_load_dwordx2 s[{sX_}:{sX_+1}], s[0:1], 0")
    a("s_memrealtime s[18:19]")
    srd(a, sX_, L * D * 2)
    a(f"v_lshrrev_b32 v{t0}, 3, v{lane}")
    a(f"v_and_b32 v{t1}, 7, v{lane}")
    a(f"v_lshlrev_b32 v{t1}, 4, v{t1}")
    a(f"v_mul_u32_u24 v{voff}, 1280, v{t0}")
    a(f"v_add_u32 v{voff}, v{voff}, v{t1}")
    a(f"v_mul_u32_u24 v{vlw}, {LN_S}, v{t0}")
    a(f"v_add_u32 v{vlw}, v{vlw}, v{t1}")
    a(f"v_add_u32 v{vlw}, {LN_OFF}, v{vlw}")
    a(f"s_lshl_b32 s{sT3}, s{sXc}, 5")
    a(f"s_add_u32 s{sT3}, s{sT3}, s{sA}")
    a(f"s_mul_i32 s{sT}, s{sT3}, {8*1280}")
    a("s_waitcnt lgkmcnt(0)")
    a(f"s_cmp_ge_u32 s2, 8")
    a("s_cbranch_scc1 S_ln_nt")
    a("s_or_b32 s18, s18, 1")
    a(f"v_mov_b32 v{gr}, s18")
    a(f"v_mov_b32 v{gr+1}, 0")
    a("s_mov_b64 exec, 1")
    a(f"buffer_atomic_cmpswap {v(gr,2)}, v{vzero}, s[{sDBG}:{sDBG+3}], 0 offen"); a.vm -= 1
    a("s_mov_b64 exec, -1")
    a.label("S_ln_nt")
    for i in range(10):
        a(f"buffer_load_dwordx4 {v(Xr[i],4)}, v{voff}, s[{sX_}:{sX_+3}], s{sT} offen offset:{128*i}")
    a(f"v_mov_b32 v{ones}, 0x3f803f80")
    a(f"v_mov_b32 v{sm}, 0")
    a("s_waitcnt vmcnt(0)")
    stamp(a, 1)
    a(f"buffer_load_dword v{vtok}, v{vzero}, s[{sDBG}:{sDBG+3}], 0 offen sc1")
    for i in range(40):
        a(f"v_dot2_f32_bf16 v{sm}, v{Xr[i//4] + i%4}, v{ones}, v{sm}")
    def red8(r_):
        a(f"v_add_f32_dpp v{r_}, v{r_}, v{r_} quad_perm:[1,0,3,2] row_mask:0xf bank_mask:0xf")
        a(f"v_add_f32_dpp v{r_}, v{r_}, v{r_} quad_perm:[2,3,0,1] row_mask:0xf bank_mask:0xf")
        a(f"v_add_f32_dpp v{r_}, v{r_}, v{r_} row_half_mirror row_mask:0xf bank_mask:0xf")
    for i in range(40):
        x = Xr[i//4] + i % 4
        a(f"v_lshlrev_b32 v{U[i]}, 16, v{x}")
        a(f"v_and_b32 v{U[i]+1}, 0xffff0000, v{x}")
    red8(sm)
    a(f"v_mul_f32 v{sm}, {f32(1.0/D)}, v{sm}")
    bf16r(a, mb, sm)
    a(f"v_mov_b32 v{rs}, 0"); a(f"v_mov_b32 v{rs+1}, 0")
    for i in range(40):
        if ENV("LPK", 1):
            a(f"v_pk_add_f32 {v(U[i],2)}, {v(U[i],2)}, {v(mb,2)} op_sel_hi:[1,0] neg_lo:[0,1] neg_hi:[0,1]")
            a(f"v_pk_fma_f32 {v(rs,2)}, {v(U[i],2)}, {v(U[i],2)}, {v(rs,2)}")
        else:
            for h in range(2):
                a(f"v_sub_f32 v{U[i]+h}, v{U[i]+h}, v{mb}")
                a(f"v_fmac_f32 v{rs+h}, v{U[i]+h}, v{U[i]+h}")
    a(f"v_add_f32 v{rs}, v{rs}, v{rs+1}")
    red8(rs)
    a(f"v_sub_f32 v{t0}, v{sm}, v{mb}")
    a(f"v_mul_f32 v{t0}, v{t0}, v{t0}")
    a(f"v_mul_f32 v{rs}, {f32(1.0/D)}, v{rs}")
    a(f"v_sub_f32 v{rs}, v{rs}, v{t0}")
    a(f"v_max_f32 v{rs}, 0, v{rs}")
    bf16r(a, rs, rs)
    a(f"v_add_f32 v{rs}, {f32(1e-5)}, v{rs}")
    bf16r(a, rs, rs)
    a(f"v_sqrt_f32 v{rs}, v{rs}")
    a(f"v_cvt_pk_bf16_f32 v{gr}, v{mb}, v{rs}")
    a(f"v_and_b32 v{rs}, 0xffff0000, v{gr}")
    a(f"v_rcp_f32 v{rs}, v{rs}")
    for i in range(40):
        x = Xr[i//4] + i % 4
        if ENV("LPK", 1): a(f"v_pk_mul_f32 {v(U[i],2)}, {v(U[i],2)}, {v(rs,2)} op_sel_hi:[1,0]")
        else:
            for h in range(2): a(f"v_mul_f32 v{U[i]+h}, v{U[i]+h}, v{rs}")
        a(f"v_cvt_pk_bf16_f32 v{x}, v{U[i]}, v{U[i]+1}")
        if i % 4 == 3:
            a(f"ds_write_b128 v{vlw}, {v(Xr[i//4],4)} offset:{128*(i//4)}")
    a(f"v_bfe_u32 v{t1}, v{lane}, 2, 2")
    a(f"v_mul_u32_u24 v{t1}, {LN_S}, v{t1}")
    a(f"v_lshrrev_b32 v{t0}, 4, v{lane}")
    a(f"v_lshl_add_u32 v{t1}, v{t0}, 5, v{t1}")
    a(f"v_and_b32 v{t2}, 3, v{lane}")
    a(f"v_lshl_add_u32 v{t1}, v{t2}, 3, v{t1}")
    a(f"v_add_u32 v{vtr}, {LN_OFF}, v{t1}")
    a(f"s_mul_i32 s{sT}, s{sT3}, 10240")
    def rd(i):
        o = O[i % 4]
        for e in range(2):
            a(f"ds_read_b64_tr_b16 {v(o+2*e,2)}, v{vtr} offset:{128*i + 4*e*LN_S}")
        toks[i] = a.ltok()
    for i in range(3): rd(i)
    for i in range(10):
        if i + 3 < 10: rd(i + 3)
        a.wait(lg=toks[i])
        a(f"buffer_store_dwordx4 {v(O[i%4],4)}, v{v16}, s[{sWS}:{sWS+3}], s{sT} offen sc1")
        a(f"s_add_u32 s{sT}, s{sT}, 1024")
    a("s_waitcnt vmcnt(10)")
    check_token(a, vtok, vzero)
    a(f"v_mov_b32 v{gr+1}, s{sTok}")
    a(f"s_lshl_b32 s{sT}, s{sT3}, 7")
    a(f"s_add_u32 s{sT2}, s{sT}, {WS_STAT}")
    a("s_mov_b32 exec_lo, 0x01010101"); a("s_mov_b32 exec_hi, 0x01010101")
    a(f"buffer_store_dwordx2 {v(gr,2)}, v{lane}, s[{sWS}:{sWS+3}], s{sT2} offen sc1")
    a(f"s_add_u32 s{sT}, s{sT}, {WS_FLN}")
    a("s_waitcnt vmcnt(0)")
    a("s_mov_b64 exec, 1")
    a(f"buffer_store_dword v{gr+1}, v{vzero}, s[{sWS}:{sWS+3}], s{sT} offen sc1")
    a("s_mov_b64 exec, -1")
    stamp(a, 2)
    if ONLY: a("s_branch S_end")
    a(f"v_mul_u32_u24 v{t0}, 10240, v{lane}")
    a(f"v_lshlrev_b32 v{t1}, 7, v{lane}")
    a(f"s_cmp_eq_u32 s{sHeavy}, 0")
    a(f"s_cselect_b32 s{sCnt}, s{sD[0]}, s{sD[2]}")
    if ENV("UPF", 0):
        a(f"s_lshl_b32 s{sT3}, s{sA}, 10")
        a(f"s_add_u32 s{sT3}, s{sT3}, {WS_FLN}")
        a(f"v_mov_b32 v{O[1]}, s{sTok}")
        ldu = lambda: a(f"buffer_load_dword v{O[1]}, v{t1}, s[{sWS}:{sWS+3}], s{sT3} offen sc1")
        a(f"s_sleep {ENV('USL0', 16)}")
        a("s_mov_b64 exec, 0xff"); ldu(); a("s_mov_b64 exec, -1")
        a(f"v_lshrrev_b32 v{t2}, 3, v{lane}")
        a(f"v_mul_u32_u24 v{t2}, 10240, v{t2}")
        a(f"v_and_b32 v{t3}, 7, v{lane}")
        a(f"v_lshl_add_u32 v{t2}, v{t3}, 7, v{t2}")
        a("s_waitcnt vmcnt(0)")
        check_flags(a, [O[1]], t1, ldu, sleep=ENV("USL1", 12))
        a(f"s_mul_i32 s{sT}, s{sA}, {8*10240}")
        a(f"s_lshl_b32 s{sT2}, s{sXc}, 10")
        a(f"s_add_u32 s{sT2}, s{sT2}, s{sT}")
        for q_ in range(4):
            m_ = 0xffff << (16 * q_)
            a(f"s_mov_b32 exec_lo, {hex(m_ & 0xffffffff)}"); a(f"s_mov_b32 exec_hi, {hex(m_ >> 32)}")
            a(f"buffer_load_dword v{O[1]+1}, v{t2}, s[{sWS}:{sWS+3}], s{sT2} offen sc1")
            a(f"s_sleep {ENV('USL2', 4)}")
        a(f"s_lshl_b32 s{sT2}, s{sXc}, 8")
        a(f"s_add_u32 s{sT2}, s{sT2}, s{sT}")
        a(f"s_add_u32 s{sT2}, s{sT2}, 8192")
        a("s_mov_b32 exec_lo, 0x03030303"); a("s_mov_b32 exec_hi, 0x03030303")
        a(f"buffer_load_dword v{O[1]+1}, v{t2}, s[{sWS}:{sWS+3}], s{sT2} offen sc1")
        a("s_mov_b64 exec, -1")
        stamp(a, 11)
    a(f"s_lshl_b32 s{sT3}, s2, 7")
    a(f"s_add_u32 s{sT3}, s{sT3}, {WS_FPACE}")
    a(f"s_mov_b32 s{sSpin}, 0")
    a("s_mov_b64 exec, 1")
    a.label("S_pace")
    a(f"s_sleep {ENV('PSLEEP', 8)}")
    a(f"buffer_load_dword v{t2}, v{vzero}, s[{sWS}:{sWS+3}], s{sT3} offen sc1")
    a("s_waitcnt vmcnt(0)")
    a(f"v_readfirstlane_b32 s{sT}, v{t2}")
    a(f"s_cmp_eq_u32 s{sT}, s{sTok}")
    a("s_cbranch_scc1 S_paced")
    a(f"s_add_u32 s{sSpin}, s{sSpin}, 1")
    a(f"s_cmp_lt_u32 s{sSpin}, {ENV('PMAX', 24)}")
    a("s_cbranch_scc1 S_pace")
    a.label("S_paced")
    a("s_mov_b64 exec, -1")
    stamp(a, 10)
    for g in range(4):
        a(f"s_mov_b32 s{sT3}, {WS_FLN + 8192*g}")
        a(f"buffer_load_dword v{O[0]+g}, v{t1}, s[{sWS}:{sWS+3}], s{sT3} offen sc1")
    a("s_waitcnt vmcnt(0)")
    for g in range(4):
        a(f"s_mov_b32 s{sT3}, {WS_FLN + 8192*g}")
        ldf = lambda: a(f"buffer_load_dword v{O[0]+g}, v{t1}, s[{sWS}:{sWS+3}], s{sT3} offen sc1")
        check_flags(a, [O[0] + g], t1, ldf, sleep=ENV("LNSLEEP", 6))
    stamp(a, 9)
    Uq_ = [U[0] + 4 * i for i in range(12)]
    assert U[0] % 4 == 0
    a(f"v_lshrrev_b32 v{t1}, 1, v{lane}")
    a(f"v_and_b32 v{t3}, 1, v{lane}")
    a(f"v_mul_u32_u24 v{t2}, 10240, v{t1}")
    a(f"v_lshl_add_u32 v{t2}, v{t3}, 4, v{t2}")
    a(f"v_mul_u32_u24 v{t3}, 4608, v{t3}")
    a(f"v_lshl_add_u32 v{t3}, v{t1}, 4, v{t3}")
    a(f"s_lshl_b32 s{sT}, s{sD[0]}, 4")
    for g in range(8):
        if g: a(f"s_add_u32 s{sT}, s{sT}, {32*10240}")
        a(f"buffer_load_dwordx4 {v(Uq_[g],4)}, v{t2}, s[{sWS}:{sWS+3}], s{sT} offen sc1")
    a(f"s_cmp_eq_u32 s{sHeavy}, 0")
    a("s_cbranch_scc1 S_g2")
    a(f"s_lshl_b32 s{sT}, s{sD[2]}, 4")
    for g in range(4):
        if g: a(f"s_add_u32 s{sT}, s{sT}, {64*10240}")
        a(f"buffer_load_dwordx4 {v(Uq_[8+g],4)}, v{t0}, s[{sWS}:{sWS+3}], s{sT} offen sc1")
    a("s_waitcnt vmcnt(0)")
    for g in range(4):
        a(f"ds_write_b128 v{v16}, {v(Uq_[8+g],4)} offset:{CV_U[2] + 1024*g}")
    a.label("S_g2")
    for g in range(8):
        a(f"s_waitcnt vmcnt({7-g})")
        a(f"ds_write_b128 v{t3}, {v(Uq_[g],4)} offset:{CV_U[0] + 512*g}")
    stamp(a, 4)
    hi = max(hi, R.hi)

    a.label("S_join"); a.flush_hist()
    if ONLY: a("s_branch S_end")
    if ENV("SPRIO", 0): a(f"s_setprio {ENV('SPRIO', 0)}")
    stamp(a, 3)
    R.reset(base)
    acc = [R(4, 4) for _ in range(8)]
    FA = [[R(4, 4) for _ in range(8)] for _ in range(2)]
    FB = [[R(4, 4) for _ in range(8)] for _ in range(2)]
    vA = R(); vBq = R(); vA0 = R(); vB0 = R(); vrw = R(); vrr = R(); vfl = R(); vfa = R(); vtk = R()
    a(f"s_and_b32 s{sPar}, s{sWave}, 1")
    Z = FB[0][3]
    for i in range(4): a(f"v_mov_b32 v{Z+i}, 0")
    a(f"s_min_u32 s{sT}, s{sWave}, 2")
    a(f"s_mul_i32 s{sT}, s{sT}, 4608")
    a(f"v_add_u32 v{t2}, s{sT}, v{v16}")
    a("s_mov_b32 exec_hi, 0")
    a(f"ds_write_b128 v{t2}, {v(Z,4)} offset:{CV_U[0]-512}")
    a("s_mov_b32 exec_hi, -1")
    a(f"v_and_b32 v{t0}, 15, v{lane}")
    a(f"v_sub_u32 v{t2}, 15, v{t0}")
    a(f"v_and_b32 v{t3}, 3, v{t2}")
    a(f"v_sub_u32 v{t2}, v{t2}, v{t3}")
    a(f"v_mul_u32_u24 v{t3}, {CV_S}, v{t3}")
    a(f"v_lshl_add_u32 v{t3}, v{t2}, 1, v{t3}")
    a(f"v_lshrrev_b32 v{t2}, 4, v{lane}")
    a(f"v_lshl_add_u32 v{vA0}, v{t2}, 4, v{t3}")
    a(f"v_lshlrev_b32 v{t3}, 4, v{t2}")
    a(f"v_lshl_add_u32 v{vB0}, v{t0}, 5, v{t3}")
    a(f"v_lshrrev_b32 v{t3}, 1, v{t2}")
    a(f"v_lshlrev_b32 v{t3}, 3, v{t3}")
    a(f"v_xor_b32 v{t3}, v{t3}, v{t0}")
    a(f"v_lshlrev_b32 v{t3}, 4, v{t3}")
    a(f"v_lshl_add_u32 v{t3}, v{t2}, 8, v{t3}")
    a(f"s_lshl_b32 s{sT}, s{sWave}, 13")
    a(f"v_add_u32 v{vrw}, s{sT}, v{t3}")
    a(f"v_bfe_u32 v{t0}, v{lane}, 1, 4")
    a(f"v_and_b32 v{t2}, 1, v{lane}")
    a(f"v_lshlrev_b32 v{t3}, 3, v{t2}")
    a(f"v_xor_b32 v{t0}, v{t0}, v{t3}")
    a(f"v_lshlrev_b32 v{t0}, 4, v{t0}")
    a(f"v_lshl_add_u32 v{t0}, v{t2}, 9, v{t0}")
    a(f"v_lshrrev_b32 v{t2}, 5, v{lane}")
    a(f"v_lshl_add_u32 v{vrr}, v{t2}, 10, v{t0}")
    a(f"v_mov_b32 v{vtk}, s{sTok}")
    a(f"s_mul_i32 s{sT}, s{sSlot}, {CH_REG}")
    a(f"s_lshl_b32 s{sT2}, s{sPar}, 8")
    a(f"s_sub_u32 s{sT}, s{sT}, s{sT2}")
    a(f"s_add_u32 s{sT}, s{sT}, {32*14}")
    a(f"v_add_u32 v{vA}, s{sT}, v{vA0}")
    a(f"s_mul_i32 s{sT}, s{sSlot}, 4608")
    a(f"s_sub_u32 s{sT}, s{sT}, s{sT2}")
    a(f"s_add_u32 s{sT}, s{sT}, {CV_U[0] - 512 + 32*15}")
    a(f"v_add_u32 v{vBq}, s{sT}, v{vB0}")
    sDa, sDb, sJa, sJb = 20, 21, 22, 23
    a(f"s_lshl_b32 s{sT3}, s{sWave}, 7")
    a(f"s_sub_u32 s{sJb}, s{sT}, 192")
    a(f"s_sub_u32 s{sJb}, s{sJb}, {CV_U[2] - 512 + 32*15}")
    a(f"s_add_u32 s{sJb}, s{sJb}, s{sT3}")
    a(f"s_mul_i32 s{sJa}, s{sSlot}, {CH_REG}")
    a(f"s_sub_u32 s{sJa}, s{sJa}, s{sT2}")
    a(f"s_sub_u32 s{sJa}, s{sJa}, {192 + 2*CH_REG}")
    a(f"s_add_u32 s{sJa}, s{sJa}, s{sT3}")
    acc1 = [R(4, 4) for _ in range(8)]
    for c in range(8):
        for i in range(4):
            a(f"v_mov_b32 v{acc[c]+i}, 0"); a(f"v_mov_b32 v{acc1[c]+i}, 0")
    a(f"s_mov_b32 s{sCnt}, 0")
    a(f"s_add_u32 s{sRound}, s{sHeavy}, 2")
    a("s_waitcnt vmcnt(0) lgkmcnt(0)")
    a("s_barrier")
    stamp(a, 5)

    def rdlist(st, da="64", db="64"):
        rd_ = []
        for j in range(8):
            rd_.append(f"ds_read_b128 {v(FB[st][j],4)}, v{vBq} offset:{512*j}")
            rd_.append(f"ds_read_b64 {v(FA[st][j],2)}, v{vA} offset:{512*(7-j)}")
            rd_.append(f"ds_read_b64 {v(FA[st][j]+2,2)}, v{vA} offset:{512*(7-j)+8}")
        rd_.append(f"v_subrev_u32 v{vA}, {da}, v{vA}")
        rd_.append(f"v_subrev_u32 v{vBq}, {db}, v{vBq}")
        return rd_
    def group(st, nxt, da="64", db="64"):
        pairs = sorted([(c, j) for c in range(8) for j in range(c + 1)], key=lambda cj: (max(cj[1], cj[0] - cj[1]), cj[0]))
        rd_ = rdlist(nxt, da, db)
        for i, (c, j) in enumerate(pairs):
            a(f"v_mfma_f32_16x16x32_bf16 {v(acc[c],4)}, {v(FA[st][j],4)}, {v(FB[st][c-j],4)}, {v(acc[c],4)}")
            if i < len(rd_): a(rd_[i])
    for x in rdlist(0): a(x)
    a.label("CV_loop")
    a(f"s_cmp_eq_u32 s{sCnt}, 1")
    a(f"s_cselect_b32 s{sDa}, s{sJa}, 64")
    a(f"s_cselect_b32 s{sDb}, s{sJb}, 64")
    a("s_waitcnt lgkmcnt(0)")
    group(0, 1, f"s{sDa}", f"s{sDb}")
    a("s_waitcnt lgkmcnt(0)")
    group(1, 0)
    a(f"s_add_u32 s{sCnt}, s{sCnt}, 1")
    a(f"s_cmp_eq_u32 s{sCnt}, 1")
    a("s_cbranch_scc1 CV_loop")
    a(f"s_cmp_eq_u32 s{sCnt}, 3")
    a("s_cbranch_scc1 CV_done")
    for c in range(8):
        for i in range(4): a(f"v_swap_b32 v{acc[c]+i}, v{acc1[c]+i}")
    a(f"s_cmp_lg_u32 s{sHeavy}, 0")
    a("s_nop 0")
    a("s_cbranch_scc1 CV_loop")
    a.label("CV_done")
    a("s_nop 7")
    a("s_waitcnt lgkmcnt(0)")
    a("s_barrier")
    stamp(a, 6)
    for c in range(8):
        a(f"ds_write_b128 v{vrw}, {v(acc1[c],4)} offset:{1024*c}")
    a(f"s_cmp_eq_u32 s{sHeavy}, 0")
    a("s_cbranch_scc1 CV_w1")
    for c in range(8):
        a(f"ds_write_b128 v{vrw}, {v(acc[c],4)} offset:{32768 + 1024*c}")
    a.label("CV_w1")
    a(f"s_lshl_b32 s{sT}, s{sSlot}, 14")
    a(f"s_lshl_b32 s{sT2}, s{sPar}, 12")
    a(f"s_add_u32 s{sT}, s{sT}, s{sT2}")
    a(f"v_add_u32 v{t0}, s{sT}, v{vrr}")
    a(f"s_lshl_b32 s{sT}, s{sWave}, 11")
    a(f"v_add_u32 v{t1}, s{sT}, v{vrr}")
    a(f"s_add_u32 s{sT}, s{sD[0]}, s{sSlot}")
    a(f"s_lshl_b32 s{sT3}, s{sT}, 12")
    a(f"s_lshl_b32 s{sT2}, s{sPar}, 11")
    a(f"s_add_u32 s{sT3}, s{sT3}, s{sT2}")
    a(f"s_add_u32 s{sT3}, s{sT3}, {WS_ST}")
    a(f"s_lshl_b32 s{sT}, s{sT}, 7")
    a(f"s_lshl_b32 s{sT2}, s{sPar}, 3")
    a(f"s_add_u32 s{sT}, s{sT}, s{sT2}")
    a(f"s_add_u32 s{sJa}, s{sT}, {WS_FST}")
    a(f"v_lshlrev_b32 v{t2}, 2, v{lane}")
    a("s_waitcnt lgkmcnt(0)")
    a("s_barrier")
    stamp(a, 7)
    Rd = FA[1]; Re = FA[0]
    for b in range(2):
        for p in range(2):
            for e in range(2):
                a(f"ds_read_b128 {v(Rd[(b*2+p)*2+e],4)}, v{t0} offset:{8192*p + 2048*b + 256*e}")
    for p in range(4):
        for e in range(2):
            a(f"ds_read_b128 {v(Re[p*2+e],4)}, v{t1} offset:{32768 + 8192*p + 256*e}")
    def finish(Rr, bs, npart, o):
        for p in range(1, npart):
            for e in range(2):
                for z in range(4):
                    a(f"v_add_f32 v{Rr[bs+e]+z}, v{Rr[bs+e]+z}, v{Rr[bs+2*p+e]+z}")
        for m in range(4):
            y = Rr[bs + m // 2] + 2 * (m % 2)
            a(f"v_cvt_pk_bf16_f32 v{o+m}, v{y}, v{y+1}")
    for b in range(2):
        a(f"s_waitcnt lgkmcnt({12 - 4*b})")
        finish(Rd, 4 * b, 2, FB[1][b])
        a(f"buffer_store_dwordx4 {v(FB[1][b],4)}, v{v16}, s[{sWS}:{sWS+3}], s{sT3} offen offset:{1024*b} sc1")
    a(f"s_cmp_eq_u32 s{sHeavy}, 0")
    a("s_cbranch_scc1 CV_f1")
    a(f"s_lshl_b32 s{sT3}, s{sWave}, 10")
    a(f"s_lshl_b32 s{sT}, s{sD[2]}, 12")
    a(f"s_add_u32 s{sT2}, s{sT3}, s{sT}")
    a(f"s_add_u32 s{sT2}, s{sT2}, {WS_ST}")
    a("s_waitcnt lgkmcnt(0)")
    finish(Re, 0, 4, FB[1][2])
    a(f"buffer_store_dwordx4 {v(FB[1][2],4)}, v{v16}, s[{sWS}:{sWS+3}], s{sT2} offen sc1")
    a(f"s_lshl_b32 s{sT}, s{sD[2]}, 7")
    a(f"s_lshl_b32 s{sT2}, s{sWave}, 2")
    a(f"s_add_u32 s{sT}, s{sT}, s{sT2}")
    a(f"s_add_u32 s{sT}, s{sT}, {WS_FST}")
    a("s_waitcnt vmcnt(0)")
    a("s_mov_b64 exec, 1")
    a(f"buffer_store_dword v{vtk}, v{vzero}, s[{sWS}:{sWS+3}], s{sT} offen sc1")
    a("s_branch CV_f2")
    a.label("CV_f1")
    a("s_waitcnt vmcnt(0)")
    a.label("CV_f2")
    a("s_mov_b64 exec, 3")
    a(f"buffer_store_dword v{vtk}, v{t2}, s[{sWS}:{sWS+3}], s{sJa} offen sc1")
    a.label("S_end")
    stamp_end(a, sWave)
    return max(hi, R.hi)

W_SLOT = 12288
X_OFF = 3 * W_SLOT
X_WAVE = 11264
NXU = 5
def g_role(a):
    sX, sW1, sB1, sOUT, sW2 = 20, 24, 28, 32, 52
    sRB, sCB, sTB, sJD, sId = 36, 37, 38, 39, 3
    sP = [40, 41, 42]
    sWoff, sXoff, sM0w, sM0x, sOA, sOB = 43, 44, 45, 46, 47, 48
    R = Alloc(1)
    lane = R(); t0 = R(); t1 = R(); t2 = R(); t3 = R(); vzero = R(); vtok = R(); v16 = R(); vfa = R()
    vfl = R(); vsa = R()
    NWR = 25
    NWI = 18
    WR = [R(4, 4) for _ in range(NWR)]
    base2 = pool = R.mark()
    R.reset(184)
    acc = [[R(4, 4) for ct in range(2)] for rt in range(6)]
    cs = [R(4, 4) for _ in range(2)]
    st = [R(2, 2) for _ in range(2)]
    b1p = [R(2, 2) for _ in range(6)]
    R.reset(WR[NWI]); R.limit = 184
    A = [[R(4, 4) for rt in range(6)] for _ in range(2)]
    X = [[[R(4, 4) for ct in range(2)] for e in range(2)] for _ in range(2)]
    ones = R(4, 4)
    vE = [R() for _ in range(3)]; vO = [R() for _ in range(3)]
    vW = [R() for _ in range(3)]; vXs = [R(), R()]; vXr = [R(), R()]
    vpf = R(); vpd = R()
    stamp_begin(a)
    if ENV("GPRIO", 0): a(f"s_setprio {ENV('GPRIO', 0)}")
    a(f"s_load_dwordx2 s[{sX}:{sX+1}], s[0:1], 0")
    a(f"s_load_dwordx2 s[{sW1}:{sW1+1}], s[0:1], 80")
    a(f"s_load_dwordx2 s[{sW2}:{sW2+1}], s[0:1], 96")
    a(f"v_lshrrev_b32 v{t0}, 6, v0")
    a(f"v_and_b32 v{lane}, 63, v0")
    a(f"v_readfirstlane_b32 s{sWave}, v{t0}")
    a(f"s_sub_u32 s{sId}, s2, 256")
    if ENV("CPF", 0):
        a("s_getpc_b64 s[18:19]")
        a("s_and_b32 s18, s18, 0xffffff00")
        a(f"s_lshr_b32 s{sT3}, s{sId}, 3")
        a(f"s_lshl_b32 s{sT3}, s{sT3}, 10")
        a(f"s_add_u32 s18, s18, s{sT3}")
        a(f"s_addc_u32 s19, s19, 0")
        a(f"v_lshrrev_b32 v{A[0][0]}, 5, v0")
        a(f"v_lshlrev_b32 v{A[0][0]}, 7, v{A[0][0]}")
        a(f"v_mov_b32 v{A[0][0]+1}, s19")
        a(f"v_add_co_u32 v{A[0][0]}, vcc, s18, v{A[0][0]}")
        a(f"v_addc_co_u32 v{A[0][0]+1}, vcc, 0, v{A[0][0]+1}, vcc")
        a("s_mov_b32 exec_lo, 1"); a("s_mov_b32 exec_hi, 1")
        a(f"global_load_dword v{vpd}, {v(A[0][0],2)}, off")
        a("s_mov_b64 exec, -1")
    srd(a, sX, L * D * 2); srd(a, sW1, D * F * 2)
    pfx = A[1][0]; pfw = A[1][0] + 1
    a(f"s_lshr_b32 s{sT3}, s{sId}, 3")
    a(f"s_lshl_b32 s{sT3}, s{sT3}, 2")
    a(f"s_add_u32 s{sT3}, s{sT3}, s{sWave}")
    a(f"v_mul_u32_u24 v{t1}, 0xaaab, v{lane}")
    a(f"v_lshrrev_b32 v{t1}, 18, v{t1}")
    a(f"v_mul_u32_u24 v{t2}, 6, v{t1}")
    a(f"v_sub_u32 v{t2}, v{lane}, v{t2}")
    a(f"v_mul_u32_u24 v{t1}, {64*3072}, v{t1}")
    a(f"v_lshl_add_u32 v{t1}, v{t2}, 7, v{t1}")
    a(f"s_lshr_b32 s{sT2}, s{sT3}, 1")
    a(f"s_mul_i32 s{sT2}, s{sT2}, 3072")
    a(f"s_and_b32 s{sT}, s{sId}, 1")
    a(f"s_lshl_b32 s{sT}, s{sT}, 1")
    a(f"s_and_b32 s{sRB}, s{sT3}, 1")
    a(f"s_add_u32 s{sT}, s{sT}, s{sRB}")
    a(f"s_mul_i32 s{sT}, s{sT}, 768")
    a(f"s_add_u32 s{sT2}, s{sT2}, s{sT}")
    a(f"v_add_u32 v{pfw}, s{sT2}, v{t1}")
    a(f"v_lshrrev_b32 v{t2}, 2, v{lane}")
    a(f"v_lshlrev_b32 v{t2}, 7, v{t2}")
    a(f"v_and_b32 v{t3}, 3, v{lane}")
    a(f"v_mul_u32_u24 v{t3}, 1280, v{t3}")
    a(f"v_add_u32 v{t2}, v{t2}, v{t3}")
    a(f"s_bfe_u32 s{sT}, s{sId}, 0x20001")
    a(f"s_lshl_b32 s{sT}, s{sT}, 7")
    a(f"s_add_u32 s{sT}, s{sT}, s{sT3}")
    a(f"s_mul_i32 s{sT}, s{sT}, {4*1280}")
    a(f"v_add_u32 v{pfx}, s{sT}, v{t2}")
    a("s_waitcnt lgkmcnt(0)")
    stamp(a, 1)
    def do_pf(c0, c1):
        def mask(lo, hi):
            m = ((1 << hi) - 1) & ~((1 << lo) - 1)
            a(f"s_mov_b32 exec_lo, {hex(m & 0xffffffff)}"); a(f"s_mov_b32 exec_hi, {hex(m >> 32)}")
        mask(4 * c0, 4 * c1)
        a(f"buffer_load_dword v{vpd}, v{pfx}, s[{sX}:{sX+3}], 0 offen")
        mask(6 * c0, 6 * c1)
        a(f"buffer_load_dword v{vpd}, v{pfw}, s[{sW1}:{sW1+3}], 0 offen")
        a("s_mov_b64 exec, -1")
    PFA_ = ENV("PFSPLIT", 3)
    do_pf(0, PFA_)
    srd(a, sW2, F * D * 2)
    a(f"s_mul_i32 s{sT}, s{sT3}, {15*128}")
    a(f"v_lshl_add_u32 v{vpf}, v{lane}, 7, s{sT}")
    def op_pf2(j):
        def f():
            a(f"s_add_u32 s{sT2}, s{sId}, {j}")
            a(f"s_and_b32 s{sT2}, s{sT2}, 7")
            a(f"s_mul_i32 s{sT2}, s{sT2}, {128*15*128}")
            a("s_mov_b64 exec, 0x7fff")
            a(f"buffer_load_dword v{vpd}, v{vpf}, s[{sW2}:{sW2+3}], s{sT2} offen")
            a("s_mov_b64 exec, -1")
        return f
    if ENV("PF20", 4) == -2: op_pf2(0)()
    a(f"s_load_dwordx2 s[{sB1}:{sB1+1}], s[0:1], 88")
    a(f"s_load_dwordx2 s[{sWS}:{sWS+1}], s[0:1], 120")
    a(f"s_load_dwordx2 s[{sDBG}:{sDBG+1}], s[0:1], 112")
    a(f"s_load_dwordx2 s[{sOUT}:{sOUT+1}], s[0:1], 104")
    srd(a, sB1, F * 2); srd(a, sWS, WS_SIZE); srd(a, sDBG, 256); srd(a, sOUT, L * D * 2)
    a(f"s_and_b32 s{sT}, s{sId}, 7")
    a(f"s_lshr_b32 s{sT2}, s{sId}, 3")
    a(f"s_lshr_b32 s{sRB}, s{sT}, 1")
    a(f"s_lshl_b32 s{sTB}, s{sT}, 2")
    a(f"s_lshl_b32 s{sRB}, s{sRB}, 2")
    a(f"s_and_b32 s{sT3}, s{sT2}, 3")
    a(f"s_add_u32 s{sRB}, s{sRB}, s{sT3}")
    a(f"s_add_u32 s{sTB}, s{sTB}, s{sT3}")
    a(f"s_and_b32 s{sT}, s{sT}, 1")
    a(f"s_lshl_b32 s{sCB}, s{sT}, 3")
    a(f"s_lshr_b32 s{sJD}, s{sT2}, 2")
    a(f"s_add_u32 s{sCB}, s{sCB}, s{sJD}")
    a(f"v_mov_b32 v{vzero}, 0")
    a(f"v_lshlrev_b32 v{v16}, 4, v{lane}")
    for i in range(3):
        a(f"v_add_u32 v{t0}, {64*i}, v{lane}")
        a(f"v_mul_u32_u24 v{t1}, 0xaaab, v{t0}")
        a(f"v_lshrrev_b32 v{t1}, 19, v{t1}")
        a(f"v_mul_u32_u24 v{t2}, 12, v{t1}")
        a(f"v_sub_u32 v{t2}, v{t0}, v{t2}")
        a(f"v_lshrrev_b32 v{t3}, 2, v{t1}")
        a(f"v_and_b32 v{t3}, 2, v{t3}")
        a(f"v_xor_b32 v{t2}, v{t2}, v{t3}")
        a(f"v_lshlrev_b32 v{t2}, 4, v{t2}")
        a(f"v_mul_u32_u24 v{t1}, 3072, v{t1}")
        a(f"v_add_u32 v{vW[i]}, v{t1}, v{t2}")
        if i: a(f"v_subrev_u32 v{vW[i]}, {1024*i}, v{vW[i]}")
    a(f"s_mul_i32 s{sWoff}, s{sWave}, {16*3072}")
    a(f"s_mul_i32 s{sT}, s{sCB}, 192")
    a(f"s_add_u32 s{sWoff}, s{sWoff}, s{sT}")
    a(f"s_mul_i32 s{sM0w}, s{sWave}, 3072")
    a(f"v_lshrrev_b32 v{t0}, 3, v{lane}")
    a(f"v_and_b32 v{t1}, 7, v{lane}")
    a(f"v_lshrrev_b32 v{t2}, 1, v{t0}")
    a(f"v_xor_b32 v{t1}, v{t1}, v{t2}")
    a(f"v_mul_u32_u24 v{t0}, 1280, v{t0}")
    a(f"v_lshl_add_u32 v{vXs[0]}, v{t1}, 4, v{t0}")
    a(f"v_xor_b32 v{vXs[1]}, 64, v{vXs[0]}")
    a(f"v_add_u32 v{vXs[1]}, {8*1280 - 1024}, v{vXs[1]}")
    a(f"s_lshl_b32 s{sXoff}, s{sRB}, 7")
    a(f"s_lshl_b32 s{sT}, s{sWave}, 5")
    a(f"s_add_u32 s{sXoff}, s{sXoff}, s{sT}")
    a(f"s_mul_i32 s{sXoff}, s{sXoff}, 1280")
    a(f"s_mul_i32 s{sM0x}, s{sWave}, {X_WAVE}")
    a(f"s_add_u32 s{sM0x}, s{sM0x}, {X_OFF}")

    tokW = {}; tokXu = {}
    def ops_w(c):
        def f0():
            a(f"s_add_u32 m0, s{sM0w}, {(c % 3) * W_SLOT}")
            if c: a(f"s_add_u32 s{sWoff}, s{sWoff}, {64*3072}")
        def fi(i):
            def f():
                a(f"buffer_load_dwordx4 v{vW[i]}, s[{sW1}:{sW1+3}], s{sWoff} offen offset:{1024*i} lds")
                if i == 2: tokW[c] = a.vtok()
            return f
        return [f0] + [fi(i) for i in range(3)]
    def ops_x(u):
        c, ct = u // 2, u % 2
        def f0():
            a(f"s_add_u32 m0, s{sM0x}, {(u % NXU) * 2048}")
            a(f"s_add_u32 s{sT}, s{sXoff}, {ct*16*1280 + c*128}")
        def fi(h):
            def f():
                a(f"buffer_load_dwordx4 v{vXs[h]}, s[{sX}:{sX+3}], s{sT} offen offset:{1024*h} lds")
                if h == 1: tokXu[u] = a.vtok()
            return f
        return [f0, fi(0), fi(1)]
    def do_first():
        for f in ops_w(0) + ops_x(0) + ops_x(1) + ops_w(1) + ops_x(2) + ops_x(3): f()
    do_first()

    a(f"v_lshrrev_b32 v{t0}, 4, v{lane}")
    a(f"v_bfe_u32 v{t1}, v{lane}, 2, 2")
    a(f"v_lshl_add_u32 v{t1}, v{t0}, 3, v{t1}")
    a(f"v_mul_u32_u24 v{t1}, 192, v{t1}")
    a(f"v_and_b32 v{t2}, 3, v{lane}")
    a(f"v_lshl_add_u32 v{t1}, v{t2}, 3, v{t1}")
    a(f"v_and_b32 v{t2}, 1, v{t0}")
    a(f"v_lshlrev_b32 v{t2}, 5, v{t2}")
    a(f"v_sub_u32 v{t3}, v{t1}, v{t2}")
    a(f"v_add_u32 v{t3}, 32, v{t3}")
    a(f"v_add_u32 v{t2}, v{t1}, v{t2}")
    for P in range(3):
        a(f"s_add_u32 s{sP[P]}, s{sWave}, {P}")
        a(f"s_cmp_ge_u32 s{sP[P]}, 3")
        a(f"s_cselect_b32 s{sT}, 3, 0")
        a(f"s_sub_u32 s{sP[P]}, s{sP[P]}, s{sT}")
        a(f"s_lshl_b32 s{sT}, s{sP[P]}, 6")
        a(f"v_add_u32 v{vE[P]}, s{sT}, v{t2}")
        a(f"v_add_u32 v{vO[P]}, s{sT}, v{t3}")
    a(f"v_and_b32 v{t1}, 15, v{lane}")
    a(f"v_lshrrev_b32 v{t2}, 1, v{t1}")
    a(f"v_xor_b32 v{t2}, v{t2}, v{t0}")
    a(f"v_lshlrev_b32 v{t2}, 4, v{t2}")
    a(f"v_lshl_add_u32 v{t2}, v{t1}, 7, v{t2}")
    a(f"v_add_u32 v{vXr[0]}, s{sM0x}, v{t2}")
    a(f"v_xor_b32 v{t2}, 64, v{t2}")
    a(f"v_add_u32 v{vXr[1]}, s{sM0x}, v{t2}")
    a(f"v_lshrrev_b32 v{t2}, 3, v{t1}")
    a(f"v_and_b32 v{t1}, 7, v{t1}")
    a(f"v_lshlrev_b32 v{t1}, 3, v{t1}")
    a(f"v_lshl_add_u32 v{vsa}, v{t2}, 7, v{t1}")
    a(f"s_mul_i32 s{sT}, s{sWave}, 12")
    a(f"s_mul_i32 s{sOA}, s{sT}, {32*1280}")
    a(f"s_mul_i32 s{sT2}, s{sJD}, 160")
    a(f"s_add_u32 s{sOA}, s{sOA}, s{sT2}")
    a(f"s_mul_i32 s{sOB}, s{sTB}, 192")
    a(f"s_add_u32 s{sOB}, s{sOB}, s{sT}")
    a(f"s_lshl_b32 s{sOB}, s{sOB}, 10")
    a(f"s_add_u32 s{sOB}, s{sOB}, {WS_ACT}")
    a(f"v_lshlrev_b32 v{t0}, 3, v{t0}")

    tokA = {}; tokXr = {}
    def ops_ra(ks):
        c, e = ks // 2, ks % 2
        off = (c % 3) * W_SLOT + e * 6144
        out = []
        for rt in range(6):
            ad = (vE if rt % 2 == 0 else vO)[rt // 2]
            for h in range(2):
                def f(rt=rt, h=h, ad=ad):
                    a(f"ds_read_b64_tr_b16 {v(A[ks%2][rt] + 2*h, 2)}, v{ad} offset:{off + 768*h}")
                    tokA[(ks, rt)] = a.ltok()
                out.append(f)
        return out
    def ops_rx(c):
        out = []
        for e in range(2):
            for ct in range(2):
                def f(e=e, ct=ct):
                    a(f"ds_read_b128 {v(X[c%2][e][ct],4)}, v{vXr[e]} offset:{((2*c+ct) % NXU) * 2048}")
                    tokXr[c] = a.ltok()
                out.append(f)
        return out
    def mf(d, A_, B_, first):
        c = "0" if first else v(d, 4)
        a(f"v_mfma_f32_16x16x32_bf16 {v(d,4)}, {v(A_,4)}, {v(B_,4)}, {c}")
    wq = [0]
    tokWR = {}
    def ops_wr(n, lim=NWI):
        out = []
        for it_ in range(n):
            f_ = wq[0]
            if f_ >= lim: break
            def f(f_=f_, it_=it_):
                if f_ % 4 == 0 or it_ == 0: a(f"s_add_u32 s{sT2}, s{sOA}, {1024*(f_ - f_%4)}")
                a(f"buffer_load_dwordx4 {v(WR[f_],4)}, v{v16}, s[{sWS}:{sWS+3}], s{sT2} offen offset:{1024*(f_%4)} sc1")
                tokWR[f_] = a.vtok()
            out.append(f); wq[0] += 1
        return out
    sFB = 49
    def ld_w2flags():
        a(f"buffer_load_dword v{vfl}, v{vfa}, s[{sWS}:{sWS+3}], s{sFB} offen sc1")
    def ld_first(nl):
        a(f"v_mov_b32 v{vfl}, s{sTok}")
        a(f"s_mov_b64 exec, {hex((1 << nl) - 1)}")
        ld_w2flags()
        a("s_mov_b64 exec, -1")
    def ld_stats():
        for ct in range(2):
            a(f"buffer_load_dwordx2 {v(st[ct],2)}, v{vsa}, s[{sWS}:{sWS+3}], s{sT3} offen offset:{256*ct} sc1")
    tk = {}
    def op_tok():
        a(f"buffer_load_dword v{vtok}, v{vzero}, s[{sDBG}:{sDBG+3}], 0 offen sc1")
        tk["tok"] = a.vtok()
    def op_chk_tok():
        a.wait(vm=tk["tok"])
        check_token(a, vtok, vzero)
    def op_pace():
        a(f"v_mov_b32 v{vtok}, s{sTok}")
        a(f"s_lshl_b32 s{sT2}, s{sId}, 7")
        a(f"s_add_u32 s{sT2}, s{sT2}, {WS_FPACE}")
        a(f"s_cmp_eq_u32 s{sWave}, 0")
        a(f"s_cselect_b32 s{sT2}, s{sT2}, {WS_SIZE}")
        a("s_mov_b64 exec, 1")
        a(f"buffer_store_dword v{vtok}, v{vzero}, s[{sWS}:{sWS+3}], s{sT2} offen sc1")
        a("s_mov_b64 exec, -1")
    def op_stats():
        a(f"s_lshl_b32 s{sT3}, s{sRB}, 4")
        a(f"s_lshl_b32 s{sT2}, s{sWave}, 2")
        a(f"s_add_u32 s{sT3}, s{sT3}, s{sT2}")
        a(f"s_lshl_b32 s{sT3}, s{sT3}, 7")
        a(f"s_add_u32 s{sT3}, s{sT3}, {WS_STAT}")
        ld_stats()
        tk["st"] = a.vtok()
    def op_b1(P):
        def f():
            a(f"s_mul_i32 s{sT2}, s{sCB}, 192")
            a(f"s_lshl_b32 s{sT}, s{sP[P]}, 6")
            a(f"s_add_u32 s{sT}, s{sT}, s{sT2}")
            for o in range(2):
                a(f"buffer_load_dwordx2 {v(b1p[2*P+o],2)}, v{t0}, s[{sB1}:{sB1+3}], s{sT} offen offset:{32*o}")
        return f

    a("s_waitcnt lgkmcnt(0)")
    for P in range(3): op_b1(P)()
    a("s_waitcnt lgkmcnt(0)")
    a.wait(vm=max(tokW[0], tokXu[1]))
    for i in range(4): a(f"v_mov_b32 v{ones+i}, 0x3f803f80")
    a("s_barrier")
    stamp(a, 2)
    for f in ops_rx(0) + ops_ra(0) + ops_x(4) + ops_w(2): f()
    if PFA_ < 10: do_pf(PFA_, 10)
    if ENV("PF20", 4) == -1: op_pf2(0)()
    op_tok()
    extra = {9: [op_chk_tok], ENV("PACEKS", 13): [op_pace], 17: [op_stats]}
    if ENV("PF20", 4) >= 0: extra.setdefault(ENV("PF20", 4), []).append(op_pf2(0))
    for j in range(1, 8): extra.setdefault(min(19, ENV("PF2KS", 10) + (j if not ENV("PF2D", 0) else (j + 1) // 2)), []).append(op_pf2(j))
    if ENV("GPRIO2", 2): a(f"s_setprio {ENV('GPRIO2', 2)}")
    for ks in range(20):
        c, e = ks // 2, ks % 2
        first = ks == 0
        Xs = X[c % 2][e]; As = A[ks % 2]
        mlist = []
        for rt in range(6):
            for ct in range(2): mlist.append((rt, acc[rt][ct], As[rt], Xs[ct]))
            if rt < 2: mlist.append((rt, cs[rt], As[rt], ones))
        if e == 0:
            fill = ops_ra(ks + 1)
            dma = []
            for u in (2 * c + 5, 2 * c + 6):
                if u < 20: dma += ops_x(u)
            fl2 = []
            for i, f in enumerate(fill):
                fl2.append(f)
                if i % 2 == 1 and dma: fl2.append(dma.pop(0))
            fill = fl2 + dma + extra.get(ks, [])
            start = 0
            a.wait(lg=tokXr[c])
        else:
            fill = []
            if ks < 19:
                fill = ops_rx(c + 1) + ops_ra(ks + 1)
                if c + 3 < 10: fill += ops_w(c + 3)
            fill += extra.get(ks, [])
            start = 6 if ks < 19 else 0
        nslots = len(mlist) - start
        per = [len(fill) // nslots + (1 if i < len(fill) % nslots else 0) for i in range(nslots)]
        lastrt = -1
        for i, (rt, d, A_, B_) in enumerate(mlist):
            if e == 1 and ks < 19 and i == start:
                a.wait(vm=max(tokW[c + 1], tokXu[2 * c + 3]), lg=a.ltok())
                a("s_barrier")
                if ks in (5, 11): stamp(a, {5: 3, 11: 4}[ks])
                lastrt = 99
            if rt > lastrt:
                a.wait(lg=tokA[(ks, rt)]); lastrt = rt
            mf(d, A_, B_, first)
            if i >= start:
                for _ in range(per[i - start]): fill.pop(0)()
        assert not fill
    tokst = tk["st"]
    stamp(a, 5)

    E = Alloc(pool, limit=vpf)
    csv = [E(4, 4) for _ in range(6)]
    b1v = [E(4, 4) for _ in range(6)]
    rr = [E(2, 2) for _ in range(2)]
    rm = [st[0], st[1]]
    tmp = [E(2, 2) for _ in range(8)]
    outp = cs
    vcs = E()
    CSOFF = 2 * W_SLOT
    a(f"v_lshrrev_b32 v{t0}, 4, v{lane}")
    a(f"v_lshlrev_b32 v{vcs}, 4, v{t0}")
    a(f"s_lshl_b32 s{sT}, s{sP[0]}, 7")
    a(f"v_add_u32 v{t1}, s{sT}, v{vcs}")
    for o in range(2):
        a(f"ds_write_b128 v{t1}, {v(cs[o],4)} offset:{CSOFF + 64*o}")
    a.wait(vm=tokst)
    check_flags(a, [st[0] + 1, st[1] + 1], vsa, ld_stats)
    a("s_waitcnt lgkmcnt(0)")
    a("s_barrier")
    for P in range(3):
        a(f"s_lshl_b32 s{sT}, s{sP[P]}, 7")
        a(f"v_add_u32 v{t1}, s{sT}, v{vcs}")
        for o in range(2):
            a(f"ds_read_b128 {v(csv[2*P+o],4)}, v{t1} offset:{CSOFF + 64*o}")
    for ct in range(2):
        a(f"v_and_b32 v{t1}, 0xffff0000, v{st[ct]}")
        a(f"v_rcp_f32 v{rr[ct]}, v{t1}")
        a(f"v_lshlrev_b32 v{t2}, 16, v{st[ct]}")
        a(f"v_mul_f32 v{rr[ct]+1}, v{t2}, v{rr[ct]}")
        a(f"v_sub_f32 v{rm[ct]}, 0, v{rr[ct]+1}")
    for rt in range(6):
        a(f"v_lshlrev_b32 v{b1v[rt]}, 16, v{b1p[rt]}")
        a(f"v_and_b32 v{b1v[rt]+1}, 0xffff0000, v{b1p[rt]}")
        a(f"v_lshlrev_b32 v{b1v[rt]+2}, 16, v{b1p[rt]+1}")
        a(f"v_and_b32 v{b1v[rt]+3}, 0xffff0000, v{b1p[rt]+1}")
    a(f"s_lshl_b32 s{sT}, s{sRB}, 3")
    a(f"s_lshl_b32 s{sT2}, s{sWave}, 1")
    a(f"s_add_u32 s{sT}, s{sT}, s{sT2}")
    a(f"s_mul_i32 s{sT}, s{sT}, 48")
    a(f"s_mul_i32 s{sT2}, s{sCB}, 3")
    a(f"s_add_u32 s{sT}, s{sT}, s{sT2}")
    for P in range(3):
        a(f"s_add_u32 s{sP[P]}, s{sP[P]}, s{sT}")
        a(f"s_lshl_b32 s{sP[P]}, s{sP[P]}, 10")
        a(f"s_add_u32 s{sP[P]}, s{sP[P]}, {WS_ACT}")
    a(f"s_mov_b32 s50, {f32(LOG2E)}"); a(f"s_mov_b32 s51, {f32(LOG2E)}")
    Q = Alloc(base2, limit=256)
    acc2 = [[Q(4, 4) for ct in range(4)] for rt in range(5)]
    NST = 3
    FB = [[Q(4, 4) for _ in range(4)] for _ in range(NST)]
    vB = [Q() for _ in range(4)]
    vxo = Q(); vxo2 = Q()
    vw = [Q() for _ in range(5)]; vw8 = Q(); vw4 = Q()
    a(f"s_mul_i32 s{sM0w}, s{sWave}, 20480")
    for i in range(5):
        a(f"v_add_u32 v{t0}, {64*i}, v{lane}")
        a(f"v_mul_u32_u24 v{t1}, 0xcccd, v{t0}")
        a(f"v_lshrrev_b32 v{t1}, 19, v{t1}")
        a(f"v_mul_u32_u24 v{t2}, 10, v{t1}")
        a(f"v_sub_u32 v{t2}, v{t0}, v{t2}")
        a(f"v_mul_u32_u24 v{t1}, 1280, v{t1}")
        a(f"v_lshl_add_u32 v{vw[i]}, v{t2}, 4, v{t1}")
        if 0 < i < 4: a(f"v_subrev_u32 v{vw[i]}, {1024*i}, v{vw[i]}")
    tokD = {}
    def ops_dma(k):
        out = []
        for i in range(5):
            def f(i=i):
                if i == 0:
                    a(f"s_add_u32 m0, s{sM0w}, {5120*(k%4)}")
                    a(f"s_add_u32 s{sXoff}, s{sOA}, {32*1280*k}")
                if i == 4: a(f"s_add_u32 m0, s{sM0w}, {5120*(k%4) + 4096}")
                a(f"buffer_load_dwordx4 v{vw[i]}, s[{sW2}:{sW2+3}], s{sXoff} offen offset:{1024*i if i < 4 else 0} lds")
                tokD[k] = a.vtok()
            out.append(f)
        return out
    tokL = {}
    def op_rw(k, rt):
        o = WR[5 * (k % 5) + rt]
        for e in range(2):
            if rt < 4: a(f"ds_read_b64_tr_b16 {v(o+2*e,2)}, v{vw8} offset:{5120*(k%4) + 64*(rt>>1) + 8*(rt&1) + 2560*e}")
            else: a(f"ds_read_b64_tr_b16 {v(o+2*e,2)}, v{vw4} offset:{5120*(k%4) + 128 + 2560*e}")
        tokL[(k, rt)] = a.ltok()
    a("s_waitcnt lgkmcnt(0)")
    a("s_barrier")
    stamp(a, 6)
    k = 0
    for P in range(3):
        for ct in range(2):
            op = outp[k % 2]; k += 1
            if k == 1: dq = sum([ops_dma(k_) for k_ in range(4)], [])
            def dq_pop():
                if len(dq) > 20 - ENV("NDQ", 0): dq.pop(0)()
            dq_pop()
            hs = []
            EP = ENV("EPLAIN", 0)
            for o in range(2):
                rt = 2 * P + o
                for hf in range(2):
                    h = acc[rt][ct] + 2 * hf
                    tt = tmp[len(hs)]
                    if EP:
                        for z in range(2): a(f"v_fma_f32 v{tt+z}, v{csv[rt]+2*hf+z}, v{rm[ct]}, v{b1v[rt]+2*hf+z}")
                        for z in range(2): a(f"v_fma_f32 v{h+z}, v{h+z}, v{rr[ct]}, v{tt+z}")
                    else:
                        a(f"v_pk_fma_f32 {v(tt,2)}, {v(csv[rt]+2*hf,2)}, {v(rm[ct],2)}, {v(b1v[rt]+2*hf,2)} op_sel_hi:[1,0,1]")
                        a(f"v_pk_fma_f32 {v(h,2)}, {v(h,2)}, {v(rr[ct],2)}, {v(tt,2)} op_sel_hi:[1,0,1]")
                    hs.append(h)
            def pmul(d, x, y):
                if EP:
                    for z in range(2): a(f"v_mul_f32 v{d+z}, " + (f"s50, v{x+z}" if y is None else f"v{x+z}, v{y+z}"))
                else: a(f"v_pk_mul_f32 {v(d,2)}, {v(x,2)}, " + ("s[50:51]" if y is None else v(y, 2)))
            def padd2(d, x):
                if EP:
                    for z in range(2): a(f"v_add_f32 v{d+z}, 2.0, v{x+z}")
                else: a(f"v_pk_add_f32 {v(d,2)}, {v(x,2)}, 2.0 op_sel_hi:[1,0]")
            for i, h in enumerate(hs): pmul(tmp[i], h, None)
            for i, h in enumerate(hs):
                a(f"v_min_f32 v{tmp[i]}, {f32(30.0)}, v{tmp[i]}")
                a(f"v_min_f32 v{tmp[i]+1}, {f32(30.0)}, v{tmp[i]+1}")
            dq_pop()
            for i, h in enumerate(hs):
                a(f"v_exp_f32 v{tmp[i]}, v{tmp[i]}")
                a(f"v_exp_f32 v{tmp[i]+1}, v{tmp[i]+1}")
            dq_pop()
            for i, h in enumerate(hs): padd2(tmp[4+i], tmp[i])
            for i, h in enumerate(hs): pmul(tmp[i], tmp[i], tmp[4+i])
            for i, h in enumerate(hs): padd2(tmp[4+i], tmp[i])
            for i, h in enumerate(hs):
                a(f"v_rcp_f32 v{tmp[4+i]}, v{tmp[4+i]}")
                a(f"v_rcp_f32 v{tmp[4+i]+1}, v{tmp[4+i]+1}")
            dq_pop()
            for i, h in enumerate(hs): pmul(h, h, tmp[i])
            for i, h in enumerate(hs): pmul(h, h, tmp[4+i])
            for i, h in enumerate(hs): a(f"v_cvt_pk_bf16_f32 v{op+i}, v{h}, v{h+1}")
            if ct == 0:
                a(f"buffer_store_dwordx4 {v(op,4)}, v{v16}, s[{sWS}:{sWS+3}], s{sP[P]} offen sc1")
            else:
                a(f"s_add_u32 s{sT}, s{sP[P]}, {48*1024}")
                a(f"buffer_store_dwordx4 {v(op,4)}, v{v16}, s[{sWS}:{sWS+3}], s{sT} offen sc1")
    tokst_ = a.vtok()
    stamp(a, 7)
    a(f"s_lshl_b32 s{sT}, s{sRB}, 4")
    a(f"s_add_u32 s{sT}, s{sT}, s{sCB}")
    a(f"s_lshl_b32 s{sT}, s{sT}, 2")
    a(f"s_add_u32 s{sT}, s{sT}, s{sWave}")
    a(f"s_lshl_b32 s{sT}, s{sT}, 7")
    a(f"s_add_u32 s{sT}, s{sT}, {WS_FACT}")
    a(f"v_mov_b32 v{vtok}, s{sTok}")

    for ct in range(4):
        a(f"s_add_u32 s{sT2}, s{sWave}, {ct}")
        a(f"s_and_b32 s{sT2}, s{sT2}, 3")
        a(f"s_mul_i32 s{sT2}, s{sT2}, {48*1024}")
        a(f"v_add_u32 v{vB[ct]}, s{sT2}, v{v16}")
    a(f"v_lshrrev_b32 v{t1}, 2, v{lane}")
    a(f"v_mul_u32_u24 v{t1}, 160, v{t1}")
    a(f"v_add_u32 v{t1}, s{sM0w}, v{t1}")
    a(f"v_and_b32 v{t2}, 3, v{lane}")
    a(f"v_lshl_add_u32 v{vw8}, v{t2}, 4, v{t1}")
    a(f"v_lshl_add_u32 v{vw4}, v{t2}, 3, v{t1}")
    def do_publish():
        a.wait(vm=tokst_)
        a("s_mov_b64 exec, 1")
        a(f"buffer_store_dword v{vtok}, v{vzero}, s[{sWS}:{sWS+3}], s{sT} offen sc1")
        a("s_mov_b64 exec, -1")
        if ENV("GPRIO2", 2): a(f"s_setprio {ENV('GPRIO3', 0)}")
        stamp(a, 8)
    for _ in range(min(len(dq), 10)): dq.pop(0)()
    a(f"v_and_b32 v{t0}, 3, v{lane}")
    a(f"v_bfe_u32 v{t1}, v{lane}, 2, 1")
    a(f"v_lshl_add_u32 v{vfa}, v{t0}, 2, v{t1}")
    a(f"v_lshlrev_b32 v{vfa}, 7, v{vfa}")
    a(f"s_lshr_b32 s{sFB}, s{sTB}, 1")
    a(f"s_lshl_b32 s{sFB}, s{sFB}, 2")
    a(f"s_add_u32 s{sFB}, s{sFB}, s{sWave}")
    a(f"s_lshl_b32 s{sFB}, s{sFB}, 3")
    a(f"s_and_b32 s{sT2}, s{sTB}, 1")
    a(f"s_add_u32 s{sFB}, s{sFB}, s{sT2}")
    a(f"s_lshl_b32 s{sFB}, s{sFB}, 8")
    a(f"s_add_u32 s{sFB}, s{sFB}, {WS_FACT}")
    a(f"v_mul_u32_u24 v{t0}, {48*1024}, v{t0}")
    a(f"v_lshrrev_b32 v{t1}, 2, v{lane}")
    a(f"v_lshl_add_u32 v{t0}, v{t1}, 10, v{t0}")
    a(f"s_lshl_b32 s{sT2}, s{sJD}, 7")
    a(f"s_add_u32 s{sT2}, s{sT2}, s{sOB}")
    do_publish()
    while dq: dq.pop(0)()
    def rd(k):
        a.wait(vm=tokD[k])
        for rt in range(5): op_rw(k, rt)
    def dm(k):
        a.wait(lg=tokL[(k - 4, 4)])
        for f in ops_dma(k): f()
    tokB = {}; tokBc = {}
    def issue_b(k):
        for ct in range(4):
            a(f"buffer_load_dwordx4 {v(FB[k%NST][ct],4)}, v{vB[ct]}, s[{sWS}:{sWS+3}], s{sOB} offen sc1")
            tokBc[(k, ct)] = a.vtok()
        tokB[k] = a.vtok()
        if k < 11: a(f"s_add_u32 s{sOB}, s{sOB}, 1024")
    FPOS = ENV("FPOS", 2)
    def fl():
        ld_first(8); tk["fa"] = a.vtok()
    rd(0); rd(1); dm(4); rd(2)
    if FPOS == 0: fl()
    dm(5)
    if FPOS == 1: fl()
    rd(3); dm(6)
    if FPOS == 2:
        fl(); dm(7)
    stamp(a, 14)
    a.wait(vm=tk["fa"])
    check_flags(a, [vfl], vfa, ld_w2flags, sleep=ENV("ASLEEP", 3))
    stamp(a, 9)
    if ENV("GPRIO2", 2): a(f"s_setprio {ENV('GPRIO4', 0)}")
    if ENV("PFA", 0):
        a("s_mov_b32 exec_hi, 0xffff")
        a(f"buffer_load_dword v{t3}, v{t0}, s[{sWS}:{sWS+3}], s{sT2} offen sc1")
        a("s_mov_b32 exec_hi, -1")
    for k in range(NST): issue_b(k)
    if FPOS != 2: dm(7)
    rd(4)
    D8 = ENV("D8", 1)
    if D8: dm(8)
    sXo = 40
    a(f"s_lshl_b32 s{sXo}, s{sTB}, 6")
    a(f"s_lshl_b32 s{sT2}, s{sWave}, 4")
    a(f"s_add_u32 s{sXo}, s{sXo}, s{sT2}")
    a(f"s_mul_i32 s{sXo}, s{sXo}, 1280")
    a(f"s_mul_i32 s{sT2}, s{sJD}, 160")
    a(f"s_add_u32 s{sXo}, s{sXo}, s{sT2}")
    vso = vxo; vlw = vxo2
    a(f"v_lshrrev_b32 v{t0}, 3, v{lane}")
    a(f"v_and_b32 v{t1}, 7, v{lane}")
    a(f"v_lshlrev_b32 v{t1}, 4, v{t1}")
    a(f"v_lshl_add_u32 v{vso}, v{t0}, 12, v{t1}")
    a(f"s_mul_i32 s{sM0x}, s{sWave}, 2560")
    STOFF = 61440; XSOFF = 71680
    a(f"v_min_u32 v{vfa}, 19, v{lane}")
    a(f"v_lshlrev_b32 v{vfa}, 7, v{vfa}")
    a(f"s_mul_i32 s{sT3}, s{sJD}, 80")
    a(f"s_mul_i32 s{sT}, s{sWave}, 20")
    a(f"s_add_u32 s{sWoff}, s{sT3}, s{sT}")
    a(f"s_lshl_b32 s{sT3}, s{sWoff}, 7")
    a(f"s_lshr_b32 s{sT}, s{sTB}, 3")
    a(f"s_lshl_b32 s{sT}, s{sT}, 2")
    a(f"s_add_u32 s{sT3}, s{sT3}, s{sT}")
    a(f"s_add_u32 s{sFB}, s{sT3}, {WS_FST}")
    slot = {f: f % 25 for f in range(60)}
    assert D8
    def ld_b(k, ct):
        a(f"buffer_load_dwordx4 {v(FB[k%NST][ct],4)}, v{vB[ct]}, s[{sWS}:{sWS+3}], s{sOB} offen sc1")
        tokBc[(k, ct)] = a.vtok()
        if ct == 3:
            tokB[k] = a.vtok()
            if k < 11: a(f"s_add_u32 s{sOB}, s{sOB}, 1024")
    for k in range(12):
        dma = ops_dma(k + 8) if 1 <= k <= 3 else []
        if k >= 4: a.wait(lg=tokL[(k, 4)])
        for ct in range(4):
            a.wait(vm=tokBc[(k, ct)])
            if ct == 2 and dma: a.wait(lg=tokL[(k + 4, 4)])
            for rt in range(5):
                c = "0" if k == 0 else v(acc2[rt][ct], 4)
                a(f"v_mfma_f32_16x16x32_bf16 {v(acc2[rt][ct],4)}, {v(WR[slot[5*k+rt]],4)}, {v(FB[k%NST][ct],4)}, {c}")
                if ct == 0 and 1 <= k <= 7:
                    if rt == 0: a.wait(vm=tokD[k + 4])
                    op_rw(k + 4, rt)
                if rt == 0 and ct >= 1 and k + NST < 12: ld_b(k + NST, ct - 1)
                if ct >= 2 and rt in (1, 2, 4) and dma: dma.pop(0)()
        while dma: dma.pop(0)()
        if k + NST < 12: ld_b(k + NST, 3)
        if k in (0, 5): stamp(a, {0: 10, 5: 11}[k])
        if k == ENV("STK", 6):
            ld_first(20); tokfl = a.vtok()
        if k == ENV("BARK", 7):
            a("s_waitcnt lgkmcnt(0)")
            a("s_barrier")
            a(f"s_add_u32 m0, s{sM0x}, {XSOFF}")
            for i in range(3):
                if i == 2: a("s_mov_b32 exec_hi, 0")
                a(f"buffer_load_dwordx4 v{vw[i]}, s[{sX}:{sX+3}], s{sXo} offen offset:{1024*i} lds")
            a("s_mov_b32 exec_hi, -1")
        if k == ENV("STK2", 8):
            a.wait(vm=tokfl)
            check_flags(a, [vfl], vfa, ld_w2flags, sleep=ENV("STSLEEP", 8))
            a(f"s_lshl_b32 s{sT}, s{sWoff}, 12")
            a(f"s_lshl_b32 s{sT2}, s{sTB}, 7")
            a(f"s_add_u32 s{sT}, s{sT}, s{sT2}")
            a(f"s_add_u32 s{sT}, s{sT}, {WS_ST}")
            for i in range(3):
                if i == 2: a("s_mov_b32 exec_hi, 0")
                a(f"s_add_u32 m0, s{sM0x}, {STOFF + 1024*i}")
                a(f"buffer_load_dwordx4 v{vso}, s[{sWS}:{sWS+3}], s{sT} offen sc1 lds")
                if i < 2: a(f"s_add_u32 s{sT}, s{sT}, {8*4096}")
            a("s_mov_b32 exec_hi, -1")
        if k == 10:
            for ct in range(1, 4):
                a(f"s_add_u32 s{sT2}, s{sWave}, {ct}")
                a(f"s_and_b32 s{sT2}, s{sT2}, 3")
                a(f"s_mul_i32 s{sT2}, s{sT2}, 15360")
                a(f"v_add_u32 v{vB[ct]}, s{sT2}, v{v16}")
            break
    k = 11
    a.wait(vm=tokB[k]); a.wait(lg=tokL[(k, 4)])
    vt8, vt4, vx16, vx8 = [FB[0][0] + i for i in range(4)]
    misc = [f"v_lshrrev_b32 v{t2}, 4, v{lane}", f"v_bfe_u32 v{t0}, v{lane}, 2, 2",
            f"v_lshl_add_u32 v{t1}, v{t2}, 3, v{t0}", f"v_lshl_add_u32 v{t0}, v{t2}, 2, v{t0}", f"v_and_b32 v{t3}, 3, v{lane}"]
    pend = []
    for ct in (1, 2, 3, 0):
        for rt in range(5):
            a(f"v_mfma_f32_16x16x32_bf16 {v(acc2[rt][ct],4)}, {v(WR[slot[5*k+rt]],4)}, {v(FB[k%NST][ct],4)}, {v(acc2[rt][ct],4)}")
            if ct == 1: a(misc[rt])
            elif pend: a(pend.pop(0))
        if ct: pend += [f"ds_write_b128 v{vB[ct]}, {v(acc2[rt][ct],4)} offset:{(ct-1)*5120 + rt*1024}" for rt in range(5)]
    stamp(a, 12)
    Pr = [[acc2[rt][p + 1] for rt in range(5)] for p in range(3)]
    T = [WR[10 + i // 2] + 2 * (i % 2) for i in range(10)]
    sv = [WR[15 + i // 2] + 2 * (i % 2) for i in range(5)]
    xq = [WR[18], WR[19], WR[20]]
    op = [WR[21], WR[22], WR[23]]
    a(f"s_lshl_b32 s{sT}, s{sWave}, 5")
    a(f"s_add_u32 s{sT}, s{sT}, {STOFF}")
    a(f"v_lshl_add_u32 v{t3}, v{t3}, 3, s{sT}")
    a(f"v_lshl_add_u32 v{vt8}, v{t1}, 7, v{t3}")
    a(f"v_lshl_add_u32 v{vt4}, v{t0}, 7, v{t3}")
    a(f"v_and_b32 v{t0}, 15, v{lane}")
    a(f"v_mul_u32_u24 v{t0}, 160, v{t0}")
    a(f"s_add_u32 s{sT}, s{sM0x}, {XSOFF}")
    a(f"v_add_u32 v{t0}, s{sT}, v{t0}")
    a(f"v_lshl_add_u32 v{vx16}, v{t2}, 4, v{t0}")
    a(f"v_lshl_add_u32 v{vx8}, v{t2}, 3, v{t0}")
    a(f"v_add_u32 v{vlw}, s{sT}, v{v16}")
    a(f"s_mul_i32 s{sT2}, s{sWave}, 15360")
    a(f"v_add_u32 v{t3}, s{sT2}, v{v16}")
    a(f"s_mov_b32 s50, {f32(-LOG2E)}"); a(f"s_mov_b32 s51, {f32(-LOG2E)}")
    a("s_waitcnt vmcnt(0) lgkmcnt(0)")
    a("s_barrier")
    stamp(a, 13)
    tkr = {}
    for rt in range(5):
        for p in range(3):
            a(f"ds_read_b128 {v(Pr[p][rt],4)}, v{t3} offset:{p*5120 + rt*1024}")
        tkr[rt] = a.ltok()
    o2 = []
    late = [f"ds_read_b64_tr_b16 {v(sv[rt],2)}, v{vt8} offset:{128*(32*(rt>>1) + 4*(rt&1))}" for rt in range(4)]
    late += [f"ds_read_b64_tr_b16 {v(sv[4],2)}, v{vt4} offset:{128*64}", f"ds_read_b128 {v(xq[0],4)}, v{vx16}",
             f"ds_read_b128 {v(xq[1],4)}, v{vx16} offset:64", f"ds_read_b64 {v(xq[2],2)}, v{vx8} offset:128"]
    for rt in range(5):
        a.wait(lg=tkr[rt])
        for hf in range(2):
            d = acc2[rt][0] + 2 * hf
            a(f"v_pk_add_f32 {v(Pr[0][rt]+2*hf,2)}, {v(Pr[0][rt]+2*hf,2)}, {v(Pr[1][rt]+2*hf,2)}")
            a(f"v_pk_add_f32 {v(d,2)}, {v(d,2)}, {v(Pr[2][rt]+2*hf,2)}")
            a(f"v_pk_add_f32 {v(d,2)}, {v(d,2)}, {v(Pr[0][rt]+2*hf,2)}")
            o2.append(d)
    for x_ in late: a(x_)
    for i, d in enumerate(o2): a(f"v_pk_mul_f32 {v(T[i],2)}, {v(d,2)}, s[50:51]")
    for i, d in enumerate(o2):
        a(f"v_exp_f32 v{T[i]}, v{T[i]}")
        a(f"v_exp_f32 v{T[i]+1}, v{T[i]+1}")
    for i, d in enumerate(o2): a(f"v_pk_add_f32 {v(T[i],2)}, {v(T[i],2)}, 1.0 op_sel_hi:[1,0]")
    for i, d in enumerate(o2):
        a(f"v_rcp_f32 v{T[i]}, v{T[i]}")
        a(f"v_rcp_f32 v{T[i]+1}, v{T[i]+1}")
    a("s_waitcnt lgkmcnt(0)")
    for i, d in enumerate(o2):
        s_ = sv[i // 2] + i % 2
        x_ = xq[i // 4] + i % 4
        U_ = Pr[0][i // 2] + 2 * (i % 2)
        V_ = Pr[1][i // 2] + 2 * (i % 2)
        a(f"v_pk_mul_f32 {v(d,2)}, {v(d,2)}, {v(T[i],2)}")
        a(f"v_lshlrev_b32 v{U_}, 16, v{s_}")
        a(f"v_and_b32 v{U_+1}, 0xffff0000, v{s_}")
        a(f"v_lshlrev_b32 v{V_}, 16, v{x_}")
        a(f"v_and_b32 v{V_+1}, 0xffff0000, v{x_}")
        a(f"v_pk_fma_f32 {v(d,2)}, {v(d,2)}, {v(U_,2)}, {v(V_,2)}")
        a(f"v_cvt_pk_bf16_f32 v{op[i//4] + i%4}, v{d}, v{d+1}")
        if i == 3: a(f"ds_write_b128 v{vx16}, {v(op[0],4)}")
        if i == 7: a(f"ds_write_b128 v{vx16}, {v(op[1],4)} offset:64")
    a(f"ds_write_b64 v{vx8}, {v(op[2],2)} offset:128")
    for i in range(3):
        a(f"ds_read_b128 {v(xq[i],4)}, v{vlw} offset:{1024*i}")
    for i in range(3):
        a(f"s_waitcnt lgkmcnt({2-i})")
        if i == 2: a("s_mov_b32 exec_hi, 0")
        a(f"buffer_store_dwordx4 {v(xq[i],4)}, v{vw[i]}, s[{sOUT}:{sOUT+3}], s{sXo} offen offset:{1024*i} {os.environ.get('OUTMOD', '')}")
    stamp_end(a, sWave)
    return 256

def main(out):
    ref = open(f"cdna_kernels/{NAME}.s.ref").read().split("\n")
    hdr = [l for l in ref if l.startswith(";") and "@launch" not in l]
    hdr.append(f"; @launch grid=(512,1,1) block=(256,1,1) lds={LDS_BYTES}")
    a = Asm()
    a.raw(f'.amdgcn_target "amdgcn-amd-amdhsa--gfx950"\n.text\n.globl {KN}\n.p2align 8\n.type {KN},@function')
    a.label(KN)
    a("s_cmp_lt_u32 s2, 256")
    a("s_cbranch_scc1 " + ("K_exit" if ENV("NOS", 0) else "S_role"))
    a(f"s_cmp_ge_u32 s2, {256 if ENV('NOG', 0) else 512}")
    a("s_cbranch_scc1 K_exit")
    _role[0] = "G"
    hg = g_role(a)
    _role[0] = "S"
    a.label("S_role"); a.flush_hist()
    hs = s_role(a)
    a.label("K_exit")
    a("s_endpgm")
    if ENV("CPF", 0): a.raw(".p2align 15")
    print("vgprs", hg, hs, "nops", a.nnop, "lines", len(a.items), file=sys.stderr)
    kd = f""".section .rodata,"a"
.p2align 6
.amdhsa_kernel {KN}
  .amdhsa_next_free_vgpr 256
  .amdhsa_next_free_sgpr {102 if STAMPS else 64}
  .amdhsa_accum_offset 256
  .amdhsa_group_segment_fixed_size 0
  .amdhsa_kernarg_size 128
  .amdhsa_user_sgpr_count 2
  .amdhsa_user_sgpr_kernarg_segment_ptr 1
  .amdhsa_system_sgpr_workgroup_id_x 1
  .amdhsa_float_denorm_mode_32 3
  .amdhsa_float_denorm_mode_16_64 3
.end_amdhsa_kernel
"""
    open(out, "w").write("\n".join(hdr) + "\n" + a.text() + kd)

if __name__ == "__main__":
    main(sys.argv[1] if len(sys.argv) > 1 else f"cdna_kernels/{NAME}.s")
```

```python
import sys, os, struct, math
sys.path.insert(0, os.path.dirname(os.path.abspath(__file__)))
from asmlib import *

NAME = "recurrent_scan__ssm_conv_s4__dense_activation_mish__prompt"
KN = NAME + "_kernel"
L, D, N, F = 2048, 640, 192, 1536
ENV = lambda k, d: int(os.environ.get(k, str(d)))
STAMPS = ENV("STAMPS", 0)

WS_XT2 = 0x0000000
WS_ST  = 0x0400000
WS_W2A = 0x0800000
WS_ACT = 0x0C00000
WS_STAT = 0x1400000
WS_FLN = 0x1500000
WS_FPACE = 0x1510000
WS_FACT = 0x1520000
WS_FST = 0x1560000
WS_SIZE = 0x1600000
WS_STAMP = 0x4000000
LDS_BYTES = 81920
SPIN_MAX = 0x4000

def f32(x): return "0x%08x" % struct.unpack("<I", struct.pack("<f", x))[0]
LOG2E = 1.4426950408889634
LN2 = 0.6931471805599453

def srd(a, sreg, size):
    a(f"s_mov_b32 s{sreg+2}, {size}")
    a(f"s_mov_b32 s{sreg+3}, 0x20000")

def bf16r(a, dst, src):
    a(f"v_cvt_pk_bf16_f32 v{dst}, v{src}, v{src}")
    a(f"v_and_b32 v{dst}, 0xffff0000, v{dst}")

_sn = [0]
DIAG = ENV("DIAG", 0)
_role = ["?"]
def stamp_begin(a):
    _sn[0] = 0
    if DIAG and _role[0] == "G": a("s_memrealtime s[60:61]")
    if STAMPS:
        a("s_memrealtime s[60:61]")
        for i in range(64, 96, 2): a(f"s_mov_b64 s[{i}:{i+1}], 0")
        a("s_memtime s[64:65]")
        _sn[0] = 1
def stamp(a, n=None):
    if DIAG and n == DIAG and _role[0] == "G": a("s_memrealtime s[62:63]")
    if STAMPS:
        if n is None:
            n = _sn[0]; _sn[0] += 1
        assert n < 16
        a(f"s_memtime s[{64+2*n}:{65+2*n}]")
def stamp_end(a, sWave):
    if DIAG and _role[0] == "G":
        if DIAG == 15: a("s_memrealtime s[62:63]")
        a("s_memrealtime s[56:57]")
        a("s_waitcnt lgkmcnt(0)")
        a("s_sub_u32 s62, s62, s60")
        a("s_add_u32 s56, s56, s62")
        a.label("DG_spin")
        a("s_sleep 2")
        a("s_memrealtime s[58:59]")
        a("s_waitcnt lgkmcnt(0)")
        a("s_sub_u32 s58, s58, s56")
        a("s_cmp_lt_i32 s58, 0")
        a("s_cbranch_scc1 DG_spin")
    if STAMPS:
        stamp(a, 15)
        a("s_memrealtime s[62:63]")
        a("s_load_dwordx2 s[96:97], s[0:1], 120")
        a("s_waitcnt lgkmcnt(0)")
        a(f"s_add_u32 s96, s96, {WS_STAMP}")
        a("s_addc_u32 s97, s97, 0")
        a("s_mov_b32 s98, 0x100000")
        a("s_mov_b32 s99, 0x20000")
        a("s_lshl_b32 s59, s2, 10")
        a(f"s_lshl_b32 s58, s{sWave}, 8")
        a("s_add_u32 s59, s59, s58")
        a("s_mov_b64 exec, 1")
        a("v_mov_b32 v1, s59")
        a("v_mov_b32 v2, s60"); a("v_mov_b32 v3, s62")
        a("buffer_store_dwordx2 v[2:3], v1, s[96:99], 0 offen")
        for n in range(16):
            a(f"s_sub_u32 s59, s{64+2*n}, s64")
            a(f"s_cmp_eq_u32 s{64+2*n}, 0")
            a(f"s_cselect_b32 s59, 0, s59")
            a(f"v_mov_b32 v{4 + n}, s59")
            a(f"buffer_store_dword v{4 + n}, v1, s[96:99], 0 offen offset:{16+4*n}")
    a("s_endpgm")

_lab = [0]
def newlab(p):
    _lab[0] += 1
    return f"{p}_{_lab[0]}"

sWS, sDBG = 4, 8
sWave, sTok, sSpin = 12, 13, 14
sT, sT2, sT3 = 15, 16, 17

def check_token(a, vtok, vzero, sleep=2):
    done = newlab("TK"); loop = newlab("TL")
    if ENV("NOS", 0) or os.environ.get("ONLY", ""):
        a(f"s_mov_b32 s{sTok}, 0x12345"); return
    a(f"v_readfirstlane_b32 s{sTok}, v{vtok}")
    a(f"s_cmp_lg_u32 s{sTok}, 0")
    a(f"s_cbranch_scc1 {done}")
    a(f"s_mov_b32 s{sSpin}, 0")
    a.label(loop)
    a(f"s_sleep {sleep}")
    a(f"buffer_load_dword v{vtok}, v{vzero}, s[{sDBG}:{sDBG+3}], 0 offen sc1"); a.vm -= 1
    a("s_waitcnt vmcnt(0)")
    a(f"v_readfirstlane_b32 s{sTok}, v{vtok}")
    a(f"s_cmp_lg_u32 s{sTok}, 0")
    a(f"s_cbranch_scc1 {done}")
    a(f"s_add_u32 s{sSpin}, s{sSpin}, 1")
    a(f"s_cmp_lt_u32 s{sSpin}, {SPIN_MAX}")
    a(f"s_cbranch_scc1 {loop}")
    a.label(done)

def check_flags(a, vfl, vaddr, reload, sleep=2):
    if (ENV("NOS", 0) or os.environ.get("ONLY", "")) and sleep != 3: return
    done = newlab("FD"); loop = newlab("FL")
    def cmpall():
        a(f"v_cmp_ne_u32 vcc, s{sTok}, v{vfl[0]}")
        for r_ in vfl[1:]:
            a(f"v_cmp_ne_u32 s[18:19], s{sTok}, v{r_}")
            a("s_or_b64 vcc, vcc, s[18:19]")
        a("s_cmp_eq_u64 vcc, 0")
    cmpall()
    a(f"s_cbranch_scc1 {done}")
    a(f"s_mov_b32 s{sSpin}, 0")
    a.label(loop)
    a(f"s_sleep {sleep}")
    n0 = a.vm
    a("s_mov_b64 exec, vcc")
    reload()
    a("s_mov_b64 exec, -1")
    a.vm = n0
    a("s_waitcnt vmcnt(0)")
    cmpall()
    a(f"s_cbranch_scc1 {done}")
    a(f"s_add_u32 s{sSpin}, s{sSpin}, 1")
    a(f"s_cmp_lt_u32 s{sSpin}, {SPIN_MAX}")
    a(f"s_cbranch_scc1 {loop}")
    a.label(done)

CV_S = 4160
CH_REG = 64 * 272
CV_U = [3 * CH_REG + 512 + 4608 * i for i in range(3)]
LN_OFF = 3 * CH_REG + 3 * 4608
LN_S = 1344
PACE_OFF = LDS_BYTES - 16
KG_S = 272
COARSE = list(range(8)) + [256, 258, 260, 262, 512, 516, 768, 772, 1024, 1280, 1536, 1792, 2048]
assert LN_OFF + 8 * LN_S <= LDS_BYTES and 4 * CV_S <= CH_REG

def s_role(a):
    sX_, sA, sXc = 20, 24, 25
    sD = [26, 27, 28]
    sCnt, sPar, sSlot, sRound, sHeavy = 29, 30, 31, 56, 57
    SP = [32, 36, 40, 44, 48, 52]
    R = Alloc(1)
    lane = R(); t0 = R(); t1 = R(); t2 = R(); t3 = R(); vzero = R(); vtok = R(); v16 = R()
    vdk = [R(), R()]
    base = R.mark()
    stamp_begin(a)
    a(f"s_load_dwordx2 s[{sWS}:{sWS+1}], s[0:1], 120")
    a(f"s_load_dwordx2 s[{sDBG}:{sDBG+1}], s[0:1], 112")
    a(f"v_lshrrev_b32 v{t0}, 6, v0")
    a(f"v_and_b32 v{lane}, 63, v0")
    a(f"v_readfirstlane_b32 s{sWave}, v{t0}")
    srd(a, sWS, WS_SIZE); srd(a, sDBG, 256)
    a(f"s_and_b32 s{sXc}, s2, 7")
    a(f"s_lshr_b32 s{sA}, s2, 3")
    a(f"s_lshl_b32 s{sD[0]}, s{sXc}, 6")
    a(f"s_lshl_b32 s{sT}, s{sA}, 1")
    a(f"s_add_u32 s{sD[0]}, s{sD[0]}, s{sT}")
    a(f"s_add_u32 s{sD[1]}, s{sD[0]}, 1")
    a(f"s_lshl_b32 s{sD[2]}, s{sXc}, 4")
    a(f"s_add_u32 s{sD[2]}, s{sD[2]}, s{sA}")
    a(f"s_add_u32 s{sD[2]}, s{sD[2]}, 512")
    a(f"s_cmp_lt_u32 s{sA}, 16")
    a(f"s_cselect_b32 s{sHeavy}, 1, 0")
    a(f"v_mov_b32 v{vzero}, 0")
    a(f"v_lshlrev_b32 v{v16}, 4, v{lane}")
    ONLY = os.environ.get("ONLY", "")
    if ENV("SPRIO0", 0): a(f"s_setprio {ENV('SPRIO0', 0)}")
    a(f"s_lshr_b32 s{sSlot}, s{sWave}, 1")
    a(f"s_cmp_eq_u32 s{sWave}, 3")
    a("s_cbranch_scc1 " + ("S_ln" if (not ONLY or "l" in ONLY) else "K_exit"))
    a(f"s_add_u32 s{sT}, s{sHeavy}, 2")
    a(f"s_cmp_ge_u32 s{sWave}, s{sT}")
    a("s_cbranch_scc1 " + ("S_w2t" if (not ONLY or "w" in ONLY) else "K_exit"))
    if ONLY and "k" not in ONLY: a("s_branch K_exit")

    P = [[R() for _ in range(6)] for _ in range(3)]
    vdt = R(); vwr = R(); vrd = R(); voff = R()
    accK = R(16, 4)
    FA = [R(4, 4) for _ in range(8)]; FB = [R(4, 4) for _ in range(8)]
    pr = lambda: R(2, 2)
    l1, l8, l256, W, E0, E1, E2, T, T2, G2, G4, G6, V, a2b = [pr() for _ in range(14)]
    Qr = [R(4, 4) for _ in range(2)]; Qi = [R(4, 4) for _ in range(2)]
    Cr = R(16, 4); Ci = R(16, 4)
    sDd, sBase = 58, 59
    if STAMPS: sDd, sBase = 100, 101
    for i, sr in enumerate(SP):
        a(f"s_load_dwordx2 s[{sr}:{sr+1}], s[0:1], {8 + 8*i}")
    a(f"s_load_dwordx2 s[{sX_}:{sX_+1}], s[0:1], 56")
    a(f"s_load_dwordx2 s[18:19], s[0:1], 64")
    a(f"s_cmp_eq_u32 s{sWave}, 1")
    a(f"s_cselect_b32 s{sDd}, s{sD[1]}, s{sD[0]}")
    a(f"s_cmp_eq_u32 s{sWave}, 2")
    a(f"s_cselect_b32 s{sDd}, s{sD[2]}, s{sDd}")
    for sr in SP: srd(a, sr, D * N * 2)
    srd(a, sX_, D * 2)
    a(f"s_mul_i32 s{sT}, s{sDd}, {N*2}")
    a(f"v_lshlrev_b32 v{voff}, 1, v{lane}")
    a(f"s_lshl_b32 s{sT2}, s{sDd}, 1")
    a("s_waitcnt lgkmcnt(0)")
    a(f"buffer_load_ushort v{vdt}, v{vzero}, s[{sX_}:{sX_+3}], s{sT2} offen")
    a(f"s_mov_b32 s{sX_}, s18"); a(f"s_mov_b32 s{sX_+1}, s19")
    a(f"buffer_load_ushort v{vdk[0]}, v{vzero}, s[{sX_}:{sX_+3}], s{sT2} offen")
    for p in range(3):
        for i, sr in enumerate(SP):
            a(f"buffer_load_ushort v{P[p][i]}, v{voff}, s[{sr}:{sr+3}], s{sT} offen offset:{128*p}")
    a(f"s_mul_i32 s{sBase}, s{sWave}, {CH_REG}")
    a(f"v_mul_u32_u24 v{vwr}, {KG_S}, v{lane}")
    a(f"v_add_u32 v{vwr}, s{sBase}, v{vwr}")
    a(f"v_bfe_u32 v{t0}, v{lane}, 2, 2")
    a(f"v_lshrrev_b32 v{t1}, 5, v{lane}")
    a(f"v_lshl_add_u32 v{t0}, v{t0}, 2, v{t1}")
    a(f"v_mul_u32_u24 v{t0}, {KG_S}, v{t0}")
    a(f"v_bfe_u32 v{t1}, v{lane}, 4, 1")
    a(f"v_lshl_add_u32 v{t0}, v{t1}, 5, v{t0}")
    a(f"v_and_b32 v{t1}, 3, v{lane}")
    a(f"v_lshl_add_u32 v{t0}, v{t1}, 3, v{t0}")
    a(f"v_add_u32 v{vrd}, s{sBase}, v{t0}")
    for i in (13, 15): a(f"v_mov_b32 v{Cr+i}, 0"); a(f"v_mov_b32 v{Ci+i}, 0")
    a("s_waitcnt vmcnt(0)")
    stamp(a, 1)
    a(f"v_lshlrev_b32 v{vdt}, 16, v{vdt}")
    a(f"v_mul_f32 v{t0}, {f32(LOG2E)}, v{vdt}")
    a(f"s_mov_b32 s{sT}, {f32(LOG2E)}")
    a(f"v_fma_f32 v{t1}, v{vdt}, s{sT}, -v{t0}")
    lo = LOG2E - struct.unpack("<f", struct.pack("<f", LOG2E))[0]
    a(f"v_fmac_f32 v{t1}, {f32(lo)}, v{vdt}")
    a(f"v_exp_f32 v{t0}, v{t0}")
    a(f"v_mul_f32 v{t1}, {f32(LN2)}, v{t1}")
    a(f"v_fma_f32 v{t0}, v{t0}, v{t1}, v{t0}")
    bf16r(a, vdt, t0)
    a(f"s_mov_b32 s{sCnt}, 0")
    def cmul(dst, e, m):
        if ENV("KPK", 0):
            a(f"v_pk_mul_f32 {v(T,2)}, {v(e,2)}, {v(m,2)} op_sel:[0,0] op_sel_hi:[0,1]")
            a(f"v_pk_fma_f32 {v(dst,2)}, {v(e,2)}, {v(m,2)}, {v(T,2)} op_sel:[1,1,0] op_sel_hi:[1,0,1] neg_lo:[0,1,0]")
        else:
            assert dst != e and dst != m
            a(f"v_mul_f32 v{dst}, v{e}, v{m}")
            a(f"v_mul_f32 v{dst+1}, v{e}, v{m+1}")
            a(f"v_fma_f32 v{dst}, -v{e+1}, v{m+1}, v{dst}")
            a(f"v_fmac_f32 v{dst+1}, v{e+1}, v{m}")
    def cexp(dst, scale):
        if scale == 1:
            a(f"v_exp_f32 v{t0}, v{a2b}")
            a(f"v_fract_f32 v{t1}, v{a2b+1}")
        else:
            a(f"v_mul_f32 v{t0}, {f32(float(scale))}, v{a2b}")
            a(f"v_mul_f32 v{t1}, {f32(float(scale))}, v{a2b+1}")
            a(f"v_exp_f32 v{t0}, v{t0}")
            a(f"v_fract_f32 v{t1}, v{t1}")
        a(f"v_cos_f32 v{dst}, v{t1}")
        a(f"v_sin_f32 v{dst+1}, v{t1}")
        a(f"v_mul_f32 v{dst}, v{dst}, v{t0}")
        a(f"v_mul_f32 v{dst+1}, v{dst+1}, v{t0}")
    def mfmas():
        for ks in range(8):
            a(f"v_mfma_f32_32x32x16_bf16 {v(accK,16)}, {v(FA[ks],4)}, {v(FB[ks],4)}, {v(accK,16)}")
    def cpair(dw, x, y):
        a(f"v_cvt_pk_bf16_f32 v{Cr+dw}, v{x}, v{y}")
        a(f"v_cvt_pk_bf16_f32 v{Ci+dw}, -v{x+1}, -v{y+1}")
    if ENV("XKG", 0): a("s_branch KG_after")
    a.label("KG_loop")
    a.flush_hist()
    _a = a
    if ENV("XKW", 0) or ENV("XKM", 0) or ENV("XKR", 0):
        class Filt:
            def __call__(self, t):
                if ENV("XKW", 0) and t.startswith("ds_write"): return
                if ENV("XKR", 0) and t.startswith("ds_read"): return
                if ENV("XKM", 0) and t.startswith("v_mfma"): return
                _a(t)
            def __getattr__(self, n): return getattr(_a, n)
        a = Filt()
    p0 = P[0]
    for i in range(4): a(f"v_lshlrev_b32 v{p0[i]}, 16, v{p0[i]}")
    a(f"v_lshlrev_b32 v{V}, 16, v{p0[4]}")
    a(f"v_lshlrev_b32 v{V+1}, 16, v{p0[5]}")
    a(f"v_mul_f32 v{p0[0]}, v{vdt}, v{p0[0]}")
    a(f"v_mul_f32 v{p0[1]}, v{vdt}, v{p0[1]}")
    a(f"v_mul_f32 v{T2}, v{vdt}, v{p0[2]}")
    a(f"v_mul_f32 v{T2+1}, v{vdt}, v{p0[3]}")
    a(f"v_mul_f32 v{a2b}, {f32(LOG2E)}, v{p0[0]}")
    a(f"v_mul_f32 v{a2b+1}, {f32(1.0/(2*math.pi))}, v{p0[1]}")
    cmul(W, V, T2)
    cexp(l8, 8); cexp(l1, 1); cexp(l256, 256)
    if STAMPS: a("s_memtime s[18:19]")
    a("s_waitcnt lgkmcnt(0)")
    if STAMPS:
        a(f"s_cmp_eq_u32 s{sCnt}, 1")
        a("s_cselect_b32 s82, s18, s82")
        a(f"s_cmp_eq_u32 s{sCnt}, 2")
        a("s_cselect_b32 s84, s18, s84")
    a(f"v_cvt_pk_bf16_f32 v{Qr[0]}, 1.0, v{l8}")
    a(f"v_cvt_pk_bf16_f32 v{Qi[0]}, 0, v{l8+1}")
    cur = l8
    for f in range(2, 32, 2):
        if f // 2 - 1 < 8:
            ks = f // 2 - 1
            a(f"v_mfma_f32_32x32x16_bf16 {v(accK,16)}, {v(FA[ks],4)}, {v(FB[ks],4)}, {v(accK,16)}")
        cmul(E0, cur, l8); cmul(E1, E0, l8); cur = E1
        g, dw = f // 8, (f % 8) // 2
        a(f"v_cvt_pk_bf16_f32 v{Qr[g%2]+dw}, v{E0}, v{E1}")
        a(f"v_cvt_pk_bf16_f32 v{Qi[g%2]+dw}, v{E0+1}, v{E1+1}")
        if dw == 3:
            a(f"ds_write_b128 v{vwr}, {v(Qr[g%2],4)} offset:{16*g}")
            a(f"ds_write_b128 v{vwr}, {v(Qi[g%2],4)} offset:{64+16*g}")
    cmul(E0, W, l1); cpair(0, W, E0)
    cmul(G2, E0, l1); cmul(E0, G2, l1); cpair(1, G2, E0)
    cmul(G4, E0, l1); cmul(E0, G4, l1); cpair(4, G4, E0)
    cmul(G6, E0, l1); cmul(E0, G6, l1); cpair(5, G6, E0)
    cmul(E0, G2, l256); cmul(E1, G6, l256); cpair(3, E0, E1)
    cmul(E0, G4, l256); cmul(E1, E0, l256); cpair(7, E0, E1)
    cmul(E0, E1, l256); cpair(11, E0, E0)
    cur = W
    dwv = {1: 2, 2: 6, 3: 10, 4: 8, 5: 9, 6: 12, 7: 14}
    for j in range(1, 8):
        nx = [E0, E2][j % 2]
        cmul(nx, cur, l256); cmul(E1, nx, l8); cpair(dwv[j], nx, E1); cur = nx
        if j in (1, 2):
            g = j - 1
            a(f"ds_write_b128 v{vwr}, {v(Cr+4*g,4)} offset:{128+16*g}")
            a(f"ds_write_b128 v{vwr}, {v(Ci+4*g,4)} offset:{192+16*g}")
        if j in (5, 7):
            g = {5: 2, 7: 3}[j]
            a(f"ds_write_b128 v{vwr}, {v(Cr+4*g,4)} offset:{128+16*g}")
            a(f"ds_write_b128 v{vwr}, {v(Ci+4*g,4)} offset:{192+16*g}")
    for ks in range(8):
        o = (16 * (ks >> 1) + 2 * (ks & 1)) * KG_S
        a(f"ds_read_b64_tr_b16 {v(FA[ks],2)}, v{vrd} offset:{o+128}")
        a(f"ds_read_b64_tr_b16 {v(FA[ks]+2,2)}, v{vrd} offset:{o+192}")
        a(f"ds_read_b64_tr_b16 {v(FB[ks],2)}, v{vrd} offset:{o}")
        a(f"ds_read_b64_tr_b16 {v(FB[ks]+2,2)}, v{vrd} offset:{o+64}")
    for i in range(6):
        a(f"v_mov_b32 v{P[0][i]}, v{P[1][i]}")
        a(f"v_mov_b32 v{P[1][i]}, v{P[2][i]}")
    a(f"s_cmp_eq_u32 s{sCnt}, 0")
    a(f"s_cselect_b32 s{sT}, 0, -1")
    for i in range(16): a(f"v_and_b32 v{accK+i}, s{sT}, v{accK+i}")
    if STAMPS and 0:
        a("s_memtime s[18:19]")
        a("s_waitcnt lgkmcnt(0)")
        a(f"s_cmp_eq_u32 s{sCnt}, 0")
        a("s_cselect_b32 s82, s18, s82")
        a(f"s_cmp_eq_u32 s{sCnt}, 1")
        a("s_cselect_b32 s84, s18, s84")
    a(f"s_add_u32 s{sCnt}, s{sCnt}, 1")
    a(f"s_cmp_lt_u32 s{sCnt}, 3")
    a("s_cbranch_scc1 KG_loop")
    a = _a
    a.label("KG_after")
    stamp(a, 2)
    a(f"buffer_load_dword v{vtok}, v{vzero}, s[{sDBG}:{sDBG+3}], 0 offen sc1")
    vJa = P[0][0]; vJb = P[0][1]; u0 = P[0][2]; u1 = P[0][3]
    a(f"v_and_b32 v{t0}, 31, v{lane}")
    a(f"v_lshlrev_b32 v{t0}, 4, v{t0}")
    a(f"v_lshrrev_b32 v{t1}, 5, v{lane}")
    a(f"v_lshl_add_u32 v{t2}, v{t1}, 9, v{t0}")
    a(f"s_add_u32 s{sT}, s{sBase}, 1008")
    a(f"v_sub_u32 v{vJa}, s{sT}, v{t2}")
    a(f"v_lshlrev_b32 v{t2}, 10, v{t1}")
    a(f"v_sub_u32 v{t2}, v{t2}, v{t0}")
    a(f"s_add_u32 s{sT}, s{sBase}, 496")
    a(f"v_add_u32 v{vJb}, s{sT}, v{t2}")
    Z = Qr[0]
    for i in range(4): a(f"v_mov_b32 v{Z+i}, 0")
    a(f"v_lshrrev_b32 v{u0}, 2, v{lane}")
    a(f"v_mul_u32_u24 v{u0}, {CV_S}, v{u0}")
    a(f"v_and_b32 v{u1}, 3, v{lane}")
    a(f"v_lshl_add_u32 v{u0}, v{u1}, 4, v{u0}")
    a(f"v_add_u32 v{u0}, s{sBase}, v{u0}")
    a("s_mov_b32 s18, 0xaaaaaaaa"); a("s_mov_b32 s19, 0xaaaaaaaa")
    a("s_waitcnt lgkmcnt(0)")
    mfmas()
    a("s_mov_b64 exec, 0xffff")
    a(f"ds_write_b128 v{u0}, {v(Z,4)} offset:4096")
    a("s_mov_b64 exec, -1")
    O = [Cr, Cr + 8, Ci, Ci + 8]
    ac = lambda i: accK + i
    def cv(d, lo_, hi_): a(f"v_cvt_pk_bf16_f32 v{d}, v{lo_}, v{hi_}")
    def seg3(o, e0, e1):
        a(f"v_cndmask_b32 v{t0}, v{e0}, v{e1}, s[18:19]")
        cv(o, e1, e1); cv(o + 1, e1, t0); cv(o + 2, e0, e0); cv(o + 3, e0, e0)
    def seg2(o, e0, e1, e2):
        cv(o, e2, e2); cv(o + 1, e1, e1); cv(o + 2, e1, e0); cv(o + 3, e0, e0)
    seg3(O[3], ac(12), ac(13))
    a(f"v_lshlrev_b32 v{vdk[0]}, 16, v{vdk[0]}")
    a("s_mov_b64 exec, 1")
    a(f"v_add_f32 v{ac(0)}, v{ac(0)}, v{vdk[0]}")
    a("s_mov_b32 exec_lo, -1")
    for m in range(4): cv(O[0] + m, ac(7 - 2*m), ac(6 - 2*m))
    seg3(O[1], ac(8), ac(9)); seg3(O[2], ac(10), ac(11))
    a("s_mov_b32 exec_hi, -1")
    a("s_mov_b32 exec_lo, 0")
    cv(O[0], ac(1), ac(3)); cv(O[0] + 1, ac(6), ac(6)); cv(O[0] + 2, ac(6), ac(2)); cv(O[0] + 3, ac(0), ac(0))
    seg2(O[1], ac(4), ac(7), ac(5)); seg2(O[2], ac(8), ac(10), ac(9))
    a("s_mov_b32 exec_lo, -1")
    adr = [(vJa, 3072), (vJb, 1536), (vJb, 1024), (vJa, 0)]
    for p in range(4):
        a(f"ds_write_b128 v{adr[p][0]}, {v(O[p],4)} offset:{adr[p][1]}")
    for p in range(4):
        a(f"ds_read_b64 {v(O[p]+4,2)}, v{adr[p][0]} offset:{adr[p][1]+16}")
    stamp(a, 11)
    a("s_waitcnt vmcnt(0)")
    check_token(a, vtok, vzero)
    a("s_waitcnt lgkmcnt(0)")
    for p in range(4):
        Kt = [FA[(3*p + c) % 8] for c in range(3)]
        kin = O[p]
        for k in range(4): a(f"v_alignbyte_b32 v{Kt[0]+k}, v{kin+k+1}, v{kin+k}, 2")
        for k in range(4): a(f"v_mov_b32 v{Kt[1]+k}, v{kin+k+1}")
        for k in range(4): a(f"v_alignbyte_b32 v{Kt[2]+k}, v{kin+k+2}, v{kin+k+1}, 2")
        for c in range(3): a(f"ds_write_b128 v{adr[p][0]}, {v(Kt[c],4)} offset:{adr[p][1] + (c+1)*CV_S}")
    a("s_branch S_join")
    hi = R.hi

    a.label("S_w2t"); a.flush_hist()
    toks = {}
    a("s_waitcnt lgkmcnt(0)")
    a(f"v_mov_b32 v{vtok}, 0")
    check_token(a, vtok, vzero, sleep=32)
    a("s_branch S_join")

    a.label("S_ln"); a.flush_hist()
    R.reset(base)
    voff = R(); vlw = R(); vtr = R()
    Xr = [R(4, 4) for _ in range(10)]
    U = [R(2, 2) for _ in range(40)]
    sm = R(2, 2); mb = R(2, 2); rs = R(2, 2); T = [R(2, 2) for _ in range(4)]; gr = R(2, 2)
    ones = R()
    O = [R(4, 4) for _ in range(4)]
    a(f"s_load_dwordx2 s[{sX_}:{sX_+1}], s[0:1], 0")
    a("s_memrealtime s[18:19]")
    srd(a, sX_, L * D * 2)
    a(f"v_lshrrev_b32 v{t0}, 3, v{lane}")
    a(f"v_and_b32 v{t1}, 7, v{lane}")
    a(f"v_lshlrev_b32 v{t1}, 4, v{t1}")
    a(f"v_mul_u32_u24 v{voff}, 1280, v{t0}")
    a(f"v_add_u32 v{voff}, v{voff}, v{t1}")
    a(f"v_mul_u32_u24 v{vlw}, {LN_S}, v{t0}")
    a(f"v_add_u32 v{vlw}, v{vlw}, v{t1}")
    a(f"v_add_u32 v{vlw}, {LN_OFF}, v{vlw}")
    a(f"s_lshl_b32 s{sT3}, s{sXc}, 5")
    a(f"s_add_u32 s{sT3}, s{sT3}, s{sA}")
    a(f"s_mul_i32 s{sT}, s{sT3}, {8*1280}")
    a("s_waitcnt lgkmcnt(0)")
    a(f"s_cmp_ge_u32 s2, 8")
    a("s_cbranch_scc1 S_ln_nt")
    a("s_or_b32 s18, s18, 1")
    a(f"v_mov_b32 v{gr}, s18")
    a(f"v_mov_b32 v{gr+1}, 0")
    a("s_mov_b64 exec, 1")
    a(f"buffer_atomic_cmpswap {v(gr,2)}, v{vzero}, s[{sDBG}:{sDBG+3}], 0 offen"); a.vm -= 1
    a("s_mov_b64 exec, -1")
    a.label("S_ln_nt")
    for i in range(10):
        a(f"buffer_load_dwordx4 {v(Xr[i],4)}, v{voff}, s[{sX_}:{sX_+3}], s{sT} offen offset:{128*i}")
    a(f"v_mov_b32 v{ones}, 0x3f803f80")
    a(f"v_mov_b32 v{sm}, 0")
    a("s_waitcnt vmcnt(0)")
    stamp(a, 1)
    a(f"buffer_load_dword v{vtok}, v{vzero}, s[{sDBG}:{sDBG+3}], 0 offen sc1")
    for i in range(40):
        a(f"v_dot2_f32_bf16 v{sm}, v{Xr[i//4] + i%4}, v{ones}, v{sm}")
    def red8(r_):
        a(f"v_add_f32_dpp v{r_}, v{r_}, v{r_} quad_perm:[1,0,3,2] row_mask:0xf bank_mask:0xf")
        a(f"v_add_f32_dpp v{r_}, v{r_}, v{r_} quad_perm:[2,3,0,1] row_mask:0xf bank_mask:0xf")
        a(f"v_add_f32_dpp v{r_}, v{r_}, v{r_} row_half_mirror row_mask:0xf bank_mask:0xf")
    for i in range(40):
        x = Xr[i//4] + i % 4
        a(f"v_lshlrev_b32 v{U[i]}, 16, v{x}")
        a(f"v_and_b32 v{U[i]+1}, 0xffff0000, v{x}")
    red8(sm)
    a(f"v_mul_f32 v{sm}, {f32(1.0/D)}, v{sm}")
    bf16r(a, mb, sm)
    a(f"v_mov_b32 v{rs}, 0"); a(f"v_mov_b32 v{rs+1}, 0")
    for i in range(40):
        if ENV("LPK", 1):
            a(f"v_pk_add_f32 {v(U[i],2)}, {v(U[i],2)}, {v(mb,2)} op_sel_hi:[1,0] neg_lo:[0,1] neg_hi:[0,1]")
            a(f"v_pk_fma_f32 {v(rs,2)}, {v(U[i],2)}, {v(U[i],2)}, {v(rs,2)}")
        else:
            for h in range(2):
                a(f"v_sub_f32 v{U[i]+h}, v{U[i]+h}, v{mb}")
                a(f"v_fmac_f32 v{rs+h}, v{U[i]+h}, v{U[i]+h}")
    a(f"v_add_f32 v{rs}, v{rs}, v{rs+1}")
    red8(rs)
    a(f"v_sub_f32 v{t0}, v{sm}, v{mb}")
    a(f"v_mul_f32 v{t0}, v{t0}, v{t0}")
    a(f"v_mul_f32 v{rs}, {f32(1.0/D)}, v{rs}")
    a(f"v_sub_f32 v{rs}, v{rs}, v{t0}")
    a(f"v_max_f32 v{rs}, 0, v{rs}")
    bf16r(a, rs, rs)
    a(f"v_add_f32 v{rs}, {f32(1e-5)}, v{rs}")
    bf16r(a, rs, rs)
    a(f"v_sqrt_f32 v{rs}, v{rs}")
    a(f"v_cvt_pk_bf16_f32 v{gr}, v{mb}, v{rs}")
    a(f"v_and_b32 v{rs}, 0xffff0000, v{gr}")
    a(f"v_rcp_f32 v{rs}, v{rs}")
    for i in range(40):
        x = Xr[i//4] + i % 4
        if ENV("LPK", 1): a(f"v_pk_mul_f32 {v(U[i],2)}, {v(U[i],2)}, {v(rs,2)} op_sel_hi:[1,0]")
        else:
            for h in range(2): a(f"v_mul_f32 v{U[i]+h}, v{U[i]+h}, v{rs}")
        a(f"v_cvt_pk_bf16_f32 v{x}, v{U[i]}, v{U[i]+1}")
        if i % 4 == 3:
            a(f"ds_write_b128 v{vlw}, {v(Xr[i//4],4)} offset:{128*(i//4)}")
    a(f"v_bfe_u32 v{t1}, v{lane}, 2, 2")
    a(f"v_mul_u32_u24 v{t1}, {LN_S}, v{t1}")
    a(f"v_lshrrev_b32 v{t0}, 4, v{lane}")
    a(f"v_lshl_add_u32 v{t1}, v{t0}, 5, v{t1}")
    a(f"v_and_b32 v{t2}, 3, v{lane}")
    a(f"v_lshl_add_u32 v{t1}, v{t2}, 3, v{t1}")
    a(f"v_add_u32 v{vtr}, {LN_OFF}, v{t1}")
    a(f"s_mul_i32 s{sT}, s{sT3}, 10240")
    def rd(i):
        o = O[i % 4]
        for e in range(2):
            a(f"ds_read_b64_tr_b16 {v(o+2*e,2)}, v{vtr} offset:{128*i + 4*e*LN_S}")
        toks[i] = a.ltok()
    for i in range(3): rd(i)
    for i in range(10):
        if i + 3 < 10: rd(i + 3)
        a.wait(lg=toks[i])
        a(f"buffer_store_dwordx4 {v(O[i%4],4)}, v{v16}, s[{sWS}:{sWS+3}], s{sT} offen sc1")
        a(f"s_add_u32 s{sT}, s{sT}, 1024")
    a("s_waitcnt vmcnt(10)")
    check_token(a, vtok, vzero)
    a(f"v_mov_b32 v{gr+1}, s{sTok}")
    a(f"s_lshl_b32 s{sT}, s{sT3}, 7")
    a(f"s_add_u32 s{sT2}, s{sT}, {WS_STAT}")
    a("s_mov_b32 exec_lo, 0x01010101"); a("s_mov_b32 exec_hi, 0x01010101")
    a(f"buffer_store_dwordx2 {v(gr,2)}, v{lane}, s[{sWS}:{sWS+3}], s{sT2} offen sc1")
    a(f"s_add_u32 s{sT}, s{sT}, {WS_FLN}")
    a("s_waitcnt vmcnt(0)")
    a("s_mov_b64 exec, 1")
    a(f"buffer_store_dword v{gr+1}, v{vzero}, s[{sWS}:{sWS+3}], s{sT} offen sc1")
    a("s_mov_b64 exec, -1")
    stamp(a, 2)
    if ONLY: a("s_branch S_end")
    a(f"v_mul_u32_u24 v{t0}, 10240, v{lane}")
    a(f"v_lshlrev_b32 v{t1}, 7, v{lane}")
    a(f"s_cmp_eq_u32 s{sHeavy}, 0")
    a(f"s_cselect_b32 s{sCnt}, s{sD[0]}, s{sD[2]}")
    if ENV("UPF", 1):
        a(f"s_lshl_b32 s{sT3}, s{sA}, 10")
        a(f"s_add_u32 s{sT3}, s{sT3}, {WS_FLN}")
        a(f"v_mov_b32 v{O[1]}, s{sTok}")
        ldu = lambda: a(f"buffer_load_dword v{O[1]}, v{t1}, s[{sWS}:{sWS+3}], s{sT3} offen sc1")
        a("s_mov_b64 exec, 0xff"); a(f"v_mov_b32 v{O[1]}, 0"); a("s_mov_b64 exec, -1")
        a(f"v_lshrrev_b32 v{t2}, 3, v{lane}")
        a(f"v_mul_u32_u24 v{t2}, 10240, v{t2}")
        a(f"v_and_b32 v{t3}, 7, v{lane}")
        a(f"v_lshl_add_u32 v{t2}, v{t3}, 7, v{t2}")
        a("s_waitcnt vmcnt(0)")
        check_flags(a, [O[1]], t1, ldu, sleep=ENV("USL1", 12))
        a(f"s_mul_i32 s{sT}, s{sA}, {8*10240}")
        a(f"s_lshl_b32 s{sT2}, s{sXc}, 10")
        a(f"s_add_u32 s{sT2}, s{sT2}, s{sT}")
        for q_ in range(4):
            m_ = 0xffff << (16 * q_)
            a(f"s_mov_b32 exec_lo, {hex(m_ & 0xffffffff)}"); a(f"s_mov_b32 exec_hi, {hex(m_ >> 32)}")
            a(f"buffer_load_dword v{O[1]+1}, v{t2}, s[{sWS}:{sWS+3}], s{sT2} offen sc1")
            if q_ % 2: a("s_waitcnt vmcnt(0)")
        a(f"s_lshl_b32 s{sT2}, s{sXc}, 8")
        a(f"s_add_u32 s{sT2}, s{sT2}, s{sT}")
        a(f"s_add_u32 s{sT2}, s{sT2}, 8192")
        a("s_mov_b32 exec_lo, 0x03030303"); a("s_mov_b32 exec_hi, 0x03030303")
        a(f"buffer_load_dword v{O[1]+1}, v{t2}, s[{sWS}:{sWS+3}], s{sT2} offen sc1")
        a("s_mov_b64 exec, -1")
        stamp(a, 11)
    a(f"s_lshl_b32 s{sT3}, s2, 7")
    a(f"s_add_u32 s{sT3}, s{sT3}, {WS_FPACE}")
    a(f"s_mov_b32 s{sSpin}, 0")
    a("s_mov_b64 exec, 1")
    a.label("S_pace")
    a(f"s_sleep {ENV('PSLEEP', 8)}")
    a(f"buffer_load_dword v{t2}, v{vzero}, s[{sWS}:{sWS+3}], s{sT3} offen sc1")
    a("s_waitcnt vmcnt(0)")
    a(f"v_readfirstlane_b32 s{sT}, v{t2}")
    a(f"s_cmp_eq_u32 s{sT}, s{sTok}")
    a("s_cbranch_scc1 S_paced")
    a(f"s_add_u32 s{sSpin}, s{sSpin}, 1")
    a(f"s_cmp_lt_u32 s{sSpin}, {ENV('PMAX', 24)}")
    a("s_cbranch_scc1 S_pace")
    a.label("S_paced")
    a("s_mov_b64 exec, -1")
    stamp(a, 10)
    for g in range(4):
        a(f"s_mov_b32 s{sT3}, {WS_FLN + 8192*g}")
        a(f"buffer_load_dword v{O[0]+g}, v{t1}, s[{sWS}:{sWS+3}], s{sT3} offen sc1")
    a("s_waitcnt vmcnt(0)")
    for g in range(4):
        a(f"s_mov_b32 s{sT3}, {WS_FLN + 8192*g}")
        ldf = lambda: a(f"buffer_load_dword v{O[0]+g}, v{t1}, s[{sWS}:{sWS+3}], s{sT3} offen sc1")
        check_flags(a, [O[0] + g], t1, ldf, sleep=ENV("LNSLEEP", 6))
    stamp(a, 9)
    Uq_ = [U[0] + 4 * i for i in range(12)]
    assert U[0] % 4 == 0
    a(f"v_lshrrev_b32 v{t1}, 1, v{lane}")
    a(f"v_and_b32 v{t3}, 1, v{lane}")
    a(f"v_mul_u32_u24 v{t2}, 10240, v{t1}")
    a(f"v_lshl_add_u32 v{t2}, v{t3}, 4, v{t2}")
    a(f"v_mul_u32_u24 v{t3}, 4608, v{t3}")
    a(f"v_lshl_add_u32 v{t3}, v{t1}, 4, v{t3}")
    a(f"s_lshl_b32 s{sT}, s{sD[0]}, 4")
    for g in range(8):
        if g: a(f"s_add_u32 s{sT}, s{sT}, {32*10240}")
        a(f"buffer_load_dwordx4 {v(Uq_[g],4)}, v{t2}, s[{sWS}:{sWS+3}], s{sT} offen sc1")
    a(f"s_cmp_eq_u32 s{sHeavy}, 0")
    a("s_cbranch_scc1 S_g2")
    a(f"s_lshl_b32 s{sT}, s{sD[2]}, 4")
    for g in range(4):
        if g: a(f"s_add_u32 s{sT}, s{sT}, {64*10240}")
        a(f"buffer_load_dwordx4 {v(Uq_[8+g],4)}, v{t0}, s[{sWS}:{sWS+3}], s{sT} offen sc1")
    a("s_waitcnt vmcnt(0)")
    for g in range(4):
        a(f"ds_write_b128 v{v16}, {v(Uq_[8+g],4)} offset:{CV_U[2] + 1024*g}")
    a.label("S_g2")
    for g in range(8):
        a(f"s_waitcnt vmcnt({7-g})")
        a(f"ds_write_b128 v{t3}, {v(Uq_[g],4)} offset:{CV_U[0] + 512*g}")
    stamp(a, 4)
    hi = max(hi, R.hi)

    a.label("S_join"); a.flush_hist()
    if ONLY: a("s_branch S_end")
    if ENV("SPRIO", 0): a(f"s_setprio {ENV('SPRIO', 0)}")
    stamp(a, 3)
    R.reset(base)
    acc = [R(4, 4) for _ in range(8)]
    FA = [[R(4, 4) for _ in range(8)] for _ in range(2)]
    FB = [[R(4, 4) for _ in range(8)] for _ in range(2)]
    vA = R(); vBq = R(); vA0 = R(); vB0 = R(); vrw = R(); vrr = R(); vfl = R(); vfa = R(); vtk = R()
    a(f"s_and_b32 s{sPar}, s{sWave}, 1")
    Z = FB[0][3]
    for i in range(4): a(f"v_mov_b32 v{Z+i}, 0")
    a(f"s_min_u32 s{sT}, s{sWave}, 2")
    a(f"s_mul_i32 s{sT}, s{sT}, 4608")
    a(f"v_add_u32 v{t2}, s{sT}, v{v16}")
    a("s_mov_b32 exec_hi, 0")
    a(f"ds_write_b128 v{t2}, {v(Z,4)} offset:{CV_U[0]-512}")
    a("s_mov_b32 exec_hi, -1")
    a(f"v_and_b32 v{t0}, 15, v{lane}")
    a(f"v_sub_u32 v{t2}, 15, v{t0}")
    a(f"v_and_b32 v{t3}, 3, v{t2}")
    a(f"v_sub_u32 v{t2}, v{t2}, v{t3}")
    a(f"v_mul_u32_u24 v{t3}, {CV_S}, v{t3}")
    a(f"v_lshl_add_u32 v{t3}, v{t2}, 1, v{t3}")
    a(f"v_lshrrev_b32 v{t2}, 4, v{lane}")
    a(f"v_lshl_add_u32 v{vA0}, v{t2}, 4, v{t3}")
    a(f"v_lshlrev_b32 v{t3}, 4, v{t2}")
    a(f"v_lshl_add_u32 v{vB0}, v{t0}, 5, v{t3}")
    a(f"v_lshrrev_b32 v{t3}, 1, v{t2}")
    a(f"v_lshlrev_b32 v{t3}, 3, v{t3}")
    a(f"v_xor_b32 v{t3}, v{t3}, v{t0}")
    a(f"v_lshlrev_b32 v{t3}, 4, v{t3}")
    a(f"v_lshl_add_u32 v{t3}, v{t2}, 8, v{t3}")
    a(f"s_lshl_b32 s{sT}, s{sWave}, 13")
    a(f"v_add_u32 v{vrw}, s{sT}, v{t3}")
    a(f"v_bfe_u32 v{t0}, v{lane}, 1, 4")
    a(f"v_and_b32 v{t2}, 1, v{lane}")
    a(f"v_lshlrev_b32 v{t3}, 3, v{t2}")
    a(f"v_xor_b32 v{t0}, v{t0}, v{t3}")
    a(f"v_lshlrev_b32 v{t0}, 4, v{t0}")
    a(f"v_lshl_add_u32 v{t0}, v{t2}, 9, v{t0}")
    a(f"v_lshrrev_b32 v{t2}, 5, v{lane}")
    a(f"v_lshl_add_u32 v{vrr}, v{t2}, 10, v{t0}")
    a(f"v_mov_b32 v{vtk}, s{sTok}")
    a(f"s_mul_i32 s{sT}, s{sSlot}, {CH_REG}")
    a(f"s_lshl_b32 s{sT2}, s{sPar}, 8")
    a(f"s_sub_u32 s{sT}, s{sT}, s{sT2}")
    a(f"s_add_u32 s{sT}, s{sT}, {32*14}")
    a(f"v_add_u32 v{vA}, s{sT}, v{vA0}")
    a(f"s_mul_i32 s{sT}, s{sSlot}, 4608")
    a(f"s_sub_u32 s{sT}, s{sT}, s{sT2}")
    a(f"s_add_u32 s{sT}, s{sT}, {CV_U[0] - 512 + 32*15}")
    a(f"v_add_u32 v{vBq}, s{sT}, v{vB0}")
    sDa, sDb, sJa, sJb = 20, 21, 22, 23
    a(f"s_lshl_b32 s{sT3}, s{sWave}, 7")
    a(f"s_sub_u32 s{sJb}, s{sT}, 192")
    a(f"s_sub_u32 s{sJb}, s{sJb}, {CV_U[2] - 512 + 32*15}")
    a(f"s_add_u32 s{sJb}, s{sJb}, s{sT3}")
    a(f"s_mul_i32 s{sJa}, s{sSlot}, {CH_REG}")
    a(f"s_sub_u32 s{sJa}, s{sJa}, s{sT2}")
    a(f"s_sub_u32 s{sJa}, s{sJa}, {192 + 2*CH_REG}")
    a(f"s_add_u32 s{sJa}, s{sJa}, s{sT3}")
    acc1 = [R(4, 4) for _ in range(8)]
    for c in range(8):
        for i in range(4):
            a(f"v_mov_b32 v{acc[c]+i}, 0"); a(f"v_mov_b32 v{acc1[c]+i}, 0")
    a(f"s_mov_b32 s{sCnt}, 0")
    a(f"s_add_u32 s{sRound}, s{sHeavy}, 2")
    a("s_waitcnt vmcnt(0) lgkmcnt(0)")
    a("s_barrier")
    stamp(a, 5)

    def rdlist(st, da="64", db="64"):
        rd_ = []
        for j in range(8):
            rd_.append(f"ds_read_b128 {v(FB[st][j],4)}, v{vBq} offset:{512*j}")
            rd_.append(f"ds_read_b64 {v(FA[st][j],2)}, v{vA} offset:{512*(7-j)}")
            rd_.append(f"ds_read_b64 {v(FA[st][j]+2,2)}, v{vA} offset:{512*(7-j)+8}")
        rd_.append(f"v_subrev_u32 v{vA}, {da}, v{vA}")
        rd_.append(f"v_subrev_u32 v{vBq}, {db}, v{vBq}")
        return rd_
    def group(st, nxt, da="64", db="64"):
        pairs = sorted([(c, j) for c in range(8) for j in range(c + 1)], key=lambda cj: (max(cj[1], cj[0] - cj[1]), cj[0]))
        rd_ = rdlist(nxt, da, db)
        for i, (c, j) in enumerate(pairs):
            a(f"v_mfma_f32_16x16x32_bf16 {v(acc[c],4)}, {v(FA[st][j],4)}, {v(FB[st][c-j],4)}, {v(acc[c],4)}")
            if i < len(rd_): a(rd_[i])
    for x in rdlist(0): a(x)
    a.label("CV_loop")
    a(f"s_cmp_eq_u32 s{sCnt}, 1")
    a(f"s_cselect_b32 s{sDa}, s{sJa}, 64")
    a(f"s_cselect_b32 s{sDb}, s{sJb}, 64")
    a("s_waitcnt lgkmcnt(0)")
    group(0, 1, f"s{sDa}", f"s{sDb}")
    a("s_waitcnt lgkmcnt(0)")
    group(1, 0)
    a(f"s_add_u32 s{sCnt}, s{sCnt}, 1")
    a(f"s_cmp_eq_u32 s{sCnt}, 1")
    a("s_cbranch_scc1 CV_loop")
    a(f"s_cmp_eq_u32 s{sCnt}, 3")
    a("s_cbranch_scc1 CV_done")
    for c in range(8):
        for i in range(4): a(f"v_swap_b32 v{acc[c]+i}, v{acc1[c]+i}")
    a(f"s_cmp_lg_u32 s{sHeavy}, 0")
    a("s_nop 0")
    a("s_cbranch_scc1 CV_loop")
    a.label("CV_done")
    a("s_nop 7")
    a("s_waitcnt lgkmcnt(0)")
    a("s_barrier")
    stamp(a, 6)
    for c in range(8):
        a(f"ds_write_b128 v{vrw}, {v(acc1[c],4)} offset:{1024*c}")
    a(f"s_cmp_eq_u32 s{sHeavy}, 0")
    a("s_cbranch_scc1 CV_w1")
    for c in range(8):
        a(f"ds_write_b128 v{vrw}, {v(acc[c],4)} offset:{32768 + 1024*c}")
    a.label("CV_w1")
    a(f"s_lshl_b32 s{sT}, s{sSlot}, 14")
    a(f"s_lshl_b32 s{sT2}, s{sPar}, 12")
    a(f"s_add_u32 s{sT}, s{sT}, s{sT2}")
    a(f"v_add_u32 v{t0}, s{sT}, v{vrr}")
    a(f"s_lshl_b32 s{sT}, s{sWave}, 11")
    a(f"v_add_u32 v{t1}, s{sT}, v{vrr}")
    a(f"s_add_u32 s{sT}, s{sD[0]}, s{sSlot}")
    a(f"s_lshl_b32 s{sT3}, s{sT}, 12")
    a(f"s_lshl_b32 s{sT2}, s{sPar}, 11")
    a(f"s_add_u32 s{sT3}, s{sT3}, s{sT2}")
    a(f"s_add_u32 s{sT3}, s{sT3}, {WS_ST}")
    a(f"s_lshl_b32 s{sT}, s{sT}, 7")
    a(f"s_lshl_b32 s{sT2}, s{sPar}, 3")
    a(f"s_add_u32 s{sT}, s{sT}, s{sT2}")
    a(f"s_add_u32 s{sJa}, s{sT}, {WS_FST}")
    a(f"v_lshlrev_b32 v{t2}, 2, v{lane}")
    a("s_waitcnt lgkmcnt(0)")
    a("s_barrier")
    stamp(a, 7)
    Rd = FA[1]; Re = FA[0]
    for b in range(2):
        for p in range(2):
            for e in range(2):
                a(f"ds_read_b128 {v(Rd[(b*2+p)*2+e],4)}, v{t0} offset:{8192*p + 2048*b + 256*e}")
    for p in range(4):
        for e in range(2):
            a(f"ds_read_b128 {v(Re[p*2+e],4)}, v{t1} offset:{32768 + 8192*p + 256*e}")
    def finish(Rr, bs, npart, o):
        for p in range(1, npart):
            for e in range(2):
                for z in range(4):
                    a(f"v_add_f32 v{Rr[bs+e]+z}, v{Rr[bs+e]+z}, v{Rr[bs+2*p+e]+z}")
        for m in range(4):
            y = Rr[bs + m // 2] + 2 * (m % 2)
            a(f"v_cvt_pk_bf16_f32 v{o+m}, v{y}, v{y+1}")
    for b in range(2):
        a(f"s_waitcnt lgkmcnt({12 - 4*b})")
        finish(Rd, 4 * b, 2, FB[1][b])
        a(f"buffer_store_dwordx4 {v(FB[1][b],4)}, v{v16}, s[{sWS}:{sWS+3}], s{sT3} offen offset:{1024*b} sc1")
    a(f"s_cmp_eq_u32 s{sHeavy}, 0")
    a("s_cbranch_scc1 CV_f1")
    a(f"s_lshl_b32 s{sT3}, s{sWave}, 10")
    a(f"s_lshl_b32 s{sT}, s{sD[2]}, 12")
    a(f"s_add_u32 s{sT2}, s{sT3}, s{sT}")
    a(f"s_add_u32 s{sT2}, s{sT2}, {WS_ST}")
    a("s_waitcnt lgkmcnt(0)")
    finish(Re, 0, 4, FB[1][2])
    a(f"buffer_store_dwordx4 {v(FB[1][2],4)}, v{v16}, s[{sWS}:{sWS+3}], s{sT2} offen sc1")
    a(f"s_lshl_b32 s{sT}, s{sD[2]}, 7")
    a(f"s_lshl_b32 s{sT2}, s{sWave}, 2")
    a(f"s_add_u32 s{sT}, s{sT}, s{sT2}")
    a(f"s_add_u32 s{sT}, s{sT}, {WS_FST}")
    a("s_waitcnt vmcnt(0)")
    a("s_mov_b64 exec, 1")
    a(f"buffer_store_dword v{vtk}, v{vzero}, s[{sWS}:{sWS+3}], s{sT} offen sc1")
    a("s_branch CV_f2")
    a.label("CV_f1")
    a("s_waitcnt vmcnt(0)")
    a.label("CV_f2")
    a("s_mov_b64 exec, 3")
    a(f"buffer_store_dword v{vtk}, v{t2}, s[{sWS}:{sWS+3}], s{sJa} offen sc1")
    a.label("S_end")
    stamp_end(a, sWave)
    return max(hi, R.hi)

W_SLOT = 12288
X_OFF = 3 * W_SLOT
X_WAVE = 11264
NXU = 5
def g_role(a):
    sX, sW1, sB1, sOUT, sW2 = 20, 24, 28, 32, 52
    sRB, sCB, sTB, sJD, sId = 36, 37, 38, 39, 3
    sP = [40, 41, 42]
    sWoff, sXoff, sM0w, sM0x, sOA, sOB = 43, 44, 45, 46, 47, 48
    R = Alloc(1)
    lane = R(); t0 = R(); t1 = R(); t2 = R(); t3 = R(); vzero = R(); vtok = R(); v16 = R(); vfa = R()
    vfl = R(); vsa = R()
    NWR = 25
    NWI = 18
    WR = [R(4, 4) for _ in range(NWR)]
    base2 = pool = R.mark()
    R.reset(184)
    acc = [[R(4, 4) for ct in range(2)] for rt in range(6)]
    cs = [R(4, 4) for _ in range(2)]
    st = [R(2, 2) for _ in range(2)]
    b1p = [R(2, 2) for _ in range(6)]
    R.reset(WR[NWI]); R.limit = 184
    A = [[R(4, 4) for rt in range(6)] for _ in range(2)]
    X = [[[R(4, 4) for ct in range(2)] for e in range(2)] for _ in range(2)]
    ones = R(4, 4)
    vE = [R() for _ in range(3)]; vO = [R() for _ in range(3)]
    vW = [R() for _ in range(3)]; vXs = [R(), R()]; vXr = [R(), R()]
    vpf = R(); vpd = R()
    stamp_begin(a)
    if ENV("GPRIO", 0): a(f"s_setprio {ENV('GPRIO', 0)}")
    a(f"s_load_dwordx2 s[{sX}:{sX+1}], s[0:1], 0")
    a(f"s_load_dwordx2 s[{sW1}:{sW1+1}], s[0:1], 80")
    a(f"s_load_dwordx2 s[{sW2}:{sW2+1}], s[0:1], 96")
    a(f"v_lshrrev_b32 v{t0}, 6, v0")
    a(f"v_and_b32 v{lane}, 63, v0")
    a(f"v_readfirstlane_b32 s{sWave}, v{t0}")
    a(f"s_sub_u32 s{sId}, s2, 256")
    srd(a, sX, L * D * 2); srd(a, sW1, D * F * 2)
    pfx = A[1][0]; pfw = A[1][0] + 1
    a(f"s_lshr_b32 s{sT3}, s{sId}, 3")
    a(f"s_lshl_b32 s{sT3}, s{sT3}, 2")
    a(f"s_add_u32 s{sT3}, s{sT3}, s{sWave}")
    a(f"v_mul_u32_u24 v{t1}, 0xaaab, v{lane}")
    a(f"v_lshrrev_b32 v{t1}, 18, v{t1}")
    a(f"v_mul_u32_u24 v{t2}, 6, v{t1}")
    a(f"v_sub_u32 v{t2}, v{lane}, v{t2}")
    a(f"v_mul_u32_u24 v{t1}, {64*3072}, v{t1}")
    a(f"v_lshl_add_u32 v{t1}, v{t2}, 7, v{t1}")
    a(f"s_lshr_b32 s{sT2}, s{sT3}, 1")
    a(f"s_mul_i32 s{sT2}, s{sT2}, 3072")
    a(f"s_and_b32 s{sT}, s{sId}, 1")
    a(f"s_lshl_b32 s{sT}, s{sT}, 1")
    a(f"s_and_b32 s{sRB}, s{sT3}, 1")
    a(f"s_add_u32 s{sT}, s{sT}, s{sRB}")
    a(f"s_mul_i32 s{sT}, s{sT}, 768")
    a(f"s_add_u32 s{sT2}, s{sT2}, s{sT}")
    a(f"v_add_u32 v{pfw}, s{sT2}, v{t1}")
    a(f"v_lshrrev_b32 v{t2}, 2, v{lane}")
    a(f"v_lshlrev_b32 v{t2}, 7, v{t2}")
    a(f"v_and_b32 v{t3}, 3, v{lane}")
    a(f"v_mul_u32_u24 v{t3}, 1280, v{t3}")
    a(f"v_add_u32 v{t2}, v{t2}, v{t3}")
    a(f"s_bfe_u32 s{sT}, s{sId}, 0x20001")
    a(f"s_lshl_b32 s{sT}, s{sT}, 7")
    a(f"s_add_u32 s{sT}, s{sT}, s{sT3}")
    a(f"s_mul_i32 s{sT}, s{sT}, {4*1280}")
    a(f"v_add_u32 v{pfx}, s{sT}, v{t2}")
    a("s_waitcnt lgkmcnt(0)")
    stamp(a, 1)
    def do_pf(c0, c1):
        def mask(lo, hi):
            m = ((1 << hi) - 1) & ~((1 << lo) - 1)
            a(f"s_mov_b32 exec_lo, {hex(m & 0xffffffff)}"); a(f"s_mov_b32 exec_hi, {hex(m >> 32)}")
        mask(4 * c0, 4 * c1)
        a(f"buffer_load_dword v{vpd}, v{pfx}, s[{sX}:{sX+3}], 0 offen")
        mask(6 * c0, 6 * c1)
        a(f"buffer_load_dword v{vpd}, v{pfw}, s[{sW1}:{sW1+3}], 0 offen")
        a("s_mov_b64 exec, -1")
    PFA_ = ENV("PFSPLIT", 3)
    do_pf(0, PFA_)
    srd(a, sW2, F * D * 2)
    a(f"s_mul_i32 s{sT}, s{sT3}, {15*128}")
    a(f"v_lshl_add_u32 v{vpf}, v{lane}, 7, s{sT}")
    def op_pf2(j):
        def f():
            a(f"s_add_u32 s{sT2}, s{sId}, {j}")
            a(f"s_and_b32 s{sT2}, s{sT2}, 7")
            a(f"s_mul_i32 s{sT2}, s{sT2}, {128*15*128}")
            a("s_mov_b64 exec, 0x7fff")
            a(f"buffer_load_dword v{vpd}, v{vpf}, s[{sW2}:{sW2+3}], s{sT2} offen")
            a("s_mov_b64 exec, -1")
        return f
    if ENV("PF20", 4) == -2: op_pf2(0)()
    a(f"s_load_dwordx2 s[{sB1}:{sB1+1}], s[0:1], 88")
    a(f"s_load_dwordx2 s[{sWS}:{sWS+1}], s[0:1], 120")
    a(f"s_load_dwordx2 s[{sDBG}:{sDBG+1}], s[0:1], 112")
    a(f"s_load_dwordx2 s[{sOUT}:{sOUT+1}], s[0:1], 104")
    srd(a, sB1, F * 2); srd(a, sWS, WS_SIZE); srd(a, sDBG, 256); srd(a, sOUT, L * D * 2)
    a(f"s_and_b32 s{sT}, s{sId}, 7")
    a(f"s_lshr_b32 s{sT2}, s{sId}, 3")
    a(f"s_lshr_b32 s{sRB}, s{sT}, 1")
    a(f"s_lshl_b32 s{sTB}, s{sT}, 2")
    a(f"s_lshl_b32 s{sRB}, s{sRB}, 2")
    a(f"s_and_b32 s{sT3}, s{sT2}, 3")
    a(f"s_add_u32 s{sRB}, s{sRB}, s{sT3}")
    a(f"s_add_u32 s{sTB}, s{sTB}, s{sT3}")
    a(f"s_and_b32 s{sT}, s{sT}, 1")
    a(f"s_lshl_b32 s{sCB}, s{sT}, 3")
    a(f"s_lshr_b32 s{sJD}, s{sT2}, 2")
    a(f"s_add_u32 s{sCB}, s{sCB}, s{sJD}")
    a(f"v_mov_b32 v{vzero}, 0")
    a(f"v_lshlrev_b32 v{v16}, 4, v{lane}")
    for i in range(3):
        a(f"v_add_u32 v{t0}, {64*i}, v{lane}")
        a(f"v_mul_u32_u24 v{t1}, 0xaaab, v{t0}")
        a(f"v_lshrrev_b32 v{t1}, 19, v{t1}")
        a(f"v_mul_u32_u24 v{t2}, 12, v{t1}")
        a(f"v_sub_u32 v{t2}, v{t0}, v{t2}")
        a(f"v_lshrrev_b32 v{t3}, 2, v{t1}")
        a(f"v_and_b32 v{t3}, 2, v{t3}")
        a(f"v_xor_b32 v{t2}, v{t2}, v{t3}")
        a(f"v_lshlrev_b32 v{t2}, 4, v{t2}")
        a(f"v_mul_u32_u24 v{t1}, 3072, v{t1}")
        a(f"v_add_u32 v{vW[i]}, v{t1}, v{t2}")
        if i: a(f"v_subrev_u32 v{vW[i]}, {1024*i}, v{vW[i]}")
    a(f"s_mul_i32 s{sWoff}, s{sWave}, {16*3072}")
    a(f"s_mul_i32 s{sT}, s{sCB}, 192")
    a(f"s_add_u32 s{sWoff}, s{sWoff}, s{sT}")
    a(f"s_mul_i32 s{sM0w}, s{sWave}, 3072")
    a(f"v_lshrrev_b32 v{t0}, 3, v{lane}")
    a(f"v_and_b32 v{t1}, 7, v{lane}")
    a(f"v_lshrrev_b32 v{t2}, 1, v{t0}")
    a(f"v_xor_b32 v{t1}, v{t1}, v{t2}")
    a(f"v_mul_u32_u24 v{t0}, 1280, v{t0}")
    a(f"v_lshl_add_u32 v{vXs[0]}, v{t1}, 4, v{t0}")
    a(f"v_xor_b32 v{vXs[1]}, 64, v{vXs[0]}")
    a(f"v_add_u32 v{vXs[1]}, {8*1280 - 1024}, v{vXs[1]}")
    a(f"s_lshl_b32 s{sXoff}, s{sRB}, 7")
    a(f"s_lshl_b32 s{sT}, s{sWave}, 5")
    a(f"s_add_u32 s{sXoff}, s{sXoff}, s{sT}")
    a(f"s_mul_i32 s{sXoff}, s{sXoff}, 1280")
    a(f"s_mul_i32 s{sM0x}, s{sWave}, {X_WAVE}")
    a(f"s_add_u32 s{sM0x}, s{sM0x}, {X_OFF}")

    tokW = {}; tokXu = {}
    def ops_w(c):
        def f0():
            a(f"s_add_u32 m0, s{sM0w}, {(c % 3) * W_SLOT}")
            if c: a(f"s_add_u32 s{sWoff}, s{sWoff}, {64*3072}")
        def fi(i):
            def f():
                a(f"buffer_load_dwordx4 v{vW[i]}, s[{sW1}:{sW1+3}], s{sWoff} offen offset:{1024*i} lds")
                if i == 2: tokW[c] = a.vtok()
            return f
        return [f0] + [fi(i) for i in range(3)]
    def ops_x(u):
        c, ct = u // 2, u % 2
        def f0():
            a(f"s_add_u32 m0, s{sM0x}, {(u % NXU) * 2048}")
            a(f"s_add_u32 s{sT}, s{sXoff}, {ct*16*1280 + c*128}")
        def fi(h):
            def f():
                a(f"buffer_load_dwordx4 v{vXs[h]}, s[{sX}:{sX+3}], s{sT} offen offset:{1024*h} lds")
                if h == 1: tokXu[u] = a.vtok()
            return f
        return [f0, fi(0), fi(1)]
    def do_first():
        for f in ops_w(0) + ops_x(0) + ops_x(1) + ops_w(1) + ops_x(2) + ops_x(3): f()
    do_first()

    a(f"v_lshrrev_b32 v{t0}, 4, v{lane}")
    a(f"v_bfe_u32 v{t1}, v{lane}, 2, 2")
    a(f"v_lshl_add_u32 v{t1}, v{t0}, 3, v{t1}")
    a(f"v_mul_u32_u24 v{t1}, 192, v{t1}")
    a(f"v_and_b32 v{t2}, 3, v{lane}")
    a(f"v_lshl_add_u32 v{t1}, v{t2}, 3, v{t1}")
    a(f"v_and_b32 v{t2}, 1, v{t0}")
    a(f"v_lshlrev_b32 v{t2}, 5, v{t2}")
    a(f"v_sub_u32 v{t3}, v{t1}, v{t2}")
    a(f"v_add_u32 v{t3}, 32, v{t3}")
    a(f"v_add_u32 v{t2}, v{t1}, v{t2}")
    for P in range(3):
        a(f"s_add_u32 s{sP[P]}, s{sWave}, {P}")
        a(f"s_cmp_ge_u32 s{sP[P]}, 3")
        a(f"s_cselect_b32 s{sT}, 3, 0")
        a(f"s_sub_u32 s{sP[P]}, s{sP[P]}, s{sT}")
        a(f"s_lshl_b32 s{sT}, s{sP[P]}, 6")
        a(f"v_add_u32 v{vE[P]}, s{sT}, v{t2}")
        a(f"v_add_u32 v{vO[P]}, s{sT}, v{t3}")
    a(f"v_and_b32 v{t1}, 15, v{lane}")
    a(f"v_lshrrev_b32 v{t2}, 1, v{t1}")
    a(f"v_xor_b32 v{t2}, v{t2}, v{t0}")
    a(f"v_lshlrev_b32 v{t2}, 4, v{t2}")
    a(f"v_lshl_add_u32 v{t2}, v{t1}, 7, v{t2}")
    a(f"v_add_u32 v{vXr[0]}, s{sM0x}, v{t2}")
    a(f"v_xor_b32 v{t2}, 64, v{t2}")
    a(f"v_add_u32 v{vXr[1]}, s{sM0x}, v{t2}")
    a(f"v_lshrrev_b32 v{t2}, 3, v{t1}")
    a(f"v_and_b32 v{t1}, 7, v{t1}")
    a(f"v_lshlrev_b32 v{t1}, 3, v{t1}")
    a(f"v_lshl_add_u32 v{vsa}, v{t2}, 7, v{t1}")
    a(f"s_mul_i32 s{sT}, s{sWave}, 12")
    a(f"s_mul_i32 s{sOA}, s{sT}, {32*1280}")
    a(f"s_mul_i32 s{sT2}, s{sJD}, 160")
    a(f"s_add_u32 s{sOA}, s{sOA}, s{sT2}")
    a(f"s_mul_i32 s{sOB}, s{sTB}, 192")
    a(f"s_add_u32 s{sOB}, s{sOB}, s{sT}")
    a(f"s_lshl_b32 s{sOB}, s{sOB}, 10")
    a(f"s_add_u32 s{sOB}, s{sOB}, {WS_ACT}")
    a(f"v_lshlrev_b32 v{t0}, 3, v{t0}")

    tokA = {}; tokXr = {}
    def ops_ra(ks):
        c, e = ks // 2, ks % 2
        off = (c % 3) * W_SLOT + e * 6144
        out = []
        for rt in range(6):
            ad = (vE if rt % 2 == 0 else vO)[rt // 2]
            for h in range(2):
                def f(rt=rt, h=h, ad=ad):
                    a(f"ds_read_b64_tr_b16 {v(A[ks%2][rt] + 2*h, 2)}, v{ad} offset:{off + 768*h}")
                    tokA[(ks, rt)] = a.ltok()
                out.append(f)
        return out
    def ops_rx(c):
        out = []
        for e in range(2):
            for ct in range(2):
                def f(e=e, ct=ct):
                    a(f"ds_read_b128 {v(X[c%2][e][ct],4)}, v{vXr[e]} offset:{((2*c+ct) % NXU) * 2048}")
                    tokXr[c] = a.ltok()
                out.append(f)
        return out
    def mf(d, A_, B_, first):
        c = "0" if first else v(d, 4)
        a(f"v_mfma_f32_16x16x32_bf16 {v(d,4)}, {v(A_,4)}, {v(B_,4)}, {c}")
    wq = [0]
    tokWR = {}
    def ops_wr(n, lim=NWI):
        out = []
        for it_ in range(n):
            f_ = wq[0]
            if f_ >= lim: break
            def f(f_=f_, it_=it_):
                if f_ % 4 == 0 or it_ == 0: a(f"s_add_u32 s{sT2}, s{sOA}, {1024*(f_ - f_%4)}")
                a(f"buffer_load_dwordx4 {v(WR[f_],4)}, v{v16}, s[{sWS}:{sWS+3}], s{sT2} offen offset:{1024*(f_%4)} sc1")
                tokWR[f_] = a.vtok()
            out.append(f); wq[0] += 1
        return out
    sFB = 49
    def ld_w2flags():
        a(f"buffer_load_dword v{vfl}, v{vfa}, s[{sWS}:{sWS+3}], s{sFB} offen sc1")
    def ld_first(nl):
        a(f"v_mov_b32 v{vfl}, s{sTok}")
        a(f"s_mov_b64 exec, {hex((1 << nl) - 1)}")
        ld_w2flags()
        a("s_mov_b64 exec, -1")
    def ld_stats():
        for ct in range(2):
            a(f"buffer_load_dwordx2 {v(st[ct],2)}, v{vsa}, s[{sWS}:{sWS+3}], s{sT3} offen offset:{256*ct} sc1")
    tk = {}
    def op_tok():
        a(f"buffer_load_dword v{vtok}, v{vzero}, s[{sDBG}:{sDBG+3}], 0 offen sc1")
        tk["tok"] = a.vtok()
    def op_chk_tok():
        a.wait(vm=tk["tok"])
        check_token(a, vtok, vzero)
    def op_pace():
        a(f"v_mov_b32 v{vtok}, s{sTok}")
        a(f"s_lshl_b32 s{sT2}, s{sId}, 7")
        a(f"s_add_u32 s{sT2}, s{sT2}, {WS_FPACE}")
        a(f"s_cmp_eq_u32 s{sWave}, 0")
        a(f"s_cselect_b32 s{sT2}, s{sT2}, {WS_SIZE}")
        a("s_mov_b64 exec, 1")
        a(f"buffer_store_dword v{vtok}, v{vzero}, s[{sWS}:{sWS+3}], s{sT2} offen sc1")
        a("s_mov_b64 exec, -1")
    def op_stats():
        a(f"s_lshl_b32 s{sT3}, s{sRB}, 4")
        a(f"s_lshl_b32 s{sT2}, s{sWave}, 2")
        a(f"s_add_u32 s{sT3}, s{sT3}, s{sT2}")
        a(f"s_lshl_b32 s{sT3}, s{sT3}, 7")
        a(f"s_add_u32 s{sT3}, s{sT3}, {WS_STAT}")
        ld_stats()
        tk["st"] = a.vtok()
    def op_b1(P):
        def f():
            a(f"s_mul_i32 s{sT2}, s{sCB}, 192")
            a(f"s_lshl_b32 s{sT}, s{sP[P]}, 6")
            a(f"s_add_u32 s{sT}, s{sT}, s{sT2}")
            for o in range(2):
                a(f"buffer_load_dwordx2 {v(b1p[2*P+o],2)}, v{t0}, s[{sB1}:{sB1+3}], s{sT} offen offset:{32*o}")
        return f

    a("s_waitcnt lgkmcnt(0)")
    for P in range(3): op_b1(P)()
    a("s_waitcnt lgkmcnt(0)")
    a.wait(vm=max(tokW[0], tokXu[1]))
    for i in range(4): a(f"v_mov_b32 v{ones+i}, 0x3f803f80")
    a("s_barrier")
    stamp(a, 2)
    for f in ops_rx(0) + ops_ra(0) + ops_x(4) + ops_w(2): f()
    if PFA_ < 10: do_pf(PFA_, 10)
    if ENV("PF20", 4) == -1: op_pf2(0)()
    op_tok()
    extra = {9: [op_chk_tok], ENV("PACEKS", 13): [op_pace], 17: [op_stats]}
    if ENV("PF20", 4) >= 0: extra.setdefault(ENV("PF20", 4), []).append(op_pf2(0))
    for j in range(1, 8): extra.setdefault(min(19, ENV("PF2KS", 10) + (j if not ENV("PF2D", 0) else (j + 1) // 2)), []).append(op_pf2(j))
    if ENV("GPRIO2", 2): a(f"s_setprio {ENV('GPRIO2', 2)}")
    for ks in range(20):
        c, e = ks // 2, ks % 2
        first = ks == 0
        Xs = X[c % 2][e]; As = A[ks % 2]
        mlist = []
        for rt in range(6):
            for ct in range(2): mlist.append((rt, acc[rt][ct], As[rt], Xs[ct]))
            if rt < 2: mlist.append((rt, cs[rt], As[rt], ones))
        if e == 0:
            fill = ops_ra(ks + 1)
            dma = []
            for u in (2 * c + 5, 2 * c + 6):
                if u < 20: dma += ops_x(u)
            fl2 = []
            for i, f in enumerate(fill):
                fl2.append(f)
                if i % 2 == 1 and dma: fl2.append(dma.pop(0))
            fill = fl2 + dma + extra.get(ks, [])
            start = 0
            a.wait(lg=tokXr[c])
        else:
            fill = []
            if ks < 19:
                fill = ops_rx(c + 1) + ops_ra(ks + 1)
                if c + 3 < 10: fill += ops_w(c + 3)
            fill += extra.get(ks, [])
            start = 6 if ks < 19 else 0
        nslots = len(mlist) - start
        per = [len(fill) // nslots + (1 if i < len(fill) % nslots else 0) for i in range(nslots)]
        lastrt = -1
        for i, (rt, d, A_, B_) in enumerate(mlist):
            if e == 1 and ks < 19 and i == start:
                a.wait(vm=max(tokW[c + 1], tokXu[2 * c + 3]), lg=a.ltok())
                a("s_barrier")
                if ks in (5, 11): stamp(a, {5: 3, 11: 4}[ks])
                lastrt = 99
            if rt > lastrt:
                a.wait(lg=tokA[(ks, rt)]); lastrt = rt
            mf(d, A_, B_, first)
            if i >= start:
                for _ in range(per[i - start]): fill.pop(0)()
        assert not fill
    tokst = tk["st"]
    stamp(a, 5)

    E = Alloc(pool, limit=vpf)
    csv = [E(4, 4) for _ in range(6)]
    b1v = [E(4, 4) for _ in range(6)]
    rr = [E(2, 2) for _ in range(2)]
    rm = [st[0], st[1]]
    tmp = [E(2, 2) for _ in range(8)]
    outp = cs
    vcs = E()
    CSOFF = 2 * W_SLOT
    a(f"v_lshrrev_b32 v{t0}, 4, v{lane}")
    a(f"v_lshlrev_b32 v{vcs}, 4, v{t0}")
    a(f"s_lshl_b32 s{sT}, s{sP[0]}, 7")
    a(f"v_add_u32 v{t1}, s{sT}, v{vcs}")
    for o in range(2):
        a(f"ds_write_b128 v{t1}, {v(cs[o],4)} offset:{CSOFF + 64*o}")
    a.wait(vm=tokst)
    check_flags(a, [st[0] + 1, st[1] + 1], vsa, ld_stats)
    a("s_waitcnt lgkmcnt(0)")
    a("s_barrier")
    for P in range(3):
        a(f"s_lshl_b32 s{sT}, s{sP[P]}, 7")
        a(f"v_add_u32 v{t1}, s{sT}, v{vcs}")
        for o in range(2):
            a(f"ds_read_b128 {v(csv[2*P+o],4)}, v{t1} offset:{CSOFF + 64*o}")
    for ct in range(2):
        a(f"v_and_b32 v{t1}, 0xffff0000, v{st[ct]}")
        a(f"v_rcp_f32 v{rr[ct]}, v{t1}")
        a(f"v_lshlrev_b32 v{t2}, 16, v{st[ct]}")
        a(f"v_mul_f32 v{rr[ct]+1}, v{t2}, v{rr[ct]}")
        a(f"v_sub_f32 v{rm[ct]}, 0, v{rr[ct]+1}")
    for rt in range(6):
        a(f"v_lshlrev_b32 v{b1v[rt]}, 16, v{b1p[rt]}")
        a(f"v_and_b32 v{b1v[rt]+1}, 0xffff0000, v{b1p[rt]}")
        a(f"v_lshlrev_b32 v{b1v[rt]+2}, 16, v{b1p[rt]+1}")
        a(f"v_and_b32 v{b1v[rt]+3}, 0xffff0000, v{b1p[rt]+1}")
    a(f"s_lshl_b32 s{sT}, s{sRB}, 3")
    a(f"s_lshl_b32 s{sT2}, s{sWave}, 1")
    a(f"s_add_u32 s{sT}, s{sT}, s{sT2}")
    a(f"s_mul_i32 s{sT}, s{sT}, 48")
    a(f"s_mul_i32 s{sT2}, s{sCB}, 3")
    a(f"s_add_u32 s{sT}, s{sT}, s{sT2}")
    for P in range(3):
        a(f"s_add_u32 s{sP[P]}, s{sP[P]}, s{sT}")
        a(f"s_lshl_b32 s{sP[P]}, s{sP[P]}, 10")
        a(f"s_add_u32 s{sP[P]}, s{sP[P]}, {WS_ACT}")
    a(f"s_mov_b32 s50, {f32(LOG2E)}"); a(f"s_mov_b32 s51, {f32(LOG2E)}")
    Q = Alloc(base2, limit=256)
    acc2 = [[Q(4, 4) for ct in range(4)] for rt in range(5)]
    NST = 3
    FB = [[Q(4, 4) for _ in range(4)] for _ in range(NST)]
    vB = [Q() for _ in range(4)]
    vxo = Q(); vxo2 = Q()
    vw = [Q() for _ in range(5)]; vw8 = Q(); vw4 = Q()
    a(f"s_mul_i32 s{sM0w}, s{sWave}, 20480")
    for i in range(5):
        a(f"v_add_u32 v{t0}, {64*i}, v{lane}")
        a(f"v_mul_u32_u24 v{t1}, 0xcccd, v{t0}")
        a(f"v_lshrrev_b32 v{t1}, 19, v{t1}")
        a(f"v_mul_u32_u24 v{t2}, 10, v{t1}")
        a(f"v_sub_u32 v{t2}, v{t0}, v{t2}")
        a(f"v_mul_u32_u24 v{t1}, 1280, v{t1}")
        a(f"v_lshl_add_u32 v{vw[i]}, v{t2}, 4, v{t1}")
        if 0 < i < 4: a(f"v_subrev_u32 v{vw[i]}, {1024*i}, v{vw[i]}")
    tokD = {}
    def ops_dma(k):
        out = []
        for i in range(5):
            def f(i=i):
                if i == 0:
                    a(f"s_add_u32 m0, s{sM0w}, {5120*(k%4)}")
                    a(f"s_add_u32 s{sXoff}, s{sOA}, {32*1280*k}")
                if i == 4: a(f"s_add_u32 m0, s{sM0w}, {5120*(k%4) + 4096}")
                a(f"buffer_load_dwordx4 v{vw[i]}, s[{sW2}:{sW2+3}], s{sXoff} offen offset:{1024*i if i < 4 else 0} lds")
                tokD[k] = a.vtok()
            out.append(f)
        return out
    tokL = {}
    def op_rw(k, rt):
        o = WR[5 * (k % 5) + rt]
        for e in range(2):
            if rt < 4: a(f"ds_read_b64_tr_b16 {v(o+2*e,2)}, v{vw8} offset:{5120*(k%4) + 64*(rt>>1) + 8*(rt&1) + 2560*e}")
            else: a(f"ds_read_b64_tr_b16 {v(o+2*e,2)}, v{vw4} offset:{5120*(k%4) + 128 + 2560*e}")
        tokL[(k, rt)] = a.ltok()
    a("s_waitcnt lgkmcnt(0)")
    a("s_barrier")
    stamp(a, 6)
    k = 0
    for P in range(3):
        for ct in range(2):
            op = outp[k % 2]; k += 1
            if k == 1: dq = sum([ops_dma(k_) for k_ in range(4)], [])
            def dq_pop():
                if len(dq) > 20 - ENV("NDQ", 0): dq.pop(0)()
            dq_pop()
            hs = []
            EP = ENV("EPLAIN", 0)
            for o in range(2):
                rt = 2 * P + o
                for hf in range(2):
                    h = acc[rt][ct] + 2 * hf
                    tt = tmp[len(hs)]
                    if EP:
                        for z in range(2): a(f"v_fma_f32 v{tt+z}, v{csv[rt]+2*hf+z}, v{rm[ct]}, v{b1v[rt]+2*hf+z}")
                        for z in range(2): a(f"v_fma_f32 v{h+z}, v{h+z}, v{rr[ct]}, v{tt+z}")
                    else:
                        a(f"v_pk_fma_f32 {v(tt,2)}, {v(csv[rt]+2*hf,2)}, {v(rm[ct],2)}, {v(b1v[rt]+2*hf,2)} op_sel_hi:[1,0,1]")
                        a(f"v_pk_fma_f32 {v(h,2)}, {v(h,2)}, {v(rr[ct],2)}, {v(tt,2)} op_sel_hi:[1,0,1]")
                    hs.append(h)
            def pmul(d, x, y):
                if EP:
                    for z in range(2): a(f"v_mul_f32 v{d+z}, " + (f"s50, v{x+z}" if y is None else f"v{x+z}, v{y+z}"))
                else: a(f"v_pk_mul_f32 {v(d,2)}, {v(x,2)}, " + ("s[50:51]" if y is None else v(y, 2)))
            def padd2(d, x):
                if EP:
                    for z in range(2): a(f"v_add_f32 v{d+z}, 2.0, v{x+z}")
                else: a(f"v_pk_add_f32 {v(d,2)}, {v(x,2)}, 2.0 op_sel_hi:[1,0]")
            for i, h in enumerate(hs): pmul(tmp[i], h, None)
            for i, h in enumerate(hs):
                a(f"v_min_f32 v{tmp[i]}, {f32(30.0)}, v{tmp[i]}")
                a(f"v_min_f32 v{tmp[i]+1}, {f32(30.0)}, v{tmp[i]+1}")
            dq_pop()
            for i, h in enumerate(hs):
                a(f"v_exp_f32 v{tmp[i]}, v{tmp[i]}")
                a(f"v_exp_f32 v{tmp[i]+1}, v{tmp[i]+1}")
            dq_pop()
            for i, h in enumerate(hs): padd2(tmp[4+i], tmp[i])
            for i, h in enumerate(hs): pmul(tmp[i], tmp[i], tmp[4+i])
            for i, h in enumerate(hs): padd2(tmp[4+i], tmp[i])
            for i, h in enumerate(hs):
                a(f"v_rcp_f32 v{tmp[4+i]}, v{tmp[4+i]}")
                a(f"v_rcp_f32 v{tmp[4+i]+1}, v{tmp[4+i]+1}")
            dq_pop()
            for i, h in enumerate(hs): pmul(h, h, tmp[i])
            for i, h in enumerate(hs): pmul(h, h, tmp[4+i])
            for i, h in enumerate(hs): a(f"v_cvt_pk_bf16_f32 v{op+i}, v{h}, v{h+1}")
            if ct == 0:
                a(f"buffer_store_dwordx4 {v(op,4)}, v{v16}, s[{sWS}:{sWS+3}], s{sP[P]} offen sc1")
            else:
                a(f"s_add_u32 s{sT}, s{sP[P]}, {48*1024}")
                a(f"buffer_store_dwordx4 {v(op,4)}, v{v16}, s[{sWS}:{sWS+3}], s{sT} offen sc1")
    tokst_ = a.vtok()
    stamp(a, 7)
    a(f"s_lshl_b32 s{sT}, s{sRB}, 4")
    a(f"s_add_u32 s{sT}, s{sT}, s{sCB}")
    a(f"s_lshl_b32 s{sT}, s{sT}, 2")
    a(f"s_add_u32 s{sT}, s{sT}, s{sWave}")
    a(f"s_lshl_b32 s{sT}, s{sT}, 7")
    a(f"s_add_u32 s{sT}, s{sT}, {WS_FACT}")
    a(f"v_mov_b32 v{vtok}, s{sTok}")

    for ct in range(4):
        a(f"s_add_u32 s{sT2}, s{sWave}, {ct}")
        a(f"s_and_b32 s{sT2}, s{sT2}, 3")
        a(f"s_mul_i32 s{sT2}, s{sT2}, {48*1024}")
        a(f"v_add_u32 v{vB[ct]}, s{sT2}, v{v16}")
    a(f"v_lshrrev_b32 v{t1}, 2, v{lane}")
    a(f"v_mul_u32_u24 v{t1}, 160, v{t1}")
    a(f"v_add_u32 v{t1}, s{sM0w}, v{t1}")
    a(f"v_and_b32 v{t2}, 3, v{lane}")
    a(f"v_lshl_add_u32 v{vw8}, v{t2}, 4, v{t1}")
    a(f"v_lshl_add_u32 v{vw4}, v{t2}, 3, v{t1}")
    def do_publish():
        a.wait(vm=tokst_)
        a("s_mov_b64 exec, 1")
        a(f"buffer_store_dword v{vtok}, v{vzero}, s[{sWS}:{sWS+3}], s{sT} offen sc1")
        a("s_mov_b64 exec, -1")
        if ENV("GPRIO2", 2): a(f"s_setprio {ENV('GPRIO3', 0)}")
        stamp(a, 8)
    for _ in range(min(len(dq), 10)): dq.pop(0)()
    a(f"v_and_b32 v{t0}, 3, v{lane}")
    a(f"v_bfe_u32 v{t1}, v{lane}, 2, 1")
    a(f"v_lshl_add_u32 v{vfa}, v{t0}, 2, v{t1}")
    a(f"v_lshlrev_b32 v{vfa}, 7, v{vfa}")
    a(f"s_lshr_b32 s{sFB}, s{sTB}, 1")
    a(f"s_lshl_b32 s{sFB}, s{sFB}, 2")
    a(f"s_add_u32 s{sFB}, s{sFB}, s{sWave}")
    a(f"s_lshl_b32 s{sFB}, s{sFB}, 3")
    a(f"s_and_b32 s{sT2}, s{sTB}, 1")
    a(f"s_add_u32 s{sFB}, s{sFB}, s{sT2}")
    a(f"s_lshl_b32 s{sFB}, s{sFB}, 8")
    a(f"s_add_u32 s{sFB}, s{sFB}, {WS_FACT}")
    a(f"v_mul_u32_u24 v{t0}, {48*1024}, v{t0}")
    a(f"v_lshrrev_b32 v{t1}, 2, v{lane}")
    a(f"v_lshl_add_u32 v{t0}, v{t1}, 10, v{t0}")
    a(f"s_lshl_b32 s{sT2}, s{sJD}, 7")
    a(f"s_add_u32 s{sT2}, s{sT2}, s{sOB}")
    do_publish()
    while dq: dq.pop(0)()
    def rd(k):
        a.wait(vm=tokD[k])
        for rt in range(5): op_rw(k, rt)
    def dm(k):
        a.wait(lg=tokL[(k - 4, 4)])
        for f in ops_dma(k): f()
    tokB = {}; tokBc = {}
    def issue_b(k):
        for ct in range(4):
            a(f"buffer_load_dwordx4 {v(FB[k%NST][ct],4)}, v{vB[ct]}, s[{sWS}:{sWS+3}], s{sOB} offen sc1")
            tokBc[(k, ct)] = a.vtok()
        tokB[k] = a.vtok()
        if k < 11: a(f"s_add_u32 s{sOB}, s{sOB}, 1024")
    FPOS = ENV("FPOS", 2)
    def fl():
        ld_first(8); tk["fa"] = a.vtok()
    rd(0); rd(1); dm(4); rd(2)
    if FPOS == 0: fl()
    dm(5)
    if FPOS == 1: fl()
    rd(3); dm(6)
    if FPOS == 2:
        fl(); dm(7)
    stamp(a, 14)
    a.wait(vm=tk["fa"])
    check_flags(a, [vfl], vfa, ld_w2flags, sleep=ENV("ASLEEP", 3))
    stamp(a, 9)
    if ENV("GPRIO2", 2): a(f"s_setprio {ENV('GPRIO4', 0)}")
    if ENV("PFA", 0):
        a("s_mov_b32 exec_hi, 0xffff")
        a(f"buffer_load_dword v{t3}, v{t0}, s[{sWS}:{sWS+3}], s{sT2} offen sc1")
        a("s_mov_b32 exec_hi, -1")
    for k in range(NST): issue_b(k)
    if FPOS != 2: dm(7)
    rd(4)
    D8 = ENV("D8", 1)
    if D8: dm(8)
    sXo = 40
    a(f"s_lshl_b32 s{sXo}, s{sTB}, 6")
    a(f"s_lshl_b32 s{sT2}, s{sWave}, 4")
    a(f"s_add_u32 s{sXo}, s{sXo}, s{sT2}")
    a(f"s_mul_i32 s{sXo}, s{sXo}, 1280")
    a(f"s_mul_i32 s{sT2}, s{sJD}, 160")
    a(f"s_add_u32 s{sXo}, s{sXo}, s{sT2}")
    vso = vxo; vlw = vxo2
    a(f"v_lshrrev_b32 v{t0}, 3, v{lane}")
    a(f"v_and_b32 v{t1}, 7, v{lane}")
    a(f"v_lshlrev_b32 v{t1}, 4, v{t1}")
    a(f"v_lshl_add_u32 v{vso}, v{t0}, 12, v{t1}")
    a(f"s_mul_i32 s{sM0x}, s{sWave}, 2560")
    STOFF = 61440; XSOFF = 71680
    a(f"v_min_u32 v{vfa}, 19, v{lane}")
    a(f"v_lshlrev_b32 v{vfa}, 7, v{vfa}")
    a(f"s_mul_i32 s{sT3}, s{sJD}, 80")
    a(f"s_mul_i32 s{sT}, s{sWave}, 20")
    a(f"s_add_u32 s{sWoff}, s{sT3}, s{sT}")
    a(f"s_lshl_b32 s{sT3}, s{sWoff}, 7")
    a(f"s_lshr_b32 s{sT}, s{sTB}, 3")
    a(f"s_lshl_b32 s{sT}, s{sT}, 2")
    a(f"s_add_u32 s{sT3}, s{sT3}, s{sT}")
    a(f"s_add_u32 s{sFB}, s{sT3}, {WS_FST}")
    slot = {f: f % 25 for f in range(60)}
    assert D8
    def ld_b(k, ct):
        a(f"buffer_load_dwordx4 {v(FB[k%NST][ct],4)}, v{vB[ct]}, s[{sWS}:{sWS+3}], s{sOB} offen sc1")
        tokBc[(k, ct)] = a.vtok()
        if ct == 3:
            tokB[k] = a.vtok()
            if k < 11: a(f"s_add_u32 s{sOB}, s{sOB}, 1024")
    for k in range(12):
        dma = ops_dma(k + 8) if 1 <= k <= 3 else []
        if k >= 4: a.wait(lg=tokL[(k, 4)])
        for ct in range(4):
            a.wait(vm=tokBc[(k, ct)])
            if ct == 2 and dma: a.wait(lg=tokL[(k + 4, 4)])
            for rt in range(5):
                c = "0" if k == 0 else v(acc2[rt][ct], 4)
                a(f"v_mfma_f32_16x16x32_bf16 {v(acc2[rt][ct],4)}, {v(WR[slot[5*k+rt]],4)}, {v(FB[k%NST][ct],4)}, {c}")
                if ct == 0 and 1 <= k <= 7:
                    if rt == 0: a.wait(vm=tokD[k + 4])
                    op_rw(k + 4, rt)
                if rt == 0 and ct >= 1 and k + NST < 12: ld_b(k + NST, ct - 1)
                if ct >= 2 and rt in (1, 2, 4) and dma: dma.pop(0)()
        while dma: dma.pop(0)()
        if k + NST < 12: ld_b(k + NST, 3)
        if k in (0, 5): stamp(a, {0: 10, 5: 11}[k])
        if k == ENV("STK", 6):
            ld_first(20); tokfl = a.vtok()
        if k == ENV("BARK", 7):
            a("s_waitcnt lgkmcnt(0)")
            a("s_barrier")
            a(f"s_add_u32 m0, s{sM0x}, {XSOFF}")
            for i in range(3):
                if i == 2: a("s_mov_b32 exec_hi, 0")
                a(f"buffer_load_dwordx4 v{vw[i]}, s[{sX}:{sX+3}], s{sXo} offen offset:{1024*i} lds")
            a("s_mov_b32 exec_hi, -1")
        if k == ENV("STK2", 8):
            a.wait(vm=tokfl)
            check_flags(a, [vfl], vfa, ld_w2flags, sleep=ENV("STSLEEP", 8))
            a(f"s_lshl_b32 s{sT}, s{sWoff}, 12")
            a(f"s_lshl_b32 s{sT2}, s{sTB}, 7")
            a(f"s_add_u32 s{sT}, s{sT}, s{sT2}")
            a(f"s_add_u32 s{sT}, s{sT}, {WS_ST}")
            for i in range(3):
                if i == 2: a("s_mov_b32 exec_hi, 0")
                a(f"s_add_u32 m0, s{sM0x}, {STOFF + 1024*i}")
                a(f"buffer_load_dwordx4 v{vso}, s[{sWS}:{sWS+3}], s{sT} offen sc1 lds")
                if i < 2: a(f"s_add_u32 s{sT}, s{sT}, {8*4096}")
            a("s_mov_b32 exec_hi, -1")
        if k == 10:
            for ct in range(1, 4):
                a(f"s_add_u32 s{sT2}, s{sWave}, {ct}")
                a(f"s_and_b32 s{sT2}, s{sT2}, 3")
                a(f"s_mul_i32 s{sT2}, s{sT2}, 15360")
                a(f"v_add_u32 v{vB[ct]}, s{sT2}, v{v16}")
            break
    k = 11
    a.wait(vm=tokB[k]); a.wait(lg=tokL[(k, 4)])
    vt8, vt4, vx16, vx8 = [FB[0][0] + i for i in range(4)]
    misc = [f"v_lshrrev_b32 v{t2}, 4, v{lane}", f"v_bfe_u32 v{t0}, v{lane}, 2, 2",
            f"v_lshl_add_u32 v{t1}, v{t2}, 3, v{t0}", f"v_lshl_add_u32 v{t0}, v{t2}, 2, v{t0}", f"v_and_b32 v{t3}, 3, v{lane}"]
    pend = []
    for ct in (1, 2, 3, 0):
        for rt in range(5):
            a(f"v_mfma_f32_16x16x32_bf16 {v(acc2[rt][ct],4)}, {v(WR[slot[5*k+rt]],4)}, {v(FB[k%NST][ct],4)}, {v(acc2[rt][ct],4)}")
            if ct == 1: a(misc[rt])
            elif pend: a(pend.pop(0))
        if ct: pend += [f"ds_write_b128 v{vB[ct]}, {v(acc2[rt][ct],4)} offset:{(ct-1)*5120 + rt*1024}" for rt in range(5)]
    stamp(a, 12)
    Pr = [[acc2[rt][p + 1] for rt in range(5)] for p in range(3)]
    T = [WR[10 + i // 2] + 2 * (i % 2) for i in range(10)]
    sv = [WR[15 + i // 2] + 2 * (i % 2) for i in range(5)]
    xq = [WR[18], WR[19], WR[20]]
    op = [WR[21], WR[22], WR[23]]
    a(f"s_lshl_b32 s{sT}, s{sWave}, 5")
    a(f"s_add_u32 s{sT}, s{sT}, {STOFF}")
    a(f"v_lshl_add_u32 v{t3}, v{t3}, 3, s{sT}")
    a(f"v_lshl_add_u32 v{vt8}, v{t1}, 7, v{t3}")
    a(f"v_lshl_add_u32 v{vt4}, v{t0}, 7, v{t3}")
    a(f"v_and_b32 v{t0}, 15, v{lane}")
    a(f"v_mul_u32_u24 v{t0}, 160, v{t0}")
    a(f"s_add_u32 s{sT}, s{sM0x}, {XSOFF}")
    a(f"v_add_u32 v{t0}, s{sT}, v{t0}")
    a(f"v_lshl_add_u32 v{vx16}, v{t2}, 4, v{t0}")
    a(f"v_lshl_add_u32 v{vx8}, v{t2}, 3, v{t0}")
    a(f"v_add_u32 v{vlw}, s{sT}, v{v16}")
    a(f"s_mul_i32 s{sT2}, s{sWave}, 15360")
    a(f"v_add_u32 v{t3}, s{sT2}, v{v16}")
    a(f"s_mov_b32 s50, {f32(-LOG2E)}"); a(f"s_mov_b32 s51, {f32(-LOG2E)}")
    a("s_waitcnt vmcnt(0) lgkmcnt(0)")
    a("s_barrier")
    stamp(a, 13)
    tkr = {}
    for rt in range(5):
        for p in range(3):
            a(f"ds_read_b128 {v(Pr[p][rt],4)}, v{t3} offset:{p*5120 + rt*1024}")
        tkr[rt] = a.ltok()
    o2 = []
    late = [f"ds_read_b64_tr_b16 {v(sv[rt],2)}, v{vt8} offset:{128*(32*(rt>>1) + 4*(rt&1))}" for rt in range(4)]
    late += [f"ds_read_b64_tr_b16 {v(sv[4],2)}, v{vt4} offset:{128*64}", f"ds_read_b128 {v(xq[0],4)}, v{vx16}",
             f"ds_read_b128 {v(xq[1],4)}, v{vx16} offset:64", f"ds_read_b64 {v(xq[2],2)}, v{vx8} offset:128"]
    for rt in range(5):
        a.wait(lg=tkr[rt])
        for hf in range(2):
            d = acc2[rt][0] + 2 * hf
            a(f"v_pk_add_f32 {v(Pr[0][rt]+2*hf,2)}, {v(Pr[0][rt]+2*hf,2)}, {v(Pr[1][rt]+2*hf,2)}")
            a(f"v_pk_add_f32 {v(d,2)}, {v(d,2)}, {v(Pr[2][rt]+2*hf,2)}")
            a(f"v_pk_add_f32 {v(d,2)}, {v(d,2)}, {v(Pr[0][rt]+2*hf,2)}")
            o2.append(d)
    for x_ in late: a(x_)
    for i, d in enumerate(o2): a(f"v_pk_mul_f32 {v(T[i],2)}, {v(d,2)}, s[50:51]")
    for i, d in enumerate(o2):
        a(f"v_exp_f32 v{T[i]}, v{T[i]}")
        a(f"v_exp_f32 v{T[i]+1}, v{T[i]+1}")
    for i, d in enumerate(o2): a(f"v_pk_add_f32 {v(T[i],2)}, {v(T[i],2)}, 1.0 op_sel_hi:[1,0]")
    for i, d in enumerate(o2):
        a(f"v_rcp_f32 v{T[i]}, v{T[i]}")
        a(f"v_rcp_f32 v{T[i]+1}, v{T[i]+1}")
    a("s_waitcnt lgkmcnt(0)")
    for i, d in enumerate(o2):
        s_ = sv[i // 2] + i % 2
        x_ = xq[i // 4] + i % 4
        U_ = Pr[0][i // 2] + 2 * (i % 2)
        V_ = Pr[1][i // 2] + 2 * (i % 2)
        a(f"v_pk_mul_f32 {v(d,2)}, {v(d,2)}, {v(T[i],2)}")
        a(f"v_lshlrev_b32 v{U_}, 16, v{s_}")
        a(f"v_and_b32 v{U_+1}, 0xffff0000, v{s_}")
        a(f"v_lshlrev_b32 v{V_}, 16, v{x_}")
        a(f"v_and_b32 v{V_+1}, 0xffff0000, v{x_}")
        a(f"v_pk_fma_f32 {v(d,2)}, {v(d,2)}, {v(U_,2)}, {v(V_,2)}")
        a(f"v_cvt_pk_bf16_f32 v{op[i//4] + i%4}, v{d}, v{d+1}")
        if i == 3: a(f"ds_write_b128 v{vx16}, {v(op[0],4)}")
        if i == 7: a(f"ds_write_b128 v{vx16}, {v(op[1],4)} offset:64")
    a(f"ds_write_b64 v{vx8}, {v(op[2],2)} offset:128")
    for i in range(3):
        a(f"ds_read_b128 {v(xq[i],4)}, v{vlw} offset:{1024*i}")
    for i in range(3):
        a(f"s_waitcnt lgkmcnt({2-i})")
        if i == 2: a("s_mov_b32 exec_hi, 0")
        a(f"buffer_store_dwordx4 {v(xq[i],4)}, v{vw[i]}, s[{sOUT}:{sOUT+3}], s{sXo} offen offset:{1024*i} {os.environ.get('OUTMOD', '')}")
    stamp_end(a, sWave)
    return 256

def main(out):
    ref = open(f"cdna_kernels/{NAME}.s.ref").read().split("\n")
    hdr = [l for l in ref if l.startswith(";") and "@launch" not in l]
    hdr.append(f"; @launch grid=(512,1,1) block=(256,1,1) lds={LDS_BYTES}")
    a = Asm()
    a.raw(f'.amdgcn_target "amdgcn-amd-amdhsa--gfx950"\n.text\n.globl {KN}\n.p2align 8\n.type {KN},@function')
    a.label(KN)
    a("s_cmp_ge_u32 s2, 512")
    a("s_cbranch_scc1 K_exit")
    if ENV("CPF", 1):
        a("s_getpc_b64 s[18:19]")
        a("s_and_b32 s18, s18, 0xffffff00")
        a("s_lshr_b32 s3, s2, 3")
        a("s_xor_b32 s3, s3, 32")
        a("s_lshl_b32 s3, s3, 9")
        a("s_add_u32 s18, s18, s3")
        a("s_addc_u32 s19, s19, 0")
        a("v_lshrrev_b32 v252, 6, v0")
        a("v_lshlrev_b32 v252, 7, v252")
        a("v_mov_b32 v253, s19")
        a("v_add_co_u32 v252, vcc, s18, v252")
        a("v_addc_co_u32 v253, vcc, 0, v253, vcc")
        a("s_mov_b64 exec, 1")
        a("global_load_dword v254, v[252:253], off")
        a("s_mov_b64 exec, -1")
    a("s_cmp_lt_u32 s2, 256")
    a("s_cbranch_scc1 " + ("K_exit" if ENV("NOS", 0) else "S_role"))
    if ENV('NOG', 0): a("s_branch K_exit")
    _role[0] = "G"
    hg = g_role(a)
    _role[0] = "S"
    a.label("S_role"); a.flush_hist()
    hs = s_role(a)
    a.label("K_exit")
    a("s_endpgm")
    if ENV("CPF", 1): a.raw(".p2align 15")
    print("vgprs", hg, hs, "nops", a.nnop, "lines", len(a.items), file=sys.stderr)
    kd = f""".section .rodata,"a"
.p2align 6
.amdhsa_kernel {KN}
  .amdhsa_next_free_vgpr 256
  .amdhsa_next_free_sgpr {102 if STAMPS else 64}
  .amdhsa_accum_offset 256
  .amdhsa_group_segment_fixed_size 0
  .amdhsa_kernarg_size 128
  .amdhsa_user_sgpr_count 2
  .amdhsa_user_sgpr_kernarg_segment_ptr 1
  .amdhsa_system_sgpr_workgroup_id_x 1
  .amdhsa_float_denorm_mode_32 3
  .amdhsa_float_denorm_mode_16_64 3
.end_amdhsa_kernel
"""
    open(out, "w").write("\n".join(hdr) + "\n" + a.text() + kd)

if __name__ == "__main__":
    main(sys.argv[1] if len(sys.argv) > 1 else f"cdna_kernels/{NAME}.s")
```

```python
import sys, os, struct, math
sys.path.insert(0, os.path.dirname(os.path.abspath(__file__)))
from asmlib import *

NAME = "recurrent_scan__ssm_conv_s4__dense_activation_mish__prompt"
KN = NAME + "_kernel"
L, D, N, F = 2048, 640, 192, 1536
ENV = lambda k, d: int(os.environ.get(k, str(d)))
STAMPS = ENV("STAMPS", 0)

WS_XT2 = 0x0000000
WS_ST  = 0x0400000
WS_W2A = 0x0800000
WS_ACT = 0x0C00000
WS_STAT = 0x1400000
WS_FLN = 0x1500000
WS_FPACE = 0x1510000
WS_FACT = 0x1520000
WS_FST = 0x1560000
WS_SIZE = 0x1600000
WS_STAMP = 0x4000000
LDS_BYTES = 81920
SPIN_MAX = 0x4000

def f32(x): return "0x%08x" % struct.unpack("<I", struct.pack("<f", x))[0]
LOG2E = 1.4426950408889634
LN2 = 0.6931471805599453

def srd(a, sreg, size):
    a(f"s_mov_b32 s{sreg+2}, {size}")
    a(f"s_mov_b32 s{sreg+3}, 0x20000")

def bf16r(a, dst, src):
    a(f"v_cvt_pk_bf16_f32 v{dst}, v{src}, v{src}")
    a(f"v_and_b32 v{dst}, 0xffff0000, v{dst}")

_sn = [0]
DIAG = ENV("DIAG", 0)
_role = ["?"]
def stamp_begin(a):
    _sn[0] = 0
    if DIAG and _role[0] == "G": a("s_memrealtime s[60:61]")
    if STAMPS:
        a("s_memrealtime s[60:61]")
        for i in range(64, 96, 2): a(f"s_mov_b64 s[{i}:{i+1}], 0")
        a("s_memtime s[64:65]")
        _sn[0] = 1
def stamp(a, n=None):
    if DIAG and n == DIAG and _role[0] == "G": a("s_memrealtime s[62:63]")
    if STAMPS:
        if n is None:
            n = _sn[0]; _sn[0] += 1
        assert n < 16
        a(f"s_memtime s[{64+2*n}:{65+2*n}]")
def stamp_end(a, sWave):
    if DIAG and _role[0] == "G":
        if DIAG == 15: a("s_memrealtime s[62:63]")
        a("s_memrealtime s[56:57]")
        a("s_waitcnt lgkmcnt(0)")
        a("s_sub_u32 s62, s62, s60")
        a("s_add_u32 s56, s56, s62")
        a.label("DG_spin")
        a("s_sleep 2")
        a("s_memrealtime s[58:59]")
        a("s_waitcnt lgkmcnt(0)")
        a("s_sub_u32 s58, s58, s56")
        a("s_cmp_lt_i32 s58, 0")
        a("s_cbranch_scc1 DG_spin")
    if STAMPS:
        stamp(a, 15)
        a("s_memrealtime s[62:63]")
        a("s_load_dwordx2 s[96:97], s[0:1], 120")
        a("s_waitcnt lgkmcnt(0)")
        a(f"s_add_u32 s96, s96, {WS_STAMP}")
        a("s_addc_u32 s97, s97, 0")
        a("s_mov_b32 s98, 0x100000")
        a("s_mov_b32 s99, 0x20000")
        a("s_lshl_b32 s59, s2, 10")
        a(f"s_lshl_b32 s58, s{sWave}, 8")
        a("s_add_u32 s59, s59, s58")
        a("s_mov_b64 exec, 1")
        a("v_mov_b32 v1, s59")
        a("v_mov_b32 v2, s60"); a("v_mov_b32 v3, s62")
        a("buffer_store_dwordx2 v[2:3], v1, s[96:99], 0 offen")
        for n in range(16):
            a(f"s_sub_u32 s59, s{64+2*n}, s64")
            a(f"s_cmp_eq_u32 s{64+2*n}, 0")
            a(f"s_cselect_b32 s59, 0, s59")
            a(f"v_mov_b32 v{4 + n}, s59")
            a(f"buffer_store_dword v{4 + n}, v1, s[96:99], 0 offen offset:{16+4*n}")
    a("s_endpgm")

_lab = [0]
def newlab(p):
    _lab[0] += 1
    return f"{p}_{_lab[0]}"

sWS, sDBG = 4, 8
sWave, sTok, sSpin = 12, 13, 14
sT, sT2, sT3 = 15, 16, 17

def check_token(a, vtok, vzero, sleep=2):
    done = newlab("TK"); loop = newlab("TL")
    if ENV("NOS", 0) or os.environ.get("ONLY", ""):
        a(f"s_mov_b32 s{sTok}, 0x12345"); return
    a(f"v_readfirstlane_b32 s{sTok}, v{vtok}")
    a(f"s_cmp_lg_u32 s{sTok}, 0")
    a(f"s_cbranch_scc1 {done}")
    a(f"s_mov_b32 s{sSpin}, 0")
    a.label(loop)
    a(f"s_sleep {sleep}")
    a(f"buffer_load_dword v{vtok}, v{vzero}, s[{sDBG}:{sDBG+3}], 0 offen sc1"); a.vm -= 1
    a("s_waitcnt vmcnt(0)")
    a(f"v_readfirstlane_b32 s{sTok}, v{vtok}")
    a(f"s_cmp_lg_u32 s{sTok}, 0")
    a(f"s_cbranch_scc1 {done}")
    a(f"s_add_u32 s{sSpin}, s{sSpin}, 1")
    a(f"s_cmp_lt_u32 s{sSpin}, {SPIN_MAX}")
    a(f"s_cbranch_scc1 {loop}")
    a.label(done)

def check_flags(a, vfl, vaddr, reload, sleep=2):
    if (ENV("NOS", 0) or os.environ.get("ONLY", "")) and sleep != 3: return
    done = newlab("FD"); loop = newlab("FL")
    def cmpall():
        a(f"v_cmp_ne_u32 vcc, s{sTok}, v{vfl[0]}")
        for r_ in vfl[1:]:
            a(f"v_cmp_ne_u32 s[18:19], s{sTok}, v{r_}")
            a("s_or_b64 vcc, vcc, s[18:19]")
        a("s_cmp_eq_u64 vcc, 0")
    cmpall()
    a(f"s_cbranch_scc1 {done}")
    a(f"s_mov_b32 s{sSpin}, 0")
    a.label(loop)
    a(f"s_sleep {sleep}")
    n0 = a.vm
    a("s_mov_b64 exec, vcc")
    reload()
    a("s_mov_b64 exec, -1")
    a.vm = n0
    a("s_waitcnt vmcnt(0)")
    cmpall()
    a(f"s_cbranch_scc1 {done}")
    a(f"s_add_u32 s{sSpin}, s{sSpin}, 1")
    a(f"s_cmp_lt_u32 s{sSpin}, {SPIN_MAX}")
    a(f"s_cbranch_scc1 {loop}")
    a.label(done)

CV_S = 4160
CH_REG = 64 * 272
CV_U = [3 * CH_REG + 512 + 4608 * i for i in range(3)]
LN_OFF = 3 * CH_REG + 3 * 4608
LN_S = 1344
PACE_OFF = LDS_BYTES - 16
KG_S = 272
COARSE = list(range(8)) + [256, 258, 260, 262, 512, 516, 768, 772, 1024, 1280, 1536, 1792, 2048]
assert LN_OFF + 8 * LN_S <= LDS_BYTES and 4 * CV_S <= CH_REG

def s_role(a):
    sX_, sA, sXc = 20, 24, 25
    sD = [26, 27, 28]
    sCnt, sPar, sSlot, sRound, sHeavy = 29, 30, 31, 56, 57
    SP = [32, 36, 40, 44, 48, 52]
    R = Alloc(1)
    lane = R(); t0 = R(); t1 = R(); t2 = R(); t3 = R(); vzero = R(); vtok = R(); v16 = R()
    vdk = [R(), R()]
    base = R.mark()
    stamp_begin(a)
    a(f"s_load_dwordx2 s[{sWS}:{sWS+1}], s[0:1], 120")
    a(f"s_load_dwordx2 s[{sDBG}:{sDBG+1}], s[0:1], 112")
    a(f"v_lshrrev_b32 v{t0}, 6, v0")
    a(f"v_and_b32 v{lane}, 63, v0")
    a(f"v_readfirstlane_b32 s{sWave}, v{t0}")
    srd(a, sWS, WS_SIZE); srd(a, sDBG, 256)
    a(f"s_and_b32 s{sXc}, s2, 7")
    a(f"s_lshr_b32 s{sA}, s2, 3")
    a(f"s_lshl_b32 s{sD[0]}, s{sXc}, 6")
    a(f"s_lshl_b32 s{sT}, s{sA}, 1")
    a(f"s_add_u32 s{sD[0]}, s{sD[0]}, s{sT}")
    a(f"s_add_u32 s{sD[1]}, s{sD[0]}, 1")
    a(f"s_lshl_b32 s{sD[2]}, s{sXc}, 4")
    a(f"s_add_u32 s{sD[2]}, s{sD[2]}, s{sA}")
    a(f"s_add_u32 s{sD[2]}, s{sD[2]}, 512")
    a(f"s_cmp_lt_u32 s{sA}, 16")
    a(f"s_cselect_b32 s{sHeavy}, 1, 0")
    a(f"v_mov_b32 v{vzero}, 0")
    a(f"v_lshlrev_b32 v{v16}, 4, v{lane}")
    ONLY = os.environ.get("ONLY", "")
    if ENV("SPRIO0", 0): a(f"s_setprio {ENV('SPRIO0', 0)}")
    a(f"s_lshr_b32 s{sSlot}, s{sWave}, 1")
    a(f"s_cmp_eq_u32 s{sWave}, 3")
    a("s_cbranch_scc1 " + ("S_ln" if (not ONLY or "l" in ONLY) else "K_exit"))
    a(f"s_add_u32 s{sT}, s{sHeavy}, 2")
    a(f"s_cmp_ge_u32 s{sWave}, s{sT}")
    a("s_cbranch_scc1 " + ("S_w2t" if (not ONLY or "w" in ONLY) else "K_exit"))
    if ONLY and "k" not in ONLY: a("s_branch K_exit")

    P = [[R() for _ in range(6)] for _ in range(3)]
    vdt = R(); vwr = R(); vrd = R(); voff = R()
    accK = R(16, 4)
    FA = [R(4, 4) for _ in range(8)]; FB = [R(4, 4) for _ in range(8)]
    pr = lambda: R(2, 2)
    l1, l8, l256, W, E0, E1, E2, T, T2, G2, G4, G6, V, a2b = [pr() for _ in range(14)]
    Qr = [R(4, 4) for _ in range(2)]; Qi = [R(4, 4) for _ in range(2)]
    Cr = R(16, 4); Ci = R(16, 4)
    sDd, sBase = 58, 59
    if STAMPS: sDd, sBase = 100, 101
    for i, sr in enumerate(SP):
        a(f"s_load_dwordx2 s[{sr}:{sr+1}], s[0:1], {8 + 8*i}")
    a(f"s_load_dwordx2 s[{sX_}:{sX_+1}], s[0:1], 56")
    a(f"s_load_dwordx2 s[18:19], s[0:1], 64")
    a(f"s_cmp_eq_u32 s{sWave}, 1")
    a(f"s_cselect_b32 s{sDd}, s{sD[1]}, s{sD[0]}")
    a(f"s_cmp_eq_u32 s{sWave}, 2")
    a(f"s_cselect_b32 s{sDd}, s{sD[2]}, s{sDd}")
    for sr in SP: srd(a, sr, D * N * 2)
    srd(a, sX_, D * 2)
    a(f"s_mul_i32 s{sT}, s{sDd}, {N*2}")
    a(f"v_lshlrev_b32 v{voff}, 1, v{lane}")
    a(f"s_lshl_b32 s{sT2}, s{sDd}, 1")
    a("s_waitcnt lgkmcnt(0)")
    a(f"buffer_load_ushort v{vdt}, v{vzero}, s[{sX_}:{sX_+3}], s{sT2} offen")
    a(f"s_mov_b32 s{sX_}, s18"); a(f"s_mov_b32 s{sX_+1}, s19")
    a(f"buffer_load_ushort v{vdk[0]}, v{vzero}, s[{sX_}:{sX_+3}], s{sT2} offen")
    for p in range(3):
        for i, sr in enumerate(SP):
            a(f"buffer_load_ushort v{P[p][i]}, v{voff}, s[{sr}:{sr+3}], s{sT} offen offset:{128*p}")
    a(f"s_mul_i32 s{sBase}, s{sWave}, {CH_REG}")
    a(f"v_mul_u32_u24 v{vwr}, {KG_S}, v{lane}")
    a(f"v_add_u32 v{vwr}, s{sBase}, v{vwr}")
    a(f"v_bfe_u32 v{t0}, v{lane}, 2, 2")
    a(f"v_lshrrev_b32 v{t1}, 5, v{lane}")
    a(f"v_lshl_add_u32 v{t0}, v{t0}, 2, v{t1}")
    a(f"v_mul_u32_u24 v{t0}, {KG_S}, v{t0}")
    a(f"v_bfe_u32 v{t1}, v{lane}, 4, 1")
    a(f"v_lshl_add_u32 v{t0}, v{t1}, 5, v{t0}")
    a(f"v_and_b32 v{t1}, 3, v{lane}")
    a(f"v_lshl_add_u32 v{t0}, v{t1}, 3, v{t0}")
    a(f"v_add_u32 v{vrd}, s{sBase}, v{t0}")
    for i in (13, 15): a(f"v_mov_b32 v{Cr+i}, 0"); a(f"v_mov_b32 v{Ci+i}, 0")
    a("s_waitcnt vmcnt(0)")
    stamp(a, 1)
    a(f"v_lshlrev_b32 v{vdt}, 16, v{vdt}")
    a(f"v_mul_f32 v{t0}, {f32(LOG2E)}, v{vdt}")
    a(f"s_mov_b32 s{sT}, {f32(LOG2E)}")
    a(f"v_fma_f32 v{t1}, v{vdt}, s{sT}, -v{t0}")
    lo = LOG2E - struct.unpack("<f", struct.pack("<f", LOG2E))[0]
    a(f"v_fmac_f32 v{t1}, {f32(lo)}, v{vdt}")
    a(f"v_exp_f32 v{t0}, v{t0}")
    a(f"v_mul_f32 v{t1}, {f32(LN2)}, v{t1}")
    a(f"v_fma_f32 v{t0}, v{t0}, v{t1}, v{t0}")
    bf16r(a, vdt, t0)
    a(f"s_mov_b32 s{sCnt}, 0")
    def cmul(dst, e, m):
        if ENV("KPK", 0):
            a(f"v_pk_mul_f32 {v(T,2)}, {v(e,2)}, {v(m,2)} op_sel:[0,0] op_sel_hi:[0,1]")
            a(f"v_pk_fma_f32 {v(dst,2)}, {v(e,2)}, {v(m,2)}, {v(T,2)} op_sel:[1,1,0] op_sel_hi:[1,0,1] neg_lo:[0,1,0]")
        else:
            assert dst != e and dst != m
            a(f"v_mul_f32 v{dst}, v{e}, v{m}")
            a(f"v_mul_f32 v{dst+1}, v{e}, v{m+1}")
            a(f"v_fma_f32 v{dst}, -v{e+1}, v{m+1}, v{dst}")
            a(f"v_fmac_f32 v{dst+1}, v{e+1}, v{m}")
    def cexp(dst, scale):
        if scale == 1:
            a(f"v_exp_f32 v{t0}, v{a2b}")
            a(f"v_fract_f32 v{t1}, v{a2b+1}")
        else:
            a(f"v_mul_f32 v{t0}, {f32(float(scale))}, v{a2b}")
            a(f"v_mul_f32 v{t1}, {f32(float(scale))}, v{a2b+1}")
            a(f"v_exp_f32 v{t0}, v{t0}")
            a(f"v_fract_f32 v{t1}, v{t1}")
        a(f"v_cos_f32 v{dst}, v{t1}")
        a(f"v_sin_f32 v{dst+1}, v{t1}")
        a(f"v_mul_f32 v{dst}, v{dst}, v{t0}")
        a(f"v_mul_f32 v{dst+1}, v{dst+1}, v{t0}")
    def mfmas():
        for ks in range(8):
            a(f"v_mfma_f32_32x32x16_bf16 {v(accK,16)}, {v(FA[ks],4)}, {v(FB[ks],4)}, {v(accK,16)}")
    def cpair(dw, x, y):
        a(f"v_cvt_pk_bf16_f32 v{Cr+dw}, v{x}, v{y}")
        a(f"v_cvt_pk_bf16_f32 v{Ci+dw}, -v{x+1}, -v{y+1}")
    if ENV("XKG", 0): a("s_branch KG_after")
    a.label("KG_loop")
    a.flush_hist()
    _a = a
    if ENV("XKW", 0) or ENV("XKM", 0) or ENV("XKR", 0):
        class Filt:
            def __call__(self, t):
                if ENV("XKW", 0) and t.startswith("ds_write"): return
                if ENV("XKR", 0) and t.startswith("ds_read"): return
                if ENV("XKM", 0) and t.startswith("v_mfma"): return
                _a(t)
            def __getattr__(self, n): return getattr(_a, n)
        a = Filt()
    p0 = P[0]
    for i in range(4): a(f"v_lshlrev_b32 v{p0[i]}, 16, v{p0[i]}")
    a(f"v_lshlrev_b32 v{V}, 16, v{p0[4]}")
    a(f"v_lshlrev_b32 v{V+1}, 16, v{p0[5]}")
    a(f"v_mul_f32 v{p0[0]}, v{vdt}, v{p0[0]}")
    a(f"v_mul_f32 v{p0[1]}, v{vdt}, v{p0[1]}")
    a(f"v_mul_f32 v{T2}, v{vdt}, v{p0[2]}")
    a(f"v_mul_f32 v{T2+1}, v{vdt}, v{p0[3]}")
    a(f"v_mul_f32 v{a2b}, {f32(LOG2E)}, v{p0[0]}")
    a(f"v_mul_f32 v{a2b+1}, {f32(1.0/(2*math.pi))}, v{p0[1]}")
    cmul(W, V, T2)
    cexp(l8, 8); cexp(l1, 1); cexp(l256, 256)
    if STAMPS: a("s_memtime s[18:19]")
    a("s_waitcnt lgkmcnt(0)")
    if STAMPS:
        a(f"s_cmp_eq_u32 s{sCnt}, 1")
        a("s_cselect_b32 s82, s18, s82")
        a(f"s_cmp_eq_u32 s{sCnt}, 2")
        a("s_cselect_b32 s84, s18, s84")
    a(f"v_cvt_pk_bf16_f32 v{Qr[0]}, 1.0, v{l8}")
    a(f"v_cvt_pk_bf16_f32 v{Qi[0]}, 0, v{l8+1}")
    cur = l8
    for f in range(2, 32, 2):
        if f // 2 - 1 < 8:
            ks = f // 2 - 1
            a(f"v_mfma_f32_32x32x16_bf16 {v(accK,16)}, {v(FA[ks],4)}, {v(FB[ks],4)}, {v(accK,16)}")
        cmul(E0, cur, l8); cmul(E1, E0, l8); cur = E1
        g, dw = f // 8, (f % 8) // 2
        a(f"v_cvt_pk_bf16_f32 v{Qr[g%2]+dw}, v{E0}, v{E1}")
        a(f"v_cvt_pk_bf16_f32 v{Qi[g%2]+dw}, v{E0+1}, v{E1+1}")
        if dw == 3:
            a(f"ds_write_b128 v{vwr}, {v(Qr[g%2],4)} offset:{16*g}")
            a(f"ds_write_b128 v{vwr}, {v(Qi[g%2],4)} offset:{64+16*g}")
    cmul(E0, W, l1); cpair(0, W, E0)
    cmul(G2, E0, l1); cmul(E0, G2, l1); cpair(1, G2, E0)
    cmul(G4, E0, l1); cmul(E0, G4, l1); cpair(4, G4, E0)
    cmul(G6, E0, l1); cmul(E0, G6, l1); cpair(5, G6, E0)
    cmul(E0, G2, l256); cmul(E1, G6, l256); cpair(3, E0, E1)
    cmul(E0, G4, l256); cmul(E1, E0, l256); cpair(7, E0, E1)
    cmul(E0, E1, l256); cpair(11, E0, E0)
    cur = W
    dwv = {1: 2, 2: 6, 3: 10, 4: 8, 5: 9, 6: 12, 7: 14}
    for j in range(1, 8):
        nx = [E0, E2][j % 2]
        cmul(nx, cur, l256); cmul(E1, nx, l8); cpair(dwv[j], nx, E1); cur = nx
        if j in (1, 2):
            g = j - 1
            a(f"ds_write_b128 v{vwr}, {v(Cr+4*g,4)} offset:{128+16*g}")
            a(f"ds_write_b128 v{vwr}, {v(Ci+4*g,4)} offset:{192+16*g}")
        if j in (5, 7):
            g = {5: 2, 7: 3}[j]
            a(f"ds_write_b128 v{vwr}, {v(Cr+4*g,4)} offset:{128+16*g}")
            a(f"ds_write_b128 v{vwr}, {v(Ci+4*g,4)} offset:{192+16*g}")
    for ks in range(8):
        o = (16 * (ks >> 1) + 2 * (ks & 1)) * KG_S
        a(f"ds_read_b64_tr_b16 {v(FA[ks],2)}, v{vrd} offset:{o+128}")
        a(f"ds_read_b64_tr_b16 {v(FA[ks]+2,2)}, v{vrd} offset:{o+192}")
        a(f"ds_read_b64_tr_b16 {v(FB[ks],2)}, v{vrd} offset:{o}")
        a(f"ds_read_b64_tr_b16 {v(FB[ks]+2,2)}, v{vrd} offset:{o+64}")
    for i in range(6):
        a(f"v_mov_b32 v{P[0][i]}, v{P[1][i]}")
        a(f"v_mov_b32 v{P[1][i]}, v{P[2][i]}")
    a(f"s_cmp_eq_u32 s{sCnt}, 0")
    a(f"s_cselect_b32 s{sT}, 0, -1")
    for i in range(16): a(f"v_and_b32 v{accK+i}, s{sT}, v{accK+i}")
    if STAMPS and 0:
        a("s_memtime s[18:19]")
        a("s_waitcnt lgkmcnt(0)")
        a(f"s_cmp_eq_u32 s{sCnt}, 0")
        a("s_cselect_b32 s82, s18, s82")
        a(f"s_cmp_eq_u32 s{sCnt}, 1")
        a("s_cselect_b32 s84, s18, s84")
    a(f"s_add_u32 s{sCnt}, s{sCnt}, 1")
    a(f"s_cmp_lt_u32 s{sCnt}, 3")
    a("s_cbranch_scc1 KG_loop")
    a = _a
    a.label("KG_after")
    stamp(a, 2)
    a(f"buffer_load_dword v{vtok}, v{vzero}, s[{sDBG}:{sDBG+3}], 0 offen sc1")
    vJa = P[0][0]; vJb = P[0][1]; u0 = P[0][2]; u1 = P[0][3]
    a(f"v_and_b32 v{t0}, 31, v{lane}")
    a(f"v_lshlrev_b32 v{t0}, 4, v{t0}")
    a(f"v_lshrrev_b32 v{t1}, 5, v{lane}")
    a(f"v_lshl_add_u32 v{t2}, v{t1}, 9, v{t0}")
    a(f"s_add_u32 s{sT}, s{sBase}, 1008")
    a(f"v_sub_u32 v{vJa}, s{sT}, v{t2}")
    a(f"v_lshlrev_b32 v{t2}, 10, v{t1}")
    a(f"v_sub_u32 v{t2}, v{t2}, v{t0}")
    a(f"s_add_u32 s{sT}, s{sBase}, 496")
    a(f"v_add_u32 v{vJb}, s{sT}, v{t2}")
    Z = Qr[0]
    for i in range(4): a(f"v_mov_b32 v{Z+i}, 0")
    a(f"v_lshrrev_b32 v{u0}, 2, v{lane}")
    a(f"v_mul_u32_u24 v{u0}, {CV_S}, v{u0}")
    a(f"v_and_b32 v{u1}, 3, v{lane}")
    a(f"v_lshl_add_u32 v{u0}, v{u1}, 4, v{u0}")
    a(f"v_add_u32 v{u0}, s{sBase}, v{u0}")
    a("s_mov_b32 s18, 0xaaaaaaaa"); a("s_mov_b32 s19, 0xaaaaaaaa")
    a("s_waitcnt lgkmcnt(0)")
    mfmas()
    a("s_mov_b64 exec, 0xffff")
    a(f"ds_write_b128 v{u0}, {v(Z,4)} offset:4096")
    a("s_mov_b64 exec, -1")
    O = [Cr, Cr + 8, Ci, Ci + 8]
    ac = lambda i: accK + i
    def cv(d, lo_, hi_): a(f"v_cvt_pk_bf16_f32 v{d}, v{lo_}, v{hi_}")
    def seg3(o, e0, e1):
        a(f"v_cndmask_b32 v{t0}, v{e0}, v{e1}, s[18:19]")
        cv(o, e1, e1); cv(o + 1, e1, t0); cv(o + 2, e0, e0); cv(o + 3, e0, e0)
    def seg2(o, e0, e1, e2):
        cv(o, e2, e2); cv(o + 1, e1, e1); cv(o + 2, e1, e0); cv(o + 3, e0, e0)
    seg3(O[3], ac(12), ac(13))
    a(f"v_lshlrev_b32 v{vdk[0]}, 16, v{vdk[0]}")
    a("s_mov_b64 exec, 1")
    a(f"v_add_f32 v{ac(0)}, v{ac(0)}, v{vdk[0]}")
    a("s_mov_b32 exec_lo, -1")
    for m in range(4): cv(O[0] + m, ac(7 - 2*m), ac(6 - 2*m))
    seg3(O[1], ac(8), ac(9)); seg3(O[2], ac(10), ac(11))
    a("s_mov_b32 exec_hi, -1")
    a("s_mov_b32 exec_lo, 0")
    cv(O[0], ac(1), ac(3)); cv(O[0] + 1, ac(6), ac(6)); cv(O[0] + 2, ac(6), ac(2)); cv(O[0] + 3, ac(0), ac(0))
    seg2(O[1], ac(4), ac(7), ac(5)); seg2(O[2], ac(8), ac(10), ac(9))
    a("s_mov_b32 exec_lo, -1")
    adr = [(vJa, 3072), (vJb, 1536), (vJb, 1024), (vJa, 0)]
    for p in range(4):
        a(f"ds_write_b128 v{adr[p][0]}, {v(O[p],4)} offset:{adr[p][1]}")
    for p in range(4):
        a(f"ds_read_b64 {v(O[p]+4,2)}, v{adr[p][0]} offset:{adr[p][1]+16}")
    stamp(a, 11)
    a("s_waitcnt vmcnt(0)")
    check_token(a, vtok, vzero)
    a("s_waitcnt lgkmcnt(0)")
    for p in range(4):
        Kt = [FA[(3*p + c) % 8] for c in range(3)]
        kin = O[p]
        for k in range(4): a(f"v_alignbyte_b32 v{Kt[0]+k}, v{kin+k+1}, v{kin+k}, 2")
        for k in range(4): a(f"v_mov_b32 v{Kt[1]+k}, v{kin+k+1}")
        for k in range(4): a(f"v_alignbyte_b32 v{Kt[2]+k}, v{kin+k+2}, v{kin+k+1}, 2")
        for c in range(3): a(f"ds_write_b128 v{adr[p][0]}, {v(Kt[c],4)} offset:{adr[p][1] + (c+1)*CV_S}")
    a("s_branch S_join")
    hi = R.hi

    a.label("S_w2t"); a.flush_hist()
    toks = {}
    a("s_waitcnt lgkmcnt(0)")
    a(f"v_mov_b32 v{vtok}, 0")
    check_token(a, vtok, vzero, sleep=32)
    a("s_branch S_join")

    a.label("S_ln"); a.flush_hist()
    R.reset(base)
    voff = R(); vlw = R(); vtr = R()
    Xr = [R(4, 4) for _ in range(10)]
    U = [R(2, 2) for _ in range(40)]
    sm = R(2, 2); mb = R(2, 2); rs = R(2, 2); T = [R(2, 2) for _ in range(4)]; gr = R(2, 2)
    ones = R()
    O = [R(4, 4) for _ in range(4)]
    a(f"s_load_dwordx2 s[{sX_}:{sX_+1}], s[0:1], 0")
    a("s_memrealtime s[18:19]")
    srd(a, sX_, L * D * 2)
    a(f"v_lshrrev_b32 v{t0}, 3, v{lane}")
    a(f"v_and_b32 v{t1}, 7, v{lane}")
    a(f"v_lshlrev_b32 v{t1}, 4, v{t1}")
    a(f"v_mul_u32_u24 v{voff}, 1280, v{t0}")
    a(f"v_add_u32 v{voff}, v{voff}, v{t1}")
    a(f"v_mul_u32_u24 v{vlw}, {LN_S}, v{t0}")
    a(f"v_add_u32 v{vlw}, v{vlw}, v{t1}")
    a(f"v_add_u32 v{vlw}, {LN_OFF}, v{vlw}")
    a(f"s_lshl_b32 s{sT3}, s{sXc}, 5")
    a(f"s_add_u32 s{sT3}, s{sT3}, s{sA}")
    a(f"s_mul_i32 s{sT}, s{sT3}, {8*1280}")
    a("s_waitcnt lgkmcnt(0)")
    a(f"s_cmp_ge_u32 s2, 8")
    a("s_cbranch_scc1 S_ln_nt")
    a("s_or_b32 s18, s18, 1")
    a(f"v_mov_b32 v{gr}, s18")
    a(f"v_mov_b32 v{gr+1}, 0")
    a("s_mov_b64 exec, 1")
    a(f"buffer_atomic_cmpswap {v(gr,2)}, v{vzero}, s[{sDBG}:{sDBG+3}], 0 offen"); a.vm -= 1
    a("s_mov_b64 exec, -1")
    a.label("S_ln_nt")
    for i in range(10):
        a(f"buffer_load_dwordx4 {v(Xr[i],4)}, v{voff}, s[{sX_}:{sX_+3}], s{sT} offen offset:{128*i}")
    a(f"v_mov_b32 v{ones}, 0x3f803f80")
    a(f"v_mov_b32 v{sm}, 0")
    a("s_waitcnt vmcnt(0)")
    stamp(a, 1)
    a(f"buffer_load_dword v{vtok}, v{vzero}, s[{sDBG}:{sDBG+3}], 0 offen sc1")
    for i in range(40):
        a(f"v_dot2_f32_bf16 v{sm}, v{Xr[i//4] + i%4}, v{ones}, v{sm}")
    def red8(r_):
        a(f"v_add_f32_dpp v{r_}, v{r_}, v{r_} quad_perm:[1,0,3,2] row_mask:0xf bank_mask:0xf")
        a(f"v_add_f32_dpp v{r_}, v{r_}, v{r_} quad_perm:[2,3,0,1] row_mask:0xf bank_mask:0xf")
        a(f"v_add_f32_dpp v{r_}, v{r_}, v{r_} row_half_mirror row_mask:0xf bank_mask:0xf")
    for i in range(40):
        x = Xr[i//4] + i % 4
        a(f"v_lshlrev_b32 v{U[i]}, 16, v{x}")
        a(f"v_and_b32 v{U[i]+1}, 0xffff0000, v{x}")
    red8(sm)
    a(f"v_mul_f32 v{sm}, {f32(1.0/D)}, v{sm}")
    bf16r(a, mb, sm)
    a(f"v_mov_b32 v{rs}, 0"); a(f"v_mov_b32 v{rs+1}, 0")
    for i in range(40):
        if ENV("LPK", 1):
            a(f"v_pk_add_f32 {v(U[i],2)}, {v(U[i],2)}, {v(mb,2)} op_sel_hi:[1,0] neg_lo:[0,1] neg_hi:[0,1]")
            a(f"v_pk_fma_f32 {v(rs,2)}, {v(U[i],2)}, {v(U[i],2)}, {v(rs,2)}")
        else:
            for h in range(2):
                a(f"v_sub_f32 v{U[i]+h}, v{U[i]+h}, v{mb}")
                a(f"v_fmac_f32 v{rs+h}, v{U[i]+h}, v{U[i]+h}")
    a(f"v_add_f32 v{rs}, v{rs}, v{rs+1}")
    red8(rs)
    a(f"v_sub_f32 v{t0}, v{sm}, v{mb}")
    a(f"v_mul_f32 v{t0}, v{t0}, v{t0}")
    a(f"v_mul_f32 v{rs}, {f32(1.0/D)}, v{rs}")
    a(f"v_sub_f32 v{rs}, v{rs}, v{t0}")
    a(f"v_max_f32 v{rs}, 0, v{rs}")
    bf16r(a, rs, rs)
    a(f"v_add_f32 v{rs}, {f32(1e-5)}, v{rs}")
    bf16r(a, rs, rs)
    a(f"v_sqrt_f32 v{rs}, v{rs}")
    a(f"v_cvt_pk_bf16_f32 v{gr}, v{mb}, v{rs}")
    a(f"v_and_b32 v{rs}, 0xffff0000, v{gr}")
    a(f"v_rcp_f32 v{rs}, v{rs}")
    for i in range(40):
        x = Xr[i//4] + i % 4
        if ENV("LPK", 1): a(f"v_pk_mul_f32 {v(U[i],2)}, {v(U[i],2)}, {v(rs,2)} op_sel_hi:[1,0]")
        else:
            for h in range(2): a(f"v_mul_f32 v{U[i]+h}, v{U[i]+h}, v{rs}")
        a(f"v_cvt_pk_bf16_f32 v{x}, v{U[i]}, v{U[i]+1}")
        if i % 4 == 3:
            a(f"ds_write_b128 v{vlw}, {v(Xr[i//4],4)} offset:{128*(i//4)}")
    a(f"v_bfe_u32 v{t1}, v{lane}, 2, 2")
    a(f"v_mul_u32_u24 v{t1}, {LN_S}, v{t1}")
    a(f"v_lshrrev_b32 v{t0}, 4, v{lane}")
    a(f"v_lshl_add_u32 v{t1}, v{t0}, 5, v{t1}")
    a(f"v_and_b32 v{t2}, 3, v{lane}")
    a(f"v_lshl_add_u32 v{t1}, v{t2}, 3, v{t1}")
    a(f"v_add_u32 v{vtr}, {LN_OFF}, v{t1}")
    a(f"s_mul_i32 s{sT}, s{sT3}, 10240")
    def rd(i):
        o = O[i % 4]
        for e in range(2):
            a(f"ds_read_b64_tr_b16 {v(o+2*e,2)}, v{vtr} offset:{128*i + 4*e*LN_S}")
        toks[i] = a.ltok()
    for i in range(3): rd(i)
    for i in range(10):
        if i + 3 < 10: rd(i + 3)
        a.wait(lg=toks[i])
        a(f"buffer_store_dwordx4 {v(O[i%4],4)}, v{v16}, s[{sWS}:{sWS+3}], s{sT} offen sc1")
        a(f"s_add_u32 s{sT}, s{sT}, 1024")
    a("s_waitcnt vmcnt(10)")
    check_token(a, vtok, vzero)
    a(f"v_mov_b32 v{gr+1}, s{sTok}")
    a(f"s_lshl_b32 s{sT}, s{sT3}, 7")
    a(f"s_add_u32 s{sT2}, s{sT}, {WS_STAT}")
    a("s_mov_b32 exec_lo, 0x01010101"); a("s_mov_b32 exec_hi, 0x01010101")
    a(f"buffer_store_dwordx2 {v(gr,2)}, v{lane}, s[{sWS}:{sWS+3}], s{sT2} offen sc1")
    a(f"s_add_u32 s{sT}, s{sT}, {WS_FLN}")
    a("s_waitcnt vmcnt(0)")
    a("s_mov_b64 exec, 1")
    a(f"buffer_store_dword v{gr+1}, v{vzero}, s[{sWS}:{sWS+3}], s{sT} offen sc1")
    a("s_mov_b64 exec, -1")
    stamp(a, 2)
    if ONLY: a("s_branch S_end")
    a(f"v_mul_u32_u24 v{t0}, 10240, v{lane}")
    a(f"v_lshlrev_b32 v{t1}, 7, v{lane}")
    a(f"s_cmp_eq_u32 s{sHeavy}, 0")
    a(f"s_cselect_b32 s{sCnt}, s{sD[0]}, s{sD[2]}")
    if ENV("UPF", 0):
        a(f"s_lshl_b32 s{sT3}, s{sA}, 10")
        a(f"s_add_u32 s{sT3}, s{sT3}, {WS_FLN}")
        a(f"v_mov_b32 v{O[1]}, s{sTok}")
        ldu = lambda: a(f"buffer_load_dword v{O[1]}, v{t1}, s[{sWS}:{sWS+3}], s{sT3} offen sc1")
        a("s_mov_b64 exec, 0xff"); a(f"v_mov_b32 v{O[1]}, 0"); a("s_mov_b64 exec, -1")
        a(f"v_lshrrev_b32 v{t2}, 3, v{lane}")
        a(f"v_mul_u32_u24 v{t2}, 10240, v{t2}")
        a(f"v_and_b32 v{t3}, 7, v{lane}")
        a(f"v_lshl_add_u32 v{t2}, v{t3}, 7, v{t2}")
        a("s_waitcnt vmcnt(0)")
        check_flags(a, [O[1]], t1, ldu, sleep=ENV("USL1", 12))
        a(f"s_mul_i32 s{sT}, s{sA}, {8*10240}")
        a(f"s_lshl_b32 s{sT2}, s{sXc}, 10")
        a(f"s_add_u32 s{sT2}, s{sT2}, s{sT}")
        for q_ in range(4):
            m_ = 0xffff << (16 * q_)
            a(f"s_mov_b32 exec_lo, {hex(m_ & 0xffffffff)}"); a(f"s_mov_b32 exec_hi, {hex(m_ >> 32)}")
            a(f"buffer_load_dword v{O[1]+1}, v{t2}, s[{sWS}:{sWS+3}], s{sT2} offen sc1")
            if q_ % 2: a("s_waitcnt vmcnt(0)")
        a(f"s_lshl_b32 s{sT2}, s{sXc}, 8")
        a(f"s_add_u32 s{sT2}, s{sT2}, s{sT}")
        a(f"s_add_u32 s{sT2}, s{sT2}, 8192")
        a("s_mov_b32 exec_lo, 0x03030303"); a("s_mov_b32 exec_hi, 0x03030303")
        a(f"buffer_load_dword v{O[1]+1}, v{t2}, s[{sWS}:{sWS+3}], s{sT2} offen sc1")
        a("s_mov_b64 exec, -1")
        stamp(a, 11)
    a(f"s_lshl_b32 s{sT3}, s2, 7")
    a(f"s_add_u32 s{sT3}, s{sT3}, {WS_FPACE}")
    a(f"s_mov_b32 s{sSpin}, 0")
    a("s_mov_b64 exec, 1")
    a.label("S_pace")
    a(f"s_sleep {ENV('PSLEEP', 8)}")
    a(f"buffer_load_dword v{t2}, v{vzero}, s[{sWS}:{sWS+3}], s{sT3} offen sc1")
    a("s_waitcnt vmcnt(0)")
    a(f"v_readfirstlane_b32 s{sT}, v{t2}")
    a(f"s_cmp_eq_u32 s{sT}, s{sTok}")
    a("s_cbranch_scc1 S_paced")
    a(f"s_add_u32 s{sSpin}, s{sSpin}, 1")
    a(f"s_cmp_lt_u32 s{sSpin}, {ENV('PMAX', 24)}")
    a("s_cbranch_scc1 S_pace")
    a.label("S_paced")
    a("s_mov_b64 exec, -1")
    stamp(a, 10)
    for g in range(4):
        a(f"s_mov_b32 s{sT3}, {WS_FLN + 8192*g}")
        a(f"buffer_load_dword v{O[0]+g}, v{t1}, s[{sWS}:{sWS+3}], s{sT3} offen sc1")
    a("s_waitcnt vmcnt(0)")
    for g in range(4):
        a(f"s_mov_b32 s{sT3}, {WS_FLN + 8192*g}")
        ldf = lambda: a(f"buffer_load_dword v{O[0]+g}, v{t1}, s[{sWS}:{sWS+3}], s{sT3} offen sc1")
        check_flags(a, [O[0] + g], t1, ldf, sleep=ENV("LNSLEEP", 6))
    stamp(a, 9)
    Uq_ = [U[0] + 4 * i for i in range(12)]
    assert U[0] % 4 == 0
    a(f"v_lshrrev_b32 v{t1}, 1, v{lane}")
    a(f"v_and_b32 v{t3}, 1, v{lane}")
    a(f"v_mul_u32_u24 v{t2}, 10240, v{t1}")
    a(f"v_lshl_add_u32 v{t2}, v{t3}, 4, v{t2}")
    a(f"v_mul_u32_u24 v{t3}, 4608, v{t3}")
    a(f"v_lshl_add_u32 v{t3}, v{t1}, 4, v{t3}")
    a(f"s_lshl_b32 s{sT}, s{sD[0]}, 4")
    for g in range(8):
        if g: a(f"s_add_u32 s{sT}, s{sT}, {32*10240}")
        a(f"buffer_load_dwordx4 {v(Uq_[g],4)}, v{t2}, s[{sWS}:{sWS+3}], s{sT} offen sc1")
    a(f"s_cmp_eq_u32 s{sHeavy}, 0")
    a("s_cbranch_scc1 S_g2")
    a(f"s_lshl_b32 s{sT}, s{sD[2]}, 4")
    for g in range(4):
        if g: a(f"s_add_u32 s{sT}, s{sT}, {64*10240}")
        a(f"buffer_load_dwordx4 {v(Uq_[8+g],4)}, v{t0}, s[{sWS}:{sWS+3}], s{sT} offen sc1")
    a("s_waitcnt vmcnt(0)")
    for g in range(4):
        a(f"ds_write_b128 v{v16}, {v(Uq_[8+g],4)} offset:{CV_U[2] + 1024*g}")
    a.label("S_g2")
    for g in range(8):
        a(f"s_waitcnt vmcnt({7-g})")
        a(f"ds_write_b128 v{t3}, {v(Uq_[g],4)} offset:{CV_U[0] + 512*g}")
    stamp(a, 4)
    hi = max(hi, R.hi)

    a.label("S_join"); a.flush_hist()
    if ONLY: a("s_branch S_end")
    if ENV("SPRIO", 0): a(f"s_setprio {ENV('SPRIO', 0)}")
    stamp(a, 3)
    R.reset(base)
    acc = [R(4, 4) for _ in range(8)]
    FA = [[R(4, 4) for _ in range(8)] for _ in range(2)]
    FB = [[R(4, 4) for _ in range(8)] for _ in range(2)]
    vA = R(); vBq = R(); vA0 = R(); vB0 = R(); vrw = R(); vrr = R(); vfl = R(); vfa = R(); vtk = R()
    a(f"s_and_b32 s{sPar}, s{sWave}, 1")
    Z = FB[0][3]
    for i in range(4): a(f"v_mov_b32 v{Z+i}, 0")
    a(f"s_min_u32 s{sT}, s{sWave}, 2")
    a(f"s_mul_i32 s{sT}, s{sT}, 4608")
    a(f"v_add_u32 v{t2}, s{sT}, v{v16}")
    a("s_mov_b32 exec_hi, 0")
    a(f"ds_write_b128 v{t2}, {v(Z,4)} offset:{CV_U[0]-512}")
    a("s_mov_b32 exec_hi, -1")
    a(f"v_and_b32 v{t0}, 15, v{lane}")
    a(f"v_sub_u32 v{t2}, 15, v{t0}")
    a(f"v_and_b32 v{t3}, 3, v{t2}")
    a(f"v_sub_u32 v{t2}, v{t2}, v{t3}")
    a(f"v_mul_u32_u24 v{t3}, {CV_S}, v{t3}")
    a(f"v_lshl_add_u32 v{t3}, v{t2}, 1, v{t3}")
    a(f"v_lshrrev_b32 v{t2}, 4, v{lane}")
    a(f"v_lshl_add_u32 v{vA0}, v{t2}, 4, v{t3}")
    a(f"v_lshlrev_b32 v{t3}, 4, v{t2}")
    a(f"v_lshl_add_u32 v{vB0}, v{t0}, 5, v{t3}")
    a(f"v_lshrrev_b32 v{t3}, 1, v{t2}")
    a(f"v_lshlrev_b32 v{t3}, 3, v{t3}")
    a(f"v_xor_b32 v{t3}, v{t3}, v{t0}")
    a(f"v_lshlrev_b32 v{t3}, 4, v{t3}")
    a(f"v_lshl_add_u32 v{t3}, v{t2}, 8, v{t3}")
    a(f"s_lshl_b32 s{sT}, s{sWave}, 13")
    a(f"v_add_u32 v{vrw}, s{sT}, v{t3}")
    a(f"v_bfe_u32 v{t0}, v{lane}, 1, 4")
    a(f"v_and_b32 v{t2}, 1, v{lane}")
    a(f"v_lshlrev_b32 v{t3}, 3, v{t2}")
    a(f"v_xor_b32 v{t0}, v{t0}, v{t3}")
    a(f"v_lshlrev_b32 v{t0}, 4, v{t0}")
    a(f"v_lshl_add_u32 v{t0}, v{t2}, 9, v{t0}")
    a(f"v_lshrrev_b32 v{t2}, 5, v{lane}")
    a(f"v_lshl_add_u32 v{vrr}, v{t2}, 10, v{t0}")
    a(f"v_mov_b32 v{vtk}, s{sTok}")
    a(f"s_mul_i32 s{sT}, s{sSlot}, {CH_REG}")
    a(f"s_lshl_b32 s{sT2}, s{sPar}, 8")
    a(f"s_sub_u32 s{sT}, s{sT}, s{sT2}")
    a(f"s_add_u32 s{sT}, s{sT}, {32*14}")
    a(f"v_add_u32 v{vA}, s{sT}, v{vA0}")
    a(f"s_mul_i32 s{sT}, s{sSlot}, 4608")
    a(f"s_sub_u32 s{sT}, s{sT}, s{sT2}")
    a(f"s_add_u32 s{sT}, s{sT}, {CV_U[0] - 512 + 32*15}")
    a(f"v_add_u32 v{vBq}, s{sT}, v{vB0}")
    sDa, sDb, sJa, sJb = 20, 21, 22, 23
    a(f"s_lshl_b32 s{sT3}, s{sWave}, 7")
    a(f"s_sub_u32 s{sJb}, s{sT}, 192")
    a(f"s_sub_u32 s{sJb}, s{sJb}, {CV_U[2] - 512 + 32*15}")
    a(f"s_add_u32 s{sJb}, s{sJb}, s{sT3}")
    a(f"s_mul_i32 s{sJa}, s{sSlot}, {CH_REG}")
    a(f"s_sub_u32 s{sJa}, s{sJa}, s{sT2}")
    a(f"s_sub_u32 s{sJa}, s{sJa}, {192 + 2*CH_REG}")
    a(f"s_add_u32 s{sJa}, s{sJa}, s{sT3}")
    acc1 = [R(4, 4) for _ in range(8)]
    for c in range(8):
        for i in range(4):
            a(f"v_mov_b32 v{acc[c]+i}, 0"); a(f"v_mov_b32 v{acc1[c]+i}, 0")
    a(f"s_mov_b32 s{sCnt}, 0")
    a(f"s_add_u32 s{sRound}, s{sHeavy}, 2")
    a("s_waitcnt vmcnt(0) lgkmcnt(0)")
    a("s_barrier")
    stamp(a, 5)

    def rdlist(st, da="64", db="64"):
        rd_ = []
        for j in range(8):
            rd_.append(f"ds_read_b128 {v(FB[st][j],4)}, v{vBq} offset:{512*j}")
            rd_.append(f"ds_read_b64 {v(FA[st][j],2)}, v{vA} offset:{512*(7-j)}")
            rd_.append(f"ds_read_b64 {v(FA[st][j]+2,2)}, v{vA} offset:{512*(7-j)+8}")
        rd_.append(f"v_subrev_u32 v{vA}, {da}, v{vA}")
        rd_.append(f"v_subrev_u32 v{vBq}, {db}, v{vBq}")
        return rd_
    def group(st, nxt, da="64", db="64"):
        pairs = sorted([(c, j) for c in range(8) for j in range(c + 1)], key=lambda cj: (max(cj[1], cj[0] - cj[1]), cj[0]))
        rd_ = rdlist(nxt, da, db)
        for i, (c, j) in enumerate(pairs):
            a(f"v_mfma_f32_16x16x32_bf16 {v(acc[c],4)}, {v(FA[st][j],4)}, {v(FB[st][c-j],4)}, {v(acc[c],4)}")
            if i < len(rd_): a(rd_[i])
    for x in rdlist(0): a(x)
    a.label("CV_loop")
    a(f"s_cmp_eq_u32 s{sCnt}, 1")
    a(f"s_cselect_b32 s{sDa}, s{sJa}, 64")
    a(f"s_cselect_b32 s{sDb}, s{sJb}, 64")
    a("s_waitcnt lgkmcnt(0)")
    group(0, 1, f"s{sDa}", f"s{sDb}")
    a("s_waitcnt lgkmcnt(0)")
    group(1, 0)
    a(f"s_add_u32 s{sCnt}, s{sCnt}, 1")
    a(f"s_cmp_eq_u32 s{sCnt}, 1")
    a("s_cbranch_scc1 CV_loop")
    a(f"s_cmp_eq_u32 s{sCnt}, 3")
    a("s_cbranch_scc1 CV_done")
    for c in range(8):
        for i in range(4): a(f"v_swap_b32 v{acc[c]+i}, v{acc1[c]+i}")
    a(f"s_cmp_lg_u32 s{sHeavy}, 0")
    a("s_nop 0")
    a("s_cbranch_scc1 CV_loop")
    a.label("CV_done")
    a("s_nop 7")
    a("s_waitcnt lgkmcnt(0)")
    a("s_barrier")
    stamp(a, 6)
    for c in range(8):
        a(f"ds_write_b128 v{vrw}, {v(acc1[c],4)} offset:{1024*c}")
    a(f"s_cmp_eq_u32 s{sHeavy}, 0")
    a("s_cbranch_scc1 CV_w1")
    for c in range(8):
        a(f"ds_write_b128 v{vrw}, {v(acc[c],4)} offset:{32768 + 1024*c}")
    a.label("CV_w1")
    a(f"s_lshl_b32 s{sT}, s{sSlot}, 14")
    a(f"s_lshl_b32 s{sT2}, s{sPar}, 12")
    a(f"s_add_u32 s{sT}, s{sT}, s{sT2}")
    a(f"v_add_u32 v{t0}, s{sT}, v{vrr}")
    a(f"s_lshl_b32 s{sT}, s{sWave}, 11")
    a(f"v_add_u32 v{t1}, s{sT}, v{vrr}")
    a(f"s_add_u32 s{sT}, s{sD[0]}, s{sSlot}")
    a(f"s_lshl_b32 s{sT3}, s{sT}, 12")
    a(f"s_lshl_b32 s{sT2}, s{sPar}, 11")
    a(f"s_add_u32 s{sT3}, s{sT3}, s{sT2}")
    a(f"s_add_u32 s{sT3}, s{sT3}, {WS_ST}")
    a(f"s_lshl_b32 s{sT}, s{sT}, 7")
    a(f"s_lshl_b32 s{sT2}, s{sPar}, 3")
    a(f"s_add_u32 s{sT}, s{sT}, s{sT2}")
    a(f"s_add_u32 s{sJa}, s{sT}, {WS_FST}")
    a(f"v_lshlrev_b32 v{t2}, 2, v{lane}")
    a("s_waitcnt lgkmcnt(0)")
    a("s_barrier")
    stamp(a, 7)
    Rd = FA[1]; Re = FA[0]
    for b in range(2):
        for p in range(2):
            for e in range(2):
                a(f"ds_read_b128 {v(Rd[(b*2+p)*2+e],4)}, v{t0} offset:{8192*p + 2048*b + 256*e}")
    for p in range(4):
        for e in range(2):
            a(f"ds_read_b128 {v(Re[p*2+e],4)}, v{t1} offset:{32768 + 8192*p + 256*e}")
    def finish(Rr, bs, npart, o):
        for p in range(1, npart):
            for e in range(2):
                for z in range(4):
                    a(f"v_add_f32 v{Rr[bs+e]+z}, v{Rr[bs+e]+z}, v{Rr[bs+2*p+e]+z}")
        for m in range(4):
            y = Rr[bs + m // 2] + 2 * (m % 2)
            a(f"v_cvt_pk_bf16_f32 v{o+m}, v{y}, v{y+1}")
    for b in range(2):
        a(f"s_waitcnt lgkmcnt({12 - 4*b})")
        finish(Rd, 4 * b, 2, FB[1][b])
        a(f"buffer_store_dwordx4 {v(FB[1][b],4)}, v{v16}, s[{sWS}:{sWS+3}], s{sT3} offen offset:{1024*b} sc1")
    a(f"s_cmp_eq_u32 s{sHeavy}, 0")
    a("s_cbranch_scc1 CV_f1")
    a(f"s_lshl_b32 s{sT3}, s{sWave}, 10")
    a(f"s_lshl_b32 s{sT}, s{sD[2]}, 12")
    a(f"s_add_u32 s{sT2}, s{sT3}, s{sT}")
    a(f"s_add_u32 s{sT2}, s{sT2}, {WS_ST}")
    a("s_waitcnt lgkmcnt(0)")
    finish(Re, 0, 4, FB[1][2])
    a(f"buffer_store_dwordx4 {v(FB[1][2],4)}, v{v16}, s[{sWS}:{sWS+3}], s{sT2} offen sc1")
    a(f"s_lshl_b32 s{sT}, s{sD[2]}, 7")
    a(f"s_lshl_b32 s{sT2}, s{sWave}, 2")
    a(f"s_add_u32 s{sT}, s{sT}, s{sT2}")
    a(f"s_add_u32 s{sT}, s{sT}, {WS_FST}")
    a("s_waitcnt vmcnt(0)")
    a("s_mov_b64 exec, 1")
    a(f"buffer_store_dword v{vtk}, v{vzero}, s[{sWS}:{sWS+3}], s{sT} offen sc1")
    a("s_branch CV_f2")
    a.label("CV_f1")
    a("s_waitcnt vmcnt(0)")
    a.label("CV_f2")
    a("s_mov_b64 exec, 3")
    a(f"buffer_store_dword v{vtk}, v{t2}, s[{sWS}:{sWS+3}], s{sJa} offen sc1")
    a.label("S_end")
    stamp_end(a, sWave)
    return max(hi, R.hi)

W_SLOT = 12288
X_OFF = 3 * W_SLOT
X_WAVE = 11264
NXU = 5
def g_role(a):
    sX, sW1, sB1, sOUT, sW2 = 20, 24, 28, 32, 52
    sRB, sCB, sTB, sJD, sId = 36, 37, 38, 39, 3
    sP = [40, 41, 42]
    sWoff, sXoff, sM0w, sM0x, sOA, sOB = 43, 44, 45, 46, 47, 48
    R = Alloc(1)
    lane = R(); t0 = R(); t1 = R(); t2 = R(); t3 = R(); vzero = R(); vtok = R(); v16 = R(); vfa = R()
    vfl = R(); vsa = R()
    NWR = 25
    NWI = 18
    WR = [R(4, 4) for _ in range(NWR)]
    base2 = pool = R.mark()
    R.reset(184)
    acc = [[R(4, 4) for ct in range(2)] for rt in range(6)]
    cs = [R(4, 4) for _ in range(2)]
    st = [R(2, 2) for _ in range(2)]
    b1p = [R(2, 2) for _ in range(6)]
    R.reset(WR[NWI]); R.limit = 184
    A = [[R(4, 4) for rt in range(6)] for _ in range(2)]
    X = [[[R(4, 4) for ct in range(2)] for e in range(2)] for _ in range(2)]
    ones = R(4, 4)
    vE = [R() for _ in range(3)]; vO = [R() for _ in range(3)]
    vW = [R() for _ in range(3)]; vXs = [R(), R()]; vXr = [R(), R()]
    vpf = R(); vpd = R()
    stamp_begin(a)
    if ENV("GPRIO", 0): a(f"s_setprio {ENV('GPRIO', 0)}")
    a(f"s_load_dwordx2 s[{sX}:{sX+1}], s[0:1], 0")
    a(f"s_load_dwordx2 s[{sW1}:{sW1+1}], s[0:1], 80")
    a(f"s_load_dwordx2 s[{sW2}:{sW2+1}], s[0:1], 96")
    a(f"v_lshrrev_b32 v{t0}, 6, v0")
    a(f"v_and_b32 v{lane}, 63, v0")
    a(f"v_readfirstlane_b32 s{sWave}, v{t0}")
    a(f"s_sub_u32 s{sId}, s2, 256")
    srd(a, sX, L * D * 2); srd(a, sW1, D * F * 2)
    pfx = A[1][0]; pfw = A[1][0] + 1
    a(f"s_lshr_b32 s{sT3}, s{sId}, 3")
    a(f"s_lshl_b32 s{sT3}, s{sT3}, 2")
    a(f"s_add_u32 s{sT3}, s{sT3}, s{sWave}")
    a(f"v_mul_u32_u24 v{t1}, 0xaaab, v{lane}")
    a(f"v_lshrrev_b32 v{t1}, 18, v{t1}")
    a(f"v_mul_u32_u24 v{t2}, 6, v{t1}")
    a(f"v_sub_u32 v{t2}, v{lane}, v{t2}")
    a(f"v_mul_u32_u24 v{t1}, {64*3072}, v{t1}")
    a(f"v_lshl_add_u32 v{t1}, v{t2}, 7, v{t1}")
    a(f"s_lshr_b32 s{sT2}, s{sT3}, 1")
    a(f"s_mul_i32 s{sT2}, s{sT2}, 3072")
    a(f"s_and_b32 s{sT}, s{sId}, 1")
    a(f"s_lshl_b32 s{sT}, s{sT}, 1")
    a(f"s_and_b32 s{sRB}, s{sT3}, 1")
    a(f"s_add_u32 s{sT}, s{sT}, s{sRB}")
    a(f"s_mul_i32 s{sT}, s{sT}, 768")
    a(f"s_add_u32 s{sT2}, s{sT2}, s{sT}")
    a(f"v_add_u32 v{pfw}, s{sT2}, v{t1}")
    XH = ENV("XHALF", 0)
    XR = 2 if XH else 4
    a(f"v_lshrrev_b32 v{t2}, {1 if XH else 2}, v{lane}")
    a(f"v_lshlrev_b32 v{t2}, 7, v{t2}")
    a(f"v_and_b32 v{t3}, {XR-1}, v{lane}")
    a(f"v_mul_u32_u24 v{t3}, 1280, v{t3}")
    a(f"v_add_u32 v{t2}, v{t2}, v{t3}")
    if XH:
        a(f"s_and_b32 s{sT}, s{sId}, 7")
        a(f"s_xor_b32 s{sT}, s{sT}, 1")
    else: a(f"s_bfe_u32 s{sT}, s{sId}, 0x20001")
    a(f"s_lshl_b32 s{sT}, s{sT}, 7")
    a(f"s_add_u32 s{sT}, s{sT}, s{sT3}")
    a(f"s_mul_i32 s{sT}, s{sT}, {XR*1280}")
    a(f"v_add_u32 v{pfx}, s{sT}, v{t2}")
    a("s_waitcnt lgkmcnt(0)")
    stamp(a, 1)
    def do_pf(c0, c1):
        def mask(lo, hi):
            m = ((1 << hi) - 1) & ~((1 << lo) - 1)
            a(f"s_mov_b32 exec_lo, {hex(m & 0xffffffff)}"); a(f"s_mov_b32 exec_hi, {hex(m >> 32)}")
        mask(XR * c0, XR * c1)
        a(f"buffer_load_dword v{vpd}, v{pfx}, s[{sX}:{sX+3}], 0 offen")
        mask(6 * c0, 6 * c1)
        a(f"buffer_load_dword v{vpd}, v{pfw}, s[{sW1}:{sW1+3}], 0 offen")
        a("s_mov_b64 exec, -1")
    PFA_ = ENV("PFSPLIT", 2)
    if not ENV("NOPFA", 0): do_pf(0, PFA_)
    srd(a, sW2, F * D * 2)
    a(f"s_mul_i32 s{sT}, s{sT3}, {15*128}")
    a(f"v_lshl_add_u32 v{vpf}, v{lane}, 7, s{sT}")
    def op_pf2(j):
        def f():
            a(f"s_add_u32 s{sT2}, s{sId}, {j}")
            a(f"s_and_b32 s{sT2}, s{sT2}, 7")
            a(f"s_mul_i32 s{sT2}, s{sT2}, {128*15*128}")
            a("s_mov_b64 exec, 0x7fff")
            a(f"buffer_load_dword v{vpd}, v{vpf}, s[{sW2}:{sW2+3}], s{sT2} offen")
            a("s_mov_b64 exec, -1")
        return f
    if ENV("PF20", 4) == -2: op_pf2(0)()
    a(f"s_load_dwordx2 s[{sB1}:{sB1+1}], s[0:1], 88")
    a(f"s_load_dwordx2 s[{sWS}:{sWS+1}], s[0:1], 120")
    a(f"s_load_dwordx2 s[{sDBG}:{sDBG+1}], s[0:1], 112")
    a(f"s_load_dwordx2 s[{sOUT}:{sOUT+1}], s[0:1], 104")
    srd(a, sB1, F * 2); srd(a, sWS, WS_SIZE); srd(a, sDBG, 256); srd(a, sOUT, L * D * 2)
    a(f"s_and_b32 s{sT}, s{sId}, 7")
    a(f"s_lshr_b32 s{sT2}, s{sId}, 3")
    a(f"s_lshr_b32 s{sRB}, s{sT}, 1")
    a(f"s_lshl_b32 s{sTB}, s{sT}, 2")
    a(f"s_lshl_b32 s{sRB}, s{sRB}, 2")
    a(f"s_and_b32 s{sT3}, s{sT2}, 3")
    a(f"s_add_u32 s{sRB}, s{sRB}, s{sT3}")
    a(f"s_add_u32 s{sTB}, s{sTB}, s{sT3}")
    a(f"s_and_b32 s{sT}, s{sT}, 1")
    a(f"s_lshl_b32 s{sCB}, s{sT}, 3")
    a(f"s_lshr_b32 s{sJD}, s{sT2}, 2")
    a(f"s_add_u32 s{sCB}, s{sCB}, s{sJD}")
    a(f"v_mov_b32 v{vzero}, 0")
    a(f"v_lshlrev_b32 v{v16}, 4, v{lane}")
    for i in range(3):
        a(f"v_add_u32 v{t0}, {64*i}, v{lane}")
        a(f"v_mul_u32_u24 v{t1}, 0xaaab, v{t0}")
        a(f"v_lshrrev_b32 v{t1}, 19, v{t1}")
        a(f"v_mul_u32_u24 v{t2}, 12, v{t1}")
        a(f"v_sub_u32 v{t2}, v{t0}, v{t2}")
        a(f"v_lshrrev_b32 v{t3}, 2, v{t1}")
        a(f"v_and_b32 v{t3}, 2, v{t3}")
        a(f"v_xor_b32 v{t2}, v{t2}, v{t3}")
        a(f"v_lshlrev_b32 v{t2}, 4, v{t2}")
        a(f"v_mul_u32_u24 v{t1}, 3072, v{t1}")
        a(f"v_add_u32 v{vW[i]}, v{t1}, v{t2}")
        if i: a(f"v_subrev_u32 v{vW[i]}, {1024*i}, v{vW[i]}")
    a(f"s_mul_i32 s{sWoff}, s{sWave}, {16*3072}")
    a(f"s_mul_i32 s{sT}, s{sCB}, 192")
    a(f"s_add_u32 s{sWoff}, s{sWoff}, s{sT}")
    a(f"s_mul_i32 s{sM0w}, s{sWave}, 3072")
    a(f"v_lshrrev_b32 v{t0}, 3, v{lane}")
    a(f"v_and_b32 v{t1}, 7, v{lane}")
    a(f"v_lshrrev_b32 v{t2}, 1, v{t0}")
    a(f"v_xor_b32 v{t1}, v{t1}, v{t2}")
    a(f"v_mul_u32_u24 v{t0}, 1280, v{t0}")
    a(f"v_lshl_add_u32 v{vXs[0]}, v{t1}, 4, v{t0}")
    a(f"v_xor_b32 v{vXs[1]}, 64, v{vXs[0]}")
    a(f"v_add_u32 v{vXs[1]}, {8*1280 - 1024}, v{vXs[1]}")
    a(f"s_lshl_b32 s{sXoff}, s{sRB}, 7")
    a(f"s_lshl_b32 s{sT}, s{sWave}, 5")
    a(f"s_add_u32 s{sXoff}, s{sXoff}, s{sT}")
    a(f"s_mul_i32 s{sXoff}, s{sXoff}, 1280")
    a(f"s_mul_i32 s{sM0x}, s{sWave}, {X_WAVE}")
    a(f"s_add_u32 s{sM0x}, s{sM0x}, {X_OFF}")

    tokW = {}; tokXu = {}
    def ops_w(c):
        def f0():
            a(f"s_add_u32 m0, s{sM0w}, {(c % 3) * W_SLOT}")
            if c: a(f"s_add_u32 s{sWoff}, s{sWoff}, {64*3072}")
        def fi(i):
            def f():
                a(f"buffer_load_dwordx4 v{vW[i]}, s[{sW1}:{sW1+3}], s{sWoff} offen offset:{1024*i} lds")
                if i == 2: tokW[c] = a.vtok()
            return f
        return [f0] + [fi(i) for i in range(3)]
    def ops_x(u):
        c, ct = u // 2, u % 2
        def f0():
            a(f"s_add_u32 m0, s{sM0x}, {(u % NXU) * 2048}")
            a(f"s_add_u32 s{sT}, s{sXoff}, {ct*16*1280 + c*128}")
        def fi(h):
            def f():
                a(f"buffer_load_dwordx4 v{vXs[h]}, s[{sX}:{sX+3}], s{sT} offen offset:{1024*h} lds")
                if h == 1: tokXu[u] = a.vtok()
            return f
        return [f0, fi(0), fi(1)]
    def do_first():
        for f in ops_w(0) + ops_x(0) + ops_x(1) + ops_w(1) + ops_x(2) + ops_x(3): f()
    do_first()
    if ENV("PFBE", 1) == 2: do_pf(PFA_, 10)

    a(f"v_lshrrev_b32 v{t0}, 4, v{lane}")
    a(f"v_bfe_u32 v{t1}, v{lane}, 2, 2")
    a(f"v_lshl_add_u32 v{t1}, v{t0}, 3, v{t1}")
    a(f"v_mul_u32_u24 v{t1}, 192, v{t1}")
    a(f"v_and_b32 v{t2}, 3, v{lane}")
    a(f"v_lshl_add_u32 v{t1}, v{t2}, 3, v{t1}")
    a(f"v_and_b32 v{t2}, 1, v{t0}")
    a(f"v_lshlrev_b32 v{t2}, 5, v{t2}")
    a(f"v_sub_u32 v{t3}, v{t1}, v{t2}")
    a(f"v_add_u32 v{t3}, 32, v{t3}")
    a(f"v_add_u32 v{t2}, v{t1}, v{t2}")
    for P in range(3):
        a(f"s_add_u32 s{sP[P]}, s{sWave}, {P}")
        a(f"s_cmp_ge_u32 s{sP[P]}, 3")
        a(f"s_cselect_b32 s{sT}, 3, 0")
        a(f"s_sub_u32 s{sP[P]}, s{sP[P]}, s{sT}")
        a(f"s_lshl_b32 s{sT}, s{sP[P]}, 6")
        a(f"v_add_u32 v{vE[P]}, s{sT}, v{t2}")
        a(f"v_add_u32 v{vO[P]}, s{sT}, v{t3}")
    a(f"v_and_b32 v{t1}, 15, v{lane}")
    a(f"v_lshrrev_b32 v{t2}, 1, v{t1}")
    a(f"v_xor_b32 v{t2}, v{t2}, v{t0}")
    a(f"v_lshlrev_b32 v{t2}, 4, v{t2}")
    a(f"v_lshl_add_u32 v{t2}, v{t1}, 7, v{t2}")
    a(f"v_add_u32 v{vXr[0]}, s{sM0x}, v{t2}")
    a(f"v_xor_b32 v{t2}, 64, v{t2}")
    a(f"v_add_u32 v{vXr[1]}, s{sM0x}, v{t2}")
    a(f"v_lshrrev_b32 v{t2}, 3, v{t1}")
    a(f"v_and_b32 v{t1}, 7, v{t1}")
    a(f"v_lshlrev_b32 v{t1}, 3, v{t1}")
    a(f"v_lshl_add_u32 v{vsa}, v{t2}, 7, v{t1}")
    a(f"s_mul_i32 s{sT}, s{sWave}, 12")
    a(f"s_mul_i32 s{sOA}, s{sT}, {32*1280}")
    a(f"s_mul_i32 s{sT2}, s{sJD}, 160")
    a(f"s_add_u32 s{sOA}, s{sOA}, s{sT2}")
    a(f"s_mul_i32 s{sOB}, s{sTB}, 192")
    a(f"s_add_u32 s{sOB}, s{sOB}, s{sT}")
    a(f"s_lshl_b32 s{sOB}, s{sOB}, 10")
    a(f"s_add_u32 s{sOB}, s{sOB}, {WS_ACT}")
    a(f"v_lshlrev_b32 v{t0}, 3, v{t0}")

    tokA = {}; tokXr = {}
    def ops_ra(ks):
        c, e = ks // 2, ks % 2
        off = (c % 3) * W_SLOT + e * 6144
        out = []
        for rt in range(6):
            ad = (vE if rt % 2 == 0 else vO)[rt // 2]
            for h in range(2):
                def f(rt=rt, h=h, ad=ad):
                    a(f"ds_read_b64_tr_b16 {v(A[ks%2][rt] + 2*h, 2)}, v{ad} offset:{off + 768*h}")
                    tokA[(ks, rt)] = a.ltok()
                out.append(f)
        return out
    def ops_rx(c):
        out = []
        for e in range(2):
            for ct in range(2):
                def f(e=e, ct=ct):
                    a(f"ds_read_b128 {v(X[c%2][e][ct],4)}, v{vXr[e]} offset:{((2*c+ct) % NXU) * 2048}")
                    tokXr[c] = a.ltok()
                out.append(f)
        return out
    def mf(d, A_, B_, first):
        c = "0" if first else v(d, 4)
        a(f"v_mfma_f32_16x16x32_bf16 {v(d,4)}, {v(A_,4)}, {v(B_,4)}, {c}")
    wq = [0]
    tokWR = {}
    def ops_wr(n, lim=NWI):
        out = []
        for it_ in range(n):
            f_ = wq[0]
            if f_ >= lim: break
            def f(f_=f_, it_=it_):
                if f_ % 4 == 0 or it_ == 0: a(f"s_add_u32 s{sT2}, s{sOA}, {1024*(f_ - f_%4)}")
                a(f"buffer_load_dwordx4 {v(WR[f_],4)}, v{v16}, s[{sWS}:{sWS+3}], s{sT2} offen offset:{1024*(f_%4)} sc1")
                tokWR[f_] = a.vtok()
            out.append(f); wq[0] += 1
        return out
    sFB = 49
    def ld_w2flags():
        a(f"buffer_load_dword v{vfl}, v{vfa}, s[{sWS}:{sWS+3}], s{sFB} offen sc1")
    def ld_first(nl):
        a(f"v_mov_b32 v{vfl}, s{sTok}")
        a(f"s_mov_b64 exec, {hex((1 << nl) - 1)}")
        ld_w2flags()
        a("s_mov_b64 exec, -1")
    def ld_stats():
        for ct in range(2):
            a(f"buffer_load_dwordx2 {v(st[ct],2)}, v{vsa}, s[{sWS}:{sWS+3}], s{sT3} offen offset:{256*ct} sc1")
    tk = {}
    def op_tok():
        a(f"buffer_load_dword v{vtok}, v{vzero}, s[{sDBG}:{sDBG+3}], 0 offen sc1")
        tk["tok"] = a.vtok()
    def op_chk_tok():
        a.wait(vm=tk["tok"])
        check_token(a, vtok, vzero)
    def op_pace():
        a(f"v_mov_b32 v{vtok}, s{sTok}")
        a(f"s_lshl_b32 s{sT2}, s{sId}, 7")
        a(f"s_add_u32 s{sT2}, s{sT2}, {WS_FPACE}")
        a(f"s_cmp_eq_u32 s{sWave}, 0")
        a(f"s_cselect_b32 s{sT2}, s{sT2}, {WS_SIZE}")
        a("s_mov_b64 exec, 1")
        a(f"buffer_store_dword v{vtok}, v{vzero}, s[{sWS}:{sWS+3}], s{sT2} offen sc1")
        a("s_mov_b64 exec, -1")
    def op_stats():
        a(f"s_lshl_b32 s{sT3}, s{sRB}, 4")
        a(f"s_lshl_b32 s{sT2}, s{sWave}, 2")
        a(f"s_add_u32 s{sT3}, s{sT3}, s{sT2}")
        a(f"s_lshl_b32 s{sT3}, s{sT3}, 7")
        a(f"s_add_u32 s{sT3}, s{sT3}, {WS_STAT}")
        ld_stats()
        tk["st"] = a.vtok()
    def op_b1(P):
        def f():
            a(f"s_mul_i32 s{sT2}, s{sCB}, 192")
            a(f"s_lshl_b32 s{sT}, s{sP[P]}, 6")
            a(f"s_add_u32 s{sT}, s{sT}, s{sT2}")
            for o in range(2):
                a(f"buffer_load_dwordx2 {v(b1p[2*P+o],2)}, v{t0}, s[{sB1}:{sB1+3}], s{sT} offen offset:{32*o}")
        return f

    a("s_waitcnt lgkmcnt(0)")
    for P in range(3): op_b1(P)()
    a("s_waitcnt lgkmcnt(0)")
    if ENV("PFBE", 1) == 1 and PFA_ < 10: do_pf(PFA_, 10)
    a.wait(vm=max(tokW[0], tokXu[1]))
    for i in range(4): a(f"v_mov_b32 v{ones+i}, 0x3f803f80")
    a("s_barrier")
    stamp(a, 2)
    for f in ops_rx(0) + ops_ra(0) + ops_x(4) + ops_w(2): f()
    if PFA_ < 10 and not ENV("PFBE", 1): do_pf(PFA_, 10)
    if ENV("PF20", 4) == -1: op_pf2(0)()
    op_tok()
    extra = {9: [op_chk_tok], ENV("PACEKS", 13): [op_pace], ENV("STATKS", 15): [op_stats]}
    if ENV("PF20", 4) >= 0: extra.setdefault(ENV("PF20", 4), []).append(op_pf2(0))
    for j in range(1, 8): extra.setdefault(min(19, ENV("PF2KS", 10) + (j if not ENV("PF2D", 0) else (j + 1) // 2)), []).append(op_pf2(j))
    if ENV("GPRIO2", 2): a(f"s_setprio {ENV('GPRIO2', 2)}")
    for ks in range(20):
        c, e = ks // 2, ks % 2
        first = ks == 0
        Xs = X[c % 2][e]; As = A[ks % 2]
        mlist = []
        for rt in range(6):
            for ct in range(2): mlist.append((rt, acc[rt][ct], As[rt], Xs[ct]))
            if rt < 2: mlist.append((rt, cs[rt], As[rt], ones))
        if e == 0:
            fill = ops_ra(ks + 1)
            dma = []
            for u in (2 * c + 5, 2 * c + 6):
                if u < 20: dma += ops_x(u)
            fl2 = []
            for i, f in enumerate(fill):
                fl2.append(f)
                if i % 2 == 1 and dma: fl2.append(dma.pop(0))
            fill = fl2 + dma + extra.get(ks, [])
            start = 0
            a.wait(lg=tokXr[c])
        else:
            fill = []
            if ks < 19:
                fill = ops_rx(c + 1) + ops_ra(ks + 1)
                if c + 3 < 10: fill += ops_w(c + 3)
            fill += extra.get(ks, [])
            start = 6 if ks < 19 else 0
        nslots = len(mlist) - start
        per = [len(fill) // nslots + (1 if i < len(fill) % nslots else 0) for i in range(nslots)]
        lastrt = -1
        for i, (rt, d, A_, B_) in enumerate(mlist):
            if e == 1 and ks < 19 and i == start:
                a.wait(vm=max(tokW[c + 1], tokXu[2 * c + 3]), lg=a.ltok())
                a("s_barrier")
                if ks in (5, 11): stamp(a, {5: 3, 11: 4}[ks])
                lastrt = 99
            if rt > lastrt:
                a.wait(lg=tokA[(ks, rt)]); lastrt = rt
            mf(d, A_, B_, first)
            if i >= start:
                for _ in range(per[i - start]): fill.pop(0)()
        assert not fill
    tokst = tk["st"]
    stamp(a, 5)

    E = Alloc(pool, limit=vpf)
    csv = [E(4, 4) for _ in range(6)]
    b1v = [E(4, 4) for _ in range(6)]
    rr = [E(2, 2) for _ in range(2)]
    rm = [st[0], st[1]]
    tmp = [E(2, 2) for _ in range(8)]
    outp = cs
    vcs = E()
    CSOFF = 2 * W_SLOT
    a(f"v_lshrrev_b32 v{t0}, 4, v{lane}")
    a(f"v_lshlrev_b32 v{vcs}, 4, v{t0}")
    a(f"s_lshl_b32 s{sT}, s{sP[0]}, 7")
    a(f"v_add_u32 v{t1}, s{sT}, v{vcs}")
    for o in range(2):
        a(f"ds_write_b128 v{t1}, {v(cs[o],4)} offset:{CSOFF + 64*o}")
    a.wait(vm=tokst)
    check_flags(a, [st[0] + 1, st[1] + 1], vsa, ld_stats)
    a("s_waitcnt lgkmcnt(0)")
    a("s_barrier")
    for P in range(3):
        a(f"s_lshl_b32 s{sT}, s{sP[P]}, 7")
        a(f"v_add_u32 v{t1}, s{sT}, v{vcs}")
        for o in range(2):
            a(f"ds_read_b128 {v(csv[2*P+o],4)}, v{t1} offset:{CSOFF + 64*o}")
    for ct in range(2):
        a(f"v_and_b32 v{t1}, 0xffff0000, v{st[ct]}")
        a(f"v_rcp_f32 v{rr[ct]}, v{t1}")
        a(f"v_lshlrev_b32 v{t2}, 16, v{st[ct]}")
        a(f"v_mul_f32 v{rr[ct]+1}, v{t2}, v{rr[ct]}")
        a(f"v_sub_f32 v{rm[ct]}, 0, v{rr[ct]+1}")
    for rt in range(6):
        a(f"v_lshlrev_b32 v{b1v[rt]}, 16, v{b1p[rt]}")
        a(f"v_and_b32 v{b1v[rt]+1}, 0xffff0000, v{b1p[rt]}")
        a(f"v_lshlrev_b32 v{b1v[rt]+2}, 16, v{b1p[rt]+1}")
        a(f"v_and_b32 v{b1v[rt]+3}, 0xffff0000, v{b1p[rt]+1}")
    a(f"s_lshl_b32 s{sT}, s{sRB}, 3")
    a(f"s_lshl_b32 s{sT2}, s{sWave}, 1")
    a(f"s_add_u32 s{sT}, s{sT}, s{sT2}")
    a(f"s_mul_i32 s{sT}, s{sT}, 48")
    a(f"s_mul_i32 s{sT2}, s{sCB}, 3")
    a(f"s_add_u32 s{sT}, s{sT}, s{sT2}")
    for P in range(3):
        a(f"s_add_u32 s{sP[P]}, s{sP[P]}, s{sT}")
        a(f"s_lshl_b32 s{sP[P]}, s{sP[P]}, 10")
        a(f"s_add_u32 s{sP[P]}, s{sP[P]}, {WS_ACT}")
    a(f"s_mov_b32 s50, {f32(LOG2E)}"); a(f"s_mov_b32 s51, {f32(LOG2E)}")
    Q = Alloc(base2, limit=256)
    acc2 = [[Q(4, 4) for ct in range(4)] for rt in range(5)]
    NST = 3
    FB = [[Q(4, 4) for _ in range(4)] for _ in range(NST)]
    vB = [Q() for _ in range(4)]
    vxo = Q(); vxo2 = Q()
    vw = [Q() for _ in range(5)]; vw8 = Q(); vw4 = Q()
    a(f"s_mul_i32 s{sM0w}, s{sWave}, 20480")
    tokD = {}
    def ops_dma(k):
        out = []
        for i in range(5):
            def f(i=i):
                if i == 0:
                    a(f"s_add_u32 m0, s{sM0w}, {5120*(k%4)}")
                    a(f"s_add_u32 s{sXoff}, s{sOA}, {32*1280*k}")
                if i == 4: a(f"s_add_u32 m0, s{sM0w}, {5120*(k%4) + 4096}")
                a(f"buffer_load_dwordx4 v{vw[i]}, s[{sW2}:{sW2+3}], s{sXoff} offen offset:{1024*i if i < 4 else 0} lds")
                tokD[k] = a.vtok()
            out.append(f)
        return out
    tokL = {}
    def op_rw(k, rt):
        o = WR[5 * (k % 5) + rt]
        for e in range(2):
            if rt < 4: a(f"ds_read_b64_tr_b16 {v(o+2*e,2)}, v{vw8} offset:{5120*(k%4) + 64*(rt>>1) + 8*(rt&1) + 2560*e}")
            else: a(f"ds_read_b64_tr_b16 {v(o+2*e,2)}, v{vw4} offset:{5120*(k%4) + 128 + 2560*e}")
        tokL[(k, rt)] = a.ltok()
    a("s_waitcnt lgkmcnt(0)")
    stamp(a, 6)
    k = 0
    for P in range(3):
        for ct in range(2):
            op = outp[k % 2]; k += 1
            if k == 1: dq = sum([ops_dma(k_) for k_ in range(4)], [])
            def dq_pop():
                if len(dq) > 20 - ENV("NDQ", 0): dq.pop(0)()
            dq_pop()
            hs = []
            EP = ENV("EPLAIN", 0)
            for o in range(2):
                rt = 2 * P + o
                for hf in range(2):
                    h = acc[rt][ct] + 2 * hf
                    tt = tmp[len(hs)]
                    if EP:
                        for z in range(2): a(f"v_fma_f32 v{tt+z}, v{csv[rt]+2*hf+z}, v{rm[ct]}, v{b1v[rt]+2*hf+z}")
                        for z in range(2): a(f"v_fma_f32 v{h+z}, v{h+z}, v{rr[ct]}, v{tt+z}")
                    else:
                        a(f"v_pk_fma_f32 {v(tt,2)}, {v(csv[rt]+2*hf,2)}, {v(rm[ct],2)}, {v(b1v[rt]+2*hf,2)} op_sel_hi:[1,0,1]")
                        a(f"v_pk_fma_f32 {v(h,2)}, {v(h,2)}, {v(rr[ct],2)}, {v(tt,2)} op_sel_hi:[1,0,1]")
                    hs.append(h)
            def pmul(d, x, y):
                if EP:
                    for z in range(2): a(f"v_mul_f32 v{d+z}, " + (f"s50, v{x+z}" if y is None else f"v{x+z}, v{y+z}"))
                else: a(f"v_pk_mul_f32 {v(d,2)}, {v(x,2)}, " + ("s[50:51]" if y is None else v(y, 2)))
            def padd2(d, x):
                if EP:
                    for z in range(2): a(f"v_add_f32 v{d+z}, 2.0, v{x+z}")
                else: a(f"v_pk_add_f32 {v(d,2)}, {v(x,2)}, 2.0 op_sel_hi:[1,0]")
            for i, h in enumerate(hs): pmul(tmp[i], h, None)
            for i, h in enumerate(hs):
                a(f"v_min_f32 v{tmp[i]}, {f32(30.0)}, v{tmp[i]}")
                a(f"v_min_f32 v{tmp[i]+1}, {f32(30.0)}, v{tmp[i]+1}")
            dq_pop()
            for i, h in enumerate(hs):
                a(f"v_exp_f32 v{tmp[i]}, v{tmp[i]}")
                a(f"v_exp_f32 v{tmp[i]+1}, v{tmp[i]+1}")
            dq_pop()
            for i, h in enumerate(hs): padd2(tmp[4+i], tmp[i])
            for i, h in enumerate(hs): pmul(tmp[i], tmp[i], tmp[4+i])
            for i, h in enumerate(hs): padd2(tmp[4+i], tmp[i])
            for i, h in enumerate(hs):
                a(f"v_rcp_f32 v{tmp[4+i]}, v{tmp[4+i]}")
                a(f"v_rcp_f32 v{tmp[4+i]+1}, v{tmp[4+i]+1}")
            dq_pop()
            for i, h in enumerate(hs): pmul(h, h, tmp[i])
            for i, h in enumerate(hs): pmul(h, h, tmp[4+i])
            for i, h in enumerate(hs): a(f"v_cvt_pk_bf16_f32 v{op+i}, v{h}, v{h+1}")
            if ct == 0:
                a(f"buffer_store_dwordx4 {v(op,4)}, v{v16}, s[{sWS}:{sWS+3}], s{sP[P]} offen sc1")
            else:
                a(f"s_add_u32 s{sT}, s{sP[P]}, {48*1024}")
                a(f"buffer_store_dwordx4 {v(op,4)}, v{v16}, s[{sWS}:{sWS+3}], s{sT} offen sc1")
    tokst_ = a.vtok()
    stamp(a, 7)
    for i in range(5):
        a(f"v_add_u32 v{t0}, {64*i}, v{lane}")
        a(f"v_mul_u32_u24 v{t1}, 0xcccd, v{t0}")
        a(f"v_lshrrev_b32 v{t1}, 19, v{t1}")
        a(f"v_mul_u32_u24 v{t2}, 10, v{t1}")
        a(f"v_sub_u32 v{t2}, v{t0}, v{t2}")
        a(f"v_mul_u32_u24 v{t1}, 1280, v{t1}")
        a(f"v_lshl_add_u32 v{vw[i]}, v{t2}, 4, v{t1}")
        if 0 < i < 4: a(f"v_subrev_u32 v{vw[i]}, {1024*i}, v{vw[i]}")
    a("s_barrier")
    a(f"s_lshl_b32 s{sT}, s{sRB}, 4")
    a(f"s_add_u32 s{sT}, s{sT}, s{sCB}")
    a(f"s_lshl_b32 s{sT}, s{sT}, 2")
    a(f"s_add_u32 s{sT}, s{sT}, s{sWave}")
    a(f"s_lshl_b32 s{sT}, s{sT}, 7")
    a(f"s_add_u32 s{sT}, s{sT}, {WS_FACT}")
    a(f"v_mov_b32 v{vtok}, s{sTok}")

    for ct in range(4):
        a(f"s_add_u32 s{sT2}, s{sWave}, {ct}")
        a(f"s_and_b32 s{sT2}, s{sT2}, 3")
        a(f"s_mul_i32 s{sT2}, s{sT2}, {48*1024}")
        a(f"v_add_u32 v{vB[ct]}, s{sT2}, v{v16}")
    a(f"v_lshrrev_b32 v{t1}, 2, v{lane}")
    a(f"v_mul_u32_u24 v{t1}, 160, v{t1}")
    a(f"v_add_u32 v{t1}, s{sM0w}, v{t1}")
    a(f"v_and_b32 v{t2}, 3, v{lane}")
    a(f"v_lshl_add_u32 v{vw8}, v{t2}, 4, v{t1}")
    a(f"v_lshl_add_u32 v{vw4}, v{t2}, 3, v{t1}")
    def do_publish():
        a.wait(vm=tokst_)
        a("s_mov_b64 exec, 1")
        a(f"buffer_store_dword v{vtok}, v{vzero}, s[{sWS}:{sWS+3}], s{sT} offen sc1")
        a("s_mov_b64 exec, -1")
        if ENV("GPRIO2", 2): a(f"s_setprio {ENV('GPRIO3', 0)}")
        stamp(a, 8)
    for _ in range(min(len(dq), 10)): dq.pop(0)()
    a(f"v_and_b32 v{t0}, 3, v{lane}")
    a(f"v_bfe_u32 v{t1}, v{lane}, 2, 1")
    a(f"v_lshl_add_u32 v{vfa}, v{t0}, 2, v{t1}")
    a(f"v_lshlrev_b32 v{vfa}, 7, v{vfa}")
    a(f"s_lshr_b32 s{sFB}, s{sTB}, 1")
    a(f"s_lshl_b32 s{sFB}, s{sFB}, 2")
    a(f"s_add_u32 s{sFB}, s{sFB}, s{sWave}")
    a(f"s_lshl_b32 s{sFB}, s{sFB}, 3")
    a(f"s_and_b32 s{sT2}, s{sTB}, 1")
    a(f"s_add_u32 s{sFB}, s{sFB}, s{sT2}")
    a(f"s_lshl_b32 s{sFB}, s{sFB}, 8")
    a(f"s_add_u32 s{sFB}, s{sFB}, {WS_FACT}")
    a(f"v_mul_u32_u24 v{t0}, {48*1024}, v{t0}")
    a(f"v_lshrrev_b32 v{t1}, 2, v{lane}")
    a(f"v_lshl_add_u32 v{t0}, v{t1}, 10, v{t0}")
    a(f"s_lshl_b32 s{sT2}, s{sJD}, 7")
    a(f"s_add_u32 s{sT2}, s{sT2}, s{sOB}")
    do_publish()
    while dq: dq.pop(0)()
    def rd(k):
        a.wait(vm=tokD[k])
        for rt in range(5): op_rw(k, rt)
    def dm(k):
        a.wait(lg=tokL[(k - 4, 4)])
        for f in ops_dma(k): f()
    tokB = {}; tokBc = {}
    def issue_b(k):
        for ct in range(4):
            a(f"buffer_load_dwordx4 {v(FB[k%NST][ct],4)}, v{vB[ct]}, s[{sWS}:{sWS+3}], s{sOB} offen sc1")
            tokBc[(k, ct)] = a.vtok()
        tokB[k] = a.vtok()
        if k < 11: a(f"s_add_u32 s{sOB}, s{sOB}, 1024")
    FPOS = ENV("FPOS", 2)
    def fl():
        ld_first(8); tk["fa"] = a.vtok()
    rd(0); rd(1); dm(4); rd(2)
    if FPOS == 0: fl()
    dm(5)
    if FPOS == 1: fl()
    rd(3); dm(6)
    if FPOS == 2:
        fl(); dm(7)
    stamp(a, 14)
    a.wait(vm=tk["fa"])
    check_flags(a, [vfl], vfa, ld_w2flags, sleep=ENV("ASLEEP", 3))
    stamp(a, 9)
    if ENV("GPRIO2", 2): a(f"s_setprio {ENV('GPRIO4', 0)}")
    if ENV("PFA", 0):
        a("s_mov_b32 exec_hi, 0xffff")
        a(f"buffer_load_dword v{t3}, v{t0}, s[{sWS}:{sWS+3}], s{sT2} offen sc1")
        a("s_mov_b32 exec_hi, -1")
    for k in range(NST): issue_b(k)
    if FPOS != 2: dm(7)
    rd(4)
    D8 = ENV("D8", 1)
    if D8: dm(8)
    sXo = 40
    a(f"s_lshl_b32 s{sXo}, s{sTB}, 6")
    a(f"s_lshl_b32 s{sT2}, s{sWave}, 4")
    a(f"s_add_u32 s{sXo}, s{sXo}, s{sT2}")
    a(f"s_mul_i32 s{sXo}, s{sXo}, 1280")
    a(f"s_mul_i32 s{sT2}, s{sJD}, 160")
    a(f"s_add_u32 s{sXo}, s{sXo}, s{sT2}")
    vso = vxo; vlw = vxo2
    a(f"v_lshrrev_b32 v{t0}, 3, v{lane}")
    a(f"v_and_b32 v{t1}, 7, v{lane}")
    a(f"v_lshlrev_b32 v{t1}, 4, v{t1}")
    a(f"v_lshl_add_u32 v{vso}, v{t0}, 12, v{t1}")
    a(f"s_mul_i32 s{sM0x}, s{sWave}, 2560")
    STOFF = 61440; XSOFF = 71680
    a(f"v_min_u32 v{vfa}, 19, v{lane}")
    a(f"v_lshlrev_b32 v{vfa}, 7, v{vfa}")
    a(f"s_mul_i32 s{sT3}, s{sJD}, 80")
    a(f"s_mul_i32 s{sT}, s{sWave}, 20")
    a(f"s_add_u32 s{sWoff}, s{sT3}, s{sT}")
    a(f"s_lshl_b32 s{sT3}, s{sWoff}, 7")
    a(f"s_lshr_b32 s{sT}, s{sTB}, 3")
    a(f"s_lshl_b32 s{sT}, s{sT}, 2")
    a(f"s_add_u32 s{sT3}, s{sT3}, s{sT}")
    a(f"s_add_u32 s{sFB}, s{sT3}, {WS_FST}")
    slot = {f: f % 25 for f in range(60)}
    assert D8
    def ld_b(k, ct):
        a(f"buffer_load_dwordx4 {v(FB[k%NST][ct],4)}, v{vB[ct]}, s[{sWS}:{sWS+3}], s{sOB} offen sc1")
        tokBc[(k, ct)] = a.vtok()
        if ct == 3:
            tokB[k] = a.vtok()
            if k < 11: a(f"s_add_u32 s{sOB}, s{sOB}, 1024")
    for k in range(12):
        dma = ops_dma(k + 8) if 1 <= k <= 3 else []
        if k >= 4: a.wait(lg=tokL[(k, 4)])
        for ct in range(4):
            a.wait(vm=tokBc[(k, ct)])
            if ct == 2 and dma: a.wait(lg=tokL[(k + 4, 4)])
            for rt in range(5):
                c = "0" if k == 0 else v(acc2[rt][ct], 4)
                a(f"v_mfma_f32_16x16x32_bf16 {v(acc2[rt][ct],4)}, {v(WR[slot[5*k+rt]],4)}, {v(FB[k%NST][ct],4)}, {c}")
                if ct == 0 and 1 <= k <= 7:
                    if rt == 0: a.wait(vm=tokD[k + 4])
                    op_rw(k + 4, rt)
                if rt == 0 and ct >= 1 and k + NST < 12: ld_b(k + NST, ct - 1)
                if ct >= 2 and rt in (1, 2, 4) and dma: dma.pop(0)()
        while dma: dma.pop(0)()
        if k + NST < 12: ld_b(k + NST, 3)
        if k in (0, 5): stamp(a, {0: 10, 5: 11}[k])
        if k == ENV("STK", 6):
            ld_first(20); tokfl = a.vtok()
        if k == ENV("BARK", 7):
            a("s_waitcnt lgkmcnt(0)")
            a("s_barrier")
            a(f"s_add_u32 m0, s{sM0x}, {XSOFF}")
            for i in range(3):
                if i == 2: a("s_mov_b32 exec_hi, 0")
                a(f"buffer_load_dwordx4 v{vw[i]}, s[{sX}:{sX+3}], s{sXo} offen offset:{1024*i} lds")
            a("s_mov_b32 exec_hi, -1")
        if k == ENV("STK2", 8):
            a.wait(vm=tokfl)
            check_flags(a, [vfl], vfa, ld_w2flags, sleep=ENV("STSLEEP", 8))
            a(f"s_lshl_b32 s{sT}, s{sWoff}, 12")
            a(f"s_lshl_b32 s{sT2}, s{sTB}, 7")
            a(f"s_add_u32 s{sT}, s{sT}, s{sT2}")
            a(f"s_add_u32 s{sT}, s{sT}, {WS_ST}")
            for i in range(3):
                if i == 2: a("s_mov_b32 exec_hi, 0")
                a(f"s_add_u32 m0, s{sM0x}, {STOFF + 1024*i}")
                a(f"buffer_load_dwordx4 v{vso}, s[{sWS}:{sWS+3}], s{sT} offen sc1 lds")
                if i < 2: a(f"s_add_u32 s{sT}, s{sT}, {8*4096}")
            a("s_mov_b32 exec_hi, -1")
        if k == 10:
            for ct in range(1, 4):
                a(f"s_add_u32 s{sT2}, s{sWave}, {ct}")
                a(f"s_and_b32 s{sT2}, s{sT2}, 3")
                a(f"s_mul_i32 s{sT2}, s{sT2}, 15360")
                a(f"v_add_u32 v{vB[ct]}, s{sT2}, v{v16}")
            break
    k = 11
    a.wait(vm=tokB[k]); a.wait(lg=tokL[(k, 4)])
    vt8, vt4, vx16, vx8 = [FB[0][0] + i for i in range(4)]
    misc = [f"v_lshrrev_b32 v{t2}, 4, v{lane}", f"v_bfe_u32 v{t0}, v{lane}, 2, 2",
            f"v_lshl_add_u32 v{t1}, v{t2}, 3, v{t0}", f"v_lshl_add_u32 v{t0}, v{t2}, 2, v{t0}", f"v_and_b32 v{t3}, 3, v{lane}"]
    pend = []
    for ct in (1, 2, 3, 0):
        for rt in range(5):
            a(f"v_mfma_f32_16x16x32_bf16 {v(acc2[rt][ct],4)}, {v(WR[slot[5*k+rt]],4)}, {v(FB[k%NST][ct],4)}, {v(acc2[rt][ct],4)}")
            if ct == 1: a(misc[rt])
            elif pend: a(pend.pop(0))
        if ct: pend += [f"ds_write_b128 v{vB[ct]}, {v(acc2[rt][ct],4)} offset:{(ct-1)*5120 + rt*1024}" for rt in range(5)]
    stamp(a, 12)
    Pr = [[acc2[rt][p + 1] for rt in range(5)] for p in range(3)]
    T = [WR[10 + i // 2] + 2 * (i % 2) for i in range(10)]
    sv = [WR[15 + i // 2] + 2 * (i % 2) for i in range(5)]
    xq = [WR[18], WR[19], WR[20]]
    op = [WR[21], WR[22], WR[23]]
    a(f"s_lshl_b32 s{sT}, s{sWave}, 5")
    a(f"s_add_u32 s{sT}, s{sT}, {STOFF}")
    a(f"v_lshl_add_u32 v{t3}, v{t3}, 3, s{sT}")
    a(f"v_lshl_add_u32 v{vt8}, v{t1}, 7, v{t3}")
    a(f"v_lshl_add_u32 v{vt4}, v{t0}, 7, v{t3}")
    a(f"v_and_b32 v{t0}, 15, v{lane}")
    a(f"v_mul_u32_u24 v{t0}, 160, v{t0}")
    a(f"s_add_u32 s{sT}, s{sM0x}, {XSOFF}")
    a(f"v_add_u32 v{t0}, s{sT}, v{t0}")
    a(f"v_lshl_add_u32 v{vx16}, v{t2}, 4, v{t0}")
    a(f"v_lshl_add_u32 v{vx8}, v{t2}, 3, v{t0}")
    a(f"v_add_u32 v{vlw}, s{sT}, v{v16}")
    a(f"s_mul_i32 s{sT2}, s{sWave}, 15360")
    a(f"v_add_u32 v{t3}, s{sT2}, v{v16}")
    a(f"s_mov_b32 s50, {f32(-LOG2E)}"); a(f"s_mov_b32 s51, {f32(-LOG2E)}")
    a("s_waitcnt vmcnt(0) lgkmcnt(0)")
    a("s_barrier")
    stamp(a, 13)
    tkr = {}
    for rt in range(5):
        for p in range(3):
            a(f"ds_read_b128 {v(Pr[p][rt],4)}, v{t3} offset:{p*5120 + rt*1024}")
        tkr[rt] = a.ltok()
    o2 = []
    late = [f"ds_read_b64_tr_b16 {v(sv[rt],2)}, v{vt8} offset:{128*(32*(rt>>1) + 4*(rt&1))}" for rt in range(4)]
    late += [f"ds_read_b64_tr_b16 {v(sv[4],2)}, v{vt4} offset:{128*64}", f"ds_read_b128 {v(xq[0],4)}, v{vx16}",
             f"ds_read_b128 {v(xq[1],4)}, v{vx16} offset:64", f"ds_read_b64 {v(xq[2],2)}, v{vx8} offset:128"]
    for rt in range(5):
        a.wait(lg=tkr[rt])
        for hf in range(2):
            d = acc2[rt][0] + 2 * hf
            a(f"v_pk_add_f32 {v(Pr[0][rt]+2*hf,2)}, {v(Pr[0][rt]+2*hf,2)}, {v(Pr[1][rt]+2*hf,2)}")
            a(f"v_pk_add_f32 {v(d,2)}, {v(d,2)}, {v(Pr[2][rt]+2*hf,2)}")
            a(f"v_pk_add_f32 {v(d,2)}, {v(d,2)}, {v(Pr[0][rt]+2*hf,2)}")
            o2.append(d)
    for x_ in late: a(x_)
    for i, d in enumerate(o2): a(f"v_pk_mul_f32 {v(T[i],2)}, {v(d,2)}, s[50:51]")
    for i, d in enumerate(o2):
        a(f"v_exp_f32 v{T[i]}, v{T[i]}")
        a(f"v_exp_f32 v{T[i]+1}, v{T[i]+1}")
    for i, d in enumerate(o2): a(f"v_pk_add_f32 {v(T[i],2)}, {v(T[i],2)}, 1.0 op_sel_hi:[1,0]")
    for i, d in enumerate(o2):
        a(f"v_rcp_f32 v{T[i]}, v{T[i]}")
        a(f"v_rcp_f32 v{T[i]+1}, v{T[i]+1}")
    a("s_waitcnt lgkmcnt(0)")
    for i, d in enumerate(o2):
        s_ = sv[i // 2] + i % 2
        x_ = xq[i // 4] + i % 4
        U_ = Pr[0][i // 2] + 2 * (i % 2)
        V_ = Pr[1][i // 2] + 2 * (i % 2)
        a(f"v_pk_mul_f32 {v(d,2)}, {v(d,2)}, {v(T[i],2)}")
        a(f"v_lshlrev_b32 v{U_}, 16, v{s_}")
        a(f"v_and_b32 v{U_+1}, 0xffff0000, v{s_}")
        a(f"v_lshlrev_b32 v{V_}, 16, v{x_}")
        a(f"v_and_b32 v{V_+1}, 0xffff0000, v{x_}")
        a(f"v_pk_fma_f32 {v(d,2)}, {v(d,2)}, {v(U_,2)}, {v(V_,2)}")
        a(f"v_cvt_pk_bf16_f32 v{op[i//4] + i%4}, v{d}, v{d+1}")
        if i == 3: a(f"ds_write_b128 v{vx16}, {v(op[0],4)}")
        if i == 7: a(f"ds_write_b128 v{vx16}, {v(op[1],4)} offset:64")
    a(f"ds_write_b64 v{vx8}, {v(op[2],2)} offset:128")
    for i in range(3):
        a(f"ds_read_b128 {v(xq[i],4)}, v{vlw} offset:{1024*i}")
    for i in range(3):
        a(f"s_waitcnt lgkmcnt({2-i})")
        if i == 2: a("s_mov_b32 exec_hi, 0")
        a(f"buffer_store_dwordx4 {v(xq[i],4)}, v{vw[i]}, s[{sOUT}:{sOUT+3}], s{sXo} offen offset:{1024*i} {os.environ.get('OUTMOD', '')}")
    stamp_end(a, sWave)
    return 256

def main(out):
    ref = open(f"cdna_kernels/{NAME}.s.ref").read().split("\n")
    hdr = [l for l in ref if l.startswith(";") and "@launch" not in l]
    hdr.append(f"; @launch grid=(512,1,1) block=(256,1,1) lds={LDS_BYTES}")
    a = Asm()
    a.raw(f'.amdgcn_target "amdgcn-amd-amdhsa--gfx950"\n.text\n.globl {KN}\n.p2align 8\n.type {KN},@function')
    a.label(KN)
    a("s_cmp_ge_u32 s2, 512")
    a("s_cbranch_scc1 K_exit")
    if ENV("CPF", 1):
        a("s_getpc_b64 s[18:19]")
        a("s_and_b32 s18, s18, 0xffffff00")
        a("s_lshr_b32 s3, s2, 3")
        a("s_xor_b32 s3, s3, 32")
        a("s_lshl_b32 s3, s3, 9")
        a("s_add_u32 s18, s18, s3")
        a("s_addc_u32 s19, s19, 0")
        a("v_lshrrev_b32 v252, 6, v0")
        a("v_lshlrev_b32 v252, 7, v252")
        a("v_mov_b32 v253, s19")
        a("v_add_co_u32 v252, vcc, s18, v252")
        a("v_addc_co_u32 v253, vcc, 0, v253, vcc")
        a("s_mov_b64 exec, 1")
        a("global_load_dword v254, v[252:253], off")
        a("s_mov_b64 exec, -1")
    a("s_cmp_lt_u32 s2, 256")
    a("s_cbranch_scc1 " + ("K_exit" if ENV("NOS", 0) else "S_role"))
    if ENV('NOG', 0): a("s_branch K_exit")
    _role[0] = "G"
    hg = g_role(a)
    _role[0] = "S"
    a.label("S_role"); a.flush_hist()
    hs = s_role(a)
    a.label("K_exit")
    a("s_endpgm")
    if ENV("CPF", 1): a.raw(".p2align 15")
    print("vgprs", hg, hs, "nops", a.nnop, "lines", len(a.items), file=sys.stderr)
    kd = f""".section .rodata,"a"
.p2align 6
.amdhsa_kernel {KN}
  .amdhsa_next_free_vgpr 256
  .amdhsa_next_free_sgpr {102 if STAMPS else 64}
  .amdhsa_accum_offset 256
  .amdhsa_group_segment_fixed_size 0
  .amdhsa_kernarg_size 128
  .amdhsa_user_sgpr_count 2
  .amdhsa_user_sgpr_kernarg_segment_ptr 1
  .amdhsa_system_sgpr_workgroup_id_x 1
  .amdhsa_float_denorm_mode_32 3
  .amdhsa_float_denorm_mode_16_64 3
.end_amdhsa_kernel
"""
    open(out, "w").write("\n".join(hdr) + "\n" + a.text() + kd)

if __name__ == "__main__":
    main(sys.argv[1] if len(sys.argv) > 1 else f"cdna_kernels/{NAME}.s")
```

```python
import sys, os, struct, math
sys.path.insert(0, os.path.dirname(os.path.abspath(__file__)))
from asmlib import *

NAME = "recurrent_scan__ssm_conv_s4__dense_activation_mish__prompt"
KN = NAME + "_kernel"
L, D, N, F = 2048, 640, 192, 1536
ENV = lambda k, d: int(os.environ.get(k, str(d)))
STAMPS = ENV("STAMPS", 0)

WS_XT2 = 0x0000000
WS_ST  = 0x0400000
WS_W2A = 0x0800000
WS_ACT = 0x0C00000
WS_STAT = 0x1400000
WS_FLN = 0x1500000
WS_FPACE = 0x1510000
WS_FACT = 0x1520000
WS_FST = 0x1560000
WS_SIZE = 0x1600000
WS_STAMP = 0x4000000
LDS_BYTES = 81920
SPIN_MAX = 0x4000

def f32(x): return "0x%08x" % struct.unpack("<I", struct.pack("<f", x))[0]
LOG2E = 1.4426950408889634
LN2 = 0.6931471805599453

def srd(a, sreg, size):
    a(f"s_mov_b32 s{sreg+2}, {size}")
    a(f"s_mov_b32 s{sreg+3}, 0x20000")

def bf16r(a, dst, src):
    a(f"v_cvt_pk_bf16_f32 v{dst}, v{src}, v{src}")
    a(f"v_and_b32 v{dst}, 0xffff0000, v{dst}")

_sn = [0]
DIAG = ENV("DIAG", 0)
DROLE = os.environ.get("DROLE", "G")
_role = ["?"]
def stamp_begin(a):
    _sn[0] = 0
    if DIAG and _role[0] == DROLE:
        a("s_memrealtime s[60:61]"); a("s_memrealtime s[62:63]")
    if STAMPS:
        a("s_memrealtime s[60:61]")
        for i in range(64, 96, 2): a(f"s_mov_b64 s[{i}:{i+1}], 0")
        a("s_memtime s[64:65]")
        _sn[0] = 1
def stamp(a, n=None):
    if DIAG and n == DIAG and _role[0] == DROLE: a("s_memrealtime s[62:63]")
    if STAMPS:
        if n is None:
            n = _sn[0]; _sn[0] += 1
        assert n < 16
        a(f"s_memtime s[{64+2*n}:{65+2*n}]")
def stamp_end(a, sWave):
    if DIAG and _role[0] == DROLE:
        if DIAG == 15: a("s_memrealtime s[62:63]")
        a("s_memrealtime s[56:57]")
        a("s_waitcnt lgkmcnt(0)")
        a("s_sub_u32 s62, s62, s60")
        a("s_lshl_b32 s62, s62, 2")
        a("s_add_u32 s56, s56, s62")
        a.label("DG_spin")
        a("s_sleep 2")
        a("s_memrealtime s[58:59]")
        a("s_waitcnt lgkmcnt(0)")
        a("s_sub_u32 s58, s58, s56")
        a("s_cmp_lt_i32 s58, 0")
        a("s_cbranch_scc1 DG_spin")
    if STAMPS:
        stamp(a, 15)
        a("s_memrealtime s[62:63]")
        a("s_load_dwordx2 s[96:97], s[0:1], 120")
        a("s_waitcnt lgkmcnt(0)")
        a(f"s_add_u32 s96, s96, {WS_STAMP}")
        a("s_addc_u32 s97, s97, 0")
        a("s_mov_b32 s98, 0x100000")
        a("s_mov_b32 s99, 0x20000")
        a("s_lshl_b32 s59, s2, 10")
        a(f"s_lshl_b32 s58, s{sWave}, 8")
        a("s_add_u32 s59, s59, s58")
        a("s_mov_b64 exec, 1")
        a("v_mov_b32 v1, s59")
        a("v_mov_b32 v2, s60"); a("v_mov_b32 v3, s62")
        a("buffer_store_dwordx2 v[2:3], v1, s[96:99], 0 offen")
        for n in range(16):
            a(f"s_sub_u32 s59, s{64+2*n}, s64")
            a(f"s_cmp_eq_u32 s{64+2*n}, 0")
            a(f"s_cselect_b32 s59, 0, s59")
            a(f"v_mov_b32 v{4 + n}, s59")
            a(f"buffer_store_dword v{4 + n}, v1, s[96:99], 0 offen offset:{16+4*n}")
    a("s_endpgm")

_lab = [0]
def newlab(p):
    _lab[0] += 1
    return f"{p}_{_lab[0]}"

sWS, sDBG = 4, 8
sWave, sTok, sSpin = 12, 13, 14
sT, sT2, sT3 = 15, 16, 17

def check_token(a, vtok, vzero, sleep=2):
    done = newlab("TK"); loop = newlab("TL")
    if ENV("NOS", 0) or os.environ.get("ONLY", ""):
        a(f"s_mov_b32 s{sTok}, 0x12345"); return
    a(f"v_readfirstlane_b32 s{sTok}, v{vtok}")
    a(f"s_cmp_lg_u32 s{sTok}, 0")
    a(f"s_cbranch_scc1 {done}")
    a(f"s_mov_b32 s{sSpin}, 0")
    a.label(loop)
    a(f"s_sleep {sleep}")
    a(f"buffer_load_dword v{vtok}, v{vzero}, s[{sDBG}:{sDBG+3}], 0 offen sc1"); a.vm -= 1
    a("s_waitcnt vmcnt(0)")
    a(f"v_readfirstlane_b32 s{sTok}, v{vtok}")
    a(f"s_cmp_lg_u32 s{sTok}, 0")
    a(f"s_cbranch_scc1 {done}")
    a(f"s_add_u32 s{sSpin}, s{sSpin}, 1")
    a(f"s_cmp_lt_u32 s{sSpin}, {SPIN_MAX}")
    a(f"s_cbranch_scc1 {loop}")
    a.label(done)

def check_flags(a, vfl, vaddr, reload, sleep=2):
    if (ENV("NOS", 0) or os.environ.get("ONLY", "")) and sleep != 3: return
    done = newlab("FD"); loop = newlab("FL")
    def cmpall():
        a(f"v_cmp_ne_u32 vcc, s{sTok}, v{vfl[0]}")
        for r_ in vfl[1:]:
            a(f"v_cmp_ne_u32 s[18:19], s{sTok}, v{r_}")
            a("s_or_b64 vcc, vcc, s[18:19]")
        a("s_cmp_eq_u64 vcc, 0")
    cmpall()
    a(f"s_cbranch_scc1 {done}")
    a(f"s_mov_b32 s{sSpin}, 0")
    a.label(loop)
    a(f"s_sleep {sleep}")
    n0 = a.vm
    a("s_mov_b64 exec, vcc")
    reload()
    a("s_mov_b64 exec, -1")
    a.vm = n0
    a("s_waitcnt vmcnt(0)")
    cmpall()
    a(f"s_cbranch_scc1 {done}")
    a(f"s_add_u32 s{sSpin}, s{sSpin}, 1")
    a(f"s_cmp_lt_u32 s{sSpin}, {SPIN_MAX}")
    a(f"s_cbranch_scc1 {loop}")
    a.label(done)

CV_S = 4160
CH_REG = 64 * 272
CV_U = [3 * CH_REG + 512 + 4608 * i for i in range(3)]
LN_OFF = 3 * CH_REG + 3 * 4608
LN_S = 1344
PACE_OFF = LDS_BYTES - 16
KG_S = 272
COARSE = list(range(8)) + [256, 258, 260, 262, 512, 516, 768, 772, 1024, 1280, 1536, 1792, 2048]
assert LN_OFF + 8 * LN_S <= LDS_BYTES and 4 * CV_S <= CH_REG

def s_role(a):
    sX_, sA, sXc = 20, 24, 25
    sD = [26, 27, 28]
    sCnt, sPar, sSlot, sRound, sHeavy = 29, 30, 31, 56, 57
    SP = [32, 36, 40, 44, 48, 52]
    R = Alloc(1)
    lane = R(); t0 = R(); t1 = R(); t2 = R(); t3 = R(); vzero = R(); vtok = R(); v16 = R()
    vdk = [R(), R()]
    base = R.mark()
    stamp_begin(a)
    a(f"s_load_dwordx2 s[{sWS}:{sWS+1}], s[0:1], 120")
    a(f"s_load_dwordx2 s[{sDBG}:{sDBG+1}], s[0:1], 112")
    a(f"v_lshrrev_b32 v{t0}, 6, v0")
    a(f"v_and_b32 v{lane}, 63, v0")
    a(f"v_readfirstlane_b32 s{sWave}, v{t0}")
    srd(a, sWS, WS_SIZE); srd(a, sDBG, 256)
    a(f"s_and_b32 s{sXc}, s2, 7")
    a(f"s_lshr_b32 s{sA}, s2, 3")
    a(f"s_lshl_b32 s{sD[0]}, s{sXc}, 6")
    a(f"s_lshl_b32 s{sT}, s{sA}, 1")
    a(f"s_add_u32 s{sD[0]}, s{sD[0]}, s{sT}")
    a(f"s_add_u32 s{sD[1]}, s{sD[0]}, 1")
    a(f"s_lshl_b32 s{sD[2]}, s{sXc}, 4")
    a(f"s_add_u32 s{sD[2]}, s{sD[2]}, s{sA}")
    a(f"s_add_u32 s{sD[2]}, s{sD[2]}, 512")
    a(f"s_cmp_lt_u32 s{sA}, 16")
    a(f"s_cselect_b32 s{sHeavy}, 1, 0")
    a(f"v_mov_b32 v{vzero}, 0")
    a(f"v_lshlrev_b32 v{v16}, 4, v{lane}")
    ONLY = os.environ.get("ONLY", "")
    if ENV("SPRIO0", 0): a(f"s_setprio {ENV('SPRIO0', 0)}")
    a(f"s_lshr_b32 s{sSlot}, s{sWave}, 1")
    a(f"s_cmp_eq_u32 s{sWave}, 3")
    a("s_cbranch_scc1 " + ("S_ln" if (not ONLY or "l" in ONLY) else "K_exit"))
    a(f"s_add_u32 s{sT}, s{sHeavy}, 2")
    a(f"s_cmp_ge_u32 s{sWave}, s{sT}")
    a("s_cbranch_scc1 " + ("S_w2t" if (not ONLY or "w" in ONLY) else "K_exit"))
    if ONLY and "k" not in ONLY: a("s_branch K_exit")

    P = [[R() for _ in range(6)] for _ in range(3)]
    vdt = R(); vwr = R(); vrd = R(); voff = R()
    accK = R(16, 4)
    FA = [R(4, 4) for _ in range(8)]; FB = [R(4, 4) for _ in range(8)]
    pr = lambda: R(2, 2)
    l1, l8, l256, W, E0, E1, E2, T, T2, G2, G4, G6, V, a2b = [pr() for _ in range(14)]
    Qr = [R(4, 4) for _ in range(2)]; Qi = [R(4, 4) for _ in range(2)]
    Cr = R(16, 4); Ci = R(16, 4)
    sDd, sBase = 58, 59
    if STAMPS: sDd, sBase = 100, 101
    for i, sr in enumerate(SP):
        a(f"s_load_dwordx2 s[{sr}:{sr+1}], s[0:1], {8 + 8*i}")
    a(f"s_load_dwordx2 s[{sX_}:{sX_+1}], s[0:1], 56")
    a(f"s_load_dwordx2 s[18:19], s[0:1], 64")
    a(f"s_cmp_eq_u32 s{sWave}, 1")
    a(f"s_cselect_b32 s{sDd}, s{sD[1]}, s{sD[0]}")
    a(f"s_cmp_eq_u32 s{sWave}, 2")
    a(f"s_cselect_b32 s{sDd}, s{sD[2]}, s{sDd}")
    for sr in SP: srd(a, sr, D * N * 2)
    srd(a, sX_, D * 2)
    a(f"s_mul_i32 s{sT}, s{sDd}, {N*2}")
    a(f"v_lshlrev_b32 v{voff}, 1, v{lane}")
    a(f"s_lshl_b32 s{sT2}, s{sDd}, 1")
    a("s_waitcnt lgkmcnt(0)")
    a(f"buffer_load_ushort v{vdt}, v{vzero}, s[{sX_}:{sX_+3}], s{sT2} offen")
    a(f"s_mov_b32 s{sX_}, s18"); a(f"s_mov_b32 s{sX_+1}, s19")
    a(f"buffer_load_ushort v{vdk[0]}, v{vzero}, s[{sX_}:{sX_+3}], s{sT2} offen")
    for p in range(3):
        for i, sr in enumerate(SP):
            a(f"buffer_load_ushort v{P[p][i]}, v{voff}, s[{sr}:{sr+3}], s{sT} offen offset:{128*p}")
    a(f"s_mul_i32 s{sBase}, s{sWave}, {CH_REG}")
    a(f"v_mul_u32_u24 v{vwr}, {KG_S}, v{lane}")
    a(f"v_add_u32 v{vwr}, s{sBase}, v{vwr}")
    a(f"v_bfe_u32 v{t0}, v{lane}, 2, 2")
    a(f"v_lshrrev_b32 v{t1}, 5, v{lane}")
    a(f"v_lshl_add_u32 v{t0}, v{t0}, 2, v{t1}")
    a(f"v_mul_u32_u24 v{t0}, {KG_S}, v{t0}")
    a(f"v_bfe_u32 v{t1}, v{lane}, 4, 1")
    a(f"v_lshl_add_u32 v{t0}, v{t1}, 5, v{t0}")
    a(f"v_and_b32 v{t1}, 3, v{lane}")
    a(f"v_lshl_add_u32 v{t0}, v{t1}, 3, v{t0}")
    a(f"v_add_u32 v{vrd}, s{sBase}, v{t0}")
    for i in (13, 15): a(f"v_mov_b32 v{Cr+i}, 0"); a(f"v_mov_b32 v{Ci+i}, 0")
    a("s_waitcnt vmcnt(0)")
    stamp(a, 1)
    a(f"v_lshlrev_b32 v{vdt}, 16, v{vdt}")
    a(f"v_mul_f32 v{t0}, {f32(LOG2E)}, v{vdt}")
    a(f"s_mov_b32 s{sT}, {f32(LOG2E)}")
    a(f"v_fma_f32 v{t1}, v{vdt}, s{sT}, -v{t0}")
    lo = LOG2E - struct.unpack("<f", struct.pack("<f", LOG2E))[0]
    a(f"v_fmac_f32 v{t1}, {f32(lo)}, v{vdt}")
    a(f"v_exp_f32 v{t0}, v{t0}")
    a(f"v_mul_f32 v{t1}, {f32(LN2)}, v{t1}")
    a(f"v_fma_f32 v{t0}, v{t0}, v{t1}, v{t0}")
    bf16r(a, vdt, t0)
    a(f"s_mov_b32 s{sCnt}, 0")
    def cmul(dst, e, m):
        if ENV("KPK", 0):
            a(f"v_pk_mul_f32 {v(T,2)}, {v(e,2)}, {v(m,2)} op_sel:[0,0] op_sel_hi:[0,1]")
            a(f"v_pk_fma_f32 {v(dst,2)}, {v(e,2)}, {v(m,2)}, {v(T,2)} op_sel:[1,1,0] op_sel_hi:[1,0,1] neg_lo:[0,1,0]")
        else:
            assert dst != e and dst != m
            a(f"v_mul_f32 v{dst}, v{e}, v{m}")
            a(f"v_mul_f32 v{dst+1}, v{e}, v{m+1}")
            a(f"v_fma_f32 v{dst}, -v{e+1}, v{m+1}, v{dst}")
            a(f"v_fmac_f32 v{dst+1}, v{e+1}, v{m}")
    def cexp(dst, scale):
        if scale == 1:
            a(f"v_exp_f32 v{t0}, v{a2b}")
            a(f"v_fract_f32 v{t1}, v{a2b+1}")
        else:
            a(f"v_mul_f32 v{t0}, {f32(float(scale))}, v{a2b}")
            a(f"v_mul_f32 v{t1}, {f32(float(scale))}, v{a2b+1}")
            a(f"v_exp_f32 v{t0}, v{t0}")
            a(f"v_fract_f32 v{t1}, v{t1}")
        a(f"v_cos_f32 v{dst}, v{t1}")
        a(f"v_sin_f32 v{dst+1}, v{t1}")
        a(f"v_mul_f32 v{dst}, v{dst}, v{t0}")
        a(f"v_mul_f32 v{dst+1}, v{dst+1}, v{t0}")
    def mfmas():
        for ks in range(8):
            a(f"v_mfma_f32_32x32x16_bf16 {v(accK,16)}, {v(FA[ks],4)}, {v(FB[ks],4)}, {v(accK,16)}")
    def cpair(dw, x, y):
        a(f"v_cvt_pk_bf16_f32 v{Cr+dw}, v{x}, v{y}")
        a(f"v_cvt_pk_bf16_f32 v{Ci+dw}, -v{x+1}, -v{y+1}")
    if ENV("XKG", 0): a("s_branch KG_after")
    a.label("KG_loop")
    a.flush_hist()
    _a = a
    if ENV("XKW", 0) or ENV("XKM", 0) or ENV("XKR", 0):
        class Filt:
            def __call__(self, t):
                if ENV("XKW", 0) and t.startswith("ds_write"): return
                if ENV("XKR", 0) and t.startswith("ds_read"): return
                if ENV("XKM", 0) and t.startswith("v_mfma"): return
                _a(t)
            def __getattr__(self, n): return getattr(_a, n)
        a = Filt()
    p0 = P[0]
    for i in range(4): a(f"v_lshlrev_b32 v{p0[i]}, 16, v{p0[i]}")
    a(f"v_lshlrev_b32 v{V}, 16, v{p0[4]}")
    a(f"v_lshlrev_b32 v{V+1}, 16, v{p0[5]}")
    a(f"v_mul_f32 v{p0[0]}, v{vdt}, v{p0[0]}")
    a(f"v_mul_f32 v{p0[1]}, v{vdt}, v{p0[1]}")
    a(f"v_mul_f32 v{T2}, v{vdt}, v{p0[2]}")
    a(f"v_mul_f32 v{T2+1}, v{vdt}, v{p0[3]}")
    a(f"v_mul_f32 v{a2b}, {f32(LOG2E)}, v{p0[0]}")
    a(f"v_mul_f32 v{a2b+1}, {f32(1.0/(2*math.pi))}, v{p0[1]}")
    cmul(W, V, T2)
    cexp(l8, 8); cexp(l1, 1); cexp(l256, 256)
    if STAMPS: a("s_memtime s[18:19]")
    a("s_waitcnt lgkmcnt(0)")
    if STAMPS:
        a(f"s_cmp_eq_u32 s{sCnt}, 1")
        a("s_cselect_b32 s82, s18, s82")
        a(f"s_cmp_eq_u32 s{sCnt}, 2")
        a("s_cselect_b32 s84, s18, s84")
    a(f"v_cvt_pk_bf16_f32 v{Qr[0]}, 1.0, v{l8}")
    a(f"v_cvt_pk_bf16_f32 v{Qi[0]}, 0, v{l8+1}")
    cur = l8
    for f in range(2, 32, 2):
        if f // 2 - 1 < 8:
            ks = f // 2 - 1
            a(f"v_mfma_f32_32x32x16_bf16 {v(accK,16)}, {v(FA[ks],4)}, {v(FB[ks],4)}, {v(accK,16)}")
        cmul(E0, cur, l8); cmul(E1, E0, l8); cur = E1
        g, dw = f // 8, (f % 8) // 2
        a(f"v_cvt_pk_bf16_f32 v{Qr[g%2]+dw}, v{E0}, v{E1}")
        a(f"v_cvt_pk_bf16_f32 v{Qi[g%2]+dw}, v{E0+1}, v{E1+1}")
        if dw == 3:
            a(f"ds_write_b128 v{vwr}, {v(Qr[g%2],4)} offset:{16*g}")
            a(f"ds_write_b128 v{vwr}, {v(Qi[g%2],4)} offset:{64+16*g}")
    cmul(E0, W, l1); cpair(0, W, E0)
    cmul(G2, E0, l1); cmul(E0, G2, l1); cpair(1, G2, E0)
    cmul(G4, E0, l1); cmul(E0, G4, l1); cpair(4, G4, E0)
    cmul(G6, E0, l1); cmul(E0, G6, l1); cpair(5, G6, E0)
    cmul(E0, G2, l256); cmul(E1, G6, l256); cpair(3, E0, E1)
    cmul(E0, G4, l256); cmul(E1, E0, l256); cpair(7, E0, E1)
    cmul(E0, E1, l256); cpair(11, E0, E0)
    cur = W
    dwv = {1: 2, 2: 6, 3: 10, 4: 8, 5: 9, 6: 12, 7: 14}
    for j in range(1, 8):
        nx = [E0, E2][j % 2]
        cmul(nx, cur, l256); cmul(E1, nx, l8); cpair(dwv[j], nx, E1); cur = nx
        if j in (1, 2):
            g = j - 1
            a(f"ds_write_b128 v{vwr}, {v(Cr+4*g,4)} offset:{128+16*g}")
            a(f"ds_write_b128 v{vwr}, {v(Ci+4*g,4)} offset:{192+16*g}")
        if j in (5, 7):
            g = {5: 2, 7: 3}[j]
            a(f"ds_write_b128 v{vwr}, {v(Cr+4*g,4)} offset:{128+16*g}")
            a(f"ds_write_b128 v{vwr}, {v(Ci+4*g,4)} offset:{192+16*g}")
    for ks in range(8):
        o = (16 * (ks >> 1) + 2 * (ks & 1)) * KG_S
        a(f"ds_read_b64_tr_b16 {v(FA[ks],2)}, v{vrd} offset:{o+128}")
        a(f"ds_read_b64_tr_b16 {v(FA[ks]+2,2)}, v{vrd} offset:{o+192}")
        a(f"ds_read_b64_tr_b16 {v(FB[ks],2)}, v{vrd} offset:{o}")
        a(f"ds_read_b64_tr_b16 {v(FB[ks]+2,2)}, v{vrd} offset:{o+64}")
    for i in range(6):
        a(f"v_mov_b32 v{P[0][i]}, v{P[1][i]}")
        a(f"v_mov_b32 v{P[1][i]}, v{P[2][i]}")
    a(f"s_cmp_eq_u32 s{sCnt}, 0")
    a(f"s_cselect_b32 s{sT}, 0, -1")
    for i in range(16): a(f"v_and_b32 v{accK+i}, s{sT}, v{accK+i}")
    if STAMPS and 0:
        a("s_memtime s[18:19]")
        a("s_waitcnt lgkmcnt(0)")
        a(f"s_cmp_eq_u32 s{sCnt}, 0")
        a("s_cselect_b32 s82, s18, s82")
        a(f"s_cmp_eq_u32 s{sCnt}, 1")
        a("s_cselect_b32 s84, s18, s84")
    a(f"s_add_u32 s{sCnt}, s{sCnt}, 1")
    a(f"s_cmp_lt_u32 s{sCnt}, 3")
    a("s_cbranch_scc1 KG_loop")
    a = _a
    a.label("KG_after")
    stamp(a, 2)
    a(f"buffer_load_dword v{vtok}, v{vzero}, s[{sDBG}:{sDBG+3}], 0 offen sc1")
    vJa = P[0][0]; vJb = P[0][1]; u0 = P[0][2]; u1 = P[0][3]
    a(f"v_and_b32 v{t0}, 31, v{lane}")
    a(f"v_lshlrev_b32 v{t0}, 4, v{t0}")
    a(f"v_lshrrev_b32 v{t1}, 5, v{lane}")
    a(f"v_lshl_add_u32 v{t2}, v{t1}, 9, v{t0}")
    a(f"s_add_u32 s{sT}, s{sBase}, 1008")
    a(f"v_sub_u32 v{vJa}, s{sT}, v{t2}")
    a(f"v_lshlrev_b32 v{t2}, 10, v{t1}")
    a(f"v_sub_u32 v{t2}, v{t2}, v{t0}")
    a(f"s_add_u32 s{sT}, s{sBase}, 496")
    a(f"v_add_u32 v{vJb}, s{sT}, v{t2}")
    Z = Qr[0]
    for i in range(4): a(f"v_mov_b32 v{Z+i}, 0")
    a(f"v_lshrrev_b32 v{u0}, 2, v{lane}")
    a(f"v_mul_u32_u24 v{u0}, {CV_S}, v{u0}")
    a(f"v_and_b32 v{u1}, 3, v{lane}")
    a(f"v_lshl_add_u32 v{u0}, v{u1}, 4, v{u0}")
    a(f"v_add_u32 v{u0}, s{sBase}, v{u0}")
    a("s_mov_b32 s18, 0xaaaaaaaa"); a("s_mov_b32 s19, 0xaaaaaaaa")
    a("s_waitcnt lgkmcnt(0)")
    mfmas()
    a("s_mov_b64 exec, 0xffff")
    a(f"ds_write_b128 v{u0}, {v(Z,4)} offset:4096")
    a("s_mov_b64 exec, -1")
    O = [Cr, Cr + 8, Ci, Ci + 8]
    ac = lambda i: accK + i
    def cv(d, lo_, hi_): a(f"v_cvt_pk_bf16_f32 v{d}, v{lo_}, v{hi_}")
    def seg3(o, e0, e1):
        a(f"v_cndmask_b32 v{t0}, v{e0}, v{e1}, s[18:19]")
        cv(o, e1, e1); cv(o + 1, e1, t0); cv(o + 2, e0, e0); cv(o + 3, e0, e0)
    def seg2(o, e0, e1, e2):
        cv(o, e2, e2); cv(o + 1, e1, e1); cv(o + 2, e1, e0); cv(o + 3, e0, e0)
    seg3(O[3], ac(12), ac(13))
    a(f"v_lshlrev_b32 v{vdk[0]}, 16, v{vdk[0]}")
    a("s_mov_b64 exec, 1")
    a(f"v_add_f32 v{ac(0)}, v{ac(0)}, v{vdk[0]}")
    a("s_mov_b32 exec_lo, -1")
    for m in range(4): cv(O[0] + m, ac(7 - 2*m), ac(6 - 2*m))
    seg3(O[1], ac(8), ac(9)); seg3(O[2], ac(10), ac(11))
    a("s_mov_b32 exec_hi, -1")
    a("s_mov_b32 exec_lo, 0")
    cv(O[0], ac(1), ac(3)); cv(O[0] + 1, ac(6), ac(6)); cv(O[0] + 2, ac(6), ac(2)); cv(O[0] + 3, ac(0), ac(0))
    seg2(O[1], ac(4), ac(7), ac(5)); seg2(O[2], ac(8), ac(10), ac(9))
    a("s_mov_b32 exec_lo, -1")
    adr = [(vJa, 3072), (vJb, 1536), (vJb, 1024), (vJa, 0)]
    for p in range(4):
        a(f"ds_write_b128 v{adr[p][0]}, {v(O[p],4)} offset:{adr[p][1]}")
    for p in range(4):
        a(f"ds_read_b64 {v(O[p]+4,2)}, v{adr[p][0]} offset:{adr[p][1]+16}")
    stamp(a, 11)
    a("s_waitcnt vmcnt(0)")
    check_token(a, vtok, vzero)
    a("s_waitcnt lgkmcnt(0)")
    for p in range(4):
        Kt = [FA[(3*p + c) % 8] for c in range(3)]
        kin = O[p]
        for k in range(4): a(f"v_alignbyte_b32 v{Kt[0]+k}, v{kin+k+1}, v{kin+k}, 2")
        for k in range(4): a(f"v_mov_b32 v{Kt[1]+k}, v{kin+k+1}")
        for k in range(4): a(f"v_alignbyte_b32 v{Kt[2]+k}, v{kin+k+2}, v{kin+k+1}, 2")
        for c in range(3): a(f"ds_write_b128 v{adr[p][0]}, {v(Kt[c],4)} offset:{adr[p][1] + (c+1)*CV_S}")
    a("s_branch S_join")
    hi = R.hi

    a.label("S_w2t"); a.flush_hist()
    toks = {}
    a("s_waitcnt lgkmcnt(0)")
    a(f"v_mov_b32 v{vtok}, 0")
    check_token(a, vtok, vzero, sleep=32)
    a("s_branch S_join")

    a.label("S_ln"); a.flush_hist()
    R.reset(base)
    voff = R(); vlw = R(); vtr = R()
    Xr = [R(4, 4) for _ in range(10)]
    U = [R(2, 2) for _ in range(40)]
    sm = R(2, 2); mb = R(2, 2); rs = R(2, 2); T = [R(2, 2) for _ in range(4)]; gr = R(2, 2)
    ones = R()
    O = [R(4, 4) for _ in range(4)]
    a(f"s_load_dwordx2 s[{sX_}:{sX_+1}], s[0:1], 0")
    a("s_memrealtime s[18:19]")
    srd(a, sX_, L * D * 2)
    a(f"v_lshrrev_b32 v{t0}, 3, v{lane}")
    a(f"v_and_b32 v{t1}, 7, v{lane}")
    a(f"v_lshlrev_b32 v{t1}, 4, v{t1}")
    a(f"v_mul_u32_u24 v{voff}, 1280, v{t0}")
    a(f"v_add_u32 v{voff}, v{voff}, v{t1}")
    a(f"v_mul_u32_u24 v{vlw}, {LN_S}, v{t0}")
    a(f"v_add_u32 v{vlw}, v{vlw}, v{t1}")
    a(f"v_add_u32 v{vlw}, {LN_OFF}, v{vlw}")
    a(f"s_lshl_b32 s{sT3}, s{sXc}, 5")
    a(f"s_add_u32 s{sT3}, s{sT3}, s{sA}")
    a(f"s_mul_i32 s{sT}, s{sT3}, {8*1280}")
    a("s_waitcnt lgkmcnt(0)")
    a(f"s_cmp_ge_u32 s2, 8")
    a("s_cbranch_scc1 S_ln_nt")
    a("s_or_b32 s18, s18, 1")
    a(f"v_mov_b32 v{gr}, s18")
    a(f"v_mov_b32 v{gr+1}, 0")
    a("s_mov_b64 exec, 1")
    a(f"buffer_atomic_cmpswap {v(gr,2)}, v{vzero}, s[{sDBG}:{sDBG+3}], 0 offen"); a.vm -= 1
    a("s_mov_b64 exec, -1")
    a.label("S_ln_nt")
    for i in range(10):
        a(f"buffer_load_dwordx4 {v(Xr[i],4)}, v{voff}, s[{sX_}:{sX_+3}], s{sT} offen offset:{128*i}")
    a(f"v_mov_b32 v{ones}, 0x3f803f80")
    a(f"v_mov_b32 v{sm}, 0")
    a("s_waitcnt vmcnt(0)")
    stamp(a, 1)
    a(f"buffer_load_dword v{vtok}, v{vzero}, s[{sDBG}:{sDBG+3}], 0 offen sc1")
    for i in range(40):
        a(f"v_dot2_f32_bf16 v{sm}, v{Xr[i//4] + i%4}, v{ones}, v{sm}")
    def red8(r_):
        a(f"v_add_f32_dpp v{r_}, v{r_}, v{r_} quad_perm:[1,0,3,2] row_mask:0xf bank_mask:0xf")
        a(f"v_add_f32_dpp v{r_}, v{r_}, v{r_} quad_perm:[2,3,0,1] row_mask:0xf bank_mask:0xf")
        a(f"v_add_f32_dpp v{r_}, v{r_}, v{r_} row_half_mirror row_mask:0xf bank_mask:0xf")
    for i in range(40):
        x = Xr[i//4] + i % 4
        a(f"v_lshlrev_b32 v{U[i]}, 16, v{x}")
        a(f"v_and_b32 v{U[i]+1}, 0xffff0000, v{x}")
    red8(sm)
    a(f"v_mul_f32 v{sm}, {f32(1.0/D)}, v{sm}")
    bf16r(a, mb, sm)
    a(f"v_mov_b32 v{rs}, 0"); a(f"v_mov_b32 v{rs+1}, 0")
    for i in range(40):
        if ENV("LPK", 1):
            a(f"v_pk_add_f32 {v(U[i],2)}, {v(U[i],2)}, {v(mb,2)} op_sel_hi:[1,0] neg_lo:[0,1] neg_hi:[0,1]")
            a(f"v_pk_fma_f32 {v(rs,2)}, {v(U[i],2)}, {v(U[i],2)}, {v(rs,2)}")
        else:
            for h in range(2):
                a(f"v_sub_f32 v{U[i]+h}, v{U[i]+h}, v{mb}")
                a(f"v_fmac_f32 v{rs+h}, v{U[i]+h}, v{U[i]+h}")
    a(f"v_add_f32 v{rs}, v{rs}, v{rs+1}")
    red8(rs)
    a(f"v_sub_f32 v{t0}, v{sm}, v{mb}")
    a(f"v_mul_f32 v{t0}, v{t0}, v{t0}")
    a(f"v_mul_f32 v{rs}, {f32(1.0/D)}, v{rs}")
    a(f"v_sub_f32 v{rs}, v{rs}, v{t0}")
    a(f"v_max_f32 v{rs}, 0, v{rs}")
    bf16r(a, rs, rs)
    a(f"v_add_f32 v{rs}, {f32(1e-5)}, v{rs}")
    bf16r(a, rs, rs)
    a(f"v_sqrt_f32 v{rs}, v{rs}")
    a(f"v_cvt_pk_bf16_f32 v{gr}, v{mb}, v{rs}")
    a(f"v_and_b32 v{rs}, 0xffff0000, v{gr}")
    a(f"v_rcp_f32 v{rs}, v{rs}")
    for i in range(40):
        x = Xr[i//4] + i % 4
        if ENV("LPK", 1): a(f"v_pk_mul_f32 {v(U[i],2)}, {v(U[i],2)}, {v(rs,2)} op_sel_hi:[1,0]")
        else:
            for h in range(2): a(f"v_mul_f32 v{U[i]+h}, v{U[i]+h}, v{rs}")
        a(f"v_cvt_pk_bf16_f32 v{x}, v{U[i]}, v{U[i]+1}")
        if i % 4 == 3:
            a(f"ds_write_b128 v{vlw}, {v(Xr[i//4],4)} offset:{128*(i//4)}")
    a(f"v_bfe_u32 v{t1}, v{lane}, 2, 2")
    a(f"v_mul_u32_u24 v{t1}, {LN_S}, v{t1}")
    a(f"v_lshrrev_b32 v{t0}, 4, v{lane}")
    a(f"v_lshl_add_u32 v{t1}, v{t0}, 5, v{t1}")
    a(f"v_and_b32 v{t2}, 3, v{lane}")
    a(f"v_lshl_add_u32 v{t1}, v{t2}, 3, v{t1}")
    a(f"v_add_u32 v{vtr}, {LN_OFF}, v{t1}")
    a(f"s_mul_i32 s{sT}, s{sT3}, 10240")
    def rd(i):
        o = O[i % 4]
        for e in range(2):
            a(f"ds_read_b64_tr_b16 {v(o+2*e,2)}, v{vtr} offset:{128*i + 4*e*LN_S}")
        toks[i] = a.ltok()
    for i in range(3): rd(i)
    for i in range(10):
        if i + 3 < 10: rd(i + 3)
        a.wait(lg=toks[i])
        a(f"buffer_store_dwordx4 {v(O[i%4],4)}, v{v16}, s[{sWS}:{sWS+3}], s{sT} offen sc1")
        a(f"s_add_u32 s{sT}, s{sT}, 1024")
    a("s_waitcnt vmcnt(10)")
    check_token(a, vtok, vzero)
    a(f"v_mov_b32 v{gr+1}, s{sTok}")
    a(f"s_lshl_b32 s{sT}, s{sT3}, 7")
    a(f"s_add_u32 s{sT2}, s{sT}, {WS_STAT}")
    a("s_mov_b32 exec_lo, 0x01010101"); a("s_mov_b32 exec_hi, 0x01010101")
    a(f"buffer_store_dwordx2 {v(gr,2)}, v{lane}, s[{sWS}:{sWS+3}], s{sT2} offen sc1")
    a(f"s_add_u32 s{sT}, s{sT}, {WS_FLN}")
    a("s_waitcnt vmcnt(0)")
    a("s_mov_b64 exec, 1")
    a(f"buffer_store_dword v{gr+1}, v{vzero}, s[{sWS}:{sWS+3}], s{sT} offen sc1")
    a("s_mov_b64 exec, -1")
    stamp(a, 2)
    if ONLY: a("s_branch S_end")
    a(f"v_mul_u32_u24 v{t0}, 10240, v{lane}")
    a(f"v_lshlrev_b32 v{t1}, 7, v{lane}")
    a(f"s_cmp_eq_u32 s{sHeavy}, 0")
    a(f"s_cselect_b32 s{sCnt}, s{sD[0]}, s{sD[2]}")
    if ENV("UPF", 0):
        a(f"s_lshl_b32 s{sT3}, s{sA}, 10")
        a(f"s_add_u32 s{sT3}, s{sT3}, {WS_FLN}")
        a(f"v_mov_b32 v{O[1]}, s{sTok}")
        ldu = lambda: a(f"buffer_load_dword v{O[1]}, v{t1}, s[{sWS}:{sWS+3}], s{sT3} offen sc1")
        a("s_mov_b64 exec, 0xff"); a(f"v_mov_b32 v{O[1]}, 0"); a("s_mov_b64 exec, -1")
        a(f"v_lshrrev_b32 v{t2}, 3, v{lane}")
        a(f"v_mul_u32_u24 v{t2}, 10240, v{t2}")
        a(f"v_and_b32 v{t3}, 7, v{lane}")
        a(f"v_lshl_add_u32 v{t2}, v{t3}, 7, v{t2}")
        a("s_waitcnt vmcnt(0)")
        check_flags(a, [O[1]], t1, ldu, sleep=ENV("USL1", 12))
        a(f"s_mul_i32 s{sT}, s{sA}, {8*10240}")
        a(f"s_lshl_b32 s{sT2}, s{sXc}, 10")
        a(f"s_add_u32 s{sT2}, s{sT2}, s{sT}")
        for q_ in range(4):
            m_ = 0xffff << (16 * q_)
            a(f"s_mov_b32 exec_lo, {hex(m_ & 0xffffffff)}"); a(f"s_mov_b32 exec_hi, {hex(m_ >> 32)}")
            a(f"buffer_load_dword v{O[1]+1}, v{t2}, s[{sWS}:{sWS+3}], s{sT2} offen sc1")
            if q_ % 2: a("s_waitcnt vmcnt(0)")
        a(f"s_lshl_b32 s{sT2}, s{sXc}, 8")
        a(f"s_add_u32 s{sT2}, s{sT2}, s{sT}")
        a(f"s_add_u32 s{sT2}, s{sT2}, 8192")
        a("s_mov_b32 exec_lo, 0x03030303"); a("s_mov_b32 exec_hi, 0x03030303")
        a(f"buffer_load_dword v{O[1]+1}, v{t2}, s[{sWS}:{sWS+3}], s{sT2} offen sc1")
        a("s_mov_b64 exec, -1")
        stamp(a, 11)
    a(f"s_lshl_b32 s{sT3}, s2, 7")
    a(f"s_add_u32 s{sT3}, s{sT3}, {WS_FPACE}")
    a(f"s_mov_b32 s{sSpin}, 0")
    a("s_mov_b64 exec, 1")
    a.label("S_pace")
    a(f"s_sleep {ENV('PSLEEP', 8)}")
    a(f"buffer_load_dword v{t2}, v{vzero}, s[{sWS}:{sWS+3}], s{sT3} offen sc1")
    a("s_waitcnt vmcnt(0)")
    a(f"v_readfirstlane_b32 s{sT}, v{t2}")
    a(f"s_cmp_eq_u32 s{sT}, s{sTok}")
    a("s_cbranch_scc1 S_paced")
    a(f"s_add_u32 s{sSpin}, s{sSpin}, 1")
    a(f"s_cmp_lt_u32 s{sSpin}, {ENV('PMAX', 24)}")
    a("s_cbranch_scc1 S_pace")
    a.label("S_paced")
    a("s_mov_b64 exec, -1")
    stamp(a, 10)
    for g in range(4):
        a(f"s_mov_b32 s{sT3}, {WS_FLN + 8192*g}")
        a(f"buffer_load_dword v{O[0]+g}, v{t1}, s[{sWS}:{sWS+3}], s{sT3} offen sc1")
    a("s_waitcnt vmcnt(0)")
    for g in range(4):
        a(f"s_mov_b32 s{sT3}, {WS_FLN + 8192*g}")
        ldf = lambda: a(f"buffer_load_dword v{O[0]+g}, v{t1}, s[{sWS}:{sWS+3}], s{sT3} offen sc1")
        check_flags(a, [O[0] + g], t1, ldf, sleep=ENV("LNSLEEP", 6))
    stamp(a, 9)
    Uq_ = [U[0] + 4 * i for i in range(12)]
    assert U[0] % 4 == 0
    a(f"v_lshrrev_b32 v{t1}, 1, v{lane}")
    a(f"v_and_b32 v{t3}, 1, v{lane}")
    a(f"v_mul_u32_u24 v{t2}, 10240, v{t1}")
    a(f"v_lshl_add_u32 v{t2}, v{t3}, 4, v{t2}")
    a(f"v_mul_u32_u24 v{t3}, 4608, v{t3}")
    a(f"v_lshl_add_u32 v{t3}, v{t1}, 4, v{t3}")
    a(f"s_lshl_b32 s{sT}, s{sD[0]}, 4")
    for g in range(8):
        if g: a(f"s_add_u32 s{sT}, s{sT}, {32*10240}")
        a(f"buffer_load_dwordx4 {v(Uq_[g],4)}, v{t2}, s[{sWS}:{sWS+3}], s{sT} offen sc1")
    a(f"s_cmp_eq_u32 s{sHeavy}, 0")
    a("s_cbranch_scc1 S_g2")
    a(f"s_lshl_b32 s{sT}, s{sD[2]}, 4")
    for g in range(4):
        if g: a(f"s_add_u32 s{sT}, s{sT}, {64*10240}")
        a(f"buffer_load_dwordx4 {v(Uq_[8+g],4)}, v{t0}, s[{sWS}:{sWS+3}], s{sT} offen sc1")
    a("s_waitcnt vmcnt(0)")
    for g in range(4):
        a(f"ds_write_b128 v{v16}, {v(Uq_[8+g],4)} offset:{CV_U[2] + 1024*g}")
    a.label("S_g2")
    for g in range(8):
        a(f"s_waitcnt vmcnt({7-g})")
        a(f"ds_write_b128 v{t3}, {v(Uq_[g],4)} offset:{CV_U[0] + 512*g}")
    stamp(a, 4)
    hi = max(hi, R.hi)

    a.label("S_join"); a.flush_hist()
    if ONLY: a("s_branch S_end")
    if ENV("SPRIO", 0): a(f"s_setprio {ENV('SPRIO', 0)}")
    stamp(a, 3)
    R.reset(base)
    acc = [R(4, 4) for _ in range(8)]
    FA = [[R(4, 4) for _ in range(8)] for _ in range(2)]
    FB = [[R(4, 4) for _ in range(8)] for _ in range(2)]
    vA = R(); vBq = R(); vA0 = R(); vB0 = R(); vrw = R(); vrr = R(); vfl = R(); vfa = R(); vtk = R()
    a(f"s_and_b32 s{sPar}, s{sWave}, 1")
    Z = FB[0][3]
    for i in range(4): a(f"v_mov_b32 v{Z+i}, 0")
    a(f"s_min_u32 s{sT}, s{sWave}, 2")
    a(f"s_mul_i32 s{sT}, s{sT}, 4608")
    a(f"v_add_u32 v{t2}, s{sT}, v{v16}")
    a("s_mov_b32 exec_hi, 0")
    a(f"ds_write_b128 v{t2}, {v(Z,4)} offset:{CV_U[0]-512}")
    a("s_mov_b32 exec_hi, -1")
    a(f"v_and_b32 v{t0}, 15, v{lane}")
    a(f"v_sub_u32 v{t2}, 15, v{t0}")
    a(f"v_and_b32 v{t3}, 3, v{t2}")
    a(f"v_sub_u32 v{t2}, v{t2}, v{t3}")
    a(f"v_mul_u32_u24 v{t3}, {CV_S}, v{t3}")
    a(f"v_lshl_add_u32 v{t3}, v{t2}, 1, v{t3}")
    a(f"v_lshrrev_b32 v{t2}, 4, v{lane}")
    a(f"v_lshl_add_u32 v{vA0}, v{t2}, 4, v{t3}")
    a(f"v_lshlrev_b32 v{t3}, 4, v{t2}")
    a(f"v_lshl_add_u32 v{vB0}, v{t0}, 5, v{t3}")
    a(f"v_lshrrev_b32 v{t3}, 1, v{t2}")
    a(f"v_lshlrev_b32 v{t3}, 3, v{t3}")
    a(f"v_xor_b32 v{t3}, v{t3}, v{t0}")
    a(f"v_lshlrev_b32 v{t3}, 4, v{t3}")
    a(f"v_lshl_add_u32 v{t3}, v{t2}, 8, v{t3}")
    a(f"s_lshl_b32 s{sT}, s{sWave}, 13")
    a(f"v_add_u32 v{vrw}, s{sT}, v{t3}")
    a(f"v_bfe_u32 v{t0}, v{lane}, 1, 4")
    a(f"v_and_b32 v{t2}, 1, v{lane}")
    a(f"v_lshlrev_b32 v{t3}, 3, v{t2}")
    a(f"v_xor_b32 v{t0}, v{t0}, v{t3}")
    a(f"v_lshlrev_b32 v{t0}, 4, v{t0}")
    a(f"v_lshl_add_u32 v{t0}, v{t2}, 9, v{t0}")
    a(f"v_lshrrev_b32 v{t2}, 5, v{lane}")
    a(f"v_lshl_add_u32 v{vrr}, v{t2}, 10, v{t0}")
    a(f"v_mov_b32 v{vtk}, s{sTok}")
    a(f"s_mul_i32 s{sT}, s{sSlot}, {CH_REG}")
    a(f"s_lshl_b32 s{sT2}, s{sPar}, 8")
    a(f"s_sub_u32 s{sT}, s{sT}, s{sT2}")
    a(f"s_add_u32 s{sT}, s{sT}, {32*14}")
    a(f"v_add_u32 v{vA}, s{sT}, v{vA0}")
    a(f"s_mul_i32 s{sT}, s{sSlot}, 4608")
    a(f"s_sub_u32 s{sT}, s{sT}, s{sT2}")
    a(f"s_add_u32 s{sT}, s{sT}, {CV_U[0] - 512 + 32*15}")
    a(f"v_add_u32 v{vBq}, s{sT}, v{vB0}")
    sDa, sDb, sJa, sJb = 20, 21, 22, 23
    a(f"s_lshl_b32 s{sT3}, s{sWave}, 7")
    a(f"s_sub_u32 s{sJb}, s{sT}, 192")
    a(f"s_sub_u32 s{sJb}, s{sJb}, {CV_U[2] - 512 + 32*15}")
    a(f"s_add_u32 s{sJb}, s{sJb}, s{sT3}")
    a(f"s_mul_i32 s{sJa}, s{sSlot}, {CH_REG}")
    a(f"s_sub_u32 s{sJa}, s{sJa}, s{sT2}")
    a(f"s_sub_u32 s{sJa}, s{sJa}, {192 + 2*CH_REG}")
    a(f"s_add_u32 s{sJa}, s{sJa}, s{sT3}")
    acc1 = [R(4, 4) for _ in range(8)]
    for c in range(8):
        for i in range(4):
            a(f"v_mov_b32 v{acc[c]+i}, 0"); a(f"v_mov_b32 v{acc1[c]+i}, 0")
    a(f"s_mov_b32 s{sCnt}, 0")
    a(f"s_add_u32 s{sRound}, s{sHeavy}, 2")
    a("s_waitcnt vmcnt(0) lgkmcnt(0)")
    a("s_barrier")
    stamp(a, 5)

    def rdlist(st, da="64", db="64"):
        rd_ = []
        for j in range(8):
            rd_.append(f"ds_read_b128 {v(FB[st][j],4)}, v{vBq} offset:{512*j}")
            rd_.append(f"ds_read_b64 {v(FA[st][j],2)}, v{vA} offset:{512*(7-j)}")
            rd_.append(f"ds_read_b64 {v(FA[st][j]+2,2)}, v{vA} offset:{512*(7-j)+8}")
        rd_.append(f"v_subrev_u32 v{vA}, {da}, v{vA}")
        rd_.append(f"v_subrev_u32 v{vBq}, {db}, v{vBq}")
        return rd_
    def group(st, nxt, da="64", db="64"):
        pairs = sorted([(c, j) for c in range(8) for j in range(c + 1)], key=lambda cj: (max(cj[1], cj[0] - cj[1]), cj[0]))
        rd_ = rdlist(nxt, da, db)
        for i, (c, j) in enumerate(pairs):
            a(f"v_mfma_f32_16x16x32_bf16 {v(acc[c],4)}, {v(FA[st][j],4)}, {v(FB[st][c-j],4)}, {v(acc[c],4)}")
            if i < len(rd_): a(rd_[i])
    for x in rdlist(0): a(x)
    a.label("CV_loop")
    a(f"s_cmp_eq_u32 s{sCnt}, 1")
    a(f"s_cselect_b32 s{sDa}, s{sJa}, 64")
    a(f"s_cselect_b32 s{sDb}, s{sJb}, 64")
    a("s_waitcnt lgkmcnt(0)")
    group(0, 1, f"s{sDa}", f"s{sDb}")
    a("s_waitcnt lgkmcnt(0)")
    group(1, 0)
    a(f"s_add_u32 s{sCnt}, s{sCnt}, 1")
    a(f"s_cmp_eq_u32 s{sCnt}, 1")
    a("s_cbranch_scc1 CV_loop")
    a(f"s_cmp_eq_u32 s{sCnt}, 3")
    a("s_cbranch_scc1 CV_done")
    for c in range(8):
        for i in range(4): a(f"v_swap_b32 v{acc[c]+i}, v{acc1[c]+i}")
    a(f"s_cmp_lg_u32 s{sHeavy}, 0")
    a("s_nop 0")
    a("s_cbranch_scc1 CV_loop")
    a.label("CV_done")
    a("s_nop 7")
    a("s_waitcnt lgkmcnt(0)")
    a("s_barrier")
    stamp(a, 6)
    for c in range(8):
        a(f"ds_write_b128 v{vrw}, {v(acc1[c],4)} offset:{1024*c}")
    a(f"s_cmp_eq_u32 s{sHeavy}, 0")
    a("s_cbranch_scc1 CV_w1")
    for c in range(8):
        a(f"ds_write_b128 v{vrw}, {v(acc[c],4)} offset:{32768 + 1024*c}")
    a.label("CV_w1")
    a(f"s_lshl_b32 s{sT}, s{sSlot}, 14")
    a(f"s_lshl_b32 s{sT2}, s{sPar}, 12")
    a(f"s_add_u32 s{sT}, s{sT}, s{sT2}")
    a(f"v_add_u32 v{t0}, s{sT}, v{vrr}")
    a(f"s_lshl_b32 s{sT}, s{sWave}, 11")
    a(f"v_add_u32 v{t1}, s{sT}, v{vrr}")
    a(f"s_add_u32 s{sT}, s{sD[0]}, s{sSlot}")
    a(f"s_lshl_b32 s{sT3}, s{sT}, 12")
    a(f"s_lshl_b32 s{sT2}, s{sPar}, 11")
    a(f"s_add_u32 s{sT3}, s{sT3}, s{sT2}")
    a(f"s_add_u32 s{sT3}, s{sT3}, {WS_ST}")
    a(f"s_lshl_b32 s{sT}, s{sT}, 7")
    a(f"s_lshl_b32 s{sT2}, s{sPar}, 3")
    a(f"s_add_u32 s{sT}, s{sT}, s{sT2}")
    a(f"s_add_u32 s{sJa}, s{sT}, {WS_FST}")
    a(f"v_lshlrev_b32 v{t2}, 2, v{lane}")
    a("s_waitcnt lgkmcnt(0)")
    a("s_barrier")
    stamp(a, 7)
    Rd = FA[1]; Re = FA[0]
    for b in range(2):
        for p in range(2):
            for e in range(2):
                a(f"ds_read_b128 {v(Rd[(b*2+p)*2+e],4)}, v{t0} offset:{8192*p + 2048*b + 256*e}")
    for p in range(4):
        for e in range(2):
            a(f"ds_read_b128 {v(Re[p*2+e],4)}, v{t1} offset:{32768 + 8192*p + 256*e}")
    def finish(Rr, bs, npart, o):
        for p in range(1, npart):
            for e in range(2):
                for z in range(4):
                    a(f"v_add_f32 v{Rr[bs+e]+z}, v{Rr[bs+e]+z}, v{Rr[bs+2*p+e]+z}")
        for m in range(4):
            y = Rr[bs + m // 2] + 2 * (m % 2)
            a(f"v_cvt_pk_bf16_f32 v{o+m}, v{y}, v{y+1}")
    for b in range(2):
        a(f"s_waitcnt lgkmcnt({12 - 4*b})")
        finish(Rd, 4 * b, 2, FB[1][b])
        a(f"buffer_store_dwordx4 {v(FB[1][b],4)}, v{v16}, s[{sWS}:{sWS+3}], s{sT3} offen offset:{1024*b} sc1")
    a(f"s_cmp_eq_u32 s{sHeavy}, 0")
    a("s_cbranch_scc1 CV_f1")
    a(f"s_lshl_b32 s{sT3}, s{sWave}, 10")
    a(f"s_lshl_b32 s{sT}, s{sD[2]}, 12")
    a(f"s_add_u32 s{sT2}, s{sT3}, s{sT}")
    a(f"s_add_u32 s{sT2}, s{sT2}, {WS_ST}")
    a("s_waitcnt lgkmcnt(0)")
    finish(Re, 0, 4, FB[1][2])
    a(f"buffer_store_dwordx4 {v(FB[1][2],4)}, v{v16}, s[{sWS}:{sWS+3}], s{sT2} offen sc1")
    a(f"s_lshl_b32 s{sT}, s{sD[2]}, 7")
    a(f"s_lshl_b32 s{sT2}, s{sWave}, 2")
    a(f"s_add_u32 s{sT}, s{sT}, s{sT2}")
    a(f"s_add_u32 s{sT}, s{sT}, {WS_FST}")
    a("s_waitcnt vmcnt(0)")
    a("s_mov_b64 exec, 1")
    a(f"buffer_store_dword v{vtk}, v{vzero}, s[{sWS}:{sWS+3}], s{sT} offen sc1")
    a("s_branch CV_f2")
    a.label("CV_f1")
    a("s_waitcnt vmcnt(0)")
    a.label("CV_f2")
    a("s_mov_b64 exec, 3")
    a(f"buffer_store_dword v{vtk}, v{t2}, s[{sWS}:{sWS+3}], s{sJa} offen sc1")
    a.label("S_end")
    stamp_end(a, sWave)
    return max(hi, R.hi)

W_SLOT = 12288
X_OFF = 3 * W_SLOT
X_WAVE = 11264
NXU = 5
def g_role(a):
    sX, sW1, sB1, sOUT, sW2 = 20, 24, 28, 32, 52
    sRB, sCB, sTB, sJD, sId = 36, 37, 38, 39, 3
    sP = [40, 41, 42]
    sWoff, sXoff, sM0w, sM0x, sOA, sOB = 43, 44, 45, 46, 47, 48
    R = Alloc(1)
    lane = R(); t0 = R(); t1 = R(); t2 = R(); t3 = R(); vzero = R(); vtok = R(); v16 = R(); vfa = R()
    vfl = R(); vsa = R()
    NWR = 25
    NWI = 18
    WR = [R(4, 4) for _ in range(NWR)]
    base2 = pool = R.mark()
    R.reset(184)
    acc = [[R(4, 4) for ct in range(2)] for rt in range(6)]
    cs = [R(4, 4) for _ in range(2)]
    st = [R(2, 2) for _ in range(2)]
    b1p = [R(2, 2) for _ in range(6)]
    R.reset(WR[NWI]); R.limit = 184
    A = [[R(4, 4) for rt in range(6)] for _ in range(2)]
    X = [[[R(4, 4) for ct in range(2)] for e in range(2)] for _ in range(2)]
    ones = R(4, 4)
    vE = [R() for _ in range(3)]; vO = [R() for _ in range(3)]
    vW = [R() for _ in range(3)]; vXs = [R(), R()]; vXr = [R(), R()]
    vpf = R(); vpd = R()
    stamp_begin(a)
    if ENV("GPRIO", 0): a(f"s_setprio {ENV('GPRIO', 0)}")
    a(f"s_load_dwordx2 s[{sX}:{sX+1}], s[0:1], 0")
    a(f"s_load_dwordx2 s[{sW1}:{sW1+1}], s[0:1], 80")
    a(f"s_load_dwordx2 s[{sW2}:{sW2+1}], s[0:1], 96")
    a(f"v_lshrrev_b32 v{t0}, 6, v0")
    a(f"v_and_b32 v{lane}, 63, v0")
    a(f"v_readfirstlane_b32 s{sWave}, v{t0}")
    a(f"s_sub_u32 s{sId}, s2, 256")
    srd(a, sX, L * D * 2); srd(a, sW1, D * F * 2)
    pfx = A[1][0]; pfw = A[1][0] + 1
    a(f"s_lshr_b32 s{sT3}, s{sId}, 3")
    a(f"s_lshl_b32 s{sT3}, s{sT3}, 2")
    a(f"s_add_u32 s{sT3}, s{sT3}, s{sWave}")
    a(f"v_mul_u32_u24 v{t1}, 0xaaab, v{lane}")
    a(f"v_lshrrev_b32 v{t1}, 18, v{t1}")
    a(f"v_mul_u32_u24 v{t2}, 6, v{t1}")
    a(f"v_sub_u32 v{t2}, v{lane}, v{t2}")
    a(f"v_mul_u32_u24 v{t1}, {64*3072}, v{t1}")
    a(f"v_lshl_add_u32 v{t1}, v{t2}, 7, v{t1}")
    a(f"s_lshr_b32 s{sT2}, s{sT3}, 1")
    a(f"s_mul_i32 s{sT2}, s{sT2}, 3072")
    a(f"s_and_b32 s{sT}, s{sId}, 1")
    a(f"s_lshl_b32 s{sT}, s{sT}, 1")
    a(f"s_and_b32 s{sRB}, s{sT3}, 1")
    a(f"s_add_u32 s{sT}, s{sT}, s{sRB}")
    a(f"s_mul_i32 s{sT}, s{sT}, 768")
    a(f"s_add_u32 s{sT2}, s{sT2}, s{sT}")
    a(f"v_add_u32 v{pfw}, s{sT2}, v{t1}")
    XH = ENV("XHALF", 0)
    XR = 2 if XH else 4
    a(f"v_lshrrev_b32 v{t2}, {1 if XH else 2}, v{lane}")
    a(f"v_lshlrev_b32 v{t2}, 7, v{t2}")
    a(f"v_and_b32 v{t3}, {XR-1}, v{lane}")
    a(f"v_mul_u32_u24 v{t3}, 1280, v{t3}")
    a(f"v_add_u32 v{t2}, v{t2}, v{t3}")
    if XH:
        a(f"s_and_b32 s{sT}, s{sId}, 7")
        a(f"s_xor_b32 s{sT}, s{sT}, 1")
    else: a(f"s_bfe_u32 s{sT}, s{sId}, 0x20001")
    a(f"s_lshl_b32 s{sT}, s{sT}, 7")
    a(f"s_add_u32 s{sT}, s{sT}, s{sT3}")
    a(f"s_mul_i32 s{sT}, s{sT}, {XR*1280}")
    a(f"v_add_u32 v{pfx}, s{sT}, v{t2}")
    a("s_waitcnt lgkmcnt(0)")
    stamp(a, 1)
    def do_pf(c0, c1):
        def mask(lo, hi):
            m = ((1 << hi) - 1) & ~((1 << lo) - 1)
            a(f"s_mov_b32 exec_lo, {hex(m & 0xffffffff)}"); a(f"s_mov_b32 exec_hi, {hex(m >> 32)}")
        mask(XR * c0, XR * c1)
        a(f"buffer_load_dword v{vpd}, v{pfx}, s[{sX}:{sX+3}], 0 offen")
        mask(6 * c0, 6 * c1)
        a(f"buffer_load_dword v{vpd}, v{pfw}, s[{sW1}:{sW1+3}], 0 offen")
        a("s_mov_b64 exec, -1")
    PFA_ = ENV("PFSPLIT", 2)
    if not ENV("NOPFA", 0): do_pf(0, PFA_)
    srd(a, sW2, F * D * 2)
    a(f"s_mul_i32 s{sT}, s{sT3}, {15*128}")
    a(f"v_lshl_add_u32 v{vpf}, v{lane}, 7, s{sT}")
    def op_pf2(j):
        def f():
            a(f"s_add_u32 s{sT2}, s{sId}, {j}")
            a(f"s_and_b32 s{sT2}, s{sT2}, 7")
            a(f"s_mul_i32 s{sT2}, s{sT2}, {128*15*128}")
            a("s_mov_b64 exec, 0x7fff")
            a(f"buffer_load_dword v{vpd}, v{vpf}, s[{sW2}:{sW2+3}], s{sT2} offen")
            a("s_mov_b64 exec, -1")
        return f
    if ENV("PF20", 4) == -2: op_pf2(0)()
    a(f"s_load_dwordx2 s[{sB1}:{sB1+1}], s[0:1], 88")
    a(f"s_load_dwordx2 s[{sWS}:{sWS+1}], s[0:1], 120")
    a(f"s_load_dwordx2 s[{sDBG}:{sDBG+1}], s[0:1], 112")
    a(f"s_load_dwordx2 s[{sOUT}:{sOUT+1}], s[0:1], 104")
    srd(a, sB1, F * 2); srd(a, sWS, WS_SIZE); srd(a, sDBG, 256); srd(a, sOUT, L * D * 2)
    a(f"s_and_b32 s{sT}, s{sId}, 7")
    a(f"s_lshr_b32 s{sT2}, s{sId}, 3")
    a(f"s_lshr_b32 s{sRB}, s{sT}, 1")
    a(f"s_lshl_b32 s{sTB}, s{sT}, 2")
    a(f"s_lshl_b32 s{sRB}, s{sRB}, 2")
    a(f"s_and_b32 s{sT3}, s{sT2}, 3")
    a(f"s_add_u32 s{sRB}, s{sRB}, s{sT3}")
    a(f"s_add_u32 s{sTB}, s{sTB}, s{sT3}")
    a(f"s_and_b32 s{sT}, s{sT}, 1")
    a(f"s_lshl_b32 s{sCB}, s{sT}, 3")
    a(f"s_lshr_b32 s{sJD}, s{sT2}, 2")
    a(f"s_add_u32 s{sCB}, s{sCB}, s{sJD}")
    a(f"v_mov_b32 v{vzero}, 0")
    a(f"v_lshlrev_b32 v{v16}, 4, v{lane}")
    for i in range(3):
        a(f"v_add_u32 v{t0}, {64*i}, v{lane}")
        a(f"v_mul_u32_u24 v{t1}, 0xaaab, v{t0}")
        a(f"v_lshrrev_b32 v{t1}, 19, v{t1}")
        a(f"v_mul_u32_u24 v{t2}, 12, v{t1}")
        a(f"v_sub_u32 v{t2}, v{t0}, v{t2}")
        a(f"v_lshrrev_b32 v{t3}, 2, v{t1}")
        a(f"v_and_b32 v{t3}, 2, v{t3}")
        a(f"v_xor_b32 v{t2}, v{t2}, v{t3}")
        a(f"v_lshlrev_b32 v{t2}, 4, v{t2}")
        a(f"v_mul_u32_u24 v{t1}, 3072, v{t1}")
        a(f"v_add_u32 v{vW[i]}, v{t1}, v{t2}")
        if i: a(f"v_subrev_u32 v{vW[i]}, {1024*i}, v{vW[i]}")
    a(f"s_mul_i32 s{sWoff}, s{sWave}, {16*3072}")
    a(f"s_mul_i32 s{sT}, s{sCB}, 192")
    a(f"s_add_u32 s{sWoff}, s{sWoff}, s{sT}")
    a(f"s_mul_i32 s{sM0w}, s{sWave}, 3072")
    a(f"v_lshrrev_b32 v{t0}, 3, v{lane}")
    a(f"v_and_b32 v{t1}, 7, v{lane}")
    a(f"v_lshrrev_b32 v{t2}, 1, v{t0}")
    a(f"v_xor_b32 v{t1}, v{t1}, v{t2}")
    a(f"v_mul_u32_u24 v{t0}, 1280, v{t0}")
    a(f"v_lshl_add_u32 v{vXs[0]}, v{t1}, 4, v{t0}")
    a(f"v_xor_b32 v{vXs[1]}, 64, v{vXs[0]}")
    a(f"v_add_u32 v{vXs[1]}, {8*1280 - 1024}, v{vXs[1]}")
    a(f"s_lshl_b32 s{sXoff}, s{sRB}, 7")
    a(f"s_lshl_b32 s{sT}, s{sWave}, 5")
    a(f"s_add_u32 s{sXoff}, s{sXoff}, s{sT}")
    a(f"s_mul_i32 s{sXoff}, s{sXoff}, 1280")
    a(f"s_mul_i32 s{sM0x}, s{sWave}, {X_WAVE}")
    a(f"s_add_u32 s{sM0x}, s{sM0x}, {X_OFF}")

    tokW = {}; tokXu = {}
    def ops_w(c):
        def f0():
            a(f"s_add_u32 m0, s{sM0w}, {(c % 3) * W_SLOT}")
            if c: a(f"s_add_u32 s{sWoff}, s{sWoff}, {64*3072}")
        def fi(i):
            def f():
                a(f"buffer_load_dwordx4 v{vW[i]}, s[{sW1}:{sW1+3}], s{sWoff} offen offset:{1024*i} lds")
                if i == 2: tokW[c] = a.vtok()
            return f
        return [f0] + [fi(i) for i in range(3)]
    def ops_x(u):
        c, ct = u // 2, u % 2
        def f0():
            a(f"s_add_u32 m0, s{sM0x}, {(u % NXU) * 2048}")
            a(f"s_add_u32 s{sT}, s{sXoff}, {ct*16*1280 + c*128}")
        def fi(h):
            def f():
                a(f"buffer_load_dwordx4 v{vXs[h]}, s[{sX}:{sX+3}], s{sT} offen offset:{1024*h} lds")
                if h == 1: tokXu[u] = a.vtok()
            return f
        return [f0, fi(0), fi(1)]
    def do_first():
        for f in ops_w(0) + ops_x(0) + ops_x(1) + ops_w(1) + ops_x(2) + ops_x(3): f()
    do_first()
    if ENV("PFBE", 1) == 2: do_pf(PFA_, 10)

    a(f"v_lshrrev_b32 v{t0}, 4, v{lane}")
    a(f"v_bfe_u32 v{t1}, v{lane}, 2, 2")
    a(f"v_lshl_add_u32 v{t1}, v{t0}, 3, v{t1}")
    a(f"v_mul_u32_u24 v{t1}, 192, v{t1}")
    a(f"v_and_b32 v{t2}, 3, v{lane}")
    a(f"v_lshl_add_u32 v{t1}, v{t2}, 3, v{t1}")
    a(f"v_and_b32 v{t2}, 1, v{t0}")
    a(f"v_lshlrev_b32 v{t2}, 5, v{t2}")
    a(f"v_sub_u32 v{t3}, v{t1}, v{t2}")
    a(f"v_add_u32 v{t3}, 32, v{t3}")
    a(f"v_add_u32 v{t2}, v{t1}, v{t2}")
    for P in range(3):
        a(f"s_add_u32 s{sP[P]}, s{sWave}, {P}")
        a(f"s_cmp_ge_u32 s{sP[P]}, 3")
        a(f"s_cselect_b32 s{sT}, 3, 0")
        a(f"s_sub_u32 s{sP[P]}, s{sP[P]}, s{sT}")
        a(f"s_lshl_b32 s{sT}, s{sP[P]}, 6")
        a(f"v_add_u32 v{vE[P]}, s{sT}, v{t2}")
        a(f"v_add_u32 v{vO[P]}, s{sT}, v{t3}")
    a(f"v_and_b32 v{t1}, 15, v{lane}")
    a(f"v_lshrrev_b32 v{t2}, 1, v{t1}")
    a(f"v_xor_b32 v{t2}, v{t2}, v{t0}")
    a(f"v_lshlrev_b32 v{t2}, 4, v{t2}")
    a(f"v_lshl_add_u32 v{t2}, v{t1}, 7, v{t2}")
    a(f"v_add_u32 v{vXr[0]}, s{sM0x}, v{t2}")
    a(f"v_xor_b32 v{t2}, 64, v{t2}")
    a(f"v_add_u32 v{vXr[1]}, s{sM0x}, v{t2}")
    a(f"v_lshrrev_b32 v{t2}, 3, v{t1}")
    a(f"v_and_b32 v{t1}, 7, v{t1}")
    a(f"v_lshlrev_b32 v{t1}, 3, v{t1}")
    a(f"v_lshl_add_u32 v{vsa}, v{t2}, 7, v{t1}")
    a(f"s_mul_i32 s{sT}, s{sWave}, 12")
    a(f"s_mul_i32 s{sOA}, s{sT}, {32*1280}")
    a(f"s_mul_i32 s{sT2}, s{sJD}, 160")
    a(f"s_add_u32 s{sOA}, s{sOA}, s{sT2}")
    a(f"s_mul_i32 s{sOB}, s{sTB}, 192")
    a(f"s_add_u32 s{sOB}, s{sOB}, s{sT}")
    a(f"s_lshl_b32 s{sOB}, s{sOB}, 10")
    a(f"s_add_u32 s{sOB}, s{sOB}, {WS_ACT}")
    a(f"v_lshlrev_b32 v{t0}, 3, v{t0}")

    tokA = {}; tokXr = {}
    def ops_ra(ks):
        c, e = ks // 2, ks % 2
        off = (c % 3) * W_SLOT + e * 6144
        out = []
        for rt in range(6):
            ad = (vE if rt % 2 == 0 else vO)[rt // 2]
            for h in range(2):
                def f(rt=rt, h=h, ad=ad):
                    a(f"ds_read_b64_tr_b16 {v(A[ks%2][rt] + 2*h, 2)}, v{ad} offset:{off + 768*h}")
                    tokA[(ks, rt)] = a.ltok()
                out.append(f)
        return out
    def ops_rx(c):
        out = []
        for e in range(2):
            for ct in range(2):
                def f(e=e, ct=ct):
                    a(f"ds_read_b128 {v(X[c%2][e][ct],4)}, v{vXr[e]} offset:{((2*c+ct) % NXU) * 2048}")
                    tokXr[c] = a.ltok()
                out.append(f)
        return out
    def mf(d, A_, B_, first):
        c = "0" if first else v(d, 4)
        a(f"v_mfma_f32_16x16x32_bf16 {v(d,4)}, {v(A_,4)}, {v(B_,4)}, {c}")
    wq = [0]
    tokWR = {}
    def ops_wr(n, lim=NWI):
        out = []
        for it_ in range(n):
            f_ = wq[0]
            if f_ >= lim: break
            def f(f_=f_, it_=it_):
                if f_ % 4 == 0 or it_ == 0: a(f"s_add_u32 s{sT2}, s{sOA}, {1024*(f_ - f_%4)}")
                a(f"buffer_load_dwordx4 {v(WR[f_],4)}, v{v16}, s[{sWS}:{sWS+3}], s{sT2} offen offset:{1024*(f_%4)} sc1")
                tokWR[f_] = a.vtok()
            out.append(f); wq[0] += 1
        return out
    sFB = 49
    def ld_w2flags():
        a(f"buffer_load_dword v{vfl}, v{vfa}, s[{sWS}:{sWS+3}], s{sFB} offen sc1")
    def ld_first(nl):
        a(f"v_mov_b32 v{vfl}, s{sTok}")
        a(f"s_mov_b64 exec, {hex((1 << nl) - 1)}")
        ld_w2flags()
        a("s_mov_b64 exec, -1")
    def ld_stats():
        for ct in range(2):
            a(f"buffer_load_dwordx2 {v(st[ct],2)}, v{vsa}, s[{sWS}:{sWS+3}], s{sT3} offen offset:{256*ct} sc1")
    tk = {}
    def op_tok():
        a(f"buffer_load_dword v{vtok}, v{vzero}, s[{sDBG}:{sDBG+3}], 0 offen sc1")
        tk["tok"] = a.vtok()
    def op_chk_tok():
        a.wait(vm=tk["tok"])
        check_token(a, vtok, vzero)
    def op_pace():
        a(f"v_mov_b32 v{vtok}, s{sTok}")
        a(f"s_lshl_b32 s{sT2}, s{sId}, 7")
        a(f"s_add_u32 s{sT2}, s{sT2}, {WS_FPACE}")
        a(f"s_cmp_eq_u32 s{sWave}, 0")
        a(f"s_cselect_b32 s{sT2}, s{sT2}, {WS_SIZE}")
        a("s_mov_b64 exec, 1")
        a(f"buffer_store_dword v{vtok}, v{vzero}, s[{sWS}:{sWS+3}], s{sT2} offen sc1")
        a("s_mov_b64 exec, -1")
    def op_stats():
        a(f"s_lshl_b32 s{sT3}, s{sRB}, 4")
        a(f"s_lshl_b32 s{sT2}, s{sWave}, 2")
        a(f"s_add_u32 s{sT3}, s{sT3}, s{sT2}")
        a(f"s_lshl_b32 s{sT3}, s{sT3}, 7")
        a(f"s_add_u32 s{sT3}, s{sT3}, {WS_STAT}")
        ld_stats()
        tk["st"] = a.vtok()
    def op_b1(P):
        def f():
            a(f"s_mul_i32 s{sT2}, s{sCB}, 192")
            a(f"s_lshl_b32 s{sT}, s{sP[P]}, 6")
            a(f"s_add_u32 s{sT}, s{sT}, s{sT2}")
            for o in range(2):
                a(f"buffer_load_dwordx2 {v(b1p[2*P+o],2)}, v{t0}, s[{sB1}:{sB1+3}], s{sT} offen offset:{32*o}")
        return f

    a("s_waitcnt lgkmcnt(0)")
    for P in range(3): op_b1(P)()
    a("s_waitcnt lgkmcnt(0)")
    if ENV("PFBE", 1) == 1 and PFA_ < 10: do_pf(PFA_, 10)
    a.wait(vm=max(tokW[0], tokXu[1]))
    for i in range(4): a(f"v_mov_b32 v{ones+i}, 0x3f803f80")
    a("s_barrier")
    stamp(a, 2)
    for f in ops_rx(0) + ops_ra(0) + ops_x(4) + ops_w(2): f()
    if PFA_ < 10 and not ENV("PFBE", 1): do_pf(PFA_, 10)
    if ENV("PF20", 4) == -1: op_pf2(0)()
    op_tok()
    extra = {9: [op_chk_tok], ENV("PACEKS", 13): [op_pace], ENV("STATKS", 15): [op_stats]}
    if ENV("PF20", 4) >= 0: extra.setdefault(ENV("PF20", 4), []).append(op_pf2(0))
    for j in range(1, 8): extra.setdefault(min(19, ENV("PF2KS", 10) + (j if not ENV("PF2D", 0) else (j + 1) // 2)), []).append(op_pf2(j))
    if ENV("GPRIO2", 2): a(f"s_setprio {ENV('GPRIO2', 2)}")
    for ks in range(20):
        c, e = ks // 2, ks % 2
        first = ks == 0
        Xs = X[c % 2][e]; As = A[ks % 2]
        mlist = []
        for rt in range(6):
            for ct in range(2): mlist.append((rt, acc[rt][ct], As[rt], Xs[ct]))
            if rt < 2: mlist.append((rt, cs[rt], As[rt], ones))
        if e == 0:
            fill = ops_ra(ks + 1)
            dma = []
            for u in (2 * c + 5, 2 * c + 6):
                if u < 20: dma += ops_x(u)
            fl2 = []
            for i, f in enumerate(fill):
                fl2.append(f)
                if i % 2 == 1 and dma: fl2.append(dma.pop(0))
            fill = fl2 + dma + extra.get(ks, [])
            start = 0
            a.wait(lg=tokXr[c])
        else:
            fill = []
            if ks < 19:
                fill = ops_rx(c + 1) + ops_ra(ks + 1)
                if c + 3 < 10: fill += ops_w(c + 3)
            fill += extra.get(ks, [])
            start = 6 if ks < 19 else 0
        nslots = len(mlist) - start
        per = [len(fill) // nslots + (1 if i < len(fill) % nslots else 0) for i in range(nslots)]
        lastrt = -1
        for i, (rt, d, A_, B_) in enumerate(mlist):
            if e == 1 and ks < 19 and i == start:
                a.wait(vm=max(tokW[c + 1], tokXu[2 * c + 3]), lg=a.ltok())
                a("s_barrier")
                if ks in (5, 11): stamp(a, {5: 3, 11: 4}[ks])
                lastrt = 99
            if rt > lastrt:
                a.wait(lg=tokA[(ks, rt)]); lastrt = rt
            mf(d, A_, B_, first)
            if i >= start:
                for _ in range(per[i - start]): fill.pop(0)()
        assert not fill
    tokst = tk["st"]
    stamp(a, 5)

    E = Alloc(pool, limit=vpf)
    csv = [E(4, 4) for _ in range(6)]
    b1v = [E(4, 4) for _ in range(6)]
    rr = [E(2, 2) for _ in range(2)]
    rm = [st[0], st[1]]
    tmp = [E(2, 2) for _ in range(8)]
    outp = cs
    vcs = E()
    CSOFF = 2 * W_SLOT
    a(f"v_lshrrev_b32 v{t0}, 4, v{lane}")
    a(f"v_lshlrev_b32 v{vcs}, 4, v{t0}")
    a(f"s_lshl_b32 s{sT}, s{sP[0]}, 7")
    a(f"v_add_u32 v{t1}, s{sT}, v{vcs}")
    for o in range(2):
        a(f"ds_write_b128 v{t1}, {v(cs[o],4)} offset:{CSOFF + 64*o}")
    a.wait(vm=tokst)
    check_flags(a, [st[0] + 1, st[1] + 1], vsa, ld_stats)
    a("s_waitcnt lgkmcnt(0)")
    a("s_barrier")
    for P in range(3):
        a(f"s_lshl_b32 s{sT}, s{sP[P]}, 7")
        a(f"v_add_u32 v{t1}, s{sT}, v{vcs}")
        for o in range(2):
            a(f"ds_read_b128 {v(csv[2*P+o],4)}, v{t1} offset:{CSOFF + 64*o}")
    for ct in range(2):
        a(f"v_and_b32 v{t1}, 0xffff0000, v{st[ct]}")
        a(f"v_rcp_f32 v{rr[ct]}, v{t1}")
        a(f"v_lshlrev_b32 v{t2}, 16, v{st[ct]}")
        a(f"v_mul_f32 v{rr[ct]+1}, v{t2}, v{rr[ct]}")
        a(f"v_sub_f32 v{rm[ct]}, 0, v{rr[ct]+1}")
    for rt in range(6):
        a(f"v_lshlrev_b32 v{b1v[rt]}, 16, v{b1p[rt]}")
        a(f"v_and_b32 v{b1v[rt]+1}, 0xffff0000, v{b1p[rt]}")
        a(f"v_lshlrev_b32 v{b1v[rt]+2}, 16, v{b1p[rt]+1}")
        a(f"v_and_b32 v{b1v[rt]+3}, 0xffff0000, v{b1p[rt]+1}")
    a(f"s_lshl_b32 s{sT}, s{sRB}, 3")
    a(f"s_lshl_b32 s{sT2}, s{sWave}, 1")
    a(f"s_add_u32 s{sT}, s{sT}, s{sT2}")
    a(f"s_mul_i32 s{sT}, s{sT}, 48")
    a(f"s_mul_i32 s{sT2}, s{sCB}, 3")
    a(f"s_add_u32 s{sT}, s{sT}, s{sT2}")
    for P in range(3):
        a(f"s_add_u32 s{sP[P]}, s{sP[P]}, s{sT}")
        a(f"s_lshl_b32 s{sP[P]}, s{sP[P]}, 10")
        a(f"s_add_u32 s{sP[P]}, s{sP[P]}, {WS_ACT}")
    a(f"s_mov_b32 s50, {f32(LOG2E)}"); a(f"s_mov_b32 s51, {f32(LOG2E)}")
    Q = Alloc(base2, limit=256)
    acc2 = [[Q(4, 4) for ct in range(4)] for rt in range(5)]
    NST = 3
    FB = [[Q(4, 4) for _ in range(4)] for _ in range(NST)]
    vB = [Q() for _ in range(4)]
    vxo = Q(); vxo2 = Q()
    vw = [Q() for _ in range(5)]; vw8 = Q(); vw4 = Q()
    a(f"s_mul_i32 s{sM0w}, s{sWave}, 20480")
    tokD = {}
    def ops_dma(k):
        out = []
        for i in range(5):
            def f(i=i):
                if i == 0:
                    a(f"s_add_u32 m0, s{sM0w}, {5120*(k%4)}")
                    a(f"s_add_u32 s{sXoff}, s{sOA}, {32*1280*k}")
                if i == 4: a(f"s_add_u32 m0, s{sM0w}, {5120*(k%4) + 4096}")
                a(f"buffer_load_dwordx4 v{vw[i]}, s[{sW2}:{sW2+3}], s{sXoff} offen offset:{1024*i if i < 4 else 0} lds")
                tokD[k] = a.vtok()
            out.append(f)
        return out
    tokL = {}
    def op_rw(k, rt):
        o = WR[5 * (k % 5) + rt]
        for e in range(2):
            if rt < 4: a(f"ds_read_b64_tr_b16 {v(o+2*e,2)}, v{vw8} offset:{5120*(k%4) + 64*(rt>>1) + 8*(rt&1) + 2560*e}")
            else: a(f"ds_read_b64_tr_b16 {v(o+2*e,2)}, v{vw4} offset:{5120*(k%4) + 128 + 2560*e}")
        tokL[(k, rt)] = a.ltok()
    a("s_waitcnt lgkmcnt(0)")
    stamp(a, 6)
    k = 0
    for P in range(3):
        for ct in range(2):
            op = outp[k % 2]; k += 1
            if k == 1: dq = sum([ops_dma(k_) for k_ in range(4)], [])
            def dq_pop():
                if len(dq) > 20 - ENV("NDQ", 0): dq.pop(0)()
            dq_pop()
            hs = []
            EP = ENV("EPLAIN", 0)
            for o in range(2):
                rt = 2 * P + o
                for hf in range(2):
                    h = acc[rt][ct] + 2 * hf
                    tt = tmp[len(hs)]
                    if EP:
                        for z in range(2): a(f"v_fma_f32 v{tt+z}, v{csv[rt]+2*hf+z}, v{rm[ct]}, v{b1v[rt]+2*hf+z}")
                        for z in range(2): a(f"v_fma_f32 v{h+z}, v{h+z}, v{rr[ct]}, v{tt+z}")
                    else:
                        a(f"v_pk_fma_f32 {v(tt,2)}, {v(csv[rt]+2*hf,2)}, {v(rm[ct],2)}, {v(b1v[rt]+2*hf,2)} op_sel_hi:[1,0,1]")
                        a(f"v_pk_fma_f32 {v(h,2)}, {v(h,2)}, {v(rr[ct],2)}, {v(tt,2)} op_sel_hi:[1,0,1]")
                    hs.append(h)
            def pmul(d, x, y):
                if EP:
                    for z in range(2): a(f"v_mul_f32 v{d+z}, " + (f"s50, v{x+z}" if y is None else f"v{x+z}, v{y+z}"))
                else: a(f"v_pk_mul_f32 {v(d,2)}, {v(x,2)}, " + ("s[50:51]" if y is None else v(y, 2)))
            def padd2(d, x):
                if EP:
                    for z in range(2): a(f"v_add_f32 v{d+z}, 2.0, v{x+z}")
                else: a(f"v_pk_add_f32 {v(d,2)}, {v(x,2)}, 2.0 op_sel_hi:[1,0]")
            for i, h in enumerate(hs): pmul(tmp[i], h, None)
            for i, h in enumerate(hs):
                a(f"v_min_f32 v{tmp[i]}, {f32(30.0)}, v{tmp[i]}")
                a(f"v_min_f32 v{tmp[i]+1}, {f32(30.0)}, v{tmp[i]+1}")
            dq_pop()
            for i, h in enumerate(hs):
                a(f"v_exp_f32 v{tmp[i]}, v{tmp[i]}")
                a(f"v_exp_f32 v{tmp[i]+1}, v{tmp[i]+1}")
            dq_pop()
            for i, h in enumerate(hs): padd2(tmp[4+i], tmp[i])
            for i, h in enumerate(hs): pmul(tmp[i], tmp[i], tmp[4+i])
            for i, h in enumerate(hs): padd2(tmp[4+i], tmp[i])
            for i, h in enumerate(hs):
                a(f"v_rcp_f32 v{tmp[4+i]}, v{tmp[4+i]}")
                a(f"v_rcp_f32 v{tmp[4+i]+1}, v{tmp[4+i]+1}")
            dq_pop()
            for i, h in enumerate(hs): pmul(h, h, tmp[i])
            for i, h in enumerate(hs): pmul(h, h, tmp[4+i])
            for i, h in enumerate(hs): a(f"v_cvt_pk_bf16_f32 v{op+i}, v{h}, v{h+1}")
            if ct == 0:
                a(f"buffer_store_dwordx4 {v(op,4)}, v{v16}, s[{sWS}:{sWS+3}], s{sP[P]} offen sc1")
            else:
                a(f"s_add_u32 s{sT}, s{sP[P]}, {48*1024}")
                a(f"buffer_store_dwordx4 {v(op,4)}, v{v16}, s[{sWS}:{sWS+3}], s{sT} offen sc1")
    tokst_ = a.vtok()
    stamp(a, 7)
    for i in range(5):
        a(f"v_add_u32 v{t0}, {64*i}, v{lane}")
        a(f"v_mul_u32_u24 v{t1}, 0xcccd, v{t0}")
        a(f"v_lshrrev_b32 v{t1}, 19, v{t1}")
        a(f"v_mul_u32_u24 v{t2}, 10, v{t1}")
        a(f"v_sub_u32 v{t2}, v{t0}, v{t2}")
        a(f"v_mul_u32_u24 v{t1}, 1280, v{t1}")
        a(f"v_lshl_add_u32 v{vw[i]}, v{t2}, 4, v{t1}")
        if 0 < i < 4: a(f"v_subrev_u32 v{vw[i]}, {1024*i}, v{vw[i]}")
    a("s_barrier")
    a(f"s_lshl_b32 s{sT}, s{sRB}, 4")
    a(f"s_add_u32 s{sT}, s{sT}, s{sCB}")
    a(f"s_lshl_b32 s{sT}, s{sT}, 2")
    a(f"s_add_u32 s{sT}, s{sT}, s{sWave}")
    a(f"s_lshl_b32 s{sT}, s{sT}, 7")
    a(f"s_add_u32 s{sT}, s{sT}, {WS_FACT}")
    a(f"v_mov_b32 v{vtok}, s{sTok}")

    for ct in range(4):
        a(f"s_add_u32 s{sT2}, s{sWave}, {ct}")
        a(f"s_and_b32 s{sT2}, s{sT2}, 3")
        a(f"s_mul_i32 s{sT2}, s{sT2}, {48*1024}")
        a(f"v_add_u32 v{vB[ct]}, s{sT2}, v{v16}")
    a(f"v_lshrrev_b32 v{t1}, 2, v{lane}")
    a(f"v_mul_u32_u24 v{t1}, 160, v{t1}")
    a(f"v_add_u32 v{t1}, s{sM0w}, v{t1}")
    a(f"v_and_b32 v{t2}, 3, v{lane}")
    a(f"v_lshl_add_u32 v{vw8}, v{t2}, 4, v{t1}")
    a(f"v_lshl_add_u32 v{vw4}, v{t2}, 3, v{t1}")
    def do_publish():
        a.wait(vm=tokst_)
        a("s_mov_b64 exec, 1")
        a(f"buffer_store_dword v{vtok}, v{vzero}, s[{sWS}:{sWS+3}], s{sT} offen sc1")
        a("s_mov_b64 exec, -1")
        if ENV("GPRIO2", 2): a(f"s_setprio {ENV('GPRIO3', 0)}")
        stamp(a, 8)
    for _ in range(min(len(dq), 10)): dq.pop(0)()
    a(f"v_and_b32 v{t0}, 3, v{lane}")
    a(f"v_bfe_u32 v{t1}, v{lane}, 2, 1")
    a(f"v_lshl_add_u32 v{vfa}, v{t0}, 2, v{t1}")
    a(f"v_lshlrev_b32 v{vfa}, 7, v{vfa}")
    a(f"s_lshr_b32 s{sFB}, s{sTB}, 1")
    a(f"s_lshl_b32 s{sFB}, s{sFB}, 2")
    a(f"s_add_u32 s{sFB}, s{sFB}, s{sWave}")
    a(f"s_lshl_b32 s{sFB}, s{sFB}, 3")
    a(f"s_and_b32 s{sT2}, s{sTB}, 1")
    a(f"s_add_u32 s{sFB}, s{sFB}, s{sT2}")
    a(f"s_lshl_b32 s{sFB}, s{sFB}, 8")
    a(f"s_add_u32 s{sFB}, s{sFB}, {WS_FACT}")
    a(f"v_mul_u32_u24 v{t0}, {48*1024}, v{t0}")
    a(f"v_lshrrev_b32 v{t1}, 2, v{lane}")
    a(f"v_lshl_add_u32 v{t0}, v{t1}, 10, v{t0}")
    a(f"s_lshl_b32 s{sT2}, s{sJD}, 7")
    a(f"s_add_u32 s{sT2}, s{sT2}, s{sOB}")
    do_publish()
    while dq: dq.pop(0)()
    def rd(k):
        a.wait(vm=tokD[k])
        for rt in range(5): op_rw(k, rt)
    def dm(k):
        a.wait(lg=tokL[(k - 4, 4)])
        for f in ops_dma(k): f()
    tokB = {}; tokBc = {}
    def issue_b(k):
        for ct in range(4):
            a(f"buffer_load_dwordx4 {v(FB[k%NST][ct],4)}, v{vB[ct]}, s[{sWS}:{sWS+3}], s{sOB} offen sc1")
            tokBc[(k, ct)] = a.vtok()
        tokB[k] = a.vtok()
        if k < 11: a(f"s_add_u32 s{sOB}, s{sOB}, 1024")
    FPOS = ENV("FPOS", 2)
    def fl():
        ld_first(8); tk["fa"] = a.vtok()
    rd(0); rd(1); dm(4); rd(2)
    if FPOS == 0: fl()
    dm(5)
    if FPOS == 1: fl()
    rd(3); dm(6)
    if FPOS == 2:
        fl(); dm(7)
    stamp(a, 14)
    a.wait(vm=tk["fa"])
    check_flags(a, [vfl], vfa, ld_w2flags, sleep=ENV("ASLEEP", 3))
    stamp(a, 9)
    if ENV("GPRIO2", 2): a(f"s_setprio {ENV('GPRIO4', 0)}")
    if ENV("PFA", 0):
        a("s_mov_b32 exec_hi, 0xffff")
        a(f"buffer_load_dword v{t3}, v{t0}, s[{sWS}:{sWS+3}], s{sT2} offen sc1")
        a("s_mov_b32 exec_hi, -1")
    for k in range(NST): issue_b(k)
    if FPOS != 2: dm(7)
    rd(4)
    D8 = ENV("D8", 1)
    if D8: dm(8)
    sXo = 40
    a(f"s_lshl_b32 s{sXo}, s{sTB}, 6")
    a(f"s_lshl_b32 s{sT2}, s{sWave}, 4")
    a(f"s_add_u32 s{sXo}, s{sXo}, s{sT2}")
    a(f"s_mul_i32 s{sXo}, s{sXo}, 1280")
    a(f"s_mul_i32 s{sT2}, s{sJD}, 160")
    a(f"s_add_u32 s{sXo}, s{sXo}, s{sT2}")
    vso = vxo; vlw = vxo2
    a(f"v_lshrrev_b32 v{t0}, 3, v{lane}")
    a(f"v_and_b32 v{t1}, 7, v{lane}")
    a(f"v_lshlrev_b32 v{t1}, 4, v{t1}")
    a(f"v_lshl_add_u32 v{vso}, v{t0}, 12, v{t1}")
    a(f"s_mul_i32 s{sM0x}, s{sWave}, 2560")
    STOFF = 61440; XSOFF = 71680
    a(f"v_min_u32 v{vfa}, 19, v{lane}")
    a(f"v_lshlrev_b32 v{vfa}, 7, v{vfa}")
    a(f"s_mul_i32 s{sT3}, s{sJD}, 80")
    a(f"s_mul_i32 s{sT}, s{sWave}, 20")
    a(f"s_add_u32 s{sWoff}, s{sT3}, s{sT}")
    a(f"s_lshl_b32 s{sT3}, s{sWoff}, 7")
    a(f"s_lshr_b32 s{sT}, s{sTB}, 3")
    a(f"s_lshl_b32 s{sT}, s{sT}, 2")
    a(f"s_add_u32 s{sT3}, s{sT3}, s{sT}")
    a(f"s_add_u32 s{sFB}, s{sT3}, {WS_FST}")
    slot = {f: f % 25 for f in range(60)}
    assert D8
    def ld_b(k, ct):
        a(f"buffer_load_dwordx4 {v(FB[k%NST][ct],4)}, v{vB[ct]}, s[{sWS}:{sWS+3}], s{sOB} offen sc1")
        tokBc[(k, ct)] = a.vtok()
        if ct == 3:
            tokB[k] = a.vtok()
            if k < 11: a(f"s_add_u32 s{sOB}, s{sOB}, 1024")
    for k in range(12):
        dma = ops_dma(k + 8) if 1 <= k <= 3 else []
        if k >= 4: a.wait(lg=tokL[(k, 4)])
        for ct in range(4):
            a.wait(vm=tokBc[(k, ct)])
            if ct == 2 and dma: a.wait(lg=tokL[(k + 4, 4)])
            for rt in range(5):
                c = "0" if k == 0 else v(acc2[rt][ct], 4)
                a(f"v_mfma_f32_16x16x32_bf16 {v(acc2[rt][ct],4)}, {v(WR[slot[5*k+rt]],4)}, {v(FB[k%NST][ct],4)}, {c}")
                if ct == 0 and 1 <= k <= 7:
                    if rt == 0: a.wait(vm=tokD[k + 4])
                    op_rw(k + 4, rt)
                if rt == 0 and ct >= 1 and k + NST < 12: ld_b(k + NST, ct - 1)
                if ct >= 2 and rt in (1, 2, 4) and dma: dma.pop(0)()
        while dma: dma.pop(0)()
        if k + NST < 12: ld_b(k + NST, 3)
        if k in (0, 5): stamp(a, {0: 10, 5: 11}[k])
        if k == ENV("STK", 6):
            ld_first(20); tokfl = a.vtok()
        if k == ENV("BARK", 7):
            a("s_waitcnt lgkmcnt(0)")
            a("s_barrier")
            a(f"s_add_u32 m0, s{sM0x}, {XSOFF}")
            for i in range(3):
                if i == 2: a("s_mov_b32 exec_hi, 0")
                a(f"buffer_load_dwordx4 v{vw[i]}, s[{sX}:{sX+3}], s{sXo} offen offset:{1024*i} lds")
            a("s_mov_b32 exec_hi, -1")
        if k == ENV("STK2", 8):
            a.wait(vm=tokfl)
            check_flags(a, [vfl], vfa, ld_w2flags, sleep=ENV("STSLEEP", 8))
            a(f"s_lshl_b32 s{sT}, s{sWoff}, 12")
            a(f"s_lshl_b32 s{sT2}, s{sTB}, 7")
            a(f"s_add_u32 s{sT}, s{sT}, s{sT2}")
            a(f"s_add_u32 s{sT}, s{sT}, {WS_ST}")
            for i in range(3):
                if i == 2: a("s_mov_b32 exec_hi, 0")
                a(f"s_add_u32 m0, s{sM0x}, {STOFF + 1024*i}")
                a(f"buffer_load_dwordx4 v{vso}, s[{sWS}:{sWS+3}], s{sT} offen sc1 lds")
                if i < 2: a(f"s_add_u32 s{sT}, s{sT}, {8*4096}")
            a("s_mov_b32 exec_hi, -1")
        if k == 10:
            for ct in range(1, 4):
                a(f"s_add_u32 s{sT2}, s{sWave}, {ct}")
                a(f"s_and_b32 s{sT2}, s{sT2}, 3")
                a(f"s_mul_i32 s{sT2}, s{sT2}, 15360")
                a(f"v_add_u32 v{vB[ct]}, s{sT2}, v{v16}")
            break
    k = 11
    a.wait(vm=tokB[k]); a.wait(lg=tokL[(k, 4)])
    vt8, vt4, vx16, vx8 = [FB[0][0] + i for i in range(4)]
    misc = [f"v_lshrrev_b32 v{t2}, 4, v{lane}", f"v_bfe_u32 v{t0}, v{lane}, 2, 2",
            f"v_lshl_add_u32 v{t1}, v{t2}, 3, v{t0}", f"v_lshl_add_u32 v{t0}, v{t2}, 2, v{t0}", f"v_and_b32 v{t3}, 3, v{lane}"]
    pend = []
    for ct in (1, 2, 3, 0):
        for rt in range(5):
            a(f"v_mfma_f32_16x16x32_bf16 {v(acc2[rt][ct],4)}, {v(WR[slot[5*k+rt]],4)}, {v(FB[k%NST][ct],4)}, {v(acc2[rt][ct],4)}")
            if ct == 1: a(misc[rt])
            elif pend: a(pend.pop(0))
        if ct: pend += [f"ds_write_b128 v{vB[ct]}, {v(acc2[rt][ct],4)} offset:{(ct-1)*5120 + rt*1024}" for rt in range(5)]
    stamp(a, 12)
    Pr = [[acc2[rt][p + 1] for rt in range(5)] for p in range(3)]
    T = [WR[10 + i // 2] + 2 * (i % 2) for i in range(10)]
    sv = [WR[15 + i // 2] + 2 * (i % 2) for i in range(5)]
    xq = [WR[18], WR[19], WR[20]]
    op = [WR[21], WR[22], WR[23]]
    a(f"s_lshl_b32 s{sT}, s{sWave}, 5")
    a(f"s_add_u32 s{sT}, s{sT}, {STOFF}")
    a(f"v_lshl_add_u32 v{t3}, v{t3}, 3, s{sT}")
    a(f"v_lshl_add_u32 v{vt8}, v{t1}, 7, v{t3}")
    a(f"v_lshl_add_u32 v{vt4}, v{t0}, 7, v{t3}")
    a(f"v_and_b32 v{t0}, 15, v{lane}")
    a(f"v_mul_u32_u24 v{t0}, 160, v{t0}")
    a(f"s_add_u32 s{sT}, s{sM0x}, {XSOFF}")
    a(f"v_add_u32 v{t0}, s{sT}, v{t0}")
    a(f"v_lshl_add_u32 v{vx16}, v{t2}, 4, v{t0}")
    a(f"v_lshl_add_u32 v{vx8}, v{t2}, 3, v{t0}")
    a(f"v_add_u32 v{vlw}, s{sT}, v{v16}")
    a(f"s_mul_i32 s{sT2}, s{sWave}, 15360")
    a(f"v_add_u32 v{t3}, s{sT2}, v{v16}")
    a(f"s_mov_b32 s50, {f32(-LOG2E)}"); a(f"s_mov_b32 s51, {f32(-LOG2E)}")
    a("s_waitcnt vmcnt(0) lgkmcnt(0)")
    a("s_barrier")
    stamp(a, 13)
    tkr = {}
    for rt in range(5):
        for p in range(3):
            a(f"ds_read_b128 {v(Pr[p][rt],4)}, v{t3} offset:{p*5120 + rt*1024}")
        tkr[rt] = a.ltok()
    o2 = []
    late = [f"ds_read_b64_tr_b16 {v(sv[rt],2)}, v{vt8} offset:{128*(32*(rt>>1) + 4*(rt&1))}" for rt in range(4)]
    late += [f"ds_read_b64_tr_b16 {v(sv[4],2)}, v{vt4} offset:{128*64}", f"ds_read_b128 {v(xq[0],4)}, v{vx16}",
             f"ds_read_b128 {v(xq[1],4)}, v{vx16} offset:64", f"ds_read_b64 {v(xq[2],2)}, v{vx8} offset:128"]
    for rt in range(5):
        a.wait(lg=tkr[rt])
        for hf in range(2):
            d = acc2[rt][0] + 2 * hf
            a(f"v_pk_add_f32 {v(Pr[0][rt]+2*hf,2)}, {v(Pr[0][rt]+2*hf,2)}, {v(Pr[1][rt]+2*hf,2)}")
            a(f"v_pk_add_f32 {v(d,2)}, {v(d,2)}, {v(Pr[2][rt]+2*hf,2)}")
            a(f"v_pk_add_f32 {v(d,2)}, {v(d,2)}, {v(Pr[0][rt]+2*hf,2)}")
            o2.append(d)
    for x_ in late: a(x_)
    for i, d in enumerate(o2): a(f"v_pk_mul_f32 {v(T[i],2)}, {v(d,2)}, s[50:51]")
    for i, d in enumerate(o2):
        a(f"v_exp_f32 v{T[i]}, v{T[i]}")
        a(f"v_exp_f32 v{T[i]+1}, v{T[i]+1}")
    for i, d in enumerate(o2): a(f"v_pk_add_f32 {v(T[i],2)}, {v(T[i],2)}, 1.0 op_sel_hi:[1,0]")
    for i, d in enumerate(o2):
        a(f"v_rcp_f32 v{T[i]}, v{T[i]}")
        a(f"v_rcp_f32 v{T[i]+1}, v{T[i]+1}")
    a("s_waitcnt lgkmcnt(0)")
    for i, d in enumerate(o2):
        s_ = sv[i // 2] + i % 2
        x_ = xq[i // 4] + i % 4
        U_ = Pr[0][i // 2] + 2 * (i % 2)
        V_ = Pr[1][i // 2] + 2 * (i % 2)
        a(f"v_pk_mul_f32 {v(d,2)}, {v(d,2)}, {v(T[i],2)}")
        a(f"v_lshlrev_b32 v{U_}, 16, v{s_}")
        a(f"v_and_b32 v{U_+1}, 0xffff0000, v{s_}")
        a(f"v_lshlrev_b32 v{V_}, 16, v{x_}")
        a(f"v_and_b32 v{V_+1}, 0xffff0000, v{x_}")
        a(f"v_pk_fma_f32 {v(d,2)}, {v(d,2)}, {v(U_,2)}, {v(V_,2)}")
        a(f"v_cvt_pk_bf16_f32 v{op[i//4] + i%4}, v{d}, v{d+1}")
        if i == 3: a(f"ds_write_b128 v{vx16}, {v(op[0],4)}")
        if i == 7: a(f"ds_write_b128 v{vx16}, {v(op[1],4)} offset:64")
    a(f"ds_write_b64 v{vx8}, {v(op[2],2)} offset:128")
    for i in range(3):
        a(f"ds_read_b128 {v(xq[i],4)}, v{vlw} offset:{1024*i}")
    for i in range(3):
        a(f"s_waitcnt lgkmcnt({2-i})")
        if i == 2: a("s_mov_b32 exec_hi, 0")
        a(f"buffer_store_dwordx4 {v(xq[i],4)}, v{vw[i]}, s[{sOUT}:{sOUT+3}], s{sXo} offen offset:{1024*i} {os.environ.get('OUTMOD', '')}")
    stamp_end(a, sWave)
    return 256

def main(out):
    ref = open(f"cdna_kernels/{NAME}.s.ref").read().split("\n")
    hdr = [l for l in ref if l.startswith(";") and "@launch" not in l]
    hdr.append(f"; @launch grid=(512,1,1) block=(256,1,1) lds={LDS_BYTES}")
    a = Asm()
    a.raw(f'.amdgcn_target "amdgcn-amd-amdhsa--gfx950"\n.text\n.globl {KN}\n.p2align 8\n.type {KN},@function')
    a.label(KN)
    a("s_cmp_ge_u32 s2, 512")
    a("s_cbranch_scc1 K_exit")
    if ENV("CPF", 1):
        a("s_getpc_b64 s[18:19]")
        a("s_and_b32 s18, s18, 0xffffff00")
        a("s_lshr_b32 s3, s2, 3")
        a("s_xor_b32 s3, s3, 32")
        a("s_lshl_b32 s3, s3, 9")
        a("s_add_u32 s18, s18, s3")
        a("s_addc_u32 s19, s19, 0")
        a("v_lshrrev_b32 v252, 6, v0")
        a("v_lshlrev_b32 v252, 7, v252")
        a("v_mov_b32 v253, s19")
        a("v_add_co_u32 v252, vcc, s18, v252")
        a("v_addc_co_u32 v253, vcc, 0, v253, vcc")
        a("s_mov_b64 exec, 1")
        a("global_load_dword v254, v[252:253], off")
        a("s_mov_b64 exec, -1")
    a("s_cmp_lt_u32 s2, 256")
    a("s_cbranch_scc1 " + ("K_exit" if ENV("NOS", 0) else "S_role"))
    if ENV('NOG', 0): a("s_branch K_exit")
    _role[0] = "G"
    hg = g_role(a)
    _role[0] = "S"
    a.label("S_role"); a.flush_hist()
    hs = s_role(a)
    a.label("K_exit")
    a("s_endpgm")
    if ENV("CPF", 1): a.raw(".p2align 15")
    print("vgprs", hg, hs, "nops", a.nnop, "lines", len(a.items), file=sys.stderr)
    kd = f""".section .rodata,"a"
.p2align 6
.amdhsa_kernel {KN}
  .amdhsa_next_free_vgpr 256
  .amdhsa_next_free_sgpr {102 if STAMPS else 64}
  .amdhsa_accum_offset 256
  .amdhsa_group_segment_fixed_size 0
  .amdhsa_kernarg_size 128
  .amdhsa_user_sgpr_count 2
  .amdhsa_user_sgpr_kernarg_segment_ptr 1
  .amdhsa_system_sgpr_workgroup_id_x 1
  .amdhsa_float_denorm_mode_32 3
  .amdhsa_float_denorm_mode_16_64 3
.end_amdhsa_kernel
"""
    open(out, "w").write("\n".join(hdr) + "\n" + a.text() + kd)

if __name__ == "__main__":
    main(sys.argv[1] if len(sys.argv) > 1 else f"cdna_kernels/{NAME}.s")
```

```python
import sys, os, struct, math
sys.path.insert(0, os.path.dirname(os.path.abspath(__file__)))
from asmlib import *

NAME = "recurrent_scan__ssm_conv_s4__dense_activation_mish__prompt"
KN = NAME + "_kernel"
L, D, N, F = 2048, 640, 192, 1536
ENV = lambda k, d: int(os.environ.get(k, str(d)))
STAMPS = ENV("STAMPS", 0)

WS_XT2 = 0x0000000
WS_ST  = 0x0400000
WS_W2A = 0x0800000
WS_ACT = 0x0C00000
WS_STAT = 0x1400000
WS_FLN = 0x1500000
WS_FPACE = 0x1510000
WS_FACT = 0x1520000
WS_FST = 0x1560000
WS_SIZE = 0x1600000
WS_STAMP = 0x4000000
LDS_BYTES = 81920
SPIN_MAX = 0x4000

def f32(x): return "0x%08x" % struct.unpack("<I", struct.pack("<f", x))[0]
LOG2E = 1.4426950408889634
LN2 = 0.6931471805599453

def srd(a, sreg, size):
    a(f"s_mov_b32 s{sreg+2}, {size}")
    a(f"s_mov_b32 s{sreg+3}, 0x20000")

def bf16r(a, dst, src):
    a(f"v_cvt_pk_bf16_f32 v{dst}, v{src}, v{src}")
    a(f"v_and_b32 v{dst}, 0xffff0000, v{dst}")

_sn = [0]
DIAG = ENV("DIAG", 0)
DROLE = os.environ.get("DROLE", "G")
_role = ["?"]
def stamp_begin(a):
    _sn[0] = 0
    if DIAG and _role[0] == DROLE:
        a("s_memrealtime s[60:61]"); a("s_memrealtime s[62:63]")
    if STAMPS:
        a("s_memrealtime s[60:61]")
        for i in range(64, 96, 2): a(f"s_mov_b64 s[{i}:{i+1}], 0")
        a("s_memtime s[64:65]")
        _sn[0] = 1
def stamp(a, n=None):
    if DIAG and n == DIAG and _role[0] == DROLE: a("s_memrealtime s[62:63]")
    if STAMPS:
        if n is None:
            n = _sn[0]; _sn[0] += 1
        assert n < 16
        a(f"s_memtime s[{64+2*n}:{65+2*n}]")
def stamp_end(a, sWave):
    if DIAG and _role[0] == DROLE:
        if DIAG == 15: a("s_memrealtime s[62:63]")
        a("s_memrealtime s[56:57]")
        a("s_waitcnt lgkmcnt(0)")
        a("s_sub_u32 s62, s62, s60")
        a("s_lshl_b32 s62, s62, 2")
        a("s_add_u32 s56, s56, s62")
        a.label("DG_spin")
        a("s_sleep 2")
        a("s_memrealtime s[58:59]")
        a("s_waitcnt lgkmcnt(0)")
        a("s_sub_u32 s58, s58, s56")
        a("s_cmp_lt_i32 s58, 0")
        a("s_cbranch_scc1 DG_spin")
    if STAMPS:
        stamp(a, 15)
        a("s_memrealtime s[62:63]")
        a("s_load_dwordx2 s[96:97], s[0:1], 120")
        a("s_waitcnt lgkmcnt(0)")
        a(f"s_add_u32 s96, s96, {WS_STAMP}")
        a("s_addc_u32 s97, s97, 0")
        a("s_mov_b32 s98, 0x100000")
        a("s_mov_b32 s99, 0x20000")
        a("s_lshl_b32 s59, s2, 10")
        a(f"s_lshl_b32 s58, s{sWave}, 8")
        a("s_add_u32 s59, s59, s58")
        a("s_mov_b64 exec, 1")
        a("v_mov_b32 v1, s59")
        a("v_mov_b32 v2, s60"); a("v_mov_b32 v3, s62")
        a("buffer_store_dwordx2 v[2:3], v1, s[96:99], 0 offen")
        for n in range(16):
            a(f"s_sub_u32 s59, s{64+2*n}, s64")
            a(f"s_cmp_eq_u32 s{64+2*n}, 0")
            a(f"s_cselect_b32 s59, 0, s59")
            a(f"v_mov_b32 v{4 + n}, s59")
            a(f"buffer_store_dword v{4 + n}, v1, s[96:99], 0 offen offset:{16+4*n}")
    a("s_endpgm")

_lab = [0]
def newlab(p):
    _lab[0] += 1
    return f"{p}_{_lab[0]}"

sWS, sDBG = 4, 8
sWave, sTok, sSpin = 12, 13, 14
sT, sT2, sT3 = 15, 16, 17

def check_token(a, vtok, vzero, sleep=2):
    done = newlab("TK"); loop = newlab("TL")
    if ENV("NOS", 0) or os.environ.get("ONLY", ""):
        a(f"s_mov_b32 s{sTok}, 0x12345"); return
    a(f"v_readfirstlane_b32 s{sTok}, v{vtok}")
    a(f"s_cmp_lg_u32 s{sTok}, 0")
    a(f"s_cbranch_scc1 {done}")
    a(f"s_mov_b32 s{sSpin}, 0")
    a.label(loop)
    a(f"s_sleep {sleep}")
    a(f"buffer_load_dword v{vtok}, v{vzero}, s[{sDBG}:{sDBG+3}], 0 offen sc1"); a.vm -= 1
    a("s_waitcnt vmcnt(0)")
    a(f"v_readfirstlane_b32 s{sTok}, v{vtok}")
    a(f"s_cmp_lg_u32 s{sTok}, 0")
    a(f"s_cbranch_scc1 {done}")
    a(f"s_add_u32 s{sSpin}, s{sSpin}, 1")
    a(f"s_cmp_lt_u32 s{sSpin}, {SPIN_MAX}")
    a(f"s_cbranch_scc1 {loop}")
    a.label(done)

def check_flags(a, vfl, vaddr, reload, sleep=2):
    if (ENV("NOS", 0) or os.environ.get("ONLY", "")) and sleep != 3: return
    done = newlab("FD"); loop = newlab("FL")
    def cmpall():
        a(f"v_cmp_ne_u32 vcc, s{sTok}, v{vfl[0]}")
        for r_ in vfl[1:]:
            a(f"v_cmp_ne_u32 s[18:19], s{sTok}, v{r_}")
            a("s_or_b64 vcc, vcc, s[18:19]")
        a("s_cmp_eq_u64 vcc, 0")
    cmpall()
    a(f"s_cbranch_scc1 {done}")
    a(f"s_mov_b32 s{sSpin}, 0")
    a.label(loop)
    a(f"s_sleep {sleep}")
    n0 = a.vm
    a("s_mov_b64 exec, vcc")
    reload()
    a("s_mov_b64 exec, -1")
    a.vm = n0
    a("s_waitcnt vmcnt(0)")
    cmpall()
    a(f"s_cbranch_scc1 {done}")
    a(f"s_add_u32 s{sSpin}, s{sSpin}, 1")
    a(f"s_cmp_lt_u32 s{sSpin}, {SPIN_MAX}")
    a(f"s_cbranch_scc1 {loop}")
    a.label(done)

CV_S = 4160
CH_REG = 64 * 272
CV_U = [3 * CH_REG + 512 + 4608 * i for i in range(3)]
LN_OFF = 3 * CH_REG + 3 * 4608
LN_S = 1344
PACE_OFF = LDS_BYTES - 16
KG_S = 272
COARSE = list(range(8)) + [256, 258, 260, 262, 512, 516, 768, 772, 1024, 1280, 1536, 1792, 2048]
assert LN_OFF + 8 * LN_S <= LDS_BYTES and 4 * CV_S <= CH_REG

def s_role(a):
    sX_, sA, sXc = 20, 24, 25
    sD = [26, 27, 28]
    sCnt, sPar, sSlot, sRound, sHeavy = 29, 30, 31, 56, 57
    SP = [32, 36, 40, 44, 48, 52]
    R = Alloc(1)
    lane = R(); t0 = R(); t1 = R(); t2 = R(); t3 = R(); vzero = R(); vtok = R(); v16 = R()
    vdk = [R(), R()]
    base = R.mark()
    stamp_begin(a)
    a(f"s_load_dwordx2 s[{sWS}:{sWS+1}], s[0:1], 120")
    a(f"s_load_dwordx2 s[{sDBG}:{sDBG+1}], s[0:1], 112")
    a(f"v_lshrrev_b32 v{t0}, 6, v0")
    a(f"v_and_b32 v{lane}, 63, v0")
    a(f"v_readfirstlane_b32 s{sWave}, v{t0}")
    srd(a, sWS, WS_SIZE); srd(a, sDBG, 256)
    a(f"s_and_b32 s{sXc}, s2, 7")
    a(f"s_lshr_b32 s{sA}, s2, 3")
    a(f"s_lshl_b32 s{sD[0]}, s{sXc}, 6")
    a(f"s_lshl_b32 s{sT}, s{sA}, 1")
    a(f"s_add_u32 s{sD[0]}, s{sD[0]}, s{sT}")
    a(f"s_add_u32 s{sD[1]}, s{sD[0]}, 1")
    a(f"s_lshl_b32 s{sD[2]}, s{sXc}, 4")
    a(f"s_add_u32 s{sD[2]}, s{sD[2]}, s{sA}")
    a(f"s_add_u32 s{sD[2]}, s{sD[2]}, 512")
    a(f"s_cmp_lt_u32 s{sA}, 16")
    a(f"s_cselect_b32 s{sHeavy}, 1, 0")
    a(f"v_mov_b32 v{vzero}, 0")
    a(f"v_lshlrev_b32 v{v16}, 4, v{lane}")
    ONLY = os.environ.get("ONLY", "")
    if ENV("SPRIO0", 1): a(f"s_setprio {ENV('SPRIO0', 1)}")
    a(f"s_lshr_b32 s{sSlot}, s{sWave}, 1")
    a(f"s_cmp_eq_u32 s{sWave}, 3")
    a("s_cbranch_scc1 " + ("S_ln" if (not ONLY or "l" in ONLY) else "K_exit"))
    a(f"s_add_u32 s{sT}, s{sHeavy}, 2")
    a(f"s_cmp_ge_u32 s{sWave}, s{sT}")
    a("s_cbranch_scc1 " + ("S_w2t" if (not ONLY or "w" in ONLY) else "K_exit"))
    if ONLY and "k" not in ONLY: a("s_branch K_exit")

    P = [[R() for _ in range(6)] for _ in range(3)]
    vdt = R(); vwr = R(); vrd = R(); voff = R()
    accK = R(16, 4)
    FA = [R(4, 4) for _ in range(8)]; FB = [R(4, 4) for _ in range(8)]
    pr = lambda: R(2, 2)
    l1, l8, l256, W, E0, E1, E2, T, T2, G2, G4, G6, V, a2b = [pr() for _ in range(14)]
    Qr = [R(4, 4) for _ in range(2)]; Qi = [R(4, 4) for _ in range(2)]
    Cr = R(16, 4); Ci = R(16, 4)
    sDd, sBase = 58, 59
    if STAMPS: sDd, sBase = 100, 101
    for i, sr in enumerate(SP):
        a(f"s_load_dwordx2 s[{sr}:{sr+1}], s[0:1], {8 + 8*i}")
    a(f"s_load_dwordx2 s[{sX_}:{sX_+1}], s[0:1], 56")
    a(f"s_load_dwordx2 s[18:19], s[0:1], 64")
    a(f"s_cmp_eq_u32 s{sWave}, 1")
    a(f"s_cselect_b32 s{sDd}, s{sD[1]}, s{sD[0]}")
    a(f"s_cmp_eq_u32 s{sWave}, 2")
    a(f"s_cselect_b32 s{sDd}, s{sD[2]}, s{sDd}")
    for sr in SP: srd(a, sr, D * N * 2)
    srd(a, sX_, D * 2)
    a(f"s_mul_i32 s{sT}, s{sDd}, {N*2}")
    a(f"v_lshlrev_b32 v{voff}, 1, v{lane}")
    a(f"s_lshl_b32 s{sT2}, s{sDd}, 1")
    a("s_waitcnt lgkmcnt(0)")
    a(f"buffer_load_ushort v{vdt}, v{vzero}, s[{sX_}:{sX_+3}], s{sT2} offen")
    a(f"s_mov_b32 s{sX_}, s18"); a(f"s_mov_b32 s{sX_+1}, s19")
    a(f"buffer_load_ushort v{vdk[0]}, v{vzero}, s[{sX_}:{sX_+3}], s{sT2} offen")
    for p in range(3):
        for i, sr in enumerate(SP):
            a(f"buffer_load_ushort v{P[p][i]}, v{voff}, s[{sr}:{sr+3}], s{sT} offen offset:{128*p}")
    a(f"s_mul_i32 s{sBase}, s{sWave}, {CH_REG}")
    a(f"v_mul_u32_u24 v{vwr}, {KG_S}, v{lane}")
    a(f"v_add_u32 v{vwr}, s{sBase}, v{vwr}")
    a(f"v_bfe_u32 v{t0}, v{lane}, 2, 2")
    a(f"v_lshrrev_b32 v{t1}, 5, v{lane}")
    a(f"v_lshl_add_u32 v{t0}, v{t0}, 2, v{t1}")
    a(f"v_mul_u32_u24 v{t0}, {KG_S}, v{t0}")
    a(f"v_bfe_u32 v{t1}, v{lane}, 4, 1")
    a(f"v_lshl_add_u32 v{t0}, v{t1}, 5, v{t0}")
    a(f"v_and_b32 v{t1}, 3, v{lane}")
    a(f"v_lshl_add_u32 v{t0}, v{t1}, 3, v{t0}")
    a(f"v_add_u32 v{vrd}, s{sBase}, v{t0}")
    for i in (13, 15): a(f"v_mov_b32 v{Cr+i}, 0"); a(f"v_mov_b32 v{Ci+i}, 0")
    a("s_waitcnt vmcnt(0)")
    stamp(a, 1)
    a(f"v_lshlrev_b32 v{vdt}, 16, v{vdt}")
    a(f"v_mul_f32 v{t0}, {f32(LOG2E)}, v{vdt}")
    a(f"s_mov_b32 s{sT}, {f32(LOG2E)}")
    a(f"v_fma_f32 v{t1}, v{vdt}, s{sT}, -v{t0}")
    lo = LOG2E - struct.unpack("<f", struct.pack("<f", LOG2E))[0]
    a(f"v_fmac_f32 v{t1}, {f32(lo)}, v{vdt}")
    a(f"v_exp_f32 v{t0}, v{t0}")
    a(f"v_mul_f32 v{t1}, {f32(LN2)}, v{t1}")
    a(f"v_fma_f32 v{t0}, v{t0}, v{t1}, v{t0}")
    bf16r(a, vdt, t0)
    a(f"s_mov_b32 s{sCnt}, 0")
    def cmul(dst, e, m):
        if ENV("KPK", 0):
            a(f"v_pk_mul_f32 {v(T,2)}, {v(e,2)}, {v(m,2)} op_sel:[0,0] op_sel_hi:[0,1]")
            a(f"v_pk_fma_f32 {v(dst,2)}, {v(e,2)}, {v(m,2)}, {v(T,2)} op_sel:[1,1,0] op_sel_hi:[1,0,1] neg_lo:[0,1,0]")
        else:
            assert dst != e and dst != m
            a(f"v_mul_f32 v{dst}, v{e}, v{m}")
            a(f"v_mul_f32 v{dst+1}, v{e}, v{m+1}")
            a(f"v_fma_f32 v{dst}, -v{e+1}, v{m+1}, v{dst}")
            a(f"v_fmac_f32 v{dst+1}, v{e+1}, v{m}")
    def cexp(dst, scale):
        if scale == 1:
            a(f"v_exp_f32 v{t0}, v{a2b}")
            a(f"v_fract_f32 v{t1}, v{a2b+1}")
        else:
            a(f"v_mul_f32 v{t0}, {f32(float(scale))}, v{a2b}")
            a(f"v_mul_f32 v{t1}, {f32(float(scale))}, v{a2b+1}")
            a(f"v_exp_f32 v{t0}, v{t0}")
            a(f"v_fract_f32 v{t1}, v{t1}")
        a(f"v_cos_f32 v{dst}, v{t1}")
        a(f"v_sin_f32 v{dst+1}, v{t1}")
        a(f"v_mul_f32 v{dst}, v{dst}, v{t0}")
        a(f"v_mul_f32 v{dst+1}, v{dst+1}, v{t0}")
    def mfmas():
        for ks in range(8):
            a(f"v_mfma_f32_32x32x16_bf16 {v(accK,16)}, {v(FA[ks],4)}, {v(FB[ks],4)}, {v(accK,16)}")
    def cpair(dw, x, y):
        a(f"v_cvt_pk_bf16_f32 v{Cr+dw}, v{x}, v{y}")
        a(f"v_cvt_pk_bf16_f32 v{Ci+dw}, -v{x+1}, -v{y+1}")
    if ENV("XKG", 0): a("s_branch KG_after")
    a.label("KG_loop")
    a.flush_hist()
    _a = a
    if ENV("XKW", 0) or ENV("XKM", 0) or ENV("XKR", 0):
        class Filt:
            def __call__(self, t):
                if ENV("XKW", 0) and t.startswith("ds_write"): return
                if ENV("XKR", 0) and t.startswith("ds_read"): return
                if ENV("XKM", 0) and t.startswith("v_mfma"): return
                _a(t)
            def __getattr__(self, n): return getattr(_a, n)
        a = Filt()
    p0 = P[0]
    for i in range(4): a(f"v_lshlrev_b32 v{p0[i]}, 16, v{p0[i]}")
    a(f"v_lshlrev_b32 v{V}, 16, v{p0[4]}")
    a(f"v_lshlrev_b32 v{V+1}, 16, v{p0[5]}")
    a(f"v_mul_f32 v{p0[0]}, v{vdt}, v{p0[0]}")
    a(f"v_mul_f32 v{p0[1]}, v{vdt}, v{p0[1]}")
    a(f"v_mul_f32 v{T2}, v{vdt}, v{p0[2]}")
    a(f"v_mul_f32 v{T2+1}, v{vdt}, v{p0[3]}")
    a(f"v_mul_f32 v{a2b}, {f32(LOG2E)}, v{p0[0]}")
    a(f"v_mul_f32 v{a2b+1}, {f32(1.0/(2*math.pi))}, v{p0[1]}")
    cmul(W, V, T2)
    cexp(l8, 8); cexp(l1, 1); cexp(l256, 256)
    if STAMPS: a("s_memtime s[18:19]")
    a("s_waitcnt lgkmcnt(0)")
    if STAMPS:
        a(f"s_cmp_eq_u32 s{sCnt}, 1")
        a("s_cselect_b32 s82, s18, s82")
        a(f"s_cmp_eq_u32 s{sCnt}, 2")
        a("s_cselect_b32 s84, s18, s84")
    a(f"v_cvt_pk_bf16_f32 v{Qr[0]}, 1.0, v{l8}")
    a(f"v_cvt_pk_bf16_f32 v{Qi[0]}, 0, v{l8+1}")
    cur = l8
    for f in range(2, 32, 2):
        if f // 2 - 1 < 8:
            ks = f // 2 - 1
            a(f"v_mfma_f32_32x32x16_bf16 {v(accK,16)}, {v(FA[ks],4)}, {v(FB[ks],4)}, {v(accK,16)}")
        cmul(E0, cur, l8); cmul(E1, E0, l8); cur = E1
        g, dw = f // 8, (f % 8) // 2
        a(f"v_cvt_pk_bf16_f32 v{Qr[g%2]+dw}, v{E0}, v{E1}")
        a(f"v_cvt_pk_bf16_f32 v{Qi[g%2]+dw}, v{E0+1}, v{E1+1}")
        if dw == 3:
            a(f"ds_write_b128 v{vwr}, {v(Qr[g%2],4)} offset:{16*g}")
            a(f"ds_write_b128 v{vwr}, {v(Qi[g%2],4)} offset:{64+16*g}")
    cmul(E0, W, l1); cpair(0, W, E0)
    cmul(G2, E0, l1); cmul(E0, G2, l1); cpair(1, G2, E0)
    cmul(G4, E0, l1); cmul(E0, G4, l1); cpair(4, G4, E0)
    cmul(G6, E0, l1); cmul(E0, G6, l1); cpair(5, G6, E0)
    cmul(E0, G2, l256); cmul(E1, G6, l256); cpair(3, E0, E1)
    cmul(E0, G4, l256); cmul(E1, E0, l256); cpair(7, E0, E1)
    cmul(E0, E1, l256); cpair(11, E0, E0)
    cur = W
    dwv = {1: 2, 2: 6, 3: 10, 4: 8, 5: 9, 6: 12, 7: 14}
    for j in range(1, 8):
        nx = [E0, E2][j % 2]
        cmul(nx, cur, l256); cmul(E1, nx, l8); cpair(dwv[j], nx, E1); cur = nx
        if j in (1, 2):
            g = j - 1
            a(f"ds_write_b128 v{vwr}, {v(Cr+4*g,4)} offset:{128+16*g}")
            a(f"ds_write_b128 v{vwr}, {v(Ci+4*g,4)} offset:{192+16*g}")
        if j in (5, 7):
            g = {5: 2, 7: 3}[j]
            a(f"ds_write_b128 v{vwr}, {v(Cr+4*g,4)} offset:{128+16*g}")
            a(f"ds_write_b128 v{vwr}, {v(Ci+4*g,4)} offset:{192+16*g}")
    for ks in range(8):
        o = (16 * (ks >> 1) + 2 * (ks & 1)) * KG_S
        a(f"ds_read_b64_tr_b16 {v(FA[ks],2)}, v{vrd} offset:{o+128}")
        a(f"ds_read_b64_tr_b16 {v(FA[ks]+2,2)}, v{vrd} offset:{o+192}")
        a(f"ds_read_b64_tr_b16 {v(FB[ks],2)}, v{vrd} offset:{o}")
        a(f"ds_read_b64_tr_b16 {v(FB[ks]+2,2)}, v{vrd} offset:{o+64}")
    for i in range(6):
        a(f"v_mov_b32 v{P[0][i]}, v{P[1][i]}")
        a(f"v_mov_b32 v{P[1][i]}, v{P[2][i]}")
    a(f"s_cmp_eq_u32 s{sCnt}, 0")
    a(f"s_cselect_b32 s{sT}, 0, -1")
    for i in range(16): a(f"v_and_b32 v{accK+i}, s{sT}, v{accK+i}")
    if STAMPS and 0:
        a("s_memtime s[18:19]")
        a("s_waitcnt lgkmcnt(0)")
        a(f"s_cmp_eq_u32 s{sCnt}, 0")
        a("s_cselect_b32 s82, s18, s82")
        a(f"s_cmp_eq_u32 s{sCnt}, 1")
        a("s_cselect_b32 s84, s18, s84")
    a(f"s_add_u32 s{sCnt}, s{sCnt}, 1")
    a(f"s_cmp_lt_u32 s{sCnt}, 3")
    a("s_cbranch_scc1 KG_loop")
    a = _a
    a.label("KG_after")
    stamp(a, 2)
    a(f"buffer_load_dword v{vtok}, v{vzero}, s[{sDBG}:{sDBG+3}], 0 offen sc1")
    vJa = P[0][0]; vJb = P[0][1]; u0 = P[0][2]; u1 = P[0][3]
    a(f"v_and_b32 v{t0}, 31, v{lane}")
    a(f"v_lshlrev_b32 v{t0}, 4, v{t0}")
    a(f"v_lshrrev_b32 v{t1}, 5, v{lane}")
    a(f"v_lshl_add_u32 v{t2}, v{t1}, 9, v{t0}")
    a(f"s_add_u32 s{sT}, s{sBase}, 1008")
    a(f"v_sub_u32 v{vJa}, s{sT}, v{t2}")
    a(f"v_lshlrev_b32 v{t2}, 10, v{t1}")
    a(f"v_sub_u32 v{t2}, v{t2}, v{t0}")
    a(f"s_add_u32 s{sT}, s{sBase}, 496")
    a(f"v_add_u32 v{vJb}, s{sT}, v{t2}")
    Z = Qr[0]
    for i in range(4): a(f"v_mov_b32 v{Z+i}, 0")
    a(f"v_lshrrev_b32 v{u0}, 2, v{lane}")
    a(f"v_mul_u32_u24 v{u0}, {CV_S}, v{u0}")
    a(f"v_and_b32 v{u1}, 3, v{lane}")
    a(f"v_lshl_add_u32 v{u0}, v{u1}, 4, v{u0}")
    a(f"v_add_u32 v{u0}, s{sBase}, v{u0}")
    a("s_mov_b32 s18, 0xaaaaaaaa"); a("s_mov_b32 s19, 0xaaaaaaaa")
    a("s_waitcnt lgkmcnt(0)")
    mfmas()
    a("s_mov_b64 exec, 0xffff")
    a(f"ds_write_b128 v{u0}, {v(Z,4)} offset:4096")
    a("s_mov_b64 exec, -1")
    O = [Cr, Cr + 8, Ci, Ci + 8]
    ac = lambda i: accK + i
    def cv(d, lo_, hi_): a(f"v_cvt_pk_bf16_f32 v{d}, v{lo_}, v{hi_}")
    def seg3(o, e0, e1):
        a(f"v_cndmask_b32 v{t0}, v{e0}, v{e1}, s[18:19]")
        cv(o, e1, e1); cv(o + 1, e1, t0); cv(o + 2, e0, e0); cv(o + 3, e0, e0)
    def seg2(o, e0, e1, e2):
        cv(o, e2, e2); cv(o + 1, e1, e1); cv(o + 2, e1, e0); cv(o + 3, e0, e0)
    seg3(O[3], ac(12), ac(13))
    a(f"v_lshlrev_b32 v{vdk[0]}, 16, v{vdk[0]}")
    a("s_mov_b64 exec, 1")
    a(f"v_add_f32 v{ac(0)}, v{ac(0)}, v{vdk[0]}")
    a("s_mov_b32 exec_lo, -1")
    for m in range(4): cv(O[0] + m, ac(7 - 2*m), ac(6 - 2*m))
    seg3(O[1], ac(8), ac(9)); seg3(O[2], ac(10), ac(11))
    a("s_mov_b32 exec_hi, -1")
    a("s_mov_b32 exec_lo, 0")
    cv(O[0], ac(1), ac(3)); cv(O[0] + 1, ac(6), ac(6)); cv(O[0] + 2, ac(6), ac(2)); cv(O[0] + 3, ac(0), ac(0))
    seg2(O[1], ac(4), ac(7), ac(5)); seg2(O[2], ac(8), ac(10), ac(9))
    a("s_mov_b32 exec_lo, -1")
    adr = [(vJa, 3072), (vJb, 1536), (vJb, 1024), (vJa, 0)]
    for p in range(4):
        a(f"ds_write_b128 v{adr[p][0]}, {v(O[p],4)} offset:{adr[p][1]}")
    for p in range(4):
        a(f"ds_read_b64 {v(O[p]+4,2)}, v{adr[p][0]} offset:{adr[p][1]+16}")
    stamp(a, 11)
    a("s_waitcnt vmcnt(0)")
    check_token(a, vtok, vzero)
    a("s_waitcnt lgkmcnt(0)")
    for p in range(4):
        Kt = [FA[(3*p + c) % 8] for c in range(3)]
        kin = O[p]
        for k in range(4): a(f"v_alignbyte_b32 v{Kt[0]+k}, v{kin+k+1}, v{kin+k}, 2")
        for k in range(4): a(f"v_mov_b32 v{Kt[1]+k}, v{kin+k+1}")
        for k in range(4): a(f"v_alignbyte_b32 v{Kt[2]+k}, v{kin+k+2}, v{kin+k+1}, 2")
        for c in range(3): a(f"ds_write_b128 v{adr[p][0]}, {v(Kt[c],4)} offset:{adr[p][1] + (c+1)*CV_S}")
    a("s_branch S_join")
    hi = R.hi

    a.label("S_w2t"); a.flush_hist()
    toks = {}
    a("s_waitcnt lgkmcnt(0)")
    a(f"v_mov_b32 v{vtok}, 0")
    check_token(a, vtok, vzero, sleep=32)
    a("s_branch S_join")

    a.label("S_ln"); a.flush_hist()
    R.reset(base)
    voff = R(); vlw = R(); vtr = R()
    Xr = [R(4, 4) for _ in range(10)]
    U = [R(2, 2) for _ in range(40)]
    sm = R(2, 2); mb = R(2, 2); rs = R(2, 2); T = [R(2, 2) for _ in range(4)]; gr = R(2, 2)
    ones = R()
    O = [R(4, 4) for _ in range(4)]
    a(f"s_load_dwordx2 s[{sX_}:{sX_+1}], s[0:1], 0")
    a("s_memrealtime s[18:19]")
    srd(a, sX_, L * D * 2)
    a(f"v_lshrrev_b32 v{t0}, 3, v{lane}")
    a(f"v_and_b32 v{t1}, 7, v{lane}")
    a(f"v_lshlrev_b32 v{t1}, 4, v{t1}")
    a(f"v_mul_u32_u24 v{voff}, 1280, v{t0}")
    a(f"v_add_u32 v{voff}, v{voff}, v{t1}")
    a(f"v_mul_u32_u24 v{vlw}, {LN_S}, v{t0}")
    a(f"v_add_u32 v{vlw}, v{vlw}, v{t1}")
    a(f"v_add_u32 v{vlw}, {LN_OFF}, v{vlw}")
    a(f"s_lshl_b32 s{sT3}, s{sXc}, 5")
    a(f"s_add_u32 s{sT3}, s{sT3}, s{sA}")
    a(f"s_mul_i32 s{sT}, s{sT3}, {8*1280}")
    a("s_waitcnt lgkmcnt(0)")
    a(f"s_cmp_ge_u32 s2, 8")
    a("s_cbranch_scc1 S_ln_nt")
    a("s_or_b32 s18, s18, 1")
    a(f"v_mov_b32 v{gr}, s18")
    a(f"v_mov_b32 v{gr+1}, 0")
    a("s_mov_b64 exec, 1")
    a(f"buffer_atomic_cmpswap {v(gr,2)}, v{vzero}, s[{sDBG}:{sDBG+3}], 0 offen"); a.vm -= 1
    a("s_mov_b64 exec, -1")
    a.label("S_ln_nt")
    for i in range(10):
        a(f"buffer_load_dwordx4 {v(Xr[i],4)}, v{voff}, s[{sX_}:{sX_+3}], s{sT} offen offset:{128*i}")
    a(f"v_mov_b32 v{ones}, 0x3f803f80")
    a(f"v_mov_b32 v{sm}, 0")
    a("s_waitcnt vmcnt(0)")
    stamp(a, 1)
    a(f"buffer_load_dword v{vtok}, v{vzero}, s[{sDBG}:{sDBG+3}], 0 offen sc1")
    for i in range(40):
        a(f"v_dot2_f32_bf16 v{sm}, v{Xr[i//4] + i%4}, v{ones}, v{sm}")
    def red8(r_):
        a(f"v_add_f32_dpp v{r_}, v{r_}, v{r_} quad_perm:[1,0,3,2] row_mask:0xf bank_mask:0xf")
        a(f"v_add_f32_dpp v{r_}, v{r_}, v{r_} quad_perm:[2,3,0,1] row_mask:0xf bank_mask:0xf")
        a(f"v_add_f32_dpp v{r_}, v{r_}, v{r_} row_half_mirror row_mask:0xf bank_mask:0xf")
    for i in range(40):
        x = Xr[i//4] + i % 4
        a(f"v_lshlrev_b32 v{U[i]}, 16, v{x}")
        a(f"v_and_b32 v{U[i]+1}, 0xffff0000, v{x}")
    red8(sm)
    a(f"v_mul_f32 v{sm}, {f32(1.0/D)}, v{sm}")
    bf16r(a, mb, sm)
    a(f"v_mov_b32 v{rs}, 0"); a(f"v_mov_b32 v{rs+1}, 0")
    for i in range(40):
        if ENV("LPK", 0):
            a(f"v_pk_add_f32 {v(U[i],2)}, {v(U[i],2)}, {v(mb,2)} op_sel_hi:[1,0] neg_lo:[0,1] neg_hi:[0,1]")
            a(f"v_pk_fma_f32 {v(rs,2)}, {v(U[i],2)}, {v(U[i],2)}, {v(rs,2)}")
        else:
            for h in range(2):
                a(f"v_sub_f32 v{U[i]+h}, v{U[i]+h}, v{mb}")
                a(f"v_fmac_f32 v{rs+h}, v{U[i]+h}, v{U[i]+h}")
    a(f"v_add_f32 v{rs}, v{rs}, v{rs+1}")
    red8(rs)
    a(f"v_sub_f32 v{t0}, v{sm}, v{mb}")
    a(f"v_mul_f32 v{t0}, v{t0}, v{t0}")
    a(f"v_mul_f32 v{rs}, {f32(1.0/D)}, v{rs}")
    a(f"v_sub_f32 v{rs}, v{rs}, v{t0}")
    a(f"v_max_f32 v{rs}, 0, v{rs}")
    bf16r(a, rs, rs)
    a(f"v_add_f32 v{rs}, {f32(1e-5)}, v{rs}")
    bf16r(a, rs, rs)
    a(f"v_sqrt_f32 v{rs}, v{rs}")
    a(f"v_cvt_pk_bf16_f32 v{gr}, v{mb}, v{rs}")
    a(f"v_and_b32 v{rs}, 0xffff0000, v{gr}")
    a(f"v_rcp_f32 v{rs}, v{rs}")
    for i in range(40):
        x = Xr[i//4] + i % 4
        if ENV("LPK", 0): a(f"v_pk_mul_f32 {v(U[i],2)}, {v(U[i],2)}, {v(rs,2)} op_sel_hi:[1,0]")
        else:
            for h in range(2): a(f"v_mul_f32 v{U[i]+h}, v{U[i]+h}, v{rs}")
        a(f"v_cvt_pk_bf16_f32 v{x}, v{U[i]}, v{U[i]+1}")
        if i % 4 == 3:
            a(f"ds_write_b128 v{vlw}, {v(Xr[i//4],4)} offset:{128*(i//4)}")
    a(f"v_bfe_u32 v{t1}, v{lane}, 2, 2")
    a(f"v_mul_u32_u24 v{t1}, {LN_S}, v{t1}")
    a(f"v_lshrrev_b32 v{t0}, 4, v{lane}")
    a(f"v_lshl_add_u32 v{t1}, v{t0}, 5, v{t1}")
    a(f"v_and_b32 v{t2}, 3, v{lane}")
    a(f"v_lshl_add_u32 v{t1}, v{t2}, 3, v{t1}")
    a(f"v_add_u32 v{vtr}, {LN_OFF}, v{t1}")
    a(f"s_mul_i32 s{sT}, s{sT3}, 10240")
    def rd(i):
        o = O[i % 4]
        for e in range(2):
            a(f"ds_read_b64_tr_b16 {v(o+2*e,2)}, v{vtr} offset:{128*i + 4*e*LN_S}")
        toks[i] = a.ltok()
    for i in range(3): rd(i)
    for i in range(10):
        if i + 3 < 10: rd(i + 3)
        a.wait(lg=toks[i])
        a(f"buffer_store_dwordx4 {v(O[i%4],4)}, v{v16}, s[{sWS}:{sWS+3}], s{sT} offen sc1")
        a(f"s_add_u32 s{sT}, s{sT}, 1024")
    a("s_waitcnt vmcnt(10)")
    check_token(a, vtok, vzero)
    a(f"v_mov_b32 v{gr+1}, s{sTok}")
    a(f"s_lshl_b32 s{sT}, s{sT3}, 7")
    a(f"s_add_u32 s{sT2}, s{sT}, {WS_STAT}")
    a("s_mov_b32 exec_lo, 0x01010101"); a("s_mov_b32 exec_hi, 0x01010101")
    a(f"buffer_store_dwordx2 {v(gr,2)}, v{lane}, s[{sWS}:{sWS+3}], s{sT2} offen sc1")
    a(f"s_add_u32 s{sT}, s{sT}, {WS_FLN}")
    a("s_waitcnt vmcnt(0)")
    a("s_mov_b64 exec, 1")
    a(f"buffer_store_dword v{gr+1}, v{vzero}, s[{sWS}:{sWS+3}], s{sT} offen sc1")
    a("s_mov_b64 exec, -1")
    stamp(a, 2)
    if ONLY: a("s_branch S_end")
    a(f"v_mul_u32_u24 v{t0}, 10240, v{lane}")
    a(f"v_lshlrev_b32 v{t1}, 7, v{lane}")
    a(f"s_cmp_eq_u32 s{sHeavy}, 0")
    a(f"s_cselect_b32 s{sCnt}, s{sD[0]}, s{sD[2]}")
    if ENV("UPF", 0):
        a(f"s_lshl_b32 s{sT3}, s{sA}, 10")
        a(f"s_add_u32 s{sT3}, s{sT3}, {WS_FLN}")
        a(f"v_mov_b32 v{O[1]}, s{sTok}")
        ldu = lambda: a(f"buffer_load_dword v{O[1]}, v{t1}, s[{sWS}:{sWS+3}], s{sT3} offen sc1")
        a("s_mov_b64 exec, 0xff"); a(f"v_mov_b32 v{O[1]}, 0"); a("s_mov_b64 exec, -1")
        a(f"v_lshrrev_b32 v{t2}, 3, v{lane}")
        a(f"v_mul_u32_u24 v{t2}, 10240, v{t2}")
        a(f"v_and_b32 v{t3}, 7, v{lane}")
        a(f"v_lshl_add_u32 v{t2}, v{t3}, 7, v{t2}")
        a("s_waitcnt vmcnt(0)")
        check_flags(a, [O[1]], t1, ldu, sleep=ENV("USL1", 12))
        a(f"s_mul_i32 s{sT}, s{sA}, {8*10240}")
        a(f"s_lshl_b32 s{sT2}, s{sXc}, 10")
        a(f"s_add_u32 s{sT2}, s{sT2}, s{sT}")
        for q_ in range(4):
            m_ = 0xffff << (16 * q_)
            a(f"s_mov_b32 exec_lo, {hex(m_ & 0xffffffff)}"); a(f"s_mov_b32 exec_hi, {hex(m_ >> 32)}")
            a(f"buffer_load_dword v{O[1]+1}, v{t2}, s[{sWS}:{sWS+3}], s{sT2} offen sc1")
            if q_ % 2: a("s_waitcnt vmcnt(0)")
        a(f"s_lshl_b32 s{sT2}, s{sXc}, 8")
        a(f"s_add_u32 s{sT2}, s{sT2}, s{sT}")
        a(f"s_add_u32 s{sT2}, s{sT2}, 8192")
        a("s_mov_b32 exec_lo, 0x03030303"); a("s_mov_b32 exec_hi, 0x03030303")
        a(f"buffer_load_dword v{O[1]+1}, v{t2}, s[{sWS}:{sWS+3}], s{sT2} offen sc1")
        a("s_mov_b64 exec, -1")
        stamp(a, 11)
    a(f"s_lshl_b32 s{sT3}, s2, 7")
    a(f"s_add_u32 s{sT3}, s{sT3}, {WS_FPACE}")
    a(f"s_mov_b32 s{sSpin}, 0")
    a("s_mov_b64 exec, 1")
    a.label("S_pace")
    a(f"s_sleep {ENV('PSLEEP', 8)}")
    a(f"buffer_load_dword v{t2}, v{vzero}, s[{sWS}:{sWS+3}], s{sT3} offen sc1")
    a("s_waitcnt vmcnt(0)")
    a(f"v_readfirstlane_b32 s{sT}, v{t2}")
    a(f"s_cmp_eq_u32 s{sT}, s{sTok}")
    a("s_cbranch_scc1 S_paced")
    a(f"s_add_u32 s{sSpin}, s{sSpin}, 1")
    a(f"s_cmp_lt_u32 s{sSpin}, {ENV('PMAX', 24)}")
    a("s_cbranch_scc1 S_pace")
    a.label("S_paced")
    a("s_mov_b64 exec, -1")
    stamp(a, 10)
    for g in range(4):
        a(f"s_mov_b32 s{sT3}, {WS_FLN + 8192*g}")
        a(f"buffer_load_dword v{O[0]+g}, v{t1}, s[{sWS}:{sWS+3}], s{sT3} offen sc1")
    a("s_waitcnt vmcnt(0)")
    for g in range(4):
        a(f"s_mov_b32 s{sT3}, {WS_FLN + 8192*g}")
        ldf = lambda: a(f"buffer_load_dword v{O[0]+g}, v{t1}, s[{sWS}:{sWS+3}], s{sT3} offen sc1")
        check_flags(a, [O[0] + g], t1, ldf, sleep=ENV("LNSLEEP", 6))
    stamp(a, 9)
    Uq_ = [U[0] + 4 * i for i in range(12)]
    assert U[0] % 4 == 0
    a(f"v_lshrrev_b32 v{t1}, 1, v{lane}")
    a(f"v_and_b32 v{t3}, 1, v{lane}")
    a(f"v_mul_u32_u24 v{t2}, 10240, v{t1}")
    a(f"v_lshl_add_u32 v{t2}, v{t3}, 4, v{t2}")
    a(f"v_mul_u32_u24 v{t3}, 4608, v{t3}")
    a(f"v_lshl_add_u32 v{t3}, v{t1}, 4, v{t3}")
    a(f"s_lshl_b32 s{sT}, s{sD[0]}, 4")
    for g in range(8):
        if g: a(f"s_add_u32 s{sT}, s{sT}, {32*10240}")
        a(f"buffer_load_dwordx4 {v(Uq_[g],4)}, v{t2}, s[{sWS}:{sWS+3}], s{sT} offen sc1")
    a(f"s_cmp_eq_u32 s{sHeavy}, 0")
    a("s_cbranch_scc1 S_g2")
    a(f"s_lshl_b32 s{sT}, s{sD[2]}, 4")
    for g in range(4):
        if g: a(f"s_add_u32 s{sT}, s{sT}, {64*10240}")
        a(f"buffer_load_dwordx4 {v(Uq_[8+g],4)}, v{t0}, s[{sWS}:{sWS+3}], s{sT} offen sc1")
    a("s_waitcnt vmcnt(0)")
    for g in range(4):
        a(f"ds_write_b128 v{v16}, {v(Uq_[8+g],4)} offset:{CV_U[2] + 1024*g}")
    a.label("S_g2")
    for g in range(8):
        a(f"s_waitcnt vmcnt({7-g})")
        a(f"ds_write_b128 v{t3}, {v(Uq_[g],4)} offset:{CV_U[0] + 512*g}")
    stamp(a, 4)
    hi = max(hi, R.hi)

    a.label("S_join"); a.flush_hist()
    if ONLY: a("s_branch S_end")
    if ENV("SPRIO", 0): a(f"s_setprio {ENV('SPRIO', 0)}")
    stamp(a, 3)
    R.reset(base)
    acc = [R(4, 4) for _ in range(8)]
    FA = [[R(4, 4) for _ in range(8)] for _ in range(2)]
    FB = [[R(4, 4) for _ in range(8)] for _ in range(2)]
    vA = R(); vBq = R(); vA0 = R(); vB0 = R(); vrw = R(); vrr = R(); vfl = R(); vfa = R(); vtk = R()
    a(f"s_and_b32 s{sPar}, s{sWave}, 1")
    Z = FB[0][3]
    for i in range(4): a(f"v_mov_b32 v{Z+i}, 0")
    a(f"s_min_u32 s{sT}, s{sWave}, 2")
    a(f"s_mul_i32 s{sT}, s{sT}, 4608")
    a(f"v_add_u32 v{t2}, s{sT}, v{v16}")
    a("s_mov_b32 exec_hi, 0")
    a(f"ds_write_b128 v{t2}, {v(Z,4)} offset:{CV_U[0]-512}")
    a("s_mov_b32 exec_hi, -1")
    a(f"v_and_b32 v{t0}, 15, v{lane}")
    a(f"v_sub_u32 v{t2}, 15, v{t0}")
    a(f"v_and_b32 v{t3}, 3, v{t2}")
    a(f"v_sub_u32 v{t2}, v{t2}, v{t3}")
    a(f"v_mul_u32_u24 v{t3}, {CV_S}, v{t3}")
    a(f"v_lshl_add_u32 v{t3}, v{t2}, 1, v{t3}")
    a(f"v_lshrrev_b32 v{t2}, 4, v{lane}")
    a(f"v_lshl_add_u32 v{vA0}, v{t2}, 4, v{t3}")
    a(f"v_lshlrev_b32 v{t3}, 4, v{t2}")
    a(f"v_lshl_add_u32 v{vB0}, v{t0}, 5, v{t3}")
    a(f"v_lshrrev_b32 v{t3}, 1, v{t2}")
    a(f"v_lshlrev_b32 v{t3}, 3, v{t3}")
    a(f"v_xor_b32 v{t3}, v{t3}, v{t0}")
    a(f"v_lshlrev_b32 v{t3}, 4, v{t3}")
    a(f"v_lshl_add_u32 v{t3}, v{t2}, 8, v{t3}")
    a(f"s_lshl_b32 s{sT}, s{sWave}, 13")
    a(f"v_add_u32 v{vrw}, s{sT}, v{t3}")
    a(f"v_bfe_u32 v{t0}, v{lane}, 1, 4")
    a(f"v_and_b32 v{t2}, 1, v{lane}")
    a(f"v_lshlrev_b32 v{t3}, 3, v{t2}")
    a(f"v_xor_b32 v{t0}, v{t0}, v{t3}")
    a(f"v_lshlrev_b32 v{t0}, 4, v{t0}")
    a(f"v_lshl_add_u32 v{t0}, v{t2}, 9, v{t0}")
    a(f"v_lshrrev_b32 v{t2}, 5, v{lane}")
    a(f"v_lshl_add_u32 v{vrr}, v{t2}, 10, v{t0}")
    a(f"v_mov_b32 v{vtk}, s{sTok}")
    a(f"s_mul_i32 s{sT}, s{sSlot}, {CH_REG}")
    a(f"s_lshl_b32 s{sT2}, s{sPar}, 8")
    a(f"s_sub_u32 s{sT}, s{sT}, s{sT2}")
    a(f"s_add_u32 s{sT}, s{sT}, {32*14}")
    a(f"v_add_u32 v{vA}, s{sT}, v{vA0}")
    a(f"s_mul_i32 s{sT}, s{sSlot}, 4608")
    a(f"s_sub_u32 s{sT}, s{sT}, s{sT2}")
    a(f"s_add_u32 s{sT}, s{sT}, {CV_U[0] - 512 + 32*15}")
    a(f"v_add_u32 v{vBq}, s{sT}, v{vB0}")
    sDa, sDb, sJa, sJb = 20, 21, 22, 23
    a(f"s_lshl_b32 s{sT3}, s{sWave}, 7")
    a(f"s_sub_u32 s{sJb}, s{sT}, 192")
    a(f"s_sub_u32 s{sJb}, s{sJb}, {CV_U[2] - 512 + 32*15}")
    a(f"s_add_u32 s{sJb}, s{sJb}, s{sT3}")
    a(f"s_mul_i32 s{sJa}, s{sSlot}, {CH_REG}")
    a(f"s_sub_u32 s{sJa}, s{sJa}, s{sT2}")
    a(f"s_sub_u32 s{sJa}, s{sJa}, {192 + 2*CH_REG}")
    a(f"s_add_u32 s{sJa}, s{sJa}, s{sT3}")
    acc1 = [R(4, 4) for _ in range(8)]
    for c in range(8):
        for i in range(4):
            a(f"v_mov_b32 v{acc[c]+i}, 0"); a(f"v_mov_b32 v{acc1[c]+i}, 0")
    a(f"s_mov_b32 s{sCnt}, 0")
    a(f"s_add_u32 s{sRound}, s{sHeavy}, 2")
    a("s_waitcnt vmcnt(0) lgkmcnt(0)")
    a("s_barrier")
    stamp(a, 5)

    def rdlist(st, da="64", db="64"):
        rd_ = []
        for j in range(8):
            rd_.append(f"ds_read_b128 {v(FB[st][j],4)}, v{vBq} offset:{512*j}")
            rd_.append(f"ds_read_b64 {v(FA[st][j],2)}, v{vA} offset:{512*(7-j)}")
            rd_.append(f"ds_read_b64 {v(FA[st][j]+2,2)}, v{vA} offset:{512*(7-j)+8}")
        rd_.append(f"v_subrev_u32 v{vA}, {da}, v{vA}")
        rd_.append(f"v_subrev_u32 v{vBq}, {db}, v{vBq}")
        return rd_
    def group(st, nxt, da="64", db="64"):
        pairs = sorted([(c, j) for c in range(8) for j in range(c + 1)], key=lambda cj: (max(cj[1], cj[0] - cj[1]), cj[0]))
        rd_ = rdlist(nxt, da, db)
        for i, (c, j) in enumerate(pairs):
            a(f"v_mfma_f32_16x16x32_bf16 {v(acc[c],4)}, {v(FA[st][j],4)}, {v(FB[st][c-j],4)}, {v(acc[c],4)}")
            if i < len(rd_): a(rd_[i])
    for x in rdlist(0): a(x)
    a.label("CV_loop")
    a(f"s_cmp_eq_u32 s{sCnt}, 1")
    a(f"s_cselect_b32 s{sDa}, s{sJa}, 64")
    a(f"s_cselect_b32 s{sDb}, s{sJb}, 64")
    a("s_waitcnt lgkmcnt(0)")
    group(0, 1, f"s{sDa}", f"s{sDb}")
    a("s_waitcnt lgkmcnt(0)")
    group(1, 0)
    a(f"s_add_u32 s{sCnt}, s{sCnt}, 1")
    a(f"s_cmp_eq_u32 s{sCnt}, 1")
    a("s_cbranch_scc1 CV_loop")
    a(f"s_cmp_eq_u32 s{sCnt}, 3")
    a("s_cbranch_scc1 CV_done")
    for c in range(8):
        for i in range(4): a(f"v_swap_b32 v{acc[c]+i}, v{acc1[c]+i}")
    a(f"s_cmp_lg_u32 s{sHeavy}, 0")
    a("s_nop 0")
    a("s_cbranch_scc1 CV_loop")
    a.label("CV_done")
    a("s_nop 7")
    a("s_waitcnt lgkmcnt(0)")
    a("s_barrier")
    stamp(a, 6)
    for c in range(8):
        a(f"ds_write_b128 v{vrw}, {v(acc1[c],4)} offset:{1024*c}")
    a(f"s_cmp_eq_u32 s{sHeavy}, 0")
    a("s_cbranch_scc1 CV_w1")
    for c in range(8):
        a(f"ds_write_b128 v{vrw}, {v(acc[c],4)} offset:{32768 + 1024*c}")
    a.label("CV_w1")
    a(f"s_lshl_b32 s{sT}, s{sSlot}, 14")
    a(f"s_lshl_b32 s{sT2}, s{sPar}, 12")
    a(f"s_add_u32 s{sT}, s{sT}, s{sT2}")
    a(f"v_add_u32 v{t0}, s{sT}, v{vrr}")
    a(f"s_lshl_b32 s{sT}, s{sWave}, 11")
    a(f"v_add_u32 v{t1}, s{sT}, v{vrr}")
    a(f"s_add_u32 s{sT}, s{sD[0]}, s{sSlot}")
    a(f"s_lshl_b32 s{sT3}, s{sT}, 12")
    a(f"s_lshl_b32 s{sT2}, s{sPar}, 11")
    a(f"s_add_u32 s{sT3}, s{sT3}, s{sT2}")
    a(f"s_add_u32 s{sT3}, s{sT3}, {WS_ST}")
    a(f"s_lshl_b32 s{sT}, s{sT}, 7")
    a(f"s_lshl_b32 s{sT2}, s{sPar}, 3")
    a(f"s_add_u32 s{sT}, s{sT}, s{sT2}")
    a(f"s_add_u32 s{sJa}, s{sT}, {WS_FST}")
    a(f"v_lshlrev_b32 v{t2}, 2, v{lane}")
    a("s_waitcnt lgkmcnt(0)")
    a("s_barrier")
    stamp(a, 7)
    Rd = FA[1]; Re = FA[0]
    for b in range(2):
        for p in range(2):
            for e in range(2):
                a(f"ds_read_b128 {v(Rd[(b*2+p)*2+e],4)}, v{t0} offset:{8192*p + 2048*b + 256*e}")
    for p in range(4):
        for e in range(2):
            a(f"ds_read_b128 {v(Re[p*2+e],4)}, v{t1} offset:{32768 + 8192*p + 256*e}")
    def finish(Rr, bs, npart, o):
        for p in range(1, npart):
            for e in range(2):
                for z in range(4):
                    a(f"v_add_f32 v{Rr[bs+e]+z}, v{Rr[bs+e]+z}, v{Rr[bs+2*p+e]+z}")
        for m in range(4):
            y = Rr[bs + m // 2] + 2 * (m % 2)
            a(f"v_cvt_pk_bf16_f32 v{o+m}, v{y}, v{y+1}")
    for b in range(2):
        a(f"s_waitcnt lgkmcnt({12 - 4*b})")
        finish(Rd, 4 * b, 2, FB[1][b])
        a(f"buffer_store_dwordx4 {v(FB[1][b],4)}, v{v16}, s[{sWS}:{sWS+3}], s{sT3} offen offset:{1024*b} sc1")
    a(f"s_cmp_eq_u32 s{sHeavy}, 0")
    a("s_cbranch_scc1 CV_f1")
    a(f"s_lshl_b32 s{sT3}, s{sWave}, 10")
    a(f"s_lshl_b32 s{sT}, s{sD[2]}, 12")
    a(f"s_add_u32 s{sT2}, s{sT3}, s{sT}")
    a(f"s_add_u32 s{sT2}, s{sT2}, {WS_ST}")
    a("s_waitcnt lgkmcnt(0)")
    finish(Re, 0, 4, FB[1][2])
    a(f"buffer_store_dwordx4 {v(FB[1][2],4)}, v{v16}, s[{sWS}:{sWS+3}], s{sT2} offen sc1")
    a(f"s_lshl_b32 s{sT}, s{sD[2]}, 7")
    a(f"s_lshl_b32 s{sT2}, s{sWave}, 2")
    a(f"s_add_u32 s{sT}, s{sT}, s{sT2}")
    a(f"s_add_u32 s{sT}, s{sT}, {WS_FST}")
    a("s_waitcnt vmcnt(0)")
    a("s_mov_b64 exec, 1")
    a(f"buffer_store_dword v{vtk}, v{vzero}, s[{sWS}:{sWS+3}], s{sT} offen sc1")
    a("s_branch CV_f2")
    a.label("CV_f1")
    a("s_waitcnt vmcnt(0)")
    a.label("CV_f2")
    a("s_mov_b64 exec, 3")
    a(f"buffer_store_dword v{vtk}, v{t2}, s[{sWS}:{sWS+3}], s{sJa} offen sc1")
    a.label("S_end")
    stamp_end(a, sWave)
    return max(hi, R.hi)

W_SLOT = 12288
X_OFF = 3 * W_SLOT
X_WAVE = 11264
NXU = 5
def g_role(a):
    sX, sW1, sB1, sOUT, sW2 = 20, 24, 28, 32, 52
    sRB, sCB, sTB, sJD, sId = 36, 37, 38, 39, 3
    sP = [40, 41, 42]
    sWoff, sXoff, sM0w, sM0x, sOA, sOB = 43, 44, 45, 46, 47, 48
    R = Alloc(1)
    lane = R(); t0 = R(); t1 = R(); t2 = R(); t3 = R(); vzero = R(); vtok = R(); v16 = R(); vfa = R()
    vfl = R(); vsa = R()
    NWR = 25
    NWI = 18
    WR = [R(4, 4) for _ in range(NWR)]
    base2 = pool = R.mark()
    R.reset(184)
    acc = [[R(4, 4) for ct in range(2)] for rt in range(6)]
    cs = [R(4, 4) for _ in range(2)]
    st = [R(2, 2) for _ in range(2)]
    b1p = [R(2, 2) for _ in range(6)]
    R.reset(WR[NWI]); R.limit = 184
    A = [[R(4, 4) for rt in range(6)] for _ in range(2)]
    X = [[[R(4, 4) for ct in range(2)] for e in range(2)] for _ in range(2)]
    ones = R(4, 4)
    vE = [R() for _ in range(3)]; vO = [R() for _ in range(3)]
    vW = [R() for _ in range(3)]; vXs = [R(), R()]; vXr = [R(), R()]
    vpf = R(); vpd = R()
    stamp_begin(a)
    if ENV("GPRIO", 0): a(f"s_setprio {ENV('GPRIO', 0)}")
    a(f"s_load_dwordx2 s[{sX}:{sX+1}], s[0:1], 0")
    a(f"s_load_dwordx2 s[{sW1}:{sW1+1}], s[0:1], 80")
    a(f"s_load_dwordx2 s[{sW2}:{sW2+1}], s[0:1], 96")
    a(f"v_lshrrev_b32 v{t0}, 6, v0")
    a(f"v_and_b32 v{lane}, 63, v0")
    a(f"v_readfirstlane_b32 s{sWave}, v{t0}")
    a(f"s_sub_u32 s{sId}, s2, 256")
    srd(a, sX, L * D * 2); srd(a, sW1, D * F * 2)
    pfx = A[1][0]; pfw = A[1][0] + 1
    a(f"s_lshr_b32 s{sT3}, s{sId}, 3")
    a(f"s_lshl_b32 s{sT3}, s{sT3}, 2")
    a(f"s_add_u32 s{sT3}, s{sT3}, s{sWave}")
    a(f"v_mul_u32_u24 v{t1}, 0xaaab, v{lane}")
    a(f"v_lshrrev_b32 v{t1}, 18, v{t1}")
    a(f"v_mul_u32_u24 v{t2}, 6, v{t1}")
    a(f"v_sub_u32 v{t2}, v{lane}, v{t2}")
    a(f"v_mul_u32_u24 v{t1}, {64*3072}, v{t1}")
    a(f"v_lshl_add_u32 v{t1}, v{t2}, 7, v{t1}")
    a(f"s_lshr_b32 s{sT2}, s{sT3}, 1")
    a(f"s_mul_i32 s{sT2}, s{sT2}, 3072")
    a(f"s_and_b32 s{sT}, s{sId}, 1")
    a(f"s_lshl_b32 s{sT}, s{sT}, 1")
    a(f"s_and_b32 s{sRB}, s{sT3}, 1")
    a(f"s_add_u32 s{sT}, s{sT}, s{sRB}")
    a(f"s_mul_i32 s{sT}, s{sT}, 768")
    a(f"s_add_u32 s{sT2}, s{sT2}, s{sT}")
    a(f"v_add_u32 v{pfw}, s{sT2}, v{t1}")
    XH = ENV("XHALF", 0)
    XR = 2 if XH else 4
    a(f"v_lshrrev_b32 v{t2}, {1 if XH else 2}, v{lane}")
    a(f"v_lshlrev_b32 v{t2}, 7, v{t2}")
    a(f"v_and_b32 v{t3}, {XR-1}, v{lane}")
    a(f"v_mul_u32_u24 v{t3}, 1280, v{t3}")
    a(f"v_add_u32 v{t2}, v{t2}, v{t3}")
    if XH:
        a(f"s_and_b32 s{sT}, s{sId}, 7")
        a(f"s_xor_b32 s{sT}, s{sT}, 1")
    else: a(f"s_bfe_u32 s{sT}, s{sId}, 0x20001")
    a(f"s_lshl_b32 s{sT}, s{sT}, 7")
    a(f"s_add_u32 s{sT}, s{sT}, s{sT3}")
    a(f"s_mul_i32 s{sT}, s{sT}, {XR*1280}")
    a(f"v_add_u32 v{pfx}, s{sT}, v{t2}")
    a("s_waitcnt lgkmcnt(0)")
    stamp(a, 1)
    def do_pf(c0, c1):
        def mask(lo, hi):
            m = ((1 << hi) - 1) & ~((1 << lo) - 1)
            a(f"s_mov_b32 exec_lo, {hex(m & 0xffffffff)}"); a(f"s_mov_b32 exec_hi, {hex(m >> 32)}")
        mask(XR * c0, XR * c1)
        a(f"buffer_load_dword v{vpd}, v{pfx}, s[{sX}:{sX+3}], 0 offen")
        mask(6 * c0, 6 * c1)
        a(f"buffer_load_dword v{vpd}, v{pfw}, s[{sW1}:{sW1+3}], 0 offen")
        a("s_mov_b64 exec, -1")
    PFA_ = ENV("PFSPLIT", 2)
    if not ENV("NOPFA", 0): do_pf(0, PFA_)
    if ENV("OWN", 0):
        m = (((1 << 60) - 1) & ~((1 << (6 * PFA_)) - 1))
        a(f"s_bfe_u32 s{sT}, s{sId}, 0x20001")
        a("s_mov_b32 s18, 0x11111111"); a("s_mov_b32 s19, 0x11111111")
        a(f"s_lshl_b64 s[18:19], s[18:19], s{sT}")
        a(f"s_and_b32 exec_lo, s18, {hex(m & 0xffffffff)}"); a(f"s_and_b32 exec_hi, s19, {hex(m >> 32)}")
        a(f"buffer_load_dword v{vpd}, v{pfw}, s[{sW1}:{sW1+3}], 0 offen")
        a("s_mov_b64 exec, -1")
    srd(a, sW2, F * D * 2)
    a(f"s_mul_i32 s{sT}, s{sT3}, {15*128}")
    a(f"v_lshl_add_u32 v{vpf}, v{lane}, 7, s{sT}")
    def op_pf2(j):
        def f():
            a(f"s_add_u32 s{sT2}, s{sId}, {j}")
            a(f"s_and_b32 s{sT2}, s{sT2}, 7")
            a(f"s_mul_i32 s{sT2}, s{sT2}, {128*15*128}")
            a("s_mov_b64 exec, 0x7fff")
            a(f"buffer_load_dword v{vpd}, v{vpf}, s[{sW2}:{sW2+3}], s{sT2} offen")
            a("s_mov_b64 exec, -1")
        return f
    if ENV("PF20", 4) == -2: op_pf2(0)()
    a(f"s_load_dwordx2 s[{sB1}:{sB1+1}], s[0:1], 88")
    a(f"s_load_dwordx2 s[{sWS}:{sWS+1}], s[0:1], 120")
    a(f"s_load_dwordx2 s[{sDBG}:{sDBG+1}], s[0:1], 112")
    a(f"s_load_dwordx2 s[{sOUT}:{sOUT+1}], s[0:1], 104")
    srd(a, sB1, F * 2); srd(a, sWS, WS_SIZE); srd(a, sDBG, 256); srd(a, sOUT, L * D * 2)
    a(f"s_and_b32 s{sT}, s{sId}, 7")
    a(f"s_lshr_b32 s{sT2}, s{sId}, 3")
    a(f"s_lshr_b32 s{sRB}, s{sT}, 1")
    a(f"s_lshl_b32 s{sTB}, s{sT}, 2")
    a(f"s_lshl_b32 s{sRB}, s{sRB}, 2")
    a(f"s_and_b32 s{sT3}, s{sT2}, 3")
    a(f"s_add_u32 s{sRB}, s{sRB}, s{sT3}")
    a(f"s_add_u32 s{sTB}, s{sTB}, s{sT3}")
    a(f"s_and_b32 s{sT}, s{sT}, 1")
    a(f"s_lshl_b32 s{sCB}, s{sT}, 3")
    a(f"s_lshr_b32 s{sJD}, s{sT2}, 2")
    a(f"s_add_u32 s{sCB}, s{sCB}, s{sJD}")
    a(f"v_mov_b32 v{vzero}, 0")
    a(f"v_lshlrev_b32 v{v16}, 4, v{lane}")
    for i in range(3):
        a(f"v_add_u32 v{t0}, {64*i}, v{lane}")
        a(f"v_mul_u32_u24 v{t1}, 0xaaab, v{t0}")
        a(f"v_lshrrev_b32 v{t1}, 19, v{t1}")
        a(f"v_mul_u32_u24 v{t2}, 12, v{t1}")
        a(f"v_sub_u32 v{t2}, v{t0}, v{t2}")
        a(f"v_lshrrev_b32 v{t3}, 2, v{t1}")
        a(f"v_and_b32 v{t3}, 2, v{t3}")
        a(f"v_xor_b32 v{t2}, v{t2}, v{t3}")
        a(f"v_lshlrev_b32 v{t2}, 4, v{t2}")
        a(f"v_mul_u32_u24 v{t1}, 3072, v{t1}")
        a(f"v_add_u32 v{vW[i]}, v{t1}, v{t2}")
        if i: a(f"v_subrev_u32 v{vW[i]}, {1024*i}, v{vW[i]}")
    a(f"s_mul_i32 s{sWoff}, s{sWave}, {16*3072}")
    a(f"s_mul_i32 s{sT}, s{sCB}, 192")
    a(f"s_add_u32 s{sWoff}, s{sWoff}, s{sT}")
    a(f"s_mul_i32 s{sM0w}, s{sWave}, 3072")
    a(f"v_lshrrev_b32 v{t0}, 3, v{lane}")
    a(f"v_and_b32 v{t1}, 7, v{lane}")
    a(f"v_lshrrev_b32 v{t2}, 1, v{t0}")
    a(f"v_xor_b32 v{t1}, v{t1}, v{t2}")
    a(f"v_mul_u32_u24 v{t0}, 1280, v{t0}")
    a(f"v_lshl_add_u32 v{vXs[0]}, v{t1}, 4, v{t0}")
    a(f"v_xor_b32 v{vXs[1]}, 64, v{vXs[0]}")
    a(f"v_add_u32 v{vXs[1]}, {8*1280 - 1024}, v{vXs[1]}")
    a(f"s_lshl_b32 s{sXoff}, s{sRB}, 7")
    a(f"s_lshl_b32 s{sT}, s{sWave}, 5")
    a(f"s_add_u32 s{sXoff}, s{sXoff}, s{sT}")
    a(f"s_mul_i32 s{sXoff}, s{sXoff}, 1280")
    a(f"s_mul_i32 s{sM0x}, s{sWave}, {X_WAVE}")
    a(f"s_add_u32 s{sM0x}, s{sM0x}, {X_OFF}")

    tokW = {}; tokXu = {}
    def ops_w(c):
        def f0():
            a(f"s_add_u32 m0, s{sM0w}, {(c % 3) * W_SLOT}")
            if c: a(f"s_add_u32 s{sWoff}, s{sWoff}, {64*3072}")
        def fi(i):
            def f():
                a(f"buffer_load_dwordx4 v{vW[i]}, s[{sW1}:{sW1+3}], s{sWoff} offen offset:{1024*i} lds")
                if i == 2: tokW[c] = a.vtok()
            return f
        return [f0] + [fi(i) for i in range(3)]
    def ops_x(u):
        c, ct = u // 2, u % 2
        def f0():
            a(f"s_add_u32 m0, s{sM0x}, {(u % NXU) * 2048}")
            a(f"s_add_u32 s{sT}, s{sXoff}, {ct*16*1280 + c*128}")
        def fi(h):
            def f():
                a(f"buffer_load_dwordx4 v{vXs[h]}, s[{sX}:{sX+3}], s{sT} offen offset:{1024*h} lds")
                if h == 1: tokXu[u] = a.vtok()
            return f
        return [f0, fi(0), fi(1)]
    def do_first():
        for f in ops_w(0) + ops_x(0) + ops_x(1) + ops_w(1) + ops_x(2) + ops_x(3): f()
    do_first()
    if ENV("PFBE", 1) == 2: do_pf(PFA_, 10)

    a(f"v_lshrrev_b32 v{t0}, 4, v{lane}")
    a(f"v_bfe_u32 v{t1}, v{lane}, 2, 2")
    a(f"v_lshl_add_u32 v{t1}, v{t0}, 3, v{t1}")
    a(f"v_mul_u32_u24 v{t1}, 192, v{t1}")
    a(f"v_and_b32 v{t2}, 3, v{lane}")
    a(f"v_lshl_add_u32 v{t1}, v{t2}, 3, v{t1}")
    a(f"v_and_b32 v{t2}, 1, v{t0}")
    a(f"v_lshlrev_b32 v{t2}, 5, v{t2}")
    a(f"v_sub_u32 v{t3}, v{t1}, v{t2}")
    a(f"v_add_u32 v{t3}, 32, v{t3}")
    a(f"v_add_u32 v{t2}, v{t1}, v{t2}")
    for P in range(3):
        a(f"s_add_u32 s{sP[P]}, s{sWave}, {P}")
        a(f"s_cmp_ge_u32 s{sP[P]}, 3")
        a(f"s_cselect_b32 s{sT}, 3, 0")
        a(f"s_sub_u32 s{sP[P]}, s{sP[P]}, s{sT}")
        a(f"s_lshl_b32 s{sT}, s{sP[P]}, 6")
        a(f"v_add_u32 v{vE[P]}, s{sT}, v{t2}")
        a(f"v_add_u32 v{vO[P]}, s{sT}, v{t3}")
    a(f"v_and_b32 v{t1}, 15, v{lane}")
    a(f"v_lshrrev_b32 v{t2}, 1, v{t1}")
    a(f"v_xor_b32 v{t2}, v{t2}, v{t0}")
    a(f"v_lshlrev_b32 v{t2}, 4, v{t2}")
    a(f"v_lshl_add_u32 v{t2}, v{t1}, 7, v{t2}")
    a(f"v_add_u32 v{vXr[0]}, s{sM0x}, v{t2}")
    a(f"v_xor_b32 v{t2}, 64, v{t2}")
    a(f"v_add_u32 v{vXr[1]}, s{sM0x}, v{t2}")
    a(f"v_lshrrev_b32 v{t2}, 3, v{t1}")
    a(f"v_and_b32 v{t1}, 7, v{t1}")
    a(f"v_lshlrev_b32 v{t1}, 3, v{t1}")
    a(f"v_lshl_add_u32 v{vsa}, v{t2}, 7, v{t1}")
    a(f"s_mul_i32 s{sT}, s{sWave}, 12")
    a(f"s_mul_i32 s{sOA}, s{sT}, {32*1280}")
    a(f"s_mul_i32 s{sT2}, s{sJD}, 160")
    a(f"s_add_u32 s{sOA}, s{sOA}, s{sT2}")
    a(f"s_mul_i32 s{sOB}, s{sTB}, 192")
    a(f"s_add_u32 s{sOB}, s{sOB}, s{sT}")
    a(f"s_lshl_b32 s{sOB}, s{sOB}, 10")
    a(f"s_add_u32 s{sOB}, s{sOB}, {WS_ACT}")
    a(f"v_lshlrev_b32 v{t0}, 3, v{t0}")

    tokA = {}; tokXr = {}
    def ops_ra(ks):
        c, e = ks // 2, ks % 2
        off = (c % 3) * W_SLOT + e * 6144
        out = []
        for rt in range(6):
            ad = (vE if rt % 2 == 0 else vO)[rt // 2]
            for h in range(2):
                def f(rt=rt, h=h, ad=ad):
                    a(f"ds_read_b64_tr_b16 {v(A[ks%2][rt] + 2*h, 2)}, v{ad} offset:{off + 768*h}")
                    tokA[(ks, rt)] = a.ltok()
                out.append(f)
        return out
    def ops_rx(c):
        out = []
        for e in range(2):
            for ct in range(2):
                def f(e=e, ct=ct):
                    a(f"ds_read_b128 {v(X[c%2][e][ct],4)}, v{vXr[e]} offset:{((2*c+ct) % NXU) * 2048}")
                    tokXr[c] = a.ltok()
                out.append(f)
        return out
    def mf(d, A_, B_, first):
        c = "0" if first else v(d, 4)
        a(f"v_mfma_f32_16x16x32_bf16 {v(d,4)}, {v(A_,4)}, {v(B_,4)}, {c}")
    wq = [0]
    tokWR = {}
    def ops_wr(n, lim=NWI):
        out = []
        for it_ in range(n):
            f_ = wq[0]
            if f_ >= lim: break
            def f(f_=f_, it_=it_):
                if f_ % 4 == 0 or it_ == 0: a(f"s_add_u32 s{sT2}, s{sOA}, {1024*(f_ - f_%4)}")
                a(f"buffer_load_dwordx4 {v(WR[f_],4)}, v{v16}, s[{sWS}:{sWS+3}], s{sT2} offen offset:{1024*(f_%4)} sc1")
                tokWR[f_] = a.vtok()
            out.append(f); wq[0] += 1
        return out
    sFB = 49
    def ld_w2flags():
        a(f"buffer_load_dword v{vfl}, v{vfa}, s[{sWS}:{sWS+3}], s{sFB} offen sc1")
    def ld_first(nl):
        a(f"v_mov_b32 v{vfl}, s{sTok}")
        a(f"s_mov_b64 exec, {hex((1 << nl) - 1)}")
        ld_w2flags()
        a("s_mov_b64 exec, -1")
    def ld_stats():
        for ct in range(2):
            a(f"buffer_load_dwordx2 {v(st[ct],2)}, v{vsa}, s[{sWS}:{sWS+3}], s{sT3} offen offset:{256*ct} sc1")
    tk = {}
    def op_tok():
        a(f"buffer_load_dword v{vtok}, v{vzero}, s[{sDBG}:{sDBG+3}], 0 offen sc1")
        tk["tok"] = a.vtok()
    def op_chk_tok():
        a.wait(vm=tk["tok"])
        check_token(a, vtok, vzero)
    def op_pace():
        a(f"v_mov_b32 v{vtok}, s{sTok}")
        a(f"s_lshl_b32 s{sT2}, s{sId}, 7")
        a(f"s_add_u32 s{sT2}, s{sT2}, {WS_FPACE}")
        a(f"s_cmp_eq_u32 s{sWave}, 0")
        a(f"s_cselect_b32 s{sT2}, s{sT2}, {WS_SIZE}")
        a("s_mov_b64 exec, 1")
        a(f"buffer_store_dword v{vtok}, v{vzero}, s[{sWS}:{sWS+3}], s{sT2} offen sc1")
        a("s_mov_b64 exec, -1")
    def op_stats():
        a(f"s_lshl_b32 s{sT3}, s{sRB}, 4")
        a(f"s_lshl_b32 s{sT2}, s{sWave}, 2")
        a(f"s_add_u32 s{sT3}, s{sT3}, s{sT2}")
        a(f"s_lshl_b32 s{sT3}, s{sT3}, 7")
        a(f"s_add_u32 s{sT3}, s{sT3}, {WS_STAT}")
        ld_stats()
        tk["st"] = a.vtok()
    def op_b1(P):
        def f():
            a(f"s_mul_i32 s{sT2}, s{sCB}, 192")
            a(f"s_lshl_b32 s{sT}, s{sP[P]}, 6")
            a(f"s_add_u32 s{sT}, s{sT}, s{sT2}")
            for o in range(2):
                a(f"buffer_load_dwordx2 {v(b1p[2*P+o],2)}, v{t0}, s[{sB1}:{sB1+3}], s{sT} offen offset:{32*o}")
        return f

    a("s_waitcnt lgkmcnt(0)")
    if ENV("TLBW", 0):
        SH = ENV("TLBSH", 21)
        nl = min(64, WS_SIZE >> SH)
        a(f"v_lshlrev_b32 v{t1}, {SH}, v{lane}")
        a(f"s_mov_b64 exec, {hex((1 << nl) - 1) if nl < 64 else -1}")
        a(f"s_mov_b32 s{sT2}, {WS_SIZE - 0x80000}")
        a(f"buffer_load_dword v{vpd}, v{t1}, s[{sWS}:{sWS+3}], 0 offen offset:3968")
        a(f"s_mul_i32 s{sT2}, s{sTB}, {64*1280}")
        a("s_mov_b64 exec, 1")
        a(f"buffer_load_dword v{vpd}, v{vzero}, s[{sOUT}:{sOUT+3}], s{sT2} offen")
        a("s_mov_b64 exec, -1")
    for P in range(3): op_b1(P)()
    a("s_waitcnt lgkmcnt(0)")
    if ENV("PFBE", 1) == 1 and PFA_ < 10: do_pf(PFA_, 10)
    a.wait(vm=max(tokW[0], tokXu[1]))
    for i in range(4): a(f"v_mov_b32 v{ones+i}, 0x3f803f80")
    a("s_barrier")
    stamp(a, 2)
    for f in ops_rx(0) + ops_ra(0) + ops_x(4) + ops_w(2): f()
    if PFA_ < 10 and not ENV("PFBE", 1): do_pf(PFA_, 10)
    if ENV("PF20", 4) == -1: op_pf2(0)()
    op_tok()
    extra = {9: [op_chk_tok], ENV("PACEKS", 13): [op_pace], ENV("STATKS", 15): [op_stats]}
    if ENV("PF20", 4) >= 0: extra.setdefault(ENV("PF20", 4), []).append(op_pf2(0))
    for j in range(1, ENV("PF2N", 8)): extra.setdefault(min(19, ENV("PF2KS", 10) + (j if not ENV("PF2D", 0) else (j + 1) // 2)), []).append(op_pf2(j))
    if ENV("GPRIO2", 2): a(f"s_setprio {ENV('GPRIO2', 2)}")
    for ks in range(20):
        c, e = ks // 2, ks % 2
        first = ks == 0
        Xs = X[c % 2][e]; As = A[ks % 2]
        mlist = []
        for rt in range(6):
            for ct in range(2): mlist.append((rt, acc[rt][ct], As[rt], Xs[ct]))
            if rt < 2: mlist.append((rt, cs[rt], As[rt], ones))
        if e == 0:
            fill = ops_ra(ks + 1)
            dma = []
            for u in (2 * c + 5, 2 * c + 6):
                if u < 20: dma += ops_x(u)
            fl2 = []
            for i, f in enumerate(fill):
                fl2.append(f)
                if i % 2 == 1 and dma: fl2.append(dma.pop(0))
            fill = fl2 + dma + extra.get(ks, [])
            start = 0
            a.wait(lg=tokXr[c])
        else:
            fill = []
            if ks < 19:
                fill = ops_rx(c + 1) + ops_ra(ks + 1)
                if c + 3 < 10: fill += ops_w(c + 3)
            fill += extra.get(ks, [])
            start = 6 if ks < 19 else 0
        nslots = len(mlist) - start
        per = [len(fill) // nslots + (1 if i < len(fill) % nslots else 0) for i in range(nslots)]
        lastrt = -1
        for i, (rt, d, A_, B_) in enumerate(mlist):
            if e == 1 and ks < 19 and i == start:
                a.wait(vm=max(tokW[c + 1], tokXu[2 * c + 3]), lg=a.ltok())
                a("s_barrier")
                if ks in (5, 11): stamp(a, {5: 3, 11: 4}[ks])
                lastrt = 99
            if rt > lastrt:
                a.wait(lg=tokA[(ks, rt)]); lastrt = rt
            mf(d, A_, B_, first)
            if i >= start:
                for _ in range(per[i - start]): fill.pop(0)()
        assert not fill
    tokst = tk["st"]
    stamp(a, 5)

    E = Alloc(pool, limit=vpf)
    csv = [E(4, 4) for _ in range(6)]
    b1v = [E(4, 4) for _ in range(6)]
    rr = [E(2, 2) for _ in range(2)]
    rm = [st[0], st[1]]
    tmp = [E(2, 2) for _ in range(8)]
    outp = cs
    vcs = E()
    CSOFF = 2 * W_SLOT
    a(f"v_lshrrev_b32 v{t0}, 4, v{lane}")
    a(f"v_lshlrev_b32 v{vcs}, 4, v{t0}")
    a(f"s_lshl_b32 s{sT}, s{sP[0]}, 7")
    a(f"v_add_u32 v{t1}, s{sT}, v{vcs}")
    for o in range(2):
        a(f"ds_write_b128 v{t1}, {v(cs[o],4)} offset:{CSOFF + 64*o}")
    a.wait(vm=tokst)
    check_flags(a, [st[0] + 1, st[1] + 1], vsa, ld_stats)
    a("s_waitcnt lgkmcnt(0)")
    a("s_barrier")
    for P in range(3):
        a(f"s_lshl_b32 s{sT}, s{sP[P]}, 7")
        a(f"v_add_u32 v{t1}, s{sT}, v{vcs}")
        for o in range(2):
            a(f"ds_read_b128 {v(csv[2*P+o],4)}, v{t1} offset:{CSOFF + 64*o}")
    for ct in range(2):
        a(f"v_and_b32 v{t1}, 0xffff0000, v{st[ct]}")
        a(f"v_rcp_f32 v{rr[ct]}, v{t1}")
        a(f"v_lshlrev_b32 v{t2}, 16, v{st[ct]}")
        a(f"v_mul_f32 v{rr[ct]+1}, v{t2}, v{rr[ct]}")
        a(f"v_sub_f32 v{rm[ct]}, 0, v{rr[ct]+1}")
    for rt in range(6):
        a(f"v_lshlrev_b32 v{b1v[rt]}, 16, v{b1p[rt]}")
        a(f"v_and_b32 v{b1v[rt]+1}, 0xffff0000, v{b1p[rt]}")
        a(f"v_lshlrev_b32 v{b1v[rt]+2}, 16, v{b1p[rt]+1}")
        a(f"v_and_b32 v{b1v[rt]+3}, 0xffff0000, v{b1p[rt]+1}")
    a(f"s_lshl_b32 s{sT}, s{sRB}, 3")
    a(f"s_lshl_b32 s{sT2}, s{sWave}, 1")
    a(f"s_add_u32 s{sT}, s{sT}, s{sT2}")
    a(f"s_mul_i32 s{sT}, s{sT}, 48")
    a(f"s_mul_i32 s{sT2}, s{sCB}, 3")
    a(f"s_add_u32 s{sT}, s{sT}, s{sT2}")
    for P in range(3):
        a(f"s_add_u32 s{sP[P]}, s{sP[P]}, s{sT}")
        a(f"s_lshl_b32 s{sP[P]}, s{sP[P]}, 10")
        a(f"s_add_u32 s{sP[P]}, s{sP[P]}, {WS_ACT}")
    a(f"s_mov_b32 s50, {f32(LOG2E)}"); a(f"s_mov_b32 s51, {f32(LOG2E)}")
    Q = Alloc(base2, limit=256)
    acc2 = [[Q(4, 4) for ct in range(4)] for rt in range(5)]
    NST = 3
    FB = [[Q(4, 4) for _ in range(4)] for _ in range(NST)]
    vB = [Q() for _ in range(4)]
    vxo = Q(); vxo2 = Q()
    vw = [Q() for _ in range(5)]; vw8 = Q(); vw4 = Q()
    a(f"s_mul_i32 s{sM0w}, s{sWave}, 20480")
    tokD = {}
    def ops_dma(k):
        out = []
        for i in range(5):
            def f(i=i):
                if i == 0:
                    a(f"s_add_u32 m0, s{sM0w}, {5120*(k%4)}")
                    a(f"s_add_u32 s{sXoff}, s{sOA}, {32*1280*k}")
                if i == 4: a(f"s_add_u32 m0, s{sM0w}, {5120*(k%4) + 4096}")
                a(f"buffer_load_dwordx4 v{vw[i]}, s[{sW2}:{sW2+3}], s{sXoff} offen offset:{1024*i if i < 4 else 0} lds")
                tokD[k] = a.vtok()
            out.append(f)
        return out
    tokL = {}
    def op_rw(k, rt):
        o = WR[5 * (k % 5) + rt]
        for e in range(2):
            if rt < 4: a(f"ds_read_b64_tr_b16 {v(o+2*e,2)}, v{vw8} offset:{5120*(k%4) + 64*(rt>>1) + 8*(rt&1) + 2560*e}")
            else: a(f"ds_read_b64_tr_b16 {v(o+2*e,2)}, v{vw4} offset:{5120*(k%4) + 128 + 2560*e}")
        tokL[(k, rt)] = a.ltok()
    a("s_waitcnt lgkmcnt(0)")
    stamp(a, 6)
    k = 0
    for P in range(3):
        for ct in range(2):
            op = outp[k % 2]; k += 1
            if k == 1: dq = sum([ops_dma(k_) for k_ in range(4)], [])
            def dq_pop():
                if len(dq) > 20 - ENV("NDQ", 0): dq.pop(0)()
            dq_pop()
            hs = []
            EP = ENV("EPLAIN", 0)
            for o in range(2):
                rt = 2 * P + o
                for hf in range(2):
                    h = acc[rt][ct] + 2 * hf
                    tt = tmp[len(hs)]
                    if EP:
                        for z in range(2): a(f"v_fma_f32 v{tt+z}, v{csv[rt]+2*hf+z}, v{rm[ct]}, v{b1v[rt]+2*hf+z}")
                        for z in range(2): a(f"v_fma_f32 v{h+z}, v{h+z}, v{rr[ct]}, v{tt+z}")
                    else:
                        a(f"v_pk_fma_f32 {v(tt,2)}, {v(csv[rt]+2*hf,2)}, {v(rm[ct],2)}, {v(b1v[rt]+2*hf,2)} op_sel_hi:[1,0,1]")
                        a(f"v_pk_fma_f32 {v(h,2)}, {v(h,2)}, {v(rr[ct],2)}, {v(tt,2)} op_sel_hi:[1,0,1]")
                    hs.append(h)
            def pmul(d, x, y):
                if EP:
                    for z in range(2): a(f"v_mul_f32 v{d+z}, " + (f"s50, v{x+z}" if y is None else f"v{x+z}, v{y+z}"))
                else: a(f"v_pk_mul_f32 {v(d,2)}, {v(x,2)}, " + ("s[50:51]" if y is None else v(y, 2)))
            def padd2(d, x):
                if EP:
                    for z in range(2): a(f"v_add_f32 v{d+z}, 2.0, v{x+z}")
                else: a(f"v_pk_add_f32 {v(d,2)}, {v(x,2)}, 2.0 op_sel_hi:[1,0]")
            for i, h in enumerate(hs): pmul(tmp[i], h, None)
            for i, h in enumerate(hs):
                a(f"v_min_f32 v{tmp[i]}, {f32(30.0)}, v{tmp[i]}")
                a(f"v_min_f32 v{tmp[i]+1}, {f32(30.0)}, v{tmp[i]+1}")
            dq_pop()
            for i, h in enumerate(hs):
                a(f"v_exp_f32 v{tmp[i]}, v{tmp[i]}")
                a(f"v_exp_f32 v{tmp[i]+1}, v{tmp[i]+1}")
            dq_pop()
            for i, h in enumerate(hs): padd2(tmp[4+i], tmp[i])
            for i, h in enumerate(hs): pmul(tmp[i], tmp[i], tmp[4+i])
            for i, h in enumerate(hs): padd2(tmp[4+i], tmp[i])
            for i, h in enumerate(hs):
                a(f"v_rcp_f32 v{tmp[4+i]}, v{tmp[4+i]}")
                a(f"v_rcp_f32 v{tmp[4+i]+1}, v{tmp[4+i]+1}")
            dq_pop()
            for i, h in enumerate(hs): pmul(h, h, tmp[i])
            for i, h in enumerate(hs): pmul(h, h, tmp[4+i])
            for i, h in enumerate(hs): a(f"v_cvt_pk_bf16_f32 v{op+i}, v{h}, v{h+1}")
            if ct == 0:
                a(f"buffer_store_dwordx4 {v(op,4)}, v{v16}, s[{sWS}:{sWS+3}], s{sP[P]} offen sc1")
            else:
                a(f"s_add_u32 s{sT}, s{sP[P]}, {48*1024}")
                a(f"buffer_store_dwordx4 {v(op,4)}, v{v16}, s[{sWS}:{sWS+3}], s{sT} offen sc1")
    tokst_ = a.vtok()
    stamp(a, 7)
    for i in range(5):
        a(f"v_add_u32 v{t0}, {64*i}, v{lane}")
        a(f"v_mul_u32_u24 v{t1}, 0xcccd, v{t0}")
        a(f"v_lshrrev_b32 v{t1}, 19, v{t1}")
        a(f"v_mul_u32_u24 v{t2}, 10, v{t1}")
        a(f"v_sub_u32 v{t2}, v{t0}, v{t2}")
        a(f"v_mul_u32_u24 v{t1}, 1280, v{t1}")
        a(f"v_lshl_add_u32 v{vw[i]}, v{t2}, 4, v{t1}")
        if 0 < i < 4: a(f"v_subrev_u32 v{vw[i]}, {1024*i}, v{vw[i]}")
    a("s_barrier")
    a(f"s_lshl_b32 s{sT}, s{sRB}, 4")
    a(f"s_add_u32 s{sT}, s{sT}, s{sCB}")
    a(f"s_lshl_b32 s{sT}, s{sT}, 2")
    a(f"s_add_u32 s{sT}, s{sT}, s{sWave}")
    a(f"s_lshl_b32 s{sT}, s{sT}, 7")
    a(f"s_add_u32 s{sT}, s{sT}, {WS_FACT}")
    a(f"v_mov_b32 v{vtok}, s{sTok}")

    for ct in range(4):
        a(f"s_add_u32 s{sT2}, s{sWave}, {ct}")
        a(f"s_and_b32 s{sT2}, s{sT2}, 3")
        a(f"s_mul_i32 s{sT2}, s{sT2}, {48*1024}")
        a(f"v_add_u32 v{vB[ct]}, s{sT2}, v{v16}")
    a(f"v_lshrrev_b32 v{t1}, 2, v{lane}")
    a(f"v_mul_u32_u24 v{t1}, 160, v{t1}")
    a(f"v_add_u32 v{t1}, s{sM0w}, v{t1}")
    a(f"v_and_b32 v{t2}, 3, v{lane}")
    a(f"v_lshl_add_u32 v{vw8}, v{t2}, 4, v{t1}")
    a(f"v_lshl_add_u32 v{vw4}, v{t2}, 3, v{t1}")
    def do_publish():
        a.wait(vm=tokst_)
        a("s_mov_b64 exec, 1")
        a(f"buffer_store_dword v{vtok}, v{vzero}, s[{sWS}:{sWS+3}], s{sT} offen sc1")
        a("s_mov_b64 exec, -1")
        if ENV("GPRIO2", 2): a(f"s_setprio {ENV('GPRIO3', 0)}")
        stamp(a, 8)
    for _ in range(min(len(dq), 10)): dq.pop(0)()
    a(f"v_and_b32 v{t0}, 3, v{lane}")
    a(f"v_bfe_u32 v{t1}, v{lane}, 2, 1")
    a(f"v_lshl_add_u32 v{vfa}, v{t0}, 2, v{t1}")
    a(f"v_lshlrev_b32 v{vfa}, 7, v{vfa}")
    a(f"s_lshr_b32 s{sFB}, s{sTB}, 1")
    a(f"s_lshl_b32 s{sFB}, s{sFB}, 2")
    a(f"s_add_u32 s{sFB}, s{sFB}, s{sWave}")
    a(f"s_lshl_b32 s{sFB}, s{sFB}, 3")
    a(f"s_and_b32 s{sT2}, s{sTB}, 1")
    a(f"s_add_u32 s{sFB}, s{sFB}, s{sT2}")
    a(f"s_lshl_b32 s{sFB}, s{sFB}, 8")
    a(f"s_add_u32 s{sFB}, s{sFB}, {WS_FACT}")
    a(f"v_mul_u32_u24 v{t0}, {48*1024}, v{t0}")
    a(f"v_lshrrev_b32 v{t1}, 2, v{lane}")
    a(f"v_lshl_add_u32 v{t0}, v{t1}, 10, v{t0}")
    a(f"s_lshl_b32 s{sT2}, s{sJD}, 7")
    a(f"s_add_u32 s{sT2}, s{sT2}, s{sOB}")
    do_publish()
    while dq: dq.pop(0)()
    def rd(k):
        a.wait(vm=tokD[k])
        for rt in range(5): op_rw(k, rt)
    def dm(k):
        a.wait(lg=tokL[(k - 4, 4)])
        for f in ops_dma(k): f()
    tokB = {}; tokBc = {}
    def issue_b(k):
        for ct in range(4):
            a(f"buffer_load_dwordx4 {v(FB[k%NST][ct],4)}, v{vB[ct]}, s[{sWS}:{sWS+3}], s{sOB} offen sc1")
            tokBc[(k, ct)] = a.vtok()
        tokB[k] = a.vtok()
        if k < 11: a(f"s_add_u32 s{sOB}, s{sOB}, 1024")
    FPOS = ENV("FPOS", 2)
    def fl():
        ld_first(8); tk["fa"] = a.vtok()
    rd(0); rd(1); dm(4); rd(2)
    if FPOS == 0: fl()
    dm(5)
    if FPOS == 1: fl()
    rd(3); dm(6)
    if FPOS == 2:
        fl(); dm(7)
    stamp(a, 14)
    a.wait(vm=tk["fa"])
    check_flags(a, [vfl], vfa, ld_w2flags, sleep=ENV("ASLEEP", 3))
    stamp(a, 9)
    if ENV("GPRIO2", 2): a(f"s_setprio {ENV('GPRIO4', 0)}")
    if ENV("PFA", 0):
        a("s_mov_b32 exec_hi, 0xffff")
        a(f"buffer_load_dword v{t3}, v{t0}, s[{sWS}:{sWS+3}], s{sT2} offen sc1")
        a("s_mov_b32 exec_hi, -1")
    for k in range(NST): issue_b(k)
    if FPOS != 2: dm(7)
    rd(4)
    D8 = ENV("D8", 1)
    if D8: dm(8)
    sXo = 40
    a(f"s_lshl_b32 s{sXo}, s{sTB}, 6")
    a(f"s_lshl_b32 s{sT2}, s{sWave}, 4")
    a(f"s_add_u32 s{sXo}, s{sXo}, s{sT2}")
    a(f"s_mul_i32 s{sXo}, s{sXo}, 1280")
    a(f"s_mul_i32 s{sT2}, s{sJD}, 160")
    a(f"s_add_u32 s{sXo}, s{sXo}, s{sT2}")
    vso = vxo; vlw = vxo2
    a(f"v_lshrrev_b32 v{t0}, 3, v{lane}")
    a(f"v_and_b32 v{t1}, 7, v{lane}")
    a(f"v_lshlrev_b32 v{t1}, 4, v{t1}")
    a(f"v_lshl_add_u32 v{vso}, v{t0}, 12, v{t1}")
    a(f"s_mul_i32 s{sM0x}, s{sWave}, 2560")
    STOFF = 61440; XSOFF = 71680
    a(f"v_min_u32 v{vfa}, 19, v{lane}")
    a(f"v_lshlrev_b32 v{vfa}, 7, v{vfa}")
    a(f"s_mul_i32 s{sT3}, s{sJD}, 80")
    a(f"s_mul_i32 s{sT}, s{sWave}, 20")
    a(f"s_add_u32 s{sWoff}, s{sT3}, s{sT}")
    a(f"s_lshl_b32 s{sT3}, s{sWoff}, 7")
    a(f"s_lshr_b32 s{sT}, s{sTB}, 3")
    a(f"s_lshl_b32 s{sT}, s{sT}, 2")
    a(f"s_add_u32 s{sT3}, s{sT3}, s{sT}")
    a(f"s_add_u32 s{sFB}, s{sT3}, {WS_FST}")
    slot = {f: f % 25 for f in range(60)}
    assert D8
    def ld_b(k, ct):
        a(f"buffer_load_dwordx4 {v(FB[k%NST][ct],4)}, v{vB[ct]}, s[{sWS}:{sWS+3}], s{sOB} offen sc1")
        tokBc[(k, ct)] = a.vtok()
        if ct == 3:
            tokB[k] = a.vtok()
            if k < 11: a(f"s_add_u32 s{sOB}, s{sOB}, 1024")
    for k in range(12):
        dma = ops_dma(k + 8) if 1 <= k <= 3 else []
        if k >= 4: a.wait(lg=tokL[(k, 4)])
        for ct in range(4):
            a.wait(vm=tokBc[(k, ct)])
            if ct == 2 and dma: a.wait(lg=tokL[(k + 4, 4)])
            for rt in range(5):
                c = "0" if k == 0 else v(acc2[rt][ct], 4)
                a(f"v_mfma_f32_16x16x32_bf16 {v(acc2[rt][ct],4)}, {v(WR[slot[5*k+rt]],4)}, {v(FB[k%NST][ct],4)}, {c}")
                if ct == 0 and 1 <= k <= 7:
                    if rt == 0: a.wait(vm=tokD[k + 4])
                    op_rw(k + 4, rt)
                if rt == 0 and ct >= 1 and k + NST < 12: ld_b(k + NST, ct - 1)
                if ct >= 2 and rt in (1, 2, 4) and dma: dma.pop(0)()
        while dma: dma.pop(0)()
        if k + NST < 12: ld_b(k + NST, 3)
        if k in (0, 5): stamp(a, {0: 10, 5: 11}[k])
        if k == ENV("STK", 6):
            ld_first(20); tokfl = a.vtok()
        if k == ENV("BARK", 7):
            a("s_waitcnt lgkmcnt(0)")
            a("s_barrier")
            a(f"s_add_u32 m0, s{sM0x}, {XSOFF}")
            for i in range(3):
                if i == 2: a("s_mov_b32 exec_hi, 0")
                a(f"buffer_load_dwordx4 v{vw[i]}, s[{sX}:{sX+3}], s{sXo} offen offset:{1024*i} lds")
            a("s_mov_b32 exec_hi, -1")
        if k == ENV("STK2", 8):
            a.wait(vm=tokfl)
            check_flags(a, [vfl], vfa, ld_w2flags, sleep=ENV("STSLEEP", 8))
            a(f"s_lshl_b32 s{sT}, s{sWoff}, 12")
            a(f"s_lshl_b32 s{sT2}, s{sTB}, 7")
            a(f"s_add_u32 s{sT}, s{sT}, s{sT2}")
            a(f"s_add_u32 s{sT}, s{sT}, {WS_ST}")
            for i in range(3):
                if i == 2: a("s_mov_b32 exec_hi, 0")
                a(f"s_add_u32 m0, s{sM0x}, {STOFF + 1024*i}")
                a(f"buffer_load_dwordx4 v{vso}, s[{sWS}:{sWS+3}], s{sT} offen sc1 lds")
                if i < 2: a(f"s_add_u32 s{sT}, s{sT}, {8*4096}")
            a("s_mov_b32 exec_hi, -1")
        if k == 10:
            for ct in range(1, 4):
                a(f"s_add_u32 s{sT2}, s{sWave}, {ct}")
                a(f"s_and_b32 s{sT2}, s{sT2}, 3")
                a(f"s_mul_i32 s{sT2}, s{sT2}, 15360")
                a(f"v_add_u32 v{vB[ct]}, s{sT2}, v{v16}")
            break
    k = 11
    a.wait(vm=tokB[k]); a.wait(lg=tokL[(k, 4)])
    vt8, vt4, vx16, vx8 = [FB[0][0] + i for i in range(4)]
    misc = [f"v_lshrrev_b32 v{t2}, 4, v{lane}", f"v_bfe_u32 v{t0}, v{lane}, 2, 2",
            f"v_lshl_add_u32 v{t1}, v{t2}, 3, v{t0}", f"v_lshl_add_u32 v{t0}, v{t2}, 2, v{t0}", f"v_and_b32 v{t3}, 3, v{lane}"]
    pend = []
    for ct in (1, 2, 3, 0):
        for rt in range(5):
            a(f"v_mfma_f32_16x16x32_bf16 {v(acc2[rt][ct],4)}, {v(WR[slot[5*k+rt]],4)}, {v(FB[k%NST][ct],4)}, {v(acc2[rt][ct],4)}")
            if ct == 1: a(misc[rt])
            elif pend: a(pend.pop(0))
        if ct: pend += [f"ds_write_b128 v{vB[ct]}, {v(acc2[rt][ct],4)} offset:{(ct-1)*5120 + rt*1024}" for rt in range(5)]
    stamp(a, 12)
    Pr = [[acc2[rt][p + 1] for rt in range(5)] for p in range(3)]
    T = [WR[10 + i // 2] + 2 * (i % 2) for i in range(10)]
    sv = [WR[15 + i // 2] + 2 * (i % 2) for i in range(5)]
    xq = [WR[18], WR[19], WR[20]]
    op = [WR[21], WR[22], WR[23]]
    a(f"s_lshl_b32 s{sT}, s{sWave}, 5")
    a(f"s_add_u32 s{sT}, s{sT}, {STOFF}")
    a(f"v_lshl_add_u32 v{t3}, v{t3}, 3, s{sT}")
    a(f"v_lshl_add_u32 v{vt8}, v{t1}, 7, v{t3}")
    a(f"v_lshl_add_u32 v{vt4}, v{t0}, 7, v{t3}")
    a(f"v_and_b32 v{t0}, 15, v{lane}")
    a(f"v_mul_u32_u24 v{t0}, 160, v{t0}")
    a(f"s_add_u32 s{sT}, s{sM0x}, {XSOFF}")
    a(f"v_add_u32 v{t0}, s{sT}, v{t0}")
    a(f"v_lshl_add_u32 v{vx16}, v{t2}, 4, v{t0}")
    a(f"v_lshl_add_u32 v{vx8}, v{t2}, 3, v{t0}")
    a(f"v_add_u32 v{vlw}, s{sT}, v{v16}")
    a(f"s_mul_i32 s{sT2}, s{sWave}, 15360")
    a(f"v_add_u32 v{t3}, s{sT2}, v{v16}")
    a(f"s_mov_b32 s50, {f32(-LOG2E)}"); a(f"s_mov_b32 s51, {f32(-LOG2E)}")
    a("s_waitcnt vmcnt(0) lgkmcnt(0)")
    a("s_barrier")
    stamp(a, 13)
    tkr = {}
    for rt in range(5):
        for p in range(3):
            a(f"ds_read_b128 {v(Pr[p][rt],4)}, v{t3} offset:{p*5120 + rt*1024}")
        tkr[rt] = a.ltok()
    o2 = []
    late = [f"ds_read_b64_tr_b16 {v(sv[rt],2)}, v{vt8} offset:{128*(32*(rt>>1) + 4*(rt&1))}" for rt in range(4)]
    late += [f"ds_read_b64_tr_b16 {v(sv[4],2)}, v{vt4} offset:{128*64}", f"ds_read_b128 {v(xq[0],4)}, v{vx16}",
             f"ds_read_b128 {v(xq[1],4)}, v{vx16} offset:64", f"ds_read_b64 {v(xq[2],2)}, v{vx8} offset:128"]
    for rt in range(5):
        a.wait(lg=tkr[rt])
        for hf in range(2):
            d = acc2[rt][0] + 2 * hf
            a(f"v_pk_add_f32 {v(Pr[0][rt]+2*hf,2)}, {v(Pr[0][rt]+2*hf,2)}, {v(Pr[1][rt]+2*hf,2)}")
            a(f"v_pk_add_f32 {v(d,2)}, {v(d,2)}, {v(Pr[2][rt]+2*hf,2)}")
            a(f"v_pk_add_f32 {v(d,2)}, {v(d,2)}, {v(Pr[0][rt]+2*hf,2)}")
            o2.append(d)
    for x_ in late: a(x_)
    for i, d in enumerate(o2): a(f"v_pk_mul_f32 {v(T[i],2)}, {v(d,2)}, s[50:51]")
    for i, d in enumerate(o2):
        a(f"v_exp_f32 v{T[i]}, v{T[i]}")
        a(f"v_exp_f32 v{T[i]+1}, v{T[i]+1}")
    for i, d in enumerate(o2): a(f"v_pk_add_f32 {v(T[i],2)}, {v(T[i],2)}, 1.0 op_sel_hi:[1,0]")
    for i, d in enumerate(o2):
        a(f"v_rcp_f32 v{T[i]}, v{T[i]}")
        a(f"v_rcp_f32 v{T[i]+1}, v{T[i]+1}")
    a("s_waitcnt lgkmcnt(0)")
    for i, d in enumerate(o2):
        s_ = sv[i // 2] + i % 2
        x_ = xq[i // 4] + i % 4
        U_ = Pr[0][i // 2] + 2 * (i % 2)
        V_ = Pr[1][i // 2] + 2 * (i % 2)
        a(f"v_pk_mul_f32 {v(d,2)}, {v(d,2)}, {v(T[i],2)}")
        a(f"v_lshlrev_b32 v{U_}, 16, v{s_}")
        a(f"v_and_b32 v{U_+1}, 0xffff0000, v{s_}")
        a(f"v_lshlrev_b32 v{V_}, 16, v{x_}")
        a(f"v_and_b32 v{V_+1}, 0xffff0000, v{x_}")
        a(f"v_pk_fma_f32 {v(d,2)}, {v(d,2)}, {v(U_,2)}, {v(V_,2)}")
        a(f"v_cvt_pk_bf16_f32 v{op[i//4] + i%4}, v{d}, v{d+1}")
        if i == 3: a(f"ds_write_b128 v{vx16}, {v(op[0],4)}")
        if i == 7: a(f"ds_write_b128 v{vx16}, {v(op[1],4)} offset:64")
    a(f"ds_write_b64 v{vx8}, {v(op[2],2)} offset:128")
    for i in range(3):
        a(f"ds_read_b128 {v(xq[i],4)}, v{vlw} offset:{1024*i}")
    for i in range(3):
        a(f"s_waitcnt lgkmcnt({2-i})")
        if i == 2: a("s_mov_b32 exec_hi, 0")
        a(f"buffer_store_dwordx4 {v(xq[i],4)}, v{vw[i]}, s[{sOUT}:{sOUT+3}], s{sXo} offen offset:{1024*i} {os.environ.get('OUTMOD', '')}")
    stamp_end(a, sWave)
    return 256

def main(out):
    ref = open(f"cdna_kernels/{NAME}.s.ref").read().split("\n")
    hdr = [l for l in ref if l.startswith(";") and "@launch" not in l]
    hdr.append(f"; @launch grid=(512,1,1) block=(256,1,1) lds={LDS_BYTES}")
    a = Asm()
    a.raw(f'.amdgcn_target "amdgcn-amd-amdhsa--gfx950"\n.text\n.globl {KN}\n.p2align 8\n.type {KN},@function')
    a.label(KN)
    a("s_cmp_ge_u32 s2, 512")
    a("s_cbranch_scc1 K_exit")
    if ENV("SWAP", 0): a("s_xor_b32 s2, s2, 256")
    if ENV("CPF", 1):
        a("s_getpc_b64 s[18:19]")
        a("s_and_b32 s18, s18, 0xffffff00")
        a("s_lshr_b32 s3, s2, 3")
        a("s_xor_b32 s3, s3, 32")
        a("s_lshl_b32 s3, s3, 9")
        a("s_add_u32 s18, s18, s3")
        a("s_addc_u32 s19, s19, 0")
        a("v_lshrrev_b32 v252, 6, v0")
        a("v_lshlrev_b32 v252, 7, v252")
        a("v_mov_b32 v253, s19")
        a("v_add_co_u32 v252, vcc, s18, v252")
        a("v_addc_co_u32 v253, vcc, 0, v253, vcc")
        a("s_mov_b64 exec, 1")
        a("global_load_dword v254, v[252:253], off")
        a("s_mov_b64 exec, -1")
    a("s_cmp_lt_u32 s2, 256")
    a("s_cbranch_scc1 " + ("K_exit" if ENV("NOS", 0) else "S_role"))
    if ENV('NOG', 0): a("s_branch K_exit")
    _role[0] = "G"
    hg = g_role(a)
    _role[0] = "S"
    a.label("S_role"); a.flush_hist()
    hs = s_role(a)
    a.label("K_exit")
    a("s_endpgm")
    if ENV("CPF", 1): a.raw(".p2align 15")
    print("vgprs", hg, hs, "nops", a.nnop, "lines", len(a.items), file=sys.stderr)
    kd = f""".section .rodata,"a"
.p2align 6
.amdhsa_kernel {KN}
  .amdhsa_next_free_vgpr 256
  .amdhsa_next_free_sgpr {102 if STAMPS else 64}
  .amdhsa_accum_offset 256
  .amdhsa_group_segment_fixed_size 0
  .amdhsa_kernarg_size 128
  .amdhsa_user_sgpr_count 2
  .amdhsa_user_sgpr_kernarg_segment_ptr 1
  .amdhsa_system_sgpr_workgroup_id_x 1
  .amdhsa_float_denorm_mode_32 3
  .amdhsa_float_denorm_mode_16_64 3
.end_amdhsa_kernel
"""
    open(out, "w").write("\n".join(hdr) + "\n" + a.text() + kd)

if __name__ == "__main__":
    main(sys.argv[1] if len(sys.argv) > 1 else f"cdna_kernels/{NAME}.s")
```

```python
import sys, os, struct, math
sys.path.insert(0, os.path.dirname(os.path.abspath(__file__)))
from asmlib import *

NAME = "recurrent_scan__ssm_conv_s4__dense_activation_mish__prompt"
KN = NAME + "_kernel"
L, D, N, F = 2048, 640, 192, 1536
ENV = lambda k, d: int(os.environ.get(k, str(d)))
STAMPS = ENV("STAMPS", 0)

WS_XT2 = 0x0000000
WS_ST  = 0x0400000
WS_W2A = 0x0800000
WS_ACT = 0x0C00000
WS_STAT = 0x1400000
WS_FLN = 0x1500000
WS_FPACE = 0x1510000
WS_FACT = 0x1520000
WS_FST = 0x1560000
WS_SIZE = 0x1600000
WS_STAMP = 0x4000000
LDS_BYTES = 81920
SPIN_MAX = 0x4000

def f32(x): return "0x%08x" % struct.unpack("<I", struct.pack("<f", x))[0]
LOG2E = 1.4426950408889634
LN2 = 0.6931471805599453

def srd(a, sreg, size):
    a(f"s_mov_b32 s{sreg+2}, {size}")
    a(f"s_mov_b32 s{sreg+3}, 0x20000")

def bf16r(a, dst, src):
    a(f"v_cvt_pk_bf16_f32 v{dst}, v{src}, v{src}")
    a(f"v_and_b32 v{dst}, 0xffff0000, v{dst}")

_sn = [0]
DIAG = ENV("DIAG", 0)
DROLE = os.environ.get("DROLE", "G")
_role = ["?"]
def stamp_begin(a):
    _sn[0] = 0
    if DIAG and _role[0] == DROLE:
        a("s_memrealtime s[60:61]"); a("s_memrealtime s[62:63]")
    if STAMPS:
        a("s_memrealtime s[60:61]")
        for i in range(64, 96, 2): a(f"s_mov_b64 s[{i}:{i+1}], 0")
        a("s_memtime s[64:65]")
        _sn[0] = 1
def stamp(a, n=None):
    if DIAG and n == DIAG and _role[0] == DROLE: a("s_memrealtime s[62:63]")
    if STAMPS:
        if n is None:
            n = _sn[0]; _sn[0] += 1
        assert n < 16
        a(f"s_memtime s[{64+2*n}:{65+2*n}]")
def stamp_end(a, sWave):
    if DIAG and _role[0] == DROLE:
        if DIAG == 15: a("s_memrealtime s[62:63]")
        a("s_memrealtime s[56:57]")
        a("s_waitcnt lgkmcnt(0)")
        a("s_sub_u32 s62, s62, s60")
        a("s_lshl_b32 s62, s62, 2")
        a("s_add_u32 s56, s56, s62")
        a.label("DG_spin")
        a("s_sleep 2")
        a("s_memrealtime s[58:59]")
        a("s_waitcnt lgkmcnt(0)")
        a("s_sub_u32 s58, s58, s56")
        a("s_cmp_lt_i32 s58, 0")
        a("s_cbranch_scc1 DG_spin")
    if STAMPS:
        stamp(a, 15)
        a("s_memrealtime s[62:63]")
        a("s_load_dwordx2 s[96:97], s[0:1], 120")
        a("s_waitcnt lgkmcnt(0)")
        a(f"s_add_u32 s96, s96, {WS_STAMP}")
        a("s_addc_u32 s97, s97, 0")
        a("s_mov_b32 s98, 0x100000")
        a("s_mov_b32 s99, 0x20000")
        a("s_lshl_b32 s59, s2, 10")
        a(f"s_lshl_b32 s58, s{sWave}, 8")
        a("s_add_u32 s59, s59, s58")
        a("s_mov_b64 exec, 1")
        a("v_mov_b32 v1, s59")
        a("v_mov_b32 v2, s60"); a("v_mov_b32 v3, s62")
        a("buffer_store_dwordx2 v[2:3], v1, s[96:99], 0 offen")
        for n in range(16):
            a(f"s_sub_u32 s59, s{64+2*n}, s64")
            a(f"s_cmp_eq_u32 s{64+2*n}, 0")
            a(f"s_cselect_b32 s59, 0, s59")
            a(f"v_mov_b32 v{4 + n}, s59")
            a(f"buffer_store_dword v{4 + n}, v1, s[96:99], 0 offen offset:{16+4*n}")
    a("s_endpgm")

_lab = [0]
def newlab(p):
    _lab[0] += 1
    return f"{p}_{_lab[0]}"

sWS, sDBG = 4, 8
sWave, sTok, sSpin = 12, 13, 14
sT, sT2, sT3 = 15, 16, 17

def check_token(a, vtok, vzero, sleep=2):
    done = newlab("TK"); loop = newlab("TL")
    if ENV("NOS", 0) or os.environ.get("ONLY", ""):
        a(f"s_mov_b32 s{sTok}, 0x12345"); return
    a(f"v_readfirstlane_b32 s{sTok}, v{vtok}")
    a(f"s_cmp_lg_u32 s{sTok}, 0")
    a(f"s_cbranch_scc1 {done}")
    a(f"s_mov_b32 s{sSpin}, 0")
    a.label(loop)
    a(f"s_sleep {sleep}")
    a(f"buffer_load_dword v{vtok}, v{vzero}, s[{sDBG}:{sDBG+3}], 0 offen sc1"); a.vm -= 1
    a("s_waitcnt vmcnt(0)")
    a(f"v_readfirstlane_b32 s{sTok}, v{vtok}")
    a(f"s_cmp_lg_u32 s{sTok}, 0")
    a(f"s_cbranch_scc1 {done}")
    a(f"s_add_u32 s{sSpin}, s{sSpin}, 1")
    a(f"s_cmp_lt_u32 s{sSpin}, {SPIN_MAX}")
    a(f"s_cbranch_scc1 {loop}")
    a.label(done)

def check_flags(a, vfl, vaddr, reload, sleep=2):
    if (ENV("NOS", 0) or os.environ.get("ONLY", "")) and sleep != 3: return
    done = newlab("FD"); loop = newlab("FL")
    def cmpall():
        a(f"v_cmp_ne_u32 vcc, s{sTok}, v{vfl[0]}")
        for r_ in vfl[1:]:
            a(f"v_cmp_ne_u32 s[18:19], s{sTok}, v{r_}")
            a("s_or_b64 vcc, vcc, s[18:19]")
        a("s_cmp_eq_u64 vcc, 0")
    cmpall()
    a(f"s_cbranch_scc1 {done}")
    a(f"s_mov_b32 s{sSpin}, 0")
    a.label(loop)
    a(f"s_sleep {sleep}")
    n0 = a.vm
    a("s_mov_b64 exec, vcc")
    reload()
    a("s_mov_b64 exec, -1")
    a.vm = n0
    a("s_waitcnt vmcnt(0)")
    cmpall()
    a(f"s_cbranch_scc1 {done}")
    a(f"s_add_u32 s{sSpin}, s{sSpin}, 1")
    a(f"s_cmp_lt_u32 s{sSpin}, {SPIN_MAX}")
    a(f"s_cbranch_scc1 {loop}")
    a.label(done)

CV_S = 4160
CH_REG = 64 * 272
CV_U = [3 * CH_REG + 512 + 4608 * i for i in range(3)]
LN_OFF = 3 * CH_REG + 3 * 4608
LN_S = 1344
PACE_OFF = LDS_BYTES - 16
KG_S = 272
COARSE = list(range(8)) + [256, 258, 260, 262, 512, 516, 768, 772, 1024, 1280, 1536, 1792, 2048]
assert LN_OFF + 8 * LN_S <= LDS_BYTES and 4 * CV_S <= CH_REG

def s_role(a):
    sX_, sA, sXc = 20, 24, 25
    sD = [26, 27, 28]
    sCnt, sPar, sSlot, sRound, sHeavy = 29, 30, 31, 56, 57
    SP = [32, 36, 40, 44, 48, 52]
    R = Alloc(1)
    lane = R(); t0 = R(); t1 = R(); t2 = R(); t3 = R(); vzero = R(); vtok = R(); v16 = R()
    vdk = [R(), R()]
    base = R.mark()
    stamp_begin(a)
    a(f"s_load_dwordx2 s[{sWS}:{sWS+1}], s[0:1], 120")
    a(f"s_load_dwordx2 s[{sDBG}:{sDBG+1}], s[0:1], 112")
    a(f"v_lshrrev_b32 v{t0}, 6, v0")
    a(f"v_and_b32 v{lane}, 63, v0")
    a(f"v_readfirstlane_b32 s{sWave}, v{t0}")
    srd(a, sWS, WS_SIZE); srd(a, sDBG, 256)
    a(f"s_and_b32 s{sXc}, s2, 7")
    a(f"s_lshr_b32 s{sA}, s2, 3")
    a(f"s_lshl_b32 s{sD[0]}, s{sXc}, 6")
    a(f"s_lshl_b32 s{sT}, s{sA}, 1")
    a(f"s_add_u32 s{sD[0]}, s{sD[0]}, s{sT}")
    a(f"s_add_u32 s{sD[1]}, s{sD[0]}, 1")
    a(f"s_lshl_b32 s{sD[2]}, s{sXc}, 4")
    a(f"s_add_u32 s{sD[2]}, s{sD[2]}, s{sA}")
    a(f"s_add_u32 s{sD[2]}, s{sD[2]}, 512")
    a(f"s_cmp_lt_u32 s{sA}, 16")
    a(f"s_cselect_b32 s{sHeavy}, 1, 0")
    a(f"v_mov_b32 v{vzero}, 0")
    a(f"v_lshlrev_b32 v{v16}, 4, v{lane}")
    ONLY = os.environ.get("ONLY", "")
    if ENV("SPRIO0", 1): a(f"s_setprio {ENV('SPRIO0', 1)}")
    a(f"s_lshr_b32 s{sSlot}, s{sWave}, 1")
    a(f"s_cmp_eq_u32 s{sWave}, 3")
    a("s_cbranch_scc1 " + ("S_ln" if (not ONLY or "l" in ONLY) else "K_exit"))
    a(f"s_add_u32 s{sT}, s{sHeavy}, 2")
    a(f"s_cmp_ge_u32 s{sWave}, s{sT}")
    a("s_cbranch_scc1 " + ("S_w2t" if (not ONLY or "w" in ONLY) else "K_exit"))
    if ONLY and "k" not in ONLY: a("s_branch K_exit")

    P = [[R() for _ in range(6)] for _ in range(3)]
    vdt = R(); vwr = R(); vrd = R(); voff = R()
    accK = R(16, 4)
    FA = [R(4, 4) for _ in range(8)]; FB = [R(4, 4) for _ in range(8)]
    pr = lambda: R(2, 2)
    l1, l8, l256, W, E0, E1, E2, T, T2, G2, G4, G6, V, a2b = [pr() for _ in range(14)]
    Qr = [R(4, 4) for _ in range(2)]; Qi = [R(4, 4) for _ in range(2)]
    Cr = R(16, 4); Ci = R(16, 4)
    sDd, sBase = 58, 59
    if STAMPS: sDd, sBase = 100, 101
    for i, sr in enumerate(SP):
        a(f"s_load_dwordx2 s[{sr}:{sr+1}], s[0:1], {8 + 8*i}")
    a(f"s_load_dwordx2 s[{sX_}:{sX_+1}], s[0:1], 56")
    a(f"s_load_dwordx2 s[18:19], s[0:1], 64")
    a(f"s_cmp_eq_u32 s{sWave}, 1")
    a(f"s_cselect_b32 s{sDd}, s{sD[1]}, s{sD[0]}")
    a(f"s_cmp_eq_u32 s{sWave}, 2")
    a(f"s_cselect_b32 s{sDd}, s{sD[2]}, s{sDd}")
    for sr in SP: srd(a, sr, D * N * 2)
    srd(a, sX_, D * 2)
    a(f"s_mul_i32 s{sT}, s{sDd}, {N*2}")
    a(f"v_lshlrev_b32 v{voff}, 1, v{lane}")
    a(f"s_lshl_b32 s{sT2}, s{sDd}, 1")
    a("s_waitcnt lgkmcnt(0)")
    a(f"buffer_load_ushort v{vdt}, v{vzero}, s[{sX_}:{sX_+3}], s{sT2} offen")
    a(f"s_mov_b32 s{sX_}, s18"); a(f"s_mov_b32 s{sX_+1}, s19")
    a(f"buffer_load_ushort v{vdk[0]}, v{vzero}, s[{sX_}:{sX_+3}], s{sT2} offen")
    for p in range(3):
        for i, sr in enumerate(SP):
            a(f"buffer_load_ushort v{P[p][i]}, v{voff}, s[{sr}:{sr+3}], s{sT} offen offset:{128*p}")
    a(f"s_mul_i32 s{sBase}, s{sWave}, {CH_REG}")
    a(f"v_mul_u32_u24 v{vwr}, {KG_S}, v{lane}")
    a(f"v_add_u32 v{vwr}, s{sBase}, v{vwr}")
    a(f"v_bfe_u32 v{t0}, v{lane}, 2, 2")
    a(f"v_lshrrev_b32 v{t1}, 5, v{lane}")
    a(f"v_lshl_add_u32 v{t0}, v{t0}, 2, v{t1}")
    a(f"v_mul_u32_u24 v{t0}, {KG_S}, v{t0}")
    a(f"v_bfe_u32 v{t1}, v{lane}, 4, 1")
    a(f"v_lshl_add_u32 v{t0}, v{t1}, 5, v{t0}")
    a(f"v_and_b32 v{t1}, 3, v{lane}")
    a(f"v_lshl_add_u32 v{t0}, v{t1}, 3, v{t0}")
    a(f"v_add_u32 v{vrd}, s{sBase}, v{t0}")
    for i in (13, 15): a(f"v_mov_b32 v{Cr+i}, 0"); a(f"v_mov_b32 v{Ci+i}, 0")
    a("s_waitcnt vmcnt(0)")
    stamp(a, 1)
    a(f"v_lshlrev_b32 v{vdt}, 16, v{vdt}")
    a(f"v_mul_f32 v{t0}, {f32(LOG2E)}, v{vdt}")
    a(f"s_mov_b32 s{sT}, {f32(LOG2E)}")
    a(f"v_fma_f32 v{t1}, v{vdt}, s{sT}, -v{t0}")
    lo = LOG2E - struct.unpack("<f", struct.pack("<f", LOG2E))[0]
    a(f"v_fmac_f32 v{t1}, {f32(lo)}, v{vdt}")
    a(f"v_exp_f32 v{t0}, v{t0}")
    a(f"v_mul_f32 v{t1}, {f32(LN2)}, v{t1}")
    a(f"v_fma_f32 v{t0}, v{t0}, v{t1}, v{t0}")
    bf16r(a, vdt, t0)
    a(f"s_mov_b32 s{sCnt}, 0")
    def cmul(dst, e, m):
        if ENV("KPK", 0):
            a(f"v_pk_mul_f32 {v(T,2)}, {v(e,2)}, {v(m,2)} op_sel:[0,0] op_sel_hi:[0,1]")
            a(f"v_pk_fma_f32 {v(dst,2)}, {v(e,2)}, {v(m,2)}, {v(T,2)} op_sel:[1,1,0] op_sel_hi:[1,0,1] neg_lo:[0,1,0]")
        else:
            assert dst != e and dst != m
            a(f"v_mul_f32 v{dst}, v{e}, v{m}")
            a(f"v_mul_f32 v{dst+1}, v{e}, v{m+1}")
            a(f"v_fma_f32 v{dst}, -v{e+1}, v{m+1}, v{dst}")
            a(f"v_fmac_f32 v{dst+1}, v{e+1}, v{m}")
    def cexp(dst, scale):
        if scale == 1:
            a(f"v_exp_f32 v{t0}, v{a2b}")
            a(f"v_fract_f32 v{t1}, v{a2b+1}")
        else:
            a(f"v_mul_f32 v{t0}, {f32(float(scale))}, v{a2b}")
            a(f"v_mul_f32 v{t1}, {f32(float(scale))}, v{a2b+1}")
            a(f"v_exp_f32 v{t0}, v{t0}")
            a(f"v_fract_f32 v{t1}, v{t1}")
        a(f"v_cos_f32 v{dst}, v{t1}")
        a(f"v_sin_f32 v{dst+1}, v{t1}")
        a(f"v_mul_f32 v{dst}, v{dst}, v{t0}")
        a(f"v_mul_f32 v{dst+1}, v{dst+1}, v{t0}")
    def mfmas():
        for ks in range(8):
            a(f"v_mfma_f32_32x32x16_bf16 {v(accK,16)}, {v(FA[ks],4)}, {v(FB[ks],4)}, {v(accK,16)}")
    def cpair(dw, x, y):
        a(f"v_cvt_pk_bf16_f32 v{Cr+dw}, v{x}, v{y}")
        a(f"v_cvt_pk_bf16_f32 v{Ci+dw}, -v{x+1}, -v{y+1}")
    if ENV("XKG", 0): a("s_branch KG_after")
    a.label("KG_loop")
    a.flush_hist()
    _a = a
    if ENV("XKW", 0) or ENV("XKM", 0) or ENV("XKR", 0):
        class Filt:
            def __call__(self, t):
                if ENV("XKW", 0) and t.startswith("ds_write"): return
                if ENV("XKR", 0) and t.startswith("ds_read"): return
                if ENV("XKM", 0) and t.startswith("v_mfma"): return
                _a(t)
            def __getattr__(self, n): return getattr(_a, n)
        a = Filt()
    p0 = P[0]
    for i in range(4): a(f"v_lshlrev_b32 v{p0[i]}, 16, v{p0[i]}")
    a(f"v_lshlrev_b32 v{V}, 16, v{p0[4]}")
    a(f"v_lshlrev_b32 v{V+1}, 16, v{p0[5]}")
    a(f"v_mul_f32 v{p0[0]}, v{vdt}, v{p0[0]}")
    a(f"v_mul_f32 v{p0[1]}, v{vdt}, v{p0[1]}")
    a(f"v_mul_f32 v{T2}, v{vdt}, v{p0[2]}")
    a(f"v_mul_f32 v{T2+1}, v{vdt}, v{p0[3]}")
    a(f"v_mul_f32 v{a2b}, {f32(LOG2E)}, v{p0[0]}")
    a(f"v_mul_f32 v{a2b+1}, {f32(1.0/(2*math.pi))}, v{p0[1]}")
    cmul(W, V, T2)
    cexp(l8, 8); cexp(l1, 1); cexp(l256, 256)
    if STAMPS: a("s_memtime s[18:19]")
    a("s_waitcnt lgkmcnt(0)")
    if STAMPS:
        a(f"s_cmp_eq_u32 s{sCnt}, 1")
        a("s_cselect_b32 s82, s18, s82")
        a(f"s_cmp_eq_u32 s{sCnt}, 2")
        a("s_cselect_b32 s84, s18, s84")
    a(f"v_cvt_pk_bf16_f32 v{Qr[0]}, 1.0, v{l8}")
    a(f"v_cvt_pk_bf16_f32 v{Qi[0]}, 0, v{l8+1}")
    cur = l8
    for f in range(2, 32, 2):
        if f // 2 - 1 < 8:
            ks = f // 2 - 1
            a(f"v_mfma_f32_32x32x16_bf16 {v(accK,16)}, {v(FA[ks],4)}, {v(FB[ks],4)}, {v(accK,16)}")
        cmul(E0, cur, l8); cmul(E1, E0, l8); cur = E1
        g, dw = f // 8, (f % 8) // 2
        a(f"v_cvt_pk_bf16_f32 v{Qr[g%2]+dw}, v{E0}, v{E1}")
        a(f"v_cvt_pk_bf16_f32 v{Qi[g%2]+dw}, v{E0+1}, v{E1+1}")
        if dw == 3:
            a(f"ds_write_b128 v{vwr}, {v(Qr[g%2],4)} offset:{16*g}")
            a(f"ds_write_b128 v{vwr}, {v(Qi[g%2],4)} offset:{64+16*g}")
    cmul(E0, W, l1); cpair(0, W, E0)
    cmul(G2, E0, l1); cmul(E0, G2, l1); cpair(1, G2, E0)
    cmul(G4, E0, l1); cmul(E0, G4, l1); cpair(4, G4, E0)
    cmul(G6, E0, l1); cmul(E0, G6, l1); cpair(5, G6, E0)
    cmul(E0, G2, l256); cmul(E1, G6, l256); cpair(3, E0, E1)
    cmul(E0, G4, l256); cmul(E1, E0, l256); cpair(7, E0, E1)
    cmul(E0, E1, l256); cpair(11, E0, E0)
    cur = W
    dwv = {1: 2, 2: 6, 3: 10, 4: 8, 5: 9, 6: 12, 7: 14}
    for j in range(1, 8):
        nx = [E0, E2][j % 2]
        cmul(nx, cur, l256); cmul(E1, nx, l8); cpair(dwv[j], nx, E1); cur = nx
        if j in (1, 2):
            g = j - 1
            a(f"ds_write_b128 v{vwr}, {v(Cr+4*g,4)} offset:{128+16*g}")
            a(f"ds_write_b128 v{vwr}, {v(Ci+4*g,4)} offset:{192+16*g}")
        if j in (5, 7):
            g = {5: 2, 7: 3}[j]
            a(f"ds_write_b128 v{vwr}, {v(Cr+4*g,4)} offset:{128+16*g}")
            a(f"ds_write_b128 v{vwr}, {v(Ci+4*g,4)} offset:{192+16*g}")
    for ks in range(8):
        o = (16 * (ks >> 1) + 2 * (ks & 1)) * KG_S
        a(f"ds_read_b64_tr_b16 {v(FA[ks],2)}, v{vrd} offset:{o+128}")
        a(f"ds_read_b64_tr_b16 {v(FA[ks]+2,2)}, v{vrd} offset:{o+192}")
        a(f"ds_read_b64_tr_b16 {v(FB[ks],2)}, v{vrd} offset:{o}")
        a(f"ds_read_b64_tr_b16 {v(FB[ks]+2,2)}, v{vrd} offset:{o+64}")
    for i in range(6):
        a(f"v_mov_b32 v{P[0][i]}, v{P[1][i]}")
        a(f"v_mov_b32 v{P[1][i]}, v{P[2][i]}")
    a(f"s_cmp_eq_u32 s{sCnt}, 0")
    a(f"s_cselect_b32 s{sT}, 0, -1")
    for i in range(16): a(f"v_and_b32 v{accK+i}, s{sT}, v{accK+i}")
    if STAMPS and 0:
        a("s_memtime s[18:19]")
        a("s_waitcnt lgkmcnt(0)")
        a(f"s_cmp_eq_u32 s{sCnt}, 0")
        a("s_cselect_b32 s82, s18, s82")
        a(f"s_cmp_eq_u32 s{sCnt}, 1")
        a("s_cselect_b32 s84, s18, s84")
    a(f"s_add_u32 s{sCnt}, s{sCnt}, 1")
    a(f"s_cmp_lt_u32 s{sCnt}, 3")
    a("s_cbranch_scc1 KG_loop")
    a = _a
    a.label("KG_after")
    stamp(a, 2)
    a(f"buffer_load_dword v{vtok}, v{vzero}, s[{sDBG}:{sDBG+3}], 0 offen sc1")
    vJa = P[0][0]; vJb = P[0][1]; u0 = P[0][2]; u1 = P[0][3]
    a(f"v_and_b32 v{t0}, 31, v{lane}")
    a(f"v_lshlrev_b32 v{t0}, 4, v{t0}")
    a(f"v_lshrrev_b32 v{t1}, 5, v{lane}")
    a(f"v_lshl_add_u32 v{t2}, v{t1}, 9, v{t0}")
    a(f"s_add_u32 s{sT}, s{sBase}, 1008")
    a(f"v_sub_u32 v{vJa}, s{sT}, v{t2}")
    a(f"v_lshlrev_b32 v{t2}, 10, v{t1}")
    a(f"v_sub_u32 v{t2}, v{t2}, v{t0}")
    a(f"s_add_u32 s{sT}, s{sBase}, 496")
    a(f"v_add_u32 v{vJb}, s{sT}, v{t2}")
    Z = Qr[0]
    for i in range(4): a(f"v_mov_b32 v{Z+i}, 0")
    a(f"v_lshrrev_b32 v{u0}, 2, v{lane}")
    a(f"v_mul_u32_u24 v{u0}, {CV_S}, v{u0}")
    a(f"v_and_b32 v{u1}, 3, v{lane}")
    a(f"v_lshl_add_u32 v{u0}, v{u1}, 4, v{u0}")
    a(f"v_add_u32 v{u0}, s{sBase}, v{u0}")
    a("s_mov_b32 s18, 0xaaaaaaaa"); a("s_mov_b32 s19, 0xaaaaaaaa")
    a("s_waitcnt lgkmcnt(0)")
    mfmas()
    a("s_mov_b64 exec, 0xffff")
    a(f"ds_write_b128 v{u0}, {v(Z,4)} offset:4096")
    a("s_mov_b64 exec, -1")
    O = [Cr, Cr + 8, Ci, Ci + 8]
    ac = lambda i: accK + i
    def cv(d, lo_, hi_): a(f"v_cvt_pk_bf16_f32 v{d}, v{lo_}, v{hi_}")
    def seg3(o, e0, e1):
        a(f"v_cndmask_b32 v{t0}, v{e0}, v{e1}, s[18:19]")
        cv(o, e1, e1); cv(o + 1, e1, t0); cv(o + 2, e0, e0); cv(o + 3, e0, e0)
    def seg2(o, e0, e1, e2):
        cv(o, e2, e2); cv(o + 1, e1, e1); cv(o + 2, e1, e0); cv(o + 3, e0, e0)
    seg3(O[3], ac(12), ac(13))
    a(f"v_lshlrev_b32 v{vdk[0]}, 16, v{vdk[0]}")
    a("s_mov_b64 exec, 1")
    a(f"v_add_f32 v{ac(0)}, v{ac(0)}, v{vdk[0]}")
    a("s_mov_b32 exec_lo, -1")
    for m in range(4): cv(O[0] + m, ac(7 - 2*m), ac(6 - 2*m))
    seg3(O[1], ac(8), ac(9)); seg3(O[2], ac(10), ac(11))
    a("s_mov_b32 exec_hi, -1")
    a("s_mov_b32 exec_lo, 0")
    cv(O[0], ac(1), ac(3)); cv(O[0] + 1, ac(6), ac(6)); cv(O[0] + 2, ac(6), ac(2)); cv(O[0] + 3, ac(0), ac(0))
    seg2(O[1], ac(4), ac(7), ac(5)); seg2(O[2], ac(8), ac(10), ac(9))
    a("s_mov_b32 exec_lo, -1")
    adr = [(vJa, 3072), (vJb, 1536), (vJb, 1024), (vJa, 0)]
    for p in range(4):
        a(f"ds_write_b128 v{adr[p][0]}, {v(O[p],4)} offset:{adr[p][1]}")
    for p in range(4):
        a(f"ds_read_b64 {v(O[p]+4,2)}, v{adr[p][0]} offset:{adr[p][1]+16}")
    stamp(a, 11)
    a("s_waitcnt vmcnt(0)")
    check_token(a, vtok, vzero)
    a("s_waitcnt lgkmcnt(0)")
    for p in range(4):
        Kt = [FA[(3*p + c) % 8] for c in range(3)]
        kin = O[p]
        for k in range(4): a(f"v_alignbyte_b32 v{Kt[0]+k}, v{kin+k+1}, v{kin+k}, 2")
        for k in range(4): a(f"v_mov_b32 v{Kt[1]+k}, v{kin+k+1}")
        for k in range(4): a(f"v_alignbyte_b32 v{Kt[2]+k}, v{kin+k+2}, v{kin+k+1}, 2")
        for c in range(3): a(f"ds_write_b128 v{adr[p][0]}, {v(Kt[c],4)} offset:{adr[p][1] + (c+1)*CV_S}")
    a("s_branch S_join")
    hi = R.hi

    a.label("S_w2t"); a.flush_hist()
    toks = {}
    a("s_waitcnt lgkmcnt(0)")
    a(f"v_mov_b32 v{vtok}, 0")
    check_token(a, vtok, vzero, sleep=32)
    a("s_branch S_join")

    a.label("S_ln"); a.flush_hist()
    R.reset(base)
    voff = R(); vlw = R(); vtr = R()
    Xr = [R(4, 4) for _ in range(10)]
    U = [R(2, 2) for _ in range(40)]
    sm = R(2, 2); mb = R(2, 2); rs = R(2, 2); T = [R(2, 2) for _ in range(4)]; gr = R(2, 2)
    ones = R()
    O = [R(4, 4) for _ in range(4)]
    a(f"s_load_dwordx2 s[{sX_}:{sX_+1}], s[0:1], 0")
    a("s_memrealtime s[18:19]")
    srd(a, sX_, L * D * 2)
    a(f"v_lshrrev_b32 v{t0}, 3, v{lane}")
    a(f"v_and_b32 v{t1}, 7, v{lane}")
    a(f"v_lshlrev_b32 v{t1}, 4, v{t1}")
    a(f"v_mul_u32_u24 v{voff}, 1280, v{t0}")
    a(f"v_add_u32 v{voff}, v{voff}, v{t1}")
    a(f"v_mul_u32_u24 v{vlw}, {LN_S}, v{t0}")
    a(f"v_add_u32 v{vlw}, v{vlw}, v{t1}")
    a(f"v_add_u32 v{vlw}, {LN_OFF}, v{vlw}")
    a(f"s_lshl_b32 s{sT3}, s{sXc}, 5")
    a(f"s_add_u32 s{sT3}, s{sT3}, s{sA}")
    a(f"s_mul_i32 s{sT}, s{sT3}, {8*1280}")
    a("s_waitcnt lgkmcnt(0)")
    a(f"s_cmp_ge_u32 s2, 8")
    a("s_cbranch_scc1 S_ln_nt")
    a("s_or_b32 s18, s18, 1")
    a(f"v_mov_b32 v{gr}, s18")
    a(f"v_mov_b32 v{gr+1}, 0")
    a("s_mov_b64 exec, 1")
    a(f"buffer_atomic_cmpswap {v(gr,2)}, v{vzero}, s[{sDBG}:{sDBG+3}], 0 offen"); a.vm -= 1
    a("s_mov_b64 exec, -1")
    a.label("S_ln_nt")
    for i in range(10):
        a(f"buffer_load_dwordx4 {v(Xr[i],4)}, v{voff}, s[{sX_}:{sX_+3}], s{sT} offen offset:{128*i}")
    a(f"v_mov_b32 v{ones}, 0x3f803f80")
    a(f"v_mov_b32 v{sm}, 0")
    a("s_waitcnt vmcnt(0)")
    stamp(a, 1)
    a(f"buffer_load_dword v{vtok}, v{vzero}, s[{sDBG}:{sDBG+3}], 0 offen sc1")
    for i in range(40):
        a(f"v_dot2_f32_bf16 v{sm}, v{Xr[i//4] + i%4}, v{ones}, v{sm}")
    def red8(r_):
        a(f"v_add_f32_dpp v{r_}, v{r_}, v{r_} quad_perm:[1,0,3,2] row_mask:0xf bank_mask:0xf")
        a(f"v_add_f32_dpp v{r_}, v{r_}, v{r_} quad_perm:[2,3,0,1] row_mask:0xf bank_mask:0xf")
        a(f"v_add_f32_dpp v{r_}, v{r_}, v{r_} row_half_mirror row_mask:0xf bank_mask:0xf")
    for i in range(40):
        x = Xr[i//4] + i % 4
        a(f"v_lshlrev_b32 v{U[i]}, 16, v{x}")
        a(f"v_and_b32 v{U[i]+1}, 0xffff0000, v{x}")
    red8(sm)
    a(f"v_mul_f32 v{sm}, {f32(1.0/D)}, v{sm}")
    bf16r(a, mb, sm)
    a(f"v_mov_b32 v{rs}, 0"); a(f"v_mov_b32 v{rs+1}, 0")
    for i in range(40):
        if ENV("LPK", 0):
            a(f"v_pk_add_f32 {v(U[i],2)}, {v(U[i],2)}, {v(mb,2)} op_sel_hi:[1,0] neg_lo:[0,1] neg_hi:[0,1]")
            a(f"v_pk_fma_f32 {v(rs,2)}, {v(U[i],2)}, {v(U[i],2)}, {v(rs,2)}")
        else:
            for h in range(2):
                a(f"v_sub_f32 v{U[i]+h}, v{U[i]+h}, v{mb}")
                a(f"v_fmac_f32 v{rs+h}, v{U[i]+h}, v{U[i]+h}")
    a(f"v_add_f32 v{rs}, v{rs}, v{rs+1}")
    red8(rs)
    a(f"v_sub_f32 v{t0}, v{sm}, v{mb}")
    a(f"v_mul_f32 v{t0}, v{t0}, v{t0}")
    a(f"v_mul_f32 v{rs}, {f32(1.0/D)}, v{rs}")
    a(f"v_sub_f32 v{rs}, v{rs}, v{t0}")
    a(f"v_max_f32 v{rs}, 0, v{rs}")
    bf16r(a, rs, rs)
    a(f"v_add_f32 v{rs}, {f32(1e-5)}, v{rs}")
    bf16r(a, rs, rs)
    a(f"v_sqrt_f32 v{rs}, v{rs}")
    a(f"v_cvt_pk_bf16_f32 v{gr}, v{mb}, v{rs}")
    a(f"v_and_b32 v{rs}, 0xffff0000, v{gr}")
    a(f"v_rcp_f32 v{rs}, v{rs}")
    for i in range(40):
        x = Xr[i//4] + i % 4
        if ENV("LPK", 0): a(f"v_pk_mul_f32 {v(U[i],2)}, {v(U[i],2)}, {v(rs,2)} op_sel_hi:[1,0]")
        else:
            for h in range(2): a(f"v_mul_f32 v{U[i]+h}, v{U[i]+h}, v{rs}")
        a(f"v_cvt_pk_bf16_f32 v{x}, v{U[i]}, v{U[i]+1}")
        if i % 4 == 3:
            a(f"ds_write_b128 v{vlw}, {v(Xr[i//4],4)} offset:{128*(i//4)}")
    a(f"v_bfe_u32 v{t1}, v{lane}, 2, 2")
    a(f"v_mul_u32_u24 v{t1}, {LN_S}, v{t1}")
    a(f"v_lshrrev_b32 v{t0}, 4, v{lane}")
    a(f"v_lshl_add_u32 v{t1}, v{t0}, 5, v{t1}")
    a(f"v_and_b32 v{t2}, 3, v{lane}")
    a(f"v_lshl_add_u32 v{t1}, v{t2}, 3, v{t1}")
    a(f"v_add_u32 v{vtr}, {LN_OFF}, v{t1}")
    a(f"s_mul_i32 s{sT}, s{sT3}, 10240")
    def rd(i):
        o = O[i % 4]
        for e in range(2):
            a(f"ds_read_b64_tr_b16 {v(o+2*e,2)}, v{vtr} offset:{128*i + 4*e*LN_S}")
        toks[i] = a.ltok()
    for i in range(3): rd(i)
    for i in range(10):
        if i + 3 < 10: rd(i + 3)
        a.wait(lg=toks[i])
        a(f"buffer_store_dwordx4 {v(O[i%4],4)}, v{v16}, s[{sWS}:{sWS+3}], s{sT} offen sc1")
        a(f"s_add_u32 s{sT}, s{sT}, 1024")
    a("s_waitcnt vmcnt(10)")
    check_token(a, vtok, vzero)
    a(f"v_mov_b32 v{gr+1}, s{sTok}")
    a(f"s_lshl_b32 s{sT}, s{sT3}, 7")
    a(f"s_add_u32 s{sT2}, s{sT}, {WS_STAT}")
    a("s_mov_b32 exec_lo, 0x01010101"); a("s_mov_b32 exec_hi, 0x01010101")
    a(f"buffer_store_dwordx2 {v(gr,2)}, v{lane}, s[{sWS}:{sWS+3}], s{sT2} offen sc1")
    a(f"s_add_u32 s{sT}, s{sT}, {WS_FLN}")
    a("s_waitcnt vmcnt(0)")
    a("s_mov_b64 exec, 1")
    a(f"buffer_store_dword v{gr+1}, v{vzero}, s[{sWS}:{sWS+3}], s{sT} offen sc1")
    a("s_mov_b64 exec, -1")
    stamp(a, 2)
    if ONLY: a("s_branch S_end")
    a(f"v_mul_u32_u24 v{t0}, 10240, v{lane}")
    a(f"v_lshlrev_b32 v{t1}, 7, v{lane}")
    a(f"s_cmp_eq_u32 s{sHeavy}, 0")
    a(f"s_cselect_b32 s{sCnt}, s{sD[0]}, s{sD[2]}")
    if ENV("UPF", 0):
        a(f"s_lshl_b32 s{sT3}, s{sA}, 10")
        a(f"s_add_u32 s{sT3}, s{sT3}, {WS_FLN}")
        a(f"v_mov_b32 v{O[1]}, s{sTok}")
        ldu = lambda: a(f"buffer_load_dword v{O[1]}, v{t1}, s[{sWS}:{sWS+3}], s{sT3} offen sc1")
        a("s_mov_b64 exec, 0xff"); a(f"v_mov_b32 v{O[1]}, 0"); a("s_mov_b64 exec, -1")
        a(f"v_lshrrev_b32 v{t2}, 3, v{lane}")
        a(f"v_mul_u32_u24 v{t2}, 10240, v{t2}")
        a(f"v_and_b32 v{t3}, 7, v{lane}")
        a(f"v_lshl_add_u32 v{t2}, v{t3}, 7, v{t2}")
        a("s_waitcnt vmcnt(0)")
        check_flags(a, [O[1]], t1, ldu, sleep=ENV("USL1", 12))
        a(f"s_mul_i32 s{sT}, s{sA}, {8*10240}")
        a(f"s_lshl_b32 s{sT2}, s{sXc}, 10")
        a(f"s_add_u32 s{sT2}, s{sT2}, s{sT}")
        for q_ in range(4):
            m_ = 0xffff << (16 * q_)
            a(f"s_mov_b32 exec_lo, {hex(m_ & 0xffffffff)}"); a(f"s_mov_b32 exec_hi, {hex(m_ >> 32)}")
            a(f"buffer_load_dword v{O[1]+1}, v{t2}, s[{sWS}:{sWS+3}], s{sT2} offen sc1")
            if q_ % 2: a("s_waitcnt vmcnt(0)")
        a(f"s_lshl_b32 s{sT2}, s{sXc}, 8")
        a(f"s_add_u32 s{sT2}, s{sT2}, s{sT}")
        a(f"s_add_u32 s{sT2}, s{sT2}, 8192")
        a("s_mov_b32 exec_lo, 0x03030303"); a("s_mov_b32 exec_hi, 0x03030303")
        a(f"buffer_load_dword v{O[1]+1}, v{t2}, s[{sWS}:{sWS+3}], s{sT2} offen sc1")
        a("s_mov_b64 exec, -1")
        stamp(a, 11)
    a(f"s_lshl_b32 s{sT3}, s2, 7")
    a(f"s_add_u32 s{sT3}, s{sT3}, {WS_FPACE}")
    a(f"s_mov_b32 s{sSpin}, 0")
    a("s_mov_b64 exec, 1")
    a.label("S_pace")
    a(f"s_sleep {ENV('PSLEEP', 8)}")
    a(f"buffer_load_dword v{t2}, v{vzero}, s[{sWS}:{sWS+3}], s{sT3} offen sc1")
    a("s_waitcnt vmcnt(0)")
    a(f"v_readfirstlane_b32 s{sT}, v{t2}")
    a(f"s_cmp_eq_u32 s{sT}, s{sTok}")
    a("s_cbranch_scc1 S_paced")
    a(f"s_add_u32 s{sSpin}, s{sSpin}, 1")
    a(f"s_cmp_lt_u32 s{sSpin}, {ENV('PMAX', 24)}")
    a("s_cbranch_scc1 S_pace")
    a.label("S_paced")
    a("s_mov_b64 exec, -1")
    stamp(a, 10)
    for g in range(4):
        a(f"s_mov_b32 s{sT3}, {WS_FLN + 8192*g}")
        a(f"buffer_load_dword v{O[0]+g}, v{t1}, s[{sWS}:{sWS+3}], s{sT3} offen sc1")
    a("s_waitcnt vmcnt(0)")
    for g in range(4):
        a(f"s_mov_b32 s{sT3}, {WS_FLN + 8192*g}")
        ldf = lambda: a(f"buffer_load_dword v{O[0]+g}, v{t1}, s[{sWS}:{sWS+3}], s{sT3} offen sc1")
        check_flags(a, [O[0] + g], t1, ldf, sleep=ENV("LNSLEEP", 6))
    stamp(a, 9)
    Uq_ = [U[0] + 4 * i for i in range(12)]
    assert U[0] % 4 == 0
    a(f"v_lshrrev_b32 v{t1}, 1, v{lane}")
    a(f"v_and_b32 v{t3}, 1, v{lane}")
    a(f"v_mul_u32_u24 v{t2}, 10240, v{t1}")
    a(f"v_lshl_add_u32 v{t2}, v{t3}, 4, v{t2}")
    a(f"v_mul_u32_u24 v{t3}, 4608, v{t3}")
    a(f"v_lshl_add_u32 v{t3}, v{t1}, 4, v{t3}")
    a(f"s_lshl_b32 s{sT}, s{sD[0]}, 4")
    for g in range(8):
        if g: a(f"s_add_u32 s{sT}, s{sT}, {32*10240}")
        a(f"buffer_load_dwordx4 {v(Uq_[g],4)}, v{t2}, s[{sWS}:{sWS+3}], s{sT} offen sc1")
    a(f"s_cmp_eq_u32 s{sHeavy}, 0")
    a("s_cbranch_scc1 S_g2")
    a(f"s_lshl_b32 s{sT}, s{sD[2]}, 4")
    for g in range(4):
        if g: a(f"s_add_u32 s{sT}, s{sT}, {64*10240}")
        a(f"buffer_load_dwordx4 {v(Uq_[8+g],4)}, v{t0}, s[{sWS}:{sWS+3}], s{sT} offen sc1")
    a("s_waitcnt vmcnt(0)")
    for g in range(4):
        a(f"ds_write_b128 v{v16}, {v(Uq_[8+g],4)} offset:{CV_U[2] + 1024*g}")
    a.label("S_g2")
    for g in range(8):
        a(f"s_waitcnt vmcnt({7-g})")
        a(f"ds_write_b128 v{t3}, {v(Uq_[g],4)} offset:{CV_U[0] + 512*g}")
    stamp(a, 4)
    hi = max(hi, R.hi)

    a.label("S_join"); a.flush_hist()
    if ONLY: a("s_branch S_end")
    if ENV("SPRIO", 0): a(f"s_setprio {ENV('SPRIO', 0)}")
    stamp(a, 3)
    R.reset(base)
    acc = [R(4, 4) for _ in range(8)]
    FA = [[R(4, 4) for _ in range(8)] for _ in range(2)]
    FB = [[R(4, 4) for _ in range(8)] for _ in range(2)]
    vA = R(); vBq = R(); vA0 = R(); vB0 = R(); vrw = R(); vrr = R(); vfl = R(); vfa = R(); vtk = R()
    a(f"s_and_b32 s{sPar}, s{sWave}, 1")
    Z = FB[0][3]
    for i in range(4): a(f"v_mov_b32 v{Z+i}, 0")
    a(f"s_min_u32 s{sT}, s{sWave}, 2")
    a(f"s_mul_i32 s{sT}, s{sT}, 4608")
    a(f"v_add_u32 v{t2}, s{sT}, v{v16}")
    a("s_mov_b32 exec_hi, 0")
    a(f"ds_write_b128 v{t2}, {v(Z,4)} offset:{CV_U[0]-512}")
    a("s_mov_b32 exec_hi, -1")
    a(f"v_and_b32 v{t0}, 15, v{lane}")
    a(f"v_sub_u32 v{t2}, 15, v{t0}")
    a(f"v_and_b32 v{t3}, 3, v{t2}")
    a(f"v_sub_u32 v{t2}, v{t2}, v{t3}")
    a(f"v_mul_u32_u24 v{t3}, {CV_S}, v{t3}")
    a(f"v_lshl_add_u32 v{t3}, v{t2}, 1, v{t3}")
    a(f"v_lshrrev_b32 v{t2}, 4, v{lane}")
    a(f"v_lshl_add_u32 v{vA0}, v{t2}, 4, v{t3}")
    a(f"v_lshlrev_b32 v{t3}, 4, v{t2}")
    a(f"v_lshl_add_u32 v{vB0}, v{t0}, 5, v{t3}")
    a(f"v_lshrrev_b32 v{t3}, 1, v{t2}")
    a(f"v_lshlrev_b32 v{t3}, 3, v{t3}")
    a(f"v_xor_b32 v{t3}, v{t3}, v{t0}")
    a(f"v_lshlrev_b32 v{t3}, 4, v{t3}")
    a(f"v_lshl_add_u32 v{t3}, v{t2}, 8, v{t3}")
    a(f"s_lshl_b32 s{sT}, s{sWave}, 13")
    a(f"v_add_u32 v{vrw}, s{sT}, v{t3}")
    a(f"v_bfe_u32 v{t0}, v{lane}, 1, 4")
    a(f"v_and_b32 v{t2}, 1, v{lane}")
    a(f"v_lshlrev_b32 v{t3}, 3, v{t2}")
    a(f"v_xor_b32 v{t0}, v{t0}, v{t3}")
    a(f"v_lshlrev_b32 v{t0}, 4, v{t0}")
    a(f"v_lshl_add_u32 v{t0}, v{t2}, 9, v{t0}")
    a(f"v_lshrrev_b32 v{t2}, 5, v{lane}")
    a(f"v_lshl_add_u32 v{vrr}, v{t2}, 10, v{t0}")
    a(f"v_mov_b32 v{vtk}, s{sTok}")
    a(f"s_mul_i32 s{sT}, s{sSlot}, {CH_REG}")
    a(f"s_lshl_b32 s{sT2}, s{sPar}, 8")
    a(f"s_sub_u32 s{sT}, s{sT}, s{sT2}")
    a(f"s_add_u32 s{sT}, s{sT}, {32*14}")
    a(f"v_add_u32 v{vA}, s{sT}, v{vA0}")
    a(f"s_mul_i32 s{sT}, s{sSlot}, 4608")
    a(f"s_sub_u32 s{sT}, s{sT}, s{sT2}")
    a(f"s_add_u32 s{sT}, s{sT}, {CV_U[0] - 512 + 32*15}")
    a(f"v_add_u32 v{vBq}, s{sT}, v{vB0}")
    sDa, sDb, sJa, sJb = 20, 21, 22, 23
    a(f"s_lshl_b32 s{sT3}, s{sWave}, 7")
    a(f"s_sub_u32 s{sJb}, s{sT}, 192")
    a(f"s_sub_u32 s{sJb}, s{sJb}, {CV_U[2] - 512 + 32*15}")
    a(f"s_add_u32 s{sJb}, s{sJb}, s{sT3}")
    a(f"s_mul_i32 s{sJa}, s{sSlot}, {CH_REG}")
    a(f"s_sub_u32 s{sJa}, s{sJa}, s{sT2}")
    a(f"s_sub_u32 s{sJa}, s{sJa}, {192 + 2*CH_REG}")
    a(f"s_add_u32 s{sJa}, s{sJa}, s{sT3}")
    acc1 = [R(4, 4) for _ in range(8)]
    for c in range(8):
        for i in range(4):
            a(f"v_mov_b32 v{acc[c]+i}, 0"); a(f"v_mov_b32 v{acc1[c]+i}, 0")
    a(f"s_mov_b32 s{sCnt}, 0")
    a(f"s_add_u32 s{sRound}, s{sHeavy}, 2")
    a("s_waitcnt vmcnt(0) lgkmcnt(0)")
    a("s_barrier")
    stamp(a, 5)

    def rdlist(st, da="64", db="64"):
        rd_ = []
        for j in range(8):
            rd_.append(f"ds_read_b128 {v(FB[st][j],4)}, v{vBq} offset:{512*j}")
            rd_.append(f"ds_read_b64 {v(FA[st][j],2)}, v{vA} offset:{512*(7-j)}")
            rd_.append(f"ds_read_b64 {v(FA[st][j]+2,2)}, v{vA} offset:{512*(7-j)+8}")
        rd_.append(f"v_subrev_u32 v{vA}, {da}, v{vA}")
        rd_.append(f"v_subrev_u32 v{vBq}, {db}, v{vBq}")
        return rd_
    def group(st, nxt, da="64", db="64"):
        pairs = sorted([(c, j) for c in range(8) for j in range(c + 1)], key=lambda cj: (max(cj[1], cj[0] - cj[1]), cj[0]))
        rd_ = rdlist(nxt, da, db)
        for i, (c, j) in enumerate(pairs):
            a(f"v_mfma_f32_16x16x32_bf16 {v(acc[c],4)}, {v(FA[st][j],4)}, {v(FB[st][c-j],4)}, {v(acc[c],4)}")
            if i < len(rd_): a(rd_[i])
    for x in rdlist(0): a(x)
    a.label("CV_loop")
    a(f"s_cmp_eq_u32 s{sCnt}, 1")
    a(f"s_cselect_b32 s{sDa}, s{sJa}, 64")
    a(f"s_cselect_b32 s{sDb}, s{sJb}, 64")
    a("s_waitcnt lgkmcnt(0)")
    group(0, 1, f"s{sDa}", f"s{sDb}")
    a("s_waitcnt lgkmcnt(0)")
    group(1, 0)
    a(f"s_add_u32 s{sCnt}, s{sCnt}, 1")
    a(f"s_cmp_eq_u32 s{sCnt}, 1")
    a("s_cbranch_scc1 CV_loop")
    a(f"s_cmp_eq_u32 s{sCnt}, 3")
    a("s_cbranch_scc1 CV_done")
    for c in range(8):
        for i in range(4): a(f"v_swap_b32 v{acc[c]+i}, v{acc1[c]+i}")
    a(f"s_cmp_lg_u32 s{sHeavy}, 0")
    a("s_nop 0")
    a("s_cbranch_scc1 CV_loop")
    a.label("CV_done")
    a("s_nop 7")
    a("s_waitcnt lgkmcnt(0)")
    a("s_barrier")
    stamp(a, 6)
    for c in range(8):
        a(f"ds_write_b128 v{vrw}, {v(acc1[c],4)} offset:{1024*c}")
    a(f"s_cmp_eq_u32 s{sHeavy}, 0")
    a("s_cbranch_scc1 CV_w1")
    for c in range(8):
        a(f"ds_write_b128 v{vrw}, {v(acc[c],4)} offset:{32768 + 1024*c}")
    a.label("CV_w1")
    a(f"s_lshl_b32 s{sT}, s{sSlot}, 14")
    a(f"s_lshl_b32 s{sT2}, s{sPar}, 12")
    a(f"s_add_u32 s{sT}, s{sT}, s{sT2}")
    a(f"v_add_u32 v{t0}, s{sT}, v{vrr}")
    a(f"s_lshl_b32 s{sT}, s{sWave}, 11")
    a(f"v_add_u32 v{t1}, s{sT}, v{vrr}")
    a(f"s_add_u32 s{sT}, s{sD[0]}, s{sSlot}")
    a(f"s_lshl_b32 s{sT3}, s{sT}, 12")
    a(f"s_lshl_b32 s{sT2}, s{sPar}, 11")
    a(f"s_add_u32 s{sT3}, s{sT3}, s{sT2}")
    a(f"s_add_u32 s{sT3}, s{sT3}, {WS_ST}")
    a(f"s_lshl_b32 s{sT}, s{sT}, 7")
    a(f"s_lshl_b32 s{sT2}, s{sPar}, 3")
    a(f"s_add_u32 s{sT}, s{sT}, s{sT2}")
    a(f"s_add_u32 s{sJa}, s{sT}, {WS_FST}")
    a(f"v_lshlrev_b32 v{t2}, 2, v{lane}")
    a("s_waitcnt lgkmcnt(0)")
    a("s_barrier")
    stamp(a, 7)
    Rd = FA[1]; Re = FA[0]
    for b in range(2):
        for p in range(2):
            for e in range(2):
                a(f"ds_read_b128 {v(Rd[(b*2+p)*2+e],4)}, v{t0} offset:{8192*p + 2048*b + 256*e}")
    for p in range(4):
        for e in range(2):
            a(f"ds_read_b128 {v(Re[p*2+e],4)}, v{t1} offset:{32768 + 8192*p + 256*e}")
    def finish(Rr, bs, npart, o):
        for p in range(1, npart):
            for e in range(2):
                for z in range(4):
                    a(f"v_add_f32 v{Rr[bs+e]+z}, v{Rr[bs+e]+z}, v{Rr[bs+2*p+e]+z}")
        for m in range(4):
            y = Rr[bs + m // 2] + 2 * (m % 2)
            a(f"v_cvt_pk_bf16_f32 v{o+m}, v{y}, v{y+1}")
    for b in range(2):
        a(f"s_waitcnt lgkmcnt({12 - 4*b})")
        finish(Rd, 4 * b, 2, FB[1][b])
        a(f"buffer_store_dwordx4 {v(FB[1][b],4)}, v{v16}, s[{sWS}:{sWS+3}], s{sT3} offen offset:{1024*b} sc1")
    a(f"s_cmp_eq_u32 s{sHeavy}, 0")
    a("s_cbranch_scc1 CV_f1")
    a(f"s_lshl_b32 s{sT3}, s{sWave}, 10")
    a(f"s_lshl_b32 s{sT}, s{sD[2]}, 12")
    a(f"s_add_u32 s{sT2}, s{sT3}, s{sT}")
    a(f"s_add_u32 s{sT2}, s{sT2}, {WS_ST}")
    a("s_waitcnt lgkmcnt(0)")
    finish(Re, 0, 4, FB[1][2])
    a(f"buffer_store_dwordx4 {v(FB[1][2],4)}, v{v16}, s[{sWS}:{sWS+3}], s{sT2} offen sc1")
    a(f"s_lshl_b32 s{sT}, s{sD[2]}, 7")
    a(f"s_lshl_b32 s{sT2}, s{sWave}, 2")
    a(f"s_add_u32 s{sT}, s{sT}, s{sT2}")
    a(f"s_add_u32 s{sT}, s{sT}, {WS_FST}")
    a("s_waitcnt vmcnt(0)")
    a("s_mov_b64 exec, 1")
    a(f"buffer_store_dword v{vtk}, v{vzero}, s[{sWS}:{sWS+3}], s{sT} offen sc1")
    a("s_branch CV_f2")
    a.label("CV_f1")
    a("s_waitcnt vmcnt(0)")
    a.label("CV_f2")
    a("s_mov_b64 exec, 3")
    a(f"buffer_store_dword v{vtk}, v{t2}, s[{sWS}:{sWS+3}], s{sJa} offen sc1")
    a.label("S_end")
    stamp_end(a, sWave)
    return max(hi, R.hi)

W_SLOT = 12288
X_OFF = 3 * W_SLOT
X_WAVE = 11264
NXU = 5
def g_role(a):
    sX, sW1, sB1, sOUT, sW2 = 20, 24, 28, 32, 52
    sRB, sCB, sTB, sJD, sId = 36, 37, 38, 39, 3
    sP = [40, 41, 42]
    sWoff, sXoff, sM0w, sM0x, sOA, sOB = 43, 44, 45, 46, 47, 48
    R = Alloc(1)
    lane = R(); t0 = R(); t1 = R(); t2 = R(); t3 = R(); vzero = R(); vtok = R(); v16 = R(); vfa = R()
    vfl = R(); vsa = R()
    NWR = 25
    NWI = 18
    WR = [R(4, 4) for _ in range(NWR)]
    base2 = pool = R.mark()
    R.reset(184)
    acc = [[R(4, 4) for ct in range(2)] for rt in range(6)]
    cs = [R(4, 4) for _ in range(2)]
    st = [R(2, 2) for _ in range(2)]
    b1p = [R(2, 2) for _ in range(6)]
    R.reset(WR[NWI]); R.limit = 184
    A = [[R(4, 4) for rt in range(6)] for _ in range(2)]
    X = [[[R(4, 4) for ct in range(2)] for e in range(2)] for _ in range(2)]
    ones = R(4, 4)
    vE = [R() for _ in range(3)]; vO = [R() for _ in range(3)]
    vW = [R() for _ in range(3)]; vXs = [R(), R()]; vXr = [R(), R()]
    vpf = R(); vpd = R()
    stamp_begin(a)
    if ENV("GPRIO", 0): a(f"s_setprio {ENV('GPRIO', 0)}")
    a(f"s_load_dwordx2 s[{sX}:{sX+1}], s[0:1], 0")
    a(f"s_load_dwordx2 s[{sW1}:{sW1+1}], s[0:1], 80")
    a(f"s_load_dwordx2 s[{sW2}:{sW2+1}], s[0:1], 96")
    a(f"v_lshrrev_b32 v{t0}, 6, v0")
    a(f"v_and_b32 v{lane}, 63, v0")
    a(f"v_readfirstlane_b32 s{sWave}, v{t0}")
    a(f"s_sub_u32 s{sId}, s2, 256")
    srd(a, sX, L * D * 2); srd(a, sW1, D * F * 2)
    pfx = A[1][0]; pfw = A[1][0] + 1
    a(f"s_lshr_b32 s{sT3}, s{sId}, 3")
    a(f"s_lshl_b32 s{sT3}, s{sT3}, 2")
    a(f"s_add_u32 s{sT3}, s{sT3}, s{sWave}")
    a(f"v_mul_u32_u24 v{t1}, 0xaaab, v{lane}")
    a(f"v_lshrrev_b32 v{t1}, 18, v{t1}")
    a(f"v_mul_u32_u24 v{t2}, 6, v{t1}")
    a(f"v_sub_u32 v{t2}, v{lane}, v{t2}")
    a(f"v_mul_u32_u24 v{t1}, {64*3072}, v{t1}")
    a(f"v_lshl_add_u32 v{t1}, v{t2}, 7, v{t1}")
    a(f"s_lshr_b32 s{sT2}, s{sT3}, 1")
    a(f"s_mul_i32 s{sT2}, s{sT2}, 3072")
    a(f"s_and_b32 s{sT}, s{sId}, 1")
    a(f"s_lshl_b32 s{sT}, s{sT}, 1")
    a(f"s_and_b32 s{sRB}, s{sT3}, 1")
    a(f"s_add_u32 s{sT}, s{sT}, s{sRB}")
    a(f"s_mul_i32 s{sT}, s{sT}, 768")
    a(f"s_add_u32 s{sT2}, s{sT2}, s{sT}")
    a(f"v_add_u32 v{pfw}, s{sT2}, v{t1}")
    XH = ENV("XHALF", 0)
    XR = 2 if XH else 4
    a(f"v_lshrrev_b32 v{t2}, {1 if XH else 2}, v{lane}")
    a(f"v_lshlrev_b32 v{t2}, 7, v{t2}")
    a(f"v_and_b32 v{t3}, {XR-1}, v{lane}")
    a(f"v_mul_u32_u24 v{t3}, 1280, v{t3}")
    a(f"v_add_u32 v{t2}, v{t2}, v{t3}")
    if XH:
        a(f"s_and_b32 s{sT}, s{sId}, 7")
        a(f"s_xor_b32 s{sT}, s{sT}, 1")
    else: a(f"s_bfe_u32 s{sT}, s{sId}, 0x20001")
    a(f"s_lshl_b32 s{sT}, s{sT}, 7")
    a(f"s_add_u32 s{sT}, s{sT}, s{sT3}")
    a(f"s_mul_i32 s{sT}, s{sT}, {XR*1280}")
    a(f"v_add_u32 v{pfx}, s{sT}, v{t2}")
    a("s_waitcnt lgkmcnt(0)")
    stamp(a, 1)
    def do_pf(c0, c1):
        def mask(lo, hi):
            m = ((1 << hi) - 1) & ~((1 << lo) - 1)
            a(f"s_mov_b32 exec_lo, {hex(m & 0xffffffff)}"); a(f"s_mov_b32 exec_hi, {hex(m >> 32)}")
        mask(XR * c0, XR * c1)
        a(f"buffer_load_dword v{vpd}, v{pfx}, s[{sX}:{sX+3}], 0 offen")
        mask(6 * c0, 6 * c1)
        a(f"buffer_load_dword v{vpd}, v{pfw}, s[{sW1}:{sW1+3}], 0 offen")
        a("s_mov_b64 exec, -1")
    PFA_ = ENV("PFSPLIT", 2)
    if not ENV("NOPFA", 0): do_pf(0, PFA_)
    if ENV("OWN", 0):
        m = (((1 << 60) - 1) & ~((1 << (6 * PFA_)) - 1))
        a(f"s_bfe_u32 s{sT}, s{sId}, 0x20001")
        a("s_mov_b32 s18, 0x11111111"); a("s_mov_b32 s19, 0x11111111")
        a(f"s_lshl_b64 s[18:19], s[18:19], s{sT}")
        a(f"s_and_b32 exec_lo, s18, {hex(m & 0xffffffff)}"); a(f"s_and_b32 exec_hi, s19, {hex(m >> 32)}")
        a(f"buffer_load_dword v{vpd}, v{pfw}, s[{sW1}:{sW1+3}], 0 offen")
        a("s_mov_b64 exec, -1")
    srd(a, sW2, F * D * 2)
    a(f"s_mul_i32 s{sT}, s{sT3}, {15*128}")
    a(f"v_lshl_add_u32 v{vpf}, v{lane}, 7, s{sT}")
    def op_pf2(j):
        def f():
            a(f"s_add_u32 s{sT2}, s{sId}, {j}")
            a(f"s_and_b32 s{sT2}, s{sT2}, 7")
            a(f"s_mul_i32 s{sT2}, s{sT2}, {128*15*128}")
            a("s_mov_b64 exec, 0x7fff")
            a(f"buffer_load_dword v{vpd}, v{vpf}, s[{sW2}:{sW2+3}], s{sT2} offen")
            a("s_mov_b64 exec, -1")
        return f
    if ENV("PF20", 4) == -2: op_pf2(0)()
    a(f"s_load_dwordx2 s[{sB1}:{sB1+1}], s[0:1], 88")
    a(f"s_load_dwordx2 s[{sWS}:{sWS+1}], s[0:1], 120")
    a(f"s_load_dwordx2 s[{sDBG}:{sDBG+1}], s[0:1], 112")
    a(f"s_load_dwordx2 s[{sOUT}:{sOUT+1}], s[0:1], 104")
    srd(a, sB1, F * 2); srd(a, sWS, WS_SIZE); srd(a, sDBG, 256); srd(a, sOUT, L * D * 2)
    a(f"s_and_b32 s{sT}, s{sId}, 7")
    a(f"s_lshr_b32 s{sT2}, s{sId}, 3")
    a(f"s_lshr_b32 s{sRB}, s{sT}, 1")
    a(f"s_lshl_b32 s{sTB}, s{sT}, 2")
    a(f"s_lshl_b32 s{sRB}, s{sRB}, 2")
    a(f"s_and_b32 s{sT3}, s{sT2}, 3")
    a(f"s_add_u32 s{sRB}, s{sRB}, s{sT3}")
    a(f"s_add_u32 s{sTB}, s{sTB}, s{sT3}")
    a(f"s_and_b32 s{sT}, s{sT}, 1")
    a(f"s_lshl_b32 s{sCB}, s{sT}, 3")
    a(f"s_lshr_b32 s{sJD}, s{sT2}, 2")
    a(f"s_add_u32 s{sCB}, s{sCB}, s{sJD}")
    a(f"v_mov_b32 v{vzero}, 0")
    a(f"v_lshlrev_b32 v{v16}, 4, v{lane}")
    for i in range(3):
        a(f"v_add_u32 v{t0}, {64*i}, v{lane}")
        a(f"v_mul_u32_u24 v{t1}, 0xaaab, v{t0}")
        a(f"v_lshrrev_b32 v{t1}, 19, v{t1}")
        a(f"v_mul_u32_u24 v{t2}, 12, v{t1}")
        a(f"v_sub_u32 v{t2}, v{t0}, v{t2}")
        a(f"v_lshrrev_b32 v{t3}, 2, v{t1}")
        a(f"v_and_b32 v{t3}, 2, v{t3}")
        a(f"v_xor_b32 v{t2}, v{t2}, v{t3}")
        a(f"v_lshlrev_b32 v{t2}, 4, v{t2}")
        a(f"v_mul_u32_u24 v{t1}, 3072, v{t1}")
        a(f"v_add_u32 v{vW[i]}, v{t1}, v{t2}")
        if i: a(f"v_subrev_u32 v{vW[i]}, {1024*i}, v{vW[i]}")
    a(f"s_mul_i32 s{sWoff}, s{sWave}, {16*3072}")
    a(f"s_mul_i32 s{sT}, s{sCB}, 192")
    a(f"s_add_u32 s{sWoff}, s{sWoff}, s{sT}")
    a(f"s_mul_i32 s{sM0w}, s{sWave}, 3072")
    a(f"v_lshrrev_b32 v{t0}, 3, v{lane}")
    a(f"v_and_b32 v{t1}, 7, v{lane}")
    a(f"v_lshrrev_b32 v{t2}, 1, v{t0}")
    a(f"v_xor_b32 v{t1}, v{t1}, v{t2}")
    a(f"v_mul_u32_u24 v{t0}, 1280, v{t0}")
    a(f"v_lshl_add_u32 v{vXs[0]}, v{t1}, 4, v{t0}")
    a(f"v_xor_b32 v{vXs[1]}, 64, v{vXs[0]}")
    a(f"v_add_u32 v{vXs[1]}, {8*1280 - 1024}, v{vXs[1]}")
    a(f"s_lshl_b32 s{sXoff}, s{sRB}, 7")
    a(f"s_lshl_b32 s{sT}, s{sWave}, 5")
    a(f"s_add_u32 s{sXoff}, s{sXoff}, s{sT}")
    a(f"s_mul_i32 s{sXoff}, s{sXoff}, 1280")
    a(f"s_mul_i32 s{sM0x}, s{sWave}, {X_WAVE}")
    a(f"s_add_u32 s{sM0x}, s{sM0x}, {X_OFF}")

    tokW = {}; tokXu = {}
    def ops_w(c):
        def f0():
            a(f"s_add_u32 m0, s{sM0w}, {(c % 3) * W_SLOT}")
            if c: a(f"s_add_u32 s{sWoff}, s{sWoff}, {64*3072}")
        def fi(i):
            def f():
                a(f"buffer_load_dwordx4 v{vW[i]}, s[{sW1}:{sW1+3}], s{sWoff} offen offset:{1024*i} lds")
                if i == 2: tokW[c] = a.vtok()
            return f
        return [f0] + [fi(i) for i in range(3)]
    def ops_x(u):
        c, ct = u // 2, u % 2
        def f0():
            a(f"s_add_u32 m0, s{sM0x}, {(u % NXU) * 2048}")
            a(f"s_add_u32 s{sT}, s{sXoff}, {ct*16*1280 + c*128}")
        def fi(h):
            def f():
                a(f"buffer_load_dwordx4 v{vXs[h]}, s[{sX}:{sX+3}], s{sT} offen offset:{1024*h} lds")
                if h == 1: tokXu[u] = a.vtok()
            return f
        return [f0, fi(0), fi(1)]
    def do_first():
        for f in ops_w(0) + ops_x(0) + ops_x(1) + ops_w(1) + ops_x(2) + ops_x(3): f()
    do_first()
    if ENV("PFBE", 1) == 2: do_pf(PFA_, 10)

    a(f"v_lshrrev_b32 v{t0}, 4, v{lane}")
    a(f"v_bfe_u32 v{t1}, v{lane}, 2, 2")
    a(f"v_lshl_add_u32 v{t1}, v{t0}, 3, v{t1}")
    a(f"v_mul_u32_u24 v{t1}, 192, v{t1}")
    a(f"v_and_b32 v{t2}, 3, v{lane}")
    a(f"v_lshl_add_u32 v{t1}, v{t2}, 3, v{t1}")
    a(f"v_and_b32 v{t2}, 1, v{t0}")
    a(f"v_lshlrev_b32 v{t2}, 5, v{t2}")
    a(f"v_sub_u32 v{t3}, v{t1}, v{t2}")
    a(f"v_add_u32 v{t3}, 32, v{t3}")
    a(f"v_add_u32 v{t2}, v{t1}, v{t2}")
    for P in range(3):
        a(f"s_add_u32 s{sP[P]}, s{sWave}, {P}")
        a(f"s_cmp_ge_u32 s{sP[P]}, 3")
        a(f"s_cselect_b32 s{sT}, 3, 0")
        a(f"s_sub_u32 s{sP[P]}, s{sP[P]}, s{sT}")
        a(f"s_lshl_b32 s{sT}, s{sP[P]}, 6")
        a(f"v_add_u32 v{vE[P]}, s{sT}, v{t2}")
        a(f"v_add_u32 v{vO[P]}, s{sT}, v{t3}")
    a(f"v_and_b32 v{t1}, 15, v{lane}")
    a(f"v_lshrrev_b32 v{t2}, 1, v{t1}")
    a(f"v_xor_b32 v{t2}, v{t2}, v{t0}")
    a(f"v_lshlrev_b32 v{t2}, 4, v{t2}")
    a(f"v_lshl_add_u32 v{t2}, v{t1}, 7, v{t2}")
    a(f"v_add_u32 v{vXr[0]}, s{sM0x}, v{t2}")
    a(f"v_xor_b32 v{t2}, 64, v{t2}")
    a(f"v_add_u32 v{vXr[1]}, s{sM0x}, v{t2}")
    a(f"v_lshrrev_b32 v{t2}, 3, v{t1}")
    a(f"v_and_b32 v{t1}, 7, v{t1}")
    a(f"v_lshlrev_b32 v{t1}, 3, v{t1}")
    a(f"v_lshl_add_u32 v{vsa}, v{t2}, 7, v{t1}")
    a(f"s_mul_i32 s{sT}, s{sWave}, 12")
    a(f"s_mul_i32 s{sOA}, s{sT}, {32*1280}")
    a(f"s_mul_i32 s{sT2}, s{sJD}, 160")
    a(f"s_add_u32 s{sOA}, s{sOA}, s{sT2}")
    a(f"s_mul_i32 s{sOB}, s{sTB}, 192")
    a(f"s_add_u32 s{sOB}, s{sOB}, s{sT}")
    a(f"s_lshl_b32 s{sOB}, s{sOB}, 10")
    a(f"s_add_u32 s{sOB}, s{sOB}, {WS_ACT}")
    a(f"v_lshlrev_b32 v{t0}, 3, v{t0}")

    tokA = {}; tokXr = {}
    def ops_ra(ks):
        c, e = ks // 2, ks % 2
        off = (c % 3) * W_SLOT + e * 6144
        out = []
        for rt in range(6):
            ad = (vE if rt % 2 == 0 else vO)[rt // 2]
            for h in range(2):
                def f(rt=rt, h=h, ad=ad):
                    a(f"ds_read_b64_tr_b16 {v(A[ks%2][rt] + 2*h, 2)}, v{ad} offset:{off + 768*h}")
                    tokA[(ks, rt)] = a.ltok()
                out.append(f)
        return out
    def ops_rx(c):
        out = []
        for e in range(2):
            for ct in range(2):
                def f(e=e, ct=ct):
                    a(f"ds_read_b128 {v(X[c%2][e][ct],4)}, v{vXr[e]} offset:{((2*c+ct) % NXU) * 2048}")
                    tokXr[c] = a.ltok()
                out.append(f)
        return out
    def mf(d, A_, B_, first):
        c = "0" if first else v(d, 4)
        a(f"v_mfma_f32_16x16x32_bf16 {v(d,4)}, {v(A_,4)}, {v(B_,4)}, {c}")
    wq = [0]
    tokWR = {}
    def ops_wr(n, lim=NWI):
        out = []
        for it_ in range(n):
            f_ = wq[0]
            if f_ >= lim: break
            def f(f_=f_, it_=it_):
                if f_ % 4 == 0 or it_ == 0: a(f"s_add_u32 s{sT2}, s{sOA}, {1024*(f_ - f_%4)}")
                a(f"buffer_load_dwordx4 {v(WR[f_],4)}, v{v16}, s[{sWS}:{sWS+3}], s{sT2} offen offset:{1024*(f_%4)} sc1")
                tokWR[f_] = a.vtok()
            out.append(f); wq[0] += 1
        return out
    sFB = 49
    def ld_w2flags():
        a(f"buffer_load_dword v{vfl}, v{vfa}, s[{sWS}:{sWS+3}], s{sFB} offen sc1")
    def ld_first(nl):
        a(f"v_mov_b32 v{vfl}, s{sTok}")
        a(f"s_mov_b64 exec, {hex((1 << nl) - 1)}")
        ld_w2flags()
        a("s_mov_b64 exec, -1")
    def ld_stats():
        for ct in range(2):
            a(f"buffer_load_dwordx2 {v(st[ct],2)}, v{vsa}, s[{sWS}:{sWS+3}], s{sT3} offen offset:{256*ct} sc1")
    tk = {}
    def op_tok():
        a(f"buffer_load_dword v{vtok}, v{vzero}, s[{sDBG}:{sDBG+3}], 0 offen sc1")
        tk["tok"] = a.vtok()
    def op_chk_tok():
        a.wait(vm=tk["tok"])
        check_token(a, vtok, vzero)
    def op_pace():
        a(f"v_mov_b32 v{vtok}, s{sTok}")
        a(f"s_lshl_b32 s{sT2}, s{sId}, 7")
        a(f"s_add_u32 s{sT2}, s{sT2}, {WS_FPACE}")
        a(f"s_cmp_eq_u32 s{sWave}, 0")
        a(f"s_cselect_b32 s{sT2}, s{sT2}, {WS_SIZE}")
        a("s_mov_b64 exec, 1")
        a(f"buffer_store_dword v{vtok}, v{vzero}, s[{sWS}:{sWS+3}], s{sT2} offen sc1")
        a("s_mov_b64 exec, -1")
    def op_stats():
        a(f"s_lshl_b32 s{sT3}, s{sRB}, 4")
        a(f"s_lshl_b32 s{sT2}, s{sWave}, 2")
        a(f"s_add_u32 s{sT3}, s{sT3}, s{sT2}")
        a(f"s_lshl_b32 s{sT3}, s{sT3}, 7")
        a(f"s_add_u32 s{sT3}, s{sT3}, {WS_STAT}")
        ld_stats()
        tk["st"] = a.vtok()
    def op_b1(P):
        def f():
            a(f"s_mul_i32 s{sT2}, s{sCB}, 192")
            a(f"s_lshl_b32 s{sT}, s{sP[P]}, 6")
            a(f"s_add_u32 s{sT}, s{sT}, s{sT2}")
            for o in range(2):
                a(f"buffer_load_dwordx2 {v(b1p[2*P+o],2)}, v{t0}, s[{sB1}:{sB1+3}], s{sT} offen offset:{32*o}")
        return f

    a("s_waitcnt lgkmcnt(0)")
    if ENV("TLBW", 0):
        SH = ENV("TLBSH", 21)
        nl = min(64, WS_SIZE >> SH)
        a(f"v_lshlrev_b32 v{t1}, {SH}, v{lane}")
        a(f"s_mov_b64 exec, {hex((1 << nl) - 1) if nl < 64 else -1}")
        a(f"s_mov_b32 s{sT2}, {WS_SIZE - 0x80000}")
        a(f"buffer_load_dword v{vpd}, v{t1}, s[{sWS}:{sWS+3}], 0 offen offset:3968")
        a(f"s_mul_i32 s{sT2}, s{sTB}, {64*1280}")
        a("s_mov_b64 exec, 1")
        a(f"buffer_load_dword v{vpd}, v{vzero}, s[{sOUT}:{sOUT+3}], s{sT2} offen")
        a("s_mov_b64 exec, -1")
    for P in range(3): op_b1(P)()
    a("s_waitcnt lgkmcnt(0)")
    if ENV("PFBE", 1) == 1 and PFA_ < 10: do_pf(PFA_, 10)
    a.wait(vm=max(tokW[0], tokXu[1]))
    for i in range(4): a(f"v_mov_b32 v{ones+i}, 0x3f803f80")
    a("s_barrier")
    stamp(a, 2)
    for f in ops_rx(0) + ops_ra(0) + ops_x(4) + ops_w(2): f()
    if PFA_ < 10 and not ENV("PFBE", 1): do_pf(PFA_, 10)
    if ENV("PF20", 4) == -1: op_pf2(0)()
    op_tok()
    extra = {9: [op_chk_tok], ENV("PACEKS", 13): [op_pace], ENV("STATKS", 15): [op_stats]}
    if ENV("PF20", 4) >= 0: extra.setdefault(ENV("PF20", 4), []).append(op_pf2(0))
    for j in range(1, ENV("PF2N", 8)): extra.setdefault(min(19, ENV("PF2KS", 10) + (j if not ENV("PF2D", 0) else (j + 1) // 2)), []).append(op_pf2(j))
    if ENV("GPRIO2", 2): a(f"s_setprio {ENV('GPRIO2', 2)}")
    for ks in range(20):
        c, e = ks // 2, ks % 2
        first = ks == 0
        Xs = X[c % 2][e]; As = A[ks % 2]
        mlist = []
        for rt in range(6):
            for ct in range(2): mlist.append((rt, acc[rt][ct], As[rt], Xs[ct]))
            if rt < 2: mlist.append((rt, cs[rt], As[rt], ones))
        if e == 0:
            fill = ops_ra(ks + 1)
            dma = []
            for u in (2 * c + 5, 2 * c + 6):
                if u < 20: dma += ops_x(u)
            fl2 = []
            for i, f in enumerate(fill):
                fl2.append(f)
                if i % 2 == 1 and dma: fl2.append(dma.pop(0))
            fill = fl2 + dma + extra.get(ks, [])
            start = 0
            a.wait(lg=tokXr[c])
        else:
            fill = []
            if ks < 19:
                fill = ops_rx(c + 1) + ops_ra(ks + 1)
                if c + 3 < 10: fill += ops_w(c + 3)
            fill += extra.get(ks, [])
            start = 6 if ks < 19 else 0
        nslots = len(mlist) - start
        per = [len(fill) // nslots + (1 if i < len(fill) % nslots else 0) for i in range(nslots)]
        lastrt = -1
        for i, (rt, d, A_, B_) in enumerate(mlist):
            if e == 1 and ks < 19 and i == start:
                a.wait(vm=max(tokW[c + 1], tokXu[2 * c + 3]), lg=a.ltok())
                a("s_barrier")
                if ks in (5, 11): stamp(a, {5: 3, 11: 4}[ks])
                lastrt = 99
            if rt > lastrt:
                a.wait(lg=tokA[(ks, rt)]); lastrt = rt
            mf(d, A_, B_, first)
            if i >= start:
                for _ in range(per[i - start]): fill.pop(0)()
        assert not fill
    tokst = tk["st"]
    stamp(a, 5)

    E = Alloc(pool, limit=vpf)
    csv = [E(4, 4) for _ in range(6)]
    b1v = [E(4, 4) for _ in range(6)]
    rr = [E(2, 2) for _ in range(2)]
    rm = [st[0], st[1]]
    tmp = [E(2, 2) for _ in range(8)]
    outp = cs
    vcs = E()
    CSOFF = 2 * W_SLOT
    a(f"v_lshrrev_b32 v{t0}, 4, v{lane}")
    a(f"v_lshlrev_b32 v{vcs}, 4, v{t0}")
    a(f"s_lshl_b32 s{sT}, s{sP[0]}, 7")
    a(f"v_add_u32 v{t1}, s{sT}, v{vcs}")
    for o in range(2):
        a(f"ds_write_b128 v{t1}, {v(cs[o],4)} offset:{CSOFF + 64*o}")
    a.wait(vm=tokst)
    check_flags(a, [st[0] + 1, st[1] + 1], vsa, ld_stats)
    a("s_waitcnt lgkmcnt(0)")
    a("s_barrier")
    for P in range(3):
        a(f"s_lshl_b32 s{sT}, s{sP[P]}, 7")
        a(f"v_add_u32 v{t1}, s{sT}, v{vcs}")
        for o in range(2):
            a(f"ds_read_b128 {v(csv[2*P+o],4)}, v{t1} offset:{CSOFF + 64*o}")
    for ct in range(2):
        a(f"v_and_b32 v{t1}, 0xffff0000, v{st[ct]}")
        a(f"v_rcp_f32 v{rr[ct]}, v{t1}")
        a(f"v_lshlrev_b32 v{t2}, 16, v{st[ct]}")
        a(f"v_mul_f32 v{rr[ct]+1}, v{t2}, v{rr[ct]}")
        a(f"v_sub_f32 v{rm[ct]}, 0, v{rr[ct]+1}")
    for rt in range(6):
        a(f"v_lshlrev_b32 v{b1v[rt]}, 16, v{b1p[rt]}")
        a(f"v_and_b32 v{b1v[rt]+1}, 0xffff0000, v{b1p[rt]}")
        a(f"v_lshlrev_b32 v{b1v[rt]+2}, 16, v{b1p[rt]+1}")
        a(f"v_and_b32 v{b1v[rt]+3}, 0xffff0000, v{b1p[rt]+1}")
    a(f"s_lshl_b32 s{sT}, s{sRB}, 3")
    a(f"s_lshl_b32 s{sT2}, s{sWave}, 1")
    a(f"s_add_u32 s{sT}, s{sT}, s{sT2}")
    a(f"s_mul_i32 s{sT}, s{sT}, 48")
    a(f"s_mul_i32 s{sT2}, s{sCB}, 3")
    a(f"s_add_u32 s{sT}, s{sT}, s{sT2}")
    for P in range(3):
        a(f"s_add_u32 s{sP[P]}, s{sP[P]}, s{sT}")
        a(f"s_lshl_b32 s{sP[P]}, s{sP[P]}, 10")
        a(f"s_add_u32 s{sP[P]}, s{sP[P]}, {WS_ACT}")
    a(f"s_mov_b32 s50, {f32(LOG2E)}"); a(f"s_mov_b32 s51, {f32(LOG2E)}")
    Q = Alloc(base2, limit=256)
    acc2 = [[Q(4, 4) for ct in range(4)] for rt in range(5)]
    NST = 3
    FB = [[Q(4, 4) for _ in range(4)] for _ in range(NST)]
    vB = [Q() for _ in range(4)]
    vxo = Q(); vxo2 = Q()
    vw = [Q() for _ in range(5)]; vw8 = Q(); vw4 = Q()
    a(f"s_mul_i32 s{sM0w}, s{sWave}, 20480")
    tokD = {}
    def ops_dma(k):
        out = []
        for i in range(5):
            def f(i=i):
                if i == 0:
                    a(f"s_add_u32 m0, s{sM0w}, {5120*(k%4)}")
                    a(f"s_add_u32 s{sXoff}, s{sOA}, {32*1280*k}")
                if i == 4: a(f"s_add_u32 m0, s{sM0w}, {5120*(k%4) + 4096}")
                a(f"buffer_load_dwordx4 v{vw[i]}, s[{sW2}:{sW2+3}], s{sXoff} offen offset:{1024*i if i < 4 else 0} lds")
                tokD[k] = a.vtok()
            out.append(f)
        return out
    tokL = {}
    def op_rw(k, rt):
        o = WR[5 * (k % 5) + rt]
        for e in range(2):
            if rt < 4: a(f"ds_read_b64_tr_b16 {v(o+2*e,2)}, v{vw8} offset:{5120*(k%4) + 64*(rt>>1) + 8*(rt&1) + 2560*e}")
            else: a(f"ds_read_b64_tr_b16 {v(o+2*e,2)}, v{vw4} offset:{5120*(k%4) + 128 + 2560*e}")
        tokL[(k, rt)] = a.ltok()
    a("s_waitcnt lgkmcnt(0)")
    stamp(a, 6)
    k = 0
    for P in range(3):
        for ct in range(2):
            op = outp[k % 2]; k += 1
            if k == 1: dq = sum([ops_dma(k_) for k_ in range(4)], [])
            def dq_pop():
                if len(dq) > 20 - ENV("NDQ", 0): dq.pop(0)()
            dq_pop()
            hs = []
            EP = ENV("EPLAIN", 0)
            for o in range(2):
                rt = 2 * P + o
                for hf in range(2):
                    h = acc[rt][ct] + 2 * hf
                    tt = tmp[len(hs)]
                    if EP:
                        for z in range(2): a(f"v_fma_f32 v{tt+z}, v{csv[rt]+2*hf+z}, v{rm[ct]}, v{b1v[rt]+2*hf+z}")
                        for z in range(2): a(f"v_fma_f32 v{h+z}, v{h+z}, v{rr[ct]}, v{tt+z}")
                    else:
                        a(f"v_pk_fma_f32 {v(tt,2)}, {v(csv[rt]+2*hf,2)}, {v(rm[ct],2)}, {v(b1v[rt]+2*hf,2)} op_sel_hi:[1,0,1]")
                        a(f"v_pk_fma_f32 {v(h,2)}, {v(h,2)}, {v(rr[ct],2)}, {v(tt,2)} op_sel_hi:[1,0,1]")
                    hs.append(h)
            def pmul(d, x, y):
                if EP:
                    for z in range(2): a(f"v_mul_f32 v{d+z}, " + (f"s50, v{x+z}" if y is None else f"v{x+z}, v{y+z}"))
                else: a(f"v_pk_mul_f32 {v(d,2)}, {v(x,2)}, " + ("s[50:51]" if y is None else v(y, 2)))
            def padd2(d, x):
                if EP:
                    for z in range(2): a(f"v_add_f32 v{d+z}, 2.0, v{x+z}")
                else: a(f"v_pk_add_f32 {v(d,2)}, {v(x,2)}, 2.0 op_sel_hi:[1,0]")
            for i, h in enumerate(hs): pmul(tmp[i], h, None)
            for i, h in enumerate(hs):
                a(f"v_min_f32 v{tmp[i]}, {f32(30.0)}, v{tmp[i]}")
                a(f"v_min_f32 v{tmp[i]+1}, {f32(30.0)}, v{tmp[i]+1}")
            dq_pop()
            for i, h in enumerate(hs):
                a(f"v_exp_f32 v{tmp[i]}, v{tmp[i]}")
                a(f"v_exp_f32 v{tmp[i]+1}, v{tmp[i]+1}")
            dq_pop()
            for i, h in enumerate(hs): padd2(tmp[4+i], tmp[i])
            for i, h in enumerate(hs): pmul(tmp[i], tmp[i], tmp[4+i])
            for i, h in enumerate(hs): padd2(tmp[4+i], tmp[i])
            for i, h in enumerate(hs):
                a(f"v_rcp_f32 v{tmp[4+i]}, v{tmp[4+i]}")
                a(f"v_rcp_f32 v{tmp[4+i]+1}, v{tmp[4+i]+1}")
            dq_pop()
            for i, h in enumerate(hs): pmul(h, h, tmp[i])
            for i, h in enumerate(hs): pmul(h, h, tmp[4+i])
            for i, h in enumerate(hs): a(f"v_cvt_pk_bf16_f32 v{op+i}, v{h}, v{h+1}")
            if ct == 0:
                a(f"buffer_store_dwordx4 {v(op,4)}, v{v16}, s[{sWS}:{sWS+3}], s{sP[P]} offen sc1")
            else:
                a(f"s_add_u32 s{sT}, s{sP[P]}, {48*1024}")
                a(f"buffer_store_dwordx4 {v(op,4)}, v{v16}, s[{sWS}:{sWS+3}], s{sT} offen sc1")
    tokst_ = a.vtok()
    stamp(a, 7)
    for i in range(5):
        a(f"v_add_u32 v{t0}, {64*i}, v{lane}")
        a(f"v_mul_u32_u24 v{t1}, 0xcccd, v{t0}")
        a(f"v_lshrrev_b32 v{t1}, 19, v{t1}")
        a(f"v_mul_u32_u24 v{t2}, 10, v{t1}")
        a(f"v_sub_u32 v{t2}, v{t0}, v{t2}")
        a(f"v_mul_u32_u24 v{t1}, 1280, v{t1}")
        a(f"v_lshl_add_u32 v{vw[i]}, v{t2}, 4, v{t1}")
        if 0 < i < 4: a(f"v_subrev_u32 v{vw[i]}, {1024*i}, v{vw[i]}")
    a("s_barrier")
    a(f"s_lshl_b32 s{sT}, s{sRB}, 4")
    a(f"s_add_u32 s{sT}, s{sT}, s{sCB}")
    a(f"s_lshl_b32 s{sT}, s{sT}, 2")
    a(f"s_add_u32 s{sT}, s{sT}, s{sWave}")
    a(f"s_lshl_b32 s{sT}, s{sT}, 7")
    a(f"s_add_u32 s{sT}, s{sT}, {WS_FACT}")
    a(f"v_mov_b32 v{vtok}, s{sTok}")

    for ct in range(4):
        a(f"s_add_u32 s{sT2}, s{sWave}, {ct}")
        a(f"s_and_b32 s{sT2}, s{sT2}, 3")
        a(f"s_mul_i32 s{sT2}, s{sT2}, {48*1024}")
        a(f"v_add_u32 v{vB[ct]}, s{sT2}, v{v16}")
    a(f"v_lshrrev_b32 v{t1}, 2, v{lane}")
    a(f"v_mul_u32_u24 v{t1}, 160, v{t1}")
    a(f"v_add_u32 v{t1}, s{sM0w}, v{t1}")
    a(f"v_and_b32 v{t2}, 3, v{lane}")
    a(f"v_lshl_add_u32 v{vw8}, v{t2}, 4, v{t1}")
    a(f"v_lshl_add_u32 v{vw4}, v{t2}, 3, v{t1}")
    def do_publish():
        a.wait(vm=tokst_)
        a("s_mov_b64 exec, 1")
        a(f"buffer_store_dword v{vtok}, v{vzero}, s[{sWS}:{sWS+3}], s{sT} offen sc1")
        a("s_mov_b64 exec, -1")
        if ENV("GPRIO2", 2): a(f"s_setprio {ENV('GPRIO3', 0)}")
        stamp(a, 8)
    for _ in range(min(len(dq), 10)): dq.pop(0)()
    a(f"v_and_b32 v{t0}, 3, v{lane}")
    a(f"v_bfe_u32 v{t1}, v{lane}, 2, 1")
    a(f"v_lshl_add_u32 v{vfa}, v{t0}, 2, v{t1}")
    a(f"v_lshlrev_b32 v{vfa}, 7, v{vfa}")
    a(f"s_lshr_b32 s{sFB}, s{sTB}, 1")
    a(f"s_lshl_b32 s{sFB}, s{sFB}, 2")
    a(f"s_add_u32 s{sFB}, s{sFB}, s{sWave}")
    a(f"s_lshl_b32 s{sFB}, s{sFB}, 3")
    a(f"s_and_b32 s{sT2}, s{sTB}, 1")
    a(f"s_add_u32 s{sFB}, s{sFB}, s{sT2}")
    a(f"s_lshl_b32 s{sFB}, s{sFB}, 8")
    a(f"s_add_u32 s{sFB}, s{sFB}, {WS_FACT}")
    a(f"v_mul_u32_u24 v{t0}, {48*1024}, v{t0}")
    a(f"v_lshrrev_b32 v{t1}, 2, v{lane}")
    a(f"v_lshl_add_u32 v{t0}, v{t1}, 10, v{t0}")
    a(f"s_lshl_b32 s{sT2}, s{sJD}, 7")
    a(f"s_add_u32 s{sT2}, s{sT2}, s{sOB}")
    do_publish()
    while dq: dq.pop(0)()
    def rd(k):
        a.wait(vm=tokD[k])
        for rt in range(5): op_rw(k, rt)
    def dm(k):
        a.wait(lg=tokL[(k - 4, 4)])
        for f in ops_dma(k): f()
    tokB = {}; tokBc = {}
    def issue_b(k):
        for ct in range(4):
            a(f"buffer_load_dwordx4 {v(FB[k%NST][ct],4)}, v{vB[ct]}, s[{sWS}:{sWS+3}], s{sOB} offen sc1")
            tokBc[(k, ct)] = a.vtok()
        tokB[k] = a.vtok()
        if k < 11: a(f"s_add_u32 s{sOB}, s{sOB}, 1024")
    FPOS = ENV("FPOS", 2)
    def fl():
        ld_first(8); tk["fa"] = a.vtok()
    rd(0); rd(1); dm(4); rd(2)
    if FPOS == 0: fl()
    dm(5)
    if FPOS == 1: fl()
    rd(3); dm(6)
    if FPOS == 2:
        fl(); dm(7)
    stamp(a, 14)
    a.wait(vm=tk["fa"])
    check_flags(a, [vfl], vfa, ld_w2flags, sleep=ENV("ASLEEP", 3))
    stamp(a, 9)
    if ENV("GPRIO2", 2): a(f"s_setprio {ENV('GPRIO4', 0)}")
    if ENV("PFA", 0):
        a("s_mov_b32 exec_hi, 0xffff")
        a(f"buffer_load_dword v{t3}, v{t0}, s[{sWS}:{sWS+3}], s{sT2} offen sc1")
        a("s_mov_b32 exec_hi, -1")
    for k in range(NST): issue_b(k)
    if FPOS != 2: dm(7)
    rd(4)
    D8 = ENV("D8", 1)
    if D8: dm(8)
    sXo = 40
    a(f"s_lshl_b32 s{sXo}, s{sTB}, 6")
    a(f"s_lshl_b32 s{sT2}, s{sWave}, 4")
    a(f"s_add_u32 s{sXo}, s{sXo}, s{sT2}")
    a(f"s_mul_i32 s{sXo}, s{sXo}, 1280")
    a(f"s_mul_i32 s{sT2}, s{sJD}, 160")
    a(f"s_add_u32 s{sXo}, s{sXo}, s{sT2}")
    vso = vxo; vlw = vxo2
    a(f"v_lshrrev_b32 v{t0}, 3, v{lane}")
    a(f"v_and_b32 v{t1}, 7, v{lane}")
    a(f"v_lshlrev_b32 v{t1}, 4, v{t1}")
    a(f"v_lshl_add_u32 v{vso}, v{t0}, 12, v{t1}")
    a(f"s_mul_i32 s{sM0x}, s{sWave}, 2560")
    STOFF = 61440; XSOFF = 71680
    a(f"v_min_u32 v{vfa}, 19, v{lane}")
    a(f"v_lshlrev_b32 v{vfa}, 7, v{vfa}")
    a(f"s_mul_i32 s{sT3}, s{sJD}, 80")
    a(f"s_mul_i32 s{sT}, s{sWave}, 20")
    a(f"s_add_u32 s{sWoff}, s{sT3}, s{sT}")
    a(f"s_lshl_b32 s{sT3}, s{sWoff}, 7")
    a(f"s_lshr_b32 s{sT}, s{sTB}, 3")
    a(f"s_lshl_b32 s{sT}, s{sT}, 2")
    a(f"s_add_u32 s{sT3}, s{sT3}, s{sT}")
    a(f"s_add_u32 s{sFB}, s{sT3}, {WS_FST}")
    slot = {f: f % 25 for f in range(60)}
    assert D8
    def ld_b(k, ct):
        a(f"buffer_load_dwordx4 {v(FB[k%NST][ct],4)}, v{vB[ct]}, s[{sWS}:{sWS+3}], s{sOB} offen sc1")
        tokBc[(k, ct)] = a.vtok()
        if ct == 3:
            tokB[k] = a.vtok()
            if k < 11: a(f"s_add_u32 s{sOB}, s{sOB}, 1024")
    for k in range(12):
        dma = ops_dma(k + 8) if 1 <= k <= 3 else []
        if k >= 4: a.wait(lg=tokL[(k, 4)])
        for ct in range(4):
            a.wait(vm=tokBc[(k, ct)])
            if ct == 2 and dma: a.wait(lg=tokL[(k + 4, 4)])
            for rt in range(5):
                c = "0" if k == 0 else v(acc2[rt][ct], 4)
                a(f"v_mfma_f32_16x16x32_bf16 {v(acc2[rt][ct],4)}, {v(WR[slot[5*k+rt]],4)}, {v(FB[k%NST][ct],4)}, {c}")
                if ct == 0 and 1 <= k <= 7:
                    if rt == 0: a.wait(vm=tokD[k + 4])
                    op_rw(k + 4, rt)
                if rt == 0 and ct >= 1 and k + NST < 12: ld_b(k + NST, ct - 1)
                if ct >= 2 and rt in (1, 2, 4) and dma: dma.pop(0)()
        while dma: dma.pop(0)()
        if k + NST < 12: ld_b(k + NST, 3)
        if k in (0, 5): stamp(a, {0: 10, 5: 11}[k])
        if k == ENV("STK", 6):
            ld_first(20); tokfl = a.vtok()
        if k == ENV("BARK", 7):
            a("s_waitcnt lgkmcnt(0)")
            a("s_barrier")
            a(f"s_add_u32 m0, s{sM0x}, {XSOFF}")
            for i in range(3):
                if i == 2: a("s_mov_b32 exec_hi, 0")
                a(f"buffer_load_dwordx4 v{vw[i]}, s[{sX}:{sX+3}], s{sXo} offen offset:{1024*i} lds")
            a("s_mov_b32 exec_hi, -1")
        if k == ENV("STK2", 8):
            a.wait(vm=tokfl)
            check_flags(a, [vfl], vfa, ld_w2flags, sleep=ENV("STSLEEP", 8))
            a(f"s_lshl_b32 s{sT}, s{sWoff}, 12")
            a(f"s_lshl_b32 s{sT2}, s{sTB}, 7")
            a(f"s_add_u32 s{sT}, s{sT}, s{sT2}")
            a(f"s_add_u32 s{sT}, s{sT}, {WS_ST}")
            for i in range(3):
                if i == 2: a("s_mov_b32 exec_hi, 0")
                a(f"s_add_u32 m0, s{sM0x}, {STOFF + 1024*i}")
                a(f"buffer_load_dwordx4 v{vso}, s[{sWS}:{sWS+3}], s{sT} offen sc1 lds")
                if i < 2: a(f"s_add_u32 s{sT}, s{sT}, {8*4096}")
            a("s_mov_b32 exec_hi, -1")
        if k == 10:
            for ct in range(1, 4):
                a(f"s_add_u32 s{sT2}, s{sWave}, {ct}")
                a(f"s_and_b32 s{sT2}, s{sT2}, 3")
                a(f"s_mul_i32 s{sT2}, s{sT2}, 15360")
                a(f"v_add_u32 v{vB[ct]}, s{sT2}, v{v16}")
            break
    k = 11
    a.wait(vm=tokB[k]); a.wait(lg=tokL[(k, 4)])
    vt8, vt4, vx16, vx8 = [FB[0][0] + i for i in range(4)]
    misc = [f"v_lshrrev_b32 v{t2}, 4, v{lane}", f"v_bfe_u32 v{t0}, v{lane}, 2, 2",
            f"v_lshl_add_u32 v{t1}, v{t2}, 3, v{t0}", f"v_lshl_add_u32 v{t0}, v{t2}, 2, v{t0}", f"v_and_b32 v{t3}, 3, v{lane}"]
    pend = []
    for ct in (1, 2, 3, 0):
        for rt in range(5):
            a(f"v_mfma_f32_16x16x32_bf16 {v(acc2[rt][ct],4)}, {v(WR[slot[5*k+rt]],4)}, {v(FB[k%NST][ct],4)}, {v(acc2[rt][ct],4)}")
            if ct == 1: a(misc[rt])
            elif pend: a(pend.pop(0))
        if ct: pend += [f"ds_write_b128 v{vB[ct]}, {v(acc2[rt][ct],4)} offset:{(ct-1)*5120 + rt*1024}" for rt in range(5)]
    stamp(a, 12)
    Pr = [[acc2[rt][p + 1] for rt in range(5)] for p in range(3)]
    T = [WR[10 + i // 2] + 2 * (i % 2) for i in range(10)]
    sv = [WR[15 + i // 2] + 2 * (i % 2) for i in range(5)]
    xq = [WR[18], WR[19], WR[20]]
    op = [WR[21], WR[22], WR[23]]
    a(f"s_lshl_b32 s{sT}, s{sWave}, 5")
    a(f"s_add_u32 s{sT}, s{sT}, {STOFF}")
    a(f"v_lshl_add_u32 v{t3}, v{t3}, 3, s{sT}")
    a(f"v_lshl_add_u32 v{vt8}, v{t1}, 7, v{t3}")
    a(f"v_lshl_add_u32 v{vt4}, v{t0}, 7, v{t3}")
    a(f"v_and_b32 v{t0}, 15, v{lane}")
    a(f"v_mul_u32_u24 v{t0}, 160, v{t0}")
    a(f"s_add_u32 s{sT}, s{sM0x}, {XSOFF}")
    a(f"v_add_u32 v{t0}, s{sT}, v{t0}")
    a(f"v_lshl_add_u32 v{vx16}, v{t2}, 4, v{t0}")
    a(f"v_lshl_add_u32 v{vx8}, v{t2}, 3, v{t0}")
    a(f"v_add_u32 v{vlw}, s{sT}, v{v16}")
    a(f"s_mul_i32 s{sT2}, s{sWave}, 15360")
    a(f"v_add_u32 v{t3}, s{sT2}, v{v16}")
    a(f"s_mov_b32 s50, {f32(-LOG2E)}"); a(f"s_mov_b32 s51, {f32(-LOG2E)}")
    a("s_waitcnt vmcnt(0) lgkmcnt(0)")
    a("s_barrier")
    stamp(a, 13)
    tkr = {}
    for rt in range(5):
        for p in range(3):
            a(f"ds_read_b128 {v(Pr[p][rt],4)}, v{t3} offset:{p*5120 + rt*1024}")
        tkr[rt] = a.ltok()
    o2 = []
    late = [f"ds_read_b64_tr_b16 {v(sv[rt],2)}, v{vt8} offset:{128*(32*(rt>>1) + 4*(rt&1))}" for rt in range(4)]
    late += [f"ds_read_b64_tr_b16 {v(sv[4],2)}, v{vt4} offset:{128*64}", f"ds_read_b128 {v(xq[0],4)}, v{vx16}",
             f"ds_read_b128 {v(xq[1],4)}, v{vx16} offset:64", f"ds_read_b64 {v(xq[2],2)}, v{vx8} offset:128"]
    for rt in range(5):
        a.wait(lg=tkr[rt])
        for hf in range(2):
            d = acc2[rt][0] + 2 * hf
            a(f"v_pk_add_f32 {v(Pr[0][rt]+2*hf,2)}, {v(Pr[0][rt]+2*hf,2)}, {v(Pr[1][rt]+2*hf,2)}")
            a(f"v_pk_add_f32 {v(d,2)}, {v(d,2)}, {v(Pr[2][rt]+2*hf,2)}")
            a(f"v_pk_add_f32 {v(d,2)}, {v(d,2)}, {v(Pr[0][rt]+2*hf,2)}")
            o2.append(d)
    for x_ in late: a(x_)
    for i, d in enumerate(o2): a(f"v_pk_mul_f32 {v(T[i],2)}, {v(d,2)}, s[50:51]")
    for i, d in enumerate(o2):
        a(f"v_exp_f32 v{T[i]}, v{T[i]}")
        a(f"v_exp_f32 v{T[i]+1}, v{T[i]+1}")
    for i, d in enumerate(o2): a(f"v_pk_add_f32 {v(T[i],2)}, {v(T[i],2)}, 1.0 op_sel_hi:[1,0]")
    for i, d in enumerate(o2):
        a(f"v_rcp_f32 v{T[i]}, v{T[i]}")
        a(f"v_rcp_f32 v{T[i]+1}, v{T[i]+1}")
    a("s_waitcnt lgkmcnt(0)")
    for i, d in enumerate(o2):
        s_ = sv[i // 2] + i % 2
        x_ = xq[i // 4] + i % 4
        U_ = Pr[0][i // 2] + 2 * (i % 2)
        V_ = Pr[1][i // 2] + 2 * (i % 2)
        a(f"v_pk_mul_f32 {v(d,2)}, {v(d,2)}, {v(T[i],2)}")
        a(f"v_lshlrev_b32 v{U_}, 16, v{s_}")
        a(f"v_and_b32 v{U_+1}, 0xffff0000, v{s_}")
        a(f"v_lshlrev_b32 v{V_}, 16, v{x_}")
        a(f"v_and_b32 v{V_+1}, 0xffff0000, v{x_}")
        a(f"v_pk_fma_f32 {v(d,2)}, {v(d,2)}, {v(U_,2)}, {v(V_,2)}")
        a(f"v_cvt_pk_bf16_f32 v{op[i//4] + i%4}, v{d}, v{d+1}")
        if i == 3: a(f"ds_write_b128 v{vx16}, {v(op[0],4)}")
        if i == 7: a(f"ds_write_b128 v{vx16}, {v(op[1],4)} offset:64")
    a(f"ds_write_b64 v{vx8}, {v(op[2],2)} offset:128")
    for i in range(3):
        a(f"ds_read_b128 {v(xq[i],4)}, v{vlw} offset:{1024*i}")
    for i in range(3):
        a(f"s_waitcnt lgkmcnt({2-i})")
        if i == 2: a("s_mov_b32 exec_hi, 0")
        a(f"buffer_store_dwordx4 {v(xq[i],4)}, v{vw[i]}, s[{sOUT}:{sOUT+3}], s{sXo} offen offset:{1024*i} {os.environ.get('OUTMOD', '')}")
    stamp_end(a, sWave)
    return 256

def main(out):
    ref = open(f"cdna_kernels/{NAME}.s.ref").read().split("\n")
    hdr = [l for l in ref if l.startswith(";") and "@launch" not in l]
    hdr.append(f"; @launch grid=(512,1,1) block=(256,1,1) lds={LDS_BYTES}")
    hdr += """;
; One launch, 512 co-resident workgroups (two per CU), generated by gen/gen2.py.
;  workgroups 0..255   (S): wave 3 layer-norms 8 rows -> XT2 (transposed) + row stats; waves 0..2 build the S4 kernel
;                           K[d, bf16(l)] of one channel each as a 32x32 MFMA product of power tables; then the causal
;                           convolution runs as Toeplitz MFMA tiles (Dskip folded into tap 0) -> ST.
;  workgroups 256..511 (G): GEMM1 on raw x (128x96 tile, LN applied in the epilogue from the row stats and column sums
;                           of w1) -> mish -> ACT fragments; GEMM2 (64x80 tile, K split over the waves) -> silu gate,
;                           out = x + s*g.
;  Hand-offs between workgroups: write-through stores, drained, then a flag word holding a per-launch token
;  (installed in d_debug); readers poll with bounded spins and read the data with sc1 loads.""".split("\n")
    a = Asm()
    a.raw(f'.amdgcn_target "amdgcn-amd-amdhsa--gfx950"\n.text\n.globl {KN}\n.p2align 8\n.type {KN},@function')
    a.label(KN)
    a("s_cmp_ge_u32 s2, 512")
    a("s_cbranch_scc1 K_exit")
    if ENV("SWAP", 0): a("s_xor_b32 s2, s2, 256")
    if ENV("CPF", 1):
        a("s_getpc_b64 s[18:19]")
        a("s_and_b32 s18, s18, 0xffffff00")
        a("s_lshr_b32 s3, s2, 3")
        a("s_xor_b32 s3, s3, 32")
        a("s_lshl_b32 s3, s3, 9")
        a("s_add_u32 s18, s18, s3")
        a("s_addc_u32 s19, s19, 0")
        a("v_lshrrev_b32 v252, 6, v0")
        a("v_lshlrev_b32 v252, 7, v252")
        a("v_mov_b32 v253, s19")
        a("v_add_co_u32 v252, vcc, s18, v252")
        a("v_addc_co_u32 v253, vcc, 0, v253, vcc")
        a("s_mov_b64 exec, 1")
        a("global_load_dword v254, v[252:253], off")
        a("s_mov_b64 exec, -1")
    a("s_cmp_lt_u32 s2, 256")
    a("s_cbranch_scc1 " + ("K_exit" if ENV("NOS", 0) else "S_role"))
    if ENV('NOG', 0): a("s_branch K_exit")
    _role[0] = "G"
    hg = g_role(a)
    _role[0] = "S"
    a.label("S_role"); a.flush_hist()
    hs = s_role(a)
    a.label("K_exit")
    a("s_endpgm")
    if ENV("CPF", 1): a.raw(".p2align 15")
    print("vgprs", hg, hs, "nops", a.nnop, "lines", len(a.items), file=sys.stderr)
    kd = f""".section .rodata,"a"
.p2align 6
.amdhsa_kernel {KN}
  .amdhsa_next_free_vgpr 256
  .amdhsa_next_free_sgpr {102 if STAMPS else 64}
  .amdhsa_accum_offset 256
  .amdhsa_group_segment_fixed_size 0
  .amdhsa_kernarg_size 128
  .amdhsa_user_sgpr_count 2
  .amdhsa_user_sgpr_kernarg_segment_ptr 1
  .amdhsa_system_sgpr_workgroup_id_x 1
  .amdhsa_float_denorm_mode_32 3
  .amdhsa_float_denorm_mode_16_64 3
.end_amdhsa_kernel
"""
    open(out, "w").write("\n".join(hdr) + "\n" + a.text() + kd)

if __name__ == "__main__":
    main(sys.argv[1] if len(sys.argv) > 1 else f"cdna_kernels/{NAME}.s")
```

```python
import sys, os, struct, math
sys.path.insert(0, os.path.dirname(os.path.abspath(__file__)))
from asmlib import *

NAME = "recurrent_scan__ssm_conv_s4__dense_activation_mish__prompt"
KN = NAME + "_kernel"
L, D, N, F = 2048, 640, 192, 1536
ENV = lambda k, d: int(os.environ.get(k, str(d)))
STAMPS = ENV("STAMPS", 0)

WS_XT2 = 0x0000000
WS_ST  = 0x0400000
WS_W2A = 0x0800000
WS_ACT = 0x0C00000
WS_STAT = 0x1400000
WS_FLN = 0x1500000
WS_FPACE = 0x1510000
WS_FACT = 0x1520000
WS_FST = 0x1560000
WS_SIZE = 0x1600000
WS_STAMP = 0x4000000
LDS_BYTES = 81920
SPIN_MAX = 0x4000

def f32(x): return "0x%08x" % struct.unpack("<I", struct.pack("<f", x))[0]
LOG2E = 1.4426950408889634
LN2 = 0.6931471805599453

def srd(a, sreg, size):
    a(f"s_mov_b32 s{sreg+2}, {size}")
    a(f"s_mov_b32 s{sreg+3}, 0x20000")

def bf16r(a, dst, src):
    a(f"v_cvt_pk_bf16_f32 v{dst}, v{src}, v{src}")
    a(f"v_and_b32 v{dst}, 0xffff0000, v{dst}")

_sn = [0]
DIAG = ENV("DIAG", 0)
DROLE = os.environ.get("DROLE", "G")
_role = ["?"]
def stamp_begin(a):
    _sn[0] = 0
    if DIAG and _role[0] == DROLE:
        a("s_memrealtime s[60:61]"); a("s_memrealtime s[62:63]")
    if STAMPS:
        a("s_memrealtime s[60:61]")
        for i in range(64, 96, 2): a(f"s_mov_b64 s[{i}:{i+1}], 0")
        a("s_memtime s[64:65]")
        _sn[0] = 1
def stamp(a, n=None):
    if DIAG and n == DIAG and _role[0] == DROLE: a("s_memrealtime s[62:63]")
    if STAMPS:
        if n is None:
            n = _sn[0]; _sn[0] += 1
        assert n < 16
        a(f"s_memtime s[{64+2*n}:{65+2*n}]")
def stamp_end(a, sWave):
    if DIAG and _role[0] == DROLE:
        if DIAG == 15: a("s_memrealtime s[62:63]")
        a("s_memrealtime s[56:57]")
        a("s_waitcnt lgkmcnt(0)")
        a("s_sub_u32 s62, s62, s60")
        a("s_lshl_b32 s62, s62, 2")
        a("s_add_u32 s56, s56, s62")
        a.label("DG_spin")
        a("s_sleep 2")
        a("s_memrealtime s[58:59]")
        a("s_waitcnt lgkmcnt(0)")
        a("s_sub_u32 s58, s58, s56")
        a("s_cmp_lt_i32 s58, 0")
        a("s_cbranch_scc1 DG_spin")
    if STAMPS:
        stamp(a, 15)
        a("s_memrealtime s[62:63]")
        a("s_load_dwordx2 s[96:97], s[0:1], 120")
        a("s_waitcnt lgkmcnt(0)")
        a(f"s_add_u32 s96, s96, {WS_STAMP}")
        a("s_addc_u32 s97, s97, 0")
        a("s_mov_b32 s98, 0x100000")
        a("s_mov_b32 s99, 0x20000")
        a("s_lshl_b32 s59, s2, 10")
        a(f"s_lshl_b32 s58, s{sWave}, 8")
        a("s_add_u32 s59, s59, s58")
        a("s_mov_b64 exec, 1")
        a("v_mov_b32 v1, s59")
        a("v_mov_b32 v2, s60"); a("v_mov_b32 v3, s62")
        a("buffer_store_dwordx2 v[2:3], v1, s[96:99], 0 offen")
        for n in range(16):
            a(f"s_sub_u32 s59, s{64+2*n}, s64")
            a(f"s_cmp_eq_u32 s{64+2*n}, 0")
            a(f"s_cselect_b32 s59, 0, s59")
            a(f"v_mov_b32 v{4 + n}, s59")
            a(f"buffer_store_dword v{4 + n}, v1, s[96:99], 0 offen offset:{16+4*n}")
    a("s_endpgm")

_lab = [0]
def newlab(p):
    _lab[0] += 1
    return f"{p}_{_lab[0]}"

sWS, sDBG = 4, 8
sWave, sTok, sSpin = 12, 13, 14
sT, sT2, sT3 = 15, 16, 17

def check_token(a, vtok, vzero, sleep=2):
    done = newlab("TK"); loop = newlab("TL")
    if ENV("NOS", 0) or os.environ.get("ONLY", ""):
        a(f"s_mov_b32 s{sTok}, 0x12345"); return
    a(f"v_readfirstlane_b32 s{sTok}, v{vtok}")
    a(f"s_cmp_lg_u32 s{sTok}, 0")
    a(f"s_cbranch_scc1 {done}")
    a(f"s_mov_b32 s{sSpin}, 0")
    a.label(loop)
    a(f"s_sleep {sleep}")
    a(f"buffer_load_dword v{vtok}, v{vzero}, s[{sDBG}:{sDBG+3}], 0 offen sc1"); a.vm -= 1
    a("s_waitcnt vmcnt(0)")
    a(f"v_readfirstlane_b32 s{sTok}, v{vtok}")
    a(f"s_cmp_lg_u32 s{sTok}, 0")
    a(f"s_cbranch_scc1 {done}")
    a(f"s_add_u32 s{sSpin}, s{sSpin}, 1")
    a(f"s_cmp_lt_u32 s{sSpin}, {SPIN_MAX}")
    a(f"s_cbranch_scc1 {loop}")
    a.label(done)

def check_flags(a, vfl, vaddr, reload, sleep=2):
    if (ENV("NOS", 0) or os.environ.get("ONLY", "")) and sleep != 3: return
    done = newlab("FD"); loop = newlab("FL")
    def cmpall():
        a(f"v_cmp_ne_u32 vcc, s{sTok}, v{vfl[0]}")
        for r_ in vfl[1:]:
            a(f"v_cmp_ne_u32 s[18:19], s{sTok}, v{r_}")
            a("s_or_b64 vcc, vcc, s[18:19]")
        a("s_cmp_eq_u64 vcc, 0")
    cmpall()
    a(f"s_cbranch_scc1 {done}")
    a(f"s_mov_b32 s{sSpin}, 0")
    a.label(loop)
    a(f"s_sleep {sleep}")
    n0 = a.vm
    a("s_mov_b64 exec, vcc")
    reload()
    a("s_mov_b64 exec, -1")
    a.vm = n0
    a("s_waitcnt vmcnt(0)")
    cmpall()
    a(f"s_cbranch_scc1 {done}")
    a(f"s_add_u32 s{sSpin}, s{sSpin}, 1")
    a(f"s_cmp_lt_u32 s{sSpin}, {SPIN_MAX}")
    a(f"s_cbranch_scc1 {loop}")
    a.label(done)

CV_S = 4160
CH_REG = 64 * 272
CV_U = [3 * CH_REG + 512 + 4608 * i for i in range(3)]
LN_OFF = 3 * CH_REG + 3 * 4608
LN_S = 1344
PACE_OFF = LDS_BYTES - 16
KG_S = 272
COARSE = list(range(8)) + [256, 258, 260, 262, 512, 516, 768, 772, 1024, 1280, 1536, 1792, 2048]
assert LN_OFF + 8 * LN_S <= LDS_BYTES and 4 * CV_S <= CH_REG

def s_role(a):
    sX_, sA, sXc = 20, 24, 25
    sD = [26, 27, 28]
    sCnt, sPar, sSlot, sRound, sHeavy = 29, 30, 31, 56, 57
    SP = [32, 36, 40, 44, 48, 52]
    R = Alloc(1)
    lane = R(); t0 = R(); t1 = R(); t2 = R(); t3 = R(); vzero = R(); vtok = R(); v16 = R()
    vdk = [R(), R()]
    base = R.mark()
    stamp_begin(a)
    a(f"s_load_dwordx2 s[{sWS}:{sWS+1}], s[0:1], 120")
    a(f"s_load_dwordx2 s[{sDBG}:{sDBG+1}], s[0:1], 112")
    a(f"v_lshrrev_b32 v{t0}, 6, v0")
    a(f"v_and_b32 v{lane}, 63, v0")
    a(f"v_readfirstlane_b32 s{sWave}, v{t0}")
    srd(a, sWS, WS_SIZE); srd(a, sDBG, 256)
    a(f"s_and_b32 s{sXc}, s2, 7")
    a(f"s_lshr_b32 s{sA}, s2, 3")
    a(f"s_lshl_b32 s{sD[0]}, s{sXc}, 6")
    a(f"s_lshl_b32 s{sT}, s{sA}, 1")
    a(f"s_add_u32 s{sD[0]}, s{sD[0]}, s{sT}")
    a(f"s_add_u32 s{sD[1]}, s{sD[0]}, 1")
    a(f"s_lshl_b32 s{sD[2]}, s{sXc}, 4")
    a(f"s_add_u32 s{sD[2]}, s{sD[2]}, s{sA}")
    a(f"s_add_u32 s{sD[2]}, s{sD[2]}, 512")
    a(f"s_cmp_lt_u32 s{sA}, 16")
    a(f"s_cselect_b32 s{sHeavy}, 1, 0")
    a(f"v_mov_b32 v{vzero}, 0")
    a(f"v_lshlrev_b32 v{v16}, 4, v{lane}")
    ONLY = os.environ.get("ONLY", "")
    if ENV("SPRIO0", 1): a(f"s_setprio {ENV('SPRIO0', 1)}")
    a(f"s_lshr_b32 s{sSlot}, s{sWave}, 1")
    a(f"s_cmp_eq_u32 s{sWave}, 3")
    a("s_cbranch_scc1 " + ("S_ln" if (not ONLY or "l" in ONLY) else "K_exit"))
    a(f"s_add_u32 s{sT}, s{sHeavy}, 2")
    a(f"s_cmp_ge_u32 s{sWave}, s{sT}")
    a("s_cbranch_scc1 " + ("S_w2t" if (not ONLY or "w" in ONLY) else "K_exit"))
    if ONLY and "k" not in ONLY: a("s_branch K_exit")

    P = [[R() for _ in range(6)] for _ in range(3)]
    vdt = R(); vwr = R(); vrd = R(); voff = R()
    accK = R(16, 4)
    FA = [R(4, 4) for _ in range(8)]; FB = [R(4, 4) for _ in range(8)]
    pr = lambda: R(2, 2)
    l1, l8, l256, W, E0, E1, E2, T, T2, G2, G4, G6, V, a2b = [pr() for _ in range(14)]
    Qr = [R(4, 4) for _ in range(2)]; Qi = [R(4, 4) for _ in range(2)]
    Cr = R(16, 4); Ci = R(16, 4)
    sDd, sBase = 58, 59
    if STAMPS: sDd, sBase = 100, 101
    for i, sr in enumerate(SP):
        a(f"s_load_dwordx2 s[{sr}:{sr+1}], s[0:1], {8 + 8*i}")
    a(f"s_load_dwordx2 s[{sX_}:{sX_+1}], s[0:1], 56")
    a(f"s_load_dwordx2 s[18:19], s[0:1], 64")
    a(f"s_cmp_eq_u32 s{sWave}, 1")
    a(f"s_cselect_b32 s{sDd}, s{sD[1]}, s{sD[0]}")
    a(f"s_cmp_eq_u32 s{sWave}, 2")
    a(f"s_cselect_b32 s{sDd}, s{sD[2]}, s{sDd}")
    for sr in SP: srd(a, sr, D * N * 2)
    srd(a, sX_, D * 2)
    a(f"s_mul_i32 s{sT}, s{sDd}, {N*2}")
    a(f"v_lshlrev_b32 v{voff}, 1, v{lane}")
    a(f"s_lshl_b32 s{sT2}, s{sDd}, 1")
    a("s_waitcnt lgkmcnt(0)")
    a(f"buffer_load_ushort v{vdt}, v{vzero}, s[{sX_}:{sX_+3}], s{sT2} offen")
    a(f"s_mov_b32 s{sX_}, s18"); a(f"s_mov_b32 s{sX_+1}, s19")
    a(f"buffer_load_ushort v{vdk[0]}, v{vzero}, s[{sX_}:{sX_+3}], s{sT2} offen")
    for p in range(3):
        for i, sr in enumerate(SP):
            a(f"buffer_load_ushort v{P[p][i]}, v{voff}, s[{sr}:{sr+3}], s{sT} offen offset:{128*p}")
    a(f"s_mul_i32 s{sBase}, s{sWave}, {CH_REG}")
    a(f"v_mul_u32_u24 v{vwr}, {KG_S}, v{lane}")
    a(f"v_add_u32 v{vwr}, s{sBase}, v{vwr}")
    a(f"v_bfe_u32 v{t0}, v{lane}, 2, 2")
    a(f"v_lshrrev_b32 v{t1}, 5, v{lane}")
    a(f"v_lshl_add_u32 v{t0}, v{t0}, 2, v{t1}")
    a(f"v_mul_u32_u24 v{t0}, {KG_S}, v{t0}")
    a(f"v_bfe_u32 v{t1}, v{lane}, 4, 1")
    a(f"v_lshl_add_u32 v{t0}, v{t1}, 5, v{t0}")
    a(f"v_and_b32 v{t1}, 3, v{lane}")
    a(f"v_lshl_add_u32 v{t0}, v{t1}, 3, v{t0}")
    a(f"v_add_u32 v{vrd}, s{sBase}, v{t0}")
    for i in (13, 15): a(f"v_mov_b32 v{Cr+i}, 0"); a(f"v_mov_b32 v{Ci+i}, 0")
    a("s_waitcnt vmcnt(0)")
    stamp(a, 1)
    a(f"v_lshlrev_b32 v{vdt}, 16, v{vdt}")
    a(f"v_mul_f32 v{t0}, {f32(LOG2E)}, v{vdt}")
    a(f"s_mov_b32 s{sT}, {f32(LOG2E)}")
    a(f"v_fma_f32 v{t1}, v{vdt}, s{sT}, -v{t0}")
    lo = LOG2E - struct.unpack("<f", struct.pack("<f", LOG2E))[0]
    a(f"v_fmac_f32 v{t1}, {f32(lo)}, v{vdt}")
    a(f"v_exp_f32 v{t0}, v{t0}")
    a(f"v_mul_f32 v{t1}, {f32(LN2)}, v{t1}")
    a(f"v_fma_f32 v{t0}, v{t0}, v{t1}, v{t0}")
    bf16r(a, vdt, t0)
    a(f"s_mov_b32 s{sCnt}, 0")
    def cmul(dst, e, m):
        if ENV("KPK", 0):
            a(f"v_pk_mul_f32 {v(T,2)}, {v(e,2)}, {v(m,2)} op_sel:[0,0] op_sel_hi:[0,1]")
            a(f"v_pk_fma_f32 {v(dst,2)}, {v(e,2)}, {v(m,2)}, {v(T,2)} op_sel:[1,1,0] op_sel_hi:[1,0,1] neg_lo:[0,1,0]")
        else:
            assert dst != e and dst != m
            a(f"v_mul_f32 v{dst}, v{e}, v{m}")
            a(f"v_mul_f32 v{dst+1}, v{e}, v{m+1}")
            a(f"v_fma_f32 v{dst}, -v{e+1}, v{m+1}, v{dst}")
            a(f"v_fmac_f32 v{dst+1}, v{e+1}, v{m}")
    def cexp(dst, scale):
        if scale == 1:
            a(f"v_exp_f32 v{t0}, v{a2b}")
            a(f"v_fract_f32 v{t1}, v{a2b+1}")
        else:
            a(f"v_mul_f32 v{t0}, {f32(float(scale))}, v{a2b}")
            a(f"v_mul_f32 v{t1}, {f32(float(scale))}, v{a2b+1}")
            a(f"v_exp_f32 v{t0}, v{t0}")
            a(f"v_fract_f32 v{t1}, v{t1}")
        a(f"v_cos_f32 v{dst}, v{t1}")
        a(f"v_sin_f32 v{dst+1}, v{t1}")
        a(f"v_mul_f32 v{dst}, v{dst}, v{t0}")
        a(f"v_mul_f32 v{dst+1}, v{dst+1}, v{t0}")
    def mfmas():
        for ks in range(8):
            a(f"v_mfma_f32_32x32x16_bf16 {v(accK,16)}, {v(FA[ks],4)}, {v(FB[ks],4)}, {v(accK,16)}")
    def cpair(dw, x, y):
        a(f"v_cvt_pk_bf16_f32 v{Cr+dw}, v{x}, v{y}")
        a(f"v_cvt_pk_bf16_f32 v{Ci+dw}, -v{x+1}, -v{y+1}")
    if ENV("XKG", 0): a("s_branch KG_after")
    a.label("KG_loop")
    a.flush_hist()
    _a = a
    if ENV("XKW", 0) or ENV("XKM", 0) or ENV("XKR", 0):
        class Filt:
            def __call__(self, t):
                if ENV("XKW", 0) and t.startswith("ds_write"): return
                if ENV("XKR", 0) and t.startswith("ds_read"): return
                if ENV("XKM", 0) and t.startswith("v_mfma"): return
                _a(t)
            def __getattr__(self, n): return getattr(_a, n)
        a = Filt()
    p0 = P[0]
    for i in range(4): a(f"v_lshlrev_b32 v{p0[i]}, 16, v{p0[i]}")
    a(f"v_lshlrev_b32 v{V}, 16, v{p0[4]}")
    a(f"v_lshlrev_b32 v{V+1}, 16, v{p0[5]}")
    a(f"v_mul_f32 v{p0[0]}, v{vdt}, v{p0[0]}")
    a(f"v_mul_f32 v{p0[1]}, v{vdt}, v{p0[1]}")
    a(f"v_mul_f32 v{T2}, v{vdt}, v{p0[2]}")
    a(f"v_mul_f32 v{T2+1}, v{vdt}, v{p0[3]}")
    a(f"v_mul_f32 v{a2b}, {f32(LOG2E)}, v{p0[0]}")
    a(f"v_mul_f32 v{a2b+1}, {f32(1.0/(2*math.pi))}, v{p0[1]}")
    cmul(W, V, T2)
    cexp(l8, 8); cexp(l1, 1); cexp(l256, 256)
    if STAMPS: a("s_memtime s[18:19]")
    a("s_waitcnt lgkmcnt(0)")
    if STAMPS:
        a(f"s_cmp_eq_u32 s{sCnt}, 1")
        a("s_cselect_b32 s82, s18, s82")
        a(f"s_cmp_eq_u32 s{sCnt}, 2")
        a("s_cselect_b32 s84, s18, s84")
    a(f"v_cvt_pk_bf16_f32 v{Qr[0]}, 1.0, v{l8}")
    a(f"v_cvt_pk_bf16_f32 v{Qi[0]}, 0, v{l8+1}")
    cur = l8
    for f in range(2, 32, 2):
        if f // 2 - 1 < 8:
            ks = f // 2 - 1
            a(f"v_mfma_f32_32x32x16_bf16 {v(accK,16)}, {v(FA[ks],4)}, {v(FB[ks],4)}, {v(accK,16)}")
        cmul(E0, cur, l8); cmul(E1, E0, l8); cur = E1
        g, dw = f // 8, (f % 8) // 2
        a(f"v_cvt_pk_bf16_f32 v{Qr[g%2]+dw}, v{E0}, v{E1}")
        a(f"v_cvt_pk_bf16_f32 v{Qi[g%2]+dw}, v{E0+1}, v{E1+1}")
        if dw == 3:
            a(f"ds_write_b128 v{vwr}, {v(Qr[g%2],4)} offset:{16*g}")
            a(f"ds_write_b128 v{vwr}, {v(Qi[g%2],4)} offset:{64+16*g}")
    cmul(E0, W, l1); cpair(0, W, E0)
    cmul(G2, E0, l1); cmul(E0, G2, l1); cpair(1, G2, E0)
    cmul(G4, E0, l1); cmul(E0, G4, l1); cpair(4, G4, E0)
    cmul(G6, E0, l1); cmul(E0, G6, l1); cpair(5, G6, E0)
    cmul(E0, G2, l256); cmul(E1, G6, l256); cpair(3, E0, E1)
    cmul(E0, G4, l256); cmul(E1, E0, l256); cpair(7, E0, E1)
    cmul(E0, E1, l256); cpair(11, E0, E0)
    cur = W
    dwv = {1: 2, 2: 6, 3: 10, 4: 8, 5: 9, 6: 12, 7: 14}
    for j in range(1, 8):
        nx = [E0, E2][j % 2]
        cmul(nx, cur, l256); cmul(E1, nx, l8); cpair(dwv[j], nx, E1); cur = nx
        if j in (1, 2):
            g = j - 1
            a(f"ds_write_b128 v{vwr}, {v(Cr+4*g,4)} offset:{128+16*g}")
            a(f"ds_write_b128 v{vwr}, {v(Ci+4*g,4)} offset:{192+16*g}")
        if j in (5, 7):
            g = {5: 2, 7: 3}[j]
            a(f"ds_write_b128 v{vwr}, {v(Cr+4*g,4)} offset:{128+16*g}")
            a(f"ds_write_b128 v{vwr}, {v(Ci+4*g,4)} offset:{192+16*g}")
    for ks in range(8):
        o = (16 * (ks >> 1) + 2 * (ks & 1)) * KG_S
        a(f"ds_read_b64_tr_b16 {v(FA[ks],2)}, v{vrd} offset:{o+128}")
        a(f"ds_read_b64_tr_b16 {v(FA[ks]+2,2)}, v{vrd} offset:{o+192}")
        a(f"ds_read_b64_tr_b16 {v(FB[ks],2)}, v{vrd} offset:{o}")
        a(f"ds_read_b64_tr_b16 {v(FB[ks]+2,2)}, v{vrd} offset:{o+64}")
    for i in range(6):
        a(f"v_mov_b32 v{P[0][i]}, v{P[1][i]}")
        a(f"v_mov_b32 v{P[1][i]}, v{P[2][i]}")
    a(f"s_cmp_eq_u32 s{sCnt}, 0")
    a(f"s_cselect_b32 s{sT}, 0, -1")
    for i in range(16): a(f"v_and_b32 v{accK+i}, s{sT}, v{accK+i}")
    if STAMPS and 0:
        a("s_memtime s[18:19]")
        a("s_waitcnt lgkmcnt(0)")
        a(f"s_cmp_eq_u32 s{sCnt}, 0")
        a("s_cselect_b32 s82, s18, s82")
        a(f"s_cmp_eq_u32 s{sCnt}, 1")
        a("s_cselect_b32 s84, s18, s84")
    a(f"s_add_u32 s{sCnt}, s{sCnt}, 1")
    a(f"s_cmp_lt_u32 s{sCnt}, 3")
    a("s_cbranch_scc1 KG_loop")
    a = _a
    a.label("KG_after")
    stamp(a, 2)
    if ENV("LDSPACE", 0) == 1:
        a(f"v_mov_b32 v{t0}, {PACE_OFF}"); a(f"v_mov_b32 v{t1}, 0x5a5a"); a(f"ds_write_b32 v{t0}, v{t1}")
    a(f"buffer_load_dword v{vtok}, v{vzero}, s[{sDBG}:{sDBG+3}], 0 offen sc1")
    vJa = P[0][0]; vJb = P[0][1]; u0 = P[0][2]; u1 = P[0][3]
    a(f"v_and_b32 v{t0}, 31, v{lane}")
    a(f"v_lshlrev_b32 v{t0}, 4, v{t0}")
    a(f"v_lshrrev_b32 v{t1}, 5, v{lane}")
    a(f"v_lshl_add_u32 v{t2}, v{t1}, 9, v{t0}")
    a(f"s_add_u32 s{sT}, s{sBase}, 1008")
    a(f"v_sub_u32 v{vJa}, s{sT}, v{t2}")
    a(f"v_lshlrev_b32 v{t2}, 10, v{t1}")
    a(f"v_sub_u32 v{t2}, v{t2}, v{t0}")
    a(f"s_add_u32 s{sT}, s{sBase}, 496")
    a(f"v_add_u32 v{vJb}, s{sT}, v{t2}")
    Z = Qr[0]
    for i in range(4): a(f"v_mov_b32 v{Z+i}, 0")
    a(f"v_lshrrev_b32 v{u0}, 2, v{lane}")
    a(f"v_mul_u32_u24 v{u0}, {CV_S}, v{u0}")
    a(f"v_and_b32 v{u1}, 3, v{lane}")
    a(f"v_lshl_add_u32 v{u0}, v{u1}, 4, v{u0}")
    a(f"v_add_u32 v{u0}, s{sBase}, v{u0}")
    a("s_mov_b32 s18, 0xaaaaaaaa"); a("s_mov_b32 s19, 0xaaaaaaaa")
    a("s_waitcnt lgkmcnt(0)")
    mfmas()
    a("s_mov_b64 exec, 0xffff")
    a(f"ds_write_b128 v{u0}, {v(Z,4)} offset:4096")
    a("s_mov_b64 exec, -1")
    O = [Cr, Cr + 8, Ci, Ci + 8]
    ac = lambda i: accK + i
    def cv(d, lo_, hi_): a(f"v_cvt_pk_bf16_f32 v{d}, v{lo_}, v{hi_}")
    def seg3(o, e0, e1):
        a(f"v_cndmask_b32 v{t0}, v{e0}, v{e1}, s[18:19]")
        cv(o, e1, e1); cv(o + 1, e1, t0); cv(o + 2, e0, e0); cv(o + 3, e0, e0)
    def seg2(o, e0, e1, e2):
        cv(o, e2, e2); cv(o + 1, e1, e1); cv(o + 2, e1, e0); cv(o + 3, e0, e0)
    seg3(O[3], ac(12), ac(13))
    a(f"v_lshlrev_b32 v{vdk[0]}, 16, v{vdk[0]}")
    a("s_mov_b64 exec, 1")
    a(f"v_add_f32 v{ac(0)}, v{ac(0)}, v{vdk[0]}")
    a("s_mov_b32 exec_lo, -1")
    for m in range(4): cv(O[0] + m, ac(7 - 2*m), ac(6 - 2*m))
    seg3(O[1], ac(8), ac(9)); seg3(O[2], ac(10), ac(11))
    a("s_mov_b32 exec_hi, -1")
    a("s_mov_b32 exec_lo, 0")
    cv(O[0], ac(1), ac(3)); cv(O[0] + 1, ac(6), ac(6)); cv(O[0] + 2, ac(6), ac(2)); cv(O[0] + 3, ac(0), ac(0))
    seg2(O[1], ac(4), ac(7), ac(5)); seg2(O[2], ac(8), ac(10), ac(9))
    a("s_mov_b32 exec_lo, -1")
    adr = [(vJa, 3072), (vJb, 1536), (vJb, 1024), (vJa, 0)]
    for p in range(4):
        a(f"ds_write_b128 v{adr[p][0]}, {v(O[p],4)} offset:{adr[p][1]}")
    for p in range(4):
        a(f"ds_read_b64 {v(O[p]+4,2)}, v{adr[p][0]} offset:{adr[p][1]+16}")
    stamp(a, 11)
    if ENV("LDSPACE", 0) == 2:
        a(f"v_mov_b32 v{t0}, {PACE_OFF}"); a(f"v_mov_b32 v{t1}, 0x5a5a"); a(f"ds_write_b32 v{t0}, v{t1}")
    a("s_waitcnt vmcnt(0)")
    check_token(a, vtok, vzero)
    a("s_waitcnt lgkmcnt(0)")
    for p in range(4):
        Kt = [FA[(3*p + c) % 8] for c in range(3)]
        kin = O[p]
        for k in range(4): a(f"v_alignbyte_b32 v{Kt[0]+k}, v{kin+k+1}, v{kin+k}, 2")
        for k in range(4): a(f"v_mov_b32 v{Kt[1]+k}, v{kin+k+1}")
        for k in range(4): a(f"v_alignbyte_b32 v{Kt[2]+k}, v{kin+k+2}, v{kin+k+1}, 2")
        for c in range(3): a(f"ds_write_b128 v{adr[p][0]}, {v(Kt[c],4)} offset:{adr[p][1] + (c+1)*CV_S}")
    a("s_branch S_join")
    hi = R.hi

    a.label("S_w2t"); a.flush_hist()
    toks = {}
    a("s_waitcnt lgkmcnt(0)")
    a(f"v_mov_b32 v{vtok}, 0")
    check_token(a, vtok, vzero, sleep=32)
    a("s_branch S_join")

    a.label("S_ln"); a.flush_hist()
    R.reset(base)
    voff = R(); vlw = R(); vtr = R()
    Xr = [R(4, 4) for _ in range(10)]
    U = [R(2, 2) for _ in range(40)]
    sm = R(2, 2); mb = R(2, 2); rs = R(2, 2); T = [R(2, 2) for _ in range(4)]; gr = R(2, 2)
    ones = R()
    O = [R(4, 4) for _ in range(4)]
    a(f"s_load_dwordx2 s[{sX_}:{sX_+1}], s[0:1], 0")
    a("s_memrealtime s[18:19]")
    srd(a, sX_, L * D * 2)
    a(f"v_lshrrev_b32 v{t0}, 3, v{lane}")
    a(f"v_and_b32 v{t1}, 7, v{lane}")
    a(f"v_lshlrev_b32 v{t1}, 4, v{t1}")
    a(f"v_mul_u32_u24 v{voff}, 1280, v{t0}")
    a(f"v_add_u32 v{voff}, v{voff}, v{t1}")
    a(f"v_mul_u32_u24 v{vlw}, {LN_S}, v{t0}")
    a(f"v_add_u32 v{vlw}, v{vlw}, v{t1}")
    a(f"v_add_u32 v{vlw}, {LN_OFF}, v{vlw}")
    a(f"s_lshl_b32 s{sT3}, s{sXc}, 5")
    a(f"s_add_u32 s{sT3}, s{sT3}, s{sA}")
    a(f"s_mul_i32 s{sT}, s{sT3}, {8*1280}")
    a("s_waitcnt lgkmcnt(0)")
    a(f"s_cmp_ge_u32 s2, 8")
    a("s_cbranch_scc1 S_ln_nt")
    a("s_or_b32 s18, s18, 1")
    a(f"v_mov_b32 v{gr}, s18")
    a(f"v_mov_b32 v{gr+1}, 0")
    a("s_mov_b64 exec, 1")
    a(f"buffer_atomic_cmpswap {v(gr,2)}, v{vzero}, s[{sDBG}:{sDBG+3}], 0 offen"); a.vm -= 1
    a("s_mov_b64 exec, -1")
    a.label("S_ln_nt")
    for i in range(10):
        a(f"buffer_load_dwordx4 {v(Xr[i],4)}, v{voff}, s[{sX_}:{sX_+3}], s{sT} offen offset:{128*i}")
    if ENV("LDSPACE", 0):
        a(f"v_mov_b32 v{vtr}, {PACE_OFF}")
        a(f"ds_write_b32 v{vtr}, v{vzero}")
    a(f"v_mov_b32 v{ones}, 0x3f803f80")
    a(f"v_mov_b32 v{sm}, 0")
    a("s_waitcnt vmcnt(0)")
    stamp(a, 1)
    a(f"buffer_load_dword v{vtok}, v{vzero}, s[{sDBG}:{sDBG+3}], 0 offen sc1")
    for i in range(40):
        a(f"v_dot2_f32_bf16 v{sm}, v{Xr[i//4] + i%4}, v{ones}, v{sm}")
    def red8(r_):
        a(f"v_add_f32_dpp v{r_}, v{r_}, v{r_} quad_perm:[1,0,3,2] row_mask:0xf bank_mask:0xf")
        a(f"v_add_f32_dpp v{r_}, v{r_}, v{r_} quad_perm:[2,3,0,1] row_mask:0xf bank_mask:0xf")
        a(f"v_add_f32_dpp v{r_}, v{r_}, v{r_} row_half_mirror row_mask:0xf bank_mask:0xf")
    for i in range(40):
        x = Xr[i//4] + i % 4
        a(f"v_lshlrev_b32 v{U[i]}, 16, v{x}")
        a(f"v_and_b32 v{U[i]+1}, 0xffff0000, v{x}")
    red8(sm)
    a(f"v_mul_f32 v{sm}, {f32(1.0/D)}, v{sm}")
    bf16r(a, mb, sm)
    a(f"v_mov_b32 v{rs}, 0"); a(f"v_mov_b32 v{rs+1}, 0")
    for i in range(40):
        if ENV("LPK", 0):
            a(f"v_pk_add_f32 {v(U[i],2)}, {v(U[i],2)}, {v(mb,2)} op_sel_hi:[1,0] neg_lo:[0,1] neg_hi:[0,1]")
            a(f"v_pk_fma_f32 {v(rs,2)}, {v(U[i],2)}, {v(U[i],2)}, {v(rs,2)}")
        else:
            for h in range(2):
                a(f"v_sub_f32 v{U[i]+h}, v{U[i]+h}, v{mb}")
                a(f"v_fmac_f32 v{rs+h}, v{U[i]+h}, v{U[i]+h}")
    a(f"v_add_f32 v{rs}, v{rs}, v{rs+1}")
    red8(rs)
    a(f"v_sub_f32 v{t0}, v{sm}, v{mb}")
    a(f"v_mul_f32 v{t0}, v{t0}, v{t0}")
    a(f"v_mul_f32 v{rs}, {f32(1.0/D)}, v{rs}")
    a(f"v_sub_f32 v{rs}, v{rs}, v{t0}")
    a(f"v_max_f32 v{rs}, 0, v{rs}")
    bf16r(a, rs, rs)
    a(f"v_add_f32 v{rs}, {f32(1e-5)}, v{rs}")
    bf16r(a, rs, rs)
    a(f"v_sqrt_f32 v{rs}, v{rs}")
    a(f"v_cvt_pk_bf16_f32 v{gr}, v{mb}, v{rs}")
    a(f"v_and_b32 v{rs}, 0xffff0000, v{gr}")
    a(f"v_rcp_f32 v{rs}, v{rs}")
    for i in range(40):
        x = Xr[i//4] + i % 4
        if ENV("LPK", 0): a(f"v_pk_mul_f32 {v(U[i],2)}, {v(U[i],2)}, {v(rs,2)} op_sel_hi:[1,0]")
        else:
            for h in range(2): a(f"v_mul_f32 v{U[i]+h}, v{U[i]+h}, v{rs}")
        a(f"v_cvt_pk_bf16_f32 v{x}, v{U[i]}, v{U[i]+1}")
        if i % 4 == 3:
            a(f"ds_write_b128 v{vlw}, {v(Xr[i//4],4)} offset:{128*(i//4)}")
    a(f"v_bfe_u32 v{t1}, v{lane}, 2, 2")
    a(f"v_mul_u32_u24 v{t1}, {LN_S}, v{t1}")
    a(f"v_lshrrev_b32 v{t0}, 4, v{lane}")
    a(f"v_lshl_add_u32 v{t1}, v{t0}, 5, v{t1}")
    a(f"v_and_b32 v{t2}, 3, v{lane}")
    a(f"v_lshl_add_u32 v{t1}, v{t2}, 3, v{t1}")
    a(f"v_add_u32 v{vtr}, {LN_OFF}, v{t1}")
    a(f"s_mul_i32 s{sT}, s{sT3}, 10240")
    def rd(i):
        o = O[i % 4]
        for e in range(2):
            a(f"ds_read_b64_tr_b16 {v(o+2*e,2)}, v{vtr} offset:{128*i + 4*e*LN_S}")
        toks[i] = a.ltok()
    for i in range(3): rd(i)
    for i in range(10):
        if i + 3 < 10: rd(i + 3)
        a.wait(lg=toks[i])
        a(f"buffer_store_dwordx4 {v(O[i%4],4)}, v{v16}, s[{sWS}:{sWS+3}], s{sT} offen sc1")
        a(f"s_add_u32 s{sT}, s{sT}, 1024")
    a("s_waitcnt vmcnt(10)")
    check_token(a, vtok, vzero)
    a(f"v_mov_b32 v{gr+1}, s{sTok}")
    a(f"s_lshl_b32 s{sT}, s{sT3}, 7")
    a(f"s_add_u32 s{sT2}, s{sT}, {WS_STAT}")
    a("s_mov_b32 exec_lo, 0x01010101"); a("s_mov_b32 exec_hi, 0x01010101")
    a(f"buffer_store_dwordx2 {v(gr,2)}, v{lane}, s[{sWS}:{sWS+3}], s{sT2} offen sc1")
    a(f"s_add_u32 s{sT}, s{sT}, {WS_FLN}")
    a("s_waitcnt vmcnt(0)")
    a("s_mov_b64 exec, 1")
    a(f"buffer_store_dword v{gr+1}, v{vzero}, s[{sWS}:{sWS+3}], s{sT} offen sc1")
    a("s_mov_b64 exec, -1")
    stamp(a, 2)
    if ONLY: a("s_branch S_end")
    a(f"v_mul_u32_u24 v{t0}, 10240, v{lane}")
    a(f"v_lshlrev_b32 v{t1}, 7, v{lane}")
    a(f"s_cmp_eq_u32 s{sHeavy}, 0")
    a(f"s_cselect_b32 s{sCnt}, s{sD[0]}, s{sD[2]}")
    if ENV("UPF", 0):
        a(f"s_lshl_b32 s{sT3}, s{sA}, 10")
        a(f"s_add_u32 s{sT3}, s{sT3}, {WS_FLN}")
        a(f"v_mov_b32 v{O[1]}, s{sTok}")
        ldu = lambda: a(f"buffer_load_dword v{O[1]}, v{t1}, s[{sWS}:{sWS+3}], s{sT3} offen sc1")
        a("s_mov_b64 exec, 0xff"); a(f"v_mov_b32 v{O[1]}, 0"); a("s_mov_b64 exec, -1")
        a(f"v_lshrrev_b32 v{t2}, 3, v{lane}")
        a(f"v_mul_u32_u24 v{t2}, 10240, v{t2}")
        a(f"v_and_b32 v{t3}, 7, v{lane}")
        a(f"v_lshl_add_u32 v{t2}, v{t3}, 7, v{t2}")
        a("s_waitcnt vmcnt(0)")
        check_flags(a, [O[1]], t1, ldu, sleep=ENV("USL1", 12))
        a(f"s_mul_i32 s{sT}, s{sA}, {8*10240}")
        a(f"s_lshl_b32 s{sT2}, s{sXc}, 10")
        a(f"s_add_u32 s{sT2}, s{sT2}, s{sT}")
        for q_ in range(4):
            m_ = 0xffff << (16 * q_)
            a(f"s_mov_b32 exec_lo, {hex(m_ & 0xffffffff)}"); a(f"s_mov_b32 exec_hi, {hex(m_ >> 32)}")
            a(f"buffer_load_dword v{O[1]+1}, v{t2}, s[{sWS}:{sWS+3}], s{sT2} offen sc1")
            if q_ % 2: a("s_waitcnt vmcnt(0)")
        a(f"s_lshl_b32 s{sT2}, s{sXc}, 8")
        a(f"s_add_u32 s{sT2}, s{sT2}, s{sT}")
        a(f"s_add_u32 s{sT2}, s{sT2}, 8192")
        a("s_mov_b32 exec_lo, 0x03030303"); a("s_mov_b32 exec_hi, 0x03030303")
        a(f"buffer_load_dword v{O[1]+1}, v{t2}, s[{sWS}:{sWS+3}], s{sT2} offen sc1")
        a("s_mov_b64 exec, -1")
        stamp(a, 11)
    LP = ENV("LDSPACE", 0)
    if LP:
        a(f"v_mov_b32 v{vtr}, {PACE_OFF}")
        a(f"s_mov_b32 s{sSpin}, 0")
        a.label("S_pace")
        a("s_sleep 4")
        a(f"ds_read_b32 v{t2}, v{vtr}")
        a("s_waitcnt lgkmcnt(0)")
        a(f"v_readfirstlane_b32 s{sT}, v{t2}")
        a(f"s_cmp_eq_u32 s{sT}, 0x5a5a")
        a("s_cbranch_scc1 S_paced")
        a(f"s_add_u32 s{sSpin}, s{sSpin}, 1")
        a(f"s_cmp_lt_u32 s{sSpin}, 64")
        a("s_cbranch_scc1 S_pace")
    else:
        a(f"s_lshl_b32 s{sT3}, s2, 7")
        a(f"s_add_u32 s{sT3}, s{sT3}, {WS_FPACE}")
        a(f"s_mov_b32 s{sSpin}, 0")
        a("s_mov_b64 exec, 1")
        a.label("S_pace")
        a(f"s_sleep {ENV('PSLEEP', 8)}")
        a(f"buffer_load_dword v{t2}, v{vzero}, s[{sWS}:{sWS+3}], s{sT3} offen sc1")
        a("s_waitcnt vmcnt(0)")
        a(f"v_readfirstlane_b32 s{sT}, v{t2}")
        a(f"s_cmp_eq_u32 s{sT}, s{sTok}")
        a("s_cbranch_scc1 S_paced")
        a(f"s_add_u32 s{sSpin}, s{sSpin}, 1")
        a(f"s_cmp_lt_u32 s{sSpin}, {ENV('PMAX', 24)}")
        a("s_cbranch_scc1 S_pace")
    a.label("S_paced")
    a("s_mov_b64 exec, -1")
    stamp(a, 10)
    for g in range(4):
        a(f"s_mov_b32 s{sT3}, {WS_FLN + 8192*g}")
        a(f"buffer_load_dword v{O[0]+g}, v{t1}, s[{sWS}:{sWS+3}], s{sT3} offen sc1")
    a("s_waitcnt vmcnt(0)")
    for g in range(4):
        a(f"s_mov_b32 s{sT3}, {WS_FLN + 8192*g}")
        ldf = lambda: a(f"buffer_load_dword v{O[0]+g}, v{t1}, s[{sWS}:{sWS+3}], s{sT3} offen sc1")
        check_flags(a, [O[0] + g], t1, ldf, sleep=ENV("LNSLEEP", 6))
    stamp(a, 9)
    Uq_ = [U[0] + 4 * i for i in range(12)]
    assert U[0] % 4 == 0
    a(f"v_lshrrev_b32 v{t1}, 1, v{lane}")
    a(f"v_and_b32 v{t3}, 1, v{lane}")
    a(f"v_mul_u32_u24 v{t2}, 10240, v{t1}")
    a(f"v_lshl_add_u32 v{t2}, v{t3}, 4, v{t2}")
    a(f"v_mul_u32_u24 v{t3}, 4608, v{t3}")
    a(f"v_lshl_add_u32 v{t3}, v{t1}, 4, v{t3}")
    a(f"s_lshl_b32 s{sT}, s{sD[0]}, 4")
    for g in range(8):
        if g: a(f"s_add_u32 s{sT}, s{sT}, {32*10240}")
        a(f"buffer_load_dwordx4 {v(Uq_[g],4)}, v{t2}, s[{sWS}:{sWS+3}], s{sT} offen sc1")
    a(f"s_cmp_eq_u32 s{sHeavy}, 0")
    a("s_cbranch_scc1 S_g2")
    a(f"s_lshl_b32 s{sT}, s{sD[2]}, 4")
    for g in range(4):
        if g: a(f"s_add_u32 s{sT}, s{sT}, {64*10240}")
        a(f"buffer_load_dwordx4 {v(Uq_[8+g],4)}, v{t0}, s[{sWS}:{sWS+3}], s{sT} offen sc1")
    a("s_waitcnt vmcnt(0)")
    for g in range(4):
        a(f"ds_write_b128 v{v16}, {v(Uq_[8+g],4)} offset:{CV_U[2] + 1024*g}")
    a.label("S_g2")
    for g in range(8):
        a(f"s_waitcnt vmcnt({7-g})")
        a(f"ds_write_b128 v{t3}, {v(Uq_[g],4)} offset:{CV_U[0] + 512*g}")
    stamp(a, 4)
    hi = max(hi, R.hi)

    a.label("S_join"); a.flush_hist()
    if ONLY: a("s_branch S_end")
    if ENV("SPRIO", 0): a(f"s_setprio {ENV('SPRIO', 0)}")
    stamp(a, 3)
    R.reset(base)
    acc = [R(4, 4) for _ in range(8)]
    FA = [[R(4, 4) for _ in range(8)] for _ in range(2)]
    FB = [[R(4, 4) for _ in range(8)] for _ in range(2)]
    vA = R(); vBq = R(); vA0 = R(); vB0 = R(); vrw = R(); vrr = R(); vfl = R(); vfa = R(); vtk = R()
    a(f"s_and_b32 s{sPar}, s{sWave}, 1")
    Z = FB[0][3]
    for i in range(4): a(f"v_mov_b32 v{Z+i}, 0")
    a(f"s_min_u32 s{sT}, s{sWave}, 2")
    a(f"s_mul_i32 s{sT}, s{sT}, 4608")
    a(f"v_add_u32 v{t2}, s{sT}, v{v16}")
    a("s_mov_b32 exec_hi, 0")
    a(f"ds_write_b128 v{t2}, {v(Z,4)} offset:{CV_U[0]-512}")
    a("s_mov_b32 exec_hi, -1")
    a(f"v_and_b32 v{t0}, 15, v{lane}")
    a(f"v_sub_u32 v{t2}, 15, v{t0}")
    a(f"v_and_b32 v{t3}, 3, v{t2}")
    a(f"v_sub_u32 v{t2}, v{t2}, v{t3}")
    a(f"v_mul_u32_u24 v{t3}, {CV_S}, v{t3}")
    a(f"v_lshl_add_u32 v{t3}, v{t2}, 1, v{t3}")
    a(f"v_lshrrev_b32 v{t2}, 4, v{lane}")
    a(f"v_lshl_add_u32 v{vA0}, v{t2}, 4, v{t3}")
    a(f"v_lshlrev_b32 v{t3}, 4, v{t2}")
    a(f"v_lshl_add_u32 v{vB0}, v{t0}, 5, v{t3}")
    a(f"v_lshrrev_b32 v{t3}, 1, v{t2}")
    a(f"v_lshlrev_b32 v{t3}, 3, v{t3}")
    a(f"v_xor_b32 v{t3}, v{t3}, v{t0}")
    a(f"v_lshlrev_b32 v{t3}, 4, v{t3}")
    a(f"v_lshl_add_u32 v{t3}, v{t2}, 8, v{t3}")
    a(f"s_lshl_b32 s{sT}, s{sWave}, 13")
    a(f"v_add_u32 v{vrw}, s{sT}, v{t3}")
    a(f"v_bfe_u32 v{t0}, v{lane}, 1, 4")
    a(f"v_and_b32 v{t2}, 1, v{lane}")
    a(f"v_lshlrev_b32 v{t3}, 3, v{t2}")
    a(f"v_xor_b32 v{t0}, v{t0}, v{t3}")
    a(f"v_lshlrev_b32 v{t0}, 4, v{t0}")
    a(f"v_lshl_add_u32 v{t0}, v{t2}, 9, v{t0}")
    a(f"v_lshrrev_b32 v{t2}, 5, v{lane}")
    a(f"v_lshl_add_u32 v{vrr}, v{t2}, 10, v{t0}")
    a(f"v_mov_b32 v{vtk}, s{sTok}")
    a(f"s_mul_i32 s{sT}, s{sSlot}, {CH_REG}")
    a(f"s_lshl_b32 s{sT2}, s{sPar}, 8")
    a(f"s_sub_u32 s{sT}, s{sT}, s{sT2}")
    a(f"s_add_u32 s{sT}, s{sT}, {32*14}")
    a(f"v_add_u32 v{vA}, s{sT}, v{vA0}")
    a(f"s_mul_i32 s{sT}, s{sSlot}, 4608")
    a(f"s_sub_u32 s{sT}, s{sT}, s{sT2}")
    a(f"s_add_u32 s{sT}, s{sT}, {CV_U[0] - 512 + 32*15}")
    a(f"v_add_u32 v{vBq}, s{sT}, v{vB0}")
    sDa, sDb, sJa, sJb = 20, 21, 22, 23
    a(f"s_lshl_b32 s{sT3}, s{sWave}, 7")
    a(f"s_sub_u32 s{sJb}, s{sT}, 192")
    a(f"s_sub_u32 s{sJb}, s{sJb}, {CV_U[2] - 512 + 32*15}")
    a(f"s_add_u32 s{sJb}, s{sJb}, s{sT3}")
    a(f"s_mul_i32 s{sJa}, s{sSlot}, {CH_REG}")
    a(f"s_sub_u32 s{sJa}, s{sJa}, s{sT2}")
    a(f"s_sub_u32 s{sJa}, s{sJa}, {192 + 2*CH_REG}")
    a(f"s_add_u32 s{sJa}, s{sJa}, s{sT3}")
    acc1 = [R(4, 4) for _ in range(8)]
    for c in range(8):
        for i in range(4):
            a(f"v_mov_b32 v{acc[c]+i}, 0"); a(f"v_mov_b32 v{acc1[c]+i}, 0")
    a(f"s_mov_b32 s{sCnt}, 0")
    a(f"s_add_u32 s{sRound}, s{sHeavy}, 2")
    a("s_waitcnt vmcnt(0) lgkmcnt(0)")
    a("s_barrier")
    stamp(a, 5)

    def rdlist(st, da="64", db="64"):
        rd_ = []
        for j in range(8):
            rd_.append(f"ds_read_b128 {v(FB[st][j],4)}, v{vBq} offset:{512*j}")
            rd_.append(f"ds_read_b64 {v(FA[st][j],2)}, v{vA} offset:{512*(7-j)}")
            rd_.append(f"ds_read_b64 {v(FA[st][j]+2,2)}, v{vA} offset:{512*(7-j)+8}")
        rd_.append(f"v_subrev_u32 v{vA}, {da}, v{vA}")
        rd_.append(f"v_subrev_u32 v{vBq}, {db}, v{vBq}")
        return rd_
    def group(st, nxt, da="64", db="64"):
        pairs = sorted([(c, j) for c in range(8) for j in range(c + 1)], key=lambda cj: (max(cj[1], cj[0] - cj[1]), cj[0]))
        rd_ = rdlist(nxt, da, db)
        for i, (c, j) in enumerate(pairs):
            a(f"v_mfma_f32_16x16x32_bf16 {v(acc[c],4)}, {v(FA[st][j],4)}, {v(FB[st][c-j],4)}, {v(acc[c],4)}")
            if i < len(rd_): a(rd_[i])
    for x in rdlist(0): a(x)
    a.label("CV_loop")
    a(f"s_cmp_eq_u32 s{sCnt}, 1")
    a(f"s_cselect_b32 s{sDa}, s{sJa}, 64")
    a(f"s_cselect_b32 s{sDb}, s{sJb}, 64")
    a("s_waitcnt lgkmcnt(0)")
    group(0, 1, f"s{sDa}", f"s{sDb}")
    a("s_waitcnt lgkmcnt(0)")
    group(1, 0)
    a(f"s_add_u32 s{sCnt}, s{sCnt}, 1")
    a(f"s_cmp_eq_u32 s{sCnt}, 1")
    a("s_cbranch_scc1 CV_loop")
    a(f"s_cmp_eq_u32 s{sCnt}, 3")
    a("s_cbranch_scc1 CV_done")
    for c in range(8):
        for i in range(4): a(f"v_swap_b32 v{acc[c]+i}, v{acc1[c]+i}")
    a(f"s_cmp_lg_u32 s{sHeavy}, 0")
    a("s_nop 0")
    a("s_cbranch_scc1 CV_loop")
    a.label("CV_done")
    a("s_nop 7")
    a("s_waitcnt lgkmcnt(0)")
    a("s_barrier")
    stamp(a, 6)
    for c in range(8):
        a(f"ds_write_b128 v{vrw}, {v(acc1[c],4)} offset:{1024*c}")
    a(f"s_cmp_eq_u32 s{sHeavy}, 0")
    a("s_cbranch_scc1 CV_w1")
    for c in range(8):
        a(f"ds_write_b128 v{vrw}, {v(acc[c],4)} offset:{32768 + 1024*c}")
    a.label("CV_w1")
    a(f"s_lshl_b32 s{sT}, s{sSlot}, 14")
    a(f"s_lshl_b32 s{sT2}, s{sPar}, 12")
    a(f"s_add_u32 s{sT}, s{sT}, s{sT2}")
    a(f"v_add_u32 v{t0}, s{sT}, v{vrr}")
    a(f"s_lshl_b32 s{sT}, s{sWave}, 11")
    a(f"v_add_u32 v{t1}, s{sT}, v{vrr}")
    a(f"s_add_u32 s{sT}, s{sD[0]}, s{sSlot}")
    a(f"s_lshl_b32 s{sT3}, s{sT}, 12")
    a(f"s_lshl_b32 s{sT2}, s{sPar}, 11")
    a(f"s_add_u32 s{sT3}, s{sT3}, s{sT2}")
    a(f"s_add_u32 s{sT3}, s{sT3}, {WS_ST}")
    a(f"s_lshl_b32 s{sT}, s{sT}, 7")
    a(f"s_lshl_b32 s{sT2}, s{sPar}, 3")
    a(f"s_add_u32 s{sT}, s{sT}, s{sT2}")
    a(f"s_add_u32 s{sJa}, s{sT}, {WS_FST}")
    a(f"v_lshlrev_b32 v{t2}, 2, v{lane}")
    a("s_waitcnt lgkmcnt(0)")
    a("s_barrier")
    stamp(a, 7)
    Rd = FA[1]; Re = FA[0]
    for b in range(2):
        for p in range(2):
            for e in range(2):
                a(f"ds_read_b128 {v(Rd[(b*2+p)*2+e],4)}, v{t0} offset:{8192*p + 2048*b + 256*e}")
    for p in range(4):
        for e in range(2):
            a(f"ds_read_b128 {v(Re[p*2+e],4)}, v{t1} offset:{32768 + 8192*p + 256*e}")
    def finish(Rr, bs, npart, o):
        for p in range(1, npart):
            for e in range(2):
                for z in range(4):
                    a(f"v_add_f32 v{Rr[bs+e]+z}, v{Rr[bs+e]+z}, v{Rr[bs+2*p+e]+z}")
        for m in range(4):
            y = Rr[bs + m // 2] + 2 * (m % 2)
            a(f"v_cvt_pk_bf16_f32 v{o+m}, v{y}, v{y+1}")
    for b in range(2):
        a(f"s_waitcnt lgkmcnt({12 - 4*b})")
        finish(Rd, 4 * b, 2, FB[1][b])
        a(f"buffer_store_dwordx4 {v(FB[1][b],4)}, v{v16}, s[{sWS}:{sWS+3}], s{sT3} offen offset:{1024*b} sc1")
    a(f"s_cmp_eq_u32 s{sHeavy}, 0")
    a("s_cbranch_scc1 CV_f1")
    a(f"s_lshl_b32 s{sT3}, s{sWave}, 10")
    a(f"s_lshl_b32 s{sT}, s{sD[2]}, 12")
    a(f"s_add_u32 s{sT2}, s{sT3}, s{sT}")
    a(f"s_add_u32 s{sT2}, s{sT2}, {WS_ST}")
    a("s_waitcnt lgkmcnt(0)")
    finish(Re, 0, 4, FB[1][2])
    a(f"buffer_store_dwordx4 {v(FB[1][2],4)}, v{v16}, s[{sWS}:{sWS+3}], s{sT2} offen sc1")
    a(f"s_lshl_b32 s{sT}, s{sD[2]}, 7")
    a(f"s_lshl_b32 s{sT2}, s{sWave}, 2")
    a(f"s_add_u32 s{sT}, s{sT}, s{sT2}")
    a(f"s_add_u32 s{sT}, s{sT}, {WS_FST}")
    a("s_waitcnt vmcnt(0)")
    a("s_mov_b64 exec, 1")
    a(f"buffer_store_dword v{vtk}, v{vzero}, s[{sWS}:{sWS+3}], s{sT} offen sc1")
    a("s_branch CV_f2")
    a.label("CV_f1")
    a("s_waitcnt vmcnt(0)")
    a.label("CV_f2")
    a("s_mov_b64 exec, 3")
    a(f"buffer_store_dword v{vtk}, v{t2}, s[{sWS}:{sWS+3}], s{sJa} offen sc1")
    a.label("S_end")
    stamp_end(a, sWave)
    return max(hi, R.hi)

W_SLOT = 12288
X_OFF = 3 * W_SLOT
X_WAVE = 11264
NXU = 5
def g_role(a):
    sX, sW1, sB1, sOUT, sW2 = 20, 24, 28, 32, 52
    sRB, sCB, sTB, sJD, sId = 36, 37, 38, 39, 3
    sP = [40, 41, 42]
    sWoff, sXoff, sM0w, sM0x, sOA, sOB = 43, 44, 45, 46, 47, 48
    R = Alloc(1)
    lane = R(); t0 = R(); t1 = R(); t2 = R(); t3 = R(); vzero = R(); vtok = R(); v16 = R(); vfa = R()
    vfl = R(); vsa = R()
    NWR = 25
    NWI = 18
    WR = [R(4, 4) for _ in range(NWR)]
    base2 = pool = R.mark()
    R.reset(184)
    acc = [[R(4, 4) for ct in range(2)] for rt in range(6)]
    cs = [R(4, 4) for _ in range(2)]
    st = [R(2, 2) for _ in range(2)]
    b1p = [R(2, 2) for _ in range(6)]
    R.reset(WR[NWI]); R.limit = 184
    A = [[R(4, 4) for rt in range(6)] for _ in range(2)]
    X = [[[R(4, 4) for ct in range(2)] for e in range(2)] for _ in range(2)]
    ones = R(4, 4)
    vE = [R() for _ in range(3)]; vO = [R() for _ in range(3)]
    vW = [R() for _ in range(3)]; vXs = [R(), R()]; vXr = [R(), R()]
    vpf = R(); vpd = R()
    stamp_begin(a)
    if ENV("GPRIO", 0): a(f"s_setprio {ENV('GPRIO', 0)}")
    a(f"s_load_dwordx2 s[{sX}:{sX+1}], s[0:1], 0")
    a(f"s_load_dwordx2 s[{sW1}:{sW1+1}], s[0:1], 80")
    a(f"s_load_dwordx2 s[{sW2}:{sW2+1}], s[0:1], 96")
    a(f"v_lshrrev_b32 v{t0}, 6, v0")
    a(f"v_and_b32 v{lane}, 63, v0")
    a(f"v_readfirstlane_b32 s{sWave}, v{t0}")
    a(f"s_sub_u32 s{sId}, s2, 256")
    srd(a, sX, L * D * 2); srd(a, sW1, D * F * 2)
    pfx = A[1][0]; pfw = A[1][0] + 1
    a(f"s_lshr_b32 s{sT3}, s{sId}, 3")
    a(f"s_lshl_b32 s{sT3}, s{sT3}, 2")
    a(f"s_add_u32 s{sT3}, s{sT3}, s{sWave}")
    a(f"v_mul_u32_u24 v{t1}, 0xaaab, v{lane}")
    a(f"v_lshrrev_b32 v{t1}, 18, v{t1}")
    a(f"v_mul_u32_u24 v{t2}, 6, v{t1}")
    a(f"v_sub_u32 v{t2}, v{lane}, v{t2}")
    a(f"v_mul_u32_u24 v{t1}, {64*3072}, v{t1}")
    a(f"v_lshl_add_u32 v{t1}, v{t2}, 7, v{t1}")
    a(f"s_lshr_b32 s{sT2}, s{sT3}, 1")
    a(f"s_mul_i32 s{sT2}, s{sT2}, 3072")
    a(f"s_and_b32 s{sT}, s{sId}, 1")
    a(f"s_lshl_b32 s{sT}, s{sT}, 1")
    a(f"s_and_b32 s{sRB}, s{sT3}, 1")
    a(f"s_add_u32 s{sT}, s{sT}, s{sRB}")
    a(f"s_mul_i32 s{sT}, s{sT}, 768")
    a(f"s_add_u32 s{sT2}, s{sT2}, s{sT}")
    a(f"v_add_u32 v{pfw}, s{sT2}, v{t1}")
    XH = ENV("XHALF", 0)
    XR = 2 if XH else 4
    a(f"v_lshrrev_b32 v{t2}, {1 if XH else 2}, v{lane}")
    a(f"v_lshlrev_b32 v{t2}, 7, v{t2}")
    a(f"v_and_b32 v{t3}, {XR-1}, v{lane}")
    a(f"v_mul_u32_u24 v{t3}, 1280, v{t3}")
    a(f"v_add_u32 v{t2}, v{t2}, v{t3}")
    if XH:
        a(f"s_and_b32 s{sT}, s{sId}, 7")
        a(f"s_xor_b32 s{sT}, s{sT}, 1")
    else: a(f"s_bfe_u32 s{sT}, s{sId}, 0x20001")
    a(f"s_lshl_b32 s{sT}, s{sT}, 7")
    a(f"s_add_u32 s{sT}, s{sT}, s{sT3}")
    a(f"s_mul_i32 s{sT}, s{sT}, {XR*1280}")
    a(f"v_add_u32 v{pfx}, s{sT}, v{t2}")
    a("s_waitcnt lgkmcnt(0)")
    stamp(a, 1)
    def do_pf(c0, c1):
        def mask(lo, hi):
            m = ((1 << hi) - 1) & ~((1 << lo) - 1)
            a(f"s_mov_b32 exec_lo, {hex(m & 0xffffffff)}"); a(f"s_mov_b32 exec_hi, {hex(m >> 32)}")
        mask(XR * c0, XR * c1)
        a(f"buffer_load_dword v{vpd}, v{pfx}, s[{sX}:{sX+3}], 0 offen")
        mask(6 * c0, 6 * c1)
        a(f"buffer_load_dword v{vpd}, v{pfw}, s[{sW1}:{sW1+3}], 0 offen")
        a("s_mov_b64 exec, -1")
    PFA_ = ENV("PFSPLIT", 2)
    if not ENV("NOPFA", 0): do_pf(0, PFA_)
    if ENV("OWN", 0):
        m = (((1 << 60) - 1) & ~((1 << (6 * PFA_)) - 1))
        a(f"s_bfe_u32 s{sT}, s{sId}, 0x20001")
        a("s_mov_b32 s18, 0x11111111"); a("s_mov_b32 s19, 0x11111111")
        a(f"s_lshl_b64 s[18:19], s[18:19], s{sT}")
        a(f"s_and_b32 exec_lo, s18, {hex(m & 0xffffffff)}"); a(f"s_and_b32 exec_hi, s19, {hex(m >> 32)}")
        a(f"buffer_load_dword v{vpd}, v{pfw}, s[{sW1}:{sW1+3}], 0 offen")
        a("s_mov_b64 exec, -1")
    srd(a, sW2, F * D * 2)
    a(f"s_mul_i32 s{sT}, s{sT3}, {15*128}")
    a(f"v_lshl_add_u32 v{vpf}, v{lane}, 7, s{sT}")
    def op_pf2(j):
        def f():
            a(f"s_add_u32 s{sT2}, s{sId}, {j}")
            a(f"s_and_b32 s{sT2}, s{sT2}, 7")
            a(f"s_mul_i32 s{sT2}, s{sT2}, {128*15*128}")
            a("s_mov_b64 exec, 0x7fff")
            a(f"buffer_load_dword v{vpd}, v{vpf}, s[{sW2}:{sW2+3}], s{sT2} offen")
            a("s_mov_b64 exec, -1")
        return f
    if ENV("PF20", 4) == -2: op_pf2(0)()
    a(f"s_load_dwordx2 s[{sB1}:{sB1+1}], s[0:1], 88")
    a(f"s_load_dwordx2 s[{sWS}:{sWS+1}], s[0:1], 120")
    a(f"s_load_dwordx2 s[{sDBG}:{sDBG+1}], s[0:1], 112")
    a(f"s_load_dwordx2 s[{sOUT}:{sOUT+1}], s[0:1], 104")
    srd(a, sB1, F * 2); srd(a, sWS, WS_SIZE); srd(a, sDBG, 256); srd(a, sOUT, L * D * 2)
    a(f"s_and_b32 s{sT}, s{sId}, 7")
    a(f"s_lshr_b32 s{sT2}, s{sId}, 3")
    a(f"s_lshr_b32 s{sRB}, s{sT}, 1")
    a(f"s_lshl_b32 s{sTB}, s{sT}, 2")
    a(f"s_lshl_b32 s{sRB}, s{sRB}, 2")
    a(f"s_and_b32 s{sT3}, s{sT2}, 3")
    a(f"s_add_u32 s{sRB}, s{sRB}, s{sT3}")
    a(f"s_add_u32 s{sTB}, s{sTB}, s{sT3}")
    a(f"s_and_b32 s{sT}, s{sT}, 1")
    a(f"s_lshl_b32 s{sCB}, s{sT}, 3")
    a(f"s_lshr_b32 s{sJD}, s{sT2}, 2")
    a(f"s_add_u32 s{sCB}, s{sCB}, s{sJD}")
    a(f"v_mov_b32 v{vzero}, 0")
    a(f"v_lshlrev_b32 v{v16}, 4, v{lane}")
    for i in range(3):
        a(f"v_add_u32 v{t0}, {64*i}, v{lane}")
        a(f"v_mul_u32_u24 v{t1}, 0xaaab, v{t0}")
        a(f"v_lshrrev_b32 v{t1}, 19, v{t1}")
        a(f"v_mul_u32_u24 v{t2}, 12, v{t1}")
        a(f"v_sub_u32 v{t2}, v{t0}, v{t2}")
        a(f"v_lshrrev_b32 v{t3}, 2, v{t1}")
        a(f"v_and_b32 v{t3}, 2, v{t3}")
        a(f"v_xor_b32 v{t2}, v{t2}, v{t3}")
        a(f"v_lshlrev_b32 v{t2}, 4, v{t2}")
        a(f"v_mul_u32_u24 v{t1}, 3072, v{t1}")
        a(f"v_add_u32 v{vW[i]}, v{t1}, v{t2}")
        if i: a(f"v_subrev_u32 v{vW[i]}, {1024*i}, v{vW[i]}")
    a(f"s_mul_i32 s{sWoff}, s{sWave}, {16*3072}")
    a(f"s_mul_i32 s{sT}, s{sCB}, 192")
    a(f"s_add_u32 s{sWoff}, s{sWoff}, s{sT}")
    a(f"s_mul_i32 s{sM0w}, s{sWave}, 3072")
    a(f"v_lshrrev_b32 v{t0}, 3, v{lane}")
    a(f"v_and_b32 v{t1}, 7, v{lane}")
    a(f"v_lshrrev_b32 v{t2}, 1, v{t0}")
    a(f"v_xor_b32 v{t1}, v{t1}, v{t2}")
    a(f"v_mul_u32_u24 v{t0}, 1280, v{t0}")
    a(f"v_lshl_add_u32 v{vXs[0]}, v{t1}, 4, v{t0}")
    a(f"v_xor_b32 v{vXs[1]}, 64, v{vXs[0]}")
    a(f"v_add_u32 v{vXs[1]}, {8*1280 - 1024}, v{vXs[1]}")
    a(f"s_lshl_b32 s{sXoff}, s{sRB}, 7")
    a(f"s_lshl_b32 s{sT}, s{sWave}, 5")
    a(f"s_add_u32 s{sXoff}, s{sXoff}, s{sT}")
    a(f"s_mul_i32 s{sXoff}, s{sXoff}, 1280")
    a(f"s_mul_i32 s{sM0x}, s{sWave}, {X_WAVE}")
    a(f"s_add_u32 s{sM0x}, s{sM0x}, {X_OFF}")

    tokW = {}; tokXu = {}
    def ops_w(c):
        def f0():
            a(f"s_add_u32 m0, s{sM0w}, {(c % 3) * W_SLOT}")
            if c: a(f"s_add_u32 s{sWoff}, s{sWoff}, {64*3072}")
        def fi(i):
            def f():
                a(f"buffer_load_dwordx4 v{vW[i]}, s[{sW1}:{sW1+3}], s{sWoff} offen offset:{1024*i} lds")
                if i == 2: tokW[c] = a.vtok()
            return f
        return [f0] + [fi(i) for i in range(3)]
    def ops_x(u):
        c, ct = u // 2, u % 2
        def f0():
            a(f"s_add_u32 m0, s{sM0x}, {(u % NXU) * 2048}")
            a(f"s_add_u32 s{sT}, s{sXoff}, {ct*16*1280 + c*128}")
        def fi(h):
            def f():
                a(f"buffer_load_dwordx4 v{vXs[h]}, s[{sX}:{sX+3}], s{sT} offen offset:{1024*h} lds")
                if h == 1: tokXu[u] = a.vtok()
            return f
        return [f0, fi(0), fi(1)]
    def do_first():
        for f in ops_w(0) + ops_x(0) + ops_x(1) + ops_w(1) + ops_x(2) + ops_x(3): f()
    do_first()
    if ENV("PFBE", 1) == 2: do_pf(PFA_, 10)

    a(f"v_lshrrev_b32 v{t0}, 4, v{lane}")
    a(f"v_bfe_u32 v{t1}, v{lane}, 2, 2")
    a(f"v_lshl_add_u32 v{t1}, v{t0}, 3, v{t1}")
    a(f"v_mul_u32_u24 v{t1}, 192, v{t1}")
    a(f"v_and_b32 v{t2}, 3, v{lane}")
    a(f"v_lshl_add_u32 v{t1}, v{t2}, 3, v{t1}")
    a(f"v_and_b32 v{t2}, 1, v{t0}")
    a(f"v_lshlrev_b32 v{t2}, 5, v{t2}")
    a(f"v_sub_u32 v{t3}, v{t1}, v{t2}")
    a(f"v_add_u32 v{t3}, 32, v{t3}")
    a(f"v_add_u32 v{t2}, v{t1}, v{t2}")
    for P in range(3):
        a(f"s_add_u32 s{sP[P]}, s{sWave}, {P}")
        a(f"s_cmp_ge_u32 s{sP[P]}, 3")
        a(f"s_cselect_b32 s{sT}, 3, 0")
        a(f"s_sub_u32 s{sP[P]}, s{sP[P]}, s{sT}")
        a(f"s_lshl_b32 s{sT}, s{sP[P]}, 6")
        a(f"v_add_u32 v{vE[P]}, s{sT}, v{t2}")
        a(f"v_add_u32 v{vO[P]}, s{sT}, v{t3}")
    a(f"v_and_b32 v{t1}, 15, v{lane}")
    a(f"v_lshrrev_b32 v{t2}, 1, v{t1}")
    a(f"v_xor_b32 v{t2}, v{t2}, v{t0}")
    a(f"v_lshlrev_b32 v{t2}, 4, v{t2}")
    a(f"v_lshl_add_u32 v{t2}, v{t1}, 7, v{t2}")
    a(f"v_add_u32 v{vXr[0]}, s{sM0x}, v{t2}")
    a(f"v_xor_b32 v{t2}, 64, v{t2}")
    a(f"v_add_u32 v{vXr[1]}, s{sM0x}, v{t2}")
    a(f"v_lshrrev_b32 v{t2}, 3, v{t1}")
    a(f"v_and_b32 v{t1}, 7, v{t1}")
    a(f"v_lshlrev_b32 v{t1}, 3, v{t1}")
    a(f"v_lshl_add_u32 v{vsa}, v{t2}, 7, v{t1}")
    a(f"s_mul_i32 s{sT}, s{sWave}, 12")
    a(f"s_mul_i32 s{sOA}, s{sT}, {32*1280}")
    a(f"s_mul_i32 s{sT2}, s{sJD}, 160")
    a(f"s_add_u32 s{sOA}, s{sOA}, s{sT2}")
    a(f"s_mul_i32 s{sOB}, s{sTB}, 192")
    a(f"s_add_u32 s{sOB}, s{sOB}, s{sT}")
    a(f"s_lshl_b32 s{sOB}, s{sOB}, 10")
    a(f"s_add_u32 s{sOB}, s{sOB}, {WS_ACT}")
    a(f"v_lshlrev_b32 v{t0}, 3, v{t0}")

    tokA = {}; tokXr = {}
    def ops_ra(ks):
        c, e = ks // 2, ks % 2
        off = (c % 3) * W_SLOT + e * 6144
        out = []
        for rt in range(6):
            ad = (vE if rt % 2 == 0 else vO)[rt // 2]
            for h in range(2):
                def f(rt=rt, h=h, ad=ad):
                    a(f"ds_read_b64_tr_b16 {v(A[ks%2][rt] + 2*h, 2)}, v{ad} offset:{off + 768*h}")
                    tokA[(ks, rt)] = a.ltok()
                out.append(f)
        return out
    def ops_rx(c):
        out = []
        for e in range(2):
            for ct in range(2):
                def f(e=e, ct=ct):
                    a(f"ds_read_b128 {v(X[c%2][e][ct],4)}, v{vXr[e]} offset:{((2*c+ct) % NXU) * 2048}")
                    tokXr[c] = a.ltok()
                out.append(f)
        return out
    def mf(d, A_, B_, first):
        c = "0" if first else v(d, 4)
        a(f"v_mfma_f32_16x16x32_bf16 {v(d,4)}, {v(A_,4)}, {v(B_,4)}, {c}")
    wq = [0]
    tokWR = {}
    def ops_wr(n, lim=NWI):
        out = []
        for it_ in range(n):
            f_ = wq[0]
            if f_ >= lim: break
            def f(f_=f_, it_=it_):
                if f_ % 4 == 0 or it_ == 0: a(f"s_add_u32 s{sT2}, s{sOA}, {1024*(f_ - f_%4)}")
                a(f"buffer_load_dwordx4 {v(WR[f_],4)}, v{v16}, s[{sWS}:{sWS+3}], s{sT2} offen offset:{1024*(f_%4)} sc1")
                tokWR[f_] = a.vtok()
            out.append(f); wq[0] += 1
        return out
    sFB = 49
    def ld_w2flags():
        a(f"buffer_load_dword v{vfl}, v{vfa}, s[{sWS}:{sWS+3}], s{sFB} offen sc1")
    def ld_first(nl):
        a(f"v_mov_b32 v{vfl}, s{sTok}")
        a(f"s_mov_b64 exec, {hex((1 << nl) - 1)}")
        ld_w2flags()
        a("s_mov_b64 exec, -1")
    def ld_stats():
        for ct in range(2):
            a(f"buffer_load_dwordx2 {v(st[ct],2)}, v{vsa}, s[{sWS}:{sWS+3}], s{sT3} offen offset:{256*ct} sc1")
    tk = {}
    def op_tok():
        a(f"buffer_load_dword v{vtok}, v{vzero}, s[{sDBG}:{sDBG+3}], 0 offen sc1")
        tk["tok"] = a.vtok()
    def op_chk_tok():
        a.wait(vm=tk["tok"])
        check_token(a, vtok, vzero)
    def op_pace():
        if ENV("LDSPACE", 0): return
        a(f"v_mov_b32 v{vtok}, s{sTok}")
        a(f"s_lshl_b32 s{sT2}, s{sId}, 7")
        a(f"s_add_u32 s{sT2}, s{sT2}, {WS_FPACE}")
        a(f"s_cmp_eq_u32 s{sWave}, 0")
        a(f"s_cselect_b32 s{sT2}, s{sT2}, {WS_SIZE}")
        a("s_mov_b64 exec, 1")
        a(f"buffer_store_dword v{vtok}, v{vzero}, s[{sWS}:{sWS+3}], s{sT2} offen sc1")
        a("s_mov_b64 exec, -1")
    def op_stats():
        a(f"s_lshl_b32 s{sT3}, s{sRB}, 4")
        a(f"s_lshl_b32 s{sT2}, s{sWave}, 2")
        a(f"s_add_u32 s{sT3}, s{sT3}, s{sT2}")
        a(f"s_lshl_b32 s{sT3}, s{sT3}, 7")
        a(f"s_add_u32 s{sT3}, s{sT3}, {WS_STAT}")
        ld_stats()
        tk["st"] = a.vtok()
    def op_b1(P):
        def f():
            a(f"s_mul_i32 s{sT2}, s{sCB}, 192")
            a(f"s_lshl_b32 s{sT}, s{sP[P]}, 6")
            a(f"s_add_u32 s{sT}, s{sT}, s{sT2}")
            for o in range(2):
                a(f"buffer_load_dwordx2 {v(b1p[2*P+o],2)}, v{t0}, s[{sB1}:{sB1+3}], s{sT} offen offset:{32*o}")
        return f

    a("s_waitcnt lgkmcnt(0)")
    if ENV("TLBW", 0):
        SH = ENV("TLBSH", 21)
        nl = min(64, WS_SIZE >> SH)
        a(f"v_lshlrev_b32 v{t1}, {SH}, v{lane}")
        a(f"s_mov_b64 exec, {hex((1 << nl) - 1) if nl < 64 else -1}")
        a(f"s_mov_b32 s{sT2}, {WS_SIZE - 0x80000}")
        a(f"buffer_load_dword v{vpd}, v{t1}, s[{sWS}:{sWS+3}], 0 offen offset:3968")
        a(f"s_mul_i32 s{sT2}, s{sTB}, {64*1280}")
        a("s_mov_b64 exec, 1")
        a(f"buffer_load_dword v{vpd}, v{vzero}, s[{sOUT}:{sOUT+3}], s{sT2} offen")
        a("s_mov_b64 exec, -1")
    for P in range(3): op_b1(P)()
    a("s_waitcnt lgkmcnt(0)")
    if ENV("PFBE", 1) == 1 and PFA_ < 10: do_pf(PFA_, 10)
    a.wait(vm=max(tokW[0], tokXu[1]))
    for i in range(4): a(f"v_mov_b32 v{ones+i}, 0x3f803f80")
    a("s_barrier")
    stamp(a, 2)
    for f in ops_rx(0) + ops_ra(0) + ops_x(4) + ops_w(2): f()
    if PFA_ < 10 and not ENV("PFBE", 1): do_pf(PFA_, 10)
    if ENV("PF20", 4) == -1: op_pf2(0)()
    op_tok()
    extra = {9: [op_chk_tok], ENV("PACEKS", 13): [op_pace], ENV("STATKS", 15): [op_stats]}
    if ENV("PF20", 4) >= 0: extra.setdefault(ENV("PF20", 4), []).append(op_pf2(0))
    for j in range(1, ENV("PF2N", 8)): extra.setdefault(min(19, ENV("PF2KS", 10) + (j if not ENV("PF2D", 0) else (j + 1) // 2)), []).append(op_pf2(j))
    if ENV("GPRIO2", 2): a(f"s_setprio {ENV('GPRIO2', 2)}")
    for ks in range(20):
        c, e = ks // 2, ks % 2
        first = ks == 0
        Xs = X[c % 2][e]; As = A[ks % 2]
        mlist = []
        for rt in range(6):
            for ct in range(2): mlist.append((rt, acc[rt][ct], As[rt], Xs[ct]))
            if rt < 2: mlist.append((rt, cs[rt], As[rt], ones))
        if e == 0:
            fill = ops_ra(ks + 1)
            dma = []
            for u in (2 * c + 5, 2 * c + 6):
                if u < 20: dma += ops_x(u)
            fl2 = []
            for i, f in enumerate(fill):
                fl2.append(f)
                if i % 2 == 1 and dma: fl2.append(dma.pop(0))
            fill = fl2 + dma + extra.get(ks, [])
            start = 0
            a.wait(lg=tokXr[c])
        else:
            fill = []
            if ks < 19:
                fill = ops_rx(c + 1) + ops_ra(ks + 1)
                if c + 3 < 10: fill += ops_w(c + 3)
            fill += extra.get(ks, [])
            start = 6 if ks < 19 else 0
        nslots = len(mlist) - start
        per = [len(fill) // nslots + (1 if i < len(fill) % nslots else 0) for i in range(nslots)]
        lastrt = -1
        for i, (rt, d, A_, B_) in enumerate(mlist):
            if e == 1 and ks < 19 and i == start:
                a.wait(vm=max(tokW[c + 1], tokXu[2 * c + 3]), lg=a.ltok())
                a("s_barrier")
                if ks in (5, 11): stamp(a, {5: 3, 11: 4}[ks])
                lastrt = 99
            if rt > lastrt:
                a.wait(lg=tokA[(ks, rt)]); lastrt = rt
            mf(d, A_, B_, first)
            if i >= start:
                for _ in range(per[i - start]): fill.pop(0)()
        assert not fill
    tokst = tk["st"]
    stamp(a, 5)

    E = Alloc(pool, limit=vpf)
    csv = [E(4, 4) for _ in range(6)]
    b1v = [E(4, 4) for _ in range(6)]
    rr = [E(2, 2) for _ in range(2)]
    rm = [st[0], st[1]]
    tmp = [E(2, 2) for _ in range(8)]
    outp = cs
    vcs = E()
    CSOFF = 2 * W_SLOT
    a(f"v_lshrrev_b32 v{t0}, 4, v{lane}")
    a(f"v_lshlrev_b32 v{vcs}, 4, v{t0}")
    a(f"s_lshl_b32 s{sT}, s{sP[0]}, 7")
    a(f"v_add_u32 v{t1}, s{sT}, v{vcs}")
    for o in range(2):
        a(f"ds_write_b128 v{t1}, {v(cs[o],4)} offset:{CSOFF + 64*o}")
    a.wait(vm=tokst)
    check_flags(a, [st[0] + 1, st[1] + 1], vsa, ld_stats)
    a("s_waitcnt lgkmcnt(0)")
    a("s_barrier")
    for P in range(3):
        a(f"s_lshl_b32 s{sT}, s{sP[P]}, 7")
        a(f"v_add_u32 v{t1}, s{sT}, v{vcs}")
        for o in range(2):
            a(f"ds_read_b128 {v(csv[2*P+o],4)}, v{t1} offset:{CSOFF + 64*o}")
    for ct in range(2):
        a(f"v_and_b32 v{t1}, 0xffff0000, v{st[ct]}")
        a(f"v_rcp_f32 v{rr[ct]}, v{t1}")
        a(f"v_lshlrev_b32 v{t2}, 16, v{st[ct]}")
        a(f"v_mul_f32 v{rr[ct]+1}, v{t2}, v{rr[ct]}")
        a(f"v_sub_f32 v{rm[ct]}, 0, v{rr[ct]+1}")
    for rt in range(6):
        a(f"v_lshlrev_b32 v{b1v[rt]}, 16, v{b1p[rt]}")
        a(f"v_and_b32 v{b1v[rt]+1}, 0xffff0000, v{b1p[rt]}")
        a(f"v_lshlrev_b32 v{b1v[rt]+2}, 16, v{b1p[rt]+1}")
        a(f"v_and_b32 v{b1v[rt]+3}, 0xffff0000, v{b1p[rt]+1}")
    a(f"s_lshl_b32 s{sT}, s{sRB}, 3")
    a(f"s_lshl_b32 s{sT2}, s{sWave}, 1")
    a(f"s_add_u32 s{sT}, s{sT}, s{sT2}")
    a(f"s_mul_i32 s{sT}, s{sT}, 48")
    a(f"s_mul_i32 s{sT2}, s{sCB}, 3")
    a(f"s_add_u32 s{sT}, s{sT}, s{sT2}")
    for P in range(3):
        a(f"s_add_u32 s{sP[P]}, s{sP[P]}, s{sT}")
        a(f"s_lshl_b32 s{sP[P]}, s{sP[P]}, 10")
        a(f"s_add_u32 s{sP[P]}, s{sP[P]}, {WS_ACT}")
    a(f"s_mov_b32 s50, {f32(LOG2E)}"); a(f"s_mov_b32 s51, {f32(LOG2E)}")
    Q = Alloc(base2, limit=256)
    acc2 = [[Q(4, 4) for ct in range(4)] for rt in range(5)]
    NST = 3
    FB = [[Q(4, 4) for _ in range(4)] for _ in range(NST)]
    vB = [Q() for _ in range(4)]
    vxo = Q(); vxo2 = Q()
    vw = [Q() for _ in range(5)]; vw8 = Q(); vw4 = Q()
    a(f"s_mul_i32 s{sM0w}, s{sWave}, 20480")
    tokD = {}
    def ops_dma(k):
        out = []
        for i in range(5):
            def f(i=i):
                if i == 0:
                    a(f"s_add_u32 m0, s{sM0w}, {5120*(k%4)}")
                    a(f"s_add_u32 s{sXoff}, s{sOA}, {32*1280*k}")
                if i == 4: a(f"s_add_u32 m0, s{sM0w}, {5120*(k%4) + 4096}")
                a(f"buffer_load_dwordx4 v{vw[i]}, s[{sW2}:{sW2+3}], s{sXoff} offen offset:{1024*i if i < 4 else 0} lds")
                tokD[k] = a.vtok()
            out.append(f)
        return out
    tokL = {}
    def op_rw(k, rt):
        o = WR[5 * (k % 5) + rt]
        for e in range(2):
            if rt < 4: a(f"ds_read_b64_tr_b16 {v(o+2*e,2)}, v{vw8} offset:{5120*(k%4) + 64*(rt>>1) + 8*(rt&1) + 2560*e}")
            else: a(f"ds_read_b64_tr_b16 {v(o+2*e,2)}, v{vw4} offset:{5120*(k%4) + 128 + 2560*e}")
        tokL[(k, rt)] = a.ltok()
    a("s_waitcnt lgkmcnt(0)")
    stamp(a, 6)
    k = 0
    for P in range(3):
        for ct in range(2):
            op = outp[k % 2]; k += 1
            if k == 1: dq = sum([ops_dma(k_) for k_ in range(4)], [])
            def dq_pop():
                if len(dq) > 20 - ENV("NDQ", 0): dq.pop(0)()
            dq_pop()
            hs = []
            EP = ENV("EPLAIN", 0)
            for o in range(2):
                rt = 2 * P + o
                for hf in range(2):
                    h = acc[rt][ct] + 2 * hf
                    tt = tmp[len(hs)]
                    if EP:
                        for z in range(2): a(f"v_fma_f32 v{tt+z}, v{csv[rt]+2*hf+z}, v{rm[ct]}, v{b1v[rt]+2*hf+z}")
                        for z in range(2): a(f"v_fma_f32 v{h+z}, v{h+z}, v{rr[ct]}, v{tt+z}")
                    else:
                        a(f"v_pk_fma_f32 {v(tt,2)}, {v(csv[rt]+2*hf,2)}, {v(rm[ct],2)}, {v(b1v[rt]+2*hf,2)} op_sel_hi:[1,0,1]")
                        a(f"v_pk_fma_f32 {v(h,2)}, {v(h,2)}, {v(rr[ct],2)}, {v(tt,2)} op_sel_hi:[1,0,1]")
                    hs.append(h)
            def pmul(d, x, y):
                if EP:
                    for z in range(2): a(f"v_mul_f32 v{d+z}, " + (f"s50, v{x+z}" if y is None else f"v{x+z}, v{y+z}"))
                else: a(f"v_pk_mul_f32 {v(d,2)}, {v(x,2)}, " + ("s[50:51]" if y is None else v(y, 2)))
            def padd2(d, x):
                if EP:
                    for z in range(2): a(f"v_add_f32 v{d+z}, 2.0, v{x+z}")
                else: a(f"v_pk_add_f32 {v(d,2)}, {v(x,2)}, 2.0 op_sel_hi:[1,0]")
            for i, h in enumerate(hs): pmul(tmp[i], h, None)
            for i, h in enumerate(hs):
                a(f"v_min_f32 v{tmp[i]}, {f32(30.0)}, v{tmp[i]}")
                a(f"v_min_f32 v{tmp[i]+1}, {f32(30.0)}, v{tmp[i]+1}")
            dq_pop()
            for i, h in enumerate(hs):
                a(f"v_exp_f32 v{tmp[i]}, v{tmp[i]}")
                a(f"v_exp_f32 v{tmp[i]+1}, v{tmp[i]+1}")
            dq_pop()
            for i, h in enumerate(hs): padd2(tmp[4+i], tmp[i])
            for i, h in enumerate(hs): pmul(tmp[i], tmp[i], tmp[4+i])
            for i, h in enumerate(hs): padd2(tmp[4+i], tmp[i])
            for i, h in enumerate(hs):
                a(f"v_rcp_f32 v{tmp[4+i]}, v{tmp[4+i]}")
                a(f"v_rcp_f32 v{tmp[4+i]+1}, v{tmp[4+i]+1}")
            dq_pop()
            for i, h in enumerate(hs): pmul(h, h, tmp[i])
            for i, h in enumerate(hs): pmul(h, h, tmp[4+i])
            for i, h in enumerate(hs): a(f"v_cvt_pk_bf16_f32 v{op+i}, v{h}, v{h+1}")
            if ct == 0:
                a(f"buffer_store_dwordx4 {v(op,4)}, v{v16}, s[{sWS}:{sWS+3}], s{sP[P]} offen sc1")
            else:
                a(f"s_add_u32 s{sT}, s{sP[P]}, {48*1024}")
                a(f"buffer_store_dwordx4 {v(op,4)}, v{v16}, s[{sWS}:{sWS+3}], s{sT} offen sc1")
    tokst_ = a.vtok()
    stamp(a, 7)
    for i in range(5):
        a(f"v_add_u32 v{t0}, {64*i}, v{lane}")
        a(f"v_mul_u32_u24 v{t1}, 0xcccd, v{t0}")
        a(f"v_lshrrev_b32 v{t1}, 19, v{t1}")
        a(f"v_mul_u32_u24 v{t2}, 10, v{t1}")
        a(f"v_sub_u32 v{t2}, v{t0}, v{t2}")
        a(f"v_mul_u32_u24 v{t1}, 1280, v{t1}")
        a(f"v_lshl_add_u32 v{vw[i]}, v{t2}, 4, v{t1}")
        if 0 < i < 4: a(f"v_subrev_u32 v{vw[i]}, {1024*i}, v{vw[i]}")
    a("s_barrier")
    a(f"s_lshl_b32 s{sT}, s{sRB}, 4")
    a(f"s_add_u32 s{sT}, s{sT}, s{sCB}")
    a(f"s_lshl_b32 s{sT}, s{sT}, 2")
    a(f"s_add_u32 s{sT}, s{sT}, s{sWave}")
    a(f"s_lshl_b32 s{sT}, s{sT}, 7")
    a(f"s_add_u32 s{sT}, s{sT}, {WS_FACT}")
    a(f"v_mov_b32 v{vtok}, s{sTok}")

    for ct in range(4):
        a(f"s_add_u32 s{sT2}, s{sWave}, {ct}")
        a(f"s_and_b32 s{sT2}, s{sT2}, 3")
        a(f"s_mul_i32 s{sT2}, s{sT2}, {48*1024}")
        a(f"v_add_u32 v{vB[ct]}, s{sT2}, v{v16}")
    a(f"v_lshrrev_b32 v{t1}, 2, v{lane}")
    a(f"v_mul_u32_u24 v{t1}, 160, v{t1}")
    a(f"v_add_u32 v{t1}, s{sM0w}, v{t1}")
    a(f"v_and_b32 v{t2}, 3, v{lane}")
    a(f"v_lshl_add_u32 v{vw8}, v{t2}, 4, v{t1}")
    a(f"v_lshl_add_u32 v{vw4}, v{t2}, 3, v{t1}")
    def do_publish():
        a.wait(vm=tokst_)
        a("s_mov_b64 exec, 1")
        a(f"buffer_store_dword v{vtok}, v{vzero}, s[{sWS}:{sWS+3}], s{sT} offen sc1")
        a("s_mov_b64 exec, -1")
        if ENV("GPRIO2", 2): a(f"s_setprio {ENV('GPRIO3', 0)}")
        stamp(a, 8)
    for _ in range(min(len(dq), 10)): dq.pop(0)()
    a(f"v_and_b32 v{t0}, 3, v{lane}")
    a(f"v_bfe_u32 v{t1}, v{lane}, 2, 1")
    a(f"v_lshl_add_u32 v{vfa}, v{t0}, 2, v{t1}")
    a(f"v_lshlrev_b32 v{vfa}, 7, v{vfa}")
    a(f"s_lshr_b32 s{sFB}, s{sTB}, 1")
    a(f"s_lshl_b32 s{sFB}, s{sFB}, 2")
    a(f"s_add_u32 s{sFB}, s{sFB}, s{sWave}")
    a(f"s_lshl_b32 s{sFB}, s{sFB}, 3")
    a(f"s_and_b32 s{sT2}, s{sTB}, 1")
    a(f"s_add_u32 s{sFB}, s{sFB}, s{sT2}")
    a(f"s_lshl_b32 s{sFB}, s{sFB}, 8")
    a(f"s_add_u32 s{sFB}, s{sFB}, {WS_FACT}")
    a(f"v_mul_u32_u24 v{t0}, {48*1024}, v{t0}")
    a(f"v_lshrrev_b32 v{t1}, 2, v{lane}")
    a(f"v_lshl_add_u32 v{t0}, v{t1}, 10, v{t0}")
    a(f"s_lshl_b32 s{sT2}, s{sJD}, 7")
    a(f"s_add_u32 s{sT2}, s{sT2}, s{sOB}")
    do_publish()
    while dq: dq.pop(0)()
    def rd(k):
        a.wait(vm=tokD[k])
        for rt in range(5): op_rw(k, rt)
    def dm(k):
        a.wait(lg=tokL[(k - 4, 4)])
        for f in ops_dma(k): f()
    tokB = {}; tokBc = {}
    def issue_b(k):
        for ct in range(4):
            a(f"buffer_load_dwordx4 {v(FB[k%NST][ct],4)}, v{vB[ct]}, s[{sWS}:{sWS+3}], s{sOB} offen sc1")
            tokBc[(k, ct)] = a.vtok()
        tokB[k] = a.vtok()
        if k < 11: a(f"s_add_u32 s{sOB}, s{sOB}, 1024")
    FPOS = ENV("FPOS", 2)
    def fl():
        ld_first(8); tk["fa"] = a.vtok()
    rd(0); rd(1); dm(4); rd(2)
    if FPOS == 0: fl()
    dm(5)
    if FPOS == 1: fl()
    rd(3); dm(6)
    if FPOS == 2:
        fl(); dm(7)
    stamp(a, 14)
    a.wait(vm=tk["fa"])
    check_flags(a, [vfl], vfa, ld_w2flags, sleep=ENV("ASLEEP", 3))
    stamp(a, 9)
    if ENV("GPRIO2", 2): a(f"s_setprio {ENV('GPRIO4', 0)}")
    if ENV("PFA", 0):
        a("s_mov_b32 exec_hi, 0xffff")
        a(f"buffer_load_dword v{t3}, v{t0}, s[{sWS}:{sWS+3}], s{sT2} offen sc1")
        a("s_mov_b32 exec_hi, -1")
    for k in range(NST): issue_b(k)
    if FPOS != 2: dm(7)
    rd(4)
    D8 = ENV("D8", 1)
    if D8: dm(8)
    sXo = 40
    a(f"s_lshl_b32 s{sXo}, s{sTB}, 6")
    a(f"s_lshl_b32 s{sT2}, s{sWave}, 4")
    a(f"s_add_u32 s{sXo}, s{sXo}, s{sT2}")
    a(f"s_mul_i32 s{sXo}, s{sXo}, 1280")
    a(f"s_mul_i32 s{sT2}, s{sJD}, 160")
    a(f"s_add_u32 s{sXo}, s{sXo}, s{sT2}")
    vso = vxo; vlw = vxo2
    a(f"v_lshrrev_b32 v{t0}, 3, v{lane}")
    a(f"v_and_b32 v{t1}, 7, v{lane}")
    a(f"v_lshlrev_b32 v{t1}, 4, v{t1}")
    a(f"v_lshl_add_u32 v{vso}, v{t0}, 12, v{t1}")
    a(f"s_mul_i32 s{sM0x}, s{sWave}, 2560")
    STOFF = 61440; XSOFF = 71680
    a(f"v_min_u32 v{vfa}, 19, v{lane}")
    a(f"v_lshlrev_b32 v{vfa}, 7, v{vfa}")
    a(f"s_mul_i32 s{sT3}, s{sJD}, 80")
    a(f"s_mul_i32 s{sT}, s{sWave}, 20")
    a(f"s_add_u32 s{sWoff}, s{sT3}, s{sT}")
    a(f"s_lshl_b32 s{sT3}, s{sWoff}, 7")
    a(f"s_lshr_b32 s{sT}, s{sTB}, 3")
    a(f"s_lshl_b32 s{sT}, s{sT}, 2")
    a(f"s_add_u32 s{sT3}, s{sT3}, s{sT}")
    a(f"s_add_u32 s{sFB}, s{sT3}, {WS_FST}")
    slot = {f: f % 25 for f in range(60)}
    assert D8
    def ld_b(k, ct):
        a(f"buffer_load_dwordx4 {v(FB[k%NST][ct],4)}, v{vB[ct]}, s[{sWS}:{sWS+3}], s{sOB} offen sc1")
        tokBc[(k, ct)] = a.vtok()
        if ct == 3:
            tokB[k] = a.vtok()
            if k < 11: a(f"s_add_u32 s{sOB}, s{sOB}, 1024")
    for k in range(12):
        dma = ops_dma(k + 8) if 1 <= k <= 3 else []
        if k >= 4: a.wait(lg=tokL[(k, 4)])
        for ct in range(4):
            a.wait(vm=tokBc[(k, ct)])
            if ct == 2 and dma: a.wait(lg=tokL[(k + 4, 4)])
            for rt in range(5):
                c = "0" if k == 0 else v(acc2[rt][ct], 4)
                a(f"v_mfma_f32_16x16x32_bf16 {v(acc2[rt][ct],4)}, {v(WR[slot[5*k+rt]],4)}, {v(FB[k%NST][ct],4)}, {c}")
                if ct == 0 and 1 <= k <= 7:
                    if rt == 0: a.wait(vm=tokD[k + 4])
                    op_rw(k + 4, rt)
                if rt == 0 and ct >= 1 and k + NST < 12: ld_b(k + NST, ct - 1)
                if ct >= 2 and rt in (1, 2, 4) and dma: dma.pop(0)()
        while dma: dma.pop(0)()
        if k + NST < 12: ld_b(k + NST, 3)
        if k in (0, 5): stamp(a, {0: 10, 5: 11}[k])
        if k == ENV("STK", 6):
            ld_first(20); tokfl = a.vtok()
        if k == ENV("BARK", 7):
            a("s_waitcnt lgkmcnt(0)")
            a("s_barrier")
            a(f"s_add_u32 m0, s{sM0x}, {XSOFF}")
            for i in range(3):
                if i == 2: a("s_mov_b32 exec_hi, 0")
                a(f"buffer_load_dwordx4 v{vw[i]}, s[{sX}:{sX+3}], s{sXo} offen offset:{1024*i} lds")
            if ENV("OPF", 0):
                a(f"v_lshrrev_b32 v{t0}, 1, v{lane}")
                a(f"v_mul_u32_u24 v{t0}, 1280, v{t0}")
                a(f"v_and_b32 v{t1}, 1, v{lane}")
                a(f"v_mul_u32_u24 v{t1}, 156, v{t1}")
                a(f"v_add_u32 v{t0}, v{t0}, v{t1}")
                a(f"buffer_load_dword v{vtok}, v{t0}, s[{sOUT}:{sOUT+3}], s{sXo} offen")
            a("s_mov_b32 exec_hi, -1")
        if k == ENV("STK2", 8):
            a.wait(vm=tokfl)
            check_flags(a, [vfl], vfa, ld_w2flags, sleep=ENV("STSLEEP", 8))
            a(f"s_lshl_b32 s{sT}, s{sWoff}, 12")
            a(f"s_lshl_b32 s{sT2}, s{sTB}, 7")
            a(f"s_add_u32 s{sT}, s{sT}, s{sT2}")
            a(f"s_add_u32 s{sT}, s{sT}, {WS_ST}")
            for i in range(3):
                if i == 2: a("s_mov_b32 exec_hi, 0")
                a(f"s_add_u32 m0, s{sM0x}, {STOFF + 1024*i}")
                a(f"buffer_load_dwordx4 v{vso}, s[{sWS}:{sWS+3}], s{sT} offen sc1 lds")
                if i < 2: a(f"s_add_u32 s{sT}, s{sT}, {8*4096}")
            a("s_mov_b32 exec_hi, -1")
        if k == 10:
            for ct in range(1, 4):
                a(f"s_add_u32 s{sT2}, s{sWave}, {ct}")
                a(f"s_and_b32 s{sT2}, s{sT2}, 3")
                a(f"s_mul_i32 s{sT2}, s{sT2}, 15360")
                a(f"v_add_u32 v{vB[ct]}, s{sT2}, v{v16}")
            break
    k = 11
    a.wait(vm=tokB[k]); a.wait(lg=tokL[(k, 4)])
    vt8, vt4, vx16, vx8 = [FB[0][0] + i for i in range(4)]
    misc = [f"v_lshrrev_b32 v{t2}, 4, v{lane}", f"v_bfe_u32 v{t0}, v{lane}, 2, 2",
            f"v_lshl_add_u32 v{t1}, v{t2}, 3, v{t0}", f"v_lshl_add_u32 v{t0}, v{t2}, 2, v{t0}", f"v_and_b32 v{t3}, 3, v{lane}"]
    pend = []
    for ct in (1, 2, 3, 0):
        for rt in range(5):
            a(f"v_mfma_f32_16x16x32_bf16 {v(acc2[rt][ct],4)}, {v(WR[slot[5*k+rt]],4)}, {v(FB[k%NST][ct],4)}, {v(acc2[rt][ct],4)}")
            if ct == 1: a(misc[rt])
            elif pend: a(pend.pop(0))
        if ct: pend += [f"ds_write_b128 v{vB[ct]}, {v(acc2[rt][ct],4)} offset:{(ct-1)*5120 + rt*1024}" for rt in range(5)]
    stamp(a, 12)
    Pr = [[acc2[rt][p + 1] for rt in range(5)] for p in range(3)]
    T = [WR[10 + i // 2] + 2 * (i % 2) for i in range(10)]
    sv = [WR[15 + i // 2] + 2 * (i % 2) for i in range(5)]
    xq = [WR[18], WR[19], WR[20]]
    op = [WR[21], WR[22], WR[23]]
    a(f"s_lshl_b32 s{sT}, s{sWave}, 5")
    a(f"s_add_u32 s{sT}, s{sT}, {STOFF}")
    a(f"v_lshl_add_u32 v{t3}, v{t3}, 3, s{sT}")
    a(f"v_lshl_add_u32 v{vt8}, v{t1}, 7, v{t3}")
    a(f"v_lshl_add_u32 v{vt4}, v{t0}, 7, v{t3}")
    a(f"v_and_b32 v{t0}, 15, v{lane}")
    a(f"v_mul_u32_u24 v{t0}, 160, v{t0}")
    a(f"s_add_u32 s{sT}, s{sM0x}, {XSOFF}")
    a(f"v_add_u32 v{t0}, s{sT}, v{t0}")
    a(f"v_lshl_add_u32 v{vx16}, v{t2}, 4, v{t0}")
    a(f"v_lshl_add_u32 v{vx8}, v{t2}, 3, v{t0}")
    a(f"v_add_u32 v{vlw}, s{sT}, v{v16}")
    a(f"s_mul_i32 s{sT2}, s{sWave}, 15360")
    a(f"v_add_u32 v{t3}, s{sT2}, v{v16}")
    a(f"s_mov_b32 s50, {f32(-LOG2E)}"); a(f"s_mov_b32 s51, {f32(-LOG2E)}")
    a("s_waitcnt vmcnt(0) lgkmcnt(0)")
    a("s_barrier")
    stamp(a, 13)
    tkr = {}
    for rt in range(5):
        for p in range(3):
            a(f"ds_read_b128 {v(Pr[p][rt],4)}, v{t3} offset:{p*5120 + rt*1024}")
        tkr[rt] = a.ltok()
    o2 = []
    late = [f"ds_read_b64_tr_b16 {v(sv[rt],2)}, v{vt8} offset:{128*(32*(rt>>1) + 4*(rt&1))}" for rt in range(4)]
    late += [f"ds_read_b64_tr_b16 {v(sv[4],2)}, v{vt4} offset:{128*64}", f"ds_read_b128 {v(xq[0],4)}, v{vx16}",
             f"ds_read_b128 {v(xq[1],4)}, v{vx16} offset:64", f"ds_read_b64 {v(xq[2],2)}, v{vx8} offset:128"]
    for rt in range(5):
        a.wait(lg=tkr[rt])
        for hf in range(2):
            d = acc2[rt][0] + 2 * hf
            a(f"v_pk_add_f32 {v(Pr[0][rt]+2*hf,2)}, {v(Pr[0][rt]+2*hf,2)}, {v(Pr[1][rt]+2*hf,2)}")
            a(f"v_pk_add_f32 {v(d,2)}, {v(d,2)}, {v(Pr[2][rt]+2*hf,2)}")
            a(f"v_pk_add_f32 {v(d,2)}, {v(d,2)}, {v(Pr[0][rt]+2*hf,2)}")
            o2.append(d)
    for x_ in late: a(x_)
    for i, d in enumerate(o2): a(f"v_pk_mul_f32 {v(T[i],2)}, {v(d,2)}, s[50:51]")
    for i, d in enumerate(o2):
        a(f"v_exp_f32 v{T[i]}, v{T[i]}")
        a(f"v_exp_f32 v{T[i]+1}, v{T[i]+1}")
    for i, d in enumerate(o2): a(f"v_pk_add_f32 {v(T[i],2)}, {v(T[i],2)}, 1.0 op_sel_hi:[1,0]")
    for i, d in enumerate(o2):
        a(f"v_rcp_f32 v{T[i]}, v{T[i]}")
        a(f"v_rcp_f32 v{T[i]+1}, v{T[i]+1}")
    a("s_waitcnt lgkmcnt(0)")
    for i, d in enumerate(o2):
        s_ = sv[i // 2] + i % 2
        x_ = xq[i // 4] + i % 4
        U_ = Pr[0][i // 2] + 2 * (i % 2)
        V_ = Pr[1][i // 2] + 2 * (i % 2)
        a(f"v_pk_mul_f32 {v(d,2)}, {v(d,2)}, {v(T[i],2)}")
        a(f"v_lshlrev_b32 v{U_}, 16, v{s_}")
        a(f"v_and_b32 v{U_+1}, 0xffff0000, v{s_}")
        a(f"v_lshlrev_b32 v{V_}, 16, v{x_}")
        a(f"v_and_b32 v{V_+1}, 0xffff0000, v{x_}")
        a(f"v_pk_fma_f32 {v(d,2)}, {v(d,2)}, {v(U_,2)}, {v(V_,2)}")
        a(f"v_cvt_pk_bf16_f32 v{op[i//4] + i%4}, v{d}, v{d+1}")
        if i == 3: a(f"ds_write_b128 v{vx16}, {v(op[0],4)}")
        if i == 7: a(f"ds_write_b128 v{vx16}, {v(op[1],4)} offset:64")
    a(f"ds_write_b64 v{vx8}, {v(op[2],2)} offset:128")
    for i in range(3):
        a(f"ds_read_b128 {v(xq[i],4)}, v{vlw} offset:{1024*i}")
    for i in range(3):
        a(f"s_waitcnt lgkmcnt({2-i})")
        if i == 2: a("s_mov_b32 exec_hi, 0")
        a(f"buffer_store_dwordx4 {v(xq[i],4)}, v{vw[i]}, s[{sOUT}:{sOUT+3}], s{sXo} offen offset:{1024*i} {os.environ.get('OUTMOD', '')}")
    stamp_end(a, sWave)
    return 256

def main(out):
    ref = open(f"cdna_kernels/{NAME}.s.ref").read().split("\n")
    hdr = [l for l in ref if l.startswith(";") and "@launch" not in l]
    hdr.append(f"; @launch grid=(512,1,1) block=(256,1,1) lds={LDS_BYTES}")
    hdr += """;
; One launch, 512 co-resident workgroups (two per CU), generated by gen/gen2.py.
;  workgroups 0..255   (S): wave 3 layer-norms 8 rows -> XT2 (transposed) + row stats; waves 0..2 build the S4 kernel
;                           K[d, bf16(l)] of one channel each as a 32x32 MFMA product of power tables; then the causal
;                           convolution runs as Toeplitz MFMA tiles (Dskip folded into tap 0) -> ST.
;  workgroups 256..511 (G): GEMM1 on raw x (128x96 tile, LN applied in the epilogue from the row stats and column sums
;                           of w1) -> mish -> ACT fragments; GEMM2 (64x80 tile, K split over the waves) -> silu gate,
;                           out = x + s*g.
;  Hand-offs between workgroups: write-through stores, drained, then a flag word holding a per-launch token
;  (installed in d_debug); readers poll with bounded spins and read the data with sc1 loads.""".split("\n")
    a = Asm()
    a.raw(f'.amdgcn_target "amdgcn-amd-amdhsa--gfx950"\n.text\n.globl {KN}\n.p2align 8\n.type {KN},@function')
    a.label(KN)
    a("s_cmp_ge_u32 s2, 512")
    a("s_cbranch_scc1 K_exit")
    if ENV("SWAP", 0): a("s_xor_b32 s2, s2, 256")
    if ENV("CPF", 1):
        a("s_getpc_b64 s[18:19]")
        a("s_and_b32 s18, s18, 0xffffff00")
        a("s_lshr_b32 s3, s2, 3")
        a("s_xor_b32 s3, s3, 32")
        a("s_lshl_b32 s3, s3, 9")
        a("s_add_u32 s18, s18, s3")
        a("s_addc_u32 s19, s19, 0")
        a("v_lshrrev_b32 v252, 6, v0")
        a("v_lshlrev_b32 v252, 7, v252")
        a("v_mov_b32 v253, s19")
        a("v_add_co_u32 v252, vcc, s18, v252")
        a("v_addc_co_u32 v253, vcc, 0, v253, vcc")
        a("s_mov_b64 exec, 1")
        a("global_load_dword v254, v[252:253], off")
        a("s_mov_b64 exec, -1")
    a("s_cmp_lt_u32 s2, 256")
    a("s_cbranch_scc1 " + ("K_exit" if ENV("NOS", 0) else "S_role"))
    if ENV('NOG', 0): a("s_branch K_exit")
    _role[0] = "G"
    hg = g_role(a)
    _role[0] = "S"
    a.label("S_role"); a.flush_hist()
    hs = s_role(a)
    a.label("K_exit")
    a("s_endpgm")
    if ENV("CPF", 1): a.raw(".p2align 15")
    print("vgprs", hg, hs, "nops", a.nnop, "lines", len(a.items), file=sys.stderr)
    kd = f""".section .rodata,"a"
.p2align 6
.amdhsa_kernel {KN}
  .amdhsa_next_free_vgpr 256
  .amdhsa_next_free_sgpr {102 if STAMPS else 64}
  .amdhsa_accum_offset 256
  .amdhsa_group_segment_fixed_size 0
  .amdhsa_kernarg_size 128
  .amdhsa_user_sgpr_count 2
  .amdhsa_user_sgpr_kernarg_segment_ptr 1
  .amdhsa_system_sgpr_workgroup_id_x 1
  .amdhsa_float_denorm_mode_32 3
  .amdhsa_float_denorm_mode_16_64 3
.end_amdhsa_kernel
"""
    open(out, "w").write("\n".join(hdr) + "\n" + a.text() + kd)

if __name__ == "__main__":
    main(sys.argv[1] if len(sys.argv) > 1 else f"cdna_kernels/{NAME}.s")
```
